```python
import torch

def _softmax(x, axis=-1):
    return torch.softmax(x, dim=axis)
def _gelu(x):
    return torch.nn.functional.gelu(x, approximate="tanh")
def _silu(x):
    return torch.nn.functional.silu(x)
def _sigmoid(x):
    return torch.sigmoid(x)
def _layernorm(x, axis=-1, eps=1e-5):
    m = x.mean(dim=axis, keepdim=True)
    v = x.var(dim=axis, keepdim=True, unbiased=False)
    return (x - m) / torch.sqrt(v + eps)
def _scatter_add(tgt, idx, src, axis=0):
    return tgt.clone().index_add_(axis, idx, src)
def _segment_sum(src, seg, n):
    out = torch.zeros((n,) + src.shape[1:], dtype=src.dtype)
    return out.index_add_(0, seg, src)
def _pad(x, pw):
    flat = tuple(v for pair in reversed(pw) for v in pair)
    return torch.nn.functional.pad(x, flat)

kernel_name = 'interleave_layers__grouped_kv_mqa__dense_activation_relu__prompt'

def setup_inputs():

    _w = (lambda a: (lambda t: t.to(torch.bfloat16) if t.is_floating_point() else t)(torch.as_tensor(a)))
    def _A_setup():
        B, S, D, H = 1, 2048, 512, 32
        Dh = D // H
        return {
            "x": _w((lambda *s: torch.randn(*s, dtype=torch.bfloat16) * 0.05)(B, S, D)),
            "wq": _w((lambda *s: torch.randn(*s, dtype=torch.bfloat16) * 0.05)(D, H * Dh)),
            "wk": _w((lambda *s: torch.randn(*s, dtype=torch.bfloat16) * 0.05)(D, Dh)),
            "wv": _w((lambda *s: torch.randn(*s, dtype=torch.bfloat16) * 0.05)(D, Dh)),
            "wo": _w((lambda *s: torch.randn(*s, dtype=torch.bfloat16) * 0.05)(H * Dh, D)),
        }
    _A_in = _A_setup()

    def _B_setup():
        B, S, D, Dff = 1, 2048, 512, 1792
        return {
            "x": _w((lambda *s: torch.randn(*s, dtype=torch.bfloat16) * 0.05)(B, S, D)),
            "w1": _w((lambda *s: torch.randn(*s, dtype=torch.bfloat16) * 0.05)(D, Dff)),
            "w2": _w((lambda *s: torch.randn(*s, dtype=torch.bfloat16) * 0.05)(Dff, D)),
        }
    _B_in = _B_setup()

    return {
        "A_x": _A_in["x"],
        "A_wq": _A_in["wq"],
        "A_wk": _A_in["wk"],
        "A_wv": _A_in["wv"],
        "A_wo": _A_in["wo"],
        "B_x": _B_in["x"],
        "B_w1": _B_in["w1"],
        "B_w2": _B_in["w2"],
    }

def reference(A_x, A_wq, A_wk, A_wv, A_wo, B_x, B_w1, B_w2):
    def _A_ref(x, wq, wk, wv, wo):
        B, S, D = x.shape
        H = 32
        Dh = D // H
        q = (lambda x, *d: x.permute(*d))((x @ wq).reshape(B, S, H, Dh), 0, 2, 1, 3)
        k = x @ wk
        v = x @ wv
        scores = torch.einsum("bhqd,bkd->bhqk", q, k) * (Dh ** -0.5)
        p = _softmax(scores, axis=-1)
        o = torch.einsum("bhqk,bkd->bhqd", p, v)
        return (lambda x, *d: x.permute(*d))(o, 0, 2, 1, 3).reshape(B, S, H * Dh) @ wo

    def _B_ref(x, w1, w2):
        h = torch.einsum("bsd,df->bsf", x, w1)
        zero = torch.zeros_like(h)
        h = torch.maximum(h, zero)
        return torch.einsum("bsf,fd->bsd", h, w2)

    x = A_x
    x = x + _A_ref(_layernorm(x, axis=-1), A_wq, A_wk, A_wv, A_wo)
    x = x + _B_ref(_layernorm(x, axis=-1), B_w1, B_w2)
    x = x + _A_ref(_layernorm(x, axis=-1), A_wq, A_wk, A_wv, A_wo)
    x = x + _B_ref(_layernorm(x, axis=-1), B_w1, B_w2)
    return x
```

```python
import sys

NAME = "interleave_layers__grouped_kv_mqa__dense_activation_relu__prompt"

WQF = 0x000000
WOF = 0x080000
W1F = 0x100000
W2F = 0x2C0000
WKVF = 0x480000
CSQ = 0x488000
CS1 = 0x488800
CSKV = 0x48A400
KN = 0x48B000
XF = 0x500000
QF = 0x700000
OF = 0x900000
X1F = 0xB00000
HF = 0x1000000
KVF = 0x1800000
WS_USED = 0x1900000
KVT = 2112
KVF_BYTES = 64 * KVT

QS = 0.25 * 1.4426950408889634
EPS = 1e-5

import struct


def f2u(x):
    return struct.unpack('<I', struct.pack('<f', x))[0]


class Asm:
    def __init__(self):
        self.L = []
        self.kernels = []

    def __call__(self, s):
        for line in s.split('\n'):
            line = line.strip()
            if line:
                self.L.append(('' if line.endswith(':') else '    ') + line)

    def nop(self, n):
        while n > 0:
            k = min(n, 16)
            self(f"s_nop {k-1}")
            n -= k

    def begin(self, name):
        self.L.append(f".globl {name}")
        self.L.append(".p2align 8")
        self.L.append(f".type {name},@function")
        self.L.append(f"{name}:")

    def desc(self, name, vgpr, agpr=0, sgpr=96):
        acc = (vgpr + 3) // 4 * 4
        nfv = acc + agpr if agpr else vgpr
        self.kernels.append(f""".p2align 6
.amdhsa_kernel {name}
  .amdhsa_next_free_vgpr {nfv}
  .amdhsa_next_free_sgpr {sgpr}
  .amdhsa_accum_offset {acc}
  .amdhsa_group_segment_fixed_size 0
  .amdhsa_kernarg_size 88
  .amdhsa_user_sgpr_count 2
  .amdhsa_user_sgpr_kernarg_segment_ptr 1
  .amdhsa_system_sgpr_workgroup_id_x 1
.end_amdhsa_kernel""")

    def srd(self, d, base, size):
        self(f"s_mov_b32 s{d}, s{base}")
        self(f"s_mov_b32 s{d+1}, s{base+1}")
        self(f"s_mov_b32 s{d+2}, {size:#x}")
        self(f"s_mov_b32 s{d+3}, 0x00020000")


def vr(a, n):
    return f"v[{a}:{a+n-1}]"


def ar(a, n):
    return f"a[{a}:{a+n-1}]"


def half_sum(a, x, t, op="v_add_f32"):
    a(f"v_mov_b32 v{t}, v{x}")
    a.nop(2)
    a(f"v_permlane32_swap_b32 v{x}, v{t}")
    a.nop(1)
    a(f"{op} v{x}, v{x}, v{t}")


def wave32_max(a, x, t):
    for off in (0x041F, 0x081F, 0x101F, 0x201F, 0x401F):
        a(f"ds_swizzle_b32 v{t}, v{x} offset:{off:#x}")
        a("s_waitcnt lgkmcnt(0)")
        a(f"v_max_f32 v{x}, v{x}, v{t}")


def gen_P(a):
    name = "prep_kernel"
    a.begin(name)
    a("s_cmp_ge_u32 s2, 217")
    a("s_cbranch_scc1 P_end")
    a("s_load_dwordx16 s[16:31], s[0:1], 0")
    a("s_load_dwordx2 s[32:33], s[0:1], 80")
    a("v_and_b32 v1, 63, v0")
    a("v_lshrrev_b32 v2, 6, v0")
    a("v_and_b32 v3, 31, v1")
    a("v_readfirstlane_b32 s3, v2")
    a("v_lshrrev_b32 v4, 5, v1")
    a("v_lshlrev_b32 v6, 4, v1")
    a("s_waitcnt lgkmcnt(0)")
    a.srd(36, 32, WS_USED)
    a("s_cmp_ge_u32 s2, 153")
    a("s_cbranch_scc1 P_x")
    a("s_cmp_eq_u32 s2, 152")
    a("s_cbranch_scc1 P_kv")
    a("s_mov_b32 s46, 0")
    a("s_mov_b32 s48, 32")
    a("s_cmp_ge_u32 s2, 88")
    a("s_cbranch_scc1 P_w2")
    a("s_cmp_ge_u32 s2, 32")
    a("s_cbranch_scc1 P_w1")
    a("s_cmp_ge_u32 s2, 16")
    a("s_cbranch_scc1 P_wo")
    a.srd(40, 18, 512 * 512 * 2)
    a("s_mov_b32 s44, 1024")
    a("s_mov_b32 s45, s2")
    a("s_lshl_b32 s47, s45, 15")
    a(f"s_add_u32 s47, s47, {WQF:#x}")
    a("s_lshl_b32 s49, s45, 7")
    a(f"s_add_u32 s49, s49, {CSQ:#x}")
    a("s_branch P_wgo")
    a("P_wo:")
    a.srd(40, 24, 512 * 512 * 2)
    a("s_mov_b32 s44, 1024")
    a("s_sub_u32 s45, s2, 16")
    a("s_lshl_b32 s47, s45, 15")
    a(f"s_add_u32 s47, s47, {WOF:#x}")
    a("s_mov_b32 s49, 0")
    a("s_branch P_wgo")
    a("P_w1:")
    a.srd(40, 28, 512 * 1792 * 2)
    a("s_mov_b32 s44, 3584")
    a("s_sub_u32 s45, s2, 32")
    a("s_lshl_b32 s47, s45, 15")
    a(f"s_add_u32 s47, s47, {W1F:#x}")
    a("s_lshl_b32 s49, s45, 7")
    a(f"s_add_u32 s49, s49, {CS1:#x}")
    a("s_branch P_wgo")
    a("P_w2:")
    a.srd(40, 30, 512 * 1792 * 2)
    a("s_mov_b32 s44, 1024")
    a("s_sub_u32 s45, s2, 88")
    a("s_and_b32 s46, s45, 3")
    a("s_mul_i32 s46, s46, 28")
    a("s_lshr_b32 s45, s45, 2")
    a("s_mul_i32 s47, s45, 112")
    a("s_add_u32 s47, s47, s46")
    a("s_lshl_b32 s47, s47, 10")
    a(f"s_add_u32 s47, s47, {W2F:#x}")
    a("s_mov_b32 s48, 28")
    a("s_mov_b32 s49, 0")
    a("P_wgo:")
    a("s_lshl_b32 s50, s3, 2")
    a("s_cmp_ge_u32 s50, s48")
    a("s_cbranch_scc1 P_end")
    a("s_lshl_b32 s51, s44, 2")
    a("v_mul_lo_u32 v5, v4, s51")
    a("v_lshl_add_u32 v5, v3, 1, v5")
    a("s_add_u32 s52, s46, s50")
    a("s_lshl_b32 s52, s52, 4")
    a("s_mul_i32 s52, s52, s44")
    a("s_lshl_b32 s53, s45, 6")
    a("s_add_u32 s52, s52, s53")
    a("s_mul_i32 s54, s44, 5")
    for i in range(4):
        for j in range(8):
            a(f"buffer_load_ushort v{16+8*i+j}, v5, s[40:43], s52 offen")
            a(f"s_add_u32 s52, s52, {'s54' if j in (3, 7) else 's44'}")
    a("P_pack:")
    a("s_lshl_b32 s53, s50, 10")
    a("s_add_u32 s53, s53, s47")
    a("v_mov_b32 v7, 0")
    a("s_mov_b32 s55, 0x3f803f80")
    for i in range(4):
        a(f"s_waitcnt vmcnt({8*(3-i) + i})")
        for q in range(4):
            a(f"v_lshl_or_b32 v{48+4*i+q}, v{16+8*i+2*q+1}, 16, v{16+8*i+2*q}")
        a(f"buffer_store_dwordx4 {vr(48+4*i,4)}, v6, s[36:39], s53 offen offset:{1024*i}")
        for q in range(4):
            a(f"v_dot2_f32_bf16 v7, v{48+4*i+q}, s55, v7")
    a("s_cmp_eq_u32 s49, 0")
    a("s_cbranch_scc1 P_end")
    a("v_lshlrev_b32 v8, 2, v0")
    a("ds_write_b32 v8, v7")
    a("s_waitcnt lgkmcnt(0)")
    a("s_barrier")
    a("s_cmp_lg_u32 s3, 0")
    a("s_cbranch_scc1 P_end")
    a("v_lshlrev_b32 v8, 2, v1")
    for w in range(8):
        a(f"ds_read_b32 v{16+w}, v8 offset:{256*w}")
    a("s_waitcnt lgkmcnt(0)")
    for w in range(1, 8):
        a(f"v_add_f32 v16, v16, v{16+w}")
    half_sum(a, 16, 17)
    a("v_cmp_gt_u32 vcc, 32, v1")
    a("s_and_saveexec_b64 s[56:57], vcc")
    a("buffer_store_dword v16, v8, s[36:39], s49 offen")
    a("s_branch P_end")
    a("P_kv:")
    a.srd(40, 20, 512 * 16 * 2)
    a.srd(60, 22, 512 * 16 * 2)
    a("s_lshl_b32 s50, s3, 2")
    a("v_and_b32 v5, 15, v3")
    a("v_lshlrev_b32 v5, 1, v5")
    a("v_lshl_add_u32 v5, v4, 7, v5")
    a("s_lshl_b32 s52, s50, 9")
    a("v_cmp_gt_u32 vcc, 16, v3")
    a("s_and_saveexec_b64 s[56:57], vcc")
    for i in range(4):
        for j in range(8):
            row = 16 * i + (j & 3) + 8 * (j >> 2)
            a(f"buffer_load_ushort v{16+8*i+j}, v5, s[40:43], s52 offen offset:{row*32}")
    a("s_andn2_b64 exec, s[56:57], exec")
    for i in range(4):
        for j in range(8):
            row = 16 * i + (j & 3) + 8 * (j >> 2)
            a(f"buffer_load_ushort v{16+8*i+j}, v5, s[60:63], s52 offen offset:{row*32}")
    a("s_mov_b64 exec, s[56:57]")
    a("s_waitcnt vmcnt(0)")
    a(f"s_mov_b32 s47, {WKVF:#x}")
    a(f"s_mov_b32 s49, {CSKV:#x}")
    a("s_branch P_pack")
    a("P_x:")
    a.srd(40, 16, 2048 * 512 * 2)
    a("s_sub_u32 s45, s2, 153")
    a("v_lshlrev_b32 v5, 10, v3")
    a("v_lshl_add_u32 v5, v4, 3, v5")
    a("s_lshl_b32 s52, s45, 15")
    a("s_lshl_b32 s50, s3, 7")
    a("s_add_u32 s52, s52, s50")
    for i in range(4):
        a(f"buffer_load_dwordx2 {vr(16+4*i,2)}, v5, s[40:43], s52 offen offset:{32*i}")
        a(f"buffer_load_dwordx2 {vr(18+4*i,2)}, v5, s[40:43], s52 offen offset:{32*i+16}")
    a("s_lshl_b32 s53, s45, 15")
    a("s_lshl_b32 s50, s3, 12")
    a("s_add_u32 s53, s53, s50")
    a(f"s_add_u32 s53, s53, {XF:#x}")
    for i in range(4):
        a(f"s_waitcnt vmcnt({2*(3-i)+i})")
        a(f"buffer_store_dwordx4 {vr(16+4*i,4)}, v6, s[36:39], s53 offen offset:{1024*i}")
    a("P_end:")
    a("s_endpgm")
    a.desc(name, 64)


def prologue(a, endlabel, out_ptr=False):
    a("s_cmp_ge_u32 s2, 256")
    a(f"s_cbranch_scc1 {endlabel}")
    a("s_load_dwordx2 s[6:7], s[0:1], 80")
    if out_ptr:
        a("s_load_dwordx2 s[12:13], s[0:1], 64")
    a("v_and_b32 v1, 63, v0")
    a("v_lshrrev_b32 v2, 6, v0")
    a("v_and_b32 v3, 31, v1")
    a("v_readfirstlane_b32 s3, v2")
    a("v_lshrrev_b32 v4, 5, v1")
    a("v_lshlrev_b32 v2, 4, v1")
    a("s_and_b32 s4, s2, 31")
    a("s_lshr_b32 s5, s2, 5")
    a("s_waitcnt lgkmcnt(0)")
    a.srd(8, 6, WS_USED)


def frag_loads(a, dst, sbase, idx, stmp):
    hi, lo = idx // 4, idx % 4
    if hi == 0:
        so = f"s{sbase}"
    else:
        a(f"s_add_u32 s{stmp}, s{sbase}, {hi*4096}")
        so = f"s{stmp}"
    a(f"buffer_load_dwordx4 {dst}, v2, s[8:11], {so} offen offset:{lo*1024}")


def gen_gemm_res(a, name, WFo, AFo, KS, RESo, OUTo, out_rowmajor):
    NW = 4
    ksw = KS // NW
    RING = min(ksw, 15)
    a.begin(name)
    end = f"{name}_end"
    prologue(a, end, out_ptr=out_rowmajor)
    if out_rowmajor:
        a.srd(16, 12, 2048 * 512 * 2)
    a(f"s_mul_i32 s24, s3, {ksw}")
    a("s_lshl_b32 s25, s5, 1")
    a(f"s_mul_i32 s20, s25, {KS}")
    a("s_add_u32 s20, s20, s24")
    a("s_lshl_b32 s20, s20, 10")
    a(f"s_add_u32 s20, s20, {WFo:#x}")
    a(f"s_add_u32 s21, s20, {KS*1024}")
    a("s_lshl_b32 s25, s4, 1")
    a(f"s_mul_i32 s22, s25, {KS}")
    a("s_add_u32 s22, s22, s24")
    a("s_lshl_b32 s22, s22, 10")
    a(f"s_add_u32 s22, s22, {AFo:#x}")
    a(f"s_add_u32 s23, s22, {KS*1024}")
    a("s_and_b32 s26, s3, 1")
    a("s_lshr_b32 s27, s3, 1")
    a("s_lshl_b32 s28, s4, 1")
    a("s_add_u32 s28, s28, s26")
    a("s_lshl_b32 s29, s5, 1")
    a("s_add_u32 s29, s29, s27")
    a("s_lshl_b32 s30, s28, 5")
    a("s_lshl_b32 s31, s29, 1")
    a("s_add_u32 s30, s30, s31")
    a("s_lshl_b32 s30, s30, 10")
    a(f"s_add_u32 s31, s30, {RESo:#x}")
    a("buffer_load_dwordx4 v[8:11], v2, s[8:11], s31 offen")
    a("buffer_load_dwordx4 v[12:15], v2, s[8:11], s31 offen offset:1024")
    R0 = 16

    def issue(i):
        b = R0 + 16 * (i % RING)
        frag_loads(a, vr(b, 4), 20, i, 32)
        frag_loads(a, vr(b + 4, 4), 21, i, 33)
        frag_loads(a, vr(b + 8, 4), 22, i, 34)
        frag_loads(a, vr(b + 12, 4), 23, i, 35)

    for i in range(RING):
        issue(i)
    for i in range(ksw):
        outstanding = min(ksw, i + RING) - i - 1
        a(f"s_waitcnt vmcnt({4*outstanding})")
        b = R0 + 16 * (i % RING)
        for c in range(2):
            for r in range(2):
                t = 2 * c + r
                cin = "0" if i == 0 else ar(16 * t, 16)
                a(f"v_mfma_f32_32x32x16_bf16 {ar(16*t,16)}, {vr(b+4*c,4)}, {vr(b+8+4*r,4)}, {cin}")
        if i + RING < ksw:
            issue(i + RING)
    a("s_lshl_b32 s32, s3, 12")
    a("v_add_u32 v5, s32, v2")
    a("s_lshl_b32 s32, s3, 14")
    a("v_add_u32 v6, s32, v2")
    a.nop(16)
    for t in range(4):
        for q in range(4):
            a(f"ds_write_b128 v5, {ar(16*t+4*q,4)} offset:{t*16384+q*1024}")
    a("s_waitcnt lgkmcnt(0)")
    a("s_barrier")
    for s in range(4):
        for q in range(4):
            a(f"ds_read_b128 {vr(R0+16*s+4*q,4)}, v6 offset:{s*4096+q*1024}")
    for q in range(8):
        a(f"v_lshlrev_b32 v{80+2*q}, 16, v{8+q}")
        a(f"v_and_b32 v{81+2*q}, 0xffff0000, v{8+q}")
    for s in range(4):
        a(f"s_waitcnt lgkmcnt({4*(3-s)})")
        for r in range(16):
            a(f"v_add_f32 v{80+r}, v{80+r}, v{R0+16*s+r}")
    for q in range(8):
        a(f"v_cvt_pk_bf16_f32 v{96+q}, v{80+2*q}, v{81+2*q}")
    if not out_rowmajor:
        a(f"s_add_u32 s31, s30, {OUTo:#x}")
        a("buffer_store_dwordx4 v[96:99], v2, s[8:11], s31 offen")
        a("buffer_store_dwordx4 v[100:103], v2, s[8:11], s31 offen offset:1024")
    else:
        a.nop(2)
        a("v_permlane32_swap_b32 v96, v98")
        a("v_permlane32_swap_b32 v97, v99")
        a("v_permlane32_swap_b32 v100, v102")
        a("v_permlane32_swap_b32 v101, v103")
        a("v_lshlrev_b32 v5, 10, v3")
        a("v_lshl_add_u32 v5, v4, 4, v5")
        a("s_lshl_b32 s31, s28, 15")
        a("s_lshl_b32 s32, s29, 6")
        a("s_add_u32 s31, s31, s32")
        a("buffer_store_dwordx4 v[96:99], v5, s[16:19], s31 offen")
        a("buffer_store_dwordx4 v[100:103], v5, s[16:19], s31 offen offset:32")
    a(f"{end}:")
    a("s_endpgm")
    a.desc(name, max(R0 + 16 * RING, 104), agpr=64)


def gen_qkv(a):
    name = "qkv_kernel"
    KS = 32
    ksw = 8
    a.begin(name)
    end = f"{name}_end"
    prologue(a, end)
    a(f"s_mul_i32 s24, s3, {ksw}")
    a("s_lshl_b32 s25, s5, 1")
    a(f"s_mul_i32 s20, s25, {KS}")
    a("s_add_u32 s20, s20, s24")
    a("s_lshl_b32 s20, s20, 10")
    a(f"s_add_u32 s20, s20, {WQF:#x}")
    a(f"s_add_u32 s21, s20, {KS*1024}")
    a("s_lshl_b32 s25, s4, 1")
    a(f"s_mul_i32 s22, s25, {KS}")
    a("s_add_u32 s22, s22, s24")
    a("s_lshl_b32 s22, s22, 10")
    a(f"s_add_u32 s22, s22, {XF:#x}")
    a(f"s_add_u32 s23, s22, {KS*1024}")
    a("s_lshl_b32 s37, s24, 10")
    a(f"s_add_u32 s37, s37, {WKVF:#x}")
    a("s_and_b32 s26, s3, 1")
    a("s_lshr_b32 s27, s3, 1")
    a("s_lshl_b32 s28, s4, 1")
    a("s_add_u32 s28, s28, s26")
    a("s_lshl_b32 s29, s5, 1")
    a("s_add_u32 s29, s29, s27")
    a("v_lshlrev_b32 v5, 4, v4")
    a("s_lshl_b32 s31, s29, 7")
    a(f"s_add_u32 s31, s31, {CSQ:#x}")
    for q in range(4):
        a(f"buffer_load_dwordx4 {vr(176+4*q,4)}, v5, s[8:11], s31 offen offset:{32*q}")
    a(f"s_mov_b32 s31, {CSKV:#x}")
    for q in range(2):
        a(f"buffer_load_dwordx4 {vr(192+4*q,4)}, v5, s[8:11], s31 offen offset:{32*q}")
    a("v_lshlrev_b32 v6, 2, v3")
    a("buffer_load_dword v200, v6, s[8:11], s31 offen")
    R0 = 16
    a("s_mov_b32 s36, 0x3f803f80")
    for r in range(4):
        a(f"v_mov_b32 v{8+r}, 0")
    a("s_cmp_eq_u32 s5, 0")
    a("s_cbranch_scc1 QKV_mainK")
    a("s_cmp_eq_u32 s5, 1")
    a("s_cbranch_scc1 QKV_mainV")

    def main(kind):
        nl = 5 if kind else 4
        for i in range(ksw):
            b = R0 + 20 * i
            frag_loads(a, vr(b, 4), 20, i, 32)
            frag_loads(a, vr(b + 4, 4), 21, i, 33)
            frag_loads(a, vr(b + 8, 4), 22, i, 34)
            frag_loads(a, vr(b + 12, 4), 23, i, 35)
            if kind:
                frag_loads(a, vr(b + 16, 4), 37, i, 38)
        for i in range(ksw):
            a(f"s_waitcnt vmcnt({nl*(ksw-1-i)})")
            b = R0 + 20 * i
            for c in range(2):
                for r in range(2):
                    t = 2 * c + r
                    cin = "0" if i == 0 else ar(16 * t, 16)
                    a(f"v_mfma_f32_32x32x16_bf16 {ar(16*t,16)}, {vr(b+4*c,4)}, {vr(b+8+4*r,4)}, {cin}")
                    for q in range(4):
                        x = b + 8 + 4 * r + q
                        if c == 0:
                            a(f"v_dot2_f32_bf16 v{8+2*r}, v{x}, s36, v{8+2*r}")
                        else:
                            a(f"v_dot2_f32_bf16 v{9+2*r}, v{x}, v{x}, v{9+2*r}")
            if kind:
                for r in range(2):
                    t = 4 + r
                    cin = "0" if i == 0 else ar(16 * t, 16)
                    if kind == 'K':
                        a(f"v_mfma_f32_32x32x16_bf16 {ar(16*t,16)}, {vr(b+16,4)}, {vr(b+8+4*r,4)}, {cin}")
                    else:
                        a(f"v_mfma_f32_32x32x16_bf16 {ar(16*t,16)}, {vr(b+8+4*r,4)}, {vr(b+16,4)}, {cin}")
        a("s_lshl_b32 s32, s3, 12")
        a("v_add_u32 v5, s32, v2")
        a("v_add_u32 v6, 0x10000, v5")
        a.nop(16)
        if kind:
            for t in (4, 5):
                for q in range(2 if kind == 'K' else 4):
                    a(f"ds_write_b128 v6, {ar(16*t+4*q,4)} offset:{(t-4)*16384+q*1024}")

    main(None)
    a("s_branch QKV_red")
    a("QKV_mainK:")
    main('K')
    a("s_branch QKV_red")
    a("QKV_mainV:")
    main('V')
    a("QKV_red:")
    STAT = 6 * 16384
    STAT2 = STAT + 4096
    for t in range(4):
        for q in range(4):
            a(f"ds_write_b128 v5, {ar(16*t+4*q,4)} offset:{t*16384+q*1024}")
    a("s_lshl_b32 s32, s3, 10")
    a(f"s_add_u32 s32, s32, {STAT}")
    a("v_add_u32 v7, s32, v2")
    a("ds_write_b128 v7, v[8:11]")
    a("s_lshl_b32 s32, s3, 14")
    a("v_add_u32 v6, s32, v2")
    a("s_lshl_b32 s32, s26, 3")
    a(f"s_add_u32 s32, s32, {STAT}")
    a("v_add_u32 v7, s32, v2")
    a("s_waitcnt lgkmcnt(0)")
    a("s_barrier")
    for s in range(4):
        a(f"ds_read_b64 {vr(8+2*s,2)}, v7 offset:{s*1024}")
    for s in range(4):
        for q in range(4):
            if s == 2 and q == 0:
                a("s_waitcnt lgkmcnt(8)")
            a(f"ds_read_b128 {vr(R0+16*s+4*q,4)}, v6 offset:{s*4096+q*1024}")
    for s in range(1, 4):
        a(f"v_add_f32 v8, v8, v{8+2*s}")
        a(f"v_add_f32 v9, v9, v{9+2*s}")
    half_sum(a, 8, 10)
    half_sum(a, 9, 10)
    a(f"v_mul_f32 v8, {f2u(1.0/512):#x}, v8")
    a(f"v_mul_f32 v9, {f2u(1.0/512):#x}, v9")
    a("v_fma_f32 v9, -v8, v8, v9")
    a("v_max_f32 v9, 0, v9")
    a(f"v_add_f32 v9, {f2u(EPS):#x}, v9")
    a("v_rsq_f32 v9, v9")
    a.nop(1)
    a("v_mul_f32 v10, v8, v9")
    a("v_sub_f32 v10, 0, v10")
    a(f"v_mul_f32 v11, {f2u(QS):#x}, v9")
    a(f"v_mul_f32 v12, {f2u(QS):#x}, v10")
    a("s_waitcnt vmcnt(0)")
    for s in range(1, 4):
        a(f"s_waitcnt lgkmcnt({4*(3-s)})")
        for r in range(16):
            a(f"v_add_f32 v{R0+r}, v{R0+r}, v{R0+16*s+r}")
    for r in range(16):
        a(f"v_mul_f32 v{176+r}, v12, v{176+r}")
        a(f"v_fma_f32 v{R0+r}, v{R0+r}, v11, v{176+r}")
    for q in range(8):
        a(f"v_cvt_pk_bf16_f32 v{96+q}, v{R0+2*q}, v{R0+2*q+1}")
    a("s_lshl_b32 s30, s28, 5")
    a("s_lshl_b32 s31, s29, 1")
    a("s_add_u32 s30, s30, s31")
    a("s_lshl_b32 s30, s30, 10")
    a(f"s_add_u32 s31, s30, {QF:#x}")
    a("buffer_store_dwordx4 v[96:99], v2, s[8:11], s31 offen")
    a("buffer_store_dwordx4 v[100:103], v2, s[8:11], s31 offen offset:1024")
    a("s_cmp_ge_u32 s3, 2")
    a(f"s_cbranch_scc1 {end}")
    a("s_cmp_ge_u32 s5, 2")
    a(f"s_cbranch_scc1 {end}")
    a("s_lshl_b32 s32, s3, 14")
    a(f"s_add_u32 s32, s32, {4*16384}")
    a("v_add_u32 v6, s32, v2")
    a(f"s_mul_i32 s33, s28, {KVT}")
    a(f"s_add_u32 s33, s33, {KVF:#x}")
    a("s_cmp_eq_u32 s5, 1")
    a("s_cbranch_scc1 QKV_finV")
    for s in range(4):
        for q in range(2):
            a(f"ds_read_b128 {vr(R0+16*s+4*q,4)}, v6 offset:{s*4096+q*1024}")
    a("s_waitcnt lgkmcnt(0)")
    for s in range(1, 4):
        for r in range(8):
            a(f"v_add_f32 v{R0+r}, v{R0+r}, v{R0+16*s+r}")
    a("v_mov_b32 v13, 0")
    for r in range(8):
        a(f"v_mul_f32 v{192+r}, v10, v{192+r}")
        a(f"v_fma_f32 v{R0+r}, v{R0+r}, v9, v{192+r}")
        a(f"v_fma_f32 v13, v{R0+r}, v{R0+r}, v13")
    for q in range(4):
        a(f"v_cvt_pk_bf16_f32 v{104+q}, v{R0+2*q}, v{R0+2*q+1}")
    a("buffer_store_dwordx4 v[104:107], v2, s[8:11], s33 offen")
    half_sum(a, 13, 14)
    wave32_max(a, 13, 14)
    a("s_lshl_b32 s32, s28, 2")
    a(f"s_add_u32 s32, s32, {KN:#x}")
    a("v_mov_b32 v14, 0")
    a("v_cmp_eq_u32 vcc, 0, v1")
    a("s_and_saveexec_b64 s[40:41], vcc")
    a("buffer_store_dword v13, v14, s[8:11], s32 offen")
    a(f"s_branch {end}")
    a("QKV_finV:")
    for s in range(4):
        for q in range(4):
            a(f"ds_read_b128 {vr(R0+16*s+4*q,4)}, v6 offset:{s*4096+q*1024}")
    a("s_lshl_b32 s32, s3, 8")
    a(f"s_add_u32 s32, s32, {STAT2}")
    a("v_lshlrev_b32 v7, 2, v3")
    a("v_add_u32 v7, s32, v7")
    a("ds_write_b32 v7, v9")
    a("ds_write_b32 v7, v10 offset:128")
    a("v_lshlrev_b32 v7, 4, v4")
    a("v_add_u32 v7, s32, v7")
    a("s_waitcnt lgkmcnt(0)")
    for q in range(4):
        a(f"ds_read_b128 {vr(112+4*q,4)}, v7 offset:{32*q}")
        a(f"ds_read_b128 {vr(128+4*q,4)}, v7 offset:{128+32*q}")
    for s in range(1, 4):
        for r in range(16):
            a(f"v_add_f32 v{R0+r}, v{R0+r}, v{R0+16*s+r}")
    a("s_waitcnt lgkmcnt(0)")
    for r in range(16):
        a(f"v_mul_f32 v{128+r}, v200, v{128+r}")
        a(f"v_fma_f32 v{R0+r}, v{R0+r}, v{112+r}, v{128+r}")
    for q in range(8):
        a(f"v_cvt_pk_bf16_f32 v{104+q}, v{R0+2*q}, v{R0+2*q+1}")
    a("v_cmp_le_u32 vcc, 16, v3")
    a("v_mov_b32 v13, 0x3f803f80")
    a("v_subrev_u32 v7, 16, v3")
    a("v_lshlrev_b32 v7, 4, v7")
    a("v_mov_b32 v14, 256")
    a("v_cndmask_b32 v7, v14, v7, vcc")
    for q in range(8):
        a(f"v_cndmask_b32 v{104+q}, v13, v{104+q}, vcc")
    a("v_mul_u32_u24 v14, 272, v4")
    a("v_add_u32 v7, v7, v14")
    a("v_cmp_eq_u32 s[40:41], 0, v3")
    a("s_or_b64 vcc, vcc, s[40:41]")
    a("s_and_saveexec_b64 s[40:41], vcc")
    a("buffer_store_dwordx4 v[104:107], v7, s[8:11], s33 offen offset:1024")
    a(f"buffer_store_dwordx4 v[108:111], v7, s[8:11], s33 offen offset:{1024+544}")
    a(f"{end}:")
    a("s_endpgm")
    a.desc(name, 204, agpr=96)
    return STAT2 + 1024


def gen_attn(a):
    name = "attn_kernel"
    a.begin(name)
    end = f"{name}_end"
    prologue(a, end)
    a("s_and_b32 s20, s3, 3")
    a("s_lshl_b32 s21, s5, 2")
    a("s_add_u32 s20, s20, s21")
    a("s_lshr_b32 s21, s3, 2")
    a("s_lshl_b32 s22, s4, 1")
    a("s_add_u32 s21, s21, s22")
    a("s_lshl_b32 s22, s21, 5")
    a("s_add_u32 s22, s22, s20")
    a("s_lshl_b32 s22, s22, 10")
    a(f"s_add_u32 s23, s22, {QF:#x}")
    a("buffer_load_dwordx4 v[8:11], v2, s[8:11], s23 offen")
    a("v_lshlrev_b32 v5, 2, v1")
    a(f"s_mov_b32 s23, {KN:#x}")
    a("buffer_load_dword v12, v5, s[8:11], s23 offen")
    a("s_lshl_b32 s24, s3, 10")
    a(f"s_add_u32 s25, s24, {KVF:#x}")
    for i in range(17):
        if i == 16:
            a("s_cmp_ge_u32 s3, 4")
            a("s_cbranch_scc1 A_dma_done")
        a("s_mov_b32 m0, s24")
        a("s_add_u32 s24, s24, 8192")
        a("buffer_load_dwordx4 v2, s[8:11], s25 offen lds")
        a("s_add_u32 s25, s25, 8192")
    a("A_dma_done:")
    a("v_and_b32 v6, 15, v3")
    a("v_mov_b32 v7, 16")
    a("v_cmp_eq_u32 vcc, 16, v3")
    a("v_cmp_eq_u32 s[26:27], 20, v3")
    a("s_or_b64 vcc, vcc, s[26:27]")
    a.nop(2)
    a("v_cndmask_b32 v6, v6, v7, vcc")
    a("v_lshlrev_b32 v6, 4, v6")
    a("v_mul_u32_u24 v7, 272, v4")
    a("v_add3_u32 v15, v6, v7, 64")
    a("v_add_u32 v15, 960, v15")
    a("s_waitcnt vmcnt(16)")
    a("v_mov_b32 v6, 0")
    for q in range(4):
        a(f"v_dot2_f32_bf16 v6, v{8+q}, v{8+q}, v6")
    a.nop(3)
    half_sum(a, 6, 7)
    wave32_max(a, 12, 7)
    half_sum(a, 12, 7, op="v_max_f32")
    a("v_mul_f32 v6, v6, v12")
    a("v_sqrt_f32 v6, v6")
    a.nop(1)
    a(f"v_mul_f32 v6, {f2u(-1.02):#x}, v6")
    for r in range(16):
        a(f"v_mov_b32 v{16+r}, v6")
    a("s_mov_b32 s28, 0")
    a("s_waitcnt vmcnt(0)")
    a("s_barrier")
    Q, C, O = 8, 16, 32
    S = (48, 64)
    P = (80, 88)
    E = 96
    KB = (104, 108)
    VB = (112, 120)
    a("A_main:")
    a("v_mov_b32 v13, v2")
    a("v_mov_b32 v14, v15")
    a(f"ds_read_b128 {vr(KB[0],4)}, v13")
    a(f"ds_read_b128 {vr(KB[1],4)}, v13 offset:{KVT}")
    for r in range(16):
        a(f"v_mov_b32 v{O+r}, 0")
    for r in range(8):
        a(f"v_mov_b32 v{P[1]+r}, 0")
        a(f"v_mov_b32 v{VB[1]+r}, 0")
    a("s_waitcnt lgkmcnt(1)")
    a(f"v_mfma_f32_32x32x16_bf16 {vr(S[0],16)}, {vr(KB[0],4)}, {vr(Q,4)}, {vr(C,16)}")
    a.nop(8)
    a("s_mov_b32 s29, 8")
    UN = 8
    a("A_loop:")
    for t in range(UN):
        cur, nxt = t % 2, (t + 1) % 2
        a("s_waitcnt lgkmcnt(0)")
        a(f"v_mfma_f32_32x32x16_bf16 {vr(S[nxt],16)}, {vr(KB[nxt],4)}, {vr(Q,4)}, {vr(C,16)}")
        a(f"ds_read_b128 {vr(KB[cur],4)}, v13 offset:{(t+2)*KVT}")
        a(f"ds_read_b128 {vr(VB[cur],4)}, v14 offset:{t*KVT}")
        a(f"ds_read_b128 {vr(VB[cur]+4,4)}, v14 offset:{t*KVT+544}")
        for i in range(8):
            e = E + (2 * i) % 8
            a(f"v_exp_f32 v{e}, v{S[cur]+2*i}")
            a(f"v_exp_f32 v{e+1}, v{S[cur]+2*i+1}")
            if i >= 1:
                j = i - 1
                ej = E + (2 * j) % 8
                a(f"v_cvt_pk_bf16_f32 v{P[cur]+j}, v{ej}, v{ej+1}")
            if i == 2:
                a(f"v_mfma_f32_32x32x16_bf16 {vr(O,16)}, {vr(VB[nxt],4)}, {vr(P[nxt],4)}, {vr(O,16)}")
            if i == 5:
                a(f"v_mfma_f32_32x32x16_bf16 {vr(O,16)}, {vr(VB[nxt]+4,4)}, {vr(P[nxt]+4,4)}, {vr(O,16)}")
        if t == UN - 1:
            a(f"v_add_u32 v13, {UN*KVT}, v13")
            a(f"v_add_u32 v14, {UN*KVT}, v14")
            a("s_sub_u32 s29, s29, 1")
            a("s_cmp_lg_u32 s29, 0")
        else:
            a("s_nop 0")
        ej = E + 6
        a(f"v_cvt_pk_bf16_f32 v{P[cur]+7}, v{ej}, v{ej+1}")
    a("s_cbranch_scc1 A_loop")
    a("s_waitcnt lgkmcnt(0)")
    a.nop(2)
    a(f"v_mfma_f32_32x32x16_bf16 {vr(O,16)}, {vr(VB[1],4)}, {vr(P[1],4)}, {vr(O,16)}")
    a(f"v_mfma_f32_32x32x16_bf16 {vr(O,16)}, {vr(VB[1]+4,4)}, {vr(P[1]+4,4)}, {vr(O,16)}")
    a.nop(16)
    a("s_cmp_lg_u32 s28, 0")
    a("s_cbranch_scc1 A_fin")
    a(f"v_mov_b32 v6, {f2u(2.0**-60):#x}")
    a(f"v_cmp_nge_f32 vcc, v{O+8}, v6")
    a("s_cmp_eq_u64 vcc, 0")
    a("s_cbranch_scc1 A_fin")
    a("s_mov_b32 s28, 1")
    a("v_mov_b32 v13, v2")
    a("v_mov_b32 v6, 0xff800000")
    a("s_mov_b32 s29, 64")
    a("A_fb:")
    a(f"ds_read_b128 {vr(KB[0],4)}, v13")
    a(f"v_add_u32 v13, {KVT}, v13")
    a("s_waitcnt lgkmcnt(0)")
    a(f"v_mfma_f32_32x32x16_bf16 {vr(S[0],16)}, {vr(KB[0],4)}, {vr(Q,4)}, 0")
    a.nop(16)
    for i in range(8):
        a(f"v_max3_f32 v6, v6, v{S[0]+2*i}, v{S[0]+2*i+1}")
    a("s_sub_u32 s29, s29, 1")
    a("s_cmp_lg_u32 s29, 0")
    a("s_cbranch_scc1 A_fb")
    half_sum(a, 6, 7, op="v_max_f32")
    a("v_sub_f32 v6, 0, v6")
    for r in range(16):
        a(f"v_mov_b32 v{C+r}, v6")
    a("s_branch A_main")
    a("A_fin:")
    a(f"v_rcp_f32 v6, v{O+8}")
    a.nop(1)
    for r in range(8):
        a(f"v_mul_f32 v{O+r}, v{O+r}, v6")
    for q in range(4):
        a(f"v_cvt_pk_bf16_f32 v{48+q}, v{O+2*q}, v{O+2*q+1}")
    a(f"s_add_u32 s23, s22, {OF:#x}")
    a("buffer_store_dwordx4 v[48:51], v2, s[8:11], s23 offen")
    a(f"{end}:")
    a("s_endpgm")
    a.desc(name, 128)
    return KVF_BYTES + 3 * KVT


def gen_ffn1(a):
    name = "ffn1_kernel"
    a.begin(name)
    end = f"{name}_end"
    prologue(a, end)
    STAT = 65536
    a("s_lshl_b32 s20, s4, 16")
    a(f"s_add_u32 s20, s20, {X1F:#x}")
    a("s_lshl_b32 s21, s3, 12")
    a("s_add_u32 s22, s20, s21")
    a("s_mov_b32 m0, s21")
    a("s_add_u32 s23, s22, 32768")
    for i in range(4):
        a(f"buffer_load_dwordx4 v2, s[8:11], s22 offen offset:{1024*i} lds")
    a("s_add_u32 s21, s21, 32768")
    a("s_mov_b32 m0, s21")
    a("s_nop 0")
    for i in range(4):
        a(f"buffer_load_dwordx4 v2, s[8:11], s23 offen offset:{1024*i} lds")
    a("s_cmp_eq_u32 s3, 7")
    a("s_cbranch_scc1 F1_stats")
    a("s_mul_i32 s24, s5, 7")
    a("s_add_u32 s24, s24, s3")
    a("s_lshl_b32 s25, s24, 15")
    a(f"s_add_u32 s25, s25, {W1F:#x}")
    R0 = 32
    for i in range(32):
        frag_loads(a, vr(R0 + 4 * i, 4), 25, i, 26)
    a("v_lshlrev_b32 v5, 4, v4")
    a("s_lshl_b32 s27, s24, 7")
    a(f"s_add_u32 s27, s27, {CS1:#x}")
    for q in range(4):
        a(f"buffer_load_dwordx4 {vr(160+4*q,4)}, v5, s[8:11], s27 offen offset:{32*q}")
    a("s_waitcnt vmcnt(36)")
    a("s_barrier")
    def rd(i):
        b = 8 + 8 * (i % 3)
        a(f"ds_read_b128 {vr(b,4)}, v2 offset:{i*1024}")
        a(f"ds_read_b128 {vr(b+4,4)}, v2 offset:{32768+i*1024}")
    rd(0)
    rd(1)
    for i in range(32):
        if i + 2 < 32:
            rd(i + 2)
        pend = min(32, i + 3) - i - 1
        a(f"s_waitcnt vmcnt({4+31-i}) lgkmcnt({2*pend})")
        b = 8 + 8 * (i % 3)
        for r in range(2):
            cin = "0" if i == 0 else ar(16 * r, 16)
            a(f"v_mfma_f32_32x32x16_bf16 {ar(16*r,16)}, {vr(R0+4*i,4)}, {vr(b+4*r,4)}, {cin}")
    a("s_barrier")
    a("v_lshlrev_b32 v5, 3, v3")
    a(f"v_add_u32 v5, {STAT}, v5")
    a(f"ds_read_b64 v[8:9], v5")
    a(f"ds_read_b64 v[10:11], v5 offset:256")
    a("s_waitcnt vmcnt(0)")
    a.nop(8)
    for r in range(32):
        a(f"v_accvgpr_read_b32 v{32+r}, a{r}")
    a("s_waitcnt lgkmcnt(0)")
    for rr in range(2):
        for r in range(16):
            a(f"v_mul_f32 v{64+r}, v{9+2*rr}, v{160+r}")
            a(f"v_fma_f32 v{32+16*rr+r}, v{32+16*rr+r}, v{8+2*rr}, v{64+r}")
        for q in range(8):
            a(f"v_cvt_pk_bf16_f32 v{80+8*rr+q}, v{32+16*rr+2*q}, v{32+16*rr+2*q+1}")
        for q in range(8):
            a(f"v_pk_max_i16 v{80+8*rr+q}, v{80+8*rr+q}, 0")
    a("s_lshl_b32 s26, s4, 1")
    a("s_mul_i32 s26, s26, 112")
    a("s_lshl_b32 s27, s24, 1")
    a("s_add_u32 s26, s26, s27")
    a("s_lshl_b32 s26, s26, 10")
    a(f"s_add_u32 s26, s26, {HF:#x}")
    a(f"s_add_u32 s27, s26, {112*1024}")
    a("buffer_store_dwordx4 v[80:83], v2, s[8:11], s26 offen")
    a("buffer_store_dwordx4 v[84:87], v2, s[8:11], s26 offen offset:1024")
    a("buffer_store_dwordx4 v[88:91], v2, s[8:11], s27 offen")
    a("buffer_store_dwordx4 v[92:95], v2, s[8:11], s27 offen offset:1024")
    a(f"s_branch {end}")
    a("F1_stats:")
    a("s_mov_b32 s24, 0x3f803f80")
    for r in range(4):
        a(f"v_mov_b32 v{8+r}, 0")
    a("s_waitcnt vmcnt(0)")
    a("s_barrier")
    for blk in range(4):
        for i in range(8):
            ks = blk * 8 + i
            a(f"ds_read_b128 {vr(32+8*i,4)}, v2 offset:{ks*1024}")
            a(f"ds_read_b128 {vr(36+8*i,4)}, v2 offset:{32768+ks*1024}")
        for i in range(8):
            a(f"s_waitcnt lgkmcnt({2*(7-i)})")
            for r in range(2):
                for q in range(4):
                    x = 32 + 8 * i + 4 * r + q
                    a(f"v_dot2_f32_bf16 v{8+2*r}, v{x}, s24, v{8+2*r}")
                    a(f"v_dot2_f32_bf16 v{9+2*r}, v{x}, v{x}, v{9+2*r}")
    a.nop(3)
    for r in range(4):
        half_sum(a, 8 + r, 12)
    for r in range(2):
        m, x2 = 8 + 2 * r, 9 + 2 * r
        a(f"v_mul_f32 v{m}, {f2u(1.0/512):#x}, v{m}")
        a(f"v_mul_f32 v{x2}, {f2u(1.0/512):#x}, v{x2}")
        a(f"v_fma_f32 v{x2}, -v{m}, v{m}, v{x2}")
        a(f"v_max_f32 v{x2}, 0, v{x2}")
        a(f"v_add_f32 v{x2}, {f2u(EPS):#x}, v{x2}")
        a(f"v_rsq_f32 v{16+2*r}, v{x2}")
        a.nop(1)
        a(f"v_mul_f32 v{17+2*r}, v{m}, v{16+2*r}")
        a(f"v_sub_f32 v{17+2*r}, 0, v{17+2*r}")
    a("v_lshlrev_b32 v5, 3, v3")
    a(f"v_add_u32 v5, {STAT}, v5")
    a(f"ds_write_b64 v5, v[16:17]")
    a(f"ds_write_b64 v5, v[18:19] offset:256")
    a("s_waitcnt lgkmcnt(0)")
    a("s_barrier")
    a(f"{end}:")
    a("s_endpgm")
    a.desc(name, 176, agpr=32)
    return STAT + 512


def main():
    a = Asm()
    gen_P(a)
    lds_qkv = gen_qkv(a)
    lds_attn = gen_attn(a)
    gen_gemm_res(a, "oproj_kernel", WOF, OF, 32, XF, X1F, False)
    lds_f1 = gen_ffn1(a)
    gen_gemm_res(a, "ffn2a_kernel", W2F, HF, 112, X1F, XF, False)
    gen_gemm_res(a, "ffn2b_kernel", W2F, HF, 112, X1F, None, True)
    hdr = []
    L = hdr.append
    L("; @launch kernel=prep_kernel grid=(217,1,1) block=(512,1,1) lds=2048")
    for layer in range(2):
        L(f"; @launch kernel=qkv_kernel grid=(256,1,1) block=(256,1,1) lds={lds_qkv}")
        L(f"; @launch kernel=attn_kernel grid=(256,1,1) block=(512,1,1) lds={lds_attn}")
        L("; @launch kernel=oproj_kernel grid=(256,1,1) block=(256,1,1) lds=65536")
        L(f"; @launch kernel=ffn1_kernel grid=(256,1,1) block=(512,1,1) lds={lds_f1}")
        L(f"; @launch kernel={'ffn2a' if layer == 0 else 'ffn2b'}_kernel grid=(256,1,1) block=(256,1,1) lds=65536")
    out = "\n".join(hdr) + "\n"
    out += '.amdgcn_target "amdgcn-amd-amdhsa--gfx950"\n.text\n'
    out += "\n".join(a.L) + "\n"
    out += '.section .rodata,"a"\n' + "\n".join(a.kernels) + "\n"
    path = sys.argv[1] if len(sys.argv) > 1 else f"cdna_kernels/{NAME}.s"
    open(path, 'w').write(out)
    print("wrote", path, len(out), "bytes")


if __name__ == "__main__":
    main()
```

```python
import sys

NAME = "interleave_layers__grouped_kv_mqa__dense_activation_relu__prompt"

WQF = 0x000000
WOF = 0x080000
W1F = 0x100000
W2F = 0x2C0000
WKVF = 0x480000
CSQ = 0x488000
CS1 = 0x488800
CSKV = 0x48A400
KN = 0x48B000
XF = 0x500000
QF = 0x700000
OF = 0x900000
X1F = 0xB00000
HF = 0x1000000
KVF = 0x1800000
WS_USED = 0x2400000
VH = 288
VU = 2 * VH
KVT = 1024 + 2 * VU
KVF_BYTES = 64 * KVT

QS = 0.25 * 1.4426950408889634
EPS = 1e-5

import struct


def f2u(x):
    return struct.unpack('<I', struct.pack('<f', x))[0]


import os
PROFILE = os.environ.get('PROFILE', '0') == '1'
PROF = 0x2000000
PROF_SLOT = {}
FLAGS_ZERO = 0


class Asm:
    def __init__(self):
        self.L = []
        self.kernels = []
        self.cur = None

    def stamp(self, i):
        if PROFILE:
            self(f"s_memrealtime s[{72+2*i}:{73+2*i}]")
            self("s_waitcnt lgkmcnt(0)")

    def stamp_flush(self, n, srd=8):
        if not PROFILE:
            return
        slot = PROF_SLOT.setdefault(self.cur, len(PROF_SLOT))
        self("s_mov_b64 exec, -1")
        self.stamp(n - 1)
        self("s_lshl_b32 s70, s2, 4")
        self("s_add_u32 s70, s70, s3")
        self("s_lshl_b32 s70, s70, 5")
        self(f"s_add_u32 s70, s70, {PROF + slot*0x40000:#x}")
        self("v_mov_b32 v0, 0")
        for i in range(n):
            self(f"v_mov_b32 v1, s{72+2*i}")
            self(f"buffer_store_dword v1, v0, s[{srd}:{srd+3}], s70 offen offset:{4*i}")

    def __call__(self, s):
        for line in s.split('\n'):
            line = line.strip()
            if line:
                self.L.append(('' if line.endswith(':') else '    ') + line)

    def nop(self, n):
        while n > 0:
            k = min(n, 16)
            self(f"s_nop {k-1}")
            n -= k

    def begin(self, name):
        self.cur = name
        self.L.append(f".globl {name}")
        self.L.append(".p2align 8")
        self.L.append(f".type {name},@function")
        self.L.append(f"{name}:")

    def desc(self, name, vgpr, agpr=0, sgpr=96):
        acc = (vgpr + 3) // 4 * 4
        nfv = acc + agpr if agpr else vgpr
        self.kernels.append(f""".p2align 6
.amdhsa_kernel {name}
  .amdhsa_next_free_vgpr {nfv}
  .amdhsa_next_free_sgpr {sgpr}
  .amdhsa_accum_offset {acc}
  .amdhsa_group_segment_fixed_size 0
  .amdhsa_kernarg_size 88
  .amdhsa_user_sgpr_count 2
  .amdhsa_user_sgpr_kernarg_segment_ptr 1
  .amdhsa_system_sgpr_workgroup_id_x 1
.end_amdhsa_kernel""")

    def srd(self, d, base, size):
        self(f"s_mov_b32 s{d}, s{base}")
        self(f"s_mov_b32 s{d+1}, s{base+1}")
        self(f"s_mov_b32 s{d+2}, {size:#x}")
        self(f"s_mov_b32 s{d+3}, 0x00020000")


def vr(a, n):
    return f"v[{a}:{a+n-1}]"


def ar(a, n):
    return f"a[{a}:{a+n-1}]"


def half_sum(a, x, t, op="v_add_f32"):
    a(f"v_mov_b32 v{t}, v{x}")
    a.nop(2)
    a(f"v_permlane32_swap_b32 v{x}, v{t}")
    a.nop(1)
    a(f"{op} v{x}, v{x}, v{t}")


def wave32_max(a, x, t):
    for off in (0x041F, 0x081F, 0x101F, 0x201F, 0x401F):
        a(f"ds_swizzle_b32 v{t}, v{x} offset:{off:#x}")
        a("s_waitcnt lgkmcnt(0)")
        a(f"v_max_f32 v{x}, v{x}, v{t}")


def gen_P(a):
    name = "prep_kernel"
    a.begin(name)
    a(f"s_cmp_ge_u32 s2, {218 if FLAGS_ZERO else 217}")
    a("s_cbranch_scc1 P_end")
    a("s_load_dwordx16 s[16:31], s[0:1], 0")
    a("s_load_dwordx2 s[32:33], s[0:1], 80")
    a("v_and_b32 v1, 63, v0")
    a("v_lshrrev_b32 v2, 6, v0")
    a("v_and_b32 v3, 31, v1")
    a("v_readfirstlane_b32 s3, v2")
    a("v_lshrrev_b32 v4, 5, v1")
    a("v_lshlrev_b32 v6, 4, v1")
    a("s_waitcnt lgkmcnt(0)")
    a.srd(36, 32, WS_USED)
    if FLAGS_ZERO:
        a("s_cmp_lg_u32 s2, 217")
        a("s_cbranch_scc1 P_nz")
        a("v_lshlrev_b32 v5, 4, v0")
        for r in range(4):
            a(f"v_mov_b32 v{16+r}, 0")
        a(f"s_mov_b32 s53, {FLAGS_ZERO:#x}")
        a("buffer_store_dwordx4 v[16:19], v5, s[36:39], s53 offen")
        a("s_branch P_end")
        a("P_nz:")
    a("s_cmp_ge_u32 s2, 153")
    a("s_cbranch_scc1 P_x")
    a("s_cmp_eq_u32 s2, 152")
    a("s_cbranch_scc1 P_kv")
    a("s_mov_b32 s46, 0")
    a("s_mov_b32 s48, 32")
    a("s_cmp_ge_u32 s2, 88")
    a("s_cbranch_scc1 P_w2")
    a("s_cmp_ge_u32 s2, 32")
    a("s_cbranch_scc1 P_w1")
    a("s_cmp_ge_u32 s2, 16")
    a("s_cbranch_scc1 P_wo")
    a.srd(40, 18, 512 * 512 * 2)
    a("s_mov_b32 s44, 1024")
    a("s_mov_b32 s45, s2")
    a("s_lshl_b32 s47, s45, 15")
    a(f"s_add_u32 s47, s47, {WQF:#x}")
    a("s_lshl_b32 s49, s45, 7")
    a(f"s_add_u32 s49, s49, {CSQ:#x}")
    a("s_branch P_wgo")
    a("P_wo:")
    a.srd(40, 24, 512 * 512 * 2)
    a("s_mov_b32 s44, 1024")
    a("s_sub_u32 s45, s2, 16")
    a("s_lshl_b32 s47, s45, 15")
    a(f"s_add_u32 s47, s47, {WOF:#x}")
    a("s_mov_b32 s49, 0")
    a("s_branch P_wgo")
    a("P_w1:")
    a.srd(40, 28, 512 * 1792 * 2)
    a("s_mov_b32 s44, 3584")
    a("s_sub_u32 s45, s2, 32")
    a("s_lshl_b32 s47, s45, 15")
    a(f"s_add_u32 s47, s47, {W1F:#x}")
    a("s_lshl_b32 s49, s45, 7")
    a(f"s_add_u32 s49, s49, {CS1:#x}")
    a("s_branch P_wgo")
    a("P_w2:")
    a.srd(40, 30, 512 * 1792 * 2)
    a("s_mov_b32 s44, 1024")
    a("s_sub_u32 s45, s2, 88")
    a("s_and_b32 s46, s45, 3")
    a("s_mul_i32 s46, s46, 28")
    a("s_lshr_b32 s45, s45, 2")
    a("s_mul_i32 s47, s45, 112")
    a("s_add_u32 s47, s47, s46")
    a("s_lshl_b32 s47, s47, 10")
    a(f"s_add_u32 s47, s47, {W2F:#x}")
    a("s_mov_b32 s48, 28")
    a("s_mov_b32 s49, 0")
    a("P_wgo:")
    a("s_lshl_b32 s50, s3, 2")
    a("s_cmp_ge_u32 s50, s48")
    a("s_cbranch_scc1 P_end")
    a("s_lshl_b32 s51, s44, 2")
    a("v_mul_lo_u32 v5, v4, s51")
    a("v_lshl_add_u32 v5, v3, 1, v5")
    a("s_add_u32 s52, s46, s50")
    a("s_lshl_b32 s52, s52, 4")
    a("s_mul_i32 s52, s52, s44")
    a("s_lshl_b32 s53, s45, 6")
    a("s_add_u32 s52, s52, s53")
    a("s_mul_i32 s54, s44, 5")
    for i in range(4):
        for j in range(8):
            a(f"buffer_load_ushort v{16+8*i+j}, v5, s[40:43], s52 offen")
            a(f"s_add_u32 s52, s52, {'s54' if j in (3, 7) else 's44'}")
    a("P_pack:")
    a("s_lshl_b32 s53, s50, 10")
    a("s_add_u32 s53, s53, s47")
    a("v_mov_b32 v7, 0")
    a("s_mov_b32 s55, 0x3f803f80")
    for i in range(4):
        a(f"s_waitcnt vmcnt({8*(3-i) + i})")
        for q in range(4):
            a(f"v_lshl_or_b32 v{48+4*i+q}, v{16+8*i+2*q+1}, 16, v{16+8*i+2*q}")
        a(f"buffer_store_dwordx4 {vr(48+4*i,4)}, v6, s[36:39], s53 offen offset:{1024*i}")
        for q in range(4):
            a(f"v_dot2_f32_bf16 v7, v{48+4*i+q}, s55, v7")
    a("s_cmp_eq_u32 s49, 0")
    a("s_cbranch_scc1 P_end")
    a("v_lshlrev_b32 v8, 2, v0")
    a("ds_write_b32 v8, v7")
    a("s_waitcnt lgkmcnt(0)")
    a("s_barrier")
    a("s_cmp_lg_u32 s3, 0")
    a("s_cbranch_scc1 P_end")
    a("v_lshlrev_b32 v8, 2, v1")
    for w in range(8):
        a(f"ds_read_b32 v{16+w}, v8 offset:{256*w}")
    a("s_waitcnt lgkmcnt(0)")
    for w in range(1, 8):
        a(f"v_add_f32 v16, v16, v{16+w}")
    half_sum(a, 16, 17)
    a("v_cmp_gt_u32 vcc, 32, v1")
    a("s_and_saveexec_b64 s[56:57], vcc")
    a("buffer_store_dword v16, v8, s[36:39], s49 offen")
    a("s_branch P_end")
    a("P_kv:")
    a.srd(40, 20, 512 * 16 * 2)
    a.srd(60, 22, 512 * 16 * 2)
    a("s_lshl_b32 s50, s3, 2")
    a("v_and_b32 v5, 15, v3")
    a("v_lshlrev_b32 v5, 1, v5")
    a("v_lshl_add_u32 v5, v4, 7, v5")
    a("s_lshl_b32 s52, s50, 9")
    a("v_cmp_gt_u32 vcc, 16, v3")
    a("s_and_saveexec_b64 s[56:57], vcc")
    for i in range(4):
        for j in range(8):
            row = 16 * i + (j & 3) + 8 * (j >> 2)
            a(f"buffer_load_ushort v{16+8*i+j}, v5, s[40:43], s52 offen offset:{row*32}")
    a("s_andn2_b64 exec, s[56:57], exec")
    for i in range(4):
        for j in range(8):
            row = 16 * i + (j & 3) + 8 * (j >> 2)
            a(f"buffer_load_ushort v{16+8*i+j}, v5, s[60:63], s52 offen offset:{row*32}")
    a("s_mov_b64 exec, s[56:57]")
    a("s_waitcnt vmcnt(0)")
    a(f"s_mov_b32 s47, {WKVF:#x}")
    a(f"s_mov_b32 s49, {CSKV:#x}")
    a("s_branch P_pack")
    a("P_x:")
    a.srd(40, 16, 2048 * 512 * 2)
    a("s_sub_u32 s45, s2, 153")
    a("v_lshlrev_b32 v5, 10, v3")
    a("v_lshl_add_u32 v5, v4, 3, v5")
    a("s_lshl_b32 s52, s45, 15")
    a("s_lshl_b32 s50, s3, 7")
    a("s_add_u32 s52, s52, s50")
    for i in range(4):
        a(f"buffer_load_dwordx2 {vr(16+4*i,2)}, v5, s[40:43], s52 offen offset:{32*i}")
        a(f"buffer_load_dwordx2 {vr(18+4*i,2)}, v5, s[40:43], s52 offen offset:{32*i+16}")
    a("s_lshl_b32 s53, s45, 15")
    a("s_lshl_b32 s50, s3, 12")
    a("s_add_u32 s53, s53, s50")
    a(f"s_add_u32 s53, s53, {XF:#x}")
    for i in range(4):
        a(f"s_waitcnt vmcnt({2*(3-i)+i})")
        a(f"buffer_store_dwordx4 {vr(16+4*i,4)}, v6, s[36:39], s53 offen offset:{1024*i}")
    a("P_end:")
    a("s_endpgm")
    a.desc(name, 64)


def prologue(a, endlabel, out_ptr=False):
    a("s_cmp_ge_u32 s2, 256")
    a(f"s_cbranch_scc1 {endlabel}x")
    a.stamp(0)
    a("s_load_dwordx2 s[6:7], s[0:1], 80")
    if out_ptr:
        a("s_load_dwordx2 s[12:13], s[0:1], 64")
    a("v_and_b32 v1, 63, v0")
    a("v_lshrrev_b32 v2, 6, v0")
    a("v_and_b32 v3, 31, v1")
    a("v_readfirstlane_b32 s3, v2")
    a("v_lshrrev_b32 v4, 5, v1")
    a("v_lshlrev_b32 v2, 4, v1")
    a("s_and_b32 s4, s2, 31")
    a("s_lshr_b32 s5, s2, 5")
    a("s_waitcnt lgkmcnt(0)")
    a.srd(8, 6, WS_USED)
    a.stamp(1)


def frag_loads(a, dst, sbase, idx, stmp):
    hi, lo = idx // 4, idx % 4
    if hi == 0:
        so = f"s{sbase}"
    else:
        a(f"s_add_u32 s{stmp}, s{sbase}, {hi*4096}")
        so = f"s{stmp}"
    a(f"buffer_load_dwordx4 {dst}, v2, s[8:11], {so} offen offset:{lo*1024}")


def gen_gemm_res(a, name, WFo, AFo, KS, RESo, OUTo, out_rowmajor):
    NW = 4
    ksw = KS // NW
    RING = min(ksw, 15)
    a.begin(name)
    end = f"{name}_end"
    prologue(a, end, out_ptr=out_rowmajor)
    if out_rowmajor:
        a.srd(16, 12, 2048 * 512 * 2)
    a(f"s_mul_i32 s24, s3, {ksw}")
    a("s_lshl_b32 s25, s5, 1")
    a(f"s_mul_i32 s20, s25, {KS}")
    a("s_add_u32 s20, s20, s24")
    a("s_lshl_b32 s20, s20, 10")
    a(f"s_add_u32 s20, s20, {WFo:#x}")
    a(f"s_add_u32 s21, s20, {KS*1024}")
    a("s_lshl_b32 s25, s4, 1")
    a(f"s_mul_i32 s22, s25, {KS}")
    a("s_add_u32 s22, s22, s24")
    a("s_lshl_b32 s22, s22, 10")
    a(f"s_add_u32 s22, s22, {AFo:#x}")
    a(f"s_add_u32 s23, s22, {KS*1024}")
    a("s_and_b32 s26, s3, 1")
    a("s_lshr_b32 s27, s3, 1")
    a("s_lshl_b32 s28, s4, 1")
    a("s_add_u32 s28, s28, s26")
    a("s_lshl_b32 s29, s5, 1")
    a("s_add_u32 s29, s29, s27")
    a("s_lshl_b32 s30, s28, 5")
    a("s_lshl_b32 s31, s29, 1")
    a("s_add_u32 s30, s30, s31")
    a("s_lshl_b32 s30, s30, 10")
    a(f"s_add_u32 s31, s30, {RESo:#x}")
    a("buffer_load_dwordx4 v[8:11], v2, s[8:11], s31 offen")
    a("buffer_load_dwordx4 v[12:15], v2, s[8:11], s31 offen offset:1024")
    R0 = 16

    def issue(i):
        b = R0 + 16 * (i % RING)
        frag_loads(a, vr(b, 4), 20, i, 32)
        frag_loads(a, vr(b + 4, 4), 21, i, 33)
        frag_loads(a, vr(b + 8, 4), 22, i, 34)
        frag_loads(a, vr(b + 12, 4), 23, i, 35)

    for i in range(RING):
        issue(i)
    a.stamp(2)
    for i in range(ksw):
        outstanding = min(ksw, i + RING) - i - 1
        a(f"s_waitcnt vmcnt({4*outstanding})")
        if i == 0:
            a.stamp(3)
        b = R0 + 16 * (i % RING)
        for c in range(2):
            for r in range(2):
                t = 2 * c + r
                cin = "0" if i == 0 else ar(16 * t, 16)
                a(f"v_mfma_f32_32x32x16_bf16 {ar(16*t,16)}, {vr(b+4*c,4)}, {vr(b+8+4*r,4)}, {cin}")
        if i + RING < ksw:
            issue(i + RING)
    a.stamp(4)
    a("s_lshl_b32 s32, s3, 12")
    a("v_add_u32 v5, s32, v2")
    a("s_lshl_b32 s32, s3, 14")
    a("v_add_u32 v6, s32, v2")
    a.nop(16)
    for t in range(4):
        for q in range(4):
            a(f"ds_write_b128 v5, {ar(16*t+4*q,4)} offset:{t*16384+q*1024}")
    a("s_waitcnt lgkmcnt(0)")
    a.stamp(5)
    a("s_barrier")
    a.stamp(6)
    for s in range(4):
        for q in range(4):
            a(f"ds_read_b128 {vr(R0+16*s+4*q,4)}, v6 offset:{s*4096+q*1024}")
    for q in range(8):
        a(f"v_lshlrev_b32 v{80+2*q}, 16, v{8+q}")
        a(f"v_and_b32 v{81+2*q}, 0xffff0000, v{8+q}")
    for s in range(4):
        a(f"s_waitcnt lgkmcnt({4*(3-s)})")
        for r in range(16):
            a(f"v_add_f32 v{80+r}, v{80+r}, v{R0+16*s+r}")
    for q in range(8):
        a(f"v_cvt_pk_bf16_f32 v{96+q}, v{80+2*q}, v{81+2*q}")
    if not out_rowmajor:
        a(f"s_add_u32 s31, s30, {OUTo:#x}")
        a("buffer_store_dwordx4 v[96:99], v2, s[8:11], s31 offen")
        a("buffer_store_dwordx4 v[100:103], v2, s[8:11], s31 offen offset:1024")
    else:
        a.nop(2)
        a("v_permlane32_swap_b32 v96, v98")
        a("v_permlane32_swap_b32 v97, v99")
        a("v_permlane32_swap_b32 v100, v102")
        a("v_permlane32_swap_b32 v101, v103")
        a("v_lshlrev_b32 v5, 10, v3")
        a("v_lshl_add_u32 v5, v4, 4, v5")
        a("s_lshl_b32 s31, s28, 15")
        a("s_lshl_b32 s32, s29, 6")
        a("s_add_u32 s31, s31, s32")
        a("buffer_store_dwordx4 v[96:99], v5, s[16:19], s31 offen")
        a("buffer_store_dwordx4 v[100:103], v5, s[16:19], s31 offen offset:32")
    a(f"{end}:")
    a.stamp_flush(8)
    a(f"{end}x:")
    a("s_endpgm")
    a.desc(name, max(R0 + 16 * RING, 104), agpr=64)


def gen_qkv(a):
    name = "qkv_kernel"
    KS = 32
    ksw = 8
    a.begin(name)
    end = f"{name}_end"
    prologue(a, end)
    a(f"s_mul_i32 s24, s3, {ksw}")
    a("s_lshl_b32 s25, s5, 1")
    a(f"s_mul_i32 s20, s25, {KS}")
    a("s_add_u32 s20, s20, s24")
    a("s_lshl_b32 s20, s20, 10")
    a(f"s_add_u32 s20, s20, {WQF:#x}")
    a(f"s_add_u32 s21, s20, {KS*1024}")
    a("s_lshl_b32 s25, s4, 1")
    a(f"s_mul_i32 s22, s25, {KS}")
    a("s_add_u32 s22, s22, s24")
    a("s_lshl_b32 s22, s22, 10")
    a(f"s_add_u32 s22, s22, {XF:#x}")
    a(f"s_add_u32 s23, s22, {KS*1024}")
    a("s_lshl_b32 s37, s24, 10")
    a(f"s_add_u32 s37, s37, {WKVF:#x}")
    a("s_and_b32 s26, s3, 1")
    a("s_lshr_b32 s27, s3, 1")
    a("s_lshl_b32 s28, s4, 1")
    a("s_add_u32 s28, s28, s26")
    a("s_lshl_b32 s29, s5, 1")
    a("s_add_u32 s29, s29, s27")
    a("v_lshlrev_b32 v5, 4, v4")
    a("s_lshl_b32 s31, s29, 7")
    a(f"s_add_u32 s31, s31, {CSQ:#x}")
    for q in range(4):
        a(f"buffer_load_dwordx4 {vr(176+4*q,4)}, v5, s[8:11], s31 offen offset:{32*q}")
    a(f"s_mov_b32 s31, {CSKV:#x}")
    for q in range(2):
        a(f"buffer_load_dwordx4 {vr(192+4*q,4)}, v5, s[8:11], s31 offen offset:{32*q}")
    a("v_lshlrev_b32 v6, 2, v3")
    a("buffer_load_dword v200, v6, s[8:11], s31 offen")
    R0 = 16
    a("s_mov_b32 s36, 0x3f803f80")
    for r in range(4):
        a(f"v_mov_b32 v{8+r}, 0")
    a("s_cmp_eq_u32 s5, 0")
    a("s_cbranch_scc1 QKV_mainK")
    a("s_cmp_eq_u32 s5, 1")
    a("s_cbranch_scc1 QKV_mainV")

    def main(kind):
        nl = 5 if kind else 4
        for i in range(ksw):
            b = R0 + 20 * i
            frag_loads(a, vr(b, 4), 20, i, 32)
            frag_loads(a, vr(b + 4, 4), 21, i, 33)
            frag_loads(a, vr(b + 8, 4), 22, i, 34)
            frag_loads(a, vr(b + 12, 4), 23, i, 35)
            if kind:
                frag_loads(a, vr(b + 16, 4), 37, i, 38)
        a.stamp(2)
        for i in range(ksw):
            a(f"s_waitcnt vmcnt({nl*(ksw-1-i)})")
            if i == 0:
                a.stamp(3)
            b = R0 + 20 * i
            for c in range(2):
                for r in range(2):
                    t = 2 * c + r
                    cin = "0" if i == 0 else ar(16 * t, 16)
                    a(f"v_mfma_f32_32x32x16_bf16 {ar(16*t,16)}, {vr(b+4*c,4)}, {vr(b+8+4*r,4)}, {cin}")
                    for q in range(4):
                        x = b + 8 + 4 * r + q
                        if c == 0:
                            a(f"v_dot2_f32_bf16 v{8+2*r}, v{x}, s36, v{8+2*r}")
                        else:
                            a(f"v_dot2_f32_bf16 v{9+2*r}, v{x}, v{x}, v{9+2*r}")
            if kind:
                for r in range(2):
                    t = 4 + r
                    cin = "0" if i == 0 else ar(16 * t, 16)
                    if kind == 'K':
                        a(f"v_mfma_f32_32x32x16_bf16 {ar(16*t,16)}, {vr(b+16,4)}, {vr(b+8+4*r,4)}, {cin}")
                    else:
                        a(f"v_mfma_f32_32x32x16_bf16 {ar(16*t,16)}, {vr(b+8+4*r,4)}, {vr(b+16,4)}, {cin}")
        a("s_lshl_b32 s32, s3, 12")
        a("v_add_u32 v5, s32, v2")
        a("v_add_u32 v6, 0x10000, v5")
        a.nop(16)
        if kind:
            for t in (4, 5):
                for q in range(2 if kind == 'K' else 4):
                    a(f"ds_write_b128 v6, {ar(16*t+4*q,4)} offset:{(t-4)*16384+q*1024}")

    main(None)
    a("s_branch QKV_red")
    a("QKV_mainK:")
    main('K')
    a("s_branch QKV_red")
    a("QKV_mainV:")
    main('V')
    a("QKV_red:")
    a.stamp(4)
    STAT = 6 * 16384
    STAT2 = STAT + 4096
    for t in range(4):
        for q in range(4):
            a(f"ds_write_b128 v5, {ar(16*t+4*q,4)} offset:{t*16384+q*1024}")
    a("s_lshl_b32 s32, s3, 10")
    a(f"s_add_u32 s32, s32, {STAT}")
    a("v_add_u32 v7, s32, v2")
    a("ds_write_b128 v7, v[8:11]")
    a("s_lshl_b32 s32, s3, 14")
    a("v_add_u32 v6, s32, v2")
    a("s_lshl_b32 s32, s26, 3")
    a(f"s_add_u32 s32, s32, {STAT}")
    a("v_add_u32 v7, s32, v2")
    a("s_waitcnt lgkmcnt(0)")
    a.stamp(5)
    a("s_barrier")
    a.stamp(6)
    for s in range(4):
        a(f"ds_read_b64 {vr(8+2*s,2)}, v7 offset:{s*1024}")
    for s in range(4):
        for q in range(4):
            if s == 2 and q == 0:
                a("s_waitcnt lgkmcnt(8)")
            a(f"ds_read_b128 {vr(R0+16*s+4*q,4)}, v6 offset:{s*4096+q*1024}")
    for s in range(1, 4):
        a(f"v_add_f32 v8, v8, v{8+2*s}")
        a(f"v_add_f32 v9, v9, v{9+2*s}")
    half_sum(a, 8, 10)
    half_sum(a, 9, 10)
    a(f"v_mul_f32 v8, {f2u(1.0/512):#x}, v8")
    a(f"v_mul_f32 v9, {f2u(1.0/512):#x}, v9")
    a("v_fma_f32 v9, -v8, v8, v9")
    a("v_max_f32 v9, 0, v9")
    a(f"v_add_f32 v9, {f2u(EPS):#x}, v9")
    a("v_rsq_f32 v9, v9")
    a.nop(1)
    a("v_mul_f32 v10, v8, v9")
    a("v_sub_f32 v10, 0, v10")
    a(f"v_mul_f32 v11, {f2u(QS):#x}, v9")
    a(f"v_mul_f32 v12, {f2u(QS):#x}, v10")
    a("s_waitcnt vmcnt(0)")
    for s in range(1, 4):
        a(f"s_waitcnt lgkmcnt({4*(3-s)})")
        for r in range(16):
            a(f"v_add_f32 v{R0+r}, v{R0+r}, v{R0+16*s+r}")
    for r in range(16):
        a(f"v_mul_f32 v{176+r}, v12, v{176+r}")
        a(f"v_fma_f32 v{R0+r}, v{R0+r}, v11, v{176+r}")
    for q in range(8):
        a(f"v_cvt_pk_bf16_f32 v{96+q}, v{R0+2*q}, v{R0+2*q+1}")
    a("s_lshl_b32 s30, s28, 5")
    a("s_lshl_b32 s31, s29, 1")
    a("s_add_u32 s30, s30, s31")
    a("s_lshl_b32 s30, s30, 10")
    a(f"s_add_u32 s31, s30, {QF:#x}")
    a("buffer_store_dwordx4 v[96:99], v2, s[8:11], s31 offen")
    a("buffer_store_dwordx4 v[100:103], v2, s[8:11], s31 offen offset:1024")
    a("s_cmp_ge_u32 s3, 2")
    a(f"s_cbranch_scc1 {end}")
    a("s_cmp_ge_u32 s5, 2")
    a(f"s_cbranch_scc1 {end}")
    a("s_lshl_b32 s32, s3, 14")
    a(f"s_add_u32 s32, s32, {4*16384}")
    a("v_add_u32 v6, s32, v2")
    a(f"s_mul_i32 s33, s28, {KVT}")
    a(f"s_add_u32 s33, s33, {KVF:#x}")
    a("s_cmp_eq_u32 s5, 1")
    a("s_cbranch_scc1 QKV_finV")
    for s in range(4):
        for q in range(2):
            a(f"ds_read_b128 {vr(R0+16*s+4*q,4)}, v6 offset:{s*4096+q*1024}")
    a("s_waitcnt lgkmcnt(0)")
    for s in range(1, 4):
        for r in range(8):
            a(f"v_add_f32 v{R0+r}, v{R0+r}, v{R0+16*s+r}")
    a("v_mov_b32 v13, 0")
    for r in range(8):
        a(f"v_mul_f32 v{192+r}, v10, v{192+r}")
        a(f"v_fma_f32 v{R0+r}, v{R0+r}, v9, v{192+r}")
        a(f"v_fma_f32 v13, v{R0+r}, v{R0+r}, v13")
    for q in range(4):
        a(f"v_cvt_pk_bf16_f32 v{104+q}, v{R0+2*q}, v{R0+2*q+1}")
    a("buffer_store_dwordx4 v[104:107], v2, s[8:11], s33 offen")
    half_sum(a, 13, 14)
    wave32_max(a, 13, 14)
    a("s_lshl_b32 s32, s28, 2")
    a(f"s_add_u32 s32, s32, {KN:#x}")
    a("v_mov_b32 v14, 0")
    a("v_cmp_eq_u32 vcc, 0, v1")
    a("s_and_saveexec_b64 s[40:41], vcc")
    a("buffer_store_dword v13, v14, s[8:11], s32 offen")
    a(f"s_branch {end}")
    a("QKV_finV:")
    for s in range(4):
        for q in range(4):
            a(f"ds_read_b128 {vr(R0+16*s+4*q,4)}, v6 offset:{s*4096+q*1024}")
    a("s_lshl_b32 s32, s3, 8")
    a(f"s_add_u32 s32, s32, {STAT2}")
    a("v_lshlrev_b32 v7, 2, v3")
    a("v_add_u32 v7, s32, v7")
    a("ds_write_b32 v7, v9")
    a("ds_write_b32 v7, v10 offset:128")
    a("v_lshlrev_b32 v7, 4, v4")
    a("v_add_u32 v7, s32, v7")
    a("s_waitcnt lgkmcnt(0)")
    for q in range(4):
        a(f"ds_read_b128 {vr(112+4*q,4)}, v7 offset:{32*q}")
        a(f"ds_read_b128 {vr(128+4*q,4)}, v7 offset:{128+32*q}")
    for s in range(1, 4):
        for r in range(16):
            a(f"v_add_f32 v{R0+r}, v{R0+r}, v{R0+16*s+r}")
    a("s_waitcnt lgkmcnt(0)")
    for r in range(16):
        a(f"v_mul_f32 v{128+r}, v200, v{128+r}")
        a(f"v_fma_f32 v{R0+r}, v{R0+r}, v{112+r}, v{128+r}")
    for q in range(8):
        a(f"v_cvt_pk_bf16_f32 v{104+q}, v{R0+2*q}, v{R0+2*q+1}")
    a("v_cmp_eq_u32 s[40:41], 0, v3")
    a("v_mov_b32 v13, 0x3f803f80")
    a("v_mov_b32 v14, 0")
    a("v_cndmask_b32 v13, v14, v13, s[40:41]")
    a("v_cmp_le_u32 vcc, 16, v3")
    a("v_xor_b32 v7, 16, v3")
    a("v_lshlrev_b32 v7, 4, v7")
    for q in range(8):
        a(f"v_cndmask_b32 v{104+q}, v13, v{104+q}, vcc")
    a(f"v_mul_u32_u24 v14, {VH}, v4")
    a("v_add_u32 v7, v7, v14")
    a("v_cmp_gt_u32 s[40:41], 2, v3")
    a("s_or_b64 vcc, vcc, s[40:41]")
    a("s_and_saveexec_b64 s[40:41], vcc")
    a("buffer_store_dwordx4 v[104:107], v7, s[8:11], s33 offen offset:1024")
    a(f"buffer_store_dwordx4 v[108:111], v7, s[8:11], s33 offen offset:{1024+VU}")
    a(f"{end}:")
    a.stamp_flush(8)
    a(f"{end}x:")
    a("s_endpgm")
    a.desc(name, 204, agpr=96)
    return STAT2 + 1024


PRIO_IT = int(os.environ.get('PRIO_IT', '7'))


def gen_attn(a):
    name = "attn_kernel"
    a.begin(name)
    end = f"{name}_end"
    prologue(a, end)
    SCR = KVF_BYTES
    Q = (8, 12)
    C = 16
    O = (32, 48)
    S = (64, 80)
    P = (96, 104)
    E = 112
    KB = (128, 132)
    VB = (136, 144)
    a("s_and_b32 s20, s3, 3")
    a("s_lshr_b32 s30, s3, 2")
    a("s_and_b32 s21, s20, 1")
    a("s_lshl_b32 s21, s21, 1")
    a("s_lshl_b32 s22, s5, 2")
    a("s_add_u32 s21, s21, s22")
    a("s_lshr_b32 s22, s20, 1")
    a("s_lshl_b32 s23, s4, 1")
    a("s_add_u32 s22, s22, s23")
    a("s_lshl_b32 s22, s22, 5")
    a("s_add_u32 s22, s22, s21")
    a("s_add_u32 s23, s22, s30")
    a("s_xor_b32 s24, s30, 1")
    a("s_add_u32 s24, s22, s24")
    a("s_lshl_b32 s22, s23, 10")
    a("s_lshl_b32 s24, s24, 10")
    a(f"s_add_u32 s23, s22, {QF:#x}")
    a(f"s_add_u32 s24, s24, {QF:#x}")
    a(f"buffer_load_dwordx4 {vr(Q[0],4)}, v2, s[8:11], s23 offen")
    a(f"buffer_load_dwordx4 {vr(Q[1],4)}, v2, s[8:11], s24 offen")
    a("v_lshlrev_b32 v5, 2, v1")
    a(f"s_mov_b32 s23, {KN:#x}")
    a("buffer_load_dword v7, v5, s[8:11], s23 offen")
    a("s_lshr_b32 s24, s3, 1")
    a("s_lshl_b32 s24, s24, 10")
    a("s_and_b32 s25, s3, 1")
    a(f"s_mul_i32 s25, s25, {32*KVT}")
    a("s_add_u32 s24, s24, s25")
    a(f"s_add_u32 s25, s24, {KVF:#x}")
    def dma():
        a("s_mov_b32 m0, s34")
        a("s_add_u32 s34, s34, 4096")
        a("buffer_load_dwordx4 v2, s[8:11], s35 offen lds")
        a("s_add_u32 s35, s35, 4096")
    a("s_mov_b32 s34, s24")
    a("s_mov_b32 s35, s25")
    for i in range(6):
        dma()
    a.stamp(2)
    a("v_min_u32 v6, 17, v3")
    a("v_mov_b32 v5, 16")
    a("v_cmp_eq_u32 vcc, 20, v3")
    a(f"s_mul_i32 s25, s30, {32*KVT}")
    a.nop(1)
    a("v_cndmask_b32 v6, v6, v5, vcc")
    a("v_lshlrev_b32 v6, 4, v6")
    a(f"v_mul_u32_u24 v5, {VH}, v4")
    a("v_add3_u32 v155, v6, v5, 64")
    a("v_add_u32 v155, 960, v155")
    a("v_add_u32 v152, s25, v2")
    a("v_add_u32 v153, s25, v155")
    a("s_waitcnt vmcnt(6)")
    a("v_mov_b32 v5, 0")
    a("v_mov_b32 v6, 0")
    for q in range(4):
        a(f"v_dot2_f32_bf16 v5, v{Q[0]+q}, v{Q[0]+q}, v5")
        a(f"v_dot2_f32_bf16 v6, v{Q[1]+q}, v{Q[1]+q}, v6")
    a.nop(3)
    half_sum(a, 5, 146)
    half_sum(a, 6, 146)
    a("v_max_f32 v5, v5, v6")
    for off in (0x041F, 0x081F, 0x101F, 0x201F, 0x401F):
        a(f"ds_swizzle_b32 v6, v5 offset:{off:#x}")
        a(f"ds_swizzle_b32 v154, v7 offset:{off:#x}")
        a("s_waitcnt lgkmcnt(0)")
        a("v_max_f32 v5, v5, v6")
        a("v_max_f32 v7, v7, v154")
    half_sum(a, 7, 146, op="v_max_f32")
    a("v_mul_f32 v6, v5, v7")
    a("v_sqrt_f32 v6, v6")
    a.nop(1)
    a(f"v_mul_f32 v6, {f2u(-1.02):#x}, v6")
    for r in range(16):
        a(f"v_mov_b32 v{C+r}, v6")
    for r in range(16):
        a(f"v_mov_b32 v{O[0]+r}, 0")
        a(f"v_mov_b32 v{O[1]+r}, 0")
    for r in range(8):
        a(f"v_mov_b32 v{P[1]+r}, 0")
        a(f"v_mov_b32 v{VB[1]+r}, 0")
    for r in range(16):
        a(f"v_mov_b32 v{E+r}, 0")
    a.stamp(3)
    a("s_waitcnt vmcnt(0)")
    a.stamp(4)
    a("s_barrier")
    a.stamp(5)
    if PROFILE:
        a("s_memtime s[78:79]")
        a("s_waitcnt lgkmcnt(0)")
    a("v_mov_b32 v156, v152")
    a("v_mov_b32 v157, v153")
    a(f"ds_read_b128 {vr(KB[0],4)}, v156")
    a(f"ds_read_b128 {vr(KB[1],4)}, v156 offset:{KVT}")
    a(f"ds_read_b128 {vr(VB[0],4)}, v157")
    a(f"ds_read_b128 {vr(VB[0]+4,4)}, v157 offset:{VU}")
    a("s_cmp_lt_u32 s3, 4")
    a("s_cbranch_scc1 A_noprio")
    if PRIO_IT > 0:
        a("s_setprio 1")
    a("A_noprio:")
    a("s_waitcnt lgkmcnt(3)")
    a(f"v_mfma_f32_32x32x16_bf16 {vr(S[0],16)}, {vr(KB[0],4)}, {vr(Q[0],4)}, {vr(C,16)}")
    a.nop(10)
    UN = 4
    PV1 = int(os.environ.get('PV1', '3'))
    PV2 = int(os.environ.get('PV2', '6'))
    DLY = int(os.environ.get('DLY', '2'))
    QKP = int(os.environ.get('QKP', '0'))
    NE = 16

    def body(ndma):
        for t in range(UN):
            for x in range(2):
                y = 1 - x
                ty = t if x == 0 else t + 1
                tv = t - 1 if x == 0 else t
                for i in range(8):
                    if i == QKP:
                        if x == 1:
                            a("s_waitcnt lgkmcnt(0)")
                        a(f"v_mfma_f32_32x32x16_bf16 {vr(S[y],16)}, {vr(KB[ty%2],4)}, {vr(Q[y],4)}, {vr(C,16)}")
                        if x == 1:
                            a(f"ds_read_b128 {vr(KB[t%2],4)}, v156 offset:{(t+2)*KVT}")
                            a(f"ds_read_b128 {vr(VB[(t+1)%2],4)}, v157 offset:{(t+1)*KVT}")
                            a(f"ds_read_b128 {vr(VB[(t+1)%2]+4,4)}, v157 offset:{(t+1)*KVT+VU}")
                    e = E + (2 * i) % NE
                    a(f"v_exp_f32 v{e}, v{S[x]+2*i}")
                    a(f"v_exp_f32 v{e+1}, v{S[x]+2*i+1}")
                    j = i - DLY
                    if j >= 0:
                        ej = E + (2 * j) % NE
                        a(f"v_cvt_pk_bf16_f32 v{P[x]+j}, v{ej}, v{ej+1}")
                    else:
                        ej = E + (2 * (j + 8)) % NE
                        a(f"v_cvt_pk_bf16_f32 v{P[y]+j+8}, v{ej}, v{ej+1}")
                    if i == PV1:
                        a(f"v_mfma_f32_32x32x16_bf16 {vr(O[y],16)}, {vr(VB[tv%2],4)}, {vr(P[y],4)}, {vr(O[y],16)}")
                    if i == PV2:
                        a(f"v_mfma_f32_32x32x16_bf16 {vr(O[y],16)}, {vr(VB[tv%2]+4,4)}, {vr(P[y]+4,4)}, {vr(O[y],16)}")
                    if i in (1, 5) and ndma > 0:
                        dma()
                        ndma -= 1
                if t == UN - 1 and x == 1:
                    a(f"v_add_u32 v156, {UN*KVT}, v156")
                    a(f"v_add_u32 v157, {UN*KVT}, v157")
                    a("s_add_u32 s29, s29, 1")
                    a("s_cmp_lg_u32 s29, 8")

    a("s_mov_b32 s29, 0")
    body(11)
    a("A_loop:")
    a("s_cmp_lg_u32 s29, 2")
    a("s_cbranch_scc1 A_nosync")
    a("s_waitcnt vmcnt(0)")
    a("s_barrier")
    a("A_nosync:")
    a(f"s_cmp_lg_u32 s29, {PRIO_IT}")
    a("s_cbranch_scc1 A_prio2")
    a("s_setprio 0")
    a("A_prio2:")
    body(0)
    a("s_cbranch_scc1 A_loop")
    for j in range(8 - DLY, 8):
        ej = E + (2 * j) % NE
        a(f"v_cvt_pk_bf16_f32 v{P[1]+j}, v{ej}, v{ej+1}")
    a.nop(2)
    a(f"v_mfma_f32_32x32x16_bf16 {vr(O[1],16)}, {vr(VB[1],4)}, {vr(P[1],4)}, {vr(O[1],16)}")
    a(f"v_mfma_f32_32x32x16_bf16 {vr(O[1],16)}, {vr(VB[1]+4,4)}, {vr(P[1]+4,4)}, {vr(O[1],16)}")
    a(f"s_mul_i32 s25, s3, 2304")
    a(f"s_add_u32 s25, s25, {SCR}")
    a("v_add_u32 v5, s25, v2")
    a("v_lshlrev_b32 v6, 2, v1")
    a("v_add_u32 v6, s25, v6")
    a("s_xor_b32 s25, s3, 4")
    a(f"s_mul_i32 s25, s25, 2304")
    a(f"s_add_u32 s25, s25, {SCR}")
    a("v_add_u32 v7, s25, v2")
    a("v_lshlrev_b32 v154, 2, v1")
    a("v_add_u32 v154, s25, v154")
    a("s_waitcnt lgkmcnt(0)")
    a.nop(8)
    a(f"ds_write_b128 v5, {vr(O[1],4)}")
    a(f"ds_write_b128 v5, {vr(O[1]+4,4)} offset:1024")
    a(f"ds_write_b32 v6, v{O[1]+8} offset:2048")
    a("s_waitcnt lgkmcnt(0)")
    a("s_barrier")
    a(f"ds_read_b128 {vr(S[0],4)}, v7")
    a(f"ds_read_b128 {vr(S[0]+4,4)}, v7 offset:1024")
    a(f"ds_read_b32 v{S[0]+8}, v154 offset:2048")
    a("s_waitcnt lgkmcnt(0)")
    for r in range(9):
        a(f"v_add_f32 v{O[0]+r}, v{O[0]+r}, v{S[0]+r}")
    a(f"v_mov_b32 v6, {f2u(2.0**-60):#x}")
    a(f"v_cmp_nge_f32 vcc, v{O[0]+8}, v6")
    a("s_cmp_eq_u64 vcc, 0")
    a("s_cbranch_scc1 A_fin")
    a("v_mov_b32 v156, v2")
    a("v_mov_b32 v6, 0xff800000")
    a("s_mov_b32 s29, 64")
    a("A_fb:")
    a(f"ds_read_b128 {vr(KB[0],4)}, v156")
    a(f"v_add_u32 v156, {KVT}, v156")
    a("s_waitcnt lgkmcnt(0)")
    a(f"v_mfma_f32_32x32x16_bf16 {vr(S[0],16)}, {vr(KB[0],4)}, {vr(Q[0],4)}, 0")
    a.nop(16)
    for i in range(8):
        a(f"v_max3_f32 v6, v6, v{S[0]+2*i}, v{S[0]+2*i+1}")
    a("s_sub_u32 s29, s29, 1")
    a("s_cmp_lg_u32 s29, 0")
    a("s_cbranch_scc1 A_fb")
    half_sum(a, 6, 7, op="v_max_f32")
    a("v_sub_f32 v6, 0, v6")
    for r in range(16):
        a(f"v_mov_b32 v{C+r}, v6")
        a(f"v_mov_b32 v{O[0]+r}, 0")
    a("v_mov_b32 v156, v2")
    a("v_mov_b32 v157, v155")
    a("s_mov_b32 s29, 64")
    a("A_fb2:")
    a(f"ds_read_b128 {vr(KB[0],4)}, v156")
    a(f"ds_read_b128 {vr(VB[0],4)}, v157")
    a(f"ds_read_b128 {vr(VB[0]+4,4)}, v157 offset:{VU}")
    a(f"v_add_u32 v156, {KVT}, v156")
    a(f"v_add_u32 v157, {KVT}, v157")
    a("s_waitcnt lgkmcnt(0)")
    a(f"v_mfma_f32_32x32x16_bf16 {vr(S[0],16)}, {vr(KB[0],4)}, {vr(Q[0],4)}, {vr(C,16)}")
    a.nop(16)
    for i in range(16):
        a(f"v_exp_f32 v{S[0]+i}, v{S[0]+i}")
    a.nop(1)
    for i in range(8):
        a(f"v_cvt_pk_bf16_f32 v{P[0]+i}, v{S[0]+2*i}, v{S[0]+2*i+1}")
    a.nop(2)
    a(f"v_mfma_f32_32x32x16_bf16 {vr(O[0],16)}, {vr(VB[0],4)}, {vr(P[0],4)}, {vr(O[0],16)}")
    a(f"v_mfma_f32_32x32x16_bf16 {vr(O[0],16)}, {vr(VB[0]+4,4)}, {vr(P[0]+4,4)}, {vr(O[0],16)}")
    a.nop(16)
    a("s_sub_u32 s29, s29, 1")
    a("s_cmp_lg_u32 s29, 0")
    a("s_cbranch_scc1 A_fb2")
    a("A_fin:")
    a.stamp(6)
    if PROFILE:
        a("s_memtime s[80:81]")
        a("s_waitcnt lgkmcnt(0)")
    a(f"v_rcp_f32 v6, v{O[0]+8}")
    a.nop(1)
    for r in range(8):
        a(f"v_mul_f32 v{O[0]+r}, v{O[0]+r}, v6")
    for q in range(4):
        a(f"v_cvt_pk_bf16_f32 v{S[0]+q}, v{O[0]+2*q}, v{O[0]+2*q+1}")
    a(f"s_add_u32 s23, s22, {OF:#x}")
    a(f"buffer_store_dwordx4 {vr(S[0],4)}, v2, s[8:11], s23 offen")
    a(f"{end}:")
    a.stamp_flush(8)
    a(f"{end}x:")
    a("s_endpgm")
    a.desc(name, 160)
    return SCR + 8 * 2304


def gen_ffn1(a):
    name = "ffn1_kernel"
    a.begin(name)
    end = f"{name}_end"
    prologue(a, end)
    STAT = 65536
    a("s_lshl_b32 s20, s4, 16")
    a(f"s_add_u32 s20, s20, {X1F:#x}")
    a("s_lshl_b32 s21, s3, 12")
    a("s_add_u32 s22, s20, s21")
    a("s_add_u32 s23, s22, 32768")
    for i in range(4):
        a(f"buffer_load_dwordx4 {vr(160+4*i,4)}, v2, s[8:11], s22 offen offset:{1024*i}")
    for i in range(4):
        a(f"buffer_load_dwordx4 {vr(176+4*i,4)}, v2, s[8:11], s23 offen offset:{1024*i}")
    R0 = 32
    a("s_mul_i32 s24, s5, 7")
    a("s_add_u32 s24, s24, s3")
    a("s_cmp_eq_u32 s3, 7")
    a("s_cbranch_scc1 F1_now")
    a("s_lshl_b32 s25, s24, 15")
    a(f"s_add_u32 s25, s25, {W1F:#x}")
    for i in range(32):
        frag_loads(a, vr(R0 + 4 * i, 4), 25, i, 26)
    a("v_lshlrev_b32 v5, 4, v4")
    a("s_lshl_b32 s27, s24, 7")
    a(f"s_add_u32 s27, s27, {CS1:#x}")
    for q in range(4):
        a(f"buffer_load_dwordx4 {vr(192+4*q,4)}, v5, s[8:11], s27 offen offset:{32*q}")
    a("s_waitcnt vmcnt(36)")
    a("s_branch F1_st")
    a("F1_now:")
    a("s_waitcnt vmcnt(0)")
    a("F1_st:")
    a.stamp(2)
    a("v_add_u32 v5, s21, v2")
    for i in range(4):
        a(f"ds_write_b128 v5, {vr(160+4*i,4)} offset:{1024*i}")
        a(f"ds_write_b128 v5, {vr(176+4*i,4)} offset:{32768+1024*i}")
    a("s_mov_b32 s28, 0x3f803f80")
    for r in range(8):
        a(f"v_mov_b32 v{8+r}, 0")
    for i in range(16):
        for r in range(2):
            x = 160 + 16 * r + i
            k = 4 * (i % 2)
            a(f"v_dot2_f32_bf16 v{8+k+2*r}, v{x}, s28, v{8+k+2*r}")
            a(f"v_dot2_f32_bf16 v{9+k+2*r}, v{x}, v{x}, v{9+k+2*r}")
    a("s_lshl_b32 s21, s3, 10")
    a(f"s_add_u32 s21, s21, {STAT}")
    a("v_add_u32 v5, s21, v2")
    a.nop(2)
    for r in range(4):
        a(f"v_add_f32 v{8+r}, v{8+r}, v{12+r}")
    a("ds_write_b128 v5, v[8:11]")
    a("s_waitcnt lgkmcnt(0)")
    a.stamp(3)
    a("s_barrier")
    a.stamp(4)
    a("s_cmp_eq_u32 s3, 7")
    a(f"s_cbranch_scc1 {end}")

    def rd(i):
        b = 8 + 8 * (i % 3)
        a(f"ds_read_b128 {vr(b,4)}, v2 offset:{i*1024}")
        a(f"ds_read_b128 {vr(b+4,4)}, v2 offset:{32768+i*1024}")
    rd(0)
    rd(1)
    for i in range(32):
        if i + 2 < 32:
            rd(i + 2)
        pend = min(32, i + 3) - i - 1
        a(f"s_waitcnt vmcnt({4+31-i}) lgkmcnt({2*pend})")
        b = 8 + 8 * (i % 3)
        for r in range(2):
            cin = "0" if i == 0 else ar(16 * r, 16)
            a(f"v_mfma_f32_32x32x16_bf16 {ar(16*r,16)}, {vr(R0+4*i,4)}, {vr(b+4*r,4)}, {cin}")
    a.stamp(5)
    a(f"v_add_u32 v5, {STAT}, v2")
    for w in range(8):
        a(f"ds_read_b128 {vr(160+4*w,4)}, v5 offset:{1024*w}")
    a("s_waitcnt lgkmcnt(0)")
    for w in range(1, 8):
        for r in range(4):
            a(f"v_add_f32 v{160+r}, v{160+r}, v{160+4*w+r}")
    for r in range(4):
        half_sum(a, 160 + r, 164)
    for r in range(2):
        m, x2 = 160 + 2 * r, 161 + 2 * r
        a(f"v_mul_f32 v{m}, {f2u(1.0/512):#x}, v{m}")
        a(f"v_mul_f32 v{x2}, {f2u(1.0/512):#x}, v{x2}")
        a(f"v_fma_f32 v{x2}, -v{m}, v{m}, v{x2}")
        a(f"v_max_f32 v{x2}, 0, v{x2}")
        a(f"v_add_f32 v{x2}, {f2u(EPS):#x}, v{x2}")
        a(f"v_rsq_f32 v{8+2*r}, v{x2}")
        a.nop(1)
        a(f"v_mul_f32 v{9+2*r}, v{m}, v{8+2*r}")
        a(f"v_sub_f32 v{9+2*r}, 0, v{9+2*r}")
    a.stamp(6)
    a("s_waitcnt vmcnt(0)")
    for r in range(32):
        a(f"v_accvgpr_read_b32 v{32+r}, a{r}")
    for rr in range(2):
        for r in range(16):
            a(f"v_mul_f32 v{64+r}, v{9+2*rr}, v{192+r}")
            a(f"v_fma_f32 v{32+16*rr+r}, v{32+16*rr+r}, v{8+2*rr}, v{64+r}")
        for q in range(8):
            a(f"v_cvt_pk_bf16_f32 v{80+8*rr+q}, v{32+16*rr+2*q}, v{32+16*rr+2*q+1}")
        for q in range(8):
            a(f"v_pk_max_i16 v{80+8*rr+q}, v{80+8*rr+q}, 0")
    a("s_lshl_b32 s26, s4, 1")
    a("s_mul_i32 s26, s26, 112")
    a("s_lshl_b32 s27, s24, 1")
    a("s_add_u32 s26, s26, s27")
    a("s_lshl_b32 s26, s26, 10")
    a(f"s_add_u32 s26, s26, {HF:#x}")
    a(f"s_add_u32 s27, s26, {112*1024}")
    a("buffer_store_dwordx4 v[80:83], v2, s[8:11], s26 offen")
    a("buffer_store_dwordx4 v[84:87], v2, s[8:11], s26 offen offset:1024")
    a("buffer_store_dwordx4 v[88:91], v2, s[8:11], s27 offen")
    a("buffer_store_dwordx4 v[92:95], v2, s[8:11], s27 offen offset:1024")
    a(f"{end}:")
    a.stamp_flush(8)
    a(f"{end}x:")
    a("s_endpgm")
    a.desc(name, 208, agpr=32)
    return STAT + 8192


def main():
    a = Asm()
    gen_P(a)
    lds_qkv = gen_qkv(a)
    lds_attn = gen_attn(a)
    gen_gemm_res(a, "oproj_kernel", WOF, OF, 32, XF, X1F, False)
    lds_f1 = gen_ffn1(a)
    gen_gemm_res(a, "ffn2a_kernel", W2F, HF, 112, X1F, XF, False)
    gen_gemm_res(a, "ffn2b_kernel", W2F, HF, 112, X1F, None, True)
    hdr = []
    L = hdr.append
    L("; @launch kernel=prep_kernel grid=(217,1,1) block=(512,1,1) lds=2048")
    for layer in range(2):
        L(f"; @launch kernel=qkv_kernel grid=(256,1,1) block=(256,1,1) lds={lds_qkv}")
        L(f"; @launch kernel=attn_kernel grid=(256,1,1) block=(512,1,1) lds={lds_attn}")
        L("; @launch kernel=oproj_kernel grid=(256,1,1) block=(256,1,1) lds=65536")
        L(f"; @launch kernel=ffn1_kernel grid=(256,1,1) block=(512,1,1) lds={lds_f1}")
        L(f"; @launch kernel={'ffn2a' if layer == 0 else 'ffn2b'}_kernel grid=(256,1,1) block=(256,1,1) lds=65536")
    out = "\n".join(hdr) + "\n"
    out += '.amdgcn_target "amdgcn-amd-amdhsa--gfx950"\n.text\n'
    out += "\n".join(a.L) + "\n"
    out += '.section .rodata,"a"\n' + "\n".join(a.kernels) + "\n"
    path = sys.argv[1] if len(sys.argv) > 1 else f"cdna_kernels/{NAME}.s"
    open(path, 'w').write(out)
    if PROFILE:
        import json
        json.dump(PROF_SLOT, open('prof_slots.json', 'w'))
    print("wrote", path, len(out), "bytes")


if __name__ == "__main__":
    main()
```

```python
import os
import sys
import gen as G
from gen import Asm, vr, ar, f2u, half_sum, wave32_max, prologue, frag_loads
from gen import WQF, WOF, W1F, W2F, WKVF, CSQ, CS1, CSKV, VH, VU, KVT, KVF_BYTES, QS, EPS, NAME, PROFILE

LSTRIDE = 0x2000000
XFL = [0x500000, 0x500000 + LSTRIDE]
QFL = [0x700000, 0x700000 + LSTRIDE]
OFL = [0x900000, 0x900000 + LSTRIDE]
X1FL = [0xB00000, 0xB00000 + LSTRIDE]
HFL = [0x1000000, 0x1000000 + LSTRIDE]
KVFL = [0x1800000, 0x1800000 + LSTRIDE]
KNL = [0x1880000, 0x1880000 + LSTRIDE]
FLAGS = 0x490000
G.WS_USED = 0x4400000
G.PROF = 0x4000000
G.KN = KNL[0]
SC = "sc0 sc1"
SPIN_MAX = 200000

PRIO_IT = int(os.environ.get('PRIO_IT', '7'))


def publish(a, epoch, tag):
    a("s_waitcnt vmcnt(0)")
    a("s_barrier")
    a("s_cmp_lg_u32 s3, 0")
    a(f"s_cbranch_scc1 {tag}_np")
    a(f"v_mov_b32 v5, {epoch}")
    a("v_mov_b32 v6, 0")
    a("v_cmp_eq_u32 vcc, 0, v1")
    a("s_and_saveexec_b64 s[38:39], vcc")
    a(f"buffer_store_dword v5, v6, s[8:11], s40 offen {SC}")
    a("s_mov_b64 exec, s[38:39]")
    a(f"{tag}_np:")


def wait_flag(a, epoch, tag):
    a("v_mov_b32 v6, 0")
    a("s_mov_b32 s37, 0")
    a(f"{tag}_poll:")
    a(f"buffer_load_dword v5, v6, s[8:11], s41 offen {SC}")
    a("s_waitcnt vmcnt(0)")
    a("v_readfirstlane_b32 s36, v5")
    a("s_add_u32 s37, s37, 1")
    a(f"s_cmp_ge_u32 s36, {epoch}")
    a(f"s_cbranch_scc1 {tag}_go")
    a(f"s_cmp_gt_u32 s37, {SPIN_MAX}")
    a(f"s_cbranch_scc1 {tag}_go")
    a("s_sleep 1")
    a(f"s_branch {tag}_poll")
    a(f"{tag}_go:")


def ld(a, dst, sbase, idx, stmp, flags=""):
    hi, lo = idx // 4, idx % 4
    if hi == 0:
        so = f"s{sbase}"
    else:
        a(f"s_add_u32 s{stmp}, s{sbase}, {hi*4096}")
        so = f"s{stmp}"
    a(f"buffer_load_dwordx4 {dst}, v2, s[8:11], {so} offen offset:{lo*1024} {flags}")


def reduce8(a, ACC, DST, lds_base=0):
    a("s_lshl_b32 s32, s3, 11")
    a("v_add_u32 v5, s32, v2")
    a("v_add_u32 v6, 0x10000, v5")
    a("s_lshl_b32 s32, s3, 14")
    a("v_add_u32 v7, s32, v2")
    a.nop(12)
    for p in range(8):
        for q in range(2):
            off = (p % 4) * 16384 + q * 1024
            a(f"ds_write_b128 v{5 if p < 4 else 6}, {vr(ACC+8*p+4*q,4)} offset:{off}")
    a("s_waitcnt lgkmcnt(0)")
    a("s_barrier")
    for s in range(8):
        for q in range(2):
            a(f"ds_read_b128 {vr(ACC+8*s+4*q,4)}, v7 offset:{s*2048+q*1024}")
    for s in range(0, 8, 2):
        a(f"s_waitcnt lgkmcnt({12-2*s})")
        for r in range(8):
            if s == 0:
                a(f"v_add_f32 v{DST+r}, v{ACC+r}, v{ACC+8+r}")
            else:
                a(f"v_add_f32 v{ACC+8*s+r}, v{ACC+8*s+r}, v{ACC+8*s+8+r}")
                a(f"v_add_f32 v{DST+r}, v{DST+r}, v{ACC+8*s+r}")


def gen_F(a, L):
    last = (L == 1)
    name = f"f{L+1}_kernel"
    T = f"F{L}"
    a.begin(name)
    end = f"{name}_end"
    prologue(a, end, out_ptr=last)
    if last:
        a.srd(16, 12, 2048 * 512 * 2)
    XF, QF, OF, X1F, HF, KVF, KN = XFL[L], QFL[L], OFL[L], X1FL[L], HFL[L], KVFL[L], KNL[L]
    EP = 4 * L
    a("s_lshl_b32 s40, s4, 8")
    a(f"s_add_u32 s40, s40, {FLAGS:#x}")
    a("s_lshl_b32 s41, s3, 2")
    a("s_add_u32 s41, s41, s40")
    a("s_lshl_b32 s32, s5, 2")
    a("s_add_u32 s40, s40, s32")
    a("s_lshr_b32 s32, s3, 1")
    a("s_and_b32 s43, s32, 1")
    a("s_lshr_b32 s44, s3, 2")
    a("s_lshl_b32 s45, s4, 1")
    a("s_add_u32 s45, s45, s43")
    a("s_lshl_b32 s46, s5, 1")
    a("s_add_u32 s46, s46, s44")
    a("s_lshl_b32 s42, s45, 5")
    a("s_lshl_b32 s32, s46, 1")
    a("s_add_u32 s42, s42, s32")
    a("s_and_b32 s47, s3, 1")
    a("s_add_u32 s42, s42, s47")
    a("s_lshl_b32 s42, s42, 10")
    SCR = KVF_BYTES
    Q = (8, 12)
    C = 16
    O = (32, 48)
    S = (64, 80)
    P = (96, 104)
    E = 112
    KB = (128, 132)
    VB = (136, 144)
    a("s_and_b32 s20, s3, 3")
    a("s_lshr_b32 s30, s3, 2")
    a("s_and_b32 s21, s20, 1")
    a("s_lshl_b32 s21, s21, 1")
    a("s_lshl_b32 s22, s5, 2")
    a("s_add_u32 s21, s21, s22")
    a("s_lshr_b32 s22, s20, 1")
    a("s_lshl_b32 s23, s4, 1")
    a("s_add_u32 s22, s22, s23")
    a("s_lshl_b32 s22, s22, 5")
    a("s_add_u32 s22, s22, s21")
    a("s_add_u32 s23, s22, s30")
    a("s_xor_b32 s24, s30, 1")
    a("s_add_u32 s24, s22, s24")
    a("s_lshl_b32 s22, s23, 10")
    a("s_lshl_b32 s24, s24, 10")
    a(f"s_add_u32 s23, s22, {QF:#x}")
    a(f"s_add_u32 s24, s24, {QF:#x}")
    a(f"buffer_load_dwordx4 {vr(Q[0],4)}, v2, s[8:11], s23 offen")
    a(f"buffer_load_dwordx4 {vr(Q[1],4)}, v2, s[8:11], s24 offen")
    a("v_lshlrev_b32 v5, 2, v1")
    a(f"s_mov_b32 s23, {KN:#x}")
    a("buffer_load_dword v7, v5, s[8:11], s23 offen")
    a("s_lshr_b32 s24, s3, 1")
    a("s_lshl_b32 s24, s24, 10")
    a("s_and_b32 s25, s3, 1")
    a(f"s_mul_i32 s25, s25, {32*KVT}")
    a("s_add_u32 s34, s24, s25")
    a(f"s_add_u32 s35, s34, {KVF:#x}")

    def dma():
        a("s_mov_b32 m0, s34")
        a("s_add_u32 s34, s34, 4096")
        a("buffer_load_dwordx4 v2, s[8:11], s35 offen lds")
        a("s_add_u32 s35, s35, 4096")
    for i in range(6):
        dma()
    a("v_min_u32 v6, 17, v3")
    a("v_mov_b32 v5, 16")
    a("v_cmp_eq_u32 vcc, 20, v3")
    a(f"s_mul_i32 s25, s30, {32*KVT}")
    a.nop(1)
    a("v_cndmask_b32 v6, v6, v5, vcc")
    a("v_lshlrev_b32 v6, 4, v6")
    a(f"v_mul_u32_u24 v5, {VH}, v4")
    a("v_add3_u32 v155, v6, v5, 64")
    a("v_add_u32 v155, 960, v155")
    a("v_add_u32 v156, s25, v2")
    a("v_add_u32 v157, s25, v155")
    a("s_waitcnt vmcnt(6)")
    a("v_mov_b32 v5, 0")
    a("v_mov_b32 v6, 0")
    for q in range(4):
        a(f"v_dot2_f32_bf16 v5, v{Q[0]+q}, v{Q[0]+q}, v5")
        a(f"v_dot2_f32_bf16 v6, v{Q[1]+q}, v{Q[1]+q}, v6")
    a.nop(3)
    half_sum(a, 5, 154)
    half_sum(a, 6, 154)
    a("v_max_f32 v5, v5, v6")
    for off in (0x041F, 0x081F, 0x101F, 0x201F, 0x401F):
        a(f"ds_swizzle_b32 v6, v5 offset:{off:#x}")
        a(f"ds_swizzle_b32 v154, v7 offset:{off:#x}")
        a("s_waitcnt lgkmcnt(0)")
        a("v_max_f32 v5, v5, v6")
        a("v_max_f32 v7, v7, v154")
    half_sum(a, 7, 154, op="v_max_f32")
    a("v_mul_f32 v6, v5, v7")
    a("v_sqrt_f32 v6, v6")
    a.nop(1)
    a(f"v_mul_f32 v6, {f2u(-1.02):#x}, v6")
    for r in range(16):
        a(f"v_mov_b32 v{C+r}, v6")
        a(f"v_mov_b32 v{O[0]+r}, 0")
        a(f"v_mov_b32 v{O[1]+r}, 0")
        a(f"v_mov_b32 v{E+r}, 0")
    for r in range(8):
        a(f"v_mov_b32 v{P[1]+r}, 0")
        a(f"v_mov_b32 v{VB[1]+r}, 0")
    a("s_lshl_b32 s32, s5, 1")
    a("s_lshl_b32 s48, s32, 5")
    a("s_lshl_b32 s33, s3, 2")
    a("s_add_u32 s48, s48, s33")
    a("s_lshl_b32 s48, s48, 10")
    a(f"s_add_u32 s48, s48, {WOF:#x}")
    a("s_add_u32 s49, s48, 32768")
    a("s_min_u32 s32, s3, 6")
    a("s_mul_i32 s51, s5, 7")
    a("s_add_u32 s51, s51, s32")
    a("s_lshl_b32 s50, s51, 15")
    a(f"s_add_u32 s50, s50, {W1F:#x}")
    a(f"s_add_u32 s52, s42, {XF:#x}")
    pf = []
    for i in range(4):
        pf.append((ar(8 * i, 4), 48, i))
        pf.append((ar(8 * i + 4, 4), 49, i))
    pf.append((ar(32, 4), 52, 0))
    for i in range(15):
        pf.append((ar(36 + 4 * i, 4), 50, i))
    a("s_waitcnt vmcnt(0)")
    a("s_barrier")
    a.stamp(2)
    a(f"ds_read_b128 {vr(KB[0],4)}, v156")
    a(f"ds_read_b128 {vr(KB[1],4)}, v156 offset:{KVT}")
    a(f"ds_read_b128 {vr(VB[0],4)}, v157")
    a(f"ds_read_b128 {vr(VB[0]+4,4)}, v157 offset:{VU}")
    a("s_cmp_lt_u32 s3, 4")
    a(f"s_cbranch_scc1 {T}_noprio")
    a("s_setprio 1")
    a(f"{T}_noprio:")
    a("s_waitcnt lgkmcnt(3)")
    a(f"v_mfma_f32_32x32x16_bf16 {vr(S[0],16)}, {vr(KB[0],4)}, {vr(Q[0],4)}, {vr(C,16)}")
    a.nop(10)
    UN, PV1, PV2, DLY, NE = 4, 3, 6, 2, 16

    def body(extra):
        for t in range(UN):
            for x in range(2):
                y = 1 - x
                ty = t if x == 0 else t + 1
                tv = t - 1 if x == 0 else t
                for i in range(8):
                    if i == 0:
                        if x == 1:
                            a("s_waitcnt lgkmcnt(0)")
                        a(f"v_mfma_f32_32x32x16_bf16 {vr(S[y],16)}, {vr(KB[ty%2],4)}, {vr(Q[y],4)}, {vr(C,16)}")
                        if x == 1:
                            a(f"ds_read_b128 {vr(KB[t%2],4)}, v156 offset:{(t+2)*KVT}")
                            a(f"ds_read_b128 {vr(VB[(t+1)%2],4)}, v157 offset:{(t+1)*KVT}")
                            a(f"ds_read_b128 {vr(VB[(t+1)%2]+4,4)}, v157 offset:{(t+1)*KVT+VU}")
                    e = E + (2 * i) % NE
                    a(f"v_exp_f32 v{e}, v{S[x]+2*i}")
                    a(f"v_exp_f32 v{e+1}, v{S[x]+2*i+1}")
                    j = i - DLY
                    if j >= 0:
                        ej = E + (2 * j) % NE
                        a(f"v_cvt_pk_bf16_f32 v{P[x]+j}, v{ej}, v{ej+1}")
                    else:
                        ej = E + (2 * (j + 8)) % NE
                        a(f"v_cvt_pk_bf16_f32 v{P[y]+j+8}, v{ej}, v{ej+1}")
                    if i == PV1:
                        a(f"v_mfma_f32_32x32x16_bf16 {vr(O[y],16)}, {vr(VB[tv%2],4)}, {vr(P[y],4)}, {vr(O[y],16)}")
                    if i == PV2:
                        a(f"v_mfma_f32_32x32x16_bf16 {vr(O[y],16)}, {vr(VB[tv%2]+4,4)}, {vr(P[y]+4,4)}, {vr(O[y],16)}")
                    if i in (1, 4, 5) and extra:
                        extra.pop(0)()
                if t == UN - 1 and x == 1:
                    a(f"v_add_u32 v156, {UN*KVT}, v156")
                    a(f"v_add_u32 v157, {UN*KVT}, v157")
                    a("s_add_u32 s29, s29, 1")
                    a("s_cmp_lg_u32 s29, 8")

    a("s_mov_b32 s29, 0")
    body([dma] * 11)
    body([])
    a("s_waitcnt vmcnt(0)")
    a("s_barrier")
    body([(lambda d=d, b=b, i=i: ld(a, d, b, i, 33)) for (d, b, i) in pf])
    a(f"{T}_loop:")
    a(f"s_cmp_lg_u32 s29, {PRIO_IT}")
    a(f"s_cbranch_scc1 {T}_prio2")
    a("s_setprio 0")
    a(f"{T}_prio2:")
    body([])
    a(f"s_cbranch_scc1 {T}_loop")
    for j in range(8 - DLY, 8):
        ej = E + (2 * j) % NE
        a(f"v_cvt_pk_bf16_f32 v{P[1]+j}, v{ej}, v{ej+1}")
    a.nop(2)
    a(f"v_mfma_f32_32x32x16_bf16 {vr(O[1],16)}, {vr(VB[1],4)}, {vr(P[1],4)}, {vr(O[1],16)}")
    a(f"v_mfma_f32_32x32x16_bf16 {vr(O[1],16)}, {vr(VB[1]+4,4)}, {vr(P[1]+4,4)}, {vr(O[1],16)}")
    a("s_mul_i32 s25, s3, 2304")
    a(f"s_add_u32 s25, s25, {SCR}")
    a("v_add_u32 v5, s25, v2")
    a("v_lshlrev_b32 v6, 2, v1")
    a("v_add_u32 v6, s25, v6")
    a("s_xor_b32 s25, s3, 4")
    a("s_mul_i32 s25, s25, 2304")
    a(f"s_add_u32 s25, s25, {SCR}")
    a("v_add_u32 v7, s25, v2")
    a("v_lshlrev_b32 v154, 2, v1")
    a("v_add_u32 v154, s25, v154")
    a("s_waitcnt lgkmcnt(0)")
    a.nop(8)
    a(f"ds_write_b128 v5, {vr(O[1],4)}")
    a(f"ds_write_b128 v5, {vr(O[1]+4,4)} offset:1024")
    a(f"ds_write_b32 v6, v{O[1]+8} offset:2048")
    a("s_waitcnt lgkmcnt(0)")
    a("s_barrier")
    a(f"ds_read_b128 {vr(S[0],4)}, v7")
    a(f"ds_read_b128 {vr(S[0]+4,4)}, v7 offset:1024")
    a(f"ds_read_b32 v{S[0]+8}, v154 offset:2048")
    a("s_waitcnt lgkmcnt(0)")
    for r in range(9):
        a(f"v_add_f32 v{O[0]+r}, v{O[0]+r}, v{S[0]+r}")
    a(f"v_mov_b32 v6, {f2u(2.0**-60):#x}")
    a(f"v_cmp_nge_f32 vcc, v{O[0]+8}, v6")
    a("s_cmp_eq_u64 vcc, 0")
    a(f"s_cbranch_scc1 {T}_afin")
    a("v_mov_b32 v156, v2")
    a("v_mov_b32 v6, 0xff800000")
    a("s_mov_b32 s29, 64")
    a(f"{T}_fb:")
    a(f"ds_read_b128 {vr(KB[0],4)}, v156")
    a(f"v_add_u32 v156, {KVT}, v156")
    a("s_waitcnt lgkmcnt(0)")
    a(f"v_mfma_f32_32x32x16_bf16 {vr(S[0],16)}, {vr(KB[0],4)}, {vr(Q[0],4)}, 0")
    a.nop(16)
    for i in range(8):
        a(f"v_max3_f32 v6, v6, v{S[0]+2*i}, v{S[0]+2*i+1}")
    a("s_sub_u32 s29, s29, 1")
    a("s_cmp_lg_u32 s29, 0")
    a(f"s_cbranch_scc1 {T}_fb")
    half_sum(a, 6, 7, op="v_max_f32")
    a("v_sub_f32 v6, 0, v6")
    for r in range(16):
        a(f"v_mov_b32 v{C+r}, v6")
        a(f"v_mov_b32 v{O[0]+r}, 0")
    a("v_mov_b32 v156, v2")
    a("v_mov_b32 v157, v155")
    a("s_mov_b32 s29, 64")
    a(f"{T}_fb2:")
    a(f"ds_read_b128 {vr(KB[0],4)}, v156")
    a(f"ds_read_b128 {vr(VB[0],4)}, v157")
    a(f"ds_read_b128 {vr(VB[0]+4,4)}, v157 offset:{VU}")
    a(f"v_add_u32 v156, {KVT}, v156")
    a(f"v_add_u32 v157, {KVT}, v157")
    a("s_waitcnt lgkmcnt(0)")
    a(f"v_mfma_f32_32x32x16_bf16 {vr(S[0],16)}, {vr(KB[0],4)}, {vr(Q[0],4)}, {vr(C,16)}")
    a.nop(16)
    for i in range(16):
        a(f"v_exp_f32 v{S[0]+i}, v{S[0]+i}")
    a.nop(1)
    for i in range(8):
        a(f"v_cvt_pk_bf16_f32 v{P[0]+i}, v{S[0]+2*i}, v{S[0]+2*i+1}")
    a.nop(2)
    a(f"v_mfma_f32_32x32x16_bf16 {vr(O[0],16)}, {vr(VB[0],4)}, {vr(P[0],4)}, {vr(O[0],16)}")
    a(f"v_mfma_f32_32x32x16_bf16 {vr(O[0],16)}, {vr(VB[0]+4,4)}, {vr(P[0]+4,4)}, {vr(O[0],16)}")
    a.nop(16)
    a("s_sub_u32 s29, s29, 1")
    a("s_cmp_lg_u32 s29, 0")
    a(f"s_cbranch_scc1 {T}_fb2")
    a(f"{T}_afin:")
    a(f"v_rcp_f32 v6, v{O[0]+8}")
    a.nop(1)
    for r in range(8):
        a(f"v_mul_f32 v{O[0]+r}, v{O[0]+r}, v6")
    for q in range(4):
        a(f"v_cvt_pk_bf16_f32 v{S[0]+q}, v{O[0]+2*q}, v{O[0]+2*q+1}")
    a(f"s_add_u32 s23, s22, {OF:#x}")
    a(f"buffer_store_dwordx4 {vr(S[0],4)}, v2, s[8:11], s23 offen {SC}")
    a.stamp(3)
    publish(a, EP + 1, f"{T}_p1")
    a("s_lshl_b32 s20, s4, 6")
    a("s_lshl_b32 s21, s3, 2")
    a("s_add_u32 s20, s20, s21")
    a("s_lshl_b32 s53, s20, 10")
    a(f"s_add_u32 s20, s53, {OF:#x}")
    a("s_add_u32 s21, s20, 32768")
    wait_flag(a, EP + 1, f"{T}_w1")
    for i in range(4):
        ld(a, vr(8 + 8 * i, 4), 20, i, 33, SC)
        ld(a, vr(12 + 8 * i, 4), 21, i, 33, SC)
    ACC = 64
    for i in range(4):
        a(f"s_waitcnt vmcnt({2*(3-i)})")
        for c in range(2):
            for r in range(2):
                t = 2 * c + r
                cin = "0" if i == 0 else vr(ACC + 16 * t, 16)
                a(f"v_mfma_f32_32x32x16_bf16 {vr(ACC+16*t,16)}, {ar(8*i+4*c,4)}, {vr(8+8*i+4*r,4)}, {cin}")
    for i in range(8):
        ld(a, ar(4 * i, 4), 50, 15 + i, 33)
    reduce8(a, ACC, 128)
    for q in range(4):
        a(f"v_accvgpr_read_b32 v{136+q}, a{32+q}")
    for q in range(4):
        a(f"v_lshlrev_b32 v{140}, 16, v{136+q}")
        a(f"v_and_b32 v{141}, 0xffff0000, v{136+q}")
        a(f"v_add_f32 v{128+2*q}, v{128+2*q}, v140")
        a(f"v_add_f32 v{129+2*q}, v{129+2*q}, v141")
    for q in range(4):
        a(f"v_cvt_pk_bf16_f32 v{136+q}, v{128+2*q}, v{129+2*q}")
    a(f"s_add_u32 s23, s42, {X1F:#x}")
    a(f"buffer_store_dwordx4 v[136:139], v2, s[8:11], s23 offen {SC}")
    for q in range(4):
        a(f"v_accvgpr_write_b32 a{32+q}, v{136+q}")
    a.stamp(4)
    publish(a, EP + 2, f"{T}_p2")
    for i in range(9):
        ld(a, vr(64 + 4 * i, 4), 50, 23 + i, 33)
    a("v_lshlrev_b32 v7, 4, v4")
    a("s_lshl_b32 s27, s51, 7")
    a(f"s_add_u32 s27, s27, {CS1:#x}")
    for q in range(4):
        a(f"buffer_load_dwordx4 {vr(100+4*q,4)}, v7, s[8:11], s27 offen offset:{32*q}")
    a(f"s_add_u32 s20, s53, {X1F:#x}")
    a("s_add_u32 s21, s20, 32768")
    wait_flag(a, EP + 2, f"{T}_w2")
    for i in range(4):
        ld(a, vr(32 + 4 * i, 4), 20, i, 33, SC)
    for i in range(4):
        ld(a, vr(48 + 4 * i, 4), 21, i, 33, SC)
    STAT = 65536
    a("s_lshl_b32 s21, s3, 12")
    a("v_add_u32 v5, s21, v2")
    a("s_mov_b32 s28, 0x3f803f80")
    for r in range(8):
        a(f"v_mov_b32 v{8+r}, 0")
    for rr in range(2):
        a(f"s_waitcnt vmcnt({4*(1-rr)})")
        for i in range(4):
            a(f"ds_write_b128 v5, {vr(32+16*rr+4*i,4)} offset:{32768*rr+1024*i}")
        for i in range(16):
            x = 32 + 16 * rr + i
            k = 4 * (i % 2)
            a(f"v_dot2_f32_bf16 v{8+k+2*rr}, v{x}, s28, v{8+k+2*rr}")
            a(f"v_dot2_f32_bf16 v{9+k+2*rr}, v{x}, v{x}, v{9+k+2*rr}")
    a("s_lshl_b32 s21, s3, 10")
    a(f"s_add_u32 s21, s21, {STAT}")
    a("v_add_u32 v5, s21, v2")
    a.nop(2)
    for r in range(4):
        a(f"v_add_f32 v{8+r}, v{8+r}, v{12+r}")
    a("ds_write_b128 v5, v[8:11]")
    a("s_waitcnt lgkmcnt(0)")
    a("s_barrier")
    a("s_lshl_b32 s32, s5, 1")
    a("s_mul_i32 s54, s32, 112")
    a("s_mul_i32 s33, s3, 14")
    a("s_add_u32 s54, s54, s33")
    a("s_lshl_b32 s54, s54, 10")
    a(f"s_add_u32 s54, s54, {W2F:#x}")
    a(f"s_add_u32 s55, s54, {112*1024}")
    a("s_cmp_eq_u32 s3, 7")
    a(f"s_cbranch_scc1 {T}_cskip")
    CACC = 116

    def w1reg(i):
        if i < 15:
            return ar(36 + 4 * i, 4)
        if i < 23:
            return ar(4 * (i - 15), 4)
        return vr(64 + 4 * (i - 23), 4)

    def rd(i):
        b = 8 + 8 * (i % 3)
        a(f"ds_read_b128 {vr(b,4)}, v2 offset:{i*1024}")
        a(f"ds_read_b128 {vr(b+4,4)}, v2 offset:{32768+i*1024}")
    rd(0)
    rd(1)
    for i in range(32):
        if i + 2 < 32:
            rd(i + 2)
        pend = min(32, i + 3) - i - 1
        a(f"s_waitcnt lgkmcnt({2*pend})")
        b = 8 + 8 * (i % 3)
        for r in range(2):
            cin = "0" if i == 0 else vr(CACC + 16 * r, 16)
            a(f"v_mfma_f32_32x32x16_bf16 {vr(CACC+16*r,16)}, {w1reg(i)}, {vr(b+4*r,4)}, {cin}")
    a(f"{T}_cskip:")

    def w2reg(j):
        if j < 8:
            return ar(4 * j, 4)
        if j < 23:
            return ar(36 + 4 * (j - 8), 4)
        return vr(136 + 4 * (j - 23), 4)
    for j in range(23):
        ld(a, w2reg(j), 54 + (j & 1), j >> 1, 33)
    a("s_cmp_eq_u32 s3, 7")
    a(f"s_cbranch_scc1 {T}_cdone")
    a(f"v_add_u32 v5, {STAT}, v2")
    for w in range(8):
        a(f"ds_read_b128 {vr(32+4*w,4)}, v5 offset:{1024*w}")
    a("s_waitcnt lgkmcnt(0)")
    for w in range(1, 8):
        for r in range(4):
            a(f"v_add_f32 v{32+r}, v{32+r}, v{32+4*w+r}")
    for r in range(4):
        half_sum(a, 32 + r, 36)
    for r in range(2):
        m, x2 = 32 + 2 * r, 33 + 2 * r
        a(f"v_mul_f32 v{m}, {f2u(1.0/512):#x}, v{m}")
        a(f"v_mul_f32 v{x2}, {f2u(1.0/512):#x}, v{x2}")
        a(f"v_fma_f32 v{x2}, -v{m}, v{m}, v{x2}")
        a(f"v_max_f32 v{x2}, 0, v{x2}")
        a(f"v_add_f32 v{x2}, {f2u(EPS):#x}, v{x2}")
        a(f"v_rsq_f32 v{8+2*r}, v{x2}")
        a.nop(1)
        a(f"v_mul_f32 v{9+2*r}, v{m}, v{8+2*r}")
        a(f"v_sub_f32 v{9+2*r}, 0, v{9+2*r}")
    for rr in range(2):
        for r in range(16):
            a(f"v_mul_f32 v{40+r}, v{9+2*rr}, v{100+r}")
            a(f"v_fma_f32 v{CACC+16*rr+r}, v{CACC+16*rr+r}, v{8+2*rr}, v{40+r}")
        for q in range(8):
            a(f"v_cvt_pk_bf16_f32 v{16+8*rr+q}, v{CACC+16*rr+2*q}, v{CACC+16*rr+2*q+1}")
        for q in range(8):
            a(f"v_pk_max_i16 v{16+8*rr+q}, v{16+8*rr+q}, 0")
    a("s_lshl_b32 s26, s4, 1")
    a("s_mul_i32 s26, s26, 112")
    a("s_lshl_b32 s27, s51, 1")
    a("s_add_u32 s26, s26, s27")
    a("s_lshl_b32 s26, s26, 10")
    a(f"s_add_u32 s26, s26, {HF:#x}")
    a(f"s_add_u32 s27, s26, {112*1024}")
    a(f"buffer_store_dwordx4 v[16:19], v2, s[8:11], s26 offen {SC}")
    a(f"buffer_store_dwordx4 v[20:23], v2, s[8:11], s26 offen offset:1024 {SC}")
    a(f"buffer_store_dwordx4 v[24:27], v2, s[8:11], s27 offen {SC}")
    a(f"buffer_store_dwordx4 v[28:31], v2, s[8:11], s27 offen offset:1024 {SC}")
    a(f"{T}_cdone:")
    a.stamp(5)
    publish(a, EP + 3, f"{T}_p3")
    for j in range(23, 28):
        ld(a, w2reg(j), 54 + (j & 1), j >> 1, 33)
    a("s_lshl_b32 s20, s4, 1")
    a("s_mul_i32 s20, s20, 112")
    a("s_mul_i32 s21, s3, 14")
    a("s_add_u32 s20, s20, s21")
    a("s_lshl_b32 s20, s20, 10")
    a(f"s_add_u32 s20, s20, {HF:#x}")
    a(f"s_add_u32 s21, s20, {112*1024}")
    wait_flag(a, EP + 3, f"{T}_w3")
    RING = 8
    DACC = 72

    def hld(i):
        b = 8 + 8 * (i % RING)
        ld(a, vr(b, 4), 20, i, 33, SC)
        ld(a, vr(b + 4, 4), 21, i, 33, SC)
    for i in range(RING):
        hld(i)
    for i in range(14):
        outst = min(14, i + RING) - i - 1
        a(f"s_waitcnt vmcnt({2*outst})")
        b = 8 + 8 * (i % RING)
        for c in range(2):
            for r in range(2):
                t = 2 * c + r
                cin = "0" if i == 0 else vr(DACC + 16 * t, 16)
                a(f"v_mfma_f32_32x32x16_bf16 {vr(DACC+16*t,16)}, {w2reg(2*i+c)}, {vr(b+4*r,4)}, {cin}")
        if i + RING < 14:
            hld(i + RING)
    if not last:
        a(f"s_add_u32 s48, s48, {(WQF - WOF) & 0xffffffff:#x}")
        a("s_add_u32 s49, s48, 32768")
        for i in range(4):
            ld(a, ar(8 * i, 4), 48, i, 33)
            ld(a, ar(8 * i + 4, 4), 49, i, 33)
        a("s_lshl_b32 s32, s3, 12")
        a(f"s_add_u32 s32, s32, {WKVF:#x}")
        for i in range(4):
            ld(a, ar(36 + 4 * i, 4), 32, i, 33)
        a("v_lshlrev_b32 v7, 4, v4")
        a("s_lshl_b32 s32, s46, 7")
        a("s_lshl_b32 s33, s47, 6")
        a("s_add_u32 s32, s32, s33")
        a(f"s_add_u32 s32, s32, {CSQ:#x}")
        for q in range(2):
            a(f"buffer_load_dwordx4 {ar(52+4*q,4)}, v7, s[8:11], s32 offen offset:{32*q}")
        a(f"s_mov_b32 s32, {CSKV:#x}")
        for q in range(2):
            a(f"buffer_load_dwordx4 {ar(60+4*q,4)}, v7, s[8:11], s32 offen offset:{32*q}")
        a("v_lshlrev_b32 v7, 2, v3")
        a("buffer_load_dword a68, v7, s[8:11], s32 offen")
    reduce8(a, DACC, 8)
    for q in range(4):
        a(f"v_accvgpr_read_b32 v{16+q}, a{32+q}")
    for q in range(4):
        a(f"v_lshlrev_b32 v20, 16, v{16+q}")
        a(f"v_and_b32 v21, 0xffff0000, v{16+q}")
        a(f"v_add_f32 v{8+2*q}, v{8+2*q}, v20")
        a(f"v_add_f32 v{9+2*q}, v{9+2*q}, v21")
    for q in range(4):
        a(f"v_cvt_pk_bf16_f32 v{16+q}, v{8+2*q}, v{9+2*q}")
    if last:
        a.nop(2)
        a("v_permlane32_swap_b32 v16, v18")
        a("v_permlane32_swap_b32 v17, v19")
        a("v_lshlrev_b32 v5, 10, v3")
        a("v_lshl_add_u32 v5, v4, 4, v5")
        a("s_lshl_b32 s31, s45, 15")
        a("s_lshl_b32 s32, s46, 6")
        a("s_add_u32 s31, s31, s32")
        a("s_lshl_b32 s32, s47, 5")
        a("s_add_u32 s31, s31, s32")
        a("buffer_store_dwordx4 v[16:19], v5, s[16:19], s31 offen")
        a.stamp(6)
    else:
        XN, QN, KVN, KNN = XFL[1], QFL[1], KVFL[1], KNL[1]
        a(f"s_add_u32 s23, s42, {XN:#x}")
        a(f"buffer_store_dwordx4 v[16:19], v2, s[8:11], s23 offen {SC}")
        a.stamp(6)
        publish(a, EP + 4, f"{T}_p4")
        a(f"s_add_u32 s20, s53, {XN:#x}")
        a("s_add_u32 s21, s20, 32768")
        a("s_mov_b32 s28, 0x3f803f80")
        wait_flag(a, EP + 4, f"{T}_w4")
        for i in range(4):
            ld(a, vr(8 + 8 * i, 4), 20, i, 33, SC)
            ld(a, vr(12 + 8 * i, 4), 21, i, 33, SC)
        for r in range(8):
            a(f"v_mov_b32 v{40+r}, 0")
        ACC = 64
        for i in range(4):
            a(f"s_waitcnt vmcnt({2*(3-i)})")
            for c in range(2):
                for r in range(2):
                    t = 2 * c + r
                    cin = "0" if i == 0 else vr(ACC + 16 * t, 16)
                    a(f"v_mfma_f32_32x32x16_bf16 {vr(ACC+16*t,16)}, {ar(8*i+4*c,4)}, {vr(8+8*i+4*r,4)}, {cin}")
                    for q in range(4):
                        x = 8 + 8 * i + 4 * r + q
                        k = 40 + 4 * (q % 2) + 2 * r + c
                        if c == 0:
                            a(f"v_dot2_f32_bf16 v{k}, v{x}, s28, v{k}")
                        else:
                            a(f"v_dot2_f32_bf16 v{k}, v{x}, v{x}, v{k}")
        STATQ = 131072
        KVS = STATQ + 8192
        STAT2 = KVS + 16384
        a("s_lshl_b32 s32, s3, 11")
        a(f"s_add_u32 s32, s32, {KVS}")
        a("v_add_u32 v7, s32, v2")
        a("s_cmp_ge_u32 s5, 6")
        a(f"s_cbranch_scc1 {T}_kvdone")
        for task in range(6):
            if task < 5:
                a(f"s_cmp_lg_u32 s5, {task}")
                a(f"s_cbranch_scc1 {T}_kvt{task+1}")
            kind = 'K' if task < 2 else 'V'
            r = task if task < 2 else (task - 2) >> 1
            u = 0 if task < 2 else (task & 1)
            for i in range(4):
                cin = "0" if i == 0 else vr(128, 16)
                if kind == 'K':
                    a(f"v_mfma_f32_32x32x16_bf16 {vr(128,16)}, {ar(36+4*i,4)}, {vr(8+8*i+4*r,4)}, {cin}")
                else:
                    a(f"v_mfma_f32_32x32x16_bf16 {vr(128,16)}, {vr(8+8*i+4*r,4)}, {ar(36+4*i,4)}, {cin}")
            a.nop(16)
            a(f"ds_write_b128 v7, {vr(128+8*u,4)}")
            a(f"ds_write_b128 v7, {vr(132+8*u,4)} offset:1024")
            if task < 5:
                a(f"s_branch {T}_kvdone")
                a(f"{T}_kvt{task+1}:")
        a(f"{T}_kvdone:")
        a("s_lshl_b32 s32, s3, 10")
        a(f"s_add_u32 s32, s32, {STATQ}")
        a("v_add_u32 v7, s32, v2")
        for r in range(4):
            a(f"v_add_f32 v{40+r}, v{40+r}, v{44+r}")
        a("ds_write_b128 v7, v[40:43]")
        reduce8(a, ACC, 8)
        a("s_lshl_b32 s32, s43, 3")
        a(f"s_add_u32 s32, s32, {STATQ}")
        a("v_add_u32 v7, s32, v2")
        for s in range(8):
            a(f"ds_read_b64 {vr(40+2*s,2)}, v7 offset:{s*1024}")
        a("s_waitcnt lgkmcnt(0)")
        for s in range(1, 8):
            a(f"v_add_f32 v40, v40, v{40+2*s}")
            a(f"v_add_f32 v41, v41, v{41+2*s}")
        half_sum(a, 40, 42)
        half_sum(a, 41, 42)
        a(f"v_mul_f32 v40, {f2u(1.0/512):#x}, v40")
        a(f"v_mul_f32 v41, {f2u(1.0/512):#x}, v41")
        a("v_fma_f32 v41, -v40, v40, v41")
        a("v_max_f32 v41, 0, v41")
        a(f"v_add_f32 v41, {f2u(EPS):#x}, v41")
        a("v_rsq_f32 v41, v41")
        a.nop(1)
        a("v_mul_f32 v42, v40, v41")
        a("v_sub_f32 v42, 0, v42")
        a(f"v_mul_f32 v43, {f2u(QS):#x}, v41")
        a(f"v_mul_f32 v44, {f2u(QS):#x}, v42")
        for r in range(8):
            a(f"v_accvgpr_read_b32 v{16+r}, a{52+r}")
        for r in range(8):
            a(f"v_mul_f32 v{16+r}, v44, v{16+r}")
            a(f"v_fma_f32 v{8+r}, v{8+r}, v43, v{16+r}")
        for q in range(4):
            a(f"v_cvt_pk_bf16_f32 v{24+q}, v{8+2*q}, v{9+2*q}")
        a(f"s_add_u32 s23, s42, {QN:#x}")
        a("buffer_store_dwordx4 v[24:27], v2, s[8:11], s23 offen")
        a("s_cmp_ge_u32 s5, 6")
        a(f"s_cbranch_scc1 {end}")
        a("s_lshr_b32 s32, s5, 2")
        a("s_cmp_eq_u32 s5, 1")
        a("s_cselect_b32 s32, 1, s32")
        a("s_lshl_b32 s32, s32, 1")
        a("s_cmp_lg_u32 s3, s32")
        a(f"s_cbranch_scc1 {end}")
        a(f"v_add_u32 v7, {KVS}, v2")
        for s in range(8):
            for q in range(2):
                a(f"ds_read_b128 {vr(64+8*s+4*q,4)}, v7 offset:{s*2048+q*1024}")
        a(f"s_mul_i32 s33, s45, {KVT}")
        a(f"s_add_u32 s33, s33, {KVN:#x}")
        a("s_waitcnt lgkmcnt(0)")
        for s in range(1, 8):
            for r in range(8):
                a(f"v_add_f32 v{64+r}, v{64+r}, v{64+8*s+r}")
        a("s_cmp_ge_u32 s5, 2")
        a(f"s_cbranch_scc1 {T}_finV")
        a("v_mov_b32 v45, 0")
        for r in range(8):
            a(f"v_accvgpr_read_b32 v{16+r}, a{60+r}")
        for r in range(8):
            a(f"v_mul_f32 v{16+r}, v42, v{16+r}")
            a(f"v_fma_f32 v{64+r}, v{64+r}, v41, v{16+r}")
            a(f"v_fma_f32 v45, v{64+r}, v{64+r}, v45")
        for q in range(4):
            a(f"v_cvt_pk_bf16_f32 v{28+q}, v{64+2*q}, v{65+2*q}")
        a("buffer_store_dwordx4 v[28:31], v2, s[8:11], s33 offen")
        half_sum(a, 45, 46)
        wave32_max(a, 45, 46)
        a("s_lshl_b32 s32, s45, 2")
        a(f"s_add_u32 s32, s32, {KNN:#x}")
        a("v_mov_b32 v46, 0")
        a("v_cmp_eq_u32 vcc, 0, v1")
        a("s_and_saveexec_b64 s[38:39], vcc")
        a("buffer_store_dword v45, v46, s[8:11], s32 offen")
        a(f"s_branch {end}")
        a(f"{T}_finV:")
        a("v_lshlrev_b32 v7, 2, v3")
        a(f"v_add_u32 v7, {STAT2}, v7")
        a("ds_write_b32 v7, v41")
        a("ds_write_b32 v7, v42 offset:128")
        a("s_and_b32 s32, s5, 1")
        a("s_lshl_b32 s32, s32, 6")
        a(f"s_add_u32 s32, s32, {STAT2}")
        a("v_lshlrev_b32 v7, 4, v4")
        a("v_add_u32 v7, s32, v7")
        a("v_accvgpr_read_b32 v47, a68")
        a("s_waitcnt lgkmcnt(0)")
        for q in range(2):
            a(f"ds_read_b128 {vr(16+4*q,4)}, v7 offset:{32*q}")
            a(f"ds_read_b128 {vr(24+4*q,4)}, v7 offset:{128+32*q}")
        a("s_waitcnt lgkmcnt(0)")
        for r in range(8):
            a(f"v_mul_f32 v{24+r}, v47, v{24+r}")
            a(f"v_fma_f32 v{64+r}, v{64+r}, v{16+r}, v{24+r}")
        for q in range(4):
            a(f"v_cvt_pk_bf16_f32 v{32+q}, v{64+2*q}, v{65+2*q}")
        a("v_cmp_eq_u32 s[38:39], 0, v3")
        a("v_mov_b32 v45, 0x3f803f80")
        a("v_mov_b32 v46, 0")
        a("v_cndmask_b32 v45, v46, v45, s[38:39]")
        a("v_cmp_le_u32 vcc, 16, v3")
        a("v_xor_b32 v7, 16, v3")
        a("v_lshlrev_b32 v7, 4, v7")
        for q in range(4):
            a(f"v_cndmask_b32 v{32+q}, v45, v{32+q}, vcc")
        a(f"v_mul_u32_u24 v46, {VH}, v4")
        a("v_add_u32 v7, v7, v46")
        a("s_and_b32 s32, s5, 1")
        a(f"s_mul_i32 s32, s32, {VU}")
        a("s_add_u32 s33, s33, s32")
        a("v_cmp_gt_u32 s[38:39], 2, v3")
        a("s_or_b64 vcc, vcc, s[38:39]")
        a("s_and_saveexec_b64 s[38:39], vcc")
        a("buffer_store_dwordx4 v[32:35], v7, s[8:11], s33 offen offset:1024")
    a(f"{end}:")
    a.stamp_flush(8)
    a(f"{end}x:")
    a("s_endpgm")
    a.desc(name, 160, agpr=96)
    return SCR + 8 * 2304


def gen_zero_flags(a):
    pass


def main():
    a = Asm()
    G.XF, G.QF, G.KVF = XFL[0], QFL[0], KVFL[0]
    G.FLAGS_ZERO = FLAGS
    G.gen_P(a)
    lds_qkv = G.gen_qkv(a)
    lds_f = gen_F(a, 0)
    gen_F(a, 1)
    hdr = ["; generated by gen/gen2.py -- fused MQA + FFN pipeline"]
    L = hdr.append
    L("; @launch kernel=prep_kernel grid=(218,1,1) block=(512,1,1) lds=2048")
    L(f"; @launch kernel=qkv_kernel grid=(256,1,1) block=(256,1,1) lds={lds_qkv}")
    L(f"; @launch kernel=f1_kernel grid=(256,1,1) block=(512,1,1) lds={lds_f}")
    L(f"; @launch kernel=f2_kernel grid=(256,1,1) block=(512,1,1) lds={lds_f}")
    out = "\n".join(hdr) + "\n"
    out += '.amdgcn_target "amdgcn-amd-amdhsa--gfx950"\n.text\n'
    out += "\n".join(a.L) + "\n"
    out += '.section .rodata,"a"\n' + "\n".join(a.kernels) + "\n"
    path = sys.argv[1] if len(sys.argv) > 1 else f"cdna_kernels/{NAME}.s"
    open(path, 'w').write(out)
    if PROFILE:
        import json
        json.dump(G.PROF_SLOT, open('prof_slots.json', 'w'))
    print("wrote", path, len(out), "bytes")


if __name__ == "__main__":
    main()
```

```python
import sys

NAME = "interleave_layers__grouped_kv_mqa__dense_activation_relu__prompt"

WQF = 0x000000
WOF = 0x080000
W1F = 0x100000
W2F = 0x2C0000
WKVF = 0x480000
CSQ = 0x488000
CS1 = 0x488800
CSKV = 0x48A400
KN = 0x48B000
XF = 0x500000
QF = 0x700000
OF = 0x900000
X1F = 0xB00000
HF = 0x1000000
KVF = 0x1800000
WS_USED = 0x2400000
VH = 288
VU = 2 * VH
KVT = 1024 + 2 * VU
KVF_BYTES = 64 * KVT

QS = 0.25 * 1.4426950408889634
EPS = 1e-5

import struct


def f2u(x):
    return struct.unpack('<I', struct.pack('<f', x))[0]


import os
PROFILE = os.environ.get('PROFILE', '0') == '1'
PROF = 0x2000000
PROF_SLOT = {}
FLAGS_ZERO = 0
POISON = []


class Asm:
    def __init__(self):
        self.L = []
        self.kernels = []
        self.cur = None

    def stamp(self, i):
        if PROFILE:
            self(f"s_memrealtime s[{64+2*i}:{65+2*i}]")
            self("s_waitcnt lgkmcnt(0)")

    def stamp_flush(self, n, srd=8):
        if not PROFILE:
            return
        slot = PROF_SLOT.setdefault(self.cur, len(PROF_SLOT))
        self("s_mov_b64 exec, -1")
        self.stamp(n - 1)
        self("s_lshl_b32 s62, s2, 4")
        self("s_add_u32 s62, s62, s3")
        self("s_lshl_b32 s62, s62, 6")
        self(f"s_add_u32 s62, s62, {PROF + slot*0x40000:#x}")
        self("v_mov_b32 v0, 0")
        for i in range(n):
            self(f"v_mov_b32 v1, s{64+2*i}")
            self(f"buffer_store_dword v1, v0, s[{srd}:{srd+3}], s62 offen offset:{4*i}")

    def __call__(self, s):
        for line in s.split('\n'):
            line = line.strip()
            if line:
                self.L.append(('' if line.endswith(':') else '    ') + line)

    def nop(self, n):
        while n > 0:
            k = min(n, 16)
            self(f"s_nop {k-1}")
            n -= k

    def begin(self, name):
        self.cur = name
        self.L.append(f".globl {name}")
        self.L.append(".p2align 8")
        self.L.append(f".type {name},@function")
        self.L.append(f"{name}:")

    def desc(self, name, vgpr, agpr=0, sgpr=100):
        acc = (vgpr + 3) // 4 * 4
        nfv = acc + agpr if agpr else vgpr
        self.kernels.append(f""".p2align 6
.amdhsa_kernel {name}
  .amdhsa_next_free_vgpr {nfv}
  .amdhsa_next_free_sgpr {sgpr}
  .amdhsa_accum_offset {acc}
  .amdhsa_group_segment_fixed_size 0
  .amdhsa_kernarg_size 88
  .amdhsa_user_sgpr_count 2
  .amdhsa_user_sgpr_kernarg_segment_ptr 1
  .amdhsa_system_sgpr_workgroup_id_x 1
.end_amdhsa_kernel""")

    def srd(self, d, base, size):
        self(f"s_mov_b32 s{d}, s{base}")
        self(f"s_mov_b32 s{d+1}, s{base+1}")
        self(f"s_mov_b32 s{d+2}, {size:#x}")
        self(f"s_mov_b32 s{d+3}, 0x00020000")


def vr(a, n):
    return f"v[{a}:{a+n-1}]"


def ar(a, n):
    return f"a[{a}:{a+n-1}]"


def half_sum(a, x, t, op="v_add_f32"):
    a(f"v_mov_b32 v{t}, v{x}")
    a.nop(2)
    a(f"v_permlane32_swap_b32 v{x}, v{t}")
    a.nop(1)
    a(f"{op} v{x}, v{x}, v{t}")


def wave32_max(a, x, t):
    for off in (0x041F, 0x081F, 0x101F, 0x201F, 0x401F):
        a(f"ds_swizzle_b32 v{t}, v{x} offset:{off:#x}")
        a("s_waitcnt lgkmcnt(0)")
        a(f"v_max_f32 v{x}, v{x}, v{t}")


def gen_P(a):
    name = "prep_kernel"
    a.begin(name)
    a(f"s_cmp_ge_u32 s2, {218 if FLAGS_ZERO else 217}")
    a("s_cbranch_scc1 P_end")
    a("s_load_dwordx16 s[16:31], s[0:1], 0")
    a("s_load_dwordx2 s[32:33], s[0:1], 80")
    a("v_and_b32 v1, 63, v0")
    a("v_lshrrev_b32 v2, 6, v0")
    a("v_and_b32 v3, 31, v1")
    a("v_readfirstlane_b32 s3, v2")
    a("v_lshrrev_b32 v4, 5, v1")
    a("v_lshlrev_b32 v6, 4, v1")
    a("s_waitcnt lgkmcnt(0)")
    a.srd(36, 32, WS_USED)
    if FLAGS_ZERO:
        a("s_cmp_lg_u32 s2, 217")
        a("s_cbranch_scc1 P_nz")
        a("v_lshlrev_b32 v5, 4, v0")
        for r in range(4):
            a(f"v_mov_b32 v{16+r}, 0")
        a(f"s_mov_b32 s53, {FLAGS_ZERO:#x}")
        a("buffer_store_dwordx4 v[16:19], v5, s[36:39], s53 offen")
        a("s_branch P_end")
        a("P_nz:")
    a("s_cmp_ge_u32 s2, 153")
    a("s_cbranch_scc1 P_x")
    a("s_cmp_eq_u32 s2, 152")
    a("s_cbranch_scc1 P_kv")
    a("s_mov_b32 s46, 0")
    a("s_mov_b32 s48, 32")
    a("s_cmp_ge_u32 s2, 88")
    a("s_cbranch_scc1 P_w2")
    a("s_cmp_ge_u32 s2, 32")
    a("s_cbranch_scc1 P_w1")
    a("s_cmp_ge_u32 s2, 16")
    a("s_cbranch_scc1 P_wo")
    a.srd(40, 18, 512 * 512 * 2)
    a("s_mov_b32 s44, 1024")
    a("s_mov_b32 s45, s2")
    a("s_lshl_b32 s47, s45, 15")
    a(f"s_add_u32 s47, s47, {WQF:#x}")
    a("s_lshl_b32 s49, s45, 7")
    a(f"s_add_u32 s49, s49, {CSQ:#x}")
    a("s_branch P_wgo")
    a("P_wo:")
    a.srd(40, 24, 512 * 512 * 2)
    a("s_mov_b32 s44, 1024")
    a("s_sub_u32 s45, s2, 16")
    a("s_lshl_b32 s47, s45, 15")
    a(f"s_add_u32 s47, s47, {WOF:#x}")
    a("s_mov_b32 s49, 0")
    a("s_branch P_wgo")
    a("P_w1:")
    a.srd(40, 28, 512 * 1792 * 2)
    a("s_mov_b32 s44, 3584")
    a("s_sub_u32 s45, s2, 32")
    a("s_lshl_b32 s47, s45, 15")
    a(f"s_add_u32 s47, s47, {W1F:#x}")
    a("s_lshl_b32 s49, s45, 7")
    a(f"s_add_u32 s49, s49, {CS1:#x}")
    a("s_branch P_wgo")
    a("P_w2:")
    a.srd(40, 30, 512 * 1792 * 2)
    a("s_mov_b32 s44, 1024")
    a("s_sub_u32 s45, s2, 88")
    a("s_and_b32 s46, s45, 3")
    a("s_mul_i32 s46, s46, 28")
    a("s_lshr_b32 s45, s45, 2")
    a("s_mul_i32 s47, s45, 112")
    a("s_add_u32 s47, s47, s46")
    a("s_lshl_b32 s47, s47, 10")
    a(f"s_add_u32 s47, s47, {W2F:#x}")
    a("s_mov_b32 s48, 28")
    a("s_mov_b32 s49, 0")
    a("P_wgo:")
    a("s_lshl_b32 s50, s3, 2")
    a("s_cmp_ge_u32 s50, s48")
    a("s_cbranch_scc1 P_end")
    a("s_lshl_b32 s51, s44, 2")
    a("v_mul_lo_u32 v5, v4, s51")
    a("v_lshl_add_u32 v5, v3, 1, v5")
    a("s_add_u32 s52, s46, s50")
    a("s_lshl_b32 s52, s52, 4")
    a("s_mul_i32 s52, s52, s44")
    a("s_lshl_b32 s53, s45, 6")
    a("s_add_u32 s52, s52, s53")
    a("s_mul_i32 s54, s44, 5")
    for i in range(4):
        for j in range(8):
            a(f"buffer_load_ushort v{16+8*i+j}, v5, s[40:43], s52 offen")
            a(f"s_add_u32 s52, s52, {'s54' if j in (3, 7) else 's44'}")
    a("P_pack:")
    a("s_lshl_b32 s53, s50, 10")
    a("s_add_u32 s53, s53, s47")
    a("v_mov_b32 v7, 0")
    a("s_mov_b32 s55, 0x3f803f80")
    for i in range(4):
        a(f"s_waitcnt vmcnt({8*(3-i) + i})")
        for q in range(4):
            a(f"v_lshl_or_b32 v{48+4*i+q}, v{16+8*i+2*q+1}, 16, v{16+8*i+2*q}")
        a(f"buffer_store_dwordx4 {vr(48+4*i,4)}, v6, s[36:39], s53 offen offset:{1024*i}")
        for q in range(4):
            a(f"v_dot2_f32_bf16 v7, v{48+4*i+q}, s55, v7")
    a("s_cmp_eq_u32 s49, 0")
    a("s_cbranch_scc1 P_end")
    a("v_lshlrev_b32 v8, 2, v0")
    a("ds_write_b32 v8, v7")
    a("s_waitcnt lgkmcnt(0)")
    a("s_barrier")
    a("s_cmp_lg_u32 s3, 0")
    a("s_cbranch_scc1 P_end")
    a("v_lshlrev_b32 v8, 2, v1")
    for w in range(8):
        a(f"ds_read_b32 v{16+w}, v8 offset:{256*w}")
    a("s_waitcnt lgkmcnt(0)")
    for w in range(1, 8):
        a(f"v_add_f32 v16, v16, v{16+w}")
    half_sum(a, 16, 17)
    a("v_cmp_gt_u32 vcc, 32, v1")
    a("s_and_saveexec_b64 s[56:57], vcc")
    a("buffer_store_dword v16, v8, s[36:39], s49 offen")
    a("s_branch P_end")
    a("P_kv:")
    a.srd(40, 20, 512 * 16 * 2)
    a.srd(60, 22, 512 * 16 * 2)
    a("s_lshl_b32 s50, s3, 2")
    a("v_and_b32 v5, 15, v3")
    a("v_lshlrev_b32 v5, 1, v5")
    a("v_lshl_add_u32 v5, v4, 7, v5")
    a("s_lshl_b32 s52, s50, 9")
    a("v_cmp_gt_u32 vcc, 16, v3")
    a("s_and_saveexec_b64 s[56:57], vcc")
    for i in range(4):
        for j in range(8):
            row = 16 * i + (j & 3) + 8 * (j >> 2)
            a(f"buffer_load_ushort v{16+8*i+j}, v5, s[40:43], s52 offen offset:{row*32}")
    a("s_andn2_b64 exec, s[56:57], exec")
    for i in range(4):
        for j in range(8):
            row = 16 * i + (j & 3) + 8 * (j >> 2)
            a(f"buffer_load_ushort v{16+8*i+j}, v5, s[60:63], s52 offen offset:{row*32}")
    a("s_mov_b64 exec, s[56:57]")
    a("s_waitcnt vmcnt(0)")
    a(f"s_mov_b32 s47, {WKVF:#x}")
    a(f"s_mov_b32 s49, {CSKV:#x}")
    a("s_branch P_pack")
    a("P_x:")
    a.srd(40, 16, 2048 * 512 * 2)
    a("s_sub_u32 s45, s2, 153")
    a("v_lshlrev_b32 v5, 10, v3")
    a("v_lshl_add_u32 v5, v4, 3, v5")
    a("s_lshl_b32 s52, s45, 15")
    a("s_lshl_b32 s50, s3, 7")
    a("s_add_u32 s52, s52, s50")
    for i in range(4):
        a(f"buffer_load_dwordx2 {vr(16+4*i,2)}, v5, s[40:43], s52 offen offset:{32*i}")
        a(f"buffer_load_dwordx2 {vr(18+4*i,2)}, v5, s[40:43], s52 offen offset:{32*i+16}")
    a("s_lshl_b32 s53, s45, 15")
    a("s_lshl_b32 s50, s3, 12")
    a("s_add_u32 s53, s53, s50")
    a(f"s_add_u32 s53, s53, {XF:#x}")
    for i in range(4):
        a(f"s_waitcnt vmcnt({2*(3-i)+i})")
        a(f"buffer_store_dwordx4 {vr(16+4*i,4)}, v6, s[36:39], s53 offen offset:{1024*i}")
    a("P_end:")
    a("s_endpgm")
    a.desc(name, 64)


def prologue(a, endlabel, out_ptr=False, out_off=64):
    a("s_cmp_ge_u32 s2, 256")
    a(f"s_cbranch_scc1 {endlabel}x")
    a.stamp(0)
    a("s_load_dwordx2 s[6:7], s[0:1], 80")
    if out_ptr:
        a(f"s_load_dwordx2 s[12:13], s[0:1], {out_off}")
    a("v_and_b32 v1, 63, v0")
    a("v_lshrrev_b32 v2, 6, v0")
    a("v_and_b32 v3, 31, v1")
    a("v_readfirstlane_b32 s3, v2")
    a("v_lshrrev_b32 v4, 5, v1")
    a("v_lshlrev_b32 v2, 4, v1")
    a("s_and_b32 s4, s2, 31")
    a("s_lshr_b32 s5, s2, 5")
    a("s_waitcnt lgkmcnt(0)")
    a.srd(8, 6, WS_USED)
    a.stamp(1)


def frag_loads(a, dst, sbase, idx, stmp):
    hi, lo = idx // 4, idx % 4
    if hi == 0:
        so = f"s{sbase}"
    else:
        a(f"s_add_u32 s{stmp}, s{sbase}, {hi*4096}")
        so = f"s{stmp}"
    a(f"buffer_load_dwordx4 {dst}, v2, s[8:11], {so} offen offset:{lo*1024}")


def gen_gemm_res(a, name, WFo, AFo, KS, RESo, OUTo, out_rowmajor):
    NW = 4
    ksw = KS // NW
    RING = min(ksw, 15)
    a.begin(name)
    end = f"{name}_end"
    prologue(a, end, out_ptr=out_rowmajor)
    if out_rowmajor:
        a.srd(16, 12, 2048 * 512 * 2)
    a(f"s_mul_i32 s24, s3, {ksw}")
    a("s_lshl_b32 s25, s5, 1")
    a(f"s_mul_i32 s20, s25, {KS}")
    a("s_add_u32 s20, s20, s24")
    a("s_lshl_b32 s20, s20, 10")
    a(f"s_add_u32 s20, s20, {WFo:#x}")
    a(f"s_add_u32 s21, s20, {KS*1024}")
    a("s_lshl_b32 s25, s4, 1")
    a(f"s_mul_i32 s22, s25, {KS}")
    a("s_add_u32 s22, s22, s24")
    a("s_lshl_b32 s22, s22, 10")
    a(f"s_add_u32 s22, s22, {AFo:#x}")
    a(f"s_add_u32 s23, s22, {KS*1024}")
    a("s_and_b32 s26, s3, 1")
    a("s_lshr_b32 s27, s3, 1")
    a("s_lshl_b32 s28, s4, 1")
    a("s_add_u32 s28, s28, s26")
    a("s_lshl_b32 s29, s5, 1")
    a("s_add_u32 s29, s29, s27")
    a("s_lshl_b32 s30, s28, 5")
    a("s_lshl_b32 s31, s29, 1")
    a("s_add_u32 s30, s30, s31")
    a("s_lshl_b32 s30, s30, 10")
    a(f"s_add_u32 s31, s30, {RESo:#x}")
    a("buffer_load_dwordx4 v[8:11], v2, s[8:11], s31 offen")
    a("buffer_load_dwordx4 v[12:15], v2, s[8:11], s31 offen offset:1024")
    R0 = 16

    def issue(i):
        b = R0 + 16 * (i % RING)
        frag_loads(a, vr(b, 4), 20, i, 32)
        frag_loads(a, vr(b + 4, 4), 21, i, 33)
        frag_loads(a, vr(b + 8, 4), 22, i, 34)
        frag_loads(a, vr(b + 12, 4), 23, i, 35)

    for i in range(RING):
        issue(i)
    a.stamp(2)
    for i in range(ksw):
        outstanding = min(ksw, i + RING) - i - 1
        a(f"s_waitcnt vmcnt({4*outstanding})")
        if i == 0:
            a.stamp(3)
        b = R0 + 16 * (i % RING)
        for c in range(2):
            for r in range(2):
                t = 2 * c + r
                cin = "0" if i == 0 else ar(16 * t, 16)
                a(f"v_mfma_f32_32x32x16_bf16 {ar(16*t,16)}, {vr(b+4*c,4)}, {vr(b+8+4*r,4)}, {cin}")
        if i + RING < ksw:
            issue(i + RING)
    a.stamp(4)
    a("s_lshl_b32 s32, s3, 12")
    a("v_add_u32 v5, s32, v2")
    a("s_lshl_b32 s32, s3, 14")
    a("v_add_u32 v6, s32, v2")
    a.nop(16)
    for t in range(4):
        for q in range(4):
            a(f"ds_write_b128 v5, {ar(16*t+4*q,4)} offset:{t*16384+q*1024}")
    a("s_waitcnt lgkmcnt(0)")
    a.stamp(5)
    a("s_barrier")
    a.stamp(6)
    for s in range(4):
        for q in range(4):
            a(f"ds_read_b128 {vr(R0+16*s+4*q,4)}, v6 offset:{s*4096+q*1024}")
    for q in range(8):
        a(f"v_lshlrev_b32 v{80+2*q}, 16, v{8+q}")
        a(f"v_and_b32 v{81+2*q}, 0xffff0000, v{8+q}")
    for s in range(4):
        a(f"s_waitcnt lgkmcnt({4*(3-s)})")
        for r in range(16):
            a(f"v_add_f32 v{80+r}, v{80+r}, v{R0+16*s+r}")
    for q in range(8):
        a(f"v_cvt_pk_bf16_f32 v{96+q}, v{80+2*q}, v{81+2*q}")
    if not out_rowmajor:
        a(f"s_add_u32 s31, s30, {OUTo:#x}")
        a("buffer_store_dwordx4 v[96:99], v2, s[8:11], s31 offen")
        a("buffer_store_dwordx4 v[100:103], v2, s[8:11], s31 offen offset:1024")
    else:
        a.nop(2)
        a("v_permlane32_swap_b32 v96, v98")
        a("v_permlane32_swap_b32 v97, v99")
        a("v_permlane32_swap_b32 v100, v102")
        a("v_permlane32_swap_b32 v101, v103")
        a("v_lshlrev_b32 v5, 10, v3")
        a("v_lshl_add_u32 v5, v4, 4, v5")
        a("s_lshl_b32 s31, s28, 15")
        a("s_lshl_b32 s32, s29, 6")
        a("s_add_u32 s31, s31, s32")
        a("buffer_store_dwordx4 v[96:99], v5, s[16:19], s31 offen")
        a("buffer_store_dwordx4 v[100:103], v5, s[16:19], s31 offen offset:32")
    a(f"{end}:")
    a.stamp_flush(8)
    a(f"{end}x:")
    a("s_endpgm")
    a.desc(name, max(R0 + 16 * RING, 104), agpr=64)


def gen_qkv(a):
    name = "qkv_kernel"
    KS = 32
    ksw = 8
    a.begin(name)
    end = f"{name}_end"
    prologue(a, end)
    a(f"s_mul_i32 s24, s3, {ksw}")
    a("s_lshl_b32 s25, s5, 1")
    a(f"s_mul_i32 s20, s25, {KS}")
    a("s_add_u32 s20, s20, s24")
    a("s_lshl_b32 s20, s20, 10")
    a(f"s_add_u32 s20, s20, {WQF:#x}")
    a(f"s_add_u32 s21, s20, {KS*1024}")
    a("s_lshl_b32 s25, s4, 1")
    a(f"s_mul_i32 s22, s25, {KS}")
    a("s_add_u32 s22, s22, s24")
    a("s_lshl_b32 s22, s22, 10")
    a(f"s_add_u32 s22, s22, {XF:#x}")
    a(f"s_add_u32 s23, s22, {KS*1024}")
    a("s_lshl_b32 s37, s24, 10")
    a(f"s_add_u32 s37, s37, {WKVF:#x}")
    a("s_and_b32 s26, s3, 1")
    a("s_lshr_b32 s27, s3, 1")
    a("s_lshl_b32 s28, s4, 1")
    a("s_add_u32 s28, s28, s26")
    a("s_lshl_b32 s29, s5, 1")
    a("s_add_u32 s29, s29, s27")
    a("v_lshlrev_b32 v5, 4, v4")
    a("s_lshl_b32 s31, s29, 7")
    a(f"s_add_u32 s31, s31, {CSQ:#x}")
    for q in range(4):
        a(f"buffer_load_dwordx4 {vr(176+4*q,4)}, v5, s[8:11], s31 offen offset:{32*q}")
    a(f"s_mov_b32 s31, {CSKV:#x}")
    for q in range(2):
        a(f"buffer_load_dwordx4 {vr(192+4*q,4)}, v5, s[8:11], s31 offen offset:{32*q}")
    a("v_lshlrev_b32 v6, 2, v3")
    a("buffer_load_dword v200, v6, s[8:11], s31 offen")
    R0 = 16
    a("s_mov_b32 s36, 0x3f803f80")
    for r in range(4):
        a(f"v_mov_b32 v{8+r}, 0")
    a("s_cmp_eq_u32 s5, 0")
    a("s_cbranch_scc1 QKV_mainK")
    a("s_cmp_eq_u32 s5, 1")
    a("s_cbranch_scc1 QKV_mainV")

    def main(kind):
        nl = 5 if kind else 4
        for i in range(ksw):
            b = R0 + 20 * i
            frag_loads(a, vr(b, 4), 20, i, 32)
            frag_loads(a, vr(b + 4, 4), 21, i, 33)
            frag_loads(a, vr(b + 8, 4), 22, i, 34)
            frag_loads(a, vr(b + 12, 4), 23, i, 35)
            if kind:
                frag_loads(a, vr(b + 16, 4), 37, i, 38)
        a.stamp(2)
        npo = 0
        if POISON:
            for r in range(4):
                a(f"v_mov_b32 v{12+r}, -1")
            a("s_lshl_b32 s39, s2, 2")
            a("s_add_u32 s39, s39, s3")
            for (base, n) in POISON:
                a(f"s_mul_i32 s38, s39, {n*1024}")
                a(f"s_add_u32 s38, s38, {base:#x}")
                for i in range(n):
                    if i == 4:
                        a("s_add_u32 s38, s38, 4096")
                    a(f"buffer_store_dwordx4 v[12:15], v2, s[8:11], s38 offen offset:{1024*(i%4)}")
                    npo += 1
        for i in range(ksw):
            a(f"s_waitcnt vmcnt({nl*(ksw-1-i)+npo})")
            if i == 0:
                a.stamp(3)
            b = R0 + 20 * i
            for c in range(2):
                for r in range(2):
                    t = 2 * c + r
                    cin = "0" if i == 0 else ar(16 * t, 16)
                    a(f"v_mfma_f32_32x32x16_bf16 {ar(16*t,16)}, {vr(b+4*c,4)}, {vr(b+8+4*r,4)}, {cin}")
                    for q in range(4):
                        x = b + 8 + 4 * r + q
                        if c == 0:
                            a(f"v_dot2_f32_bf16 v{8+2*r}, v{x}, s36, v{8+2*r}")
                        else:
                            a(f"v_dot2_f32_bf16 v{9+2*r}, v{x}, v{x}, v{9+2*r}")
            if kind:
                for r in range(2):
                    t = 4 + r
                    cin = "0" if i == 0 else ar(16 * t, 16)
                    if kind == 'K':
                        a(f"v_mfma_f32_32x32x16_bf16 {ar(16*t,16)}, {vr(b+16,4)}, {vr(b+8+4*r,4)}, {cin}")
                    else:
                        a(f"v_mfma_f32_32x32x16_bf16 {ar(16*t,16)}, {vr(b+8+4*r,4)}, {vr(b+16,4)}, {cin}")
        a("s_lshl_b32 s32, s3, 12")
        a("v_add_u32 v5, s32, v2")
        a("v_add_u32 v6, 0x10000, v5")
        a.nop(16)
        if kind:
            for t in (4, 5):
                for q in range(2 if kind == 'K' else 4):
                    a(f"ds_write_b128 v6, {ar(16*t+4*q,4)} offset:{(t-4)*16384+q*1024}")

    main(None)
    a("s_branch QKV_red")
    a("QKV_mainK:")
    main('K')
    a("s_branch QKV_red")
    a("QKV_mainV:")
    main('V')
    a("QKV_red:")
    a.stamp(4)
    STAT = 6 * 16384
    STAT2 = STAT + 4096
    for t in range(4):
        for q in range(4):
            a(f"ds_write_b128 v5, {ar(16*t+4*q,4)} offset:{t*16384+q*1024}")
    a("s_lshl_b32 s32, s3, 10")
    a(f"s_add_u32 s32, s32, {STAT}")
    a("v_add_u32 v7, s32, v2")
    a("ds_write_b128 v7, v[8:11]")
    a("s_lshl_b32 s32, s3, 14")
    a("v_add_u32 v6, s32, v2")
    a("s_lshl_b32 s32, s26, 3")
    a(f"s_add_u32 s32, s32, {STAT}")
    a("v_add_u32 v7, s32, v2")
    a("s_waitcnt lgkmcnt(0)")
    a.stamp(5)
    a("s_barrier")
    a.stamp(6)
    for s in range(4):
        a(f"ds_read_b64 {vr(8+2*s,2)}, v7 offset:{s*1024}")
    for s in range(4):
        for q in range(4):
            if s == 2 and q == 0:
                a("s_waitcnt lgkmcnt(8)")
            a(f"ds_read_b128 {vr(R0+16*s+4*q,4)}, v6 offset:{s*4096+q*1024}")
    for s in range(1, 4):
        a(f"v_add_f32 v8, v8, v{8+2*s}")
        a(f"v_add_f32 v9, v9, v{9+2*s}")
    half_sum(a, 8, 10)
    half_sum(a, 9, 10)
    a(f"v_mul_f32 v8, {f2u(1.0/512):#x}, v8")
    a(f"v_mul_f32 v9, {f2u(1.0/512):#x}, v9")
    a("v_fma_f32 v9, -v8, v8, v9")
    a("v_max_f32 v9, 0, v9")
    a(f"v_add_f32 v9, {f2u(EPS):#x}, v9")
    a("v_rsq_f32 v9, v9")
    a.nop(1)
    a("v_mul_f32 v10, v8, v9")
    a("v_sub_f32 v10, 0, v10")
    a(f"v_mul_f32 v11, {f2u(QS):#x}, v9")
    a(f"v_mul_f32 v12, {f2u(QS):#x}, v10")
    a("s_waitcnt vmcnt(0)")
    for s in range(1, 4):
        a(f"s_waitcnt lgkmcnt({4*(3-s)})")
        for r in range(16):
            a(f"v_add_f32 v{R0+r}, v{R0+r}, v{R0+16*s+r}")
    for r in range(16):
        a(f"v_mul_f32 v{176+r}, v12, v{176+r}")
        a(f"v_fma_f32 v{R0+r}, v{R0+r}, v11, v{176+r}")
    for q in range(8):
        a(f"v_cvt_pk_bf16_f32 v{96+q}, v{R0+2*q}, v{R0+2*q+1}")
    a("s_lshl_b32 s30, s28, 5")
    a("s_lshl_b32 s31, s29, 1")
    a("s_add_u32 s30, s30, s31")
    a("s_lshl_b32 s30, s30, 10")
    a(f"s_add_u32 s31, s30, {QF:#x}")
    a("buffer_store_dwordx4 v[96:99], v2, s[8:11], s31 offen")
    a("buffer_store_dwordx4 v[100:103], v2, s[8:11], s31 offen offset:1024")
    a("s_cmp_ge_u32 s3, 2")
    a(f"s_cbranch_scc1 {end}")
    a("s_cmp_ge_u32 s5, 2")
    a(f"s_cbranch_scc1 {end}")
    a("s_lshl_b32 s32, s3, 14")
    a(f"s_add_u32 s32, s32, {4*16384}")
    a("v_add_u32 v6, s32, v2")
    a(f"s_mul_i32 s33, s28, {KVT}")
    a(f"s_add_u32 s33, s33, {KVF:#x}")
    a("s_cmp_eq_u32 s5, 1")
    a("s_cbranch_scc1 QKV_finV")
    for s in range(4):
        for q in range(2):
            a(f"ds_read_b128 {vr(R0+16*s+4*q,4)}, v6 offset:{s*4096+q*1024}")
    a("s_waitcnt lgkmcnt(0)")
    for s in range(1, 4):
        for r in range(8):
            a(f"v_add_f32 v{R0+r}, v{R0+r}, v{R0+16*s+r}")
    a("v_mov_b32 v13, 0")
    for r in range(8):
        a(f"v_mul_f32 v{192+r}, v10, v{192+r}")
        a(f"v_fma_f32 v{R0+r}, v{R0+r}, v9, v{192+r}")
        a(f"v_fma_f32 v13, v{R0+r}, v{R0+r}, v13")
    for q in range(4):
        a(f"v_cvt_pk_bf16_f32 v{104+q}, v{R0+2*q}, v{R0+2*q+1}")
    a("buffer_store_dwordx4 v[104:107], v2, s[8:11], s33 offen")
    half_sum(a, 13, 14)
    wave32_max(a, 13, 14)
    a("s_lshl_b32 s32, s28, 2")
    a(f"s_add_u32 s32, s32, {KN:#x}")
    a("v_mov_b32 v14, 0")
    a("v_cmp_eq_u32 vcc, 0, v1")
    a("s_and_saveexec_b64 s[40:41], vcc")
    a("buffer_store_dword v13, v14, s[8:11], s32 offen")
    a(f"s_branch {end}")
    a("QKV_finV:")
    for s in range(4):
        for q in range(4):
            a(f"ds_read_b128 {vr(R0+16*s+4*q,4)}, v6 offset:{s*4096+q*1024}")
    a("s_lshl_b32 s32, s3, 8")
    a(f"s_add_u32 s32, s32, {STAT2}")
    a("v_lshlrev_b32 v7, 2, v3")
    a("v_add_u32 v7, s32, v7")
    a("ds_write_b32 v7, v9")
    a("ds_write_b32 v7, v10 offset:128")
    a("v_lshlrev_b32 v7, 4, v4")
    a("v_add_u32 v7, s32, v7")
    a("s_waitcnt lgkmcnt(0)")
    for q in range(4):
        a(f"ds_read_b128 {vr(112+4*q,4)}, v7 offset:{32*q}")
        a(f"ds_read_b128 {vr(128+4*q,4)}, v7 offset:{128+32*q}")
    for s in range(1, 4):
        for r in range(16):
            a(f"v_add_f32 v{R0+r}, v{R0+r}, v{R0+16*s+r}")
    a("s_waitcnt lgkmcnt(0)")
    for r in range(16):
        a(f"v_mul_f32 v{128+r}, v200, v{128+r}")
        a(f"v_fma_f32 v{R0+r}, v{R0+r}, v{112+r}, v{128+r}")
    for q in range(8):
        a(f"v_cvt_pk_bf16_f32 v{104+q}, v{R0+2*q}, v{R0+2*q+1}")
    a("v_cmp_eq_u32 s[40:41], 0, v3")
    a("v_mov_b32 v13, 0x3f803f80")
    a("v_mov_b32 v14, 0")
    a("v_cndmask_b32 v13, v14, v13, s[40:41]")
    a("v_cmp_le_u32 vcc, 16, v3")
    a("v_xor_b32 v7, 16, v3")
    a("v_lshlrev_b32 v7, 4, v7")
    for q in range(8):
        a(f"v_cndmask_b32 v{104+q}, v13, v{104+q}, vcc")
    a(f"v_mul_u32_u24 v14, {VH}, v4")
    a("v_add_u32 v7, v7, v14")
    a("v_cmp_gt_u32 s[40:41], 2, v3")
    a("s_or_b64 vcc, vcc, s[40:41]")
    a("s_and_saveexec_b64 s[40:41], vcc")
    a("buffer_store_dwordx4 v[104:107], v7, s[8:11], s33 offen offset:1024")
    a(f"buffer_store_dwordx4 v[108:111], v7, s[8:11], s33 offen offset:{1024+VU}")
    a(f"{end}:")
    a.stamp_flush(8)
    a(f"{end}x:")
    a("s_endpgm")
    a.desc(name, 204, agpr=96)
    return STAT2 + 1024


PRIO_IT = int(os.environ.get('PRIO_IT', '7'))


def gen_attn(a):
    name = "attn_kernel"
    a.begin(name)
    end = f"{name}_end"
    prologue(a, end)
    SCR = KVF_BYTES
    Q = (8, 12)
    C = 16
    O = (32, 48)
    S = (64, 80)
    P = (96, 104)
    E = 112
    KB = (128, 132)
    VB = (136, 144)
    a("s_and_b32 s20, s3, 3")
    a("s_lshr_b32 s30, s3, 2")
    a("s_and_b32 s21, s20, 1")
    a("s_lshl_b32 s21, s21, 1")
    a("s_lshl_b32 s22, s5, 2")
    a("s_add_u32 s21, s21, s22")
    a("s_lshr_b32 s22, s20, 1")
    a("s_lshl_b32 s23, s4, 1")
    a("s_add_u32 s22, s22, s23")
    a("s_lshl_b32 s22, s22, 5")
    a("s_add_u32 s22, s22, s21")
    a("s_add_u32 s23, s22, s30")
    a("s_xor_b32 s24, s30, 1")
    a("s_add_u32 s24, s22, s24")
    a("s_lshl_b32 s22, s23, 10")
    a("s_lshl_b32 s24, s24, 10")
    a(f"s_add_u32 s23, s22, {QF:#x}")
    a(f"s_add_u32 s24, s24, {QF:#x}")
    a(f"buffer_load_dwordx4 {vr(Q[0],4)}, v2, s[8:11], s23 offen")
    a(f"buffer_load_dwordx4 {vr(Q[1],4)}, v2, s[8:11], s24 offen")
    a("v_lshlrev_b32 v5, 2, v1")
    a(f"s_mov_b32 s23, {KN:#x}")
    a("buffer_load_dword v7, v5, s[8:11], s23 offen")
    a("s_lshr_b32 s24, s3, 1")
    a("s_lshl_b32 s24, s24, 10")
    a("s_and_b32 s25, s3, 1")
    a(f"s_mul_i32 s25, s25, {32*KVT}")
    a("s_add_u32 s24, s24, s25")
    a(f"s_add_u32 s25, s24, {KVF:#x}")
    def dma():
        a("s_mov_b32 m0, s34")
        a("s_add_u32 s34, s34, 4096")
        a("buffer_load_dwordx4 v2, s[8:11], s35 offen lds")
        a("s_add_u32 s35, s35, 4096")
    a("s_mov_b32 s34, s24")
    a("s_mov_b32 s35, s25")
    for i in range(6):
        dma()
    a.stamp(2)
    a("v_min_u32 v6, 17, v3")
    a("v_mov_b32 v5, 16")
    a("v_cmp_eq_u32 vcc, 20, v3")
    a(f"s_mul_i32 s25, s30, {32*KVT}")
    a.nop(1)
    a("v_cndmask_b32 v6, v6, v5, vcc")
    a("v_lshlrev_b32 v6, 4, v6")
    a(f"v_mul_u32_u24 v5, {VH}, v4")
    a("v_add3_u32 v155, v6, v5, 64")
    a("v_add_u32 v155, 960, v155")
    a("v_add_u32 v152, s25, v2")
    a("v_add_u32 v153, s25, v155")
    a("s_waitcnt vmcnt(6)")
    a("v_mov_b32 v5, 0")
    a("v_mov_b32 v6, 0")
    for q in range(4):
        a(f"v_dot2_f32_bf16 v5, v{Q[0]+q}, v{Q[0]+q}, v5")
        a(f"v_dot2_f32_bf16 v6, v{Q[1]+q}, v{Q[1]+q}, v6")
    a.nop(3)
    half_sum(a, 5, 146)
    half_sum(a, 6, 146)
    a("v_max_f32 v5, v5, v6")
    for off in (0x041F, 0x081F, 0x101F, 0x201F, 0x401F):
        a(f"ds_swizzle_b32 v6, v5 offset:{off:#x}")
        a(f"ds_swizzle_b32 v154, v7 offset:{off:#x}")
        a("s_waitcnt lgkmcnt(0)")
        a("v_max_f32 v5, v5, v6")
        a("v_max_f32 v7, v7, v154")
    half_sum(a, 7, 146, op="v_max_f32")
    a("v_mul_f32 v6, v5, v7")
    a("v_sqrt_f32 v6, v6")
    a.nop(1)
    a(f"v_mul_f32 v6, {f2u(-1.02):#x}, v6")
    for r in range(16):
        a(f"v_mov_b32 v{C+r}, v6")
    for r in range(16):
        a(f"v_mov_b32 v{O[0]+r}, 0")
        a(f"v_mov_b32 v{O[1]+r}, 0")
    for r in range(8):
        a(f"v_mov_b32 v{P[1]+r}, 0")
        a(f"v_mov_b32 v{VB[1]+r}, 0")
    for r in range(16):
        a(f"v_mov_b32 v{E+r}, 0")
    a.stamp(3)
    a("s_waitcnt vmcnt(0)")
    a.stamp(4)
    a("s_barrier")
    a.stamp(5)
    if PROFILE:
        a("s_memtime s[78:79]")
        a("s_waitcnt lgkmcnt(0)")
    a("v_mov_b32 v156, v152")
    a("v_mov_b32 v157, v153")
    a(f"ds_read_b128 {vr(KB[0],4)}, v156")
    a(f"ds_read_b128 {vr(KB[1],4)}, v156 offset:{KVT}")
    a(f"ds_read_b128 {vr(VB[0],4)}, v157")
    a(f"ds_read_b128 {vr(VB[0]+4,4)}, v157 offset:{VU}")
    a("s_cmp_lt_u32 s3, 4")
    a("s_cbranch_scc1 A_noprio")
    if PRIO_IT > 0:
        a("s_setprio 1")
    a("A_noprio:")
    a("s_waitcnt lgkmcnt(3)")
    a(f"v_mfma_f32_32x32x16_bf16 {vr(S[0],16)}, {vr(KB[0],4)}, {vr(Q[0],4)}, {vr(C,16)}")
    a.nop(10)
    UN = 4
    PV1 = int(os.environ.get('PV1', '3'))
    PV2 = int(os.environ.get('PV2', '6'))
    DLY = int(os.environ.get('DLY', '2'))
    QKP = int(os.environ.get('QKP', '0'))
    NE = 16

    def body(ndma):
        for t in range(UN):
            for x in range(2):
                y = 1 - x
                ty = t if x == 0 else t + 1
                tv = t - 1 if x == 0 else t
                for i in range(8):
                    if i == QKP:
                        if x == 1:
                            a("s_waitcnt lgkmcnt(0)")
                        a(f"v_mfma_f32_32x32x16_bf16 {vr(S[y],16)}, {vr(KB[ty%2],4)}, {vr(Q[y],4)}, {vr(C,16)}")
                        if x == 1:
                            a(f"ds_read_b128 {vr(KB[t%2],4)}, v156 offset:{(t+2)*KVT}")
                            a(f"ds_read_b128 {vr(VB[(t+1)%2],4)}, v157 offset:{(t+1)*KVT}")
                            a(f"ds_read_b128 {vr(VB[(t+1)%2]+4,4)}, v157 offset:{(t+1)*KVT+VU}")
                    e = E + (2 * i) % NE
                    a(f"v_exp_f32 v{e}, v{S[x]+2*i}")
                    a(f"v_exp_f32 v{e+1}, v{S[x]+2*i+1}")
                    j = i - DLY
                    if j >= 0:
                        ej = E + (2 * j) % NE
                        a(f"v_cvt_pk_bf16_f32 v{P[x]+j}, v{ej}, v{ej+1}")
                    else:
                        ej = E + (2 * (j + 8)) % NE
                        a(f"v_cvt_pk_bf16_f32 v{P[y]+j+8}, v{ej}, v{ej+1}")
                    if i == PV1:
                        a(f"v_mfma_f32_32x32x16_bf16 {vr(O[y],16)}, {vr(VB[tv%2],4)}, {vr(P[y],4)}, {vr(O[y],16)}")
                    if i == PV2:
                        a(f"v_mfma_f32_32x32x16_bf16 {vr(O[y],16)}, {vr(VB[tv%2]+4,4)}, {vr(P[y]+4,4)}, {vr(O[y],16)}")
                    if i in (1, 5) and ndma > 0:
                        dma()
                        ndma -= 1
                if t == UN - 1 and x == 1:
                    a(f"v_add_u32 v156, {UN*KVT}, v156")
                    a(f"v_add_u32 v157, {UN*KVT}, v157")
                    a("s_add_u32 s29, s29, 1")
                    a("s_cmp_lg_u32 s29, 8")

    a("s_mov_b32 s29, 0")
    body(11)
    a("A_loop:")
    a("s_cmp_lg_u32 s29, 2")
    a("s_cbranch_scc1 A_nosync")
    a("s_waitcnt vmcnt(0)")
    a("s_barrier")
    a("A_nosync:")
    a(f"s_cmp_lg_u32 s29, {PRIO_IT}")
    a("s_cbranch_scc1 A_prio2")
    a("s_setprio 0")
    a("A_prio2:")
    body(0)
    a("s_cbranch_scc1 A_loop")
    for j in range(8 - DLY, 8):
        ej = E + (2 * j) % NE
        a(f"v_cvt_pk_bf16_f32 v{P[1]+j}, v{ej}, v{ej+1}")
    a.nop(2)
    a(f"v_mfma_f32_32x32x16_bf16 {vr(O[1],16)}, {vr(VB[1],4)}, {vr(P[1],4)}, {vr(O[1],16)}")
    a(f"v_mfma_f32_32x32x16_bf16 {vr(O[1],16)}, {vr(VB[1]+4,4)}, {vr(P[1]+4,4)}, {vr(O[1],16)}")
    a(f"s_mul_i32 s25, s3, 2304")
    a(f"s_add_u32 s25, s25, {SCR}")
    a("v_add_u32 v5, s25, v2")
    a("v_lshlrev_b32 v6, 2, v1")
    a("v_add_u32 v6, s25, v6")
    a("s_xor_b32 s25, s3, 4")
    a(f"s_mul_i32 s25, s25, 2304")
    a(f"s_add_u32 s25, s25, {SCR}")
    a("v_add_u32 v7, s25, v2")
    a("v_lshlrev_b32 v154, 2, v1")
    a("v_add_u32 v154, s25, v154")
    a("s_waitcnt lgkmcnt(0)")
    a.nop(8)
    a(f"ds_write_b128 v5, {vr(O[1],4)}")
    a(f"ds_write_b128 v5, {vr(O[1]+4,4)} offset:1024")
    a(f"ds_write_b32 v6, v{O[1]+8} offset:2048")
    a("s_waitcnt lgkmcnt(0)")
    a("s_barrier")
    a(f"ds_read_b128 {vr(S[0],4)}, v7")
    a(f"ds_read_b128 {vr(S[0]+4,4)}, v7 offset:1024")
    a(f"ds_read_b32 v{S[0]+8}, v154 offset:2048")
    a("s_waitcnt lgkmcnt(0)")
    for r in range(9):
        a(f"v_add_f32 v{O[0]+r}, v{O[0]+r}, v{S[0]+r}")
    a(f"v_mov_b32 v6, {f2u(2.0**-60):#x}")
    a(f"v_cmp_nge_f32 vcc, v{O[0]+8}, v6")
    a("s_cmp_eq_u64 vcc, 0")
    a("s_cbranch_scc1 A_fin")
    a("v_mov_b32 v156, v2")
    a("v_mov_b32 v6, 0xff800000")
    a("s_mov_b32 s29, 64")
    a("A_fb:")
    a(f"ds_read_b128 {vr(KB[0],4)}, v156")
    a(f"v_add_u32 v156, {KVT}, v156")
    a("s_waitcnt lgkmcnt(0)")
    a(f"v_mfma_f32_32x32x16_bf16 {vr(S[0],16)}, {vr(KB[0],4)}, {vr(Q[0],4)}, 0")
    a.nop(16)
    for i in range(8):
        a(f"v_max3_f32 v6, v6, v{S[0]+2*i}, v{S[0]+2*i+1}")
    a("s_sub_u32 s29, s29, 1")
    a("s_cmp_lg_u32 s29, 0")
    a("s_cbranch_scc1 A_fb")
    half_sum(a, 6, 7, op="v_max_f32")
    a("v_sub_f32 v6, 0, v6")
    for r in range(16):
        a(f"v_mov_b32 v{C+r}, v6")
        a(f"v_mov_b32 v{O[0]+r}, 0")
    a("v_mov_b32 v156, v2")
    a("v_mov_b32 v157, v155")
    a("s_mov_b32 s29, 64")
    a("A_fb2:")
    a(f"ds_read_b128 {vr(KB[0],4)}, v156")
    a(f"ds_read_b128 {vr(VB[0],4)}, v157")
    a(f"ds_read_b128 {vr(VB[0]+4,4)}, v157 offset:{VU}")
    a(f"v_add_u32 v156, {KVT}, v156")
    a(f"v_add_u32 v157, {KVT}, v157")
    a("s_waitcnt lgkmcnt(0)")
    a(f"v_mfma_f32_32x32x16_bf16 {vr(S[0],16)}, {vr(KB[0],4)}, {vr(Q[0],4)}, {vr(C,16)}")
    a.nop(16)
    for i in range(16):
        a(f"v_exp_f32 v{S[0]+i}, v{S[0]+i}")
    a.nop(1)
    for i in range(8):
        a(f"v_cvt_pk_bf16_f32 v{P[0]+i}, v{S[0]+2*i}, v{S[0]+2*i+1}")
    a.nop(2)
    a(f"v_mfma_f32_32x32x16_bf16 {vr(O[0],16)}, {vr(VB[0],4)}, {vr(P[0],4)}, {vr(O[0],16)}")
    a(f"v_mfma_f32_32x32x16_bf16 {vr(O[0],16)}, {vr(VB[0]+4,4)}, {vr(P[0]+4,4)}, {vr(O[0],16)}")
    a.nop(16)
    a("s_sub_u32 s29, s29, 1")
    a("s_cmp_lg_u32 s29, 0")
    a("s_cbranch_scc1 A_fb2")
    a("A_fin:")
    a.stamp(6)
    if PROFILE:
        a("s_memtime s[80:81]")
        a("s_waitcnt lgkmcnt(0)")
    a(f"v_rcp_f32 v6, v{O[0]+8}")
    a.nop(1)
    for r in range(8):
        a(f"v_mul_f32 v{O[0]+r}, v{O[0]+r}, v6")
    for q in range(4):
        a(f"v_cvt_pk_bf16_f32 v{S[0]+q}, v{O[0]+2*q}, v{O[0]+2*q+1}")
    a(f"s_add_u32 s23, s22, {OF:#x}")
    a(f"buffer_store_dwordx4 {vr(S[0],4)}, v2, s[8:11], s23 offen")
    a(f"{end}:")
    a.stamp_flush(8)
    a(f"{end}x:")
    a("s_endpgm")
    a.desc(name, 160)
    return SCR + 8 * 2304


def gen_ffn1(a):
    name = "ffn1_kernel"
    a.begin(name)
    end = f"{name}_end"
    prologue(a, end)
    STAT = 65536
    a("s_lshl_b32 s20, s4, 16")
    a(f"s_add_u32 s20, s20, {X1F:#x}")
    a("s_lshl_b32 s21, s3, 12")
    a("s_add_u32 s22, s20, s21")
    a("s_add_u32 s23, s22, 32768")
    for i in range(4):
        a(f"buffer_load_dwordx4 {vr(160+4*i,4)}, v2, s[8:11], s22 offen offset:{1024*i}")
    for i in range(4):
        a(f"buffer_load_dwordx4 {vr(176+4*i,4)}, v2, s[8:11], s23 offen offset:{1024*i}")
    R0 = 32
    a("s_mul_i32 s24, s5, 7")
    a("s_add_u32 s24, s24, s3")
    a("s_cmp_eq_u32 s3, 7")
    a("s_cbranch_scc1 F1_now")
    a("s_lshl_b32 s25, s24, 15")
    a(f"s_add_u32 s25, s25, {W1F:#x}")
    for i in range(32):
        frag_loads(a, vr(R0 + 4 * i, 4), 25, i, 26)
    a("v_lshlrev_b32 v5, 4, v4")
    a("s_lshl_b32 s27, s24, 7")
    a(f"s_add_u32 s27, s27, {CS1:#x}")
    for q in range(4):
        a(f"buffer_load_dwordx4 {vr(192+4*q,4)}, v5, s[8:11], s27 offen offset:{32*q}")
    a("s_waitcnt vmcnt(36)")
    a("s_branch F1_st")
    a("F1_now:")
    a("s_waitcnt vmcnt(0)")
    a("F1_st:")
    a.stamp(2)
    a("v_add_u32 v5, s21, v2")
    for i in range(4):
        a(f"ds_write_b128 v5, {vr(160+4*i,4)} offset:{1024*i}")
        a(f"ds_write_b128 v5, {vr(176+4*i,4)} offset:{32768+1024*i}")
    a("s_mov_b32 s28, 0x3f803f80")
    for r in range(8):
        a(f"v_mov_b32 v{8+r}, 0")
    for i in range(16):
        for r in range(2):
            x = 160 + 16 * r + i
            k = 4 * (i % 2)
            a(f"v_dot2_f32_bf16 v{8+k+2*r}, v{x}, s28, v{8+k+2*r}")
            a(f"v_dot2_f32_bf16 v{9+k+2*r}, v{x}, v{x}, v{9+k+2*r}")
    a("s_lshl_b32 s21, s3, 10")
    a(f"s_add_u32 s21, s21, {STAT}")
    a("v_add_u32 v5, s21, v2")
    a.nop(2)
    for r in range(4):
        a(f"v_add_f32 v{8+r}, v{8+r}, v{12+r}")
    a("ds_write_b128 v5, v[8:11]")
    a("s_waitcnt lgkmcnt(0)")
    a.stamp(3)
    a("s_barrier")
    a.stamp(4)
    a("s_cmp_eq_u32 s3, 7")
    a(f"s_cbranch_scc1 {end}")

    def rd(i):
        b = 8 + 8 * (i % 3)
        a(f"ds_read_b128 {vr(b,4)}, v2 offset:{i*1024}")
        a(f"ds_read_b128 {vr(b+4,4)}, v2 offset:{32768+i*1024}")
    rd(0)
    rd(1)
    for i in range(32):
        if i + 2 < 32:
            rd(i + 2)
        pend = min(32, i + 3) - i - 1
        a(f"s_waitcnt vmcnt({4+31-i}) lgkmcnt({2*pend})")
        b = 8 + 8 * (i % 3)
        for r in range(2):
            cin = "0" if i == 0 else ar(16 * r, 16)
            a(f"v_mfma_f32_32x32x16_bf16 {ar(16*r,16)}, {vr(R0+4*i,4)}, {vr(b+4*r,4)}, {cin}")
    a.stamp(5)
    a(f"v_add_u32 v5, {STAT}, v2")
    for w in range(8):
        a(f"ds_read_b128 {vr(160+4*w,4)}, v5 offset:{1024*w}")
    a("s_waitcnt lgkmcnt(0)")
    for w in range(1, 8):
        for r in range(4):
            a(f"v_add_f32 v{160+r}, v{160+r}, v{160+4*w+r}")
    for r in range(4):
        half_sum(a, 160 + r, 164)
    for r in range(2):
        m, x2 = 160 + 2 * r, 161 + 2 * r
        a(f"v_mul_f32 v{m}, {f2u(1.0/512):#x}, v{m}")
        a(f"v_mul_f32 v{x2}, {f2u(1.0/512):#x}, v{x2}")
        a(f"v_fma_f32 v{x2}, -v{m}, v{m}, v{x2}")
        a(f"v_max_f32 v{x2}, 0, v{x2}")
        a(f"v_add_f32 v{x2}, {f2u(EPS):#x}, v{x2}")
        a(f"v_rsq_f32 v{8+2*r}, v{x2}")
        a.nop(1)
        a(f"v_mul_f32 v{9+2*r}, v{m}, v{8+2*r}")
        a(f"v_sub_f32 v{9+2*r}, 0, v{9+2*r}")
    a.stamp(6)
    a("s_waitcnt vmcnt(0)")
    for r in range(32):
        a(f"v_accvgpr_read_b32 v{32+r}, a{r}")
    for rr in range(2):
        for r in range(16):
            a(f"v_mul_f32 v{64+r}, v{9+2*rr}, v{192+r}")
            a(f"v_fma_f32 v{32+16*rr+r}, v{32+16*rr+r}, v{8+2*rr}, v{64+r}")
        for q in range(8):
            a(f"v_cvt_pk_bf16_f32 v{80+8*rr+q}, v{32+16*rr+2*q}, v{32+16*rr+2*q+1}")
        for q in range(8):
            a(f"v_pk_max_i16 v{80+8*rr+q}, v{80+8*rr+q}, 0")
    a("s_lshl_b32 s26, s4, 1")
    a("s_mul_i32 s26, s26, 112")
    a("s_lshl_b32 s27, s24, 1")
    a("s_add_u32 s26, s26, s27")
    a("s_lshl_b32 s26, s26, 10")
    a(f"s_add_u32 s26, s26, {HF:#x}")
    a(f"s_add_u32 s27, s26, {112*1024}")
    a("buffer_store_dwordx4 v[80:83], v2, s[8:11], s26 offen")
    a("buffer_store_dwordx4 v[84:87], v2, s[8:11], s26 offen offset:1024")
    a("buffer_store_dwordx4 v[88:91], v2, s[8:11], s27 offen")
    a("buffer_store_dwordx4 v[92:95], v2, s[8:11], s27 offen offset:1024")
    a(f"{end}:")
    a.stamp_flush(8)
    a(f"{end}x:")
    a("s_endpgm")
    a.desc(name, 208, agpr=32)
    return STAT + 8192


def main():
    a = Asm()
    gen_P(a)
    lds_qkv = gen_qkv(a)
    lds_attn = gen_attn(a)
    gen_gemm_res(a, "oproj_kernel", WOF, OF, 32, XF, X1F, False)
    lds_f1 = gen_ffn1(a)
    gen_gemm_res(a, "ffn2a_kernel", W2F, HF, 112, X1F, XF, False)
    gen_gemm_res(a, "ffn2b_kernel", W2F, HF, 112, X1F, None, True)
    hdr = []
    L = hdr.append
    L("; @launch kernel=prep_kernel grid=(217,1,1) block=(512,1,1) lds=2048")
    for layer in range(2):
        L(f"; @launch kernel=qkv_kernel grid=(256,1,1) block=(256,1,1) lds={lds_qkv}")
        L(f"; @launch kernel=attn_kernel grid=(256,1,1) block=(512,1,1) lds={lds_attn}")
        L("; @launch kernel=oproj_kernel grid=(256,1,1) block=(256,1,1) lds=65536")
        L(f"; @launch kernel=ffn1_kernel grid=(256,1,1) block=(512,1,1) lds={lds_f1}")
        L(f"; @launch kernel={'ffn2a' if layer == 0 else 'ffn2b'}_kernel grid=(256,1,1) block=(256,1,1) lds=65536")
    out = "\n".join(hdr) + "\n"
    out += '.amdgcn_target "amdgcn-amd-amdhsa--gfx950"\n.text\n'
    out += "\n".join(a.L) + "\n"
    out += '.section .rodata,"a"\n' + "\n".join(a.kernels) + "\n"
    path = sys.argv[1] if len(sys.argv) > 1 else f"cdna_kernels/{NAME}.s"
    open(path, 'w').write(out)
    if PROFILE:
        import json
        json.dump(PROF_SLOT, open('prof_slots.json', 'w'))
    print("wrote", path, len(out), "bytes")


if __name__ == "__main__":
    main()
```

```python
import os
import sys
import gen as G
from gen import Asm, vr, ar, f2u, half_sum, wave32_max, prologue, frag_loads
from gen import WQF, WOF, W1F, W2F, WKVF, CSQ, CS1, CSKV, VH, VU, KVT, KVF_BYTES, QS, EPS, NAME, PROFILE

LSTRIDE = 0x2000000
XFL = [0x500000, 0x500000 + LSTRIDE]
QFL = [0x700000, 0x700000 + LSTRIDE]
OFL = [0x900000, 0x900000 + LSTRIDE]
X1FL = [0xB00000, 0xB00000 + LSTRIDE]
HFL = [0x1000000, 0x1000000 + LSTRIDE]
KVFL = [0x1800000, 0x1800000 + LSTRIDE]
KNL = [0x1880000, 0x1880000 + LSTRIDE]
FLAGS = 0x490000
G.WS_USED = 0x4400000
G.PROF = 0x4000000
G.KN = KNL[0]
SC = "sc0 sc1"
SPIN_MAX = 200000

PRIO_IT = int(os.environ.get('PRIO_IT', '7'))
WARM = int(os.environ.get('WARM', '1'))


def publish(a, epoch, tag):
    a("s_waitcnt vmcnt(0)")
    a("s_barrier")
    a("s_cmp_lg_u32 s3, 0")
    a(f"s_cbranch_scc1 {tag}_np")
    a(f"v_mov_b32 v5, {epoch}")
    a("v_mov_b32 v6, 0")
    a("v_cmp_eq_u32 vcc, 0, v1")
    a("s_and_saveexec_b64 s[38:39], vcc")
    a(f"buffer_store_dword v5, v6, s[8:11], s40 offen {SC}")
    a("s_mov_b64 exec, s[38:39]")
    a(f"{tag}_np:")


def wait_flag(a, epoch, tag):
    a("v_mov_b32 v6, 0")
    a("s_mov_b32 s37, 0")
    a(f"{tag}_poll:")
    a(f"buffer_load_dword v5, v6, s[8:11], s41 offen {SC}")
    a("s_waitcnt vmcnt(0)")
    a("v_readfirstlane_b32 s36, v5")
    a("s_add_u32 s37, s37, 1")
    a(f"s_cmp_ge_u32 s36, {epoch}")
    a(f"s_cbranch_scc1 {tag}_go")
    a(f"s_cmp_gt_u32 s37, {SPIN_MAX}")
    a(f"s_cbranch_scc1 {tag}_go")
    a("s_sleep 1")
    a(f"s_branch {tag}_poll")
    a(f"{tag}_go:")


def ld(a, dst, sbase, idx, stmp, flags=""):
    hi, lo = idx // 4, idx % 4
    if hi == 0:
        so = f"s{sbase}"
    else:
        a(f"s_add_u32 s{stmp}, s{sbase}, {hi*4096}")
        so = f"s{stmp}"
    a(f"buffer_load_dwordx4 {dst}, v2, s[8:11], {so} offen offset:{lo*1024} {flags}")


def reduce8(a, ACC, DST, lds_base=0, pre_barrier=False):
    a("s_lshl_b32 s32, s3, 11")
    a("v_add_u32 v5, s32, v2")
    a("v_add_u32 v6, 0x10000, v5")
    a("s_lshl_b32 s32, s3, 14")
    a("v_add_u32 v7, s32, v2")
    a.nop(12)
    if pre_barrier:
        a("s_waitcnt lgkmcnt(0)")
        a("s_barrier")
    for p in range(8):
        for q in range(2):
            off = (p % 4) * 16384 + q * 1024
            a(f"ds_write_b128 v{5 if p < 4 else 6}, {vr(ACC+8*p+4*q,4)} offset:{off}")
    a("s_waitcnt lgkmcnt(0)")
    a("s_barrier")
    for s in range(8):
        for q in range(2):
            a(f"ds_read_b128 {vr(ACC+8*s+4*q,4)}, v7 offset:{s*2048+q*1024}")
    for s in range(0, 8, 2):
        a(f"s_waitcnt lgkmcnt({12-2*s})")
        for r in range(8):
            if s == 0:
                a(f"v_add_f32 v{DST+r}, v{ACC+r}, v{ACC+8+r}")
            else:
                a(f"v_add_f32 v{ACC+8*s+r}, v{ACC+8*s+r}, v{ACC+8*s+8+r}")
                a(f"v_add_f32 v{DST+r}, v{DST+r}, v{ACC+8*s+r}")


STATQ = 131072
KVS = STATQ + 8192
STAT2 = KVS + 16384
CSP = STAT2 + 256
CSP2 = CSP + 3072


def qkv_tail(a, T, end, QN, KVN, KNN, get_csq, get_csk, get_csv):
    a("s_lshl_b32 s32, s43, 3")
    a(f"s_add_u32 s32, s32, {STATQ}")
    a("v_add_u32 v7, s32, v2")
    for s in range(8):
        a(f"ds_read_b64 {vr(40+2*s,2)}, v7 offset:{s*1024}")
    a("s_waitcnt lgkmcnt(0)")
    for s in range(1, 8):
        a(f"v_add_f32 v40, v40, v{40+2*s}")
        a(f"v_add_f32 v41, v41, v{41+2*s}")
    half_sum(a, 40, 42)
    half_sum(a, 41, 42)
    a(f"v_mul_f32 v40, {f2u(1.0/512):#x}, v40")
    a(f"v_mul_f32 v41, {f2u(1.0/512):#x}, v41")
    a("v_fma_f32 v41, -v40, v40, v41")
    a("v_max_f32 v41, 0, v41")
    a(f"v_add_f32 v41, {f2u(EPS):#x}, v41")
    a("v_rsq_f32 v41, v41")
    a.nop(1)
    a("v_mul_f32 v42, v40, v41")
    a("v_sub_f32 v42, 0, v42")
    a(f"v_mul_f32 v43, {f2u(QS):#x}, v41")
    a(f"v_mul_f32 v44, {f2u(QS):#x}, v42")
    get_csq()
    for r in range(8):
        a(f"v_mul_f32 v{16+r}, v44, v{16+r}")
        a(f"v_fma_f32 v{8+r}, v{8+r}, v43, v{16+r}")
    for q in range(4):
        a(f"v_cvt_pk_bf16_f32 v{24+q}, v{8+2*q}, v{9+2*q}")
    a(f"s_add_u32 s23, s42, {QN:#x}")
    a("buffer_store_dwordx4 v[24:27], v2, s[8:11], s23 offen")
    a("s_cmp_ge_u32 s5, 6")
    a(f"s_cbranch_scc1 {end}")
    a("s_lshr_b32 s32, s5, 2")
    a("s_cmp_eq_u32 s5, 1")
    a("s_cselect_b32 s32, 1, s32")
    a("s_lshl_b32 s32, s32, 1")
    a("s_cmp_lg_u32 s3, s32")
    a(f"s_cbranch_scc1 {end}")
    a(f"v_add_u32 v7, {KVS}, v2")
    for s in range(8):
        for q in range(2):
            a(f"ds_read_b128 {vr(64+8*s+4*q,4)}, v7 offset:{s*2048+q*1024}")
    a(f"s_mul_i32 s33, s45, {KVT}")
    a(f"s_add_u32 s33, s33, {KVN:#x}")
    a("s_waitcnt lgkmcnt(0)")
    for s in range(1, 8):
        for r in range(8):
            a(f"v_add_f32 v{64+r}, v{64+r}, v{64+8*s+r}")
    a("s_cmp_ge_u32 s5, 2")
    a(f"s_cbranch_scc1 {T}_finV")
    a("v_mov_b32 v45, 0")
    get_csk()
    for r in range(8):
        a(f"v_mul_f32 v{16+r}, v42, v{16+r}")
        a(f"v_fma_f32 v{64+r}, v{64+r}, v41, v{16+r}")
        a(f"v_fma_f32 v45, v{64+r}, v{64+r}, v45")
    for q in range(4):
        a(f"v_cvt_pk_bf16_f32 v{28+q}, v{64+2*q}, v{65+2*q}")
    a("buffer_store_dwordx4 v[28:31], v2, s[8:11], s33 offen")
    half_sum(a, 45, 46)
    wave32_max(a, 45, 46)
    a("s_lshl_b32 s32, s45, 2")
    a(f"s_add_u32 s32, s32, {KNN:#x}")
    a("v_mov_b32 v46, 0")
    a("v_cmp_eq_u32 vcc, 0, v1")
    a("s_and_saveexec_b64 s[38:39], vcc")
    a("buffer_store_dword v45, v46, s[8:11], s32 offen")
    a(f"s_branch {end}")
    a(f"{T}_finV:")
    a("v_lshlrev_b32 v7, 2, v3")
    a(f"v_add_u32 v7, {STAT2}, v7")
    a("ds_write_b32 v7, v41")
    a("ds_write_b32 v7, v42 offset:128")
    a("s_and_b32 s32, s5, 1")
    a("s_lshl_b32 s32, s32, 6")
    a(f"s_add_u32 s32, s32, {STAT2}")
    a("v_lshlrev_b32 v7, 4, v4")
    a("v_add_u32 v7, s32, v7")
    get_csv()
    a("s_waitcnt lgkmcnt(0)")
    for q in range(2):
        a(f"ds_read_b128 {vr(16+4*q,4)}, v7 offset:{32*q}")
        a(f"ds_read_b128 {vr(24+4*q,4)}, v7 offset:{128+32*q}")
    a("s_waitcnt lgkmcnt(0)")
    for r in range(8):
        a(f"v_mul_f32 v{24+r}, v47, v{24+r}")
        a(f"v_fma_f32 v{64+r}, v{64+r}, v{16+r}, v{24+r}")
    for q in range(4):
        a(f"v_cvt_pk_bf16_f32 v{32+q}, v{64+2*q}, v{65+2*q}")
    a("v_cmp_eq_u32 s[38:39], 0, v3")
    a("v_mov_b32 v45, 0x3f803f80")
    a("v_mov_b32 v46, 0")
    a("v_cndmask_b32 v45, v46, v45, s[38:39]")
    a("v_cmp_le_u32 vcc, 16, v3")
    a("v_xor_b32 v7, 16, v3")
    a("v_lshlrev_b32 v7, 4, v7")
    for q in range(4):
        a(f"v_cndmask_b32 v{32+q}, v45, v{32+q}, vcc")
    a(f"v_mul_u32_u24 v46, {VH}, v4")
    a("v_add_u32 v7, v7, v46")
    a("s_and_b32 s32, s5, 1")
    a(f"s_mul_i32 s32, s32, {VU}")
    a("s_add_u32 s33, s33, s32")
    a("v_cmp_gt_u32 s[38:39], 2, v3")
    a("s_or_b64 vcc, vcc, s[38:39]")
    a("s_and_saveexec_b64 s[38:39], vcc")
    a("buffer_store_dwordx4 v[32:35], v7, s[8:11], s33 offen offset:1024")


def piece_sgprs(a):
    a("s_lshr_b32 s32, s3, 1")
    a("s_and_b32 s43, s32, 1")
    a("s_lshr_b32 s44, s3, 2")
    a("s_lshl_b32 s45, s4, 1")
    a("s_add_u32 s45, s45, s43")
    a("s_lshl_b32 s46, s5, 1")
    a("s_add_u32 s46, s46, s44")
    a("s_lshl_b32 s42, s45, 5")
    a("s_lshl_b32 s32, s46, 1")
    a("s_add_u32 s42, s42, s32")
    a("s_and_b32 s47, s3, 1")
    a("s_add_u32 s42, s42, s47")
    a("s_lshl_b32 s42, s42, 10")


def gen_F(a, L):
    last = (L == 1)
    name = f"f{L+1}_kernel"
    T = f"F{L}"
    a.begin(name)
    end = f"{name}_end"
    prologue(a, end, out_ptr=True, out_off=(64 if last else 0))
    a.srd(16, 12, 2048 * 512 * 2)
    XF, QF, OF, X1F, HF, KVF, KN = XFL[L], QFL[L], OFL[L], X1FL[L], HFL[L], KVFL[L], KNL[L]
    EP = 4 * L
    a("s_lshl_b32 s40, s4, 8")
    a(f"s_add_u32 s40, s40, {FLAGS:#x}")
    a("s_lshl_b32 s41, s3, 2")
    a("s_add_u32 s41, s41, s40")
    a("s_lshl_b32 s32, s5, 2")
    a("s_add_u32 s40, s40, s32")
    piece_sgprs(a)
    SCR = KVF_BYTES
    Q = (8, 12)
    C = 16
    O = (32, 48)
    S = (64, 80)
    P = (96, 104)
    E = 112
    KB = (128, 132)
    VB = (136, 144)
    a("s_and_b32 s20, s3, 3")
    a("s_lshr_b32 s30, s3, 2")
    a("s_and_b32 s21, s20, 1")
    a("s_lshl_b32 s21, s21, 1")
    a("s_lshl_b32 s22, s5, 2")
    a("s_add_u32 s21, s21, s22")
    a("s_lshr_b32 s22, s20, 1")
    a("s_lshl_b32 s23, s4, 1")
    a("s_add_u32 s22, s22, s23")
    a("s_lshl_b32 s22, s22, 5")
    a("s_add_u32 s22, s22, s21")
    a("s_add_u32 s23, s22, s30")
    a("s_xor_b32 s24, s30, 1")
    a("s_add_u32 s24, s22, s24")
    a("s_lshl_b32 s22, s23, 10")
    a("s_lshl_b32 s24, s24, 10")
    a(f"s_add_u32 s23, s22, {QF:#x}")
    a(f"s_add_u32 s24, s24, {QF:#x}")
    a(f"buffer_load_dwordx4 {vr(Q[0],4)}, v2, s[8:11], s23 offen")
    a(f"buffer_load_dwordx4 {vr(Q[1],4)}, v2, s[8:11], s24 offen")
    a("v_lshlrev_b32 v5, 2, v1")
    a(f"s_mov_b32 s23, {KN:#x}")
    a("buffer_load_dword v7, v5, s[8:11], s23 offen")
    a("s_lshr_b32 s24, s3, 1")
    a("s_lshl_b32 s24, s24, 10")
    a("s_and_b32 s25, s3, 1")
    a(f"s_mul_i32 s25, s25, {32*KVT}")
    a("s_add_u32 s34, s24, s25")
    a(f"s_add_u32 s35, s34, {KVF:#x}")

    def dma():
        a("s_mov_b32 m0, s34")
        a("s_add_u32 s34, s34, 4096")
        a("buffer_load_dwordx4 v2, s[8:11], s35 offen lds")
        a("s_add_u32 s35, s35, 4096")
    for i in range(6):
        dma()
    a("v_min_u32 v6, 17, v3")
    a("v_mov_b32 v5, 16")
    a("v_cmp_eq_u32 vcc, 20, v3")
    a(f"s_mul_i32 s25, s30, {32*KVT}")
    a.nop(1)
    a("v_cndmask_b32 v6, v6, v5, vcc")
    a("v_lshlrev_b32 v6, 4, v6")
    a(f"v_mul_u32_u24 v5, {VH}, v4")
    a("v_add3_u32 v158, v6, v5, 64")
    a("v_add_u32 v158, 960, v158")
    a("v_add_u32 v156, s25, v2")
    a("v_add_u32 v157, s25, v158")
    a("s_waitcnt vmcnt(6)")
    a("v_mov_b32 v5, 0")
    a("v_mov_b32 v6, 0")
    for q in range(4):
        a(f"v_dot2_f32_bf16 v5, v{Q[0]+q}, v{Q[0]+q}, v5")
        a(f"v_dot2_f32_bf16 v6, v{Q[1]+q}, v{Q[1]+q}, v6")
    a.nop(3)
    half_sum(a, 5, 154)
    half_sum(a, 6, 154)
    a("v_max_f32 v5, v5, v6")
    for off in (0x041F, 0x081F, 0x101F, 0x201F, 0x401F):
        a(f"ds_swizzle_b32 v6, v5 offset:{off:#x}")
        a(f"ds_swizzle_b32 v154, v7 offset:{off:#x}")
        a("s_waitcnt lgkmcnt(0)")
        a("v_max_f32 v5, v5, v6")
        a("v_max_f32 v7, v7, v154")
    half_sum(a, 7, 154, op="v_max_f32")
    a("v_mul_f32 v6, v5, v7")
    a("v_sqrt_f32 v6, v6")
    a.nop(1)
    a(f"v_mul_f32 v6, {f2u(-1.02):#x}, v6")
    for r in range(16):
        a(f"v_mov_b32 v{C+r}, v6")
        a(f"v_mov_b32 v{O[0]+r}, 0")
        a(f"v_mov_b32 v{O[1]+r}, 0")
        a(f"v_mov_b32 v{E+r}, 0")
    for r in range(8):
        a(f"v_mov_b32 v{P[1]+r}, 0")
        a(f"v_mov_b32 v{VB[1]+r}, 0")
    a("s_lshl_b32 s32, s5, 1")
    a("s_lshl_b32 s48, s32, 5")
    a("s_lshl_b32 s33, s3, 2")
    a("s_add_u32 s48, s48, s33")
    a("s_lshl_b32 s48, s48, 10")
    a(f"s_add_u32 s48, s48, {WOF:#x}")
    a("s_add_u32 s49, s48, 32768")
    a("s_min_u32 s32, s3, 6")
    a("s_mul_i32 s51, s5, 7")
    a("s_add_u32 s51, s51, s32")
    a("s_lshl_b32 s50, s51, 15")
    a(f"s_add_u32 s50, s50, {W1F:#x}")
    a(f"s_add_u32 s52, s42, {XF:#x}")
    pf = []
    for i in range(4):
        pf.append((ar(8 * i, 4), 48, i))
        pf.append((ar(8 * i + 4, 4), 49, i))
    if last:
        pf.append((ar(32, 4), 52, 0))
    else:
        a("v_lshlrev_b32 v159, 10, v3")
        a("v_lshl_add_u32 v159, v4, 3, v159")
        a("s_lshl_b32 s52, s45, 15")
        a("s_lshl_b32 s32, s46, 6")
        a("s_add_u32 s52, s52, s32")
        a("s_lshl_b32 s32, s47, 5")
        a("s_add_u32 s52, s52, s32")
        pf.append(None)
    for i in range(15):
        pf.append((ar(36 + 4 * i, 4), 50, i))
    a("s_waitcnt vmcnt(0)")
    a("s_barrier")
    a.stamp(2)
    a(f"ds_read_b128 {vr(KB[0],4)}, v156")
    a(f"ds_read_b128 {vr(KB[1],4)}, v156 offset:{KVT}")
    a(f"ds_read_b128 {vr(VB[0],4)}, v157")
    a(f"ds_read_b128 {vr(VB[0]+4,4)}, v157 offset:{VU}")
    a("s_cmp_lt_u32 s3, 4")
    a(f"s_cbranch_scc1 {T}_noprio")
    a("s_setprio 1")
    a(f"{T}_noprio:")
    a("s_waitcnt lgkmcnt(3)")
    a(f"v_mfma_f32_32x32x16_bf16 {vr(S[0],16)}, {vr(KB[0],4)}, {vr(Q[0],4)}, {vr(C,16)}")
    a.nop(10)
    UN, PV1, PV2, DLY, NE = 4, 3, 6, 2, 16

    def body(extra):
        for t in range(UN):
            for x in range(2):
                y = 1 - x
                ty = t if x == 0 else t + 1
                tv = t - 1 if x == 0 else t
                for i in range(8):
                    if i == 0:
                        if x == 1:
                            a("s_waitcnt lgkmcnt(0)")
                        a(f"v_mfma_f32_32x32x16_bf16 {vr(S[y],16)}, {vr(KB[ty%2],4)}, {vr(Q[y],4)}, {vr(C,16)}")
                        if x == 1:
                            a(f"ds_read_b128 {vr(KB[t%2],4)}, v156 offset:{(t+2)*KVT}")
                            a(f"ds_read_b128 {vr(VB[(t+1)%2],4)}, v157 offset:{(t+1)*KVT}")
                            a(f"ds_read_b128 {vr(VB[(t+1)%2]+4,4)}, v157 offset:{(t+1)*KVT+VU}")
                    e = E + (2 * i) % NE
                    a(f"v_exp_f32 v{e}, v{S[x]+2*i}")
                    a(f"v_exp_f32 v{e+1}, v{S[x]+2*i+1}")
                    j = i - DLY
                    if j >= 0:
                        ej = E + (2 * j) % NE
                        a(f"v_cvt_pk_bf16_f32 v{P[x]+j}, v{ej}, v{ej+1}")
                    else:
                        ej = E + (2 * (j + 8)) % NE
                        a(f"v_cvt_pk_bf16_f32 v{P[y]+j+8}, v{ej}, v{ej+1}")
                    if i == PV1:
                        a(f"v_mfma_f32_32x32x16_bf16 {vr(O[y],16)}, {vr(VB[tv%2],4)}, {vr(P[y],4)}, {vr(O[y],16)}")
                    if i == PV2:
                        a(f"v_mfma_f32_32x32x16_bf16 {vr(O[y],16)}, {vr(VB[tv%2]+4,4)}, {vr(P[y]+4,4)}, {vr(O[y],16)}")
                    if i in (1, 4, 5) and extra:
                        extra.pop(0)()
                if t == UN - 1 and x == 1:
                    a(f"v_add_u32 v156, {UN*KVT}, v156")
                    a(f"v_add_u32 v157, {UN*KVT}, v157")
                    a("s_add_u32 s29, s29, 1")
                    a("s_cmp_lg_u32 s29, 8")

    a("s_mov_b32 s29, 0")
    body([dma] * 11)
    body([])
    a("s_waitcnt vmcnt(0)")
    a("s_barrier")
    def rawres():
        a("buffer_load_dwordx2 a[32:33], v159, s[16:19], s52 offen")
        a("buffer_load_dwordx2 a[34:35], v159, s[16:19], s52 offen offset:16")
    body([(lambda e=e: ld(a, e[0], e[1], e[2], 33)) if e else rawres for e in pf])
    if WARM:
        a("s_lshr_b32 s56, s4, 3")
        a("s_and_b32 s56, s56, 3")
        a("s_and_b32 s57, s56, 1")
        a("s_lshl_b32 s58, s5, 1")
        a("s_add_u32 s57, s57, s58")
        a("s_mul_i32 s57, s57, 112")
        a("s_mul_i32 s58, s3, 14")
        a("s_add_u32 s57, s57, s58")
        a("s_lshr_b32 s58, s56, 1")
        a("s_mul_i32 s58, s58, 7")
        a("s_add_u32 s57, s57, s58")
        a("s_lshl_b32 s57, s57, 10")
        a(f"s_add_u32 s57, s57, {W2F:#x}")
        a("s_lshl_b32 s58, s56, 12")
        a("s_add_u32 s58, s58, s50")
        a(f"s_add_u32 s58, s58, {15*1024}")
        a("s_and_b32 s59, s56, 1")
        a("s_lshl_b32 s59, s59, 15")
        a("s_lshr_b32 s60, s56, 1")
        a("s_lshl_b32 s60, s60, 11")
        a("s_add_u32 s59, s59, s60")
        a("s_add_u32 s59, s59, s48")
        a(f"s_add_u32 s59, s59, {(WQF - WOF) & 0xffffffff:#x}")
        wl = [(57, i) for i in range(7)] + [(58, i) for i in range(5)] + ([(59, i) for i in range(2)] if not last else [])
        body([(lambda b=b, i=i: ld(a, "v[152:155]", b, i, 33)) for (b, i) in wl])
    a(f"{T}_loop:")
    a(f"s_cmp_lg_u32 s29, {PRIO_IT}")
    a(f"s_cbranch_scc1 {T}_prio2")
    a("s_setprio 0")
    a(f"{T}_prio2:")
    body([])
    a(f"s_cbranch_scc1 {T}_loop")
    for j in range(8 - DLY, 8):
        ej = E + (2 * j) % NE
        a(f"v_cvt_pk_bf16_f32 v{P[1]+j}, v{ej}, v{ej+1}")
    a.nop(2)
    a(f"v_mfma_f32_32x32x16_bf16 {vr(O[1],16)}, {vr(VB[1],4)}, {vr(P[1],4)}, {vr(O[1],16)}")
    a(f"v_mfma_f32_32x32x16_bf16 {vr(O[1],16)}, {vr(VB[1]+4,4)}, {vr(P[1]+4,4)}, {vr(O[1],16)}")
    a("s_mul_i32 s25, s3, 2304")
    a(f"s_add_u32 s25, s25, {SCR}")
    a("v_add_u32 v5, s25, v2")
    a("v_lshlrev_b32 v6, 2, v1")
    a("v_add_u32 v6, s25, v6")
    a("s_xor_b32 s25, s3, 4")
    a("s_mul_i32 s25, s25, 2304")
    a(f"s_add_u32 s25, s25, {SCR}")
    a("v_add_u32 v7, s25, v2")
    a("s_waitcnt vmcnt(0)")
    a("v_lshlrev_b32 v154, 2, v1")
    a("v_add_u32 v154, s25, v154")
    a("s_waitcnt lgkmcnt(0)")
    a.nop(8)
    a(f"ds_write_b128 v5, {vr(O[1],4)}")
    a(f"ds_write_b128 v5, {vr(O[1]+4,4)} offset:1024")
    a(f"ds_write_b32 v6, v{O[1]+8} offset:2048")
    a("s_waitcnt lgkmcnt(0)")
    a("s_barrier")
    a(f"ds_read_b128 {vr(S[0],4)}, v7")
    a(f"ds_read_b128 {vr(S[0]+4,4)}, v7 offset:1024")
    a(f"ds_read_b32 v{S[0]+8}, v154 offset:2048")
    a("s_waitcnt lgkmcnt(0)")
    for r in range(9):
        a(f"v_add_f32 v{O[0]+r}, v{O[0]+r}, v{S[0]+r}")
    a(f"v_mov_b32 v6, {f2u(2.0**-60):#x}")
    a(f"v_cmp_nge_f32 vcc, v{O[0]+8}, v6")
    a("s_cmp_eq_u64 vcc, 0")
    a(f"s_cbranch_scc1 {T}_afin")
    a("v_mov_b32 v156, v2")
    a("v_mov_b32 v6, 0xff800000")
    a("s_mov_b32 s29, 64")
    a(f"{T}_fb:")
    a(f"ds_read_b128 {vr(KB[0],4)}, v156")
    a(f"v_add_u32 v156, {KVT}, v156")
    a("s_waitcnt lgkmcnt(0)")
    a(f"v_mfma_f32_32x32x16_bf16 {vr(S[0],16)}, {vr(KB[0],4)}, {vr(Q[0],4)}, 0")
    a.nop(16)
    for i in range(8):
        a(f"v_max3_f32 v6, v6, v{S[0]+2*i}, v{S[0]+2*i+1}")
    a("s_sub_u32 s29, s29, 1")
    a("s_cmp_lg_u32 s29, 0")
    a(f"s_cbranch_scc1 {T}_fb")
    half_sum(a, 6, 7, op="v_max_f32")
    a("v_sub_f32 v6, 0, v6")
    for r in range(16):
        a(f"v_mov_b32 v{C+r}, v6")
        a(f"v_mov_b32 v{O[0]+r}, 0")
    a("v_mov_b32 v156, v2")
    a("v_mov_b32 v157, v158")
    a("s_mov_b32 s29, 64")
    a(f"{T}_fb2:")
    a(f"ds_read_b128 {vr(KB[0],4)}, v156")
    a(f"ds_read_b128 {vr(VB[0],4)}, v157")
    a(f"ds_read_b128 {vr(VB[0]+4,4)}, v157 offset:{VU}")
    a(f"v_add_u32 v156, {KVT}, v156")
    a(f"v_add_u32 v157, {KVT}, v157")
    a("s_waitcnt lgkmcnt(0)")
    a(f"v_mfma_f32_32x32x16_bf16 {vr(S[0],16)}, {vr(KB[0],4)}, {vr(Q[0],4)}, {vr(C,16)}")
    a.nop(16)
    for i in range(16):
        a(f"v_exp_f32 v{S[0]+i}, v{S[0]+i}")
    a.nop(1)
    for i in range(8):
        a(f"v_cvt_pk_bf16_f32 v{P[0]+i}, v{S[0]+2*i}, v{S[0]+2*i+1}")
    a.nop(2)
    a(f"v_mfma_f32_32x32x16_bf16 {vr(O[0],16)}, {vr(VB[0],4)}, {vr(P[0],4)}, {vr(O[0],16)}")
    a(f"v_mfma_f32_32x32x16_bf16 {vr(O[0],16)}, {vr(VB[0]+4,4)}, {vr(P[0]+4,4)}, {vr(O[0],16)}")
    a.nop(16)
    a("s_sub_u32 s29, s29, 1")
    a("s_cmp_lg_u32 s29, 0")
    a(f"s_cbranch_scc1 {T}_fb2")
    a(f"{T}_afin:")
    a(f"v_rcp_f32 v6, v{O[0]+8}")
    a.nop(1)
    for r in range(8):
        a(f"v_mul_f32 v{O[0]+r}, v{O[0]+r}, v6")
    for q in range(4):
        a(f"v_cvt_pk_bf16_f32 v{S[0]+q}, v{O[0]+2*q}, v{O[0]+2*q+1}")
    a(f"s_add_u32 s23, s22, {OF:#x}")
    a(f"buffer_store_dwordx4 {vr(S[0],4)}, v2, s[8:11], s23 offen {SC}")
    a.stamp(3)
    publish(a, EP + 1, f"{T}_p1")
    a("s_lshl_b32 s20, s4, 6")
    a("s_lshl_b32 s21, s3, 2")
    a("s_add_u32 s20, s20, s21")
    a("s_lshl_b32 s53, s20, 10")
    a(f"s_add_u32 s20, s53, {OF:#x}")
    a("s_add_u32 s21, s20, 32768")
    wait_flag(a, EP + 1, f"{T}_w1")
    a.stamp(4)
    for i in range(4):
        ld(a, vr(8 + 8 * i, 4), 20, i, 33, SC)
        ld(a, vr(12 + 8 * i, 4), 21, i, 33, SC)
    ACC = 64
    for i in range(4):
        a(f"s_waitcnt vmcnt({2*(3-i)})")
        for c in range(2):
            for r in range(2):
                t = 2 * c + r
                cin = "0" if i == 0 else vr(ACC + 16 * t, 16)
                a(f"v_mfma_f32_32x32x16_bf16 {vr(ACC+16*t,16)}, {ar(8*i+4*c,4)}, {vr(8+8*i+4*r,4)}, {cin}")
    for i in range(8):
        ld(a, ar(4 * i, 4), 50, 15 + i, 33)
    reduce8(a, ACC, 128)
    for q in range(4):
        a(f"v_accvgpr_read_b32 v{136+q}, a{32+q}")
    for q in range(4):
        a(f"v_lshlrev_b32 v{140}, 16, v{136+q}")
        a(f"v_and_b32 v{141}, 0xffff0000, v{136+q}")
        a(f"v_add_f32 v{128+2*q}, v{128+2*q}, v140")
        a(f"v_add_f32 v{129+2*q}, v{129+2*q}, v141")
    for q in range(4):
        a(f"v_cvt_pk_bf16_f32 v{136+q}, v{128+2*q}, v{129+2*q}")
    a(f"s_add_u32 s23, s42, {X1F:#x}")
    a(f"buffer_store_dwordx4 v[136:139], v2, s[8:11], s23 offen {SC}")
    for q in range(4):
        a(f"v_accvgpr_write_b32 a{32+q}, v{136+q}")
    a.stamp(5)
    publish(a, EP + 2, f"{T}_p2")
    for i in range(9):
        ld(a, vr(64 + 4 * i, 4), 50, 23 + i, 33)
    a("v_lshlrev_b32 v7, 4, v4")
    a("s_lshl_b32 s27, s51, 7")
    a(f"s_add_u32 s27, s27, {CS1:#x}")
    for q in range(4):
        a(f"buffer_load_dwordx4 {vr(100+4*q,4)}, v7, s[8:11], s27 offen offset:{32*q}")
    a(f"s_add_u32 s20, s53, {X1F:#x}")
    a("s_add_u32 s21, s20, 32768")
    wait_flag(a, EP + 2, f"{T}_w2")
    a.stamp(6)
    for i in range(4):
        ld(a, vr(32 + 4 * i, 4), 20, i, 33, SC)
    for i in range(4):
        ld(a, vr(48 + 4 * i, 4), 21, i, 33, SC)
    STAT = 65536
    a("s_lshl_b32 s21, s3, 12")
    a("v_add_u32 v5, s21, v2")
    a("s_mov_b32 s28, 0x3f803f80")
    for r in range(8):
        a(f"v_mov_b32 v{8+r}, 0")
    for rr in range(2):
        a(f"s_waitcnt vmcnt({4*(1-rr)})")
        for i in range(4):
            a(f"ds_write_b128 v5, {vr(32+16*rr+4*i,4)} offset:{32768*rr+1024*i}")
        for i in range(16):
            x = 32 + 16 * rr + i
            k = 4 * (i % 2)
            a(f"v_dot2_f32_bf16 v{8+k+2*rr}, v{x}, s28, v{8+k+2*rr}")
            a(f"v_dot2_f32_bf16 v{9+k+2*rr}, v{x}, v{x}, v{9+k+2*rr}")
    a("s_lshl_b32 s21, s3, 10")
    a(f"s_add_u32 s21, s21, {STAT}")
    a("v_add_u32 v5, s21, v2")
    a.nop(2)
    for r in range(4):
        a(f"v_add_f32 v{8+r}, v{8+r}, v{12+r}")
    a("ds_write_b128 v5, v[8:11]")
    a("s_waitcnt lgkmcnt(0)")
    a("s_barrier")
    a.stamp(7)
    a("s_lshl_b32 s32, s5, 1")
    a("s_mul_i32 s54, s32, 112")
    a("s_mul_i32 s33, s3, 14")
    a("s_add_u32 s54, s54, s33")
    a("s_lshl_b32 s54, s54, 10")
    a(f"s_add_u32 s54, s54, {W2F:#x}")
    a(f"s_add_u32 s55, s54, {112*1024}")
    a("s_cmp_eq_u32 s3, 7")
    a(f"s_cbranch_scc1 {T}_cskip")
    CACC = 116

    def w1reg(i):
        if i < 15:
            return ar(36 + 4 * i, 4)
        if i < 23:
            return ar(4 * (i - 15), 4)
        return vr(64 + 4 * (i - 23), 4)

    CR = 6

    def rd(i):
        b = 8 + 8 * (i % CR)
        a(f"ds_read_b128 {vr(b,4)}, v2 offset:{i*1024}")
        a(f"ds_read_b128 {vr(b+4,4)}, v2 offset:{32768+i*1024}")
    def w2reg(j):
        if j < 23:
            return w1reg(j)
        return vr(136 + 4 * (j - 23), 4)
    for i in range(CR - 1):
        rd(i)
    for i in range(32):
        if i + CR - 1 < 32:
            rd(i + CR - 1)
        pend = min(32, i + CR) - i - 1
        a(f"s_waitcnt lgkmcnt({2*pend})")
        b = 8 + 8 * (i % CR)
        for r in range(2):
            cin = "0" if i == 0 else vr(CACC + 16 * r, 16)
            a(f"v_mfma_f32_32x32x16_bf16 {vr(CACC+16*r,16)}, {w1reg(i)}, {vr(b+4*r,4)}, {cin}")
        if 1 <= i <= 23:
            j = i - 1
            ld(a, w2reg(j), 54 + (j & 1), j >> 1, 33)
    a(f"s_branch {T}_cepi")
    a(f"{T}_cskip:")
    for j in range(23):
        ld(a, w2reg(j), 54 + (j & 1), j >> 1, 33)
    a(f"{T}_cepi:")
    a.stamp(8)
    a("s_cmp_eq_u32 s3, 7")
    a(f"s_cbranch_scc1 {T}_cdone")
    a(f"v_add_u32 v5, {STAT}, v2")
    for w in range(8):
        a(f"ds_read_b128 {vr(32+4*w,4)}, v5 offset:{1024*w}")
    a("s_waitcnt lgkmcnt(0)")
    for w in range(1, 8):
        for r in range(4):
            a(f"v_add_f32 v{32+r}, v{32+r}, v{32+4*w+r}")
    for r in range(4):
        half_sum(a, 32 + r, 36)
    for r in range(2):
        m, x2 = 32 + 2 * r, 33 + 2 * r
        a(f"v_mul_f32 v{m}, {f2u(1.0/512):#x}, v{m}")
        a(f"v_mul_f32 v{x2}, {f2u(1.0/512):#x}, v{x2}")
        a(f"v_fma_f32 v{x2}, -v{m}, v{m}, v{x2}")
        a(f"v_max_f32 v{x2}, 0, v{x2}")
        a(f"v_add_f32 v{x2}, {f2u(EPS):#x}, v{x2}")
        a(f"v_rsq_f32 v{8+2*r}, v{x2}")
        a.nop(1)
        a(f"v_mul_f32 v{9+2*r}, v{m}, v{8+2*r}")
        a(f"v_sub_f32 v{9+2*r}, 0, v{9+2*r}")
    for rr in range(2):
        for r in range(16):
            a(f"v_mul_f32 v{40+r}, v{9+2*rr}, v{100+r}")
            a(f"v_fma_f32 v{CACC+16*rr+r}, v{CACC+16*rr+r}, v{8+2*rr}, v{40+r}")
        for q in range(8):
            a(f"v_cvt_pk_bf16_f32 v{16+8*rr+q}, v{CACC+16*rr+2*q}, v{CACC+16*rr+2*q+1}")
        for q in range(8):
            a(f"v_pk_max_i16 v{16+8*rr+q}, v{16+8*rr+q}, 0")
    a("s_lshl_b32 s26, s4, 1")
    a("s_mul_i32 s26, s26, 112")
    a("s_lshl_b32 s27, s51, 1")
    a("s_add_u32 s26, s26, s27")
    a("s_lshl_b32 s26, s26, 10")
    a(f"s_add_u32 s26, s26, {HF:#x}")
    a(f"s_add_u32 s27, s26, {112*1024}")
    a(f"buffer_store_dwordx4 v[16:19], v2, s[8:11], s26 offen {SC}")
    a(f"buffer_store_dwordx4 v[20:23], v2, s[8:11], s26 offen offset:1024 {SC}")
    a(f"buffer_store_dwordx4 v[24:27], v2, s[8:11], s27 offen {SC}")
    a(f"buffer_store_dwordx4 v[28:31], v2, s[8:11], s27 offen offset:1024 {SC}")
    a(f"{T}_cdone:")
    a.stamp(9)
    publish(a, EP + 3, f"{T}_p3")
    for j in range(23, 28):
        ld(a, w2reg(j), 54 + (j & 1), j >> 1, 33)
    a("s_lshl_b32 s20, s4, 1")
    a("s_mul_i32 s20, s20, 112")
    a("s_mul_i32 s21, s3, 14")
    a("s_add_u32 s20, s20, s21")
    a("s_lshl_b32 s20, s20, 10")
    a(f"s_add_u32 s20, s20, {HF:#x}")
    a(f"s_add_u32 s21, s20, {112*1024}")
    wait_flag(a, EP + 3, f"{T}_w3")
    a.stamp(10)
    RING = 8
    DACC = 72

    def hld(i):
        b = 8 + 8 * (i % RING)
        ld(a, vr(b, 4), 20, i, 33, SC)
        ld(a, vr(b + 4, 4), 21, i, 33, SC)
    for i in range(RING):
        hld(i)
    def qreg(j):
        return w1reg(j)
    qpf = []
    if not last:
        a(f"s_add_u32 s48, s48, {(WQF - WOF) & 0xffffffff:#x}")
        a("s_add_u32 s49, s48, 32768")
        a("s_lshl_b32 s56, s3, 12")
        a(f"s_add_u32 s56, s56, {WKVF:#x}")
        a("v_lshlrev_b32 v156, 4, v4")
        a("v_lshlrev_b32 v157, 2, v3")
        a("s_lshl_b32 s57, s46, 7")
        a("s_lshl_b32 s33, s47, 6")
        a("s_add_u32 s57, s57, s33")
        a(f"s_add_u32 s57, s57, {CSQ:#x}")
        a(f"s_mov_b32 s58, {CSKV:#x}")
        for i in range(4):
            qpf.append(lambda i=i: ld(a, qreg(2 * i), 48, i, 33))
            qpf.append(lambda i=i: ld(a, qreg(2 * i + 1), 49, i, 33))
        for i in range(4):
            qpf.append(lambda i=i: ld(a, qreg(8 + i), 56, i, 33))
        for q in range(2):
            qpf.append(lambda q=q: a(f"buffer_load_dwordx4 {qreg(12+q)}, v156, s[8:11], s57 offen offset:{32*q}"))
        for q in range(2):
            qpf.append(lambda q=q: a(f"buffer_load_dwordx4 {qreg(14+q)}, v156, s[8:11], s58 offen offset:{32*q}"))
        qpf.append(lambda: a("buffer_load_dword a4, v157, s[8:11], s58 offen"))
    issued = 2 * RING
    order = [('h', i) for i in range(RING)]
    for i in range(14):
        pos = order.index(('h', i))
        after = sum(2 if k == 'h' else 1 for (k, _) in order[pos + 1:])
        a(f"s_waitcnt vmcnt({after})")
        b = 8 + 8 * (i % RING)
        for c in range(2):
            for r in range(2):
                t = 2 * c + r
                cin = "0" if i == 0 else vr(DACC + 16 * t, 16)
                a(f"v_mfma_f32_32x32x16_bf16 {vr(DACC+16*t,16)}, {w2reg(2*i+c)}, {vr(b+4*r,4)}, {cin}")
        if i + RING < 14:
            hld(i + RING)
            order.append(('h', i + RING))
        elif qpf:
            for _ in range(3):
                k = sum(1 for (kk, _) in order if kk == 'q')
                if qpf and k < 2 * i:
                    qpf.pop(0)()
                    order.append(('q', k))
    a.stamp(11)
    assert not qpf
    reduce8(a, DACC, 8)
    for q in range(4):
        a(f"v_accvgpr_read_b32 v{16+q}, a{32+q}")
    for q in range(4):
        a(f"v_lshlrev_b32 v20, 16, v{16+q}")
        a(f"v_and_b32 v21, 0xffff0000, v{16+q}")
        a(f"v_add_f32 v{8+2*q}, v{8+2*q}, v20")
        a(f"v_add_f32 v{9+2*q}, v{9+2*q}, v21")
    for q in range(4):
        a(f"v_cvt_pk_bf16_f32 v{16+q}, v{8+2*q}, v{9+2*q}")
    if last:
        a.nop(2)
        a("v_permlane32_swap_b32 v16, v18")
        a("v_permlane32_swap_b32 v17, v19")
        a("v_lshlrev_b32 v5, 10, v3")
        a("v_lshl_add_u32 v5, v4, 4, v5")
        a("s_lshl_b32 s31, s45, 15")
        a("s_lshl_b32 s32, s46, 6")
        a("s_add_u32 s31, s31, s32")
        a("s_lshl_b32 s32, s47, 5")
        a("s_add_u32 s31, s31, s32")
        a("buffer_store_dwordx4 v[16:19], v5, s[16:19], s31 offen")
        a.stamp(12)
    else:
        XN, QN, KVN, KNN = XFL[1], QFL[1], KVFL[1], KNL[1]
        a(f"s_add_u32 s23, s42, {XN:#x}")
        a(f"buffer_store_dwordx4 v[16:19], v2, s[8:11], s23 offen {SC}")
        a.stamp(12)
        publish(a, EP + 4, f"{T}_p4")
        a(f"s_add_u32 s20, s53, {XN:#x}")
        a("s_add_u32 s21, s20, 32768")
        a("s_mov_b32 s28, 0x3f803f80")
        wait_flag(a, EP + 4, f"{T}_w4")
        a.stamp(13)
        for i in range(4):
            ld(a, vr(8 + 8 * i, 4), 20, i, 33, SC)
            ld(a, vr(12 + 8 * i, 4), 21, i, 33, SC)
        for r in range(8):
            a(f"v_mov_b32 v{40+r}, 0")
        ACC = 64
        for i in range(4):
            a(f"s_waitcnt vmcnt({2*(3-i)})")
            for c in range(2):
                for r in range(2):
                    t = 2 * c + r
                    cin = "0" if i == 0 else vr(ACC + 16 * t, 16)
                    a(f"v_mfma_f32_32x32x16_bf16 {vr(ACC+16*t,16)}, {qreg(2*i+c)}, {vr(8+8*i+4*r,4)}, {cin}")
                    for q in range(4):
                        x = 8 + 8 * i + 4 * r + q
                        k = 40 + 4 * (q % 2) + 2 * r + c
                        if c == 0:
                            a(f"v_dot2_f32_bf16 v{k}, v{x}, s28, v{k}")
                        else:
                            a(f"v_dot2_f32_bf16 v{k}, v{x}, v{x}, v{k}")
        a("s_lshl_b32 s32, s3, 11")
        a(f"s_add_u32 s32, s32, {KVS}")
        a("v_add_u32 v7, s32, v2")
        a("s_cmp_ge_u32 s5, 6")
        a(f"s_cbranch_scc1 {T}_kvdone")
        for task in range(6):
            if task < 5:
                a(f"s_cmp_lg_u32 s5, {task}")
                a(f"s_cbranch_scc1 {T}_kvt{task+1}")
            kind = 'K' if task < 2 else 'V'
            r = task if task < 2 else (task - 2) >> 1
            u = 0 if task < 2 else (task & 1)
            for i in range(4):
                cin = "0" if i == 0 else vr(128, 16)
                if kind == 'K':
                    a(f"v_mfma_f32_32x32x16_bf16 {vr(128,16)}, {qreg(8+i)}, {vr(8+8*i+4*r,4)}, {cin}")
                else:
                    a(f"v_mfma_f32_32x32x16_bf16 {vr(128,16)}, {vr(8+8*i+4*r,4)}, {qreg(8+i)}, {cin}")
            a.nop(16)
            a(f"ds_write_b128 v7, {vr(128+8*u,4)}")
            a(f"ds_write_b128 v7, {vr(132+8*u,4)} offset:1024")
            if task < 5:
                a(f"s_branch {T}_kvdone")
                a(f"{T}_kvt{task+1}:")
        a(f"{T}_kvdone:")
        a("s_lshl_b32 s32, s3, 10")
        a(f"s_add_u32 s32, s32, {STATQ}")
        a("v_add_u32 v7, s32, v2")
        for r in range(4):
            a(f"v_add_f32 v{40+r}, v{40+r}, v{44+r}")
        a("ds_write_b128 v7, v[40:43]")
        reduce8(a, ACC, 8)
        a.stamp(14)
        qkv_tail(a, T, end, QN, KVN, KNN,
                 lambda: [a(f"v_accvgpr_read_b32 v{16+r}, a{84+r}") for r in range(8)],
                 lambda: [a(f"v_accvgpr_read_b32 v{16+r}, a{92+r if r < 4 else r-4}") for r in range(8)],
                 lambda: a("v_accvgpr_read_b32 v47, a4"))
    a(f"{end}:")
    a.stamp_flush(16)
    a(f"{end}x:")
    a("s_endpgm")
    a.desc(name, 160, agpr=96)
    return SCR + 8 * 2304


def tr_addr(a, dst, RS, t1, t2):
    a(f"v_lshrrev_b32 v{t1}, 5, v1")
    a(f"v_lshlrev_b32 v{t1}, 2, v{t1}")
    a(f"v_bfe_u32 v{t2}, v1, 2, 2")
    a(f"v_add_u32 v{t1}, v{t1}, v{t2}")
    a(f"v_mul_u32_u24 v{dst}, {RS}, v{t1}")
    a(f"v_bfe_u32 v{t1}, v1, 4, 1")
    a(f"v_lshlrev_b32 v{t1}, 5, v{t1}")
    a(f"v_and_b32 v{t2}, 3, v1")
    a(f"v_lshlrev_b32 v{t2}, 3, v{t2}")
    a(f"v_add3_u32 v{dst}, v{dst}, v{t1}, v{t2}")


def gen_K0(a):
    name = "k0_kernel"
    T = "K0"
    a.begin(name)
    end = f"{name}_end"
    a("s_cmp_ge_u32 s2, 256")
    a(f"s_cbranch_scc1 {end}x")
    a.stamp(0)
    a("s_load_dwordx16 s[16:31], s[0:1], 0")
    a("s_load_dwordx2 s[6:7], s[0:1], 80")
    a("v_and_b32 v1, 63, v0")
    a("v_lshrrev_b32 v2, 6, v0")
    a("v_and_b32 v3, 31, v1")
    a("v_readfirstlane_b32 s60, v2")
    a("v_lshrrev_b32 v4, 5, v1")
    a("v_lshlrev_b32 v2, 4, v1")
    a("s_and_b32 s4, s2, 31")
    a("s_lshr_b32 s5, s2, 5")
    a("s_and_b32 s3, s60, 7")
    a("s_waitcnt lgkmcnt(0)")
    a.srd(8, 6, G.WS_USED)
    a.srd(52, 20, 512 * 16 * 2)
    a.srd(56, 22, 512 * 16 * 2)
    a("s_mov_b32 s61, 0x3f803f80")
    a("s_cmp_ge_u32 s60, 8")
    a("s_cbranch_scc1 K0_prep")
    a.stamp(1)
    a.srd(12, 16, 2048 * 512 * 2)
    a.srd(48, 18, 512 * 512 * 2)
    piece_sgprs(a)
    a("v_lshrrev_b32 v6, 3, v1")
    a("v_lshlrev_b32 v6, 10, v6")
    a("v_and_b32 v7, 7, v1")
    a("v_lshl_add_u32 v6, v7, 4, v6")
    a("s_lshl_b32 s20, s4, 16")
    a("s_lshl_b32 s22, s3, 7")
    a("s_add_u32 s20, s20, s22")
    for k in range(8):
        a(f"s_add_u32 s21, s20, {8192*k}")
        a(f"buffer_load_dwordx4 {vr(64+4*k,4)}, v6, s[12:15], s21 offen")
    a("v_lshrrev_b32 v7, 2, v1")
    a("v_lshlrev_b32 v7, 5, v7")
    a("v_and_b32 v5, 1, v1")
    a("v_lshl_add_u32 v7, v5, 4, v7")
    a("v_and_b32 v5, 2, v1")
    a("v_cmp_eq_u32 vcc, 0, v5")
    a("s_lshl_b32 s20, s3, 11")
    a("s_and_saveexec_b64 s[38:39], vcc")
    for i in range(4):
        a(f"buffer_load_dwordx4 {vr(96+4*i,4)}, v7, s[52:55], s20 offen offset:{512*i}")
    a("s_andn2_b64 exec, s[38:39], exec")
    for i in range(4):
        a(f"buffer_load_dwordx4 {vr(96+4*i,4)}, v7, s[56:59], s20 offen offset:{512*i}")
    a("s_mov_b64 exec, s[38:39]")
    a("s_lshl_b32 s22, s3, 16")
    a("s_lshl_b32 s23, s5, 7")
    a("s_add_u32 s22, s22, s23")
    a("s_lshl_b32 s23, s3, 13")
    for i in range(8):
        a(f"s_add_u32 m0, s23, {1024*i}")
        a(f"s_add_u32 s24, s22, {8192*i}")
        a("buffer_load_dwordx4 v6, s[48:51], s24 offen lds")
    a.stamp(2)
    tr_addr(a, 56, 128, 5, 6)
    a("v_add_u32 v56, s23, v56")
    tr_addr(a, 57, 64, 5, 6)
    a("s_lshl_b32 s21, s3, 12")
    a("s_add_u32 s21, s21, 65536")
    a("v_add_u32 v57, s21, v57")
    a("v_lshrrev_b32 v5, 3, v1")
    a("v_and_b32 v6, 7, v1")
    a("v_xor_b32 v6, v6, v5")
    a("v_lshlrev_b32 v6, 4, v6")
    a("v_lshl_add_u32 v112, v5, 7, v6")
    a("v_add_u32 v112, s21, v112")
    a("v_and_b32 v5, 7, v3")
    a("v_lshlrev_b32 v5, 4, v5")
    a("v_lshl_add_u32 v5, v3, 7, v5")
    a("v_lshl_add_u32 v5, v4, 3, v5")
    a("v_add_u32 v113, s21, v5")
    a("v_add_u32 v114, s21, v2")
    for c in range(8):
        a(f"v_xor_b32 v{116+c}, {c<<4}, v113")
    for r in range(6):
        a(f"v_mov_b32 v{58+r}, 0")
    a("v_mov_b32 v7, 0")
    for r in range(2):
        a(f"s_waitcnt vmcnt({16+4*(1-r)})")
        if r == 0:
            a.stamp(3)
        for j in range(4):
            a(f"ds_write_b128 v112, {vr(64+16*r+4*j,4)} offset:{1024*j}")
        a("s_waitcnt lgkmcnt(0)")
        for i in range(4):
            b = 8 + 8 * i + 4 * r
            a(f"ds_read_b64 {vr(b,2)}, v{116+2*i}")
            a(f"ds_read_b64 {vr(b+2,2)}, v{117+2*i}")
        a("s_waitcnt lgkmcnt(0)")
    a("s_waitcnt vmcnt(8)")
    for i in range(4):
        a(f"ds_write_b128 v114, {vr(96+4*i,4)} offset:{1024*i}")
    a("s_waitcnt lgkmcnt(0)")
    for i in range(4):
        a(f"ds_read_b64_tr_b16 {vr(40+4*i,2)}, v57 offset:{16*i*64}")
        a(f"ds_read_b64_tr_b16 {vr(42+4*i,2)}, v57 offset:{(16*i+8)*64}")
    a("s_waitcnt lgkmcnt(0)")
    for r in range(16):
        a(f"v_dot2_f32_bf16 v7, v{40+r}, s61, v7")
    a("s_lshl_b32 s32, s3, 11")
    a(f"s_add_u32 s32, s32, {KVS}")
    a("v_add_u32 v6, s32, v2")
    a("s_cmp_ge_u32 s5, 6")
    a(f"s_cbranch_scc1 {T}_kvdone")
    for task in range(6):
        if task < 5:
            a(f"s_cmp_lg_u32 s5, {task}")
            a(f"s_cbranch_scc1 {T}_kvt{task+1}")
        kind = 'K' if task < 2 else 'V'
        r = task if task < 2 else (task - 2) >> 1
        u = 0 if task < 2 else (task & 1)
        for i in range(4):
            cin = "0" if i == 0 else vr(64, 16)
            if kind == 'K':
                a(f"v_mfma_f32_32x32x16_bf16 {vr(64,16)}, {vr(40+4*i,4)}, {vr(8+8*i+4*r,4)}, {cin}")
            else:
                a(f"v_mfma_f32_32x32x16_bf16 {vr(64,16)}, {vr(8+8*i+4*r,4)}, {vr(40+4*i,4)}, {cin}")
        a.nop(16)
        a(f"ds_write_b128 v6, {vr(64+8*u,4)}")
        a(f"ds_write_b128 v6, {vr(68+8*u,4)} offset:1024")
        if task < 5:
            a(f"s_branch {T}_kvdone")
            a(f"{T}_kvt{task+1}:")
    a(f"{T}_kvdone:")
    half_sum(a, 7, 5)
    a("s_mul_i32 s32, s3, 384")
    a(f"s_add_u32 s32, s32, {CSP}")
    a("v_lshlrev_b32 v6, 2, v3")
    a("v_add_u32 v6, s32, v6")
    a("ds_write_b32 v6, v7 offset:256")
    a("s_waitcnt vmcnt(0)")
    a.stamp(4)

    def wrd(i):
        b = 40 + 8 * (i % 2)
        for c in range(2):
            a(f"ds_read_b64_tr_b16 {vr(b+4*c,2)}, v56 offset:{16*i*128+64*c}")
            a(f"ds_read_b64_tr_b16 {vr(b+4*c+2,2)}, v56 offset:{(16*i+8)*128+64*c}")
    wrd(0)
    ACC = 64
    for i in range(4):
        if i < 3:
            wrd(i + 1)
        a(f"s_waitcnt lgkmcnt({4 if i < 3 else 0})")
        b = 40 + 8 * (i % 2)
        for c in range(2):
            for r in range(2):
                t = 2 * c + r
                cin = "0" if i == 0 else vr(ACC + 16 * t, 16)
                a(f"v_mfma_f32_32x32x16_bf16 {vr(ACC+16*t,16)}, {vr(b+4*c,4)}, {vr(8+8*i+4*r,4)}, {cin}")
                for q in range(4):
                    x = 8 + 8 * i + 4 * r + q
                    k = 58 + 2 * r + c
                    if c == 0:
                        a(f"v_dot2_f32_bf16 v{k}, v{x}, s61, v{k}")
                    else:
                        a(f"v_dot2_f32_bf16 v{k}, v{x}, v{x}, v{k}")
                if r == 0:
                    for q in range(4):
                        a(f"v_dot2_f32_bf16 v{62+c}, v{b+4*c+q}, s61, v{62+c}")
    a("s_lshl_b32 s32, s3, 10")
    a(f"s_add_u32 s32, s32, {STATQ}")
    a("v_add_u32 v7, s32, v2")
    a.nop(2)
    a("ds_write_b128 v7, v[58:61]")
    half_sum(a, 62, 5)
    half_sum(a, 63, 5)
    a("ds_write_b32 v6, v62")
    a("ds_write_b32 v6, v63 offset:128")
    a.stamp(5)
    reduce8(a, ACC, 8, pre_barrier=True)
    a.stamp(6)

    def cs8(tile_off_expr):
        for s in range(8):
            for q in range(2):
                a(f"ds_read_b128 {vr(64+8*s+4*q,4)}, v46 offset:{s*384+32*q}")
        a("s_waitcnt lgkmcnt(0)")
        for r in range(8):
            a(f"v_add_f32 v{16+r}, v{64+r}, v{72+r}")
        for s in range(2, 8):
            for r in range(8):
                a(f"v_add_f32 v{16+r}, v{16+r}, v{64+8*s+r}")

    def get_csq():
        a("s_lshl_b32 s32, s44, 7")
        a("s_lshl_b32 s33, s47, 6")
        a("s_add_u32 s32, s32, s33")
        a(f"s_add_u32 s32, s32, {CSP}")
        a("v_lshlrev_b32 v46, 4, v4")
        a("v_add_u32 v46, s32, v46")
        cs8(None)

    def get_csk():
        a("v_lshlrev_b32 v46, 4, v4")
        a(f"v_add_u32 v46, {CSP+256}, v46")
        for s in range(6):
            for q in range(2):
                a(f"ds_read_b128 {vr(72+8*s+4*q,4)}, v46 offset:{s*384+32*q}")
        for s in range(6, 8):
            for q in range(2):
                a(f"ds_read_b128 {vr(24+8*(s-6)+4*q,4)}, v46 offset:{s*384+32*q}")
        a("s_waitcnt lgkmcnt(0)")
        for r in range(8):
            a(f"v_add_f32 v{16+r}, v{24+r}, v{32+r}")
        for s in range(6):
            for r in range(8):
                a(f"v_add_f32 v{16+r}, v{16+r}, v{72+8*s+r}")

    def get_csv():
        a("v_lshlrev_b32 v46, 2, v3")
        a(f"v_add_u32 v46, {CSP+256}, v46")
        for s in range(8):
            a(f"ds_read_b32 v{72+s}, v46 offset:{s*384}")
        a("s_waitcnt lgkmcnt(0)")
        a("v_add_f32 v47, v72, v73")
        for s in range(2, 8):
            a(f"v_add_f32 v47, v47, v{72+s}")
    qkv_tail(a, T, end, QFL[0], KVFL[0], KNL[0], get_csq, get_csk, get_csv)
    a(f"s_branch {end}")
    a("K0_prep:")
    if os.environ.get('K0X', '') == 'noprep':
        a(f"s_branch {end}x")
    if os.environ.get('K0X', '') == 'prio':
        a("s_setprio 3")
    a("s_cmp_ge_u32 s2, 154")
    a(f"s_cbranch_scc1 {end}x")
    a("s_cmp_lg_u32 s2, 153")
    a("s_cbranch_scc1 K0_pw")
    a("s_lshl_b32 s32, s3, 10")
    a(f"s_add_u32 s32, s32, {FLAGS:#x}")
    for r in range(4):
        a(f"v_mov_b32 v{16+r}, 0")
    a("buffer_store_dwordx4 v[16:19], v2, s[8:11], s32 offen")
    a(f"s_branch {end}x")
    a("K0_pw:")
    a("s_lshl_b32 s62, s3, 12")
    a("s_add_u32 s62, s62, 98304")
    a("s_mov_b32 s46, 0")
    a("s_mov_b32 s36, 32")
    a("s_cmp_eq_u32 s2, 152")
    a("s_cbranch_scc1 K0_pkv")
    a("s_cmp_ge_u32 s2, 88")
    a("s_cbranch_scc1 K0_pw2")
    a("s_cmp_ge_u32 s2, 32")
    a("s_cbranch_scc1 K0_pw1")
    a("s_cmp_ge_u32 s2, 16")
    a("s_cbranch_scc1 K0_pwo")
    a.srd(40, 18, 512 * 512 * 2)
    a("s_mov_b32 s44, 1024")
    a("s_mov_b32 s45, s2")
    a("s_lshl_b32 s47, s45, 15")
    a(f"s_add_u32 s47, s47, {WQF:#x}")
    a("s_lshl_b32 s49, s45, 7")
    a(f"s_add_u32 s49, s49, {CSQ:#x}")
    a("s_branch K0_pgo")
    a("K0_pwo:")
    a.srd(40, 24, 512 * 512 * 2)
    a("s_mov_b32 s44, 1024")
    a("s_sub_u32 s45, s2, 16")
    a("s_lshl_b32 s47, s45, 15")
    a(f"s_add_u32 s47, s47, {WOF:#x}")
    a("s_mov_b32 s49, 0")
    a("s_branch K0_pgo")
    a("K0_pw1:")
    a.srd(40, 28, 512 * 1792 * 2)
    a("s_mov_b32 s44, 3584")
    a("s_sub_u32 s45, s2, 32")
    a("s_lshl_b32 s47, s45, 15")
    a(f"s_add_u32 s47, s47, {W1F:#x}")
    a("s_lshl_b32 s49, s45, 7")
    a(f"s_add_u32 s49, s49, {CS1:#x}")
    a("s_branch K0_pgo")
    a("K0_pw2:")
    a.srd(40, 30, 512 * 1792 * 2)
    a("s_mov_b32 s44, 1024")
    a("s_sub_u32 s45, s2, 88")
    a("s_and_b32 s46, s45, 3")
    a("s_mul_i32 s46, s46, 28")
    a("s_lshr_b32 s45, s45, 2")
    a("s_mul_i32 s47, s45, 112")
    a("s_add_u32 s47, s47, s46")
    a("s_lshl_b32 s47, s47, 10")
    a(f"s_add_u32 s47, s47, {W2F:#x}")
    a("s_mov_b32 s36, 28")
    a("s_mov_b32 s49, 0")
    a("K0_pgo:")
    a("s_lshl_b32 s50, s3, 2")
    a("s_cmp_ge_u32 s50, s36")
    a(f"s_cbranch_scc1 {end}x")
    a("v_lshrrev_b32 v5, 2, v1")
    a("v_mul_lo_u32 v5, v5, s44")
    a("v_and_b32 v6, 3, v1")
    a("v_lshl_add_u32 v5, v6, 4, v5")
    a("s_add_u32 s51, s46, s50")
    a("s_lshl_b32 s51, s51, 4")
    a("s_mul_i32 s51, s51, s44")
    a("s_lshl_b32 s32, s45, 6")
    a("s_add_u32 s51, s51, s32")
    a("s_lshl_b32 s33, s44, 4")
    for i in range(4):
        a(f"s_add_u32 m0, s62, {1024*i}")
        a("s_nop 0")
        a("buffer_load_dwordx4 v5, s[40:43], s51 offen lds")
        a("s_add_u32 s51, s51, s33")
    a("s_branch K0_ptr")
    a("K0_pkv:")
    a("s_lshl_b32 s50, s3, 2")
    a("v_lshrrev_b32 v7, 2, v1")
    a("v_lshlrev_b32 v7, 5, v7")
    a("v_and_b32 v5, 1, v1")
    a("v_lshl_add_u32 v7, v5, 4, v7")
    a("v_and_b32 v5, 2, v1")
    a("v_cmp_eq_u32 vcc, 0, v5")
    a("s_lshl_b32 s20, s3, 11")
    a("s_and_saveexec_b64 s[38:39], vcc")
    for i in range(4):
        a(f"s_add_u32 m0, s62, {1024*i}")
        a(f"s_add_u32 s22, s20, {512*i}")
        a("buffer_load_dwordx4 v7, s[52:55], s22 offen lds")
    a("s_andn2_b64 exec, s[38:39], exec")
    for i in range(4):
        a(f"s_add_u32 m0, s62, {1024*i}")
        a(f"s_add_u32 s22, s20, {512*i}")
        a("buffer_load_dwordx4 v7, s[56:59], s22 offen lds")
    a("s_mov_b64 exec, s[38:39]")
    a(f"s_mov_b32 s47, {WKVF:#x}")
    a(f"s_mov_b32 s49, {CSKV:#x}")
    a("K0_ptr:")
    tr_addr(a, 8, 64, 5, 6)
    a("v_add_u32 v8, s62, v8")
    a("s_lshl_b32 s32, s50, 10")
    a("s_add_u32 s47, s47, s32")
    a("v_mov_b32 v7, 0")
    a("s_waitcnt vmcnt(0)")
    for i in range(4):
        a(f"ds_read_b64_tr_b16 {vr(16+4*i,2)}, v8 offset:{16*i*64}")
        a(f"ds_read_b64_tr_b16 {vr(18+4*i,2)}, v8 offset:{(16*i+8)*64}")
    for i in range(4):
        a(f"s_waitcnt lgkmcnt({2*(3-i)})")
        a(f"buffer_store_dwordx4 {vr(16+4*i,4)}, v2, s[8:11], s47 offen offset:{1024*i}")
        for q in range(4):
            a(f"v_dot2_f32_bf16 v7, v{16+4*i+q}, s61, v7")
    a("s_cmp_eq_u32 s49, 0")
    a(f"s_cbranch_scc1 {end}x")
    a.nop(2)
    half_sum(a, 7, 5)
    a("s_lshl_b32 s32, s3, 7")
    a(f"s_add_u32 s32, s32, {CSP2}")
    a("v_lshlrev_b32 v6, 2, v3")
    a("v_add_u32 v5, s32, v6")
    a("ds_write_b32 v5, v7")
    a("s_waitcnt lgkmcnt(0)")
    a("s_barrier")
    a("s_cmp_lg_u32 s3, 0")
    a(f"s_cbranch_scc1 {end}x")
    a(f"v_add_u32 v5, {CSP2}, v6")
    for s in range(8):
        a(f"ds_read_b32 v{16+s}, v5 offset:{128*s}")
    a("s_waitcnt lgkmcnt(0)")
    for s in range(1, 8):
        a(f"v_add_f32 v16, v16, v{16+s}")
    a("v_cmp_gt_u32 vcc, 32, v1")
    a("s_and_saveexec_b64 s[38:39], vcc")
    a("buffer_store_dword v16, v6, s[8:11], s49 offen")
    a(f"s_branch {end}x")
    a(f"{end}:")
    a.stamp_flush(8)
    a(f"{end}x:")
    a("s_endpgm")
    a.desc(name, 128)
    return CSP2 + 1024


def gen_zero_flags(a):
    pass


def main():
    a = Asm()
    G.XF, G.QF, G.KVF = XFL[0], QFL[0], KVFL[0]
    G.FLAGS_ZERO = FLAGS
    lds_k0 = gen_K0(a)
    lds_f = gen_F(a, 0)
    gen_F(a, 1)
    hdr = ["; generated by gen/gen2.py -- fused MQA + FFN pipeline"]
    L = hdr.append
    L(f"; @launch kernel=k0_kernel grid=(256,1,1) block=(1024,1,1) lds={lds_k0}")
    L(f"; @launch kernel=f1_kernel grid=(256,1,1) block=(512,1,1) lds={lds_f}")
    L(f"; @launch kernel=f2_kernel grid=(256,1,1) block=(512,1,1) lds={lds_f}")
    out = "\n".join(hdr) + "\n"
    out += '.amdgcn_target "amdgcn-amd-amdhsa--gfx950"\n.text\n'
    out += "\n".join(a.L) + "\n"
    out += '.section .rodata,"a"\n' + "\n".join(a.kernels) + "\n"
    path = sys.argv[1] if len(sys.argv) > 1 else f"cdna_kernels/{NAME}.s"
    open(path, 'w').write(out)
    if PROFILE:
        import json
        json.dump(G.PROF_SLOT, open('prof_slots.json', 'w'))
    print("wrote", path, len(out), "bytes")


if __name__ == "__main__":
    main()
```

```python
import os
import sys
import gen as G
from gen import Asm, vr, ar, f2u, half_sum, wave32_max, prologue, frag_loads
from gen import WQF, WOF, W1F, W2F, WKVF, CSQ, CS1, CSKV, VH, VU, KVT, KVF_BYTES, QS, EPS, NAME, PROFILE

LSTRIDE = 0x2000000
XFL = [0x500000, 0x500000 + LSTRIDE]
QFL = [0x700000, 0x700000 + LSTRIDE]
OFL = [0x900000, 0x900000 + LSTRIDE]
X1FL = [0xB00000, 0xB00000 + LSTRIDE]
HFL = [0x1000000, 0x1000000 + LSTRIDE]
KVFL = [0x1800000, 0x1800000 + LSTRIDE]
KNL = [0x1880000, 0x1880000 + LSTRIDE]
FLAGS = 0x490000
G.WS_USED = 0x4400000
G.PROF = 0x4000000
G.KN = KNL[0]
SC = "sc0 sc1"
SPIN_MAX = 200000

PRIO_IT = int(os.environ.get('PRIO_IT', '7'))
WARM = int(os.environ.get('WARM', '1'))
CODEPF = int(os.environ.get('CODEPF', '1'))


def publish(a, epoch, tag):
    a("s_waitcnt vmcnt(0)")
    a("s_barrier")
    a("s_cmp_lg_u32 s3, 0")
    a(f"s_cbranch_scc1 {tag}_np")
    a(f"v_mov_b32 v5, {epoch}")
    a("v_mov_b32 v6, 0")
    a("v_cmp_eq_u32 vcc, 0, v1")
    a("s_and_saveexec_b64 s[38:39], vcc")
    a(f"buffer_store_dword v5, v6, s[8:11], s40 offen {SC}")
    a("s_mov_b64 exec, s[38:39]")
    a(f"{tag}_np:")


def wait_flag(a, epoch, tag):
    a("v_mov_b32 v6, 0")
    a("s_mov_b32 s37, 0")
    a(f"{tag}_poll:")
    a(f"buffer_load_dword v5, v6, s[8:11], s41 offen {SC}")
    a("s_waitcnt vmcnt(0)")
    a("v_readfirstlane_b32 s36, v5")
    a("s_add_u32 s37, s37, 1")
    a(f"s_cmp_ge_u32 s36, {epoch}")
    a(f"s_cbranch_scc1 {tag}_go")
    a(f"s_cmp_gt_u32 s37, {SPIN_MAX}")
    a(f"s_cbranch_scc1 {tag}_go")
    a("s_sleep 1")
    a(f"s_branch {tag}_poll")
    a(f"{tag}_go:")


def ld(a, dst, sbase, idx, stmp, flags=""):
    hi, lo = idx // 4, idx % 4
    if hi == 0:
        so = f"s{sbase}"
    else:
        a(f"s_add_u32 s{stmp}, s{sbase}, {hi*4096}")
        so = f"s{stmp}"
    a(f"buffer_load_dwordx4 {dst}, v2, s[8:11], {so} offen offset:{lo*1024} {flags}")


def reduce8(a, ACC, DST, lds_base=0, pre_barrier=False):
    a("s_lshl_b32 s32, s3, 11")
    a("v_add_u32 v5, s32, v2")
    a("v_add_u32 v6, 0x10000, v5")
    a("s_lshl_b32 s32, s3, 14")
    a("v_add_u32 v7, s32, v2")
    a.nop(12)
    if pre_barrier:
        a("s_waitcnt lgkmcnt(0)")
        a("s_barrier")
    for p in range(8):
        for q in range(2):
            off = (p % 4) * 16384 + q * 1024
            a(f"ds_write_b128 v{5 if p < 4 else 6}, {vr(ACC+8*p+4*q,4)} offset:{off}")
    a("s_waitcnt lgkmcnt(0)")
    a("s_barrier")
    for s in range(8):
        for q in range(2):
            a(f"ds_read_b128 {vr(ACC+8*s+4*q,4)}, v7 offset:{s*2048+q*1024}")
    for s in range(0, 8, 2):
        a(f"s_waitcnt lgkmcnt({12-2*s})")
        for r in range(8):
            if s == 0:
                a(f"v_add_f32 v{DST+r}, v{ACC+r}, v{ACC+8+r}")
            else:
                a(f"v_add_f32 v{ACC+8*s+r}, v{ACC+8*s+r}, v{ACC+8*s+8+r}")
                a(f"v_add_f32 v{DST+r}, v{DST+r}, v{ACC+8*s+r}")


STATQ = 131072
KVS = STATQ + 8192
STAT2 = KVS + 16384
CSP = STAT2 + 256
CSP2 = CSP + 3072


def qkv_tail(a, T, end, QN, KVN, KNN, get_csq, get_csk, get_csv):
    a("s_lshl_b32 s32, s43, 3")
    a(f"s_add_u32 s32, s32, {STATQ}")
    a("v_add_u32 v7, s32, v2")
    for s in range(8):
        a(f"ds_read_b64 {vr(40+2*s,2)}, v7 offset:{s*1024}")
    a("s_waitcnt lgkmcnt(0)")
    for s in range(1, 8):
        a(f"v_add_f32 v40, v40, v{40+2*s}")
        a(f"v_add_f32 v41, v41, v{41+2*s}")
    half_sum(a, 40, 42)
    half_sum(a, 41, 42)
    a(f"v_mul_f32 v40, {f2u(1.0/512):#x}, v40")
    a(f"v_mul_f32 v41, {f2u(1.0/512):#x}, v41")
    a("v_fma_f32 v41, -v40, v40, v41")
    a("v_max_f32 v41, 0, v41")
    a(f"v_add_f32 v41, {f2u(EPS):#x}, v41")
    a("v_rsq_f32 v41, v41")
    a.nop(1)
    a("v_mul_f32 v42, v40, v41")
    a("v_sub_f32 v42, 0, v42")
    a(f"v_mul_f32 v43, {f2u(QS):#x}, v41")
    a(f"v_mul_f32 v44, {f2u(QS):#x}, v42")
    get_csq()
    for r in range(8):
        a(f"v_mul_f32 v{16+r}, v44, v{16+r}")
        a(f"v_fma_f32 v{8+r}, v{8+r}, v43, v{16+r}")
    for q in range(4):
        a(f"v_cvt_pk_bf16_f32 v{24+q}, v{8+2*q}, v{9+2*q}")
    a(f"s_add_u32 s23, s42, {QN:#x}")
    a("buffer_store_dwordx4 v[24:27], v2, s[8:11], s23 offen")
    a("s_cmp_ge_u32 s5, 6")
    a(f"s_cbranch_scc1 {end}")
    a("s_lshr_b32 s32, s5, 2")
    a("s_cmp_eq_u32 s5, 1")
    a("s_cselect_b32 s32, 1, s32")
    a("s_lshl_b32 s32, s32, 1")
    a("s_cmp_lg_u32 s3, s32")
    a(f"s_cbranch_scc1 {end}")
    a(f"v_add_u32 v7, {KVS}, v2")
    for s in range(8):
        for q in range(2):
            a(f"ds_read_b128 {vr(64+8*s+4*q,4)}, v7 offset:{s*2048+q*1024}")
    a(f"s_mul_i32 s33, s45, {KVT}")
    a(f"s_add_u32 s33, s33, {KVN:#x}")
    a("s_waitcnt lgkmcnt(0)")
    for s in range(1, 8):
        for r in range(8):
            a(f"v_add_f32 v{64+r}, v{64+r}, v{64+8*s+r}")
    a("s_cmp_ge_u32 s5, 2")
    a(f"s_cbranch_scc1 {T}_finV")
    a("v_mov_b32 v45, 0")
    get_csk()
    for r in range(8):
        a(f"v_mul_f32 v{16+r}, v42, v{16+r}")
        a(f"v_fma_f32 v{64+r}, v{64+r}, v41, v{16+r}")
        a(f"v_fma_f32 v45, v{64+r}, v{64+r}, v45")
    for q in range(4):
        a(f"v_cvt_pk_bf16_f32 v{28+q}, v{64+2*q}, v{65+2*q}")
    a("buffer_store_dwordx4 v[28:31], v2, s[8:11], s33 offen")
    half_sum(a, 45, 46)
    wave32_max(a, 45, 46)
    a("s_lshl_b32 s32, s45, 2")
    a(f"s_add_u32 s32, s32, {KNN:#x}")
    a("v_mov_b32 v46, 0")
    a("v_cmp_eq_u32 vcc, 0, v1")
    a("s_and_saveexec_b64 s[38:39], vcc")
    a("buffer_store_dword v45, v46, s[8:11], s32 offen")
    a(f"s_branch {end}")
    a(f"{T}_finV:")
    a("v_lshlrev_b32 v7, 2, v3")
    a(f"v_add_u32 v7, {STAT2}, v7")
    a("ds_write_b32 v7, v41")
    a("ds_write_b32 v7, v42 offset:128")
    a("s_and_b32 s32, s5, 1")
    a("s_lshl_b32 s32, s32, 6")
    a(f"s_add_u32 s32, s32, {STAT2}")
    a("v_lshlrev_b32 v7, 4, v4")
    a("v_add_u32 v7, s32, v7")
    get_csv()
    a("s_waitcnt lgkmcnt(0)")
    for q in range(2):
        a(f"ds_read_b128 {vr(16+4*q,4)}, v7 offset:{32*q}")
        a(f"ds_read_b128 {vr(24+4*q,4)}, v7 offset:{128+32*q}")
    a("s_waitcnt lgkmcnt(0)")
    for r in range(8):
        a(f"v_mul_f32 v{24+r}, v47, v{24+r}")
        a(f"v_fma_f32 v{64+r}, v{64+r}, v{16+r}, v{24+r}")
    for q in range(4):
        a(f"v_cvt_pk_bf16_f32 v{32+q}, v{64+2*q}, v{65+2*q}")
    a("v_cmp_eq_u32 s[38:39], 0, v3")
    a("v_mov_b32 v45, 0x3f803f80")
    a("v_mov_b32 v46, 0")
    a("v_cndmask_b32 v45, v46, v45, s[38:39]")
    a("v_cmp_le_u32 vcc, 16, v3")
    a("v_xor_b32 v7, 16, v3")
    a("v_lshlrev_b32 v7, 4, v7")
    for q in range(4):
        a(f"v_cndmask_b32 v{32+q}, v45, v{32+q}, vcc")
    a(f"v_mul_u32_u24 v46, {VH}, v4")
    a("v_add_u32 v7, v7, v46")
    a("s_and_b32 s32, s5, 1")
    a(f"s_mul_i32 s32, s32, {VU}")
    a("s_add_u32 s33, s33, s32")
    a("v_cmp_gt_u32 s[38:39], 2, v3")
    a("s_or_b64 vcc, vcc, s[38:39]")
    a("s_and_saveexec_b64 s[38:39], vcc")
    a("buffer_store_dwordx4 v[32:35], v7, s[8:11], s33 offen offset:1024")


def piece_sgprs(a):
    a("s_lshr_b32 s32, s3, 1")
    a("s_and_b32 s43, s32, 1")
    a("s_lshr_b32 s44, s3, 2")
    a("s_lshl_b32 s45, s4, 1")
    a("s_add_u32 s45, s45, s43")
    a("s_lshl_b32 s46, s5, 1")
    a("s_add_u32 s46, s46, s44")
    a("s_lshl_b32 s42, s45, 5")
    a("s_lshl_b32 s32, s46, 1")
    a("s_add_u32 s42, s42, s32")
    a("s_and_b32 s47, s3, 1")
    a("s_add_u32 s42, s42, s47")
    a("s_lshl_b32 s42, s42, 10")


def code_srd(a, d, tag):
    a(f"s_getpc_b64 s[{d}:{d+1}]")
    a(f"{tag}_pc:")
    a(f"s_add_u32 s{d}, s{d}, f1_kernel-{tag}_pc")
    a(f"s_addc_u32 s{d+1}, s{d+1}, {'-1' if tag != 'K0' else '0'}")
    a(f"s_mov_b32 s{d+2}, code_end-f1_kernel")
    a(f"s_mov_b32 s{d+3}, 0x00020000")


def gen_F(a, L):
    last = (L == 1)
    name = f"f{L+1}_kernel"
    T = f"F{L}"
    a.begin(name)
    end = f"{name}_end"
    prologue(a, end, out_ptr=True, out_off=(64 if last else 0))
    a.srd(16, 12, 2048 * 512 * 2)
    XF, QF, OF, X1F, HF, KVF, KN = XFL[L], QFL[L], OFL[L], X1FL[L], HFL[L], KVFL[L], KNL[L]
    EP = 4 * L
    a("s_lshl_b32 s40, s4, 8")
    a(f"s_add_u32 s40, s40, {FLAGS:#x}")
    a("s_lshl_b32 s41, s3, 2")
    a("s_add_u32 s41, s41, s40")
    a("s_lshl_b32 s32, s5, 2")
    a("s_add_u32 s40, s40, s32")
    piece_sgprs(a)
    SCR = KVF_BYTES
    Q = (8, 12)
    C = 16
    O = (32, 48)
    S = (64, 80)
    P = (96, 104)
    E = 112
    KB = (128, 132)
    VB = (136, 144)
    a("s_and_b32 s20, s3, 3")
    a("s_lshr_b32 s30, s3, 2")
    a("s_and_b32 s21, s20, 1")
    a("s_lshl_b32 s21, s21, 1")
    a("s_lshl_b32 s22, s5, 2")
    a("s_add_u32 s21, s21, s22")
    a("s_lshr_b32 s22, s20, 1")
    a("s_lshl_b32 s23, s4, 1")
    a("s_add_u32 s22, s22, s23")
    a("s_lshl_b32 s22, s22, 5")
    a("s_add_u32 s22, s22, s21")
    a("s_add_u32 s23, s22, s30")
    a("s_xor_b32 s24, s30, 1")
    a("s_add_u32 s24, s22, s24")
    a("s_lshl_b32 s22, s23, 10")
    a("s_lshl_b32 s24, s24, 10")
    a(f"s_add_u32 s23, s22, {QF:#x}")
    a(f"s_add_u32 s24, s24, {QF:#x}")
    a(f"buffer_load_dwordx4 {vr(Q[0],4)}, v2, s[8:11], s23 offen")
    a(f"buffer_load_dwordx4 {vr(Q[1],4)}, v2, s[8:11], s24 offen")
    a("v_lshlrev_b32 v5, 2, v1")
    a(f"s_mov_b32 s23, {KN:#x}")
    a("buffer_load_dword v7, v5, s[8:11], s23 offen")
    a("s_lshr_b32 s24, s3, 1")
    a("s_lshl_b32 s24, s24, 10")
    a("s_and_b32 s25, s3, 1")
    a(f"s_mul_i32 s25, s25, {32*KVT}")
    a("s_add_u32 s34, s24, s25")
    a(f"s_add_u32 s35, s34, {KVF:#x}")

    def dma():
        a("s_mov_b32 m0, s34")
        a("s_add_u32 s34, s34, 4096")
        a("buffer_load_dwordx4 v2, s[8:11], s35 offen lds")
        a("s_add_u32 s35, s35, 4096")
    for i in range(6):
        dma()
    a("v_min_u32 v6, 17, v3")
    a("v_mov_b32 v5, 16")
    a("v_cmp_eq_u32 vcc, 20, v3")
    a(f"s_mul_i32 s25, s30, {32*KVT}")
    a.nop(1)
    a("v_cndmask_b32 v6, v6, v5, vcc")
    a("v_lshlrev_b32 v6, 4, v6")
    a(f"v_mul_u32_u24 v5, {VH}, v4")
    a("v_add3_u32 v158, v6, v5, 64")
    a("v_add_u32 v158, 960, v158")
    a("v_add_u32 v156, s25, v2")
    a("v_add_u32 v157, s25, v158")
    a("s_waitcnt vmcnt(6)")
    a("v_mov_b32 v5, 0")
    a("v_mov_b32 v6, 0")
    for q in range(4):
        a(f"v_dot2_f32_bf16 v5, v{Q[0]+q}, v{Q[0]+q}, v5")
        a(f"v_dot2_f32_bf16 v6, v{Q[1]+q}, v{Q[1]+q}, v6")
    a.nop(3)
    half_sum(a, 5, 154)
    half_sum(a, 6, 154)
    a("v_max_f32 v5, v5, v6")
    for off in (0x041F, 0x081F, 0x101F, 0x201F, 0x401F):
        a(f"ds_swizzle_b32 v6, v5 offset:{off:#x}")
        a(f"ds_swizzle_b32 v154, v7 offset:{off:#x}")
        a("s_waitcnt lgkmcnt(0)")
        a("v_max_f32 v5, v5, v6")
        a("v_max_f32 v7, v7, v154")
    half_sum(a, 7, 154, op="v_max_f32")
    a("v_mul_f32 v6, v5, v7")
    a("v_sqrt_f32 v6, v6")
    a.nop(1)
    a(f"v_mul_f32 v6, {f2u(-1.02):#x}, v6")
    for r in range(16):
        a(f"v_mov_b32 v{C+r}, v6")
        a(f"v_mov_b32 v{O[0]+r}, 0")
        a(f"v_mov_b32 v{O[1]+r}, 0")
        a(f"v_mov_b32 v{E+r}, 0")
    for r in range(8):
        a(f"v_mov_b32 v{P[1]+r}, 0")
        a(f"v_mov_b32 v{VB[1]+r}, 0")
    a("s_lshl_b32 s32, s5, 1")
    a("s_lshl_b32 s48, s32, 5")
    a("s_lshl_b32 s33, s3, 2")
    a("s_add_u32 s48, s48, s33")
    a("s_lshl_b32 s48, s48, 10")
    a(f"s_add_u32 s48, s48, {WOF:#x}")
    a("s_add_u32 s49, s48, 32768")
    a("s_min_u32 s32, s3, 6")
    a("s_mul_i32 s51, s5, 7")
    a("s_add_u32 s51, s51, s32")
    a("s_lshl_b32 s50, s51, 15")
    a(f"s_add_u32 s50, s50, {W1F:#x}")
    a(f"s_add_u32 s52, s42, {XF:#x}")
    pf = []
    for i in range(4):
        pf.append((ar(8 * i, 4), 48, i))
        pf.append((ar(8 * i + 4, 4), 49, i))
    if last:
        pf.append((ar(32, 4), 52, 0))
    else:
        a("v_lshlrev_b32 v159, 10, v3")
        a("v_lshl_add_u32 v159, v4, 3, v159")
        a("s_lshl_b32 s52, s45, 15")
        a("s_lshl_b32 s32, s46, 6")
        a("s_add_u32 s52, s52, s32")
        a("s_lshl_b32 s32, s47, 5")
        a("s_add_u32 s52, s52, s32")
        pf.append(None)
    for i in range(15):
        pf.append((ar(36 + 4 * i, 4), 50, i))
    a("s_waitcnt vmcnt(0)")
    a("s_barrier")
    a.stamp(2)
    a(f"ds_read_b128 {vr(KB[0],4)}, v156")
    a(f"ds_read_b128 {vr(KB[1],4)}, v156 offset:{KVT}")
    a(f"ds_read_b128 {vr(VB[0],4)}, v157")
    a(f"ds_read_b128 {vr(VB[0]+4,4)}, v157 offset:{VU}")
    a("s_cmp_lt_u32 s3, 4")
    a(f"s_cbranch_scc1 {T}_noprio")
    a("s_setprio 1")
    a(f"{T}_noprio:")
    a("s_waitcnt lgkmcnt(3)")
    a(f"v_mfma_f32_32x32x16_bf16 {vr(S[0],16)}, {vr(KB[0],4)}, {vr(Q[0],4)}, {vr(C,16)}")
    a.nop(10)
    UN, PV1, PV2, DLY, NE = 4, 3, 6, 2, 16

    def body(extra):
        for t in range(UN):
            for x in range(2):
                y = 1 - x
                ty = t if x == 0 else t + 1
                tv = t - 1 if x == 0 else t
                for i in range(8):
                    if i == 0:
                        if x == 1:
                            a("s_waitcnt lgkmcnt(0)")
                        a(f"v_mfma_f32_32x32x16_bf16 {vr(S[y],16)}, {vr(KB[ty%2],4)}, {vr(Q[y],4)}, {vr(C,16)}")
                        if x == 1:
                            a(f"ds_read_b128 {vr(KB[t%2],4)}, v156 offset:{(t+2)*KVT}")
                            a(f"ds_read_b128 {vr(VB[(t+1)%2],4)}, v157 offset:{(t+1)*KVT}")
                            a(f"ds_read_b128 {vr(VB[(t+1)%2]+4,4)}, v157 offset:{(t+1)*KVT+VU}")
                    e = E + (2 * i) % NE
                    a(f"v_exp_f32 v{e}, v{S[x]+2*i}")
                    a(f"v_exp_f32 v{e+1}, v{S[x]+2*i+1}")
                    j = i - DLY
                    if j >= 0:
                        ej = E + (2 * j) % NE
                        a(f"v_cvt_pk_bf16_f32 v{P[x]+j}, v{ej}, v{ej+1}")
                    else:
                        ej = E + (2 * (j + 8)) % NE
                        a(f"v_cvt_pk_bf16_f32 v{P[y]+j+8}, v{ej}, v{ej+1}")
                    if i == PV1:
                        a(f"v_mfma_f32_32x32x16_bf16 {vr(O[y],16)}, {vr(VB[tv%2],4)}, {vr(P[y],4)}, {vr(O[y],16)}")
                    if i == PV2:
                        a(f"v_mfma_f32_32x32x16_bf16 {vr(O[y],16)}, {vr(VB[tv%2]+4,4)}, {vr(P[y]+4,4)}, {vr(O[y],16)}")
                    if i in (1, 4, 5) and extra:
                        extra.pop(0)()
                if t == UN - 1 and x == 1:
                    a(f"v_add_u32 v156, {UN*KVT}, v156")
                    a(f"v_add_u32 v157, {UN*KVT}, v157")
                    a("s_add_u32 s29, s29, 1")
                    a("s_cmp_lg_u32 s29, 8")

    a("s_mov_b32 s29, 0")
    body([dma] * 11)
    if CODEPF:
        code_srd(a, 56, T)
        a("s_lshr_b32 s60, s2, 3")
        a("s_and_b32 s60, s60, 7")
        a("s_lshl_b32 s60, s60, 3")
        a("s_add_u32 s60, s60, s3")
        a("s_lshl_b32 s60, s60, 10")
        body([lambda: a("buffer_load_dwordx4 v[152:155], v2, s[56:59], s60 offen")])
    else:
        body([])
    a("s_waitcnt vmcnt(0)")
    a("s_barrier")
    def rawres():
        a("buffer_load_dwordx2 a[32:33], v159, s[16:19], s52 offen")
        a("buffer_load_dwordx2 a[34:35], v159, s[16:19], s52 offen offset:16")
    body([(lambda e=e: ld(a, e[0], e[1], e[2], 33)) if e else rawres for e in pf])
    if WARM:
        a("s_lshr_b32 s56, s4, 3")
        a("s_and_b32 s56, s56, 3")
        a("s_and_b32 s57, s56, 1")
        a("s_lshl_b32 s58, s5, 1")
        a("s_add_u32 s57, s57, s58")
        a("s_mul_i32 s57, s57, 112")
        a("s_mul_i32 s58, s3, 14")
        a("s_add_u32 s57, s57, s58")
        a("s_lshr_b32 s58, s56, 1")
        a("s_mul_i32 s58, s58, 7")
        a("s_add_u32 s57, s57, s58")
        a("s_lshl_b32 s57, s57, 10")
        a(f"s_add_u32 s57, s57, {W2F:#x}")
        a("s_lshl_b32 s58, s56, 12")
        a("s_add_u32 s58, s58, s50")
        a(f"s_add_u32 s58, s58, {15*1024}")
        a("s_and_b32 s59, s56, 1")
        a("s_lshl_b32 s59, s59, 15")
        a("s_lshr_b32 s60, s56, 1")
        a("s_lshl_b32 s60, s60, 11")
        a("s_add_u32 s59, s59, s60")
        a("s_add_u32 s59, s59, s48")
        a(f"s_add_u32 s59, s59, {(WQF - WOF) & 0xffffffff:#x}")
        wl = [(57, i) for i in range(7)] + [(58, i) for i in range(5)] + ([(59, i) for i in range(2)] if not last else [])
        body([(lambda b=b, i=i: ld(a, "v[152:155]", b, i, 33)) for (b, i) in wl])
    a(f"{T}_loop:")
    a(f"s_cmp_lg_u32 s29, {PRIO_IT}")
    a(f"s_cbranch_scc1 {T}_prio2")
    a("s_setprio 0")
    a(f"{T}_prio2:")
    body([])
    a(f"s_cbranch_scc1 {T}_loop")
    for j in range(8 - DLY, 8):
        ej = E + (2 * j) % NE
        a(f"v_cvt_pk_bf16_f32 v{P[1]+j}, v{ej}, v{ej+1}")
    a.nop(2)
    a(f"v_mfma_f32_32x32x16_bf16 {vr(O[1],16)}, {vr(VB[1],4)}, {vr(P[1],4)}, {vr(O[1],16)}")
    a(f"v_mfma_f32_32x32x16_bf16 {vr(O[1],16)}, {vr(VB[1]+4,4)}, {vr(P[1]+4,4)}, {vr(O[1],16)}")
    a("s_mul_i32 s25, s3, 2304")
    a(f"s_add_u32 s25, s25, {SCR}")
    a("v_add_u32 v5, s25, v2")
    a("v_lshlrev_b32 v6, 2, v1")
    a("v_add_u32 v6, s25, v6")
    a("s_xor_b32 s25, s3, 4")
    a("s_mul_i32 s25, s25, 2304")
    a(f"s_add_u32 s25, s25, {SCR}")
    a("v_add_u32 v7, s25, v2")
    a("s_waitcnt vmcnt(0)")
    a("v_lshlrev_b32 v154, 2, v1")
    a("v_add_u32 v154, s25, v154")
    a("s_waitcnt lgkmcnt(0)")
    a.nop(8)
    a(f"ds_write_b128 v5, {vr(O[1],4)}")
    a(f"ds_write_b128 v5, {vr(O[1]+4,4)} offset:1024")
    a(f"ds_write_b32 v6, v{O[1]+8} offset:2048")
    a("s_waitcnt lgkmcnt(0)")
    a("s_barrier")
    a(f"ds_read_b128 {vr(S[0],4)}, v7")
    a(f"ds_read_b128 {vr(S[0]+4,4)}, v7 offset:1024")
    a(f"ds_read_b32 v{S[0]+8}, v154 offset:2048")
    a("s_waitcnt lgkmcnt(0)")
    for r in range(9):
        a(f"v_add_f32 v{O[0]+r}, v{O[0]+r}, v{S[0]+r}")
    a(f"v_mov_b32 v6, {f2u(2.0**-60):#x}")
    a(f"v_cmp_nge_f32 vcc, v{O[0]+8}, v6")
    a("s_cmp_eq_u64 vcc, 0")
    a(f"s_cbranch_scc1 {T}_afin")
    a("v_mov_b32 v156, v2")
    a("v_mov_b32 v6, 0xff800000")
    a("s_mov_b32 s29, 64")
    a(f"{T}_fb:")
    a(f"ds_read_b128 {vr(KB[0],4)}, v156")
    a(f"v_add_u32 v156, {KVT}, v156")
    a("s_waitcnt lgkmcnt(0)")
    a(f"v_mfma_f32_32x32x16_bf16 {vr(S[0],16)}, {vr(KB[0],4)}, {vr(Q[0],4)}, 0")
    a.nop(16)
    for i in range(8):
        a(f"v_max3_f32 v6, v6, v{S[0]+2*i}, v{S[0]+2*i+1}")
    a("s_sub_u32 s29, s29, 1")
    a("s_cmp_lg_u32 s29, 0")
    a(f"s_cbranch_scc1 {T}_fb")
    half_sum(a, 6, 7, op="v_max_f32")
    a("v_sub_f32 v6, 0, v6")
    for r in range(16):
        a(f"v_mov_b32 v{C+r}, v6")
        a(f"v_mov_b32 v{O[0]+r}, 0")
    a("v_mov_b32 v156, v2")
    a("v_mov_b32 v157, v158")
    a("s_mov_b32 s29, 64")
    a(f"{T}_fb2:")
    a(f"ds_read_b128 {vr(KB[0],4)}, v156")
    a(f"ds_read_b128 {vr(VB[0],4)}, v157")
    a(f"ds_read_b128 {vr(VB[0]+4,4)}, v157 offset:{VU}")
    a(f"v_add_u32 v156, {KVT}, v156")
    a(f"v_add_u32 v157, {KVT}, v157")
    a("s_waitcnt lgkmcnt(0)")
    a(f"v_mfma_f32_32x32x16_bf16 {vr(S[0],16)}, {vr(KB[0],4)}, {vr(Q[0],4)}, {vr(C,16)}")
    a.nop(16)
    for i in range(16):
        a(f"v_exp_f32 v{S[0]+i}, v{S[0]+i}")
    a.nop(1)
    for i in range(8):
        a(f"v_cvt_pk_bf16_f32 v{P[0]+i}, v{S[0]+2*i}, v{S[0]+2*i+1}")
    a.nop(2)
    a(f"v_mfma_f32_32x32x16_bf16 {vr(O[0],16)}, {vr(VB[0],4)}, {vr(P[0],4)}, {vr(O[0],16)}")
    a(f"v_mfma_f32_32x32x16_bf16 {vr(O[0],16)}, {vr(VB[0]+4,4)}, {vr(P[0]+4,4)}, {vr(O[0],16)}")
    a.nop(16)
    a("s_sub_u32 s29, s29, 1")
    a("s_cmp_lg_u32 s29, 0")
    a(f"s_cbranch_scc1 {T}_fb2")
    a(f"{T}_afin:")
    a(f"v_rcp_f32 v6, v{O[0]+8}")
    a.nop(1)
    for r in range(8):
        a(f"v_mul_f32 v{O[0]+r}, v{O[0]+r}, v6")
    for q in range(4):
        a(f"v_cvt_pk_bf16_f32 v{S[0]+q}, v{O[0]+2*q}, v{O[0]+2*q+1}")
    a(f"s_add_u32 s23, s22, {OF:#x}")
    a(f"buffer_store_dwordx4 {vr(S[0],4)}, v2, s[8:11], s23 offen {SC}")
    a.stamp(3)
    publish(a, EP + 1, f"{T}_p1")
    a("s_lshl_b32 s20, s4, 6")
    a("s_lshl_b32 s21, s3, 2")
    a("s_add_u32 s20, s20, s21")
    a("s_lshl_b32 s53, s20, 10")
    a(f"s_add_u32 s20, s53, {OF:#x}")
    a("s_add_u32 s21, s20, 32768")
    wait_flag(a, EP + 1, f"{T}_w1")
    a.stamp(4)
    for i in range(4):
        ld(a, vr(8 + 8 * i, 4), 20, i, 33, SC)
        ld(a, vr(12 + 8 * i, 4), 21, i, 33, SC)
    ACC = 64
    for i in range(4):
        a(f"s_waitcnt vmcnt({2*(3-i)})")
        for c in range(2):
            for r in range(2):
                t = 2 * c + r
                cin = "0" if i == 0 else vr(ACC + 16 * t, 16)
                a(f"v_mfma_f32_32x32x16_bf16 {vr(ACC+16*t,16)}, {ar(8*i+4*c,4)}, {vr(8+8*i+4*r,4)}, {cin}")
    for i in range(8):
        ld(a, ar(4 * i, 4), 50, 15 + i, 33)
    reduce8(a, ACC, 128)
    for q in range(4):
        a(f"v_accvgpr_read_b32 v{136+q}, a{32+q}")
    for q in range(4):
        a(f"v_lshlrev_b32 v{140}, 16, v{136+q}")
        a(f"v_and_b32 v{141}, 0xffff0000, v{136+q}")
        a(f"v_add_f32 v{128+2*q}, v{128+2*q}, v140")
        a(f"v_add_f32 v{129+2*q}, v{129+2*q}, v141")
    for q in range(4):
        a(f"v_cvt_pk_bf16_f32 v{136+q}, v{128+2*q}, v{129+2*q}")
    a(f"s_add_u32 s23, s42, {X1F:#x}")
    a(f"buffer_store_dwordx4 v[136:139], v2, s[8:11], s23 offen {SC}")
    for q in range(4):
        a(f"v_accvgpr_write_b32 a{32+q}, v{136+q}")
    a.stamp(5)
    publish(a, EP + 2, f"{T}_p2")
    for i in range(9):
        ld(a, vr(64 + 4 * i, 4), 50, 23 + i, 33)
    a("v_lshlrev_b32 v7, 4, v4")
    a("s_lshl_b32 s27, s51, 7")
    a(f"s_add_u32 s27, s27, {CS1:#x}")
    for q in range(4):
        a(f"buffer_load_dwordx4 {vr(100+4*q,4)}, v7, s[8:11], s27 offen offset:{32*q}")
    a(f"s_add_u32 s20, s53, {X1F:#x}")
    a("s_add_u32 s21, s20, 32768")
    wait_flag(a, EP + 2, f"{T}_w2")
    a.stamp(6)
    for i in range(4):
        ld(a, vr(32 + 4 * i, 4), 20, i, 33, SC)
    for i in range(4):
        ld(a, vr(48 + 4 * i, 4), 21, i, 33, SC)
    STAT = 65536
    a("s_lshl_b32 s21, s3, 12")
    a("v_add_u32 v5, s21, v2")
    a("s_mov_b32 s28, 0x3f803f80")
    for r in range(8):
        a(f"v_mov_b32 v{8+r}, 0")
    for rr in range(2):
        a(f"s_waitcnt vmcnt({4*(1-rr)})")
        for i in range(4):
            a(f"ds_write_b128 v5, {vr(32+16*rr+4*i,4)} offset:{32768*rr+1024*i}")
        for i in range(16):
            x = 32 + 16 * rr + i
            k = 4 * (i % 2)
            a(f"v_dot2_f32_bf16 v{8+k+2*rr}, v{x}, s28, v{8+k+2*rr}")
            a(f"v_dot2_f32_bf16 v{9+k+2*rr}, v{x}, v{x}, v{9+k+2*rr}")
    a("s_lshl_b32 s21, s3, 10")
    a(f"s_add_u32 s21, s21, {STAT}")
    a("v_add_u32 v5, s21, v2")
    a.nop(2)
    for r in range(4):
        a(f"v_add_f32 v{8+r}, v{8+r}, v{12+r}")
    a("ds_write_b128 v5, v[8:11]")
    a("s_waitcnt lgkmcnt(0)")
    a("s_barrier")
    a.stamp(7)
    a("s_lshl_b32 s32, s5, 1")
    a("s_mul_i32 s54, s32, 112")
    a("s_mul_i32 s33, s3, 14")
    a("s_add_u32 s54, s54, s33")
    a("s_lshl_b32 s54, s54, 10")
    a(f"s_add_u32 s54, s54, {W2F:#x}")
    a(f"s_add_u32 s55, s54, {112*1024}")
    a("s_cmp_eq_u32 s3, 7")
    a(f"s_cbranch_scc1 {T}_cskip")
    CACC = 116

    def w1reg(i):
        if i < 15:
            return ar(36 + 4 * i, 4)
        if i < 23:
            return ar(4 * (i - 15), 4)
        return vr(64 + 4 * (i - 23), 4)

    CR = 6

    def rd(i):
        b = 8 + 8 * (i % CR)
        a(f"ds_read_b128 {vr(b,4)}, v2 offset:{i*1024}")
        a(f"ds_read_b128 {vr(b+4,4)}, v2 offset:{32768+i*1024}")
    def w2reg(j):
        if j < 23:
            return w1reg(j)
        return vr(136 + 4 * (j - 23), 4)
    for i in range(CR - 1):
        rd(i)
    for i in range(32):
        if i + CR - 1 < 32:
            rd(i + CR - 1)
        pend = min(32, i + CR) - i - 1
        a(f"s_waitcnt lgkmcnt({2*pend})")
        b = 8 + 8 * (i % CR)
        for r in range(2):
            cin = "0" if i == 0 else vr(CACC + 16 * r, 16)
            a(f"v_mfma_f32_32x32x16_bf16 {vr(CACC+16*r,16)}, {w1reg(i)}, {vr(b+4*r,4)}, {cin}")
        if 1 <= i <= 23:
            j = i - 1
            ld(a, w2reg(j), 54 + (j & 1), j >> 1, 33)
    a(f"s_branch {T}_cepi")
    a(f"{T}_cskip:")
    for j in range(23):
        ld(a, w2reg(j), 54 + (j & 1), j >> 1, 33)
    a(f"{T}_cepi:")
    a.stamp(8)
    a("s_cmp_eq_u32 s3, 7")
    a(f"s_cbranch_scc1 {T}_cdone")
    a(f"v_add_u32 v5, {STAT}, v2")
    for w in range(8):
        a(f"ds_read_b128 {vr(32+4*w,4)}, v5 offset:{1024*w}")
    a("s_waitcnt lgkmcnt(0)")
    for w in range(1, 8):
        for r in range(4):
            a(f"v_add_f32 v{32+r}, v{32+r}, v{32+4*w+r}")
    for r in range(4):
        half_sum(a, 32 + r, 36)
    for r in range(2):
        m, x2 = 32 + 2 * r, 33 + 2 * r
        a(f"v_mul_f32 v{m}, {f2u(1.0/512):#x}, v{m}")
        a(f"v_mul_f32 v{x2}, {f2u(1.0/512):#x}, v{x2}")
        a(f"v_fma_f32 v{x2}, -v{m}, v{m}, v{x2}")
        a(f"v_max_f32 v{x2}, 0, v{x2}")
        a(f"v_add_f32 v{x2}, {f2u(EPS):#x}, v{x2}")
        a(f"v_rsq_f32 v{8+2*r}, v{x2}")
        a.nop(1)
        a(f"v_mul_f32 v{9+2*r}, v{m}, v{8+2*r}")
        a(f"v_sub_f32 v{9+2*r}, 0, v{9+2*r}")
    for rr in range(2):
        for r in range(16):
            a(f"v_mul_f32 v{40+r}, v{9+2*rr}, v{100+r}")
            a(f"v_fma_f32 v{CACC+16*rr+r}, v{CACC+16*rr+r}, v{8+2*rr}, v{40+r}")
        for q in range(8):
            a(f"v_cvt_pk_bf16_f32 v{16+8*rr+q}, v{CACC+16*rr+2*q}, v{CACC+16*rr+2*q+1}")
        for q in range(8):
            a(f"v_pk_max_i16 v{16+8*rr+q}, v{16+8*rr+q}, 0")
    a("s_lshl_b32 s26, s4, 1")
    a("s_mul_i32 s26, s26, 112")
    a("s_lshl_b32 s27, s51, 1")
    a("s_add_u32 s26, s26, s27")
    a("s_lshl_b32 s26, s26, 10")
    a(f"s_add_u32 s26, s26, {HF:#x}")
    a(f"s_add_u32 s27, s26, {112*1024}")
    a(f"buffer_store_dwordx4 v[16:19], v2, s[8:11], s26 offen {SC}")
    a(f"buffer_store_dwordx4 v[20:23], v2, s[8:11], s26 offen offset:1024 {SC}")
    a(f"buffer_store_dwordx4 v[24:27], v2, s[8:11], s27 offen {SC}")
    a(f"buffer_store_dwordx4 v[28:31], v2, s[8:11], s27 offen offset:1024 {SC}")
    a(f"{T}_cdone:")
    a.stamp(9)
    publish(a, EP + 3, f"{T}_p3")
    for j in range(23, 28):
        ld(a, w2reg(j), 54 + (j & 1), j >> 1, 33)
    a("s_lshl_b32 s20, s4, 1")
    a("s_mul_i32 s20, s20, 112")
    a("s_mul_i32 s21, s3, 14")
    a("s_add_u32 s20, s20, s21")
    a("s_lshl_b32 s20, s20, 10")
    a(f"s_add_u32 s20, s20, {HF:#x}")
    a(f"s_add_u32 s21, s20, {112*1024}")
    wait_flag(a, EP + 3, f"{T}_w3")
    a.stamp(10)
    RING = 8
    DACC = 72

    def hld(i):
        b = 8 + 8 * (i % RING)
        ld(a, vr(b, 4), 20, i, 33, SC)
        ld(a, vr(b + 4, 4), 21, i, 33, SC)
    for i in range(RING):
        hld(i)
    def qreg(j):
        return w1reg(j)
    qpf = []
    if not last:
        a(f"s_add_u32 s48, s48, {(WQF - WOF) & 0xffffffff:#x}")
        a("s_add_u32 s49, s48, 32768")
        a("s_lshl_b32 s56, s3, 12")
        a(f"s_add_u32 s56, s56, {WKVF:#x}")
        a("v_lshlrev_b32 v156, 4, v4")
        a("v_lshlrev_b32 v157, 2, v3")
        a("s_lshl_b32 s57, s46, 7")
        a("s_lshl_b32 s33, s47, 6")
        a("s_add_u32 s57, s57, s33")
        a(f"s_add_u32 s57, s57, {CSQ:#x}")
        a(f"s_mov_b32 s58, {CSKV:#x}")
        for i in range(4):
            qpf.append(lambda i=i: ld(a, qreg(2 * i), 48, i, 33))
            qpf.append(lambda i=i: ld(a, qreg(2 * i + 1), 49, i, 33))
        for i in range(4):
            qpf.append(lambda i=i: ld(a, qreg(8 + i), 56, i, 33))
        for q in range(2):
            qpf.append(lambda q=q: a(f"buffer_load_dwordx4 {qreg(12+q)}, v156, s[8:11], s57 offen offset:{32*q}"))
        for q in range(2):
            qpf.append(lambda q=q: a(f"buffer_load_dwordx4 {qreg(14+q)}, v156, s[8:11], s58 offen offset:{32*q}"))
        qpf.append(lambda: a("buffer_load_dword a4, v157, s[8:11], s58 offen"))
    issued = 2 * RING
    order = [('h', i) for i in range(RING)]
    for i in range(14):
        pos = order.index(('h', i))
        after = sum(2 if k == 'h' else 1 for (k, _) in order[pos + 1:])
        a(f"s_waitcnt vmcnt({after})")
        b = 8 + 8 * (i % RING)
        for c in range(2):
            for r in range(2):
                t = 2 * c + r
                cin = "0" if i == 0 else vr(DACC + 16 * t, 16)
                a(f"v_mfma_f32_32x32x16_bf16 {vr(DACC+16*t,16)}, {w2reg(2*i+c)}, {vr(b+4*r,4)}, {cin}")
        if i + RING < 14:
            hld(i + RING)
            order.append(('h', i + RING))
        elif qpf:
            for _ in range(3):
                k = sum(1 for (kk, _) in order if kk == 'q')
                if qpf and k < 2 * i:
                    qpf.pop(0)()
                    order.append(('q', k))
    a.stamp(11)
    assert not qpf
    reduce8(a, DACC, 8)
    for q in range(4):
        a(f"v_accvgpr_read_b32 v{16+q}, a{32+q}")
    for q in range(4):
        a(f"v_lshlrev_b32 v20, 16, v{16+q}")
        a(f"v_and_b32 v21, 0xffff0000, v{16+q}")
        a(f"v_add_f32 v{8+2*q}, v{8+2*q}, v20")
        a(f"v_add_f32 v{9+2*q}, v{9+2*q}, v21")
    for q in range(4):
        a(f"v_cvt_pk_bf16_f32 v{16+q}, v{8+2*q}, v{9+2*q}")
    if last:
        a.nop(2)
        a("v_permlane32_swap_b32 v16, v18")
        a("v_permlane32_swap_b32 v17, v19")
        a("v_lshlrev_b32 v5, 10, v3")
        a("v_lshl_add_u32 v5, v4, 4, v5")
        a("s_lshl_b32 s31, s45, 15")
        a("s_lshl_b32 s32, s46, 6")
        a("s_add_u32 s31, s31, s32")
        a("s_lshl_b32 s32, s47, 5")
        a("s_add_u32 s31, s31, s32")
        a("buffer_store_dwordx4 v[16:19], v5, s[16:19], s31 offen")
        a.stamp(12)
    else:
        XN, QN, KVN, KNN = XFL[1], QFL[1], KVFL[1], KNL[1]
        a(f"s_add_u32 s23, s42, {XN:#x}")
        a(f"buffer_store_dwordx4 v[16:19], v2, s[8:11], s23 offen {SC}")
        a.stamp(12)
        publish(a, EP + 4, f"{T}_p4")
        a(f"s_add_u32 s20, s53, {XN:#x}")
        a("s_add_u32 s21, s20, 32768")
        a("s_mov_b32 s28, 0x3f803f80")
        wait_flag(a, EP + 4, f"{T}_w4")
        a.stamp(13)
        for i in range(4):
            ld(a, vr(8 + 8 * i, 4), 20, i, 33, SC)
            ld(a, vr(12 + 8 * i, 4), 21, i, 33, SC)
        for r in range(8):
            a(f"v_mov_b32 v{40+r}, 0")
        ACC = 64
        for i in range(4):
            a(f"s_waitcnt vmcnt({2*(3-i)})")
            for c in range(2):
                for r in range(2):
                    t = 2 * c + r
                    cin = "0" if i == 0 else vr(ACC + 16 * t, 16)
                    a(f"v_mfma_f32_32x32x16_bf16 {vr(ACC+16*t,16)}, {qreg(2*i+c)}, {vr(8+8*i+4*r,4)}, {cin}")
                    for q in range(4):
                        x = 8 + 8 * i + 4 * r + q
                        k = 40 + 4 * (q % 2) + 2 * r + c
                        if c == 0:
                            a(f"v_dot2_f32_bf16 v{k}, v{x}, s28, v{k}")
                        else:
                            a(f"v_dot2_f32_bf16 v{k}, v{x}, v{x}, v{k}")
        a("s_lshl_b32 s32, s3, 11")
        a(f"s_add_u32 s32, s32, {KVS}")
        a("v_add_u32 v7, s32, v2")
        a("s_cmp_ge_u32 s5, 6")
        a(f"s_cbranch_scc1 {T}_kvdone")
        for task in range(6):
            if task < 5:
                a(f"s_cmp_lg_u32 s5, {task}")
                a(f"s_cbranch_scc1 {T}_kvt{task+1}")
            kind = 'K' if task < 2 else 'V'
            r = task if task < 2 else (task - 2) >> 1
            u = 0 if task < 2 else (task & 1)
            for i in range(4):
                cin = "0" if i == 0 else vr(128, 16)
                if kind == 'K':
                    a(f"v_mfma_f32_32x32x16_bf16 {vr(128,16)}, {qreg(8+i)}, {vr(8+8*i+4*r,4)}, {cin}")
                else:
                    a(f"v_mfma_f32_32x32x16_bf16 {vr(128,16)}, {vr(8+8*i+4*r,4)}, {qreg(8+i)}, {cin}")
            a.nop(16)
            a(f"ds_write_b128 v7, {vr(128+8*u,4)}")
            a(f"ds_write_b128 v7, {vr(132+8*u,4)} offset:1024")
            if task < 5:
                a(f"s_branch {T}_kvdone")
                a(f"{T}_kvt{task+1}:")
        a(f"{T}_kvdone:")
        a("s_lshl_b32 s32, s3, 10")
        a(f"s_add_u32 s32, s32, {STATQ}")
        a("v_add_u32 v7, s32, v2")
        for r in range(4):
            a(f"v_add_f32 v{40+r}, v{40+r}, v{44+r}")
        a("ds_write_b128 v7, v[40:43]")
        reduce8(a, ACC, 8)
        a.stamp(14)
        qkv_tail(a, T, end, QN, KVN, KNN,
                 lambda: [a(f"v_accvgpr_read_b32 v{16+r}, a{84+r}") for r in range(8)],
                 lambda: [a(f"v_accvgpr_read_b32 v{16+r}, a{92+r if r < 4 else r-4}") for r in range(8)],
                 lambda: a("v_accvgpr_read_b32 v47, a4"))
    a(f"{end}:")
    a.stamp_flush(16)
    a(f"{end}x:")
    a("s_endpgm")
    a.desc(name, 160, agpr=96)
    return SCR + 8 * 2304


def tr_addr(a, dst, RS, t1, t2):
    a(f"v_lshrrev_b32 v{t1}, 5, v1")
    a(f"v_lshlrev_b32 v{t1}, 2, v{t1}")
    a(f"v_bfe_u32 v{t2}, v1, 2, 2")
    a(f"v_add_u32 v{t1}, v{t1}, v{t2}")
    a(f"v_mul_u32_u24 v{dst}, {RS}, v{t1}")
    a(f"v_bfe_u32 v{t1}, v1, 4, 1")
    a(f"v_lshlrev_b32 v{t1}, 5, v{t1}")
    a(f"v_and_b32 v{t2}, 3, v1")
    a(f"v_lshlrev_b32 v{t2}, 3, v{t2}")
    a(f"v_add3_u32 v{dst}, v{dst}, v{t1}, v{t2}")


def gen_K0(a):
    name = "k0_kernel"
    T = "K0"
    a.begin(name)
    end = f"{name}_end"
    a("s_cmp_ge_u32 s2, 256")
    a(f"s_cbranch_scc1 {end}x")
    a.stamp(0)
    a("s_load_dwordx16 s[16:31], s[0:1], 0")
    a("s_load_dwordx2 s[6:7], s[0:1], 80")
    a("v_and_b32 v1, 63, v0")
    a("v_lshrrev_b32 v2, 6, v0")
    a("v_and_b32 v3, 31, v1")
    a("v_readfirstlane_b32 s60, v2")
    a("v_lshrrev_b32 v4, 5, v1")
    a("v_lshlrev_b32 v2, 4, v1")
    a("s_and_b32 s4, s2, 31")
    a("s_lshr_b32 s5, s2, 5")
    a("s_and_b32 s3, s60, 7")
    a("s_waitcnt lgkmcnt(0)")
    a.srd(8, 6, G.WS_USED)
    a.srd(52, 20, 512 * 16 * 2)
    a.srd(56, 22, 512 * 16 * 2)
    a("s_mov_b32 s61, 0x3f803f80")
    a("s_cmp_ge_u32 s60, 8")
    a("s_cbranch_scc1 K0_prep")
    a.stamp(1)
    a.srd(12, 16, 2048 * 512 * 2)
    a.srd(48, 18, 512 * 512 * 2)
    piece_sgprs(a)
    a("v_lshrrev_b32 v6, 3, v1")
    a("v_lshlrev_b32 v6, 10, v6")
    a("v_and_b32 v7, 7, v1")
    a("v_lshl_add_u32 v6, v7, 4, v6")
    a("s_lshl_b32 s20, s4, 16")
    a("s_lshl_b32 s22, s3, 7")
    a("s_add_u32 s20, s20, s22")
    for k in range(8):
        a(f"s_add_u32 s21, s20, {8192*k}")
        a(f"buffer_load_dwordx4 {vr(64+4*k,4)}, v6, s[12:15], s21 offen")
    a("v_lshrrev_b32 v7, 2, v1")
    a("v_lshlrev_b32 v7, 5, v7")
    a("v_and_b32 v5, 1, v1")
    a("v_lshl_add_u32 v7, v5, 4, v7")
    a("v_and_b32 v5, 2, v1")
    a("v_cmp_eq_u32 vcc, 0, v5")
    a("s_lshl_b32 s20, s3, 11")
    a("s_and_saveexec_b64 s[38:39], vcc")
    for i in range(4):
        a(f"buffer_load_dwordx4 {vr(96+4*i,4)}, v7, s[52:55], s20 offen offset:{512*i}")
    a("s_andn2_b64 exec, s[38:39], exec")
    for i in range(4):
        a(f"buffer_load_dwordx4 {vr(96+4*i,4)}, v7, s[56:59], s20 offen offset:{512*i}")
    a("s_mov_b64 exec, s[38:39]")
    a("s_lshl_b32 s22, s3, 16")
    a("s_lshl_b32 s23, s5, 7")
    a("s_add_u32 s22, s22, s23")
    a("s_lshl_b32 s23, s3, 13")
    for i in range(8):
        a(f"s_add_u32 m0, s23, {1024*i}")
        a(f"s_add_u32 s24, s22, {8192*i}")
        a("buffer_load_dwordx4 v6, s[48:51], s24 offen lds")
    a.stamp(2)
    tr_addr(a, 56, 128, 5, 6)
    a("v_add_u32 v56, s23, v56")
    tr_addr(a, 57, 64, 5, 6)
    a("s_lshl_b32 s21, s3, 12")
    a("s_add_u32 s21, s21, 65536")
    a("v_add_u32 v57, s21, v57")
    a("v_lshrrev_b32 v5, 3, v1")
    a("v_and_b32 v6, 7, v1")
    a("v_xor_b32 v6, v6, v5")
    a("v_lshlrev_b32 v6, 4, v6")
    a("v_lshl_add_u32 v112, v5, 7, v6")
    a("v_add_u32 v112, s21, v112")
    a("v_and_b32 v5, 7, v3")
    a("v_lshlrev_b32 v5, 4, v5")
    a("v_lshl_add_u32 v5, v3, 7, v5")
    a("v_lshl_add_u32 v5, v4, 3, v5")
    a("v_add_u32 v113, s21, v5")
    a("v_add_u32 v114, s21, v2")
    for c in range(8):
        a(f"v_xor_b32 v{116+c}, {c<<4}, v113")
    for r in range(6):
        a(f"v_mov_b32 v{58+r}, 0")
    a("v_mov_b32 v7, 0")
    for r in range(2):
        a(f"s_waitcnt vmcnt({16+4*(1-r)})")
        if r == 0:
            a.stamp(3)
        for j in range(4):
            a(f"ds_write_b128 v112, {vr(64+16*r+4*j,4)} offset:{1024*j}")
        a("s_waitcnt lgkmcnt(0)")
        for i in range(4):
            b = 8 + 8 * i + 4 * r
            a(f"ds_read_b64 {vr(b,2)}, v{116+2*i}")
            a(f"ds_read_b64 {vr(b+2,2)}, v{117+2*i}")
        a("s_waitcnt lgkmcnt(0)")
    a("s_waitcnt vmcnt(8)")
    for i in range(4):
        a(f"ds_write_b128 v114, {vr(96+4*i,4)} offset:{1024*i}")
    a("s_waitcnt lgkmcnt(0)")
    for i in range(4):
        a(f"ds_read_b64_tr_b16 {vr(40+4*i,2)}, v57 offset:{16*i*64}")
        a(f"ds_read_b64_tr_b16 {vr(42+4*i,2)}, v57 offset:{(16*i+8)*64}")
    a("s_waitcnt lgkmcnt(0)")
    for r in range(16):
        a(f"v_dot2_f32_bf16 v7, v{40+r}, s61, v7")
    a("s_lshl_b32 s32, s3, 11")
    a(f"s_add_u32 s32, s32, {KVS}")
    a("v_add_u32 v6, s32, v2")
    a("s_cmp_ge_u32 s5, 6")
    a(f"s_cbranch_scc1 {T}_kvdone")
    for task in range(6):
        if task < 5:
            a(f"s_cmp_lg_u32 s5, {task}")
            a(f"s_cbranch_scc1 {T}_kvt{task+1}")
        kind = 'K' if task < 2 else 'V'
        r = task if task < 2 else (task - 2) >> 1
        u = 0 if task < 2 else (task & 1)
        for i in range(4):
            cin = "0" if i == 0 else vr(64, 16)
            if kind == 'K':
                a(f"v_mfma_f32_32x32x16_bf16 {vr(64,16)}, {vr(40+4*i,4)}, {vr(8+8*i+4*r,4)}, {cin}")
            else:
                a(f"v_mfma_f32_32x32x16_bf16 {vr(64,16)}, {vr(8+8*i+4*r,4)}, {vr(40+4*i,4)}, {cin}")
        a.nop(16)
        a(f"ds_write_b128 v6, {vr(64+8*u,4)}")
        a(f"ds_write_b128 v6, {vr(68+8*u,4)} offset:1024")
        if task < 5:
            a(f"s_branch {T}_kvdone")
            a(f"{T}_kvt{task+1}:")
    a(f"{T}_kvdone:")
    half_sum(a, 7, 5)
    a("s_mul_i32 s32, s3, 384")
    a(f"s_add_u32 s32, s32, {CSP}")
    a("v_lshlrev_b32 v6, 2, v3")
    a("v_add_u32 v6, s32, v6")
    a("ds_write_b32 v6, v7 offset:256")
    a("s_waitcnt vmcnt(0)")
    a.stamp(4)

    def wrd(i):
        b = 40 + 8 * (i % 2)
        for c in range(2):
            a(f"ds_read_b64_tr_b16 {vr(b+4*c,2)}, v56 offset:{16*i*128+64*c}")
            a(f"ds_read_b64_tr_b16 {vr(b+4*c+2,2)}, v56 offset:{(16*i+8)*128+64*c}")
    wrd(0)
    ACC = 64
    for i in range(4):
        if i < 3:
            wrd(i + 1)
        a(f"s_waitcnt lgkmcnt({4 if i < 3 else 0})")
        b = 40 + 8 * (i % 2)
        for c in range(2):
            for r in range(2):
                t = 2 * c + r
                cin = "0" if i == 0 else vr(ACC + 16 * t, 16)
                a(f"v_mfma_f32_32x32x16_bf16 {vr(ACC+16*t,16)}, {vr(b+4*c,4)}, {vr(8+8*i+4*r,4)}, {cin}")
                for q in range(4):
                    x = 8 + 8 * i + 4 * r + q
                    k = 58 + 2 * r + c
                    if c == 0:
                        a(f"v_dot2_f32_bf16 v{k}, v{x}, s61, v{k}")
                    else:
                        a(f"v_dot2_f32_bf16 v{k}, v{x}, v{x}, v{k}")
                if r == 0:
                    for q in range(4):
                        a(f"v_dot2_f32_bf16 v{62+c}, v{b+4*c+q}, s61, v{62+c}")
    a("s_lshl_b32 s32, s3, 10")
    a(f"s_add_u32 s32, s32, {STATQ}")
    a("v_add_u32 v7, s32, v2")
    a.nop(2)
    a("ds_write_b128 v7, v[58:61]")
    half_sum(a, 62, 5)
    half_sum(a, 63, 5)
    a("ds_write_b32 v6, v62")
    a("ds_write_b32 v6, v63 offset:128")
    a.stamp(5)
    reduce8(a, ACC, 8, pre_barrier=True)
    a.stamp(6)

    def cs8(tile_off_expr):
        for s in range(8):
            for q in range(2):
                a(f"ds_read_b128 {vr(64+8*s+4*q,4)}, v46 offset:{s*384+32*q}")
        a("s_waitcnt lgkmcnt(0)")
        for r in range(8):
            a(f"v_add_f32 v{16+r}, v{64+r}, v{72+r}")
        for s in range(2, 8):
            for r in range(8):
                a(f"v_add_f32 v{16+r}, v{16+r}, v{64+8*s+r}")

    def get_csq():
        a("s_lshl_b32 s32, s44, 7")
        a("s_lshl_b32 s33, s47, 6")
        a("s_add_u32 s32, s32, s33")
        a(f"s_add_u32 s32, s32, {CSP}")
        a("v_lshlrev_b32 v46, 4, v4")
        a("v_add_u32 v46, s32, v46")
        cs8(None)

    def get_csk():
        a("v_lshlrev_b32 v46, 4, v4")
        a(f"v_add_u32 v46, {CSP+256}, v46")
        for s in range(6):
            for q in range(2):
                a(f"ds_read_b128 {vr(72+8*s+4*q,4)}, v46 offset:{s*384+32*q}")
        for s in range(6, 8):
            for q in range(2):
                a(f"ds_read_b128 {vr(24+8*(s-6)+4*q,4)}, v46 offset:{s*384+32*q}")
        a("s_waitcnt lgkmcnt(0)")
        for r in range(8):
            a(f"v_add_f32 v{16+r}, v{24+r}, v{32+r}")
        for s in range(6):
            for r in range(8):
                a(f"v_add_f32 v{16+r}, v{16+r}, v{72+8*s+r}")

    def get_csv():
        a("v_lshlrev_b32 v46, 2, v3")
        a(f"v_add_u32 v46, {CSP+256}, v46")
        for s in range(8):
            a(f"ds_read_b32 v{72+s}, v46 offset:{s*384}")
        a("s_waitcnt lgkmcnt(0)")
        a("v_add_f32 v47, v72, v73")
        for s in range(2, 8):
            a(f"v_add_f32 v47, v47, v{72+s}")
    qkv_tail(a, T, end, QFL[0], KVFL[0], KNL[0], get_csq, get_csk, get_csv)
    a(f"s_branch {end}")
    a("K0_prep:")
    if os.environ.get('K0X', '') == 'noprep':
        a(f"s_branch {end}x")
    if os.environ.get('K0X', '') == 'prio':
        a("s_setprio 3")
    a("s_cmp_lt_u32 s2, 154")
    a("s_cbranch_scc1 K0_ptask")
    if CODEPF:
        code_srd(a, 40, "K0")
        a("s_sub_u32 s32, s2, 154")
        a("s_lshr_b32 s32, s32, 3")
        a("s_lshl_b32 s32, s32, 3")
        a("s_add_u32 s32, s32, s3")
        a("s_lshl_b32 s32, s32, 10")
        a("buffer_load_dwordx4 v[16:19], v2, s[40:43], s32 offen")
        a("s_waitcnt vmcnt(0)")
    a(f"s_branch {end}x")
    a("K0_ptask:")
    a("s_cmp_lg_u32 s2, 153")
    a("s_cbranch_scc1 K0_pw")
    a("s_lshl_b32 s32, s3, 10")
    a(f"s_add_u32 s32, s32, {FLAGS:#x}")
    for r in range(4):
        a(f"v_mov_b32 v{16+r}, 0")
    a("buffer_store_dwordx4 v[16:19], v2, s[8:11], s32 offen")
    a(f"s_branch {end}x")
    a("K0_pw:")
    a("s_lshl_b32 s62, s3, 12")
    a("s_add_u32 s62, s62, 98304")
    a("s_mov_b32 s46, 0")
    a("s_mov_b32 s36, 32")
    a("s_cmp_eq_u32 s2, 152")
    a("s_cbranch_scc1 K0_pkv")
    a("s_cmp_ge_u32 s2, 88")
    a("s_cbranch_scc1 K0_pw2")
    a("s_cmp_ge_u32 s2, 32")
    a("s_cbranch_scc1 K0_pw1")
    a("s_cmp_ge_u32 s2, 16")
    a("s_cbranch_scc1 K0_pwo")
    a.srd(40, 18, 512 * 512 * 2)
    a("s_mov_b32 s44, 1024")
    a("s_mov_b32 s45, s2")
    a("s_lshl_b32 s47, s45, 15")
    a(f"s_add_u32 s47, s47, {WQF:#x}")
    a("s_lshl_b32 s49, s45, 7")
    a(f"s_add_u32 s49, s49, {CSQ:#x}")
    a("s_branch K0_pgo")
    a("K0_pwo:")
    a.srd(40, 24, 512 * 512 * 2)
    a("s_mov_b32 s44, 1024")
    a("s_sub_u32 s45, s2, 16")
    a("s_lshl_b32 s47, s45, 15")
    a(f"s_add_u32 s47, s47, {WOF:#x}")
    a("s_mov_b32 s49, 0")
    a("s_branch K0_pgo")
    a("K0_pw1:")
    a.srd(40, 28, 512 * 1792 * 2)
    a("s_mov_b32 s44, 3584")
    a("s_sub_u32 s45, s2, 32")
    a("s_lshl_b32 s47, s45, 15")
    a(f"s_add_u32 s47, s47, {W1F:#x}")
    a("s_lshl_b32 s49, s45, 7")
    a(f"s_add_u32 s49, s49, {CS1:#x}")
    a("s_branch K0_pgo")
    a("K0_pw2:")
    a.srd(40, 30, 512 * 1792 * 2)
    a("s_mov_b32 s44, 1024")
    a("s_sub_u32 s45, s2, 88")
    a("s_and_b32 s46, s45, 3")
    a("s_mul_i32 s46, s46, 28")
    a("s_lshr_b32 s45, s45, 2")
    a("s_mul_i32 s47, s45, 112")
    a("s_add_u32 s47, s47, s46")
    a("s_lshl_b32 s47, s47, 10")
    a(f"s_add_u32 s47, s47, {W2F:#x}")
    a("s_mov_b32 s36, 28")
    a("s_mov_b32 s49, 0")
    a("K0_pgo:")
    a("s_lshl_b32 s50, s3, 2")
    a("s_cmp_ge_u32 s50, s36")
    a(f"s_cbranch_scc1 {end}x")
    a("v_lshrrev_b32 v5, 2, v1")
    a("v_mul_lo_u32 v5, v5, s44")
    a("v_and_b32 v6, 3, v1")
    a("v_lshl_add_u32 v5, v6, 4, v5")
    a("s_add_u32 s51, s46, s50")
    a("s_lshl_b32 s51, s51, 4")
    a("s_mul_i32 s51, s51, s44")
    a("s_lshl_b32 s32, s45, 6")
    a("s_add_u32 s51, s51, s32")
    a("s_lshl_b32 s33, s44, 4")
    for i in range(4):
        a(f"s_add_u32 m0, s62, {1024*i}")
        a("s_nop 0")
        a("buffer_load_dwordx4 v5, s[40:43], s51 offen lds")
        a("s_add_u32 s51, s51, s33")
    a("s_branch K0_ptr")
    a("K0_pkv:")
    a("s_lshl_b32 s50, s3, 2")
    a("v_lshrrev_b32 v7, 2, v1")
    a("v_lshlrev_b32 v7, 5, v7")
    a("v_and_b32 v5, 1, v1")
    a("v_lshl_add_u32 v7, v5, 4, v7")
    a("v_and_b32 v5, 2, v1")
    a("v_cmp_eq_u32 vcc, 0, v5")
    a("s_lshl_b32 s20, s3, 11")
    a("s_and_saveexec_b64 s[38:39], vcc")
    for i in range(4):
        a(f"s_add_u32 m0, s62, {1024*i}")
        a(f"s_add_u32 s22, s20, {512*i}")
        a("buffer_load_dwordx4 v7, s[52:55], s22 offen lds")
    a("s_andn2_b64 exec, s[38:39], exec")
    for i in range(4):
        a(f"s_add_u32 m0, s62, {1024*i}")
        a(f"s_add_u32 s22, s20, {512*i}")
        a("buffer_load_dwordx4 v7, s[56:59], s22 offen lds")
    a("s_mov_b64 exec, s[38:39]")
    a(f"s_mov_b32 s47, {WKVF:#x}")
    a(f"s_mov_b32 s49, {CSKV:#x}")
    a("K0_ptr:")
    tr_addr(a, 8, 64, 5, 6)
    a("v_add_u32 v8, s62, v8")
    a("s_lshl_b32 s32, s50, 10")
    a("s_add_u32 s47, s47, s32")
    a("v_mov_b32 v7, 0")
    a("s_waitcnt vmcnt(0)")
    for i in range(4):
        a(f"ds_read_b64_tr_b16 {vr(16+4*i,2)}, v8 offset:{16*i*64}")
        a(f"ds_read_b64_tr_b16 {vr(18+4*i,2)}, v8 offset:{(16*i+8)*64}")
    for i in range(4):
        a(f"s_waitcnt lgkmcnt({2*(3-i)})")
        a(f"buffer_store_dwordx4 {vr(16+4*i,4)}, v2, s[8:11], s47 offen offset:{1024*i}")
        for q in range(4):
            a(f"v_dot2_f32_bf16 v7, v{16+4*i+q}, s61, v7")
    a("s_cmp_eq_u32 s49, 0")
    a(f"s_cbranch_scc1 {end}x")
    a.nop(2)
    half_sum(a, 7, 5)
    a("s_lshl_b32 s32, s3, 7")
    a(f"s_add_u32 s32, s32, {CSP2}")
    a("v_lshlrev_b32 v6, 2, v3")
    a("v_add_u32 v5, s32, v6")
    a("ds_write_b32 v5, v7")
    a("s_waitcnt lgkmcnt(0)")
    a("s_barrier")
    a("s_cmp_lg_u32 s3, 0")
    a(f"s_cbranch_scc1 {end}x")
    a(f"v_add_u32 v5, {CSP2}, v6")
    for s in range(8):
        a(f"ds_read_b32 v{16+s}, v5 offset:{128*s}")
    a("s_waitcnt lgkmcnt(0)")
    for s in range(1, 8):
        a(f"v_add_f32 v16, v16, v{16+s}")
    a("v_cmp_gt_u32 vcc, 32, v1")
    a("s_and_saveexec_b64 s[38:39], vcc")
    a("buffer_store_dword v16, v6, s[8:11], s49 offen")
    a(f"s_branch {end}x")
    a(f"{end}:")
    a.stamp_flush(8)
    a(f"{end}x:")
    a("s_endpgm")
    a.desc(name, 128)
    return CSP2 + 1024


def gen_zero_flags(a):
    pass


def main():
    a = Asm()
    G.XF, G.QF, G.KVF = XFL[0], QFL[0], KVFL[0]
    G.FLAGS_ZERO = FLAGS
    lds_k0 = gen_K0(a)
    lds_f = gen_F(a, 0)
    gen_F(a, 1)
    hdr = ["; generated by gen/gen2.py -- fused MQA + FFN pipeline"]
    L = hdr.append
    L(f"; @launch kernel=k0_kernel grid=(256,1,1) block=(1024,1,1) lds={lds_k0}")
    L(f"; @launch kernel=f1_kernel grid=(256,1,1) block=(512,1,1) lds={lds_f}")
    L(f"; @launch kernel=f2_kernel grid=(256,1,1) block=(512,1,1) lds={lds_f}")
    out = "\n".join(hdr) + "\n"
    out += '.amdgcn_target "amdgcn-amd-amdhsa--gfx950"\n.text\n'
    out += "\n".join(a.L) + "\ncode_end:\n"
    out += '.section .rodata,"a"\n' + "\n".join(a.kernels) + "\n"
    path = sys.argv[1] if len(sys.argv) > 1 else f"cdna_kernels/{NAME}.s"
    open(path, 'w').write(out)
    if PROFILE:
        import json
        json.dump(G.PROF_SLOT, open('prof_slots.json', 'w'))
    print("wrote", path, len(out), "bytes")


if __name__ == "__main__":
    main()
```

```python
import os
import sys
import gen as G
from gen import Asm, vr, ar, f2u, half_sum, wave32_max, prologue, frag_loads
from gen import WQF, WOF, W1F, W2F, WKVF, CSQ, CS1, CSKV, VH, VU, KVT, KVF_BYTES, QS, EPS, NAME, PROFILE

LSTRIDE = 0x2000000
XFL = [0x500000, 0x500000 + LSTRIDE]
QFL = [0x700000, 0x700000 + LSTRIDE]
REUSE = int(os.environ.get('REUSE', '1'))
TOUCH = int(os.environ.get('TOUCH', '1'))
_R = 0 if REUSE else LSTRIDE
OFL = [0x900000, 0x900000 + _R]
X1FL = [0xB00000, 0xB00000 + _R]
HFL = [0x1000000, 0x1000000 + _R]
KVFL = [0x1800000, 0x1800000 + LSTRIDE]
KNL = [0x1880000, 0x1880000 + LSTRIDE]
FLAGS = 0x490000
G.WS_USED = 0x4400000
G.PROF = 0x4000000
G.KN = KNL[0]
SC = "sc0 sc1"
SCL = os.environ.get("SCL", "sc1")
SPIN_MAX = 200000

PRIO_IT = int(os.environ.get('PRIO_IT', '7'))
WARM = int(os.environ.get('WARM', '1'))
CODEPF = int(os.environ.get('CODEPF', '0'))
FAST = int(os.environ.get('FAST', '1'))
CZERO = int(os.environ.get('CZERO', '0'))


_uid = [0]


def hstore(a, insts):
    _uid[0] += 1
    u = _uid[0]
    a("s_cmp_lg_u32 s61, 0")
    a(f"s_cbranch_scc1 HS{u}_f")
    for i in insts:
        a(f"{i} {SC}")
    a(f"s_branch HS{u}_e")
    a(f"HS{u}_f:")
    for i in insts:
        a(i)
    a(f"HS{u}_e:")


def publish(a, epoch, tag):
    a("s_waitcnt vmcnt(0)")
    a("s_barrier")
    a("s_cmp_lg_u32 s3, 0")
    a(f"s_cbranch_scc1 {tag}_np")
    a(f"v_mov_b32 v5, {epoch}")
    a("v_mov_b32 v6, 0")
    a("v_cmp_eq_u32 vcc, 0, v1")
    a("s_and_saveexec_b64 s[38:39], vcc")
    hstore(a, ["buffer_store_dword v5, v6, s[8:11], s40 offen"])
    a("s_mov_b64 exec, s[38:39]")
    a(f"{tag}_np:")


def wait_flag(a, epoch, tag):
    a("v_mov_b32 v6, 0")
    a("s_mov_b32 s37, 0")
    a(f"{tag}_poll:")
    a(f"buffer_load_dword v5, v6, s[8:11], s41 offen {SC}")
    a("s_waitcnt vmcnt(0)")
    a("v_readfirstlane_b32 s36, v5")
    a("s_add_u32 s37, s37, 1")
    a(f"s_cmp_ge_u32 s36, {epoch}")
    a(f"s_cbranch_scc1 {tag}_go")
    a(f"s_cmp_gt_u32 s37, {SPIN_MAX}")
    a(f"s_cbranch_scc1 {tag}_go")
    a("s_sleep 1")
    a(f"s_branch {tag}_poll")
    a(f"{tag}_go:")


def ld(a, dst, sbase, idx, stmp, flags=""):
    hi, lo = idx // 4, idx % 4
    if hi == 0:
        so = f"s{sbase}"
    else:
        a(f"s_add_u32 s{stmp}, s{sbase}, {hi*4096}")
        so = f"s{stmp}"
    a(f"buffer_load_dwordx4 {dst}, v2, s[8:11], {so} offen offset:{lo*1024} {flags}")


def reduce8(a, ACC, DST, lds_base=0, pre_barrier=False):
    a("s_lshl_b32 s32, s3, 11")
    a("v_add_u32 v5, s32, v2")
    a("v_add_u32 v6, 0x10000, v5")
    a("s_lshl_b32 s32, s3, 14")
    a("v_add_u32 v7, s32, v2")
    a.nop(12)
    if pre_barrier:
        a("s_waitcnt lgkmcnt(0)")
        a("s_barrier")
    for p in range(8):
        for q in range(2):
            off = (p % 4) * 16384 + q * 1024
            a(f"ds_write_b128 v{5 if p < 4 else 6}, {vr(ACC+8*p+4*q,4)} offset:{off}")
    a("s_waitcnt lgkmcnt(0)")
    a("s_barrier")
    for s in range(8):
        for q in range(2):
            a(f"ds_read_b128 {vr(ACC+8*s+4*q,4)}, v7 offset:{s*2048+q*1024}")
    for s in range(0, 8, 2):
        a(f"s_waitcnt lgkmcnt({12-2*s})")
        for r in range(8):
            if s == 0:
                a(f"v_add_f32 v{DST+r}, v{ACC+r}, v{ACC+8+r}")
            else:
                a(f"v_add_f32 v{ACC+8*s+r}, v{ACC+8*s+r}, v{ACC+8*s+8+r}")
                a(f"v_add_f32 v{DST+r}, v{DST+r}, v{ACC+8*s+r}")


STATQ = 131072
KVS = STATQ + 8192
STAT2 = KVS + 16384
CSP = STAT2 + 256
CSP2 = CSP + 3072


def qkv_tail(a, T, end, QN, KVN, KNN, get_csq, get_csk, get_csv):
    a("s_lshl_b32 s32, s43, 3")
    a(f"s_add_u32 s32, s32, {STATQ}")
    a("v_add_u32 v7, s32, v2")
    for s in range(8):
        a(f"ds_read_b64 {vr(40+2*s,2)}, v7 offset:{s*1024}")
    a("s_waitcnt lgkmcnt(0)")
    for s in range(1, 8):
        a(f"v_add_f32 v40, v40, v{40+2*s}")
        a(f"v_add_f32 v41, v41, v{41+2*s}")
    half_sum(a, 40, 42)
    half_sum(a, 41, 42)
    a(f"v_mul_f32 v40, {f2u(1.0/512):#x}, v40")
    a(f"v_mul_f32 v41, {f2u(1.0/512):#x}, v41")
    a("v_fma_f32 v41, -v40, v40, v41")
    a("v_max_f32 v41, 0, v41")
    a(f"v_add_f32 v41, {f2u(EPS):#x}, v41")
    a("v_rsq_f32 v41, v41")
    a.nop(1)
    a("v_mul_f32 v42, v40, v41")
    a("v_sub_f32 v42, 0, v42")
    a(f"v_mul_f32 v43, {f2u(QS):#x}, v41")
    a(f"v_mul_f32 v44, {f2u(QS):#x}, v42")
    get_csq()
    for r in range(8):
        a(f"v_mul_f32 v{16+r}, v44, v{16+r}")
        a(f"v_fma_f32 v{8+r}, v{8+r}, v43, v{16+r}")
    for q in range(4):
        a(f"v_cvt_pk_bf16_f32 v{24+q}, v{8+2*q}, v{9+2*q}")
    a(f"s_add_u32 s23, s42, {QN:#x}")
    a("buffer_store_dwordx4 v[24:27], v2, s[8:11], s23 offen")
    a("s_cmp_ge_u32 s5, 6")
    a(f"s_cbranch_scc1 {end}")
    a("s_lshr_b32 s32, s5, 2")
    a("s_cmp_eq_u32 s5, 1")
    a("s_cselect_b32 s32, 1, s32")
    a("s_lshl_b32 s32, s32, 1")
    a("s_cmp_lg_u32 s3, s32")
    a(f"s_cbranch_scc1 {end}")
    a(f"v_add_u32 v7, {KVS}, v2")
    for s in range(8):
        for q in range(2):
            a(f"ds_read_b128 {vr(64+8*s+4*q,4)}, v7 offset:{s*2048+q*1024}")
    a(f"s_mul_i32 s33, s45, {KVT}")
    a(f"s_add_u32 s33, s33, {KVN:#x}")
    a("s_waitcnt lgkmcnt(0)")
    for s in range(1, 8):
        for r in range(8):
            a(f"v_add_f32 v{64+r}, v{64+r}, v{64+8*s+r}")
    a("s_cmp_ge_u32 s5, 2")
    a(f"s_cbranch_scc1 {T}_finV")
    a("v_mov_b32 v45, 0")
    get_csk()
    for r in range(8):
        a(f"v_mul_f32 v{16+r}, v42, v{16+r}")
        a(f"v_fma_f32 v{64+r}, v{64+r}, v41, v{16+r}")
        a(f"v_fma_f32 v45, v{64+r}, v{64+r}, v45")
    for q in range(4):
        a(f"v_cvt_pk_bf16_f32 v{28+q}, v{64+2*q}, v{65+2*q}")
    a("buffer_store_dwordx4 v[28:31], v2, s[8:11], s33 offen")
    half_sum(a, 45, 46)
    wave32_max(a, 45, 46)
    a("s_lshl_b32 s32, s45, 2")
    a(f"s_add_u32 s32, s32, {KNN:#x}")
    a("v_mov_b32 v46, 0")
    a("v_cmp_eq_u32 vcc, 0, v1")
    a("s_and_saveexec_b64 s[38:39], vcc")
    a("buffer_store_dword v45, v46, s[8:11], s32 offen")
    a(f"s_branch {end}")
    a(f"{T}_finV:")
    a("v_lshlrev_b32 v7, 2, v3")
    a(f"v_add_u32 v7, {STAT2}, v7")
    a("ds_write_b32 v7, v41")
    a("ds_write_b32 v7, v42 offset:128")
    a("s_and_b32 s32, s5, 1")
    a("s_lshl_b32 s32, s32, 6")
    a(f"s_add_u32 s32, s32, {STAT2}")
    a("v_lshlrev_b32 v7, 4, v4")
    a("v_add_u32 v7, s32, v7")
    get_csv()
    a("s_waitcnt lgkmcnt(0)")
    for q in range(2):
        a(f"ds_read_b128 {vr(16+4*q,4)}, v7 offset:{32*q}")
        a(f"ds_read_b128 {vr(24+4*q,4)}, v7 offset:{128+32*q}")
    a("s_waitcnt lgkmcnt(0)")
    for r in range(8):
        a(f"v_mul_f32 v{24+r}, v47, v{24+r}")
        a(f"v_fma_f32 v{64+r}, v{64+r}, v{16+r}, v{24+r}")
    for q in range(4):
        a(f"v_cvt_pk_bf16_f32 v{32+q}, v{64+2*q}, v{65+2*q}")
    a("v_cmp_eq_u32 s[38:39], 0, v3")
    a("v_mov_b32 v45, 0x3f803f80")
    a("v_mov_b32 v46, 0")
    a("v_cndmask_b32 v45, v46, v45, s[38:39]")
    a("v_cmp_le_u32 vcc, 16, v3")
    a("v_xor_b32 v7, 16, v3")
    a("v_lshlrev_b32 v7, 4, v7")
    for q in range(4):
        a(f"v_cndmask_b32 v{32+q}, v45, v{32+q}, vcc")
    a(f"v_mul_u32_u24 v46, {VH}, v4")
    a("v_add_u32 v7, v7, v46")
    a("s_and_b32 s32, s5, 1")
    a(f"s_mul_i32 s32, s32, {VU}")
    a("s_add_u32 s33, s33, s32")
    a("v_cmp_gt_u32 s[38:39], 2, v3")
    a("s_or_b64 vcc, vcc, s[38:39]")
    a("s_and_saveexec_b64 s[38:39], vcc")
    a("buffer_store_dwordx4 v[32:35], v7, s[8:11], s33 offen offset:1024")


def piece_sgprs(a):
    a("s_lshr_b32 s32, s3, 1")
    a("s_and_b32 s43, s32, 1")
    a("s_lshr_b32 s44, s3, 2")
    a("s_lshl_b32 s45, s4, 1")
    a("s_add_u32 s45, s45, s43")
    a("s_lshl_b32 s46, s5, 1")
    a("s_add_u32 s46, s46, s44")
    a("s_lshl_b32 s42, s45, 5")
    a("s_lshl_b32 s32, s46, 1")
    a("s_add_u32 s42, s42, s32")
    a("s_and_b32 s47, s3, 1")
    a("s_add_u32 s42, s42, s47")
    a("s_lshl_b32 s42, s42, 10")


def code_srd(a, d, tag):
    a(f"s_getpc_b64 s[{d}:{d+1}]")
    a(f"{tag}_pc:")
    a(f"s_add_u32 s{d}, s{d}, f1_kernel-{tag}_pc")
    a(f"s_addc_u32 s{d+1}, s{d+1}, {'-1' if tag != 'K0' else '0'}")
    a(f"s_mov_b32 s{d+2}, code_end-f1_kernel")
    a(f"s_mov_b32 s{d+3}, 0x00020000")


def gen_F(a, L):
    last = (L == 1)
    name = f"f{L+1}_kernel"
    T = f"F{L}"
    a.begin(name)
    end = f"{name}_end"
    prologue(a, end, out_ptr=True, out_off=(64 if last else 0))
    a.srd(16, 12, 2048 * 512 * 2)
    XF, QF, OF, X1F, HF, KVF, KN = XFL[L], QFL[L], OFL[L], X1FL[L], HFL[L], KVFL[L], KNL[L]
    EP = 4 * L
    a("s_lshl_b32 s40, s4, 8")
    a(f"s_add_u32 s40, s40, {FLAGS:#x}")
    a("s_lshl_b32 s41, s3, 2")
    a("s_add_u32 s41, s41, s40")
    a("s_lshl_b32 s32, s5, 2")
    a("s_add_u32 s40, s40, s32")
    piece_sgprs(a)
    a("s_getreg_b32 s61, hwreg(HW_REG_XCC_ID)")
    a("s_and_b32 s61, s61, 15")
    a("s_add_u32 s61, s61, 1")
    a("s_cmp_lg_u32 s3, 0")
    a(f"s_cbranch_scc1 {T}_noxid")
    a("v_mov_b32 v5, s61")
    a("v_mov_b32 v6, 0")
    a("v_cmp_eq_u32 vcc, 0, v1")
    a("s_and_saveexec_b64 s[38:39], vcc")
    a(f"buffer_store_dword v5, v6, s[8:11], s40 offen offset:{64+32*L} {SC}")
    a("s_mov_b64 exec, s[38:39]")
    a(f"{T}_noxid:")
    SCR = KVF_BYTES
    Q = (8, 12)
    C = 16
    O = (32, 48)
    S = (64, 80)
    P = (96, 104)
    E = 112
    KB = (128, 132)
    VB = (136, 144)
    a("s_and_b32 s20, s3, 3")
    a("s_lshr_b32 s30, s3, 2")
    a("s_and_b32 s21, s20, 1")
    a("s_lshl_b32 s21, s21, 1")
    a("s_lshl_b32 s22, s5, 2")
    a("s_add_u32 s21, s21, s22")
    a("s_lshr_b32 s22, s20, 1")
    a("s_lshl_b32 s23, s4, 1")
    a("s_add_u32 s22, s22, s23")
    a("s_lshl_b32 s22, s22, 5")
    a("s_add_u32 s22, s22, s21")
    a("s_add_u32 s23, s22, s30")
    a("s_xor_b32 s24, s30, 1")
    a("s_add_u32 s24, s22, s24")
    a("s_lshl_b32 s22, s23, 10")
    a("s_lshl_b32 s24, s24, 10")
    a(f"s_add_u32 s23, s22, {QF:#x}")
    a(f"s_add_u32 s24, s24, {QF:#x}")
    a(f"buffer_load_dwordx4 {vr(Q[0],4)}, v2, s[8:11], s23 offen")
    a(f"buffer_load_dwordx4 {vr(Q[1],4)}, v2, s[8:11], s24 offen")
    a("v_lshlrev_b32 v5, 2, v1")
    a(f"s_mov_b32 s23, {KN:#x}")
    a("buffer_load_dword v7, v5, s[8:11], s23 offen")
    a("s_lshr_b32 s24, s3, 1")
    a("s_lshl_b32 s24, s24, 10")
    a("s_and_b32 s25, s3, 1")
    a(f"s_mul_i32 s25, s25, {32*KVT}")
    a("s_add_u32 s34, s24, s25")
    a(f"s_add_u32 s35, s34, {KVF:#x}")

    def dma():
        a("s_mov_b32 m0, s34")
        a("s_add_u32 s34, s34, 4096")
        a("buffer_load_dwordx4 v2, s[8:11], s35 offen lds")
        a("s_add_u32 s35, s35, 4096")
    for i in range(6):
        dma()
    a("v_min_u32 v6, 17, v3")
    a("v_mov_b32 v5, 16")
    a("v_cmp_eq_u32 vcc, 20, v3")
    a(f"s_mul_i32 s25, s30, {32*KVT}")
    a.nop(1)
    a("v_cndmask_b32 v6, v6, v5, vcc")
    a("v_lshlrev_b32 v6, 4, v6")
    a(f"v_mul_u32_u24 v5, {VH}, v4")
    a("v_add3_u32 v158, v6, v5, 64")
    a("v_add_u32 v158, 960, v158")
    a("v_add_u32 v156, s25, v2")
    a("v_add_u32 v157, s25, v158")
    a("s_waitcnt vmcnt(6)")
    a("v_mov_b32 v5, 0")
    a("v_mov_b32 v6, 0")
    for q in range(4):
        a(f"v_dot2_f32_bf16 v5, v{Q[0]+q}, v{Q[0]+q}, v5")
        a(f"v_dot2_f32_bf16 v6, v{Q[1]+q}, v{Q[1]+q}, v6")
    a.nop(3)
    half_sum(a, 5, 154)
    half_sum(a, 6, 154)
    a("v_max_f32 v5, v5, v6")
    for off in (0x041F, 0x081F, 0x101F, 0x201F, 0x401F):
        a(f"ds_swizzle_b32 v6, v5 offset:{off:#x}")
        a(f"ds_swizzle_b32 v154, v7 offset:{off:#x}")
        a("s_waitcnt lgkmcnt(0)")
        a("v_max_f32 v5, v5, v6")
        a("v_max_f32 v7, v7, v154")
    half_sum(a, 7, 154, op="v_max_f32")
    a("v_mul_f32 v6, v5, v7")
    a("v_sqrt_f32 v6, v6")
    a.nop(1)
    a(f"v_mul_f32 v6, {f2u(-1.02):#x}, v6")
    for r in range(16):
        a(f"v_mov_b32 v{C+r}, v6")
        a(f"v_mov_b32 v{O[0]+r}, 0")
        a(f"v_mov_b32 v{O[1]+r}, 0")
        a(f"v_mov_b32 v{E+r}, 0")
    for r in range(8):
        a(f"v_mov_b32 v{P[1]+r}, 0")
        a(f"v_mov_b32 v{VB[1]+r}, 0")
    a("s_lshl_b32 s32, s5, 1")
    a("s_lshl_b32 s48, s32, 5")
    a("s_lshl_b32 s33, s3, 2")
    a("s_add_u32 s48, s48, s33")
    a("s_lshl_b32 s48, s48, 10")
    a(f"s_add_u32 s48, s48, {WOF:#x}")
    a("s_add_u32 s49, s48, 32768")
    a("s_min_u32 s32, s3, 6")
    a("s_mul_i32 s51, s5, 7")
    a("s_add_u32 s51, s51, s32")
    a("s_lshl_b32 s50, s51, 15")
    a(f"s_add_u32 s50, s50, {W1F:#x}")
    a(f"s_add_u32 s52, s42, {XF:#x}")
    pf = []
    for i in range(4):
        pf.append((ar(8 * i, 4), 48, i))
        pf.append((ar(8 * i + 4, 4), 49, i))
    if last:
        pf.append((ar(32, 4), 52, 0))
    else:
        a("v_lshlrev_b32 v159, 10, v3")
        a("v_lshl_add_u32 v159, v4, 3, v159")
        a("s_lshl_b32 s52, s45, 15")
        a("s_lshl_b32 s32, s46, 6")
        a("s_add_u32 s52, s52, s32")
        a("s_lshl_b32 s32, s47, 5")
        a("s_add_u32 s52, s52, s32")
        pf.append(None)
    for i in range(15):
        pf.append((ar(36 + 4 * i, 4), 50, i))
    a("s_waitcnt vmcnt(0)")
    a("s_barrier")
    a.stamp(2)
    a(f"ds_read_b128 {vr(KB[0],4)}, v156")
    a(f"ds_read_b128 {vr(KB[1],4)}, v156 offset:{KVT}")
    a(f"ds_read_b128 {vr(VB[0],4)}, v157")
    a(f"ds_read_b128 {vr(VB[0]+4,4)}, v157 offset:{VU}")
    a("s_cmp_lt_u32 s3, 4")
    a(f"s_cbranch_scc1 {T}_noprio")
    a("s_setprio 1")
    a(f"{T}_noprio:")
    a("s_waitcnt lgkmcnt(3)")
    a(f"v_mfma_f32_32x32x16_bf16 {vr(S[0],16)}, {vr(KB[0],4)}, {vr(Q[0],4)}, {'0' if CZERO else vr(C,16)}")
    a.nop(10)
    UN, PV1, PV2, DLY, NE = 4, 3, 6, 2, 16

    def body(extra):
        for t in range(UN):
            for x in range(2):
                y = 1 - x
                ty = t if x == 0 else t + 1
                tv = t - 1 if x == 0 else t
                for i in range(8):
                    if i == 0:
                        if x == 1:
                            a("s_waitcnt lgkmcnt(0)")
                        a(f"v_mfma_f32_32x32x16_bf16 {vr(S[y],16)}, {vr(KB[ty%2],4)}, {vr(Q[y],4)}, {'0' if CZERO else vr(C,16)}")
                        if x == 1:
                            a(f"ds_read_b128 {vr(KB[t%2],4)}, v156 offset:{(t+2)*KVT}")
                            a(f"ds_read_b128 {vr(VB[(t+1)%2],4)}, v157 offset:{(t+1)*KVT}")
                            a(f"ds_read_b128 {vr(VB[(t+1)%2]+4,4)}, v157 offset:{(t+1)*KVT+VU}")
                    e = E + (2 * i) % NE
                    a(f"v_exp_f32 v{e}, v{S[x]+2*i}")
                    a(f"v_exp_f32 v{e+1}, v{S[x]+2*i+1}")
                    j = i - DLY
                    if j >= 0:
                        ej = E + (2 * j) % NE
                        a(f"v_cvt_pk_bf16_f32 v{P[x]+j}, v{ej}, v{ej+1}")
                    else:
                        ej = E + (2 * (j + 8)) % NE
                        a(f"v_cvt_pk_bf16_f32 v{P[y]+j+8}, v{ej}, v{ej+1}")
                    if i == PV1:
                        a(f"v_mfma_f32_32x32x16_bf16 {vr(O[y],16)}, {vr(VB[tv%2],4)}, {vr(P[y],4)}, {vr(O[y],16)}")
                    if i == PV2:
                        a(f"v_mfma_f32_32x32x16_bf16 {vr(O[y],16)}, {vr(VB[tv%2]+4,4)}, {vr(P[y]+4,4)}, {vr(O[y],16)}")
                    if i in (1, 4, 5) and extra:
                        extra.pop(0)()
                if t == UN - 1 and x == 1:
                    a(f"v_add_u32 v156, {UN*KVT}, v156")
                    a(f"v_add_u32 v157, {UN*KVT}, v157")
                    a("s_add_u32 s29, s29, 1")
                    a("s_cmp_lg_u32 s29, 8")

    a("s_mov_b32 s29, 0")
    body([dma] * 11)
    body([])
    a("s_waitcnt vmcnt(0)")
    a("s_barrier")
    def rawres():
        a("buffer_load_dwordx2 a[32:33], v159, s[16:19], s52 offen")
        a("buffer_load_dwordx2 a[34:35], v159, s[16:19], s52 offen offset:16")
    body([(lambda e=e: ld(a, e[0], e[1], e[2], 33)) if e else rawres for e in pf])
    if WARM:
        a("s_lshr_b32 s56, s4, 3")
        a("s_and_b32 s56, s56, 3")
        a("s_and_b32 s57, s56, 1")
        a("s_lshl_b32 s58, s5, 1")
        a("s_add_u32 s57, s57, s58")
        a("s_mul_i32 s57, s57, 112")
        a("s_mul_i32 s58, s3, 14")
        a("s_add_u32 s57, s57, s58")
        a("s_lshr_b32 s58, s56, 1")
        a("s_mul_i32 s58, s58, 7")
        a("s_add_u32 s57, s57, s58")
        a("s_lshl_b32 s57, s57, 10")
        a(f"s_add_u32 s57, s57, {W2F:#x}")
        a("s_lshl_b32 s58, s56, 12")
        a("s_add_u32 s58, s58, s50")
        a(f"s_add_u32 s58, s58, {15*1024}")
        a("s_and_b32 s59, s56, 1")
        a("s_lshl_b32 s59, s59, 15")
        a("s_lshr_b32 s60, s56, 1")
        a("s_lshl_b32 s60, s60, 11")
        a("s_add_u32 s59, s59, s60")
        a("s_add_u32 s59, s59, s48")
        a(f"s_add_u32 s59, s59, {(WQF - WOF) & 0xffffffff:#x}")
        wl = [(57, i) for i in range(7)] + [(58, i) for i in range(5)] + ([(59, i) for i in range(2)] if not last else [])
        body([(lambda b=b, i=i: ld(a, "v[152:155]", b, i, 33)) for (b, i) in wl])
    a("v_and_b32 v5, 7, v1")
    a("v_lshlrev_b32 v5, 2, v5")
    a("s_lshl_b32 s62, s4, 8")
    a(f"s_add_u32 s62, s62, {FLAGS:#x}")
    a(f"buffer_load_dword v159, v5, s[8:11], s62 offen offset:{64+32*L} {SC}")
    if TOUCH and (L == 0 or not REUSE):
        a(f"s_add_u32 s20, s22, {OF:#x}")
        a(f"s_add_u32 s21, s42, {X1F:#x}")
        a("s_lshl_b32 s23, s4, 1")
        a("s_mul_i32 s23, s23, 112")
        a("s_lshl_b32 s24, s51, 1")
        a("s_add_u32 s23, s23, s24")
        a("s_lshl_b32 s23, s23, 10")
        a(f"s_add_u32 s23, s23, {HF:#x}")
        a("s_add_u32 s24, s23, 1024")
        a(f"s_add_u32 s25, s23, {112*1024}")
        a("s_add_u32 s26, s25, 1024")
        a(f"s_add_u32 s27, s42, {XFL[1]:#x}")
        a(f"s_add_u32 s28, s42, {QFL[1]:#x}")
        a("v_mov_b32 v6, s20")
        for k, sr in enumerate((21, 23, 24, 25, 26, 27, 28)):
            a(f"v_mov_b32 v7, s{sr}")
            a(f"v_cmp_le_u32 vcc, {8*(k+1)}, v1")
            a.nop(2)
            a("v_cndmask_b32 v6, v6, v7, vcc")
        a("v_and_b32 v7, 7, v1")
        a("v_lshl_add_u32 v6, v7, 7, v6")
        a("buffer_load_dword v7, v6, s[8:11], 0 offen")
    a(f"{T}_loop:")
    a(f"s_cmp_lg_u32 s29, {PRIO_IT}")
    a(f"s_cbranch_scc1 {T}_prio2")
    a("s_setprio 0")
    a(f"{T}_prio2:")
    body([])
    a(f"s_cbranch_scc1 {T}_loop")
    a("s_waitcnt vmcnt(0)")
    for j in range(8 - DLY, 8):
        ej = E + (2 * j) % NE
        a(f"v_cvt_pk_bf16_f32 v{P[1]+j}, v{ej}, v{ej+1}")
    a.nop(2)
    a(f"v_mfma_f32_32x32x16_bf16 {vr(O[1],16)}, {vr(VB[1],4)}, {vr(P[1],4)}, {vr(O[1],16)}")
    a(f"v_mfma_f32_32x32x16_bf16 {vr(O[1],16)}, {vr(VB[1]+4,4)}, {vr(P[1]+4,4)}, {vr(O[1],16)}")
    a("s_mul_i32 s25, s3, 2304")
    a(f"s_add_u32 s25, s25, {SCR}")
    a("v_add_u32 v5, s25, v2")
    a("v_lshlrev_b32 v6, 2, v1")
    a("v_add_u32 v6, s25, v6")
    a("s_xor_b32 s25, s3, 4")
    a("s_mul_i32 s25, s25, 2304")
    a(f"s_add_u32 s25, s25, {SCR}")
    a("v_add_u32 v7, s25, v2")
    a("s_waitcnt vmcnt(0)")
    a("s_mov_b32 s37, 0")
    a("v_and_b32 v153, 7, v1")
    a("v_lshlrev_b32 v153, 2, v153")
    a(f"{T}_xchk:")
    a("v_cmp_eq_u32 vcc, 0, v159")
    a("s_cmp_eq_u64 vcc, 0")
    a(f"s_cbranch_scc1 {T}_xok")
    a("s_add_u32 s37, s37, 1")
    a(f"s_cmp_gt_u32 s37, {SPIN_MAX}")
    a(f"s_cbranch_scc1 {T}_xok")
    a("s_sleep 1")
    a(f"buffer_load_dword v159, v153, s[8:11], s62 offen offset:{64+32*L} {SC}")
    a("s_waitcnt vmcnt(0)")
    a(f"s_branch {T}_xchk")
    a(f"{T}_xok:")
    a("v_cmp_ne_u32 vcc, s61, v159")
    a("s_cmp_eq_u64 vcc, 0")
    a(f"s_cselect_b32 s61, {FAST}, 0")
    a("v_lshlrev_b32 v154, 2, v1")
    a("v_add_u32 v154, s25, v154")
    a("s_waitcnt lgkmcnt(0)")
    a.nop(8)
    a(f"ds_write_b128 v5, {vr(O[1],4)}")
    a(f"ds_write_b128 v5, {vr(O[1]+4,4)} offset:1024")
    a(f"ds_write_b32 v6, v{O[1]+8} offset:2048")
    a("s_waitcnt lgkmcnt(0)")
    a("s_barrier")
    a(f"ds_read_b128 {vr(S[0],4)}, v7")
    a(f"ds_read_b128 {vr(S[0]+4,4)}, v7 offset:1024")
    a(f"ds_read_b32 v{S[0]+8}, v154 offset:2048")
    a("s_waitcnt lgkmcnt(0)")
    for r in range(9):
        a(f"v_add_f32 v{O[0]+r}, v{O[0]+r}, v{S[0]+r}")
    a(f"v_mov_b32 v6, {f2u(2.0**-60):#x}")
    a(f"v_cmp_nge_f32 vcc, v{O[0]+8}, v6")
    a("s_cmp_eq_u64 vcc, 0")
    a(f"s_cbranch_scc1 {T}_afin")
    a("v_mov_b32 v156, v2")
    a("v_mov_b32 v6, 0xff800000")
    a("s_mov_b32 s29, 64")
    a(f"{T}_fb:")
    a(f"ds_read_b128 {vr(KB[0],4)}, v156")
    a(f"v_add_u32 v156, {KVT}, v156")
    a("s_waitcnt lgkmcnt(0)")
    a(f"v_mfma_f32_32x32x16_bf16 {vr(S[0],16)}, {vr(KB[0],4)}, {vr(Q[0],4)}, 0")
    a.nop(16)
    for i in range(8):
        a(f"v_max3_f32 v6, v6, v{S[0]+2*i}, v{S[0]+2*i+1}")
    a("s_sub_u32 s29, s29, 1")
    a("s_cmp_lg_u32 s29, 0")
    a(f"s_cbranch_scc1 {T}_fb")
    half_sum(a, 6, 7, op="v_max_f32")
    a("v_sub_f32 v6, 0, v6")
    for r in range(16):
        a(f"v_mov_b32 v{C+r}, v6")
        a(f"v_mov_b32 v{O[0]+r}, 0")
    a("v_mov_b32 v156, v2")
    a("v_mov_b32 v157, v158")
    a("s_mov_b32 s29, 64")
    a(f"{T}_fb2:")
    a(f"ds_read_b128 {vr(KB[0],4)}, v156")
    a(f"ds_read_b128 {vr(VB[0],4)}, v157")
    a(f"ds_read_b128 {vr(VB[0]+4,4)}, v157 offset:{VU}")
    a(f"v_add_u32 v156, {KVT}, v156")
    a(f"v_add_u32 v157, {KVT}, v157")
    a("s_waitcnt lgkmcnt(0)")
    a(f"v_mfma_f32_32x32x16_bf16 {vr(S[0],16)}, {vr(KB[0],4)}, {vr(Q[0],4)}, {vr(C,16)}")
    a.nop(16)
    for i in range(16):
        a(f"v_exp_f32 v{S[0]+i}, v{S[0]+i}")
    a.nop(1)
    for i in range(8):
        a(f"v_cvt_pk_bf16_f32 v{P[0]+i}, v{S[0]+2*i}, v{S[0]+2*i+1}")
    a.nop(2)
    a(f"v_mfma_f32_32x32x16_bf16 {vr(O[0],16)}, {vr(VB[0],4)}, {vr(P[0],4)}, {vr(O[0],16)}")
    a(f"v_mfma_f32_32x32x16_bf16 {vr(O[0],16)}, {vr(VB[0]+4,4)}, {vr(P[0]+4,4)}, {vr(O[0],16)}")
    a.nop(16)
    a("s_sub_u32 s29, s29, 1")
    a("s_cmp_lg_u32 s29, 0")
    a(f"s_cbranch_scc1 {T}_fb2")
    a(f"{T}_afin:")
    a(f"v_rcp_f32 v6, v{O[0]+8}")
    a.nop(1)
    for r in range(8):
        a(f"v_mul_f32 v{O[0]+r}, v{O[0]+r}, v6")
    for q in range(4):
        a(f"v_cvt_pk_bf16_f32 v{S[0]+q}, v{O[0]+2*q}, v{O[0]+2*q+1}")
    a(f"s_add_u32 s23, s22, {OF:#x}")
    hstore(a, [f"buffer_store_dwordx4 {vr(S[0],4)}, v2, s[8:11], s23 offen"])
    a.stamp(3)
    publish(a, EP + 1, f"{T}_p1")
    a("s_lshl_b32 s20, s4, 6")
    a("s_lshl_b32 s21, s3, 2")
    a("s_add_u32 s20, s20, s21")
    a("s_lshl_b32 s53, s20, 10")
    a(f"s_add_u32 s20, s53, {OF:#x}")
    a("s_add_u32 s21, s20, 32768")
    wait_flag(a, EP + 1, f"{T}_w1")
    a.stamp(4)
    for i in range(4):
        ld(a, vr(8 + 8 * i, 4), 20, i, 33, SCL)
        ld(a, vr(12 + 8 * i, 4), 21, i, 33, SCL)
    ACC = 64
    for i in range(4):
        a(f"s_waitcnt vmcnt({2*(3-i)})")
        for c in range(2):
            for r in range(2):
                t = 2 * c + r
                cin = "0" if i == 0 else vr(ACC + 16 * t, 16)
                a(f"v_mfma_f32_32x32x16_bf16 {vr(ACC+16*t,16)}, {ar(8*i+4*c,4)}, {vr(8+8*i+4*r,4)}, {cin}")
    for i in range(8):
        ld(a, ar(4 * i, 4), 50, 15 + i, 33)
    reduce8(a, ACC, 128)
    for q in range(4):
        a(f"v_accvgpr_read_b32 v{136+q}, a{32+q}")
    for q in range(4):
        a(f"v_lshlrev_b32 v{140}, 16, v{136+q}")
        a(f"v_and_b32 v{141}, 0xffff0000, v{136+q}")
        a(f"v_add_f32 v{128+2*q}, v{128+2*q}, v140")
        a(f"v_add_f32 v{129+2*q}, v{129+2*q}, v141")
    for q in range(4):
        a(f"v_cvt_pk_bf16_f32 v{136+q}, v{128+2*q}, v{129+2*q}")
    a(f"s_add_u32 s23, s42, {X1F:#x}")
    hstore(a, ["buffer_store_dwordx4 v[136:139], v2, s[8:11], s23 offen"])
    for q in range(4):
        a(f"v_accvgpr_write_b32 a{32+q}, v{136+q}")
    a.stamp(5)
    publish(a, EP + 2, f"{T}_p2")
    for i in range(9):
        ld(a, vr(64 + 4 * i, 4), 50, 23 + i, 33)
    a("v_lshlrev_b32 v7, 4, v4")
    a("s_lshl_b32 s27, s51, 7")
    a(f"s_add_u32 s27, s27, {CS1:#x}")
    for q in range(4):
        a(f"buffer_load_dwordx4 {vr(100+4*q,4)}, v7, s[8:11], s27 offen offset:{32*q}")
    a(f"s_add_u32 s20, s53, {X1F:#x}")
    a("s_add_u32 s21, s20, 32768")
    wait_flag(a, EP + 2, f"{T}_w2")
    a.stamp(6)
    for i in range(4):
        ld(a, vr(32 + 4 * i, 4), 20, i, 33, SCL)
    for i in range(4):
        ld(a, vr(48 + 4 * i, 4), 21, i, 33, SCL)
    STAT = 65536
    a("s_lshl_b32 s21, s3, 12")
    a("v_add_u32 v5, s21, v2")
    a("s_mov_b32 s28, 0x3f803f80")
    for r in range(8):
        a(f"v_mov_b32 v{8+r}, 0")
    for rr in range(2):
        a(f"s_waitcnt vmcnt({4*(1-rr)})")
        for i in range(4):
            a(f"ds_write_b128 v5, {vr(32+16*rr+4*i,4)} offset:{32768*rr+1024*i}")
        for i in range(16):
            x = 32 + 16 * rr + i
            k = 4 * (i % 2)
            a(f"v_dot2_f32_bf16 v{8+k+2*rr}, v{x}, s28, v{8+k+2*rr}")
            a(f"v_dot2_f32_bf16 v{9+k+2*rr}, v{x}, v{x}, v{9+k+2*rr}")
    a("s_lshl_b32 s21, s3, 10")
    a(f"s_add_u32 s21, s21, {STAT}")
    a("v_add_u32 v5, s21, v2")
    a.nop(2)
    for r in range(4):
        a(f"v_add_f32 v{8+r}, v{8+r}, v{12+r}")
    a("ds_write_b128 v5, v[8:11]")
    a("s_waitcnt lgkmcnt(0)")
    a("s_barrier")
    a.stamp(7)
    a("s_lshl_b32 s32, s5, 1")
    a("s_mul_i32 s54, s32, 112")
    a("s_mul_i32 s33, s3, 14")
    a("s_add_u32 s54, s54, s33")
    a("s_lshl_b32 s54, s54, 10")
    a(f"s_add_u32 s54, s54, {W2F:#x}")
    a(f"s_add_u32 s55, s54, {112*1024}")
    a("s_cmp_eq_u32 s3, 7")
    a(f"s_cbranch_scc1 {T}_cskip")
    CACC = 116

    def w1reg(i):
        if i < 15:
            return ar(36 + 4 * i, 4)
        if i < 23:
            return ar(4 * (i - 15), 4)
        return vr(64 + 4 * (i - 23), 4)

    CR = 6

    def rd(i):
        b = 8 + 8 * (i % CR)
        a(f"ds_read_b128 {vr(b,4)}, v2 offset:{i*1024}")
        a(f"ds_read_b128 {vr(b+4,4)}, v2 offset:{32768+i*1024}")
    def w2reg(j):
        if j < 23:
            return w1reg(j)
        return vr(136 + 4 * (j - 23), 4)
    for i in range(CR - 1):
        rd(i)
    for i in range(32):
        if i + CR - 1 < 32:
            rd(i + CR - 1)
        pend = min(32, i + CR) - i - 1
        a(f"s_waitcnt lgkmcnt({2*pend})")
        b = 8 + 8 * (i % CR)
        for r in range(2):
            cin = "0" if i == 0 else vr(CACC + 16 * r, 16)
            a(f"v_mfma_f32_32x32x16_bf16 {vr(CACC+16*r,16)}, {w1reg(i)}, {vr(b+4*r,4)}, {cin}")
        if 1 <= i <= 23:
            j = i - 1
            ld(a, w2reg(j), 54 + (j & 1), j >> 1, 33)
    a(f"s_branch {T}_cepi")
    a(f"{T}_cskip:")
    for j in range(23):
        ld(a, w2reg(j), 54 + (j & 1), j >> 1, 33)
    a(f"{T}_cepi:")
    a.stamp(8)
    a("s_cmp_eq_u32 s3, 7")
    a(f"s_cbranch_scc1 {T}_cdone")
    a(f"v_add_u32 v5, {STAT}, v2")
    for w in range(8):
        a(f"ds_read_b128 {vr(32+4*w,4)}, v5 offset:{1024*w}")
    a("s_waitcnt lgkmcnt(0)")
    for w in range(1, 8):
        for r in range(4):
            a(f"v_add_f32 v{32+r}, v{32+r}, v{32+4*w+r}")
    for r in range(4):
        half_sum(a, 32 + r, 36)
    for r in range(2):
        m, x2 = 32 + 2 * r, 33 + 2 * r
        a(f"v_mul_f32 v{m}, {f2u(1.0/512):#x}, v{m}")
        a(f"v_mul_f32 v{x2}, {f2u(1.0/512):#x}, v{x2}")
        a(f"v_fma_f32 v{x2}, -v{m}, v{m}, v{x2}")
        a(f"v_max_f32 v{x2}, 0, v{x2}")
        a(f"v_add_f32 v{x2}, {f2u(EPS):#x}, v{x2}")
        a(f"v_rsq_f32 v{8+2*r}, v{x2}")
        a.nop(1)
        a(f"v_mul_f32 v{9+2*r}, v{m}, v{8+2*r}")
        a(f"v_sub_f32 v{9+2*r}, 0, v{9+2*r}")
    for rr in range(2):
        for r in range(16):
            a(f"v_mul_f32 v{40+r}, v{9+2*rr}, v{100+r}")
            a(f"v_fma_f32 v{CACC+16*rr+r}, v{CACC+16*rr+r}, v{8+2*rr}, v{40+r}")
        for q in range(8):
            a(f"v_cvt_pk_bf16_f32 v{16+8*rr+q}, v{CACC+16*rr+2*q}, v{CACC+16*rr+2*q+1}")
        for q in range(8):
            a(f"v_pk_max_i16 v{16+8*rr+q}, v{16+8*rr+q}, 0")
    a("s_lshl_b32 s26, s4, 1")
    a("s_mul_i32 s26, s26, 112")
    a("s_lshl_b32 s27, s51, 1")
    a("s_add_u32 s26, s26, s27")
    a("s_lshl_b32 s26, s26, 10")
    a(f"s_add_u32 s26, s26, {HF:#x}")
    a(f"s_add_u32 s27, s26, {112*1024}")
    hstore(a, ["buffer_store_dwordx4 v[16:19], v2, s[8:11], s26 offen",
               "buffer_store_dwordx4 v[20:23], v2, s[8:11], s26 offen offset:1024",
               "buffer_store_dwordx4 v[24:27], v2, s[8:11], s27 offen",
               "buffer_store_dwordx4 v[28:31], v2, s[8:11], s27 offen offset:1024"])
    a(f"{T}_cdone:")
    a.stamp(9)
    publish(a, EP + 3, f"{T}_p3")
    for j in range(23, 28):
        ld(a, w2reg(j), 54 + (j & 1), j >> 1, 33)
    a("s_lshl_b32 s20, s4, 1")
    a("s_mul_i32 s20, s20, 112")
    a("s_mul_i32 s21, s3, 14")
    a("s_add_u32 s20, s20, s21")
    a("s_lshl_b32 s20, s20, 10")
    a(f"s_add_u32 s20, s20, {HF:#x}")
    a(f"s_add_u32 s21, s20, {112*1024}")
    wait_flag(a, EP + 3, f"{T}_w3")
    a.stamp(10)
    RING = 8
    DACC = 72

    def hld(i):
        b = 8 + 8 * (i % RING)
        ld(a, vr(b, 4), 20, i, 33, SCL)
        ld(a, vr(b + 4, 4), 21, i, 33, SCL)
    for i in range(RING):
        hld(i)
    def qreg(j):
        return w1reg(j)
    qpf = []
    if not last:
        a(f"s_add_u32 s48, s48, {(WQF - WOF) & 0xffffffff:#x}")
        a("s_add_u32 s49, s48, 32768")
        a("s_lshl_b32 s56, s3, 12")
        a(f"s_add_u32 s56, s56, {WKVF:#x}")
        a("v_lshlrev_b32 v156, 4, v4")
        a("v_lshlrev_b32 v157, 2, v3")
        a("s_lshl_b32 s57, s46, 7")
        a("s_lshl_b32 s33, s47, 6")
        a("s_add_u32 s57, s57, s33")
        a(f"s_add_u32 s57, s57, {CSQ:#x}")
        a(f"s_mov_b32 s58, {CSKV:#x}")
        for i in range(4):
            qpf.append(lambda i=i: ld(a, qreg(2 * i), 48, i, 33))
            qpf.append(lambda i=i: ld(a, qreg(2 * i + 1), 49, i, 33))
        for i in range(4):
            qpf.append(lambda i=i: ld(a, qreg(8 + i), 56, i, 33))
        for q in range(2):
            qpf.append(lambda q=q: a(f"buffer_load_dwordx4 {qreg(12+q)}, v156, s[8:11], s57 offen offset:{32*q}"))
        for q in range(2):
            qpf.append(lambda q=q: a(f"buffer_load_dwordx4 {qreg(14+q)}, v156, s[8:11], s58 offen offset:{32*q}"))
        qpf.append(lambda: a("buffer_load_dword a4, v157, s[8:11], s58 offen"))
    issued = 2 * RING
    order = [('h', i) for i in range(RING)]
    for i in range(14):
        pos = order.index(('h', i))
        after = sum(2 if k == 'h' else 1 for (k, _) in order[pos + 1:])
        a(f"s_waitcnt vmcnt({after})")
        b = 8 + 8 * (i % RING)
        for c in range(2):
            for r in range(2):
                t = 2 * c + r
                cin = "0" if i == 0 else vr(DACC + 16 * t, 16)
                a(f"v_mfma_f32_32x32x16_bf16 {vr(DACC+16*t,16)}, {w2reg(2*i+c)}, {vr(b+4*r,4)}, {cin}")
        if i + RING < 14:
            hld(i + RING)
            order.append(('h', i + RING))
        elif qpf:
            for _ in range(3):
                k = sum(1 for (kk, _) in order if kk == 'q')
                if qpf and k < 2 * i:
                    qpf.pop(0)()
                    order.append(('q', k))
    a.stamp(11)
    assert not qpf
    reduce8(a, DACC, 8)
    for q in range(4):
        a(f"v_accvgpr_read_b32 v{16+q}, a{32+q}")
    for q in range(4):
        a(f"v_lshlrev_b32 v20, 16, v{16+q}")
        a(f"v_and_b32 v21, 0xffff0000, v{16+q}")
        a(f"v_add_f32 v{8+2*q}, v{8+2*q}, v20")
        a(f"v_add_f32 v{9+2*q}, v{9+2*q}, v21")
    for q in range(4):
        a(f"v_cvt_pk_bf16_f32 v{16+q}, v{8+2*q}, v{9+2*q}")
    if last:
        a.nop(2)
        a("v_permlane32_swap_b32 v16, v18")
        a("v_permlane32_swap_b32 v17, v19")
        a("v_lshlrev_b32 v5, 10, v3")
        a("v_lshl_add_u32 v5, v4, 4, v5")
        a("s_lshl_b32 s31, s45, 15")
        a("s_lshl_b32 s32, s46, 6")
        a("s_add_u32 s31, s31, s32")
        a("s_lshl_b32 s32, s47, 5")
        a("s_add_u32 s31, s31, s32")
        a("buffer_store_dwordx4 v[16:19], v5, s[16:19], s31 offen")
        a.stamp(12)
    else:
        XN, QN, KVN, KNN = XFL[1], QFL[1], KVFL[1], KNL[1]
        a(f"s_add_u32 s23, s42, {XN:#x}")
        hstore(a, ["buffer_store_dwordx4 v[16:19], v2, s[8:11], s23 offen"])
        a.stamp(12)
        publish(a, EP + 4, f"{T}_p4")
        a(f"s_add_u32 s20, s53, {XN:#x}")
        a("s_add_u32 s21, s20, 32768")
        a("s_mov_b32 s28, 0x3f803f80")
        wait_flag(a, EP + 4, f"{T}_w4")
        a.stamp(13)
        for i in range(4):
            ld(a, vr(8 + 8 * i, 4), 20, i, 33, SCL)
            ld(a, vr(12 + 8 * i, 4), 21, i, 33, SCL)
        for r in range(8):
            a(f"v_mov_b32 v{40+r}, 0")
        ACC = 64
        for i in range(4):
            a(f"s_waitcnt vmcnt({2*(3-i)})")
            for c in range(2):
                for r in range(2):
                    t = 2 * c + r
                    cin = "0" if i == 0 else vr(ACC + 16 * t, 16)
                    a(f"v_mfma_f32_32x32x16_bf16 {vr(ACC+16*t,16)}, {qreg(2*i+c)}, {vr(8+8*i+4*r,4)}, {cin}")
                    for q in range(4):
                        x = 8 + 8 * i + 4 * r + q
                        k = 40 + 4 * (q % 2) + 2 * r + c
                        if c == 0:
                            a(f"v_dot2_f32_bf16 v{k}, v{x}, s28, v{k}")
                        else:
                            a(f"v_dot2_f32_bf16 v{k}, v{x}, v{x}, v{k}")
        a("s_lshl_b32 s32, s3, 11")
        a(f"s_add_u32 s32, s32, {KVS}")
        a("v_add_u32 v7, s32, v2")
        a("s_cmp_ge_u32 s5, 6")
        a(f"s_cbranch_scc1 {T}_kvdone")
        for task in range(6):
            if task < 5:
                a(f"s_cmp_lg_u32 s5, {task}")
                a(f"s_cbranch_scc1 {T}_kvt{task+1}")
            kind = 'K' if task < 2 else 'V'
            r = task if task < 2 else (task - 2) >> 1
            u = 0 if task < 2 else (task & 1)
            for i in range(4):
                cin = "0" if i == 0 else vr(128, 16)
                if kind == 'K':
                    a(f"v_mfma_f32_32x32x16_bf16 {vr(128,16)}, {qreg(8+i)}, {vr(8+8*i+4*r,4)}, {cin}")
                else:
                    a(f"v_mfma_f32_32x32x16_bf16 {vr(128,16)}, {vr(8+8*i+4*r,4)}, {qreg(8+i)}, {cin}")
            a.nop(16)
            a(f"ds_write_b128 v7, {vr(128+8*u,4)}")
            a(f"ds_write_b128 v7, {vr(132+8*u,4)} offset:1024")
            if task < 5:
                a(f"s_branch {T}_kvdone")
                a(f"{T}_kvt{task+1}:")
        a(f"{T}_kvdone:")
        a("s_lshl_b32 s32, s3, 10")
        a(f"s_add_u32 s32, s32, {STATQ}")
        a("v_add_u32 v7, s32, v2")
        for r in range(4):
            a(f"v_add_f32 v{40+r}, v{40+r}, v{44+r}")
        a("ds_write_b128 v7, v[40:43]")
        reduce8(a, ACC, 8)
        a.stamp(14)
        qkv_tail(a, T, end, QN, KVN, KNN,
                 lambda: [a(f"v_accvgpr_read_b32 v{16+r}, a{84+r}") for r in range(8)],
                 lambda: [a(f"v_accvgpr_read_b32 v{16+r}, a{92+r if r < 4 else r-4}") for r in range(8)],
                 lambda: a("v_accvgpr_read_b32 v47, a4"))
    a(f"{end}:")
    a.stamp_flush(16)
    a(f"{end}x:")
    a("s_endpgm")
    a.desc(name, 160, agpr=96)
    return SCR + 8 * 2304


def tr_addr(a, dst, RS, t1, t2):
    a(f"v_lshrrev_b32 v{t1}, 5, v1")
    a(f"v_lshlrev_b32 v{t1}, 2, v{t1}")
    a(f"v_bfe_u32 v{t2}, v1, 2, 2")
    a(f"v_add_u32 v{t1}, v{t1}, v{t2}")
    a(f"v_mul_u32_u24 v{dst}, {RS}, v{t1}")
    a(f"v_bfe_u32 v{t1}, v1, 4, 1")
    a(f"v_lshlrev_b32 v{t1}, 5, v{t1}")
    a(f"v_and_b32 v{t2}, 3, v1")
    a(f"v_lshlrev_b32 v{t2}, 3, v{t2}")
    a(f"v_add3_u32 v{dst}, v{dst}, v{t1}, v{t2}")


def gen_K0(a):
    name = "k0_kernel"
    T = "K0"
    a.begin(name)
    end = f"{name}_end"
    a("s_cmp_ge_u32 s2, 256")
    a(f"s_cbranch_scc1 {end}x")
    a.stamp(0)
    a("s_load_dwordx16 s[16:31], s[0:1], 0")
    a("s_load_dwordx2 s[6:7], s[0:1], 80")
    a("v_and_b32 v1, 63, v0")
    a("v_lshrrev_b32 v2, 6, v0")
    a("v_and_b32 v3, 31, v1")
    a("v_readfirstlane_b32 s60, v2")
    a("v_lshrrev_b32 v4, 5, v1")
    a("v_lshlrev_b32 v2, 4, v1")
    a("s_and_b32 s4, s2, 31")
    a("s_lshr_b32 s5, s2, 5")
    a("s_and_b32 s3, s60, 7")
    a("s_waitcnt lgkmcnt(0)")
    a.srd(8, 6, G.WS_USED)
    a.srd(52, 20, 512 * 16 * 2)
    a.srd(56, 22, 512 * 16 * 2)
    a("s_mov_b32 s61, 0x3f803f80")
    a("s_cmp_ge_u32 s60, 8")
    a("s_cbranch_scc1 K0_prep")
    a.stamp(1)
    a.srd(12, 16, 2048 * 512 * 2)
    a.srd(48, 18, 512 * 512 * 2)
    piece_sgprs(a)
    a("v_lshrrev_b32 v6, 3, v1")
    a("v_lshlrev_b32 v6, 10, v6")
    a("v_and_b32 v7, 7, v1")
    a("v_lshl_add_u32 v6, v7, 4, v6")
    a("s_lshl_b32 s20, s4, 16")
    a("s_lshl_b32 s22, s3, 7")
    a("s_add_u32 s20, s20, s22")
    for k in range(8):
        a(f"s_add_u32 s21, s20, {8192*k}")
        a(f"buffer_load_dwordx4 {vr(64+4*k,4)}, v6, s[12:15], s21 offen")
    a("v_lshrrev_b32 v7, 2, v1")
    a("v_lshlrev_b32 v7, 5, v7")
    a("v_and_b32 v5, 1, v1")
    a("v_lshl_add_u32 v7, v5, 4, v7")
    a("v_and_b32 v5, 2, v1")
    a("v_cmp_eq_u32 vcc, 0, v5")
    a("s_lshl_b32 s20, s3, 11")
    a("s_and_saveexec_b64 s[38:39], vcc")
    for i in range(4):
        a(f"buffer_load_dwordx4 {vr(96+4*i,4)}, v7, s[52:55], s20 offen offset:{512*i}")
    a("s_andn2_b64 exec, s[38:39], exec")
    for i in range(4):
        a(f"buffer_load_dwordx4 {vr(96+4*i,4)}, v7, s[56:59], s20 offen offset:{512*i}")
    a("s_mov_b64 exec, s[38:39]")
    a("s_lshl_b32 s22, s3, 16")
    a("s_lshl_b32 s23, s5, 7")
    a("s_add_u32 s22, s22, s23")
    a("s_lshl_b32 s23, s3, 13")
    for i in range(8):
        a(f"s_add_u32 m0, s23, {1024*i}")
        a(f"s_add_u32 s24, s22, {8192*i}")
        a("buffer_load_dwordx4 v6, s[48:51], s24 offen lds")
    a.stamp(2)
    tr_addr(a, 56, 128, 5, 6)
    a("v_add_u32 v56, s23, v56")
    tr_addr(a, 57, 64, 5, 6)
    a("s_lshl_b32 s21, s3, 12")
    a("s_add_u32 s21, s21, 65536")
    a("v_add_u32 v57, s21, v57")
    a("v_lshrrev_b32 v5, 3, v1")
    a("v_and_b32 v6, 7, v1")
    a("v_xor_b32 v6, v6, v5")
    a("v_lshlrev_b32 v6, 4, v6")
    a("v_lshl_add_u32 v112, v5, 7, v6")
    a("v_add_u32 v112, s21, v112")
    a("v_and_b32 v5, 7, v3")
    a("v_lshlrev_b32 v5, 4, v5")
    a("v_lshl_add_u32 v5, v3, 7, v5")
    a("v_lshl_add_u32 v5, v4, 3, v5")
    a("v_add_u32 v113, s21, v5")
    a("v_add_u32 v114, s21, v2")
    for c in range(8):
        a(f"v_xor_b32 v{116+c}, {c<<4}, v113")
    for r in range(6):
        a(f"v_mov_b32 v{58+r}, 0")
    a("v_mov_b32 v7, 0")
    for r in range(2):
        a(f"s_waitcnt vmcnt({16+4*(1-r)})")
        if r == 0:
            a.stamp(3)
        for j in range(4):
            a(f"ds_write_b128 v112, {vr(64+16*r+4*j,4)} offset:{1024*j}")
        a("s_waitcnt lgkmcnt(0)")
        for i in range(4):
            b = 8 + 8 * i + 4 * r
            a(f"ds_read_b64 {vr(b,2)}, v{116+2*i}")
            a(f"ds_read_b64 {vr(b+2,2)}, v{117+2*i}")
        a("s_waitcnt lgkmcnt(0)")
    a("s_waitcnt vmcnt(8)")
    for i in range(4):
        a(f"ds_write_b128 v114, {vr(96+4*i,4)} offset:{1024*i}")
    a("s_waitcnt lgkmcnt(0)")
    for i in range(4):
        a(f"ds_read_b64_tr_b16 {vr(40+4*i,2)}, v57 offset:{16*i*64}")
        a(f"ds_read_b64_tr_b16 {vr(42+4*i,2)}, v57 offset:{(16*i+8)*64}")
    a("s_waitcnt lgkmcnt(0)")
    for r in range(16):
        a(f"v_dot2_f32_bf16 v7, v{40+r}, s61, v7")
    a("s_lshl_b32 s32, s3, 11")
    a(f"s_add_u32 s32, s32, {KVS}")
    a("v_add_u32 v6, s32, v2")
    a("s_cmp_ge_u32 s5, 6")
    a(f"s_cbranch_scc1 {T}_kvdone")
    for task in range(6):
        if task < 5:
            a(f"s_cmp_lg_u32 s5, {task}")
            a(f"s_cbranch_scc1 {T}_kvt{task+1}")
        kind = 'K' if task < 2 else 'V'
        r = task if task < 2 else (task - 2) >> 1
        u = 0 if task < 2 else (task & 1)
        for i in range(4):
            cin = "0" if i == 0 else vr(64, 16)
            if kind == 'K':
                a(f"v_mfma_f32_32x32x16_bf16 {vr(64,16)}, {vr(40+4*i,4)}, {vr(8+8*i+4*r,4)}, {cin}")
            else:
                a(f"v_mfma_f32_32x32x16_bf16 {vr(64,16)}, {vr(8+8*i+4*r,4)}, {vr(40+4*i,4)}, {cin}")
        a.nop(16)
        a(f"ds_write_b128 v6, {vr(64+8*u,4)}")
        a(f"ds_write_b128 v6, {vr(68+8*u,4)} offset:1024")
        if task < 5:
            a(f"s_branch {T}_kvdone")
            a(f"{T}_kvt{task+1}:")
    a(f"{T}_kvdone:")
    half_sum(a, 7, 5)
    a("s_mul_i32 s32, s3, 384")
    a(f"s_add_u32 s32, s32, {CSP}")
    a("v_lshlrev_b32 v6, 2, v3")
    a("v_add_u32 v6, s32, v6")
    a("ds_write_b32 v6, v7 offset:256")
    a("s_waitcnt vmcnt(0)")
    a.stamp(4)

    def wrd(i):
        b = 40 + 8 * (i % 2)
        for c in range(2):
            a(f"ds_read_b64_tr_b16 {vr(b+4*c,2)}, v56 offset:{16*i*128+64*c}")
            a(f"ds_read_b64_tr_b16 {vr(b+4*c+2,2)}, v56 offset:{(16*i+8)*128+64*c}")
    wrd(0)
    ACC = 64
    for i in range(4):
        if i < 3:
            wrd(i + 1)
        a(f"s_waitcnt lgkmcnt({4 if i < 3 else 0})")
        b = 40 + 8 * (i % 2)
        for c in range(2):
            for r in range(2):
                t = 2 * c + r
                cin = "0" if i == 0 else vr(ACC + 16 * t, 16)
                a(f"v_mfma_f32_32x32x16_bf16 {vr(ACC+16*t,16)}, {vr(b+4*c,4)}, {vr(8+8*i+4*r,4)}, {cin}")
                for q in range(4):
                    x = 8 + 8 * i + 4 * r + q
                    k = 58 + 2 * r + c
                    if c == 0:
                        a(f"v_dot2_f32_bf16 v{k}, v{x}, s61, v{k}")
                    else:
                        a(f"v_dot2_f32_bf16 v{k}, v{x}, v{x}, v{k}")
                if r == 0:
                    for q in range(4):
                        a(f"v_dot2_f32_bf16 v{62+c}, v{b+4*c+q}, s61, v{62+c}")
    a("s_lshl_b32 s32, s3, 10")
    a(f"s_add_u32 s32, s32, {STATQ}")
    a("v_add_u32 v7, s32, v2")
    a.nop(2)
    a("ds_write_b128 v7, v[58:61]")
    half_sum(a, 62, 5)
    half_sum(a, 63, 5)
    a("ds_write_b32 v6, v62")
    a("ds_write_b32 v6, v63 offset:128")
    a.stamp(5)
    reduce8(a, ACC, 8, pre_barrier=True)
    a.stamp(6)

    def cs8(tile_off_expr):
        for s in range(8):
            for q in range(2):
                a(f"ds_read_b128 {vr(64+8*s+4*q,4)}, v46 offset:{s*384+32*q}")
        a("s_waitcnt lgkmcnt(0)")
        for r in range(8):
            a(f"v_add_f32 v{16+r}, v{64+r}, v{72+r}")
        for s in range(2, 8):
            for r in range(8):
                a(f"v_add_f32 v{16+r}, v{16+r}, v{64+8*s+r}")

    def get_csq():
        a("s_lshl_b32 s32, s44, 7")
        a("s_lshl_b32 s33, s47, 6")
        a("s_add_u32 s32, s32, s33")
        a(f"s_add_u32 s32, s32, {CSP}")
        a("v_lshlrev_b32 v46, 4, v4")
        a("v_add_u32 v46, s32, v46")
        cs8(None)

    def get_csk():
        a("v_lshlrev_b32 v46, 4, v4")
        a(f"v_add_u32 v46, {CSP+256}, v46")
        for s in range(6):
            for q in range(2):
                a(f"ds_read_b128 {vr(72+8*s+4*q,4)}, v46 offset:{s*384+32*q}")
        for s in range(6, 8):
            for q in range(2):
                a(f"ds_read_b128 {vr(24+8*(s-6)+4*q,4)}, v46 offset:{s*384+32*q}")
        a("s_waitcnt lgkmcnt(0)")
        for r in range(8):
            a(f"v_add_f32 v{16+r}, v{24+r}, v{32+r}")
        for s in range(6):
            for r in range(8):
                a(f"v_add_f32 v{16+r}, v{16+r}, v{72+8*s+r}")

    def get_csv():
        a("v_lshlrev_b32 v46, 2, v3")
        a(f"v_add_u32 v46, {CSP+256}, v46")
        for s in range(8):
            a(f"ds_read_b32 v{72+s}, v46 offset:{s*384}")
        a("s_waitcnt lgkmcnt(0)")
        a("v_add_f32 v47, v72, v73")
        for s in range(2, 8):
            a(f"v_add_f32 v47, v47, v{72+s}")
    qkv_tail(a, T, end, QFL[0], KVFL[0], KNL[0], get_csq, get_csk, get_csv)
    a(f"s_branch {end}")
    a("K0_prep:")
    if os.environ.get('K0X', '') == 'noprep':
        a(f"s_branch {end}x")
    if os.environ.get('K0X', '') == 'prio':
        a("s_setprio 3")
    a("s_cmp_lt_u32 s2, 154")
    a("s_cbranch_scc1 K0_ptask")
    if CODEPF:
        code_srd(a, 40, "K0")
        a("s_sub_u32 s32, s2, 154")
        a("s_lshr_b32 s32, s32, 3")
        a("s_lshl_b32 s32, s32, 3")
        a("s_add_u32 s32, s32, s3")
        a("s_lshl_b32 s32, s32, 10")
        a("buffer_load_dwordx4 v[16:19], v2, s[40:43], s32 offen")
        a("s_waitcnt vmcnt(0)")
    a(f"s_branch {end}x")
    a("K0_ptask:")
    a("s_cmp_lg_u32 s2, 153")
    a("s_cbranch_scc1 K0_pw")
    a("s_lshl_b32 s32, s3, 10")
    a(f"s_add_u32 s32, s32, {FLAGS:#x}")
    for r in range(4):
        a(f"v_mov_b32 v{16+r}, 0")
    a("buffer_store_dwordx4 v[16:19], v2, s[8:11], s32 offen")
    a(f"s_branch {end}x")
    a("K0_pw:")
    a("s_lshl_b32 s62, s3, 12")
    a("s_add_u32 s62, s62, 98304")
    a("s_mov_b32 s46, 0")
    a("s_mov_b32 s36, 32")
    a("s_cmp_eq_u32 s2, 152")
    a("s_cbranch_scc1 K0_pkv")
    a("s_cmp_ge_u32 s2, 88")
    a("s_cbranch_scc1 K0_pw2")
    a("s_cmp_ge_u32 s2, 32")
    a("s_cbranch_scc1 K0_pw1")
    a("s_cmp_ge_u32 s2, 16")
    a("s_cbranch_scc1 K0_pwo")
    a.srd(40, 18, 512 * 512 * 2)
    a("s_mov_b32 s44, 1024")
    a("s_mov_b32 s45, s2")
    a("s_lshl_b32 s47, s45, 15")
    a(f"s_add_u32 s47, s47, {WQF:#x}")
    a("s_lshl_b32 s49, s45, 7")
    a(f"s_add_u32 s49, s49, {CSQ:#x}")
    a("s_branch K0_pgo")
    a("K0_pwo:")
    a.srd(40, 24, 512 * 512 * 2)
    a("s_mov_b32 s44, 1024")
    a("s_sub_u32 s45, s2, 16")
    a("s_lshl_b32 s47, s45, 15")
    a(f"s_add_u32 s47, s47, {WOF:#x}")
    a("s_mov_b32 s49, 0")
    a("s_branch K0_pgo")
    a("K0_pw1:")
    a.srd(40, 28, 512 * 1792 * 2)
    a("s_mov_b32 s44, 3584")
    a("s_sub_u32 s45, s2, 32")
    a("s_lshl_b32 s47, s45, 15")
    a(f"s_add_u32 s47, s47, {W1F:#x}")
    a("s_lshl_b32 s49, s45, 7")
    a(f"s_add_u32 s49, s49, {CS1:#x}")
    a("s_branch K0_pgo")
    a("K0_pw2:")
    a.srd(40, 30, 512 * 1792 * 2)
    a("s_mov_b32 s44, 1024")
    a("s_sub_u32 s45, s2, 88")
    a("s_and_b32 s46, s45, 3")
    a("s_mul_i32 s46, s46, 28")
    a("s_lshr_b32 s45, s45, 2")
    a("s_mul_i32 s47, s45, 112")
    a("s_add_u32 s47, s47, s46")
    a("s_lshl_b32 s47, s47, 10")
    a(f"s_add_u32 s47, s47, {W2F:#x}")
    a("s_mov_b32 s36, 28")
    a("s_mov_b32 s49, 0")
    a("K0_pgo:")
    a("s_lshl_b32 s50, s3, 2")
    a("s_cmp_ge_u32 s50, s36")
    a(f"s_cbranch_scc1 {end}x")
    a("v_lshrrev_b32 v5, 2, v1")
    a("v_mul_lo_u32 v5, v5, s44")
    a("v_and_b32 v6, 3, v1")
    a("v_lshl_add_u32 v5, v6, 4, v5")
    a("s_add_u32 s51, s46, s50")
    a("s_lshl_b32 s51, s51, 4")
    a("s_mul_i32 s51, s51, s44")
    a("s_lshl_b32 s32, s45, 6")
    a("s_add_u32 s51, s51, s32")
    a("s_lshl_b32 s33, s44, 4")
    for i in range(4):
        a(f"s_add_u32 m0, s62, {1024*i}")
        a("s_nop 0")
        a("buffer_load_dwordx4 v5, s[40:43], s51 offen lds")
        a("s_add_u32 s51, s51, s33")
    a("s_branch K0_ptr")
    a("K0_pkv:")
    a("s_lshl_b32 s50, s3, 2")
    a("v_lshrrev_b32 v7, 2, v1")
    a("v_lshlrev_b32 v7, 5, v7")
    a("v_and_b32 v5, 1, v1")
    a("v_lshl_add_u32 v7, v5, 4, v7")
    a("v_and_b32 v5, 2, v1")
    a("v_cmp_eq_u32 vcc, 0, v5")
    a("s_lshl_b32 s20, s3, 11")
    a("s_and_saveexec_b64 s[38:39], vcc")
    for i in range(4):
        a(f"s_add_u32 m0, s62, {1024*i}")
        a(f"s_add_u32 s22, s20, {512*i}")
        a("buffer_load_dwordx4 v7, s[52:55], s22 offen lds")
    a("s_andn2_b64 exec, s[38:39], exec")
    for i in range(4):
        a(f"s_add_u32 m0, s62, {1024*i}")
        a(f"s_add_u32 s22, s20, {512*i}")
        a("buffer_load_dwordx4 v7, s[56:59], s22 offen lds")
    a("s_mov_b64 exec, s[38:39]")
    a(f"s_mov_b32 s47, {WKVF:#x}")
    a(f"s_mov_b32 s49, {CSKV:#x}")
    a("K0_ptr:")
    tr_addr(a, 8, 64, 5, 6)
    a("v_add_u32 v8, s62, v8")
    a("s_lshl_b32 s32, s50, 10")
    a("s_add_u32 s47, s47, s32")
    a("v_mov_b32 v7, 0")
    a("s_waitcnt vmcnt(0)")
    for i in range(4):
        a(f"ds_read_b64_tr_b16 {vr(16+4*i,2)}, v8 offset:{16*i*64}")
        a(f"ds_read_b64_tr_b16 {vr(18+4*i,2)}, v8 offset:{(16*i+8)*64}")
    for i in range(4):
        a(f"s_waitcnt lgkmcnt({2*(3-i)})")
        a(f"buffer_store_dwordx4 {vr(16+4*i,4)}, v2, s[8:11], s47 offen offset:{1024*i}")
        for q in range(4):
            a(f"v_dot2_f32_bf16 v7, v{16+4*i+q}, s61, v7")
    a("s_cmp_eq_u32 s49, 0")
    a(f"s_cbranch_scc1 {end}x")
    a.nop(2)
    half_sum(a, 7, 5)
    a("s_lshl_b32 s32, s3, 7")
    a(f"s_add_u32 s32, s32, {CSP2}")
    a("v_lshlrev_b32 v6, 2, v3")
    a("v_add_u32 v5, s32, v6")
    a("ds_write_b32 v5, v7")
    a("s_waitcnt lgkmcnt(0)")
    a("s_barrier")
    a("s_cmp_lg_u32 s3, 0")
    a(f"s_cbranch_scc1 {end}x")
    a(f"v_add_u32 v5, {CSP2}, v6")
    for s in range(8):
        a(f"ds_read_b32 v{16+s}, v5 offset:{128*s}")
    a("s_waitcnt lgkmcnt(0)")
    for s in range(1, 8):
        a(f"v_add_f32 v16, v16, v{16+s}")
    a("v_cmp_gt_u32 vcc, 32, v1")
    a("s_and_saveexec_b64 s[38:39], vcc")
    a("buffer_store_dword v16, v6, s[8:11], s49 offen")
    a(f"s_branch {end}x")
    a(f"{end}:")
    a.stamp_flush(8)
    a(f"{end}x:")
    a("s_endpgm")
    a.desc(name, 128)
    return CSP2 + 1024


def gen_zero_flags(a):
    pass


def main():
    a = Asm()
    G.XF, G.QF, G.KVF = XFL[0], QFL[0], KVFL[0]
    G.FLAGS_ZERO = FLAGS
    lds_k0 = gen_K0(a)
    lds_f = gen_F(a, 0)
    gen_F(a, 1)
    hdr = ["; generated by gen/gen2.py -- fused MQA + FFN pipeline"]
    L = hdr.append
    L(f"; @launch kernel=k0_kernel grid=(256,1,1) block=(1024,1,1) lds={lds_k0}")
    L(f"; @launch kernel=f1_kernel grid=(256,1,1) block=(512,1,1) lds={lds_f}")
    L(f"; @launch kernel=f2_kernel grid=(256,1,1) block=(512,1,1) lds={lds_f}")
    out = "\n".join(hdr) + "\n"
    out += '.amdgcn_target "amdgcn-amd-amdhsa--gfx950"\n.text\n'
    out += "\n".join(a.L) + "\ncode_end:\n"
    out += '.section .rodata,"a"\n' + "\n".join(a.kernels) + "\n"
    path = sys.argv[1] if len(sys.argv) > 1 else f"cdna_kernels/{NAME}.s"
    open(path, 'w').write(out)
    if PROFILE:
        import json
        json.dump(G.PROF_SLOT, open('prof_slots.json', 'w'))
    print("wrote", path, len(out), "bytes")


if __name__ == "__main__":
    main()
```

```python
import os
import sys
import gen as G
from gen import Asm, vr, ar, f2u, half_sum, wave32_max, prologue, frag_loads
from gen import WQF, WOF, W1F, W2F, WKVF, CSQ, CS1, CSKV, VH, VU, KVT, KVF_BYTES, QS, EPS, NAME, PROFILE

LSTRIDE = 0x2000000
XFL = [0x500000, 0x500000 + LSTRIDE]
QFL = [0x700000, 0x700000 + LSTRIDE]
REUSE = int(os.environ.get('REUSE', '1'))
TOUCH = int(os.environ.get('TOUCH', '1'))
_R = 0 if REUSE else LSTRIDE
OFL = [0x900000, 0x900000 + _R]
X1FL = [0xB00000, 0xB00000 + _R]
HFL = [0x1000000, 0x1000000 + _R]
KVFL = [0x1800000, 0x1800000 + LSTRIDE]
KNL = [0x1880000, 0x1880000 + LSTRIDE]
FLAGS = 0x490000
FL3 = FLAGS + 8192
G.WS_USED = 0x4400000
G.PROF = 0x4000000
G.KN = KNL[0]
SC = "sc0 sc1"
SCL = os.environ.get("SCL", "sc1")
SPIN_MAX = 200000
BMAX = float(os.environ.get('BMAX', '64'))

PRIO_IT = int(os.environ.get('PRIO_IT', '7'))
WARM = int(os.environ.get('WARM', '1'))
CODEPF = int(os.environ.get('CODEPF', '0'))
FAST = int(os.environ.get('FAST', '1'))
CZERO = int(os.environ.get('CZERO', '1'))


_uid = [0]


def hstore(a, insts):
    _uid[0] += 1
    u = _uid[0]
    a("s_cmp_lg_u32 s61, 0")
    a(f"s_cbranch_scc1 HS{u}_f")
    for i in insts:
        a(f"{i} {SC}")
    a(f"s_branch HS{u}_e")
    a(f"HS{u}_f:")
    for i in insts:
        a(i)
    a(f"HS{u}_e:")


def publish(a, epoch, tag):
    a("s_waitcnt vmcnt(0)")
    a("s_barrier")
    a("s_cmp_lg_u32 s3, 0")
    a(f"s_cbranch_scc1 {tag}_np")
    a(f"v_mov_b32 v5, {epoch}")
    a("v_mov_b32 v6, 0")
    a("v_cmp_eq_u32 vcc, 0, v1")
    a("s_and_saveexec_b64 s[38:39], vcc")
    hstore(a, ["buffer_store_dword v5, v6, s[8:11], s40 offen"])
    a("s_mov_b64 exec, s[38:39]")
    a(f"{tag}_np:")


def wait_flag(a, epoch, tag):
    a("v_mov_b32 v6, 0")
    a("s_mov_b32 s37, 0")
    a(f"{tag}_poll:")
    a(f"buffer_load_dword v5, v6, s[8:11], s41 offen {SC}")
    a("s_waitcnt vmcnt(0)")
    a("v_readfirstlane_b32 s36, v5")
    a("s_add_u32 s37, s37, 1")
    a(f"s_cmp_ge_u32 s36, {epoch}")
    a(f"s_cbranch_scc1 {tag}_go")
    a(f"s_cmp_gt_u32 s37, {SPIN_MAX}")
    a(f"s_cbranch_scc1 {tag}_go")
    a("s_sleep 1")
    a(f"s_branch {tag}_poll")
    a(f"{tag}_go:")


def ld(a, dst, sbase, idx, stmp, flags=""):
    hi, lo = idx // 4, idx % 4
    if hi == 0:
        so = f"s{sbase}"
    else:
        a(f"s_add_u32 s{stmp}, s{sbase}, {hi*4096}")
        so = f"s{stmp}"
    a(f"buffer_load_dwordx4 {dst}, v2, s[8:11], {so} offen offset:{lo*1024} {flags}")


def reduce8(a, ACC, DST, lds_base=0, pre_barrier=False):
    a("s_lshl_b32 s32, s3, 11")
    a("v_add_u32 v5, s32, v2")
    a("v_add_u32 v6, 0x10000, v5")
    a("s_lshl_b32 s32, s3, 14")
    a("v_add_u32 v7, s32, v2")
    a.nop(12)
    if pre_barrier:
        a("s_waitcnt lgkmcnt(0)")
        a("s_barrier")
    for p in range(8):
        for q in range(2):
            off = (p % 4) * 16384 + q * 1024
            a(f"ds_write_b128 v{5 if p < 4 else 6}, {vr(ACC+8*p+4*q,4)} offset:{off}")
    a("s_waitcnt lgkmcnt(0)")
    a("s_barrier")
    for s in range(8):
        for q in range(2):
            a(f"ds_read_b128 {vr(ACC+8*s+4*q,4)}, v7 offset:{s*2048+q*1024}")
    for s in range(0, 8, 2):
        a(f"s_waitcnt lgkmcnt({12-2*s})")
        for r in range(8):
            if s == 0:
                a(f"v_add_f32 v{DST+r}, v{ACC+r}, v{ACC+8+r}")
            else:
                a(f"v_add_f32 v{ACC+8*s+r}, v{ACC+8*s+r}, v{ACC+8*s+8+r}")
                a(f"v_add_f32 v{DST+r}, v{DST+r}, v{ACC+8*s+r}")


STATQ = 131072
KVS = STATQ + 8192
STAT2 = KVS + 16384
CSP = STAT2 + 256
CSP2 = CSP + 3072


def qkv_tail(a, T, end, QN, KVN, KNN, get_csq, get_csk, get_csv):
    a("s_lshl_b32 s32, s43, 3")
    a(f"s_add_u32 s32, s32, {STATQ}")
    a("v_add_u32 v7, s32, v2")
    for s in range(8):
        a(f"ds_read_b64 {vr(40+2*s,2)}, v7 offset:{s*1024}")
    a("s_waitcnt lgkmcnt(0)")
    for s in range(1, 8):
        a(f"v_add_f32 v40, v40, v{40+2*s}")
        a(f"v_add_f32 v41, v41, v{41+2*s}")
    half_sum(a, 40, 42)
    half_sum(a, 41, 42)
    a(f"v_mul_f32 v40, {f2u(1.0/512):#x}, v40")
    a(f"v_mul_f32 v41, {f2u(1.0/512):#x}, v41")
    a("v_fma_f32 v41, -v40, v40, v41")
    a("v_max_f32 v41, 0, v41")
    a(f"v_add_f32 v41, {f2u(EPS):#x}, v41")
    a("v_rsq_f32 v41, v41")
    a.nop(1)
    a("v_mul_f32 v42, v40, v41")
    a("v_sub_f32 v42, 0, v42")
    a(f"v_mul_f32 v43, {f2u(QS):#x}, v41")
    a(f"v_mul_f32 v44, {f2u(QS):#x}, v42")
    get_csq()
    for r in range(8):
        a(f"v_mul_f32 v{16+r}, v44, v{16+r}")
        a(f"v_fma_f32 v{8+r}, v{8+r}, v43, v{16+r}")
    for q in range(4):
        a(f"v_cvt_pk_bf16_f32 v{24+q}, v{8+2*q}, v{9+2*q}")
    a(f"s_add_u32 s23, s42, {QN:#x}")
    a("buffer_store_dwordx4 v[24:27], v2, s[8:11], s23 offen")
    a("s_cmp_ge_u32 s5, 6")
    a(f"s_cbranch_scc1 {end}")
    a("s_lshr_b32 s32, s5, 2")
    a("s_cmp_eq_u32 s5, 1")
    a("s_cselect_b32 s32, 1, s32")
    a("s_lshl_b32 s32, s32, 1")
    a("s_cmp_lg_u32 s3, s32")
    a(f"s_cbranch_scc1 {end}")
    a(f"v_add_u32 v7, {KVS}, v2")
    for s in range(8):
        for q in range(2):
            a(f"ds_read_b128 {vr(64+8*s+4*q,4)}, v7 offset:{s*2048+q*1024}")
    a(f"s_mul_i32 s33, s45, {KVT}")
    a(f"s_add_u32 s33, s33, {KVN:#x}")
    a("s_waitcnt lgkmcnt(0)")
    for s in range(1, 8):
        for r in range(8):
            a(f"v_add_f32 v{64+r}, v{64+r}, v{64+8*s+r}")
    a("s_cmp_ge_u32 s5, 2")
    a(f"s_cbranch_scc1 {T}_finV")
    a("v_mov_b32 v45, 0")
    get_csk()
    for r in range(8):
        a(f"v_mul_f32 v{16+r}, v42, v{16+r}")
        a(f"v_fma_f32 v{64+r}, v{64+r}, v41, v{16+r}")
        a(f"v_fma_f32 v45, v{64+r}, v{64+r}, v45")
    for q in range(4):
        a(f"v_cvt_pk_bf16_f32 v{28+q}, v{64+2*q}, v{65+2*q}")
    a("buffer_store_dwordx4 v[28:31], v2, s[8:11], s33 offen")
    half_sum(a, 45, 46)
    a("s_lshl_b32 s32, s45, 7")
    a(f"s_add_u32 s32, s32, {KNN:#x}")
    a("v_lshlrev_b32 v46, 2, v3")
    a("v_cmp_gt_u32 vcc, 32, v1")
    a("s_and_saveexec_b64 s[38:39], vcc")
    a("buffer_store_dword v45, v46, s[8:11], s32 offen")
    a(f"s_branch {end}")
    a(f"{T}_finV:")
    a("v_lshlrev_b32 v7, 2, v3")
    a(f"v_add_u32 v7, {STAT2}, v7")
    a("ds_write_b32 v7, v41")
    a("ds_write_b32 v7, v42 offset:128")
    a("s_and_b32 s32, s5, 1")
    a("s_lshl_b32 s32, s32, 6")
    a(f"s_add_u32 s32, s32, {STAT2}")
    a("v_lshlrev_b32 v7, 4, v4")
    a("v_add_u32 v7, s32, v7")
    get_csv()
    a("s_waitcnt lgkmcnt(0)")
    for q in range(2):
        a(f"ds_read_b128 {vr(16+4*q,4)}, v7 offset:{32*q}")
        a(f"ds_read_b128 {vr(24+4*q,4)}, v7 offset:{128+32*q}")
    a("s_waitcnt lgkmcnt(0)")
    for r in range(8):
        a(f"v_mul_f32 v{24+r}, v47, v{24+r}")
        a(f"v_fma_f32 v{64+r}, v{64+r}, v{16+r}, v{24+r}")
    for q in range(4):
        a(f"v_cvt_pk_bf16_f32 v{32+q}, v{64+2*q}, v{65+2*q}")
    a("v_cmp_eq_u32 s[38:39], 0, v3")
    a("v_mov_b32 v45, 0x3f803f80")
    a("v_mov_b32 v46, 0")
    a("v_cndmask_b32 v45, v46, v45, s[38:39]")
    a("v_cmp_le_u32 vcc, 16, v3")
    a("v_xor_b32 v7, 16, v3")
    a("v_lshlrev_b32 v7, 4, v7")
    for q in range(4):
        a(f"v_cndmask_b32 v{32+q}, v45, v{32+q}, vcc")
    a(f"v_mul_u32_u24 v46, {VH}, v4")
    a("v_add_u32 v7, v7, v46")
    a("s_and_b32 s32, s5, 1")
    a(f"s_mul_i32 s32, s32, {VU}")
    a("s_add_u32 s33, s33, s32")
    a("v_cmp_gt_u32 s[38:39], 2, v3")
    a("s_or_b64 vcc, vcc, s[38:39]")
    a("s_and_saveexec_b64 s[38:39], vcc")
    a("buffer_store_dwordx4 v[32:35], v7, s[8:11], s33 offen offset:1024")


def piece_sgprs(a):
    a("s_lshr_b32 s32, s3, 1")
    a("s_and_b32 s43, s32, 1")
    a("s_lshr_b32 s44, s3, 2")
    a("s_lshl_b32 s45, s4, 1")
    a("s_add_u32 s45, s45, s43")
    a("s_lshl_b32 s46, s5, 1")
    a("s_add_u32 s46, s46, s44")
    a("s_lshl_b32 s42, s45, 5")
    a("s_lshl_b32 s32, s46, 1")
    a("s_add_u32 s42, s42, s32")
    a("s_and_b32 s47, s3, 1")
    a("s_add_u32 s42, s42, s47")
    a("s_lshl_b32 s42, s42, 10")


def code_srd(a, d, tag):
    a(f"s_getpc_b64 s[{d}:{d+1}]")
    a(f"{tag}_pc:")
    a(f"s_add_u32 s{d}, s{d}, f1_kernel-{tag}_pc")
    a(f"s_addc_u32 s{d+1}, s{d+1}, {'-1' if tag != 'K0' else '0'}")
    a(f"s_mov_b32 s{d+2}, code_end-f1_kernel")
    a(f"s_mov_b32 s{d+3}, 0x00020000")


def gen_F(a, L):
    last = (L == 1)
    name = f"f{L+1}_kernel"
    T = f"F{L}"
    a.begin(name)
    end = f"{name}_end"
    prologue(a, end, out_ptr=True, out_off=(64 if last else 0))
    a.srd(16, 12, 2048 * 512 * 2)
    XF, QF, OF, X1F, HF, KVF, KN = XFL[L], QFL[L], OFL[L], X1FL[L], HFL[L], KVFL[L], KNL[L]
    EP = 4 * L
    a("s_lshl_b32 s40, s4, 8")
    a(f"s_add_u32 s40, s40, {FLAGS:#x}")
    a("s_lshl_b32 s41, s3, 2")
    a("s_add_u32 s41, s41, s40")
    a("s_lshl_b32 s32, s5, 2")
    a("s_add_u32 s40, s40, s32")
    piece_sgprs(a)
    a("s_getreg_b32 s61, hwreg(HW_REG_XCC_ID)")
    a("s_and_b32 s61, s61, 15")
    a("s_add_u32 s61, s61, 1")
    a("s_cmp_lg_u32 s3, 0")
    a(f"s_cbranch_scc1 {T}_noxid")
    a("v_mov_b32 v5, s61")
    a("v_mov_b32 v6, 0")
    a("v_cmp_eq_u32 vcc, 0, v1")
    a("s_and_saveexec_b64 s[38:39], vcc")
    a(f"buffer_store_dword v5, v6, s[8:11], s40 offen offset:{64+32*L} {SC}")
    a("s_mov_b64 exec, s[38:39]")
    a(f"{T}_noxid:")
    SCR = KVF_BYTES
    KMX = SCR + 8 * 2304
    Q = (8, 12)
    C = 16
    O = (32, 48)
    S = (64, 80)
    P = (96, 104)
    E = 112
    KB = (128, 132)
    VB = (136, 144)
    a("s_and_b32 s20, s3, 3")
    a("s_lshr_b32 s30, s3, 2")
    a("s_and_b32 s21, s20, 1")
    a("s_lshl_b32 s21, s21, 1")
    a("s_lshl_b32 s22, s5, 2")
    a("s_add_u32 s21, s21, s22")
    a("s_lshr_b32 s22, s20, 1")
    a("s_lshl_b32 s23, s4, 1")
    a("s_add_u32 s22, s22, s23")
    a("s_lshl_b32 s22, s22, 5")
    a("s_add_u32 s22, s22, s21")
    a("s_add_u32 s23, s22, s30")
    a("s_xor_b32 s24, s30, 1")
    a("s_add_u32 s24, s22, s24")
    a("s_lshl_b32 s22, s23, 10")
    a("s_lshl_b32 s24, s24, 10")
    a(f"s_add_u32 s23, s22, {QF:#x}")
    a(f"s_add_u32 s24, s24, {QF:#x}")
    a(f"buffer_load_dwordx4 {vr(Q[0],4)}, v2, s[8:11], s23 offen")
    a(f"buffer_load_dwordx4 {vr(Q[1],4)}, v2, s[8:11], s24 offen")
    a("s_lshl_b32 s23, s3, 10")
    a(f"s_add_u32 s23, s23, {KN:#x}")
    a(f"buffer_load_dwordx4 {vr(E,4)}, v2, s[8:11], s23 offen")
    a("s_lshr_b32 s24, s3, 1")
    a("s_lshl_b32 s24, s24, 10")
    a("s_and_b32 s25, s3, 1")
    a(f"s_mul_i32 s25, s25, {32*KVT}")
    a("s_add_u32 s34, s24, s25")
    a(f"s_add_u32 s35, s34, {KVF:#x}")

    def dma():
        a("s_mov_b32 m0, s34")
        a("s_add_u32 s34, s34, 4096")
        a("buffer_load_dwordx4 v2, s[8:11], s35 offen lds")
        a("s_add_u32 s35, s35, 4096")
    for i in range(6):
        dma()
    a("v_min_u32 v6, 17, v3")
    a("v_mov_b32 v5, 16")
    a("v_cmp_eq_u32 vcc, 20, v3")
    a(f"s_mul_i32 s25, s30, {32*KVT}")
    a.nop(1)
    a("v_cndmask_b32 v6, v6, v5, vcc")
    a("v_lshlrev_b32 v6, 4, v6")
    a(f"v_mul_u32_u24 v5, {VH}, v4")
    a("v_add3_u32 v158, v6, v5, 64")
    a("v_add_u32 v158, 960, v158")
    a("v_add_u32 v156, s25, v2")
    a("v_add_u32 v157, s25, v158")
    a("s_waitcnt vmcnt(6)")
    a("v_mov_b32 v5, 0")
    a("v_mov_b32 v6, 0")
    for q in range(4):
        a(f"v_dot2_f32_bf16 v5, v{Q[0]+q}, v{Q[0]+q}, v5")
        a(f"v_dot2_f32_bf16 v6, v{Q[1]+q}, v{Q[1]+q}, v6")
    a.nop(3)
    half_sum(a, 5, 154)
    half_sum(a, 6, 154)
    a("v_max_f32 v5, v5, v6")
    a(f"v_max3_f32 v7, v{E}, v{E+1}, v{E+2}")
    a(f"v_max_f32 v7, v7, v{E+3}")
    for off in (0x041F, 0x081F, 0x101F, 0x201F, 0x401F):
        a(f"ds_swizzle_b32 v6, v5 offset:{off:#x}")
        a(f"ds_swizzle_b32 v154, v7 offset:{off:#x}")
        a("s_waitcnt lgkmcnt(0)")
        a("v_max_f32 v5, v5, v6")
        a("v_max_f32 v7, v7, v154")
    half_sum(a, 7, 154, op="v_max_f32")
    a("v_readfirstlane_b32 s63, v5")
    a("s_lshl_b32 s23, s3, 2")
    a(f"s_add_u32 s23, s23, {KMX}")
    a("v_mov_b32 v6, s23")
    a("ds_write_b32 v6, v7")
    for r in range(16):
        a(f"v_mov_b32 v{O[0]+r}, 0")
        a(f"v_mov_b32 v{O[1]+r}, 0")
        a(f"v_mov_b32 v{E+r}, 0")
    for r in range(8):
        a(f"v_mov_b32 v{P[1]+r}, 0")
        a(f"v_mov_b32 v{VB[1]+r}, 0")
    a("s_lshl_b32 s32, s5, 1")
    a("s_lshl_b32 s48, s32, 5")
    a("s_lshl_b32 s33, s3, 2")
    a("s_add_u32 s48, s48, s33")
    a("s_lshl_b32 s48, s48, 10")
    a(f"s_add_u32 s48, s48, {WOF:#x}")
    a("s_add_u32 s49, s48, 32768")
    a("s_min_u32 s32, s3, 6")
    a("s_mul_i32 s51, s5, 7")
    a("s_add_u32 s51, s51, s32")
    a("s_lshl_b32 s50, s51, 15")
    a(f"s_add_u32 s50, s50, {W1F:#x}")
    a(f"s_add_u32 s52, s42, {XF:#x}")
    pf = []
    for i in range(4):
        pf.append((ar(8 * i, 4), 48, i))
        pf.append((ar(8 * i + 4, 4), 49, i))
    if last:
        pf.append((ar(32, 4), 52, 0))
    else:
        a("v_lshlrev_b32 v159, 10, v3")
        a("v_lshl_add_u32 v159, v4, 3, v159")
        a("s_lshl_b32 s52, s45, 15")
        a("s_lshl_b32 s32, s46, 6")
        a("s_add_u32 s52, s52, s32")
        a("s_lshl_b32 s32, s47, 5")
        a("s_add_u32 s52, s52, s32")
        pf.append(None)
    for i in range(15):
        pf.append((ar(36 + 4 * i, 4), 50, i))
    a("s_waitcnt vmcnt(0) lgkmcnt(0)")
    a("s_barrier")
    a.stamp(2)
    a(f"ds_read_b128 {vr(KB[0],4)}, v156")
    a(f"ds_read_b128 {vr(KB[1],4)}, v156 offset:{KVT}")
    a(f"ds_read_b128 {vr(VB[0],4)}, v157")
    a(f"ds_read_b128 {vr(VB[0]+4,4)}, v157 offset:{VU}")
    a("s_cmp_lt_u32 s3, 4")
    a(f"s_cbranch_scc1 {T}_noprio")
    a("s_setprio 1")
    a(f"{T}_noprio:")
    a("s_waitcnt lgkmcnt(3)")
    a(f"v_mfma_f32_32x32x16_bf16 {vr(S[0],16)}, {vr(KB[0],4)}, {vr(Q[0],4)}, {'0' if CZERO else vr(C,16)}")
    a.nop(10)
    UN, PV1, PV2, DLY, NE = 4, 3, 6, 2, 16

    def body(extra, slots=(1, 4, 5)):
        for t in range(UN):
            for x in range(2):
                y = 1 - x
                ty = t if x == 0 else t + 1
                tv = t - 1 if x == 0 else t
                for i in range(8):
                    if i == 0:
                        if x == 1:
                            a("s_waitcnt lgkmcnt(0)")
                        a(f"v_mfma_f32_32x32x16_bf16 {vr(S[y],16)}, {vr(KB[ty%2],4)}, {vr(Q[y],4)}, {'0' if CZERO else vr(C,16)}")
                        if x == 1:
                            a(f"ds_read_b128 {vr(KB[t%2],4)}, v156 offset:{(t+2)*KVT}")
                            a(f"ds_read_b128 {vr(VB[(t+1)%2],4)}, v157 offset:{(t+1)*KVT}")
                            a(f"ds_read_b128 {vr(VB[(t+1)%2]+4,4)}, v157 offset:{(t+1)*KVT+VU}")
                    e = E + (2 * i) % NE
                    a(f"v_exp_f32 v{e}, v{S[x]+2*i}")
                    a(f"v_exp_f32 v{e+1}, v{S[x]+2*i+1}")
                    j = i - DLY
                    if j >= 0:
                        ej = E + (2 * j) % NE
                        a(f"v_cvt_pk_bf16_f32 v{P[x]+j}, v{ej}, v{ej+1}")
                    else:
                        ej = E + (2 * (j + 8)) % NE
                        a(f"v_cvt_pk_bf16_f32 v{P[y]+j+8}, v{ej}, v{ej+1}")
                    if i == PV1:
                        a(f"v_mfma_f32_32x32x16_bf16 {vr(O[y],16)}, {vr(VB[tv%2],4)}, {vr(P[y],4)}, {vr(O[y],16)}")
                    if i == PV2:
                        a(f"v_mfma_f32_32x32x16_bf16 {vr(O[y],16)}, {vr(VB[tv%2]+4,4)}, {vr(P[y]+4,4)}, {vr(O[y],16)}")
                    if i in slots and extra:
                        extra.pop(0)()
                if t == UN - 1 and x == 1:
                    a(f"v_add_u32 v156, {UN*KVT}, v156")
                    a(f"v_add_u32 v157, {UN*KVT}, v157")
                    a("s_add_u32 s29, s29, 1")
                    a("s_cmp_lg_u32 s29, 8")

    a("s_mov_b32 s29, 0")
    body([dma] * 11)
    body([])
    a("s_waitcnt vmcnt(0)")
    a("s_barrier")
    def rawres():
        a("buffer_load_dwordx2 a[32:33], v159, s[16:19], s52 offen")
        a("buffer_load_dwordx2 a[34:35], v159, s[16:19], s52 offen offset:16")
    pfl = [(lambda e=e: ld(a, e[0], e[1], e[2], 33)) if e else rawres for e in pf]
    body(pfl[0:8], (4,))
    body(pfl[8:16], (4,))
    tail = []
    if WARM:
        a("s_lshr_b32 s56, s4, 3")
        a("s_and_b32 s56, s56, 3")
        a("s_and_b32 s57, s56, 1")
        a("s_lshl_b32 s58, s5, 1")
        a("s_add_u32 s57, s57, s58")
        a("s_mul_i32 s57, s57, 112")
        a("s_mul_i32 s58, s3, 14")
        a("s_add_u32 s57, s57, s58")
        a("s_lshr_b32 s58, s56, 1")
        a("s_mul_i32 s58, s58, 7")
        a("s_add_u32 s57, s57, s58")
        a("s_lshl_b32 s57, s57, 10")
        a(f"s_add_u32 s57, s57, {W2F:#x}")
        a("s_lshl_b32 s58, s56, 12")
        a("s_add_u32 s58, s58, s50")
        a(f"s_add_u32 s58, s58, {15*1024}")
        a("s_and_b32 s59, s56, 1")
        a("s_lshl_b32 s59, s59, 15")
        a("s_lshr_b32 s60, s56, 1")
        a("s_lshl_b32 s60, s60, 11")
        a("s_add_u32 s59, s59, s60")
        a("s_add_u32 s59, s59, s48")
        a(f"s_add_u32 s59, s59, {(WQF - WOF) & 0xffffffff:#x}")
        for k, (n, sr) in enumerate(((56, 57), (40, 58), (16, 59))):
            if last and sr == 59:
                continue
            a(f"v_min_u32 v{152+k}, {n-1}, v1")
            a(f"v_lshlrev_b32 v{152+k}, 7, v{152+k}")
            tail.append(lambda k=k, sr=sr: a(f"buffer_load_dword v155, v{152+k}, s[8:11], s{sr} offen"))
    a("v_and_b32 v5, 7, v1")
    a("v_lshlrev_b32 v5, 2, v5")
    a("s_lshl_b32 s62, s4, 8")
    a(f"s_add_u32 s62, s62, {FLAGS:#x}")
    tail.append(lambda: a(f"buffer_load_dword v159, v5, s[8:11], s62 offen offset:{64+32*L} {SC}"))
    if TOUCH and (L == 0 or not REUSE):
        a(f"s_add_u32 s20, s22, {OF:#x}")
        a(f"s_add_u32 s21, s42, {X1F:#x}")
        a("s_lshl_b32 s23, s4, 1")
        a("s_mul_i32 s23, s23, 112")
        a("s_lshl_b32 s24, s51, 1")
        a("s_add_u32 s23, s23, s24")
        a("s_lshl_b32 s23, s23, 10")
        a(f"s_add_u32 s23, s23, {HF:#x}")
        a("s_add_u32 s24, s23, 1024")
        a(f"s_add_u32 s25, s23, {112*1024}")
        a("s_add_u32 s26, s25, 1024")
        a(f"s_add_u32 s27, s42, {XFL[1]:#x}")
        a(f"s_add_u32 s28, s42, {QFL[1]:#x}")
        a("v_mov_b32 v6, s20")
        for k, sr in enumerate((21, 23, 24, 25, 26, 27, 28)):
            a(f"v_mov_b32 v7, s{sr}")
            a(f"v_cmp_le_u32 vcc, {8*(k+1)}, v1")
            a.nop(2)
            a("v_cndmask_b32 v6, v6, v7, vcc")
        a("v_and_b32 v7, 7, v1")
        a("v_lshl_add_u32 v6, v7, 7, v6")
        tail.append(lambda: a("buffer_load_dword v7, v6, s[8:11], 0 offen"))
    body(pfl[16:24] + tail, (1, 5))
    a(f"{T}_loop:")
    a(f"s_cmp_lg_u32 s29, {PRIO_IT}")
    a(f"s_cbranch_scc1 {T}_prio2")
    a("s_setprio 0")
    a(f"{T}_prio2:")
    body([])
    a(f"s_cbranch_scc1 {T}_loop")
    a("s_waitcnt vmcnt(0)")
    for j in range(8 - DLY, 8):
        ej = E + (2 * j) % NE
        a(f"v_cvt_pk_bf16_f32 v{P[1]+j}, v{ej}, v{ej+1}")
    a.nop(2)
    a(f"v_mfma_f32_32x32x16_bf16 {vr(O[1],16)}, {vr(VB[1],4)}, {vr(P[1],4)}, {vr(O[1],16)}")
    a(f"v_mfma_f32_32x32x16_bf16 {vr(O[1],16)}, {vr(VB[1]+4,4)}, {vr(P[1]+4,4)}, {vr(O[1],16)}")
    a("s_mul_i32 s25, s3, 2304")
    a(f"s_add_u32 s25, s25, {SCR}")
    a("v_add_u32 v5, s25, v2")
    a("v_lshlrev_b32 v6, 2, v1")
    a("v_add_u32 v6, s25, v6")
    a("s_xor_b32 s25, s3, 4")
    a("s_mul_i32 s25, s25, 2304")
    a(f"s_add_u32 s25, s25, {SCR}")
    a("v_add_u32 v7, s25, v2")
    a("s_waitcnt vmcnt(0)")
    a("s_mov_b32 s37, 0")
    a("v_and_b32 v153, 7, v1")
    a("v_lshlrev_b32 v153, 2, v153")
    a(f"{T}_xchk:")
    a("v_cmp_eq_u32 vcc, 0, v159")
    a("s_cmp_eq_u64 vcc, 0")
    a(f"s_cbranch_scc1 {T}_xok")
    a("s_add_u32 s37, s37, 1")
    a(f"s_cmp_gt_u32 s37, {SPIN_MAX}")
    a(f"s_cbranch_scc1 {T}_xok")
    a("s_sleep 1")
    a(f"buffer_load_dword v159, v153, s[8:11], s62 offen offset:{64+32*L} {SC}")
    a("s_waitcnt vmcnt(0)")
    a(f"s_branch {T}_xchk")
    a(f"{T}_xok:")
    a("v_cmp_ne_u32 vcc, s61, v159")
    a("s_cmp_eq_u64 vcc, 0")
    a(f"s_cselect_b32 s61, {FAST}, 0")
    a("v_lshlrev_b32 v154, 2, v1")
    a("v_add_u32 v154, s25, v154")
    a("s_waitcnt lgkmcnt(0)")
    a.nop(8)
    a(f"ds_write_b128 v5, {vr(O[1],4)}")
    a(f"ds_write_b128 v5, {vr(O[1]+4,4)} offset:1024")
    a(f"ds_write_b32 v6, v{O[1]+8} offset:2048")
    a("s_waitcnt lgkmcnt(0)")
    a("s_barrier")
    a(f"ds_read_b128 {vr(S[0],4)}, v7")
    a(f"ds_read_b128 {vr(S[0]+4,4)}, v7 offset:1024")
    a(f"ds_read_b32 v{S[0]+8}, v154 offset:2048")
    a(f"v_mov_b32 v5, {KMX}")
    a(f"ds_read_b128 {vr(S[1],4)}, v5")
    a(f"ds_read_b128 {vr(S[1]+4,4)}, v5 offset:16")
    a("s_waitcnt lgkmcnt(0)")
    for r in range(9):
        a(f"v_add_f32 v{O[0]+r}, v{O[0]+r}, v{S[0]+r}")
    a(f"v_max3_f32 v5, v{S[1]}, v{S[1]+1}, v{S[1]+2}")
    a(f"v_max3_f32 v5, v5, v{S[1]+3}, v{S[1]+4}")
    a(f"v_max3_f32 v5, v5, v{S[1]+5}, v{S[1]+6}")
    a(f"v_max_f32 v5, v5, v{S[1]+7}")
    a("v_mul_f32 v5, s63, v5")
    a(f"v_mov_b32 v6, {f2u(BMAX*BMAX):#x}")
    a("v_cmp_nle_f32 vcc, v5, v6")
    a("s_cmp_eq_u64 vcc, 0")
    a(f"s_cbranch_scc1 {T}_afin")
    a("v_mov_b32 v156, v2")
    a("v_mov_b32 v6, 0xff800000")
    a("s_mov_b32 s29, 64")
    a(f"{T}_fb:")
    a(f"ds_read_b128 {vr(KB[0],4)}, v156")
    a(f"v_add_u32 v156, {KVT}, v156")
    a("s_waitcnt lgkmcnt(0)")
    a(f"v_mfma_f32_32x32x16_bf16 {vr(S[0],16)}, {vr(KB[0],4)}, {vr(Q[0],4)}, 0")
    a.nop(16)
    for i in range(8):
        a(f"v_max3_f32 v6, v6, v{S[0]+2*i}, v{S[0]+2*i+1}")
    a("s_sub_u32 s29, s29, 1")
    a("s_cmp_lg_u32 s29, 0")
    a(f"s_cbranch_scc1 {T}_fb")
    half_sum(a, 6, 7, op="v_max_f32")
    a("v_sub_f32 v6, 0, v6")
    for r in range(16):
        a(f"v_mov_b32 v{C+r}, v6")
        a(f"v_mov_b32 v{O[0]+r}, 0")
    a("v_mov_b32 v156, v2")
    a("v_mov_b32 v157, v158")
    a("s_mov_b32 s29, 64")
    a(f"{T}_fb2:")
    a(f"ds_read_b128 {vr(KB[0],4)}, v156")
    a(f"ds_read_b128 {vr(VB[0],4)}, v157")
    a(f"ds_read_b128 {vr(VB[0]+4,4)}, v157 offset:{VU}")
    a(f"v_add_u32 v156, {KVT}, v156")
    a(f"v_add_u32 v157, {KVT}, v157")
    a("s_waitcnt lgkmcnt(0)")
    a(f"v_mfma_f32_32x32x16_bf16 {vr(S[0],16)}, {vr(KB[0],4)}, {vr(Q[0],4)}, {vr(C,16)}")
    a.nop(16)
    for i in range(16):
        a(f"v_exp_f32 v{S[0]+i}, v{S[0]+i}")
    a.nop(1)
    for i in range(8):
        a(f"v_cvt_pk_bf16_f32 v{P[0]+i}, v{S[0]+2*i}, v{S[0]+2*i+1}")
    a.nop(2)
    a(f"v_mfma_f32_32x32x16_bf16 {vr(O[0],16)}, {vr(VB[0],4)}, {vr(P[0],4)}, {vr(O[0],16)}")
    a(f"v_mfma_f32_32x32x16_bf16 {vr(O[0],16)}, {vr(VB[0]+4,4)}, {vr(P[0]+4,4)}, {vr(O[0],16)}")
    a.nop(16)
    a("s_sub_u32 s29, s29, 1")
    a("s_cmp_lg_u32 s29, 0")
    a(f"s_cbranch_scc1 {T}_fb2")
    a(f"{T}_afin:")
    a(f"v_rcp_f32 v6, v{O[0]+8}")
    a.nop(1)
    for r in range(8):
        a(f"v_mul_f32 v{O[0]+r}, v{O[0]+r}, v6")
    for q in range(4):
        a(f"v_cvt_pk_bf16_f32 v{S[0]+q}, v{O[0]+2*q}, v{O[0]+2*q+1}")
    a(f"s_add_u32 s23, s22, {OF:#x}")
    hstore(a, [f"buffer_store_dwordx4 {vr(S[0],4)}, v2, s[8:11], s23 offen"])
    a.stamp(3)
    publish(a, EP + 1, f"{T}_p1")
    a("s_lshl_b32 s20, s4, 6")
    a("s_lshl_b32 s21, s3, 2")
    a("s_add_u32 s20, s20, s21")
    a("s_lshl_b32 s53, s20, 10")
    a(f"s_add_u32 s20, s53, {OF:#x}")
    a("s_add_u32 s21, s20, 32768")
    wait_flag(a, EP + 1, f"{T}_w1")
    a.stamp(4)
    for i in range(4):
        ld(a, vr(8 + 8 * i, 4), 20, i, 33, SCL)
        ld(a, vr(12 + 8 * i, 4), 21, i, 33, SCL)
    ACC = 64
    for i in range(4):
        a(f"s_waitcnt vmcnt({2*(3-i)})")
        for c in range(2):
            for r in range(2):
                t = 2 * c + r
                cin = "0" if i == 0 else vr(ACC + 16 * t, 16)
                a(f"v_mfma_f32_32x32x16_bf16 {vr(ACC+16*t,16)}, {ar(8*i+4*c,4)}, {vr(8+8*i+4*r,4)}, {cin}")
    for i in range(8):
        ld(a, ar(4 * i, 4), 50, 15 + i, 33)
    reduce8(a, ACC, 128)
    for q in range(4):
        a(f"v_accvgpr_read_b32 v{136+q}, a{32+q}")
    for q in range(4):
        a(f"v_lshlrev_b32 v{140}, 16, v{136+q}")
        a(f"v_and_b32 v{141}, 0xffff0000, v{136+q}")
        a(f"v_add_f32 v{128+2*q}, v{128+2*q}, v140")
        a(f"v_add_f32 v{129+2*q}, v{129+2*q}, v141")
    for q in range(4):
        a(f"v_cvt_pk_bf16_f32 v{136+q}, v{128+2*q}, v{129+2*q}")
    a(f"s_add_u32 s23, s42, {X1F:#x}")
    hstore(a, ["buffer_store_dwordx4 v[136:139], v2, s[8:11], s23 offen"])
    for q in range(4):
        a(f"v_accvgpr_write_b32 a{32+q}, v{136+q}")
    a.stamp(5)
    publish(a, EP + 2, f"{T}_p2")
    a(f"s_add_u32 s20, s53, {X1F:#x}")
    a("s_add_u32 s21, s20, 32768")
    wait_flag(a, EP + 2, f"{T}_w2")
    a.stamp(6)
    for i in range(4):
        ld(a, vr(32 + 4 * i, 4), 20, i, 33, SCL)
    for i in range(4):
        ld(a, vr(48 + 4 * i, 4), 21, i, 33, SCL)
    for i in range(9):
        ld(a, vr(64 + 4 * i, 4), 50, 23 + i, 33)
    a("v_lshlrev_b32 v7, 4, v4")
    a("s_lshl_b32 s27, s51, 7")
    a(f"s_add_u32 s27, s27, {CS1:#x}")
    for q in range(4):
        a(f"buffer_load_dwordx4 {vr(100+4*q,4)}, v7, s[8:11], s27 offen offset:{32*q}")
    STAT = 65536
    a("s_lshl_b32 s21, s3, 12")
    a("v_add_u32 v5, s21, v2")
    a("s_mov_b32 s28, 0x3f803f80")
    for r in range(8):
        a(f"v_mov_b32 v{8+r}, 0")
    for rr in range(2):
        a(f"s_waitcnt vmcnt({13+4*(1-rr)})")
        for i in range(4):
            a(f"ds_write_b128 v5, {vr(32+16*rr+4*i,4)} offset:{32768*rr+1024*i}")
        for i in range(16):
            x = 32 + 16 * rr + i
            k = 4 * (i % 2)
            a(f"v_dot2_f32_bf16 v{8+k+2*rr}, v{x}, s28, v{8+k+2*rr}")
            a(f"v_dot2_f32_bf16 v{9+k+2*rr}, v{x}, v{x}, v{9+k+2*rr}")
    a("s_lshl_b32 s21, s3, 10")
    a(f"s_add_u32 s21, s21, {STAT}")
    a("v_add_u32 v5, s21, v2")
    a.nop(2)
    for r in range(4):
        a(f"v_add_f32 v{8+r}, v{8+r}, v{12+r}")
    a("ds_write_b128 v5, v[8:11]")
    a("s_waitcnt lgkmcnt(0)")
    a("s_barrier")
    a.stamp(7)
    a("s_lshl_b32 s32, s5, 1")
    a("s_mul_i32 s54, s32, 112")
    a("s_mul_i32 s33, s3, 14")
    a("s_add_u32 s54, s54, s33")
    a("s_lshl_b32 s54, s54, 10")
    a(f"s_add_u32 s54, s54, {W2F:#x}")
    a(f"s_add_u32 s55, s54, {112*1024}")
    a("s_cmp_eq_u32 s3, 7")
    a(f"s_cbranch_scc1 {T}_cskip")
    CACC = 116

    def w1reg(i):
        if i < 15:
            return ar(36 + 4 * i, 4)
        if i < 23:
            return ar(4 * (i - 15), 4)
        return vr(64 + 4 * (i - 23), 4)

    CR = 6

    def rd(i):
        b = 8 + 8 * (i % CR)
        a(f"ds_read_b128 {vr(b,4)}, v2 offset:{i*1024}")
        a(f"ds_read_b128 {vr(b+4,4)}, v2 offset:{32768+i*1024}")
    def w2reg(j):
        if j < 23:
            return w1reg(j)
        return vr(136 + 4 * (j - 23), 4)
    for i in range(CR - 1):
        rd(i)
    for i in range(32):
        if i + CR - 1 < 32:
            rd(i + CR - 1)
        pend = min(32, i + CR) - i - 1
        if i == 23:
            a(f"s_waitcnt vmcnt(22) lgkmcnt({2*pend})")
        else:
            a(f"s_waitcnt lgkmcnt({2*pend})")
        b = 8 + 8 * (i % CR)
        for r in range(2):
            cin = "0" if i == 0 else vr(CACC + 16 * r, 16)
            a(f"v_mfma_f32_32x32x16_bf16 {vr(CACC+16*r,16)}, {w1reg(i)}, {vr(b+4*r,4)}, {cin}")
        if 1 <= i <= 23:
            j = i - 1
            ld(a, w2reg(j), 54 + (j & 1), j >> 1, 33)
    a(f"s_branch {T}_cepi")
    a(f"{T}_cskip:")
    for j in range(23):
        ld(a, w2reg(j), 54 + (j & 1), j >> 1, 33)
    a(f"{T}_cepi:")
    a.stamp(8)
    a("s_cmp_eq_u32 s3, 7")
    a(f"s_cbranch_scc1 {T}_cdone")
    a(f"v_add_u32 v5, {STAT}, v2")
    for w in range(8):
        a(f"ds_read_b128 {vr(32+4*w,4)}, v5 offset:{1024*w}")
    a("s_waitcnt lgkmcnt(0)")
    for w in range(1, 8):
        for r in range(4):
            a(f"v_add_f32 v{32+r}, v{32+r}, v{32+4*w+r}")
    for r in range(4):
        half_sum(a, 32 + r, 36)
    for r in range(2):
        m, x2 = 32 + 2 * r, 33 + 2 * r
        a(f"v_mul_f32 v{m}, {f2u(1.0/512):#x}, v{m}")
        a(f"v_mul_f32 v{x2}, {f2u(1.0/512):#x}, v{x2}")
        a(f"v_fma_f32 v{x2}, -v{m}, v{m}, v{x2}")
        a(f"v_max_f32 v{x2}, 0, v{x2}")
        a(f"v_add_f32 v{x2}, {f2u(EPS):#x}, v{x2}")
        a(f"v_rsq_f32 v{8+2*r}, v{x2}")
        a.nop(1)
        a(f"v_mul_f32 v{9+2*r}, v{m}, v{8+2*r}")
        a(f"v_sub_f32 v{9+2*r}, 0, v{9+2*r}")
    for rr in range(2):
        for r in range(16):
            a(f"v_mul_f32 v{40+r}, v{9+2*rr}, v{100+r}")
            a(f"v_fma_f32 v{CACC+16*rr+r}, v{CACC+16*rr+r}, v{8+2*rr}, v{40+r}")
        for q in range(8):
            a(f"v_cvt_pk_bf16_f32 v{16+8*rr+q}, v{CACC+16*rr+2*q}, v{CACC+16*rr+2*q+1}")
        for q in range(8):
            a(f"v_pk_max_i16 v{16+8*rr+q}, v{16+8*rr+q}, 0")
    a("s_lshl_b32 s26, s4, 1")
    a("s_mul_i32 s26, s26, 112")
    a("s_lshl_b32 s27, s51, 1")
    a("s_add_u32 s26, s26, s27")
    a("s_lshl_b32 s26, s26, 10")
    a(f"s_add_u32 s26, s26, {HF:#x}")
    a(f"s_add_u32 s27, s26, {112*1024}")
    hstore(a, ["buffer_store_dwordx4 v[16:19], v2, s[8:11], s26 offen",
               "buffer_store_dwordx4 v[20:23], v2, s[8:11], s26 offen offset:1024",
               "buffer_store_dwordx4 v[24:27], v2, s[8:11], s27 offen",
               "buffer_store_dwordx4 v[28:31], v2, s[8:11], s27 offen offset:1024"])
    a(f"{T}_cdone:")
    a.stamp(9)
    publish(a, EP + 3, f"{T}_p3")
    a("s_lshl_b32 s20, s4, 1")
    a("s_mul_i32 s20, s20, 112")
    a("s_mul_i32 s21, s3, 14")
    a("s_add_u32 s20, s20, s21")
    a("s_lshl_b32 s20, s20, 10")
    a(f"s_add_u32 s20, s20, {HF:#x}")
    a(f"s_add_u32 s21, s20, {112*1024}")
    wait_flag(a, EP + 3, f"{T}_w3")
    a.stamp(10)
    RING = 8
    DACC = 72

    def hld(i):
        b = 8 + 8 * (i % RING)
        ld(a, vr(b, 4), 20, i, 33, SCL)
        ld(a, vr(b + 4, 4), 21, i, 33, SCL)
    for i in range(RING):
        hld(i)
    def qreg(j):
        return w1reg(j)
    qpf = []
    if not last:
        a(f"s_add_u32 s48, s48, {(WQF - WOF) & 0xffffffff:#x}")
        a("s_add_u32 s49, s48, 32768")
        a("s_lshl_b32 s56, s3, 12")
        a(f"s_add_u32 s56, s56, {WKVF:#x}")
        a("v_lshlrev_b32 v156, 4, v4")
        a("v_lshlrev_b32 v157, 2, v3")
        a("s_lshl_b32 s57, s46, 7")
        a("s_lshl_b32 s33, s47, 6")
        a("s_add_u32 s57, s57, s33")
        a(f"s_add_u32 s57, s57, {CSQ:#x}")
        a(f"s_mov_b32 s58, {CSKV:#x}")
        for i in range(4):
            qpf.append(lambda i=i: ld(a, qreg(2 * i), 48, i, 33))
            qpf.append(lambda i=i: ld(a, qreg(2 * i + 1), 49, i, 33))
        for i in range(4):
            qpf.append(lambda i=i: ld(a, qreg(8 + i), 56, i, 33))
        for q in range(2):
            qpf.append(lambda q=q: a(f"buffer_load_dwordx4 {qreg(12+q)}, v156, s[8:11], s57 offen offset:{32*q}"))
        for q in range(2):
            qpf.append(lambda q=q: a(f"buffer_load_dwordx4 {qreg(14+q)}, v156, s[8:11], s58 offen offset:{32*q}"))
        qpf.append(lambda: a("buffer_load_dword a4, v157, s[8:11], s58 offen"))
    for j in range(23, 28):
        ld(a, w2reg(j), 54 + (j & 1), j >> 1, 33)

    def dloop(split, qpf):
        order = [('h', i) for i in range(RING)] + [('w', j) for j in range(23, 28)]
        for i in range(14):
            pos = order.index(('h', i))
            after = sum(2 if k == 'h' else 1 for (k, _) in order[pos + 1:])
            a(f"s_waitcnt vmcnt({after})")
            b = 8 + 8 * (i % RING)
            for c in range(2):
                for r in range(2):
                    t = 2 * c + r
                    cin = "0" if i == 0 else vr(DACC + 16 * t, 16)
                    a(f"v_mfma_f32_32x32x16_bf16 {vr(DACC+16*t,16)}, {w2reg(2*i+c)}, {vr(b+4*r,4)}, {cin}")
            if not split and i + RING < 14:
                hld(i + RING)
                order.append(('h', i + RING))
            elif split and i == RING - 1:
                poll3(0x70, f"{T}_w3b")
                for j in range(RING, 14):
                    hld(j)
                    order.append(('h', j))
            if i + RING >= 14 and (not split or i >= RING - 1):
                for _ in range(3):
                    k = sum(1 for (kk, _) in order if kk == 'q')
                    if qpf and k < 2 * i:
                        qpf.pop(0)()
                        order.append(('q', k))
        assert not qpf
    dloop(False, list(qpf))
    qpf = []
    a.stamp(11)
    assert not qpf
    reduce8(a, DACC, 8)
    for q in range(4):
        a(f"v_accvgpr_read_b32 v{16+q}, a{32+q}")
    for q in range(4):
        a(f"v_lshlrev_b32 v20, 16, v{16+q}")
        a(f"v_and_b32 v21, 0xffff0000, v{16+q}")
        a(f"v_add_f32 v{8+2*q}, v{8+2*q}, v20")
        a(f"v_add_f32 v{9+2*q}, v{9+2*q}, v21")
    for q in range(4):
        a(f"v_cvt_pk_bf16_f32 v{16+q}, v{8+2*q}, v{9+2*q}")
    if last:
        a.nop(2)
        a("v_permlane32_swap_b32 v16, v18")
        a("v_permlane32_swap_b32 v17, v19")
        a("v_lshlrev_b32 v5, 10, v3")
        a("v_lshl_add_u32 v5, v4, 4, v5")
        a("s_lshl_b32 s31, s45, 15")
        a("s_lshl_b32 s32, s46, 6")
        a("s_add_u32 s31, s31, s32")
        a("s_lshl_b32 s32, s47, 5")
        a("s_add_u32 s31, s31, s32")
        a("buffer_store_dwordx4 v[16:19], v5, s[16:19], s31 offen")
        a.stamp(12)
    else:
        XN, QN, KVN, KNN = XFL[1], QFL[1], KVFL[1], KNL[1]
        a(f"s_add_u32 s23, s42, {XN:#x}")
        hstore(a, ["buffer_store_dwordx4 v[16:19], v2, s[8:11], s23 offen"])
        a.stamp(12)
        publish(a, EP + 4, f"{T}_p4")
        a(f"s_add_u32 s20, s53, {XN:#x}")
        a("s_add_u32 s21, s20, 32768")
        a("s_mov_b32 s28, 0x3f803f80")
        wait_flag(a, EP + 4, f"{T}_w4")
        a.stamp(13)
        for i in range(4):
            ld(a, vr(8 + 8 * i, 4), 20, i, 33, SCL)
            ld(a, vr(12 + 8 * i, 4), 21, i, 33, SCL)
        for r in range(8):
            a(f"v_mov_b32 v{40+r}, 0")
        ACC = 64
        for i in range(4):
            a(f"s_waitcnt vmcnt({2*(3-i)})")
            for c in range(2):
                for r in range(2):
                    t = 2 * c + r
                    cin = "0" if i == 0 else vr(ACC + 16 * t, 16)
                    a(f"v_mfma_f32_32x32x16_bf16 {vr(ACC+16*t,16)}, {qreg(2*i+c)}, {vr(8+8*i+4*r,4)}, {cin}")
                    for q in range(4):
                        x = 8 + 8 * i + 4 * r + q
                        k = 40 + 4 * (q % 2) + 2 * r + c
                        if c == 0:
                            a(f"v_dot2_f32_bf16 v{k}, v{x}, s28, v{k}")
                        else:
                            a(f"v_dot2_f32_bf16 v{k}, v{x}, v{x}, v{k}")
        a("s_lshl_b32 s32, s3, 11")
        a(f"s_add_u32 s32, s32, {KVS}")
        a("v_add_u32 v7, s32, v2")
        a("s_cmp_ge_u32 s5, 6")
        a(f"s_cbranch_scc1 {T}_kvdone")
        for task in range(6):
            if task < 5:
                a(f"s_cmp_lg_u32 s5, {task}")
                a(f"s_cbranch_scc1 {T}_kvt{task+1}")
            kind = 'K' if task < 2 else 'V'
            r = task if task < 2 else (task - 2) >> 1
            u = 0 if task < 2 else (task & 1)
            for i in range(4):
                cin = "0" if i == 0 else vr(128, 16)
                if kind == 'K':
                    a(f"v_mfma_f32_32x32x16_bf16 {vr(128,16)}, {qreg(8+i)}, {vr(8+8*i+4*r,4)}, {cin}")
                else:
                    a(f"v_mfma_f32_32x32x16_bf16 {vr(128,16)}, {vr(8+8*i+4*r,4)}, {qreg(8+i)}, {cin}")
            a.nop(16)
            a(f"ds_write_b128 v7, {vr(128+8*u,4)}")
            a(f"ds_write_b128 v7, {vr(132+8*u,4)} offset:1024")
            if task < 5:
                a(f"s_branch {T}_kvdone")
                a(f"{T}_kvt{task+1}:")
        a(f"{T}_kvdone:")
        a("s_lshl_b32 s32, s3, 10")
        a(f"s_add_u32 s32, s32, {STATQ}")
        a("v_add_u32 v7, s32, v2")
        for r in range(4):
            a(f"v_add_f32 v{40+r}, v{40+r}, v{44+r}")
        a("ds_write_b128 v7, v[40:43]")
        reduce8(a, ACC, 8)
        a.stamp(14)
        qkv_tail(a, T, end, QN, KVN, KNN,
                 lambda: [a(f"v_accvgpr_read_b32 v{16+r}, a{84+r}") for r in range(8)],
                 lambda: [a(f"v_accvgpr_read_b32 v{16+r}, a{92+r if r < 4 else r-4}") for r in range(8)],
                 lambda: a("v_accvgpr_read_b32 v47, a4"))
    a(f"{end}:")
    a.stamp_flush(16)
    a(f"{end}x:")
    a("s_endpgm")
    a.desc(name, 160, agpr=96)
    return SCR + 8 * 2304 + 64


def tr_addr(a, dst, RS, t1, t2):
    a(f"v_lshrrev_b32 v{t1}, 5, v1")
    a(f"v_lshlrev_b32 v{t1}, 2, v{t1}")
    a(f"v_bfe_u32 v{t2}, v1, 2, 2")
    a(f"v_add_u32 v{t1}, v{t1}, v{t2}")
    a(f"v_mul_u32_u24 v{dst}, {RS}, v{t1}")
    a(f"v_bfe_u32 v{t1}, v1, 4, 1")
    a(f"v_lshlrev_b32 v{t1}, 5, v{t1}")
    a(f"v_and_b32 v{t2}, 3, v1")
    a(f"v_lshlrev_b32 v{t2}, 3, v{t2}")
    a(f"v_add3_u32 v{dst}, v{dst}, v{t1}, v{t2}")


def gen_K0(a):
    name = "k0_kernel"
    T = "K0"
    a.begin(name)
    end = f"{name}_end"
    a("s_cmp_ge_u32 s2, 256")
    a(f"s_cbranch_scc1 {end}x")
    a.stamp(0)
    a("s_load_dwordx16 s[16:31], s[0:1], 0")
    a("s_load_dwordx2 s[6:7], s[0:1], 80")
    a("v_and_b32 v1, 63, v0")
    a("v_lshrrev_b32 v2, 6, v0")
    a("v_and_b32 v3, 31, v1")
    a("v_readfirstlane_b32 s60, v2")
    a("v_lshrrev_b32 v4, 5, v1")
    a("v_lshlrev_b32 v2, 4, v1")
    a("s_and_b32 s4, s2, 31")
    a("s_lshr_b32 s5, s2, 5")
    a("s_and_b32 s3, s60, 7")
    a("s_waitcnt lgkmcnt(0)")
    a.srd(8, 6, G.WS_USED)
    a.srd(52, 20, 512 * 16 * 2)
    a.srd(56, 22, 512 * 16 * 2)
    a("s_mov_b32 s61, 0x3f803f80")
    a("s_cmp_ge_u32 s60, 8")
    a("s_cbranch_scc1 K0_prep")
    if os.environ.get('K0X', '') == 'qprio':
        a("s_setprio 3")
    a.stamp(1)
    a.srd(12, 16, 2048 * 512 * 2)
    a.srd(48, 18, 512 * 512 * 2)
    piece_sgprs(a)
    a("v_lshrrev_b32 v6, 3, v1")
    a("v_lshlrev_b32 v6, 10, v6")
    a("v_and_b32 v7, 7, v1")
    a("v_lshl_add_u32 v6, v7, 4, v6")
    a("s_lshl_b32 s20, s4, 16")
    a("s_lshl_b32 s22, s3, 7")
    a("s_add_u32 s20, s20, s22")
    for k in range(8):
        a(f"s_add_u32 s21, s20, {8192*k}")
        a(f"buffer_load_dwordx4 {vr(64+4*k,4)}, v6, s[12:15], s21 offen")
    a("v_lshrrev_b32 v7, 2, v1")
    a("v_lshlrev_b32 v7, 5, v7")
    a("v_and_b32 v5, 1, v1")
    a("v_lshl_add_u32 v7, v5, 4, v7")
    a("v_and_b32 v5, 2, v1")
    a("v_cmp_eq_u32 vcc, 0, v5")
    a("s_lshl_b32 s20, s3, 11")
    a("s_and_saveexec_b64 s[38:39], vcc")
    for i in range(4):
        a(f"buffer_load_dwordx4 {vr(96+4*i,4)}, v7, s[52:55], s20 offen offset:{512*i}")
    a("s_andn2_b64 exec, s[38:39], exec")
    for i in range(4):
        a(f"buffer_load_dwordx4 {vr(96+4*i,4)}, v7, s[56:59], s20 offen offset:{512*i}")
    a("s_mov_b64 exec, s[38:39]")
    a("s_lshl_b32 s22, s3, 16")
    a("s_lshl_b32 s23, s5, 7")
    a("s_add_u32 s22, s22, s23")
    a("s_lshl_b32 s23, s3, 13")
    for i in range(8):
        a(f"s_add_u32 m0, s23, {1024*i}")
        a(f"s_add_u32 s24, s22, {8192*i}")
        a("buffer_load_dwordx4 v6, s[48:51], s24 offen lds")
    a.stamp(2)
    tr_addr(a, 56, 128, 5, 6)
    a("v_add_u32 v56, s23, v56")
    tr_addr(a, 57, 64, 5, 6)
    a("s_lshl_b32 s21, s3, 12")
    a("s_add_u32 s21, s21, 65536")
    a("v_add_u32 v57, s21, v57")
    a("v_lshrrev_b32 v5, 3, v1")
    a("v_and_b32 v6, 7, v1")
    a("v_xor_b32 v6, v6, v5")
    a("v_lshlrev_b32 v6, 4, v6")
    a("v_lshl_add_u32 v112, v5, 7, v6")
    a("v_add_u32 v112, s21, v112")
    a("v_and_b32 v5, 7, v3")
    a("v_lshlrev_b32 v5, 4, v5")
    a("v_lshl_add_u32 v5, v3, 7, v5")
    a("v_lshl_add_u32 v5, v4, 3, v5")
    a("v_add_u32 v113, s21, v5")
    a("v_add_u32 v114, s21, v2")
    for c in range(8):
        a(f"v_xor_b32 v{116+c}, {c<<4}, v113")
    for r in range(6):
        a(f"v_mov_b32 v{58+r}, 0")
    a("v_mov_b32 v7, 0")
    for r in range(2):
        a(f"s_waitcnt vmcnt({16+4*(1-r)})")
        if r == 0:
            a.stamp(3)
        for j in range(4):
            a(f"ds_write_b128 v112, {vr(64+16*r+4*j,4)} offset:{1024*j}")
        for i in range(4):
            b = 8 + 8 * i + 4 * r
            a(f"ds_read_b64 {vr(b,2)}, v{116+2*i}")
            a(f"ds_read_b64 {vr(b+2,2)}, v{117+2*i}")
    a("s_waitcnt vmcnt(8)")
    for i in range(4):
        a(f"ds_write_b128 v114, {vr(96+4*i,4)} offset:{1024*i}")
    for i in range(4):
        a(f"ds_read_b64_tr_b16 {vr(40+4*i,2)}, v57 offset:{16*i*64}")
        a(f"ds_read_b64_tr_b16 {vr(42+4*i,2)}, v57 offset:{(16*i+8)*64}")
    a("s_waitcnt lgkmcnt(0)")
    for r in range(16):
        a(f"v_dot2_f32_bf16 v7, v{40+r}, s61, v7")
    a("s_lshl_b32 s32, s3, 11")
    a(f"s_add_u32 s32, s32, {KVS}")
    a("v_add_u32 v6, s32, v2")
    a("s_cmp_ge_u32 s5, 6")
    a(f"s_cbranch_scc1 {T}_kvdone")
    for task in range(6):
        if task < 5:
            a(f"s_cmp_lg_u32 s5, {task}")
            a(f"s_cbranch_scc1 {T}_kvt{task+1}")
        kind = 'K' if task < 2 else 'V'
        r = task if task < 2 else (task - 2) >> 1
        u = 0 if task < 2 else (task & 1)
        for i in range(4):
            cin = "0" if i == 0 else vr(64, 16)
            if kind == 'K':
                a(f"v_mfma_f32_32x32x16_bf16 {vr(64,16)}, {vr(40+4*i,4)}, {vr(8+8*i+4*r,4)}, {cin}")
            else:
                a(f"v_mfma_f32_32x32x16_bf16 {vr(64,16)}, {vr(8+8*i+4*r,4)}, {vr(40+4*i,4)}, {cin}")
        a.nop(16)
        a(f"ds_write_b128 v6, {vr(64+8*u,4)}")
        a(f"ds_write_b128 v6, {vr(68+8*u,4)} offset:1024")
        if task < 5:
            a(f"s_branch {T}_kvdone")
            a(f"{T}_kvt{task+1}:")
    a(f"{T}_kvdone:")
    half_sum(a, 7, 5)
    a("s_mul_i32 s32, s3, 384")
    a(f"s_add_u32 s32, s32, {CSP}")
    a("v_lshlrev_b32 v6, 2, v3")
    a("v_add_u32 v6, s32, v6")
    a("ds_write_b32 v6, v7 offset:256")
    a("s_waitcnt vmcnt(0)")
    a.stamp(4)

    def wrd(i):
        b = 40 + 8 * (i % 2)
        for c in range(2):
            a(f"ds_read_b64_tr_b16 {vr(b+4*c,2)}, v56 offset:{16*i*128+64*c}")
            a(f"ds_read_b64_tr_b16 {vr(b+4*c+2,2)}, v56 offset:{(16*i+8)*128+64*c}")
    wrd(0)
    ACC = 64
    for i in range(4):
        if i < 3:
            wrd(i + 1)
        a(f"s_waitcnt lgkmcnt({4 if i < 3 else 0})")
        b = 40 + 8 * (i % 2)
        for c in range(2):
            for r in range(2):
                t = 2 * c + r
                cin = "0" if i == 0 else vr(ACC + 16 * t, 16)
                a(f"v_mfma_f32_32x32x16_bf16 {vr(ACC+16*t,16)}, {vr(b+4*c,4)}, {vr(8+8*i+4*r,4)}, {cin}")
                for q in range(4):
                    x = 8 + 8 * i + 4 * r + q
                    k = 58 + 2 * r + c
                    if c == 0:
                        a(f"v_dot2_f32_bf16 v{k}, v{x}, s61, v{k}")
                    else:
                        a(f"v_dot2_f32_bf16 v{k}, v{x}, v{x}, v{k}")
                if r == 0:
                    for q in range(4):
                        a(f"v_dot2_f32_bf16 v{62+c}, v{b+4*c+q}, s61, v{62+c}")
    a("s_lshl_b32 s32, s3, 10")
    a(f"s_add_u32 s32, s32, {STATQ}")
    a("v_add_u32 v7, s32, v2")
    a.nop(2)
    a("ds_write_b128 v7, v[58:61]")
    half_sum(a, 62, 5)
    half_sum(a, 63, 5)
    a("ds_write_b32 v6, v62")
    a("ds_write_b32 v6, v63 offset:128")
    a.stamp(5)
    reduce8(a, ACC, 8, pre_barrier=True)
    a.stamp(6)

    def cs8(tile_off_expr):
        for s in range(8):
            for q in range(2):
                a(f"ds_read_b128 {vr(64+8*s+4*q,4)}, v46 offset:{s*384+32*q}")
        a("s_waitcnt lgkmcnt(0)")
        for r in range(8):
            a(f"v_add_f32 v{16+r}, v{64+r}, v{72+r}")
        for s in range(2, 8):
            for r in range(8):
                a(f"v_add_f32 v{16+r}, v{16+r}, v{64+8*s+r}")

    def get_csq():
        a("s_lshl_b32 s32, s44, 7")
        a("s_lshl_b32 s33, s47, 6")
        a("s_add_u32 s32, s32, s33")
        a(f"s_add_u32 s32, s32, {CSP}")
        a("v_lshlrev_b32 v46, 4, v4")
        a("v_add_u32 v46, s32, v46")
        cs8(None)

    def get_csk():
        a("v_lshlrev_b32 v46, 4, v4")
        a(f"v_add_u32 v46, {CSP+256}, v46")
        for s in range(6):
            for q in range(2):
                a(f"ds_read_b128 {vr(72+8*s+4*q,4)}, v46 offset:{s*384+32*q}")
        for s in range(6, 8):
            for q in range(2):
                a(f"ds_read_b128 {vr(24+8*(s-6)+4*q,4)}, v46 offset:{s*384+32*q}")
        a("s_waitcnt lgkmcnt(0)")
        for r in range(8):
            a(f"v_add_f32 v{16+r}, v{24+r}, v{32+r}")
        for s in range(6):
            for r in range(8):
                a(f"v_add_f32 v{16+r}, v{16+r}, v{72+8*s+r}")

    def get_csv():
        a("v_lshlrev_b32 v46, 2, v3")
        a(f"v_add_u32 v46, {CSP+256}, v46")
        for s in range(8):
            a(f"ds_read_b32 v{72+s}, v46 offset:{s*384}")
        a("s_waitcnt lgkmcnt(0)")
        a("v_add_f32 v47, v72, v73")
        for s in range(2, 8):
            a(f"v_add_f32 v47, v47, v{72+s}")
    qkv_tail(a, T, end, QFL[0], KVFL[0], KNL[0], get_csq, get_csk, get_csv)
    a(f"s_branch {end}")
    a("K0_prep:")
    if os.environ.get('K0X', '') == 'noprep':
        a(f"s_branch {end}x")
    if os.environ.get('K0X', '') == 'prio':
        a("s_setprio 3")
    a("s_cmp_lt_u32 s2, 154")
    a("s_cbranch_scc1 K0_ptask")
    if CODEPF:
        code_srd(a, 40, "K0")
        a("s_sub_u32 s32, s2, 154")
        a("s_lshr_b32 s32, s32, 3")
        a("s_lshl_b32 s32, s32, 3")
        a("s_add_u32 s32, s32, s3")
        a("s_lshl_b32 s32, s32, 10")
        a("buffer_load_dwordx4 v[16:19], v2, s[40:43], s32 offen")
        a("s_waitcnt vmcnt(0)")
    a(f"s_branch {end}x")
    a("K0_ptask:")
    a("s_cmp_lg_u32 s2, 153")
    a("s_cbranch_scc1 K0_pw")
    a("s_lshl_b32 s32, s3, 11")
    a(f"s_add_u32 s32, s32, {FLAGS:#x}")
    for r in range(4):
        a(f"v_mov_b32 v{16+r}, 0")
    a("buffer_store_dwordx4 v[16:19], v2, s[8:11], s32 offen")
    a("buffer_store_dwordx4 v[16:19], v2, s[8:11], s32 offen offset:1024")
    a(f"s_branch {end}x")
    a("K0_pw:")
    a("s_lshl_b32 s62, s3, 12")
    a("s_add_u32 s62, s62, 98304")
    a("s_mov_b32 s46, 0")
    a("s_mov_b32 s36, 32")
    a("s_cmp_eq_u32 s2, 152")
    a("s_cbranch_scc1 K0_pkv")
    a("s_cmp_ge_u32 s2, 88")
    a("s_cbranch_scc1 K0_pw2")
    a("s_cmp_ge_u32 s2, 32")
    a("s_cbranch_scc1 K0_pw1")
    a("s_cmp_ge_u32 s2, 16")
    a("s_cbranch_scc1 K0_pwo")
    a.srd(40, 18, 512 * 512 * 2)
    a("s_mov_b32 s44, 1024")
    a("s_mov_b32 s45, s2")
    a("s_lshl_b32 s47, s45, 15")
    a(f"s_add_u32 s47, s47, {WQF:#x}")
    a("s_lshl_b32 s49, s45, 7")
    a(f"s_add_u32 s49, s49, {CSQ:#x}")
    a("s_branch K0_pgo")
    a("K0_pwo:")
    a.srd(40, 24, 512 * 512 * 2)
    a("s_mov_b32 s44, 1024")
    a("s_sub_u32 s45, s2, 16")
    a("s_lshl_b32 s47, s45, 15")
    a(f"s_add_u32 s47, s47, {WOF:#x}")
    a("s_mov_b32 s49, 0")
    a("s_branch K0_pgo")
    a("K0_pw1:")
    a.srd(40, 28, 512 * 1792 * 2)
    a("s_mov_b32 s44, 3584")
    a("s_sub_u32 s45, s2, 32")
    a("s_lshl_b32 s47, s45, 15")
    a(f"s_add_u32 s47, s47, {W1F:#x}")
    a("s_lshl_b32 s49, s45, 7")
    a(f"s_add_u32 s49, s49, {CS1:#x}")
    a("s_branch K0_pgo")
    a("K0_pw2:")
    a.srd(40, 30, 512 * 1792 * 2)
    a("s_mov_b32 s44, 1024")
    a("s_sub_u32 s45, s2, 88")
    a("s_and_b32 s46, s45, 3")
    a("s_mul_i32 s46, s46, 28")
    a("s_lshr_b32 s45, s45, 2")
    a("s_mul_i32 s47, s45, 112")
    a("s_add_u32 s47, s47, s46")
    a("s_lshl_b32 s47, s47, 10")
    a(f"s_add_u32 s47, s47, {W2F:#x}")
    a("s_mov_b32 s36, 28")
    a("s_mov_b32 s49, 0")
    a("K0_pgo:")
    a("s_lshl_b32 s50, s3, 2")
    a("s_cmp_ge_u32 s50, s36")
    a(f"s_cbranch_scc1 {end}x")
    a("v_lshrrev_b32 v5, 2, v1")
    a("v_mul_lo_u32 v5, v5, s44")
    a("v_and_b32 v6, 3, v1")
    a("v_lshl_add_u32 v5, v6, 4, v5")
    a("s_add_u32 s51, s46, s50")
    a("s_lshl_b32 s51, s51, 4")
    a("s_mul_i32 s51, s51, s44")
    a("s_lshl_b32 s32, s45, 6")
    a("s_add_u32 s51, s51, s32")
    a("s_lshl_b32 s33, s44, 4")
    for i in range(4):
        a(f"s_add_u32 m0, s62, {1024*i}")
        a("s_nop 0")
        a("buffer_load_dwordx4 v5, s[40:43], s51 offen lds")
        a("s_add_u32 s51, s51, s33")
    a("s_branch K0_ptr")
    a("K0_pkv:")
    a("s_lshl_b32 s50, s3, 2")
    a("v_lshrrev_b32 v7, 2, v1")
    a("v_lshlrev_b32 v7, 5, v7")
    a("v_and_b32 v5, 1, v1")
    a("v_lshl_add_u32 v7, v5, 4, v7")
    a("v_and_b32 v5, 2, v1")
    a("v_cmp_eq_u32 vcc, 0, v5")
    a("s_lshl_b32 s20, s3, 11")
    a("s_and_saveexec_b64 s[38:39], vcc")
    for i in range(4):
        a(f"s_add_u32 m0, s62, {1024*i}")
        a(f"s_add_u32 s22, s20, {512*i}")
        a("buffer_load_dwordx4 v7, s[52:55], s22 offen lds")
    a("s_andn2_b64 exec, s[38:39], exec")
    for i in range(4):
        a(f"s_add_u32 m0, s62, {1024*i}")
        a(f"s_add_u32 s22, s20, {512*i}")
        a("buffer_load_dwordx4 v7, s[56:59], s22 offen lds")
    a("s_mov_b64 exec, s[38:39]")
    a(f"s_mov_b32 s47, {WKVF:#x}")
    a(f"s_mov_b32 s49, {CSKV:#x}")
    a("K0_ptr:")
    tr_addr(a, 8, 64, 5, 6)
    a("v_add_u32 v8, s62, v8")
    a("s_lshl_b32 s32, s50, 10")
    a("s_add_u32 s47, s47, s32")
    a("v_mov_b32 v7, 0")
    a("s_waitcnt vmcnt(0)")
    for i in range(4):
        a(f"ds_read_b64_tr_b16 {vr(16+4*i,2)}, v8 offset:{16*i*64}")
        a(f"ds_read_b64_tr_b16 {vr(18+4*i,2)}, v8 offset:{(16*i+8)*64}")
    for i in range(4):
        a(f"s_waitcnt lgkmcnt({2*(3-i)})")
        a(f"buffer_store_dwordx4 {vr(16+4*i,4)}, v2, s[8:11], s47 offen offset:{1024*i}")
        for q in range(4):
            a(f"v_dot2_f32_bf16 v7, v{16+4*i+q}, s61, v7")
    a("s_cmp_eq_u32 s49, 0")
    a(f"s_cbranch_scc1 {end}x")
    a.nop(2)
    half_sum(a, 7, 5)
    a("s_lshl_b32 s32, s3, 7")
    a(f"s_add_u32 s32, s32, {CSP2}")
    a("v_lshlrev_b32 v6, 2, v3")
    a("v_add_u32 v5, s32, v6")
    a("ds_write_b32 v5, v7")
    a("s_waitcnt lgkmcnt(0)")
    a("s_barrier")
    a("s_cmp_lg_u32 s3, 0")
    a(f"s_cbranch_scc1 {end}x")
    a(f"v_add_u32 v5, {CSP2}, v6")
    for s in range(8):
        a(f"ds_read_b32 v{16+s}, v5 offset:{128*s}")
    a("s_waitcnt lgkmcnt(0)")
    for s in range(1, 8):
        a(f"v_add_f32 v16, v16, v{16+s}")
    a("v_cmp_gt_u32 vcc, 32, v1")
    a("s_and_saveexec_b64 s[38:39], vcc")
    a("buffer_store_dword v16, v6, s[8:11], s49 offen")
    a(f"s_branch {end}x")
    a(f"{end}:")
    a.stamp_flush(8)
    a(f"{end}x:")
    a("s_endpgm")
    a.desc(name, 128)
    return CSP2 + 1024


def gen_zero_flags(a):
    pass


def main():
    a = Asm()
    G.XF, G.QF, G.KVF = XFL[0], QFL[0], KVFL[0]
    G.FLAGS_ZERO = FLAGS
    lds_k0 = gen_K0(a)
    lds_f = gen_F(a, 0)
    gen_F(a, 1)
    hdr = ["; generated by gen/gen2.py -- fused MQA + FFN pipeline"]
    L = hdr.append
    L(f"; @launch kernel=k0_kernel grid=(256,1,1) block=(1024,1,1) lds={lds_k0}")
    L(f"; @launch kernel=f1_kernel grid=(256,1,1) block=(512,1,1) lds={lds_f}")
    L(f"; @launch kernel=f2_kernel grid=(256,1,1) block=(512,1,1) lds={lds_f}")
    out = "\n".join(hdr) + "\n"
    out += '.amdgcn_target "amdgcn-amd-amdhsa--gfx950"\n.text\n'
    out += "\n".join(a.L) + "\ncode_end:\n"
    out += '.section .rodata,"a"\n' + "\n".join(a.kernels) + "\n"
    path = sys.argv[1] if len(sys.argv) > 1 else f"cdna_kernels/{NAME}.s"
    open(path, 'w').write(out)
    if PROFILE:
        import json
        json.dump(G.PROF_SLOT, open('prof_slots.json', 'w'))
    print("wrote", path, len(out), "bytes")


if __name__ == "__main__":
    main()
```

```python
import os
import sys
import gen as G
from gen import Asm, vr, ar, f2u, half_sum, wave32_max, prologue, frag_loads
from gen import WQF, WOF, W1F, W2F, WKVF, CSQ, CS1, CSKV, VH, VU, KVT, KVF_BYTES, QS, EPS, NAME, PROFILE

LSTRIDE = 0x2000000
XFL = [0x500000, 0x500000 + LSTRIDE]
QFL = [0x700000, 0x700000 + LSTRIDE]
REUSE = int(os.environ.get('REUSE', '1'))
TOUCH = int(os.environ.get('TOUCH', '1'))
TOUCH2 = int(os.environ.get('TOUCH2', '1'))
_R = 0 if REUSE else LSTRIDE
OFL = [0x900000, 0x900000 + _R]
X1FL = [0xB00000, 0xB00000 + _R]
HFL = [0x1000000, 0x1000000 + _R]
KVFL = [0x1800000, 0x1800000 + LSTRIDE]
KNL = [0x1880000, 0x1880000 + LSTRIDE]
FLAGS = 0x490000
FL3 = FLAGS + 8192
G.WS_USED = 0x4400000
G.PROF = 0x4000000
G.KN = KNL[0]
SC = "sc0 sc1"
SCL = os.environ.get("SCL", "sc1")
SPIN_MAX = 200000
BMAX = float(os.environ.get('BMAX', '64'))

PRIO_IT = int(os.environ.get('PRIO_IT', '7'))
WARM = int(os.environ.get('WARM', '1'))
CODEPF = int(os.environ.get('CODEPF', '0'))
FAST = int(os.environ.get('FAST', '1'))
CZERO = int(os.environ.get('CZERO', '1'))


_uid = [0]
FSF = os.environ.get('FSF', '')


def hstore(a, insts):
    _uid[0] += 1
    u = _uid[0]
    a("s_cmp_lg_u32 s61, 0")
    a(f"s_cbranch_scc1 HS{u}_f")
    for i in insts:
        a(f"{i} {SC}")
    a(f"s_branch HS{u}_e")
    a(f"HS{u}_f:")
    for i in insts:
        a(i + (" " + FSF if 'dwordx4' in i else ""))
    a(f"HS{u}_e:")


def publish(a, epoch, tag):
    a("s_waitcnt vmcnt(0)")
    a("s_barrier")
    a("s_cmp_lg_u32 s3, 0")
    a(f"s_cbranch_scc1 {tag}_np")
    a(f"v_mov_b32 v5, {epoch}")
    a("v_mov_b32 v6, 0")
    a("v_cmp_eq_u32 vcc, 0, v1")
    a("s_and_saveexec_b64 s[38:39], vcc")
    hstore(a, ["buffer_store_dword v5, v6, s[8:11], s40 offen"])
    a("s_mov_b64 exec, s[38:39]")
    a(f"{tag}_np:")


def wait_flag(a, epoch, tag):
    a("v_mov_b32 v6, 0")
    a("s_mov_b32 s37, 0")
    a(f"{tag}_poll:")
    a(f"buffer_load_dword v5, v6, s[8:11], s41 offen {SC}")
    a("s_waitcnt vmcnt(0)")
    a("v_readfirstlane_b32 s36, v5")
    a("s_add_u32 s37, s37, 1")
    a(f"s_cmp_ge_u32 s36, {epoch}")
    a(f"s_cbranch_scc1 {tag}_go")
    a(f"s_cmp_gt_u32 s37, {SPIN_MAX}")
    a(f"s_cbranch_scc1 {tag}_go")
    a("s_sleep 1")
    a(f"s_branch {tag}_poll")
    a(f"{tag}_go:")


def ld(a, dst, sbase, idx, stmp, flags=""):
    hi, lo = idx // 4, idx % 4
    if hi == 0:
        so = f"s{sbase}"
    else:
        a(f"s_add_u32 s{stmp}, s{sbase}, {hi*4096}")
        so = f"s{stmp}"
    a(f"buffer_load_dwordx4 {dst}, v2, s[8:11], {so} offen offset:{lo*1024} {flags}")


def reduce8(a, ACC, DST, lds_base=0, pre_barrier=False):
    a("s_lshl_b32 s32, s3, 11")
    a("v_add_u32 v5, s32, v2")
    a("v_add_u32 v6, 0x10000, v5")
    a("s_lshl_b32 s32, s3, 14")
    a("v_add_u32 v7, s32, v2")
    a.nop(12)
    if pre_barrier:
        a("s_waitcnt lgkmcnt(0)")
        a("s_barrier")
    for p in range(8):
        for q in range(2):
            off = (p % 4) * 16384 + q * 1024
            a(f"ds_write_b128 v{5 if p < 4 else 6}, {vr(ACC+8*p+4*q,4)} offset:{off}")
    a("s_waitcnt lgkmcnt(0)")
    a("s_barrier")
    for s in range(8):
        for q in range(2):
            a(f"ds_read_b128 {vr(ACC+8*s+4*q,4)}, v7 offset:{s*2048+q*1024}")
    for s in range(0, 8, 2):
        a(f"s_waitcnt lgkmcnt({12-2*s})")
        for r in range(8):
            if s == 0:
                a(f"v_add_f32 v{DST+r}, v{ACC+r}, v{ACC+8+r}")
            else:
                a(f"v_add_f32 v{ACC+8*s+r}, v{ACC+8*s+r}, v{ACC+8*s+8+r}")
                a(f"v_add_f32 v{DST+r}, v{DST+r}, v{ACC+8*s+r}")


STATQ = 131072
KVS = STATQ + 8192
STAT2 = KVS + 16384
CSP = STAT2 + 256
CSP2 = CSP + 3072


def qkv_tail(a, T, end, QN, KVN, KNN, get_csq, get_csk, get_csv):
    a("s_lshl_b32 s32, s43, 3")
    a(f"s_add_u32 s32, s32, {STATQ}")
    a("v_add_u32 v7, s32, v2")
    for s in range(8):
        a(f"ds_read_b64 {vr(40+2*s,2)}, v7 offset:{s*1024}")
    a("s_waitcnt lgkmcnt(0)")
    for s in range(1, 8):
        a(f"v_add_f32 v40, v40, v{40+2*s}")
        a(f"v_add_f32 v41, v41, v{41+2*s}")
    half_sum(a, 40, 42)
    half_sum(a, 41, 42)
    a(f"v_mul_f32 v40, {f2u(1.0/512):#x}, v40")
    a(f"v_mul_f32 v41, {f2u(1.0/512):#x}, v41")
    a("v_fma_f32 v41, -v40, v40, v41")
    a("v_max_f32 v41, 0, v41")
    a(f"v_add_f32 v41, {f2u(EPS):#x}, v41")
    a("v_rsq_f32 v41, v41")
    a.nop(1)
    a("v_mul_f32 v42, v40, v41")
    a("v_sub_f32 v42, 0, v42")
    a(f"v_mul_f32 v43, {f2u(QS):#x}, v41")
    a(f"v_mul_f32 v44, {f2u(QS):#x}, v42")
    get_csq()
    for r in range(8):
        a(f"v_mul_f32 v{16+r}, v44, v{16+r}")
        a(f"v_fma_f32 v{8+r}, v{8+r}, v43, v{16+r}")
    for q in range(4):
        a(f"v_cvt_pk_bf16_f32 v{24+q}, v{8+2*q}, v{9+2*q}")
    a(f"s_add_u32 s23, s42, {QN:#x}")
    a("buffer_store_dwordx4 v[24:27], v2, s[8:11], s23 offen")
    a("s_cmp_ge_u32 s5, 6")
    a(f"s_cbranch_scc1 {end}")
    a("s_lshr_b32 s32, s5, 2")
    a("s_cmp_eq_u32 s5, 1")
    a("s_cselect_b32 s32, 1, s32")
    a("s_lshl_b32 s32, s32, 1")
    a("s_cmp_lg_u32 s3, s32")
    a(f"s_cbranch_scc1 {end}")
    a(f"v_add_u32 v7, {KVS}, v2")
    for s in range(8):
        for q in range(2):
            a(f"ds_read_b128 {vr(64+8*s+4*q,4)}, v7 offset:{s*2048+q*1024}")
    a(f"s_mul_i32 s33, s45, {KVT}")
    a(f"s_add_u32 s33, s33, {KVN:#x}")
    a("s_waitcnt lgkmcnt(0)")
    for s in range(1, 8):
        for r in range(8):
            a(f"v_add_f32 v{64+r}, v{64+r}, v{64+8*s+r}")
    a("s_cmp_ge_u32 s5, 2")
    a(f"s_cbranch_scc1 {T}_finV")
    a("v_mov_b32 v45, 0")
    get_csk()
    for r in range(8):
        a(f"v_mul_f32 v{16+r}, v42, v{16+r}")
        a(f"v_fma_f32 v{64+r}, v{64+r}, v41, v{16+r}")
        a(f"v_fma_f32 v45, v{64+r}, v{64+r}, v45")
    for q in range(4):
        a(f"v_cvt_pk_bf16_f32 v{28+q}, v{64+2*q}, v{65+2*q}")
    a("buffer_store_dwordx4 v[28:31], v2, s[8:11], s33 offen")
    half_sum(a, 45, 46)
    a("s_lshl_b32 s32, s45, 7")
    a(f"s_add_u32 s32, s32, {KNN:#x}")
    a("v_lshlrev_b32 v46, 2, v3")
    a("v_cmp_gt_u32 vcc, 32, v1")
    a("s_and_saveexec_b64 s[38:39], vcc")
    a("buffer_store_dword v45, v46, s[8:11], s32 offen")
    a(f"s_branch {end}")
    a(f"{T}_finV:")
    a("v_lshlrev_b32 v7, 2, v3")
    a(f"v_add_u32 v7, {STAT2}, v7")
    a("ds_write_b32 v7, v41")
    a("ds_write_b32 v7, v42 offset:128")
    a("s_and_b32 s32, s5, 1")
    a("s_lshl_b32 s32, s32, 6")
    a(f"s_add_u32 s32, s32, {STAT2}")
    a("v_lshlrev_b32 v7, 4, v4")
    a("v_add_u32 v7, s32, v7")
    get_csv()
    a("s_waitcnt lgkmcnt(0)")
    for q in range(2):
        a(f"ds_read_b128 {vr(16+4*q,4)}, v7 offset:{32*q}")
        a(f"ds_read_b128 {vr(24+4*q,4)}, v7 offset:{128+32*q}")
    a("s_waitcnt lgkmcnt(0)")
    for r in range(8):
        a(f"v_mul_f32 v{24+r}, v47, v{24+r}")
        a(f"v_fma_f32 v{64+r}, v{64+r}, v{16+r}, v{24+r}")
    for q in range(4):
        a(f"v_cvt_pk_bf16_f32 v{32+q}, v{64+2*q}, v{65+2*q}")
    a("v_cmp_eq_u32 s[38:39], 0, v3")
    a("v_mov_b32 v45, 0x3f803f80")
    a("v_mov_b32 v46, 0")
    a("v_cndmask_b32 v45, v46, v45, s[38:39]")
    a("v_cmp_le_u32 vcc, 16, v3")
    a("v_xor_b32 v7, 16, v3")
    a("v_lshlrev_b32 v7, 4, v7")
    for q in range(4):
        a(f"v_cndmask_b32 v{32+q}, v45, v{32+q}, vcc")
    a(f"v_mul_u32_u24 v46, {VH}, v4")
    a("v_add_u32 v7, v7, v46")
    a("s_and_b32 s32, s5, 1")
    a(f"s_mul_i32 s32, s32, {VU}")
    a("s_add_u32 s33, s33, s32")
    a("v_cmp_gt_u32 s[38:39], 2, v3")
    a("s_or_b64 vcc, vcc, s[38:39]")
    a("s_and_saveexec_b64 s[38:39], vcc")
    a("buffer_store_dwordx4 v[32:35], v7, s[8:11], s33 offen offset:1024")


def piece_sgprs(a):
    a("s_lshr_b32 s32, s3, 1")
    a("s_and_b32 s43, s32, 1")
    a("s_lshr_b32 s44, s3, 2")
    a("s_lshl_b32 s45, s4, 1")
    a("s_add_u32 s45, s45, s43")
    a("s_lshl_b32 s46, s5, 1")
    a("s_add_u32 s46, s46, s44")
    a("s_lshl_b32 s42, s45, 5")
    a("s_lshl_b32 s32, s46, 1")
    a("s_add_u32 s42, s42, s32")
    a("s_and_b32 s47, s3, 1")
    a("s_add_u32 s42, s42, s47")
    a("s_lshl_b32 s42, s42, 10")


def code_srd(a, d, tag):
    a(f"s_getpc_b64 s[{d}:{d+1}]")
    a(f"{tag}_pc:")
    a(f"s_add_u32 s{d}, s{d}, f1_kernel-{tag}_pc")
    a(f"s_addc_u32 s{d+1}, s{d+1}, {'-1' if tag != 'K0' else '0'}")
    a(f"s_mov_b32 s{d+2}, code_end-f1_kernel")
    a(f"s_mov_b32 s{d+3}, 0x00020000")


def gen_F(a, L):
    last = (L == 1)
    name = f"f{L+1}_kernel"
    T = f"F{L}"
    a.begin(name)
    end = f"{name}_end"
    prologue(a, end, out_ptr=True, out_off=(64 if last else 0))
    a.srd(16, 12, 2048 * 512 * 2)
    XF, QF, OF, X1F, HF, KVF, KN = XFL[L], QFL[L], OFL[L], X1FL[L], HFL[L], KVFL[L], KNL[L]
    EP = 4 * L
    a("s_lshl_b32 s40, s4, 8")
    a(f"s_add_u32 s40, s40, {FLAGS:#x}")
    a("s_lshl_b32 s41, s3, 2")
    a("s_add_u32 s41, s41, s40")
    a("s_lshl_b32 s32, s5, 2")
    a("s_add_u32 s40, s40, s32")
    piece_sgprs(a)
    a("s_getreg_b32 s61, hwreg(HW_REG_XCC_ID)")
    a("s_and_b32 s61, s61, 15")
    a("s_add_u32 s61, s61, 1")
    a("s_cmp_lg_u32 s3, 0")
    a(f"s_cbranch_scc1 {T}_noxid")
    a("v_mov_b32 v5, s61")
    a("v_mov_b32 v6, 0")
    a("v_cmp_eq_u32 vcc, 0, v1")
    a("s_and_saveexec_b64 s[38:39], vcc")
    a(f"buffer_store_dword v5, v6, s[8:11], s40 offen offset:{64+32*L} {SC}")
    a("s_mov_b64 exec, s[38:39]")
    a(f"{T}_noxid:")
    SCR = KVF_BYTES
    KMX = SCR + 8 * 2304
    Q = (8, 12)
    C = 16
    O = (32, 48)
    S = (64, 80)
    P = (96, 104)
    E = 112
    KB = (128, 132)
    VB = (136, 144)
    a("s_and_b32 s20, s3, 3")
    a("s_lshr_b32 s30, s3, 2")
    a("s_and_b32 s21, s20, 1")
    a("s_lshl_b32 s21, s21, 1")
    a("s_lshl_b32 s22, s5, 2")
    a("s_add_u32 s21, s21, s22")
    a("s_lshr_b32 s22, s20, 1")
    a("s_lshl_b32 s23, s4, 1")
    a("s_add_u32 s22, s22, s23")
    a("s_lshl_b32 s22, s22, 5")
    a("s_add_u32 s22, s22, s21")
    a("s_add_u32 s23, s22, s30")
    a("s_xor_b32 s24, s30, 1")
    a("s_add_u32 s24, s22, s24")
    a("s_lshl_b32 s22, s23, 10")
    a("s_lshl_b32 s24, s24, 10")
    a(f"s_add_u32 s23, s22, {QF:#x}")
    a(f"s_add_u32 s24, s24, {QF:#x}")
    a(f"buffer_load_dwordx4 {vr(Q[0],4)}, v2, s[8:11], s23 offen")
    a(f"buffer_load_dwordx4 {vr(Q[1],4)}, v2, s[8:11], s24 offen")
    a("s_lshl_b32 s23, s3, 10")
    a(f"s_add_u32 s23, s23, {KN:#x}")
    a(f"buffer_load_dwordx4 {vr(E,4)}, v2, s[8:11], s23 offen")
    a("s_lshr_b32 s24, s3, 1")
    a("s_lshl_b32 s24, s24, 10")
    a("s_and_b32 s25, s3, 1")
    a(f"s_mul_i32 s25, s25, {32*KVT}")
    a("s_add_u32 s34, s24, s25")
    a(f"s_add_u32 s35, s34, {KVF:#x}")

    def dma():
        a("s_mov_b32 m0, s34")
        a("s_add_u32 s34, s34, 4096")
        a("buffer_load_dwordx4 v2, s[8:11], s35 offen lds")
        a("s_add_u32 s35, s35, 4096")
    for i in range(6):
        dma()
    a("v_min_u32 v6, 17, v3")
    a("v_mov_b32 v5, 16")
    a("v_cmp_eq_u32 vcc, 20, v3")
    a(f"s_mul_i32 s25, s30, {32*KVT}")
    a.nop(1)
    a("v_cndmask_b32 v6, v6, v5, vcc")
    a("v_lshlrev_b32 v6, 4, v6")
    a(f"v_mul_u32_u24 v5, {VH}, v4")
    a("v_add3_u32 v158, v6, v5, 64")
    a("v_add_u32 v158, 960, v158")
    a("v_add_u32 v156, s25, v2")
    a("v_add_u32 v157, s25, v158")
    a("s_waitcnt vmcnt(6)")
    a("v_mov_b32 v5, 0")
    a("v_mov_b32 v6, 0")
    for q in range(4):
        a(f"v_dot2_f32_bf16 v5, v{Q[0]+q}, v{Q[0]+q}, v5")
        a(f"v_dot2_f32_bf16 v6, v{Q[1]+q}, v{Q[1]+q}, v6")
    a.nop(3)
    half_sum(a, 5, 154)
    half_sum(a, 6, 154)
    a("v_max_f32 v5, v5, v6")
    a(f"v_max3_f32 v7, v{E}, v{E+1}, v{E+2}")
    a(f"v_max_f32 v7, v7, v{E+3}")
    for off in (0x041F, 0x081F, 0x101F, 0x201F, 0x401F):
        a(f"ds_swizzle_b32 v6, v5 offset:{off:#x}")
        a(f"ds_swizzle_b32 v154, v7 offset:{off:#x}")
        a("s_waitcnt lgkmcnt(0)")
        a("v_max_f32 v5, v5, v6")
        a("v_max_f32 v7, v7, v154")
    half_sum(a, 7, 154, op="v_max_f32")
    a("v_readfirstlane_b32 s63, v5")
    a("s_lshl_b32 s23, s3, 2")
    a(f"s_add_u32 s23, s23, {KMX}")
    a("v_mov_b32 v6, s23")
    a("ds_write_b32 v6, v7")
    for r in range(16):
        a(f"v_mov_b32 v{O[0]+r}, 0")
        a(f"v_mov_b32 v{O[1]+r}, 0")
        a(f"v_mov_b32 v{E+r}, 0")
    for r in range(8):
        a(f"v_mov_b32 v{P[1]+r}, 0")
        a(f"v_mov_b32 v{VB[1]+r}, 0")
    a("s_lshl_b32 s32, s5, 1")
    a("s_lshl_b32 s48, s32, 5")
    a("s_lshl_b32 s33, s3, 2")
    a("s_add_u32 s48, s48, s33")
    a("s_lshl_b32 s48, s48, 10")
    a(f"s_add_u32 s48, s48, {WOF:#x}")
    a("s_add_u32 s49, s48, 32768")
    a("s_min_u32 s32, s3, 6")
    a("s_mul_i32 s51, s5, 7")
    a("s_add_u32 s51, s51, s32")
    a("s_lshl_b32 s50, s51, 15")
    a(f"s_add_u32 s50, s50, {W1F:#x}")
    a(f"s_add_u32 s52, s42, {XF:#x}")
    pf = []
    for i in range(4):
        pf.append((ar(8 * i, 4), 48, i))
        pf.append((ar(8 * i + 4, 4), 49, i))
    if last:
        pf.append((ar(32, 4), 52, 0))
    else:
        a("v_lshlrev_b32 v159, 10, v3")
        a("v_lshl_add_u32 v159, v4, 3, v159")
        a("s_lshl_b32 s52, s45, 15")
        a("s_lshl_b32 s32, s46, 6")
        a("s_add_u32 s52, s52, s32")
        a("s_lshl_b32 s32, s47, 5")
        a("s_add_u32 s52, s52, s32")
        pf.append(None)
    for i in range(15):
        pf.append((ar(36 + 4 * i, 4), 50, i))
    a("s_waitcnt vmcnt(0) lgkmcnt(0)")
    a("s_barrier")
    a.stamp(2)
    a(f"ds_read_b128 {vr(KB[0],4)}, v156")
    a(f"ds_read_b128 {vr(KB[1],4)}, v156 offset:{KVT}")
    a(f"ds_read_b128 {vr(VB[0],4)}, v157")
    a(f"ds_read_b128 {vr(VB[0]+4,4)}, v157 offset:{VU}")
    a("s_cmp_lt_u32 s3, 4")
    a(f"s_cbranch_scc1 {T}_noprio")
    a("s_setprio 1")
    a(f"{T}_noprio:")
    a("s_waitcnt lgkmcnt(3)")
    a(f"v_mfma_f32_32x32x16_bf16 {vr(S[0],16)}, {vr(KB[0],4)}, {vr(Q[0],4)}, {'0' if CZERO else vr(C,16)}")
    a.nop(10)
    UN, PV1, PV2, DLY, NE = 4, 3, 6, 2, 16

    def body(extra, slots=(1, 4, 5)):
        for t in range(UN):
            for x in range(2):
                y = 1 - x
                ty = t if x == 0 else t + 1
                tv = t - 1 if x == 0 else t
                for i in range(8):
                    if i == 0:
                        if x == 1:
                            a("s_waitcnt lgkmcnt(0)")
                        a(f"v_mfma_f32_32x32x16_bf16 {vr(S[y],16)}, {vr(KB[ty%2],4)}, {vr(Q[y],4)}, {'0' if CZERO else vr(C,16)}")
                        if x == 1:
                            a(f"ds_read_b128 {vr(KB[t%2],4)}, v156 offset:{(t+2)*KVT}")
                            a(f"ds_read_b128 {vr(VB[(t+1)%2],4)}, v157 offset:{(t+1)*KVT}")
                            a(f"ds_read_b128 {vr(VB[(t+1)%2]+4,4)}, v157 offset:{(t+1)*KVT+VU}")
                    e = E + (2 * i) % NE
                    a(f"v_exp_f32 v{e}, v{S[x]+2*i}")
                    a(f"v_exp_f32 v{e+1}, v{S[x]+2*i+1}")
                    j = i - DLY
                    if j >= 0:
                        ej = E + (2 * j) % NE
                        a(f"v_cvt_pk_bf16_f32 v{P[x]+j}, v{ej}, v{ej+1}")
                    else:
                        ej = E + (2 * (j + 8)) % NE
                        a(f"v_cvt_pk_bf16_f32 v{P[y]+j+8}, v{ej}, v{ej+1}")
                    if i == PV1:
                        a(f"v_mfma_f32_32x32x16_bf16 {vr(O[y],16)}, {vr(VB[tv%2],4)}, {vr(P[y],4)}, {vr(O[y],16)}")
                    if i == PV2:
                        a(f"v_mfma_f32_32x32x16_bf16 {vr(O[y],16)}, {vr(VB[tv%2]+4,4)}, {vr(P[y]+4,4)}, {vr(O[y],16)}")
                    if i in slots and extra:
                        extra.pop(0)()
                if t == UN - 1 and x == 1:
                    a(f"v_add_u32 v156, {UN*KVT}, v156")
                    a(f"v_add_u32 v157, {UN*KVT}, v157")
                    a("s_add_u32 s29, s29, 1")
                    a("s_cmp_lg_u32 s29, 8")

    a("s_mov_b32 s29, 0")
    body([dma] * 11)
    body([])
    a("s_waitcnt vmcnt(0)")
    a("s_barrier")
    def rawres():
        a("buffer_load_dwordx2 a[32:33], v159, s[16:19], s52 offen")
        a("buffer_load_dwordx2 a[34:35], v159, s[16:19], s52 offen offset:16")
    pfl = [(lambda e=e: ld(a, e[0], e[1], e[2], 33)) if e else rawres for e in pf]
    body(pfl[0:8], (4,))
    body(pfl[8:16], (4,))
    tail = []
    if WARM:
        a("s_lshr_b32 s56, s4, 3")
        a("s_and_b32 s56, s56, 3")
        a("s_and_b32 s57, s56, 1")
        a("s_lshl_b32 s58, s5, 1")
        a("s_add_u32 s57, s57, s58")
        a("s_mul_i32 s57, s57, 112")
        a("s_mul_i32 s58, s3, 14")
        a("s_add_u32 s57, s57, s58")
        a("s_lshr_b32 s58, s56, 1")
        a("s_mul_i32 s58, s58, 7")
        a("s_add_u32 s57, s57, s58")
        a("s_lshl_b32 s57, s57, 10")
        a(f"s_add_u32 s57, s57, {W2F:#x}")
        a("s_lshl_b32 s58, s56, 12")
        a("s_add_u32 s58, s58, s50")
        a(f"s_add_u32 s58, s58, {15*1024}")
        a("s_and_b32 s59, s56, 1")
        a("s_lshl_b32 s59, s59, 15")
        a("s_lshr_b32 s60, s56, 1")
        a("s_lshl_b32 s60, s60, 11")
        a("s_add_u32 s59, s59, s60")
        a("s_add_u32 s59, s59, s48")
        a(f"s_add_u32 s59, s59, {(WQF - WOF) & 0xffffffff:#x}")
        for k, (n, sr) in enumerate(((56, 57), (40, 58), (16, 59))):
            if last and sr == 59:
                continue
            a(f"v_min_u32 v{152+k}, {n-1}, v1")
            a(f"v_lshlrev_b32 v{152+k}, 7, v{152+k}")
            tail.append(lambda k=k, sr=sr: a(f"buffer_load_dword v155, v{152+k}, s[8:11], s{sr} offen"))
    a("v_and_b32 v5, 7, v1")
    a("v_lshlrev_b32 v5, 2, v5")
    a("s_lshl_b32 s62, s4, 8")
    a(f"s_add_u32 s62, s62, {FLAGS:#x}")
    tail.append(lambda: a(f"buffer_load_dword v159, v5, s[8:11], s62 offen offset:{64+32*L} {SC}"))
    if TOUCH and (L == 0 or not REUSE):
        a(f"s_add_u32 s20, s22, {OF:#x}")
        a(f"s_add_u32 s21, s42, {X1F:#x}")
        a("s_lshl_b32 s23, s4, 1")
        a("s_mul_i32 s23, s23, 112")
        a("s_lshl_b32 s24, s51, 1")
        a("s_add_u32 s23, s23, s24")
        a("s_lshl_b32 s23, s23, 10")
        a(f"s_add_u32 s23, s23, {HF:#x}")
        a("s_add_u32 s24, s23, 1024")
        a(f"s_add_u32 s25, s23, {112*1024}")
        a("s_add_u32 s26, s25, 1024")
        a(f"s_add_u32 s27, s42, {XFL[1]:#x}")
        a(f"s_add_u32 s28, s42, {QFL[1]:#x}")
        a("v_mov_b32 v6, s20")
        for k, sr in enumerate((21, 23, 24, 25, 26, 27, 28)):
            a(f"v_mov_b32 v7, s{sr}")
            a(f"v_cmp_le_u32 vcc, {8*(k+1)}, v1")
            a.nop(2)
            a("v_cndmask_b32 v6, v6, v7, vcc")
        a("v_and_b32 v7, 7, v1")
        a("v_lshl_add_u32 v6, v7, 7, v6")
        tail.append(lambda: a("buffer_load_dword v7, v6, s[8:11], 0 offen"))
    if TOUCH2:
        if last:
            a("v_lshlrev_b32 v6, 10, v3")
            a("s_lshl_b32 s20, s45, 15")
            a("s_lshl_b32 s21, s46, 6")
            a("s_add_u32 s20, s20, s21")
            tail.append(lambda: a("buffer_load_dword v7, v6, s[16:19], s20 offen"))
        else:
            a(f"s_mul_i32 s31, s45, {KVT}")
            a(f"s_add_u32 s31, s31, {KVFL[1]:#x}")
            tail.append(lambda: a("buffer_load_dword v155, v154, s[8:11], s31 offen"))
    body(pfl[16:24] + tail, (1, 5))
    a(f"{T}_loop:")
    a(f"s_cmp_lg_u32 s29, {PRIO_IT}")
    a(f"s_cbranch_scc1 {T}_prio2")
    a("s_setprio 0")
    a(f"{T}_prio2:")
    body([])
    a(f"s_cbranch_scc1 {T}_loop")
    a("s_waitcnt vmcnt(0)")
    for j in range(8 - DLY, 8):
        ej = E + (2 * j) % NE
        a(f"v_cvt_pk_bf16_f32 v{P[1]+j}, v{ej}, v{ej+1}")
    a.nop(2)
    a(f"v_mfma_f32_32x32x16_bf16 {vr(O[1],16)}, {vr(VB[1],4)}, {vr(P[1],4)}, {vr(O[1],16)}")
    a(f"v_mfma_f32_32x32x16_bf16 {vr(O[1],16)}, {vr(VB[1]+4,4)}, {vr(P[1]+4,4)}, {vr(O[1],16)}")
    a("s_mul_i32 s25, s3, 2304")
    a(f"s_add_u32 s25, s25, {SCR}")
    a("v_add_u32 v5, s25, v2")
    a("v_lshlrev_b32 v6, 2, v1")
    a("v_add_u32 v6, s25, v6")
    a("s_xor_b32 s25, s3, 4")
    a("s_mul_i32 s25, s25, 2304")
    a(f"s_add_u32 s25, s25, {SCR}")
    a("v_add_u32 v7, s25, v2")
    a("s_waitcnt vmcnt(0)")
    a("s_mov_b32 s37, 0")
    a("v_and_b32 v153, 7, v1")
    a("v_lshlrev_b32 v153, 2, v153")
    a(f"{T}_xchk:")
    a("v_cmp_eq_u32 vcc, 0, v159")
    a("s_cmp_eq_u64 vcc, 0")
    a(f"s_cbranch_scc1 {T}_xok")
    a("s_add_u32 s37, s37, 1")
    a(f"s_cmp_gt_u32 s37, {SPIN_MAX}")
    a(f"s_cbranch_scc1 {T}_xok")
    a("s_sleep 1")
    a(f"buffer_load_dword v159, v153, s[8:11], s62 offen offset:{64+32*L} {SC}")
    a("s_waitcnt vmcnt(0)")
    a(f"s_branch {T}_xchk")
    a(f"{T}_xok:")
    a("v_cmp_ne_u32 vcc, s61, v159")
    a("s_cmp_eq_u64 vcc, 0")
    a(f"s_cselect_b32 s61, {FAST}, 0")
    a("v_lshlrev_b32 v154, 2, v1")
    a("v_add_u32 v154, s25, v154")
    a("s_waitcnt lgkmcnt(0)")
    a.nop(8)
    a(f"ds_write_b128 v5, {vr(O[1],4)}")
    a(f"ds_write_b128 v5, {vr(O[1]+4,4)} offset:1024")
    a(f"ds_write_b32 v6, v{O[1]+8} offset:2048")
    a("s_waitcnt lgkmcnt(0)")
    a("s_barrier")
    a(f"ds_read_b128 {vr(S[0],4)}, v7")
    a(f"ds_read_b128 {vr(S[0]+4,4)}, v7 offset:1024")
    a(f"ds_read_b32 v{S[0]+8}, v154 offset:2048")
    a(f"v_mov_b32 v5, {KMX}")
    a(f"ds_read_b128 {vr(S[1],4)}, v5")
    a(f"ds_read_b128 {vr(S[1]+4,4)}, v5 offset:16")
    a("s_waitcnt lgkmcnt(0)")
    for r in range(9):
        a(f"v_add_f32 v{O[0]+r}, v{O[0]+r}, v{S[0]+r}")
    a(f"v_max3_f32 v5, v{S[1]}, v{S[1]+1}, v{S[1]+2}")
    a(f"v_max3_f32 v5, v5, v{S[1]+3}, v{S[1]+4}")
    a(f"v_max3_f32 v5, v5, v{S[1]+5}, v{S[1]+6}")
    a(f"v_max_f32 v5, v5, v{S[1]+7}")
    a("v_mul_f32 v5, s63, v5")
    a(f"v_mov_b32 v6, {f2u(BMAX*BMAX):#x}")
    a("v_cmp_nle_f32 vcc, v5, v6")
    a("s_cmp_eq_u64 vcc, 0")
    a(f"s_cbranch_scc1 {T}_afin")
    a("v_mov_b32 v156, v2")
    a("v_mov_b32 v6, 0xff800000")
    a("s_mov_b32 s29, 64")
    a(f"{T}_fb:")
    a(f"ds_read_b128 {vr(KB[0],4)}, v156")
    a(f"v_add_u32 v156, {KVT}, v156")
    a("s_waitcnt lgkmcnt(0)")
    a(f"v_mfma_f32_32x32x16_bf16 {vr(S[0],16)}, {vr(KB[0],4)}, {vr(Q[0],4)}, 0")
    a.nop(16)
    for i in range(8):
        a(f"v_max3_f32 v6, v6, v{S[0]+2*i}, v{S[0]+2*i+1}")
    a("s_sub_u32 s29, s29, 1")
    a("s_cmp_lg_u32 s29, 0")
    a(f"s_cbranch_scc1 {T}_fb")
    half_sum(a, 6, 7, op="v_max_f32")
    a("v_sub_f32 v6, 0, v6")
    for r in range(16):
        a(f"v_mov_b32 v{C+r}, v6")
        a(f"v_mov_b32 v{O[0]+r}, 0")
    a("v_mov_b32 v156, v2")
    a("v_mov_b32 v157, v158")
    a("s_mov_b32 s29, 64")
    a(f"{T}_fb2:")
    a(f"ds_read_b128 {vr(KB[0],4)}, v156")
    a(f"ds_read_b128 {vr(VB[0],4)}, v157")
    a(f"ds_read_b128 {vr(VB[0]+4,4)}, v157 offset:{VU}")
    a(f"v_add_u32 v156, {KVT}, v156")
    a(f"v_add_u32 v157, {KVT}, v157")
    a("s_waitcnt lgkmcnt(0)")
    a(f"v_mfma_f32_32x32x16_bf16 {vr(S[0],16)}, {vr(KB[0],4)}, {vr(Q[0],4)}, {vr(C,16)}")
    a.nop(16)
    for i in range(16):
        a(f"v_exp_f32 v{S[0]+i}, v{S[0]+i}")
    a.nop(1)
    for i in range(8):
        a(f"v_cvt_pk_bf16_f32 v{P[0]+i}, v{S[0]+2*i}, v{S[0]+2*i+1}")
    a.nop(2)
    a(f"v_mfma_f32_32x32x16_bf16 {vr(O[0],16)}, {vr(VB[0],4)}, {vr(P[0],4)}, {vr(O[0],16)}")
    a(f"v_mfma_f32_32x32x16_bf16 {vr(O[0],16)}, {vr(VB[0]+4,4)}, {vr(P[0]+4,4)}, {vr(O[0],16)}")
    a.nop(16)
    a("s_sub_u32 s29, s29, 1")
    a("s_cmp_lg_u32 s29, 0")
    a(f"s_cbranch_scc1 {T}_fb2")
    a(f"{T}_afin:")
    a(f"v_rcp_f32 v6, v{O[0]+8}")
    a.nop(1)
    for r in range(8):
        a(f"v_mul_f32 v{O[0]+r}, v{O[0]+r}, v6")
    for q in range(4):
        a(f"v_cvt_pk_bf16_f32 v{S[0]+q}, v{O[0]+2*q}, v{O[0]+2*q+1}")
    a(f"s_add_u32 s23, s22, {OF:#x}")
    hstore(a, [f"buffer_store_dwordx4 {vr(S[0],4)}, v2, s[8:11], s23 offen"])
    a.stamp(3)
    publish(a, EP + 1, f"{T}_p1")
    a("s_lshl_b32 s20, s4, 6")
    a("s_lshl_b32 s21, s3, 2")
    a("s_add_u32 s20, s20, s21")
    a("s_lshl_b32 s53, s20, 10")
    a(f"s_add_u32 s20, s53, {OF:#x}")
    a("s_add_u32 s21, s20, 32768")
    wait_flag(a, EP + 1, f"{T}_w1")
    a.stamp(4)
    for i in range(4):
        ld(a, vr(8 + 8 * i, 4), 20, i, 33, SCL)
        ld(a, vr(12 + 8 * i, 4), 21, i, 33, SCL)
    ACC = 64
    for i in range(4):
        a(f"s_waitcnt vmcnt({2*(3-i)})")
        for c in range(2):
            for r in range(2):
                t = 2 * c + r
                cin = "0" if i == 0 else vr(ACC + 16 * t, 16)
                a(f"v_mfma_f32_32x32x16_bf16 {vr(ACC+16*t,16)}, {ar(8*i+4*c,4)}, {vr(8+8*i+4*r,4)}, {cin}")
    for i in range(8):
        ld(a, ar(4 * i, 4), 50, 15 + i, 33)
    reduce8(a, ACC, 128)
    for q in range(4):
        a(f"v_accvgpr_read_b32 v{136+q}, a{32+q}")
    for q in range(4):
        a(f"v_lshlrev_b32 v{140}, 16, v{136+q}")
        a(f"v_and_b32 v{141}, 0xffff0000, v{136+q}")
        a(f"v_add_f32 v{128+2*q}, v{128+2*q}, v140")
        a(f"v_add_f32 v{129+2*q}, v{129+2*q}, v141")
    for q in range(4):
        a(f"v_cvt_pk_bf16_f32 v{136+q}, v{128+2*q}, v{129+2*q}")
    a(f"s_add_u32 s23, s42, {X1F:#x}")
    hstore(a, ["buffer_store_dwordx4 v[136:139], v2, s[8:11], s23 offen"])
    for q in range(4):
        a(f"v_accvgpr_write_b32 a{32+q}, v{136+q}")
    a.stamp(5)
    publish(a, EP + 2, f"{T}_p2")
    a(f"s_add_u32 s20, s53, {X1F:#x}")
    a("s_add_u32 s21, s20, 32768")
    wait_flag(a, EP + 2, f"{T}_w2")
    a.stamp(6)
    for i in range(4):
        ld(a, vr(32 + 4 * i, 4), 20, i, 33, SCL)
    for i in range(4):
        ld(a, vr(48 + 4 * i, 4), 21, i, 33, SCL)
    for i in range(9):
        ld(a, vr(64 + 4 * i, 4), 50, 23 + i, 33)
    a("v_lshlrev_b32 v7, 4, v4")
    a("s_lshl_b32 s27, s51, 7")
    a(f"s_add_u32 s27, s27, {CS1:#x}")
    for q in range(4):
        a(f"buffer_load_dwordx4 {vr(100+4*q,4)}, v7, s[8:11], s27 offen offset:{32*q}")
    STAT = 65536
    a("s_lshl_b32 s21, s3, 12")
    a("v_add_u32 v5, s21, v2")
    a("s_mov_b32 s28, 0x3f803f80")
    for r in range(8):
        a(f"v_mov_b32 v{8+r}, 0")
    for rr in range(2):
        a(f"s_waitcnt vmcnt({13+4*(1-rr)})")
        for i in range(4):
            a(f"ds_write_b128 v5, {vr(32+16*rr+4*i,4)} offset:{32768*rr+1024*i}")
        for i in range(16):
            x = 32 + 16 * rr + i
            k = 4 * (i % 2)
            a(f"v_dot2_f32_bf16 v{8+k+2*rr}, v{x}, s28, v{8+k+2*rr}")
            a(f"v_dot2_f32_bf16 v{9+k+2*rr}, v{x}, v{x}, v{9+k+2*rr}")
    a("s_lshl_b32 s21, s3, 10")
    a(f"s_add_u32 s21, s21, {STAT}")
    a("v_add_u32 v5, s21, v2")
    a.nop(2)
    for r in range(4):
        a(f"v_add_f32 v{8+r}, v{8+r}, v{12+r}")
    a("ds_write_b128 v5, v[8:11]")
    a("s_waitcnt lgkmcnt(0)")
    a("s_barrier")
    a.stamp(7)
    a("s_lshl_b32 s32, s5, 1")
    a("s_mul_i32 s54, s32, 112")
    a("s_mul_i32 s33, s3, 14")
    a("s_add_u32 s54, s54, s33")
    a("s_lshl_b32 s54, s54, 10")
    a(f"s_add_u32 s54, s54, {W2F:#x}")
    a(f"s_add_u32 s55, s54, {112*1024}")
    a("s_cmp_eq_u32 s3, 7")
    a(f"s_cbranch_scc1 {T}_cskip")
    CACC = 116

    def w1reg(i):
        if i < 15:
            return ar(36 + 4 * i, 4)
        if i < 23:
            return ar(4 * (i - 15), 4)
        return vr(64 + 4 * (i - 23), 4)

    CR = 6

    def rd(i):
        b = 8 + 8 * (i % CR)
        a(f"ds_read_b128 {vr(b,4)}, v2 offset:{i*1024}")
        a(f"ds_read_b128 {vr(b+4,4)}, v2 offset:{32768+i*1024}")
    def w2reg(j):
        if j < 23:
            return w1reg(j)
        return vr(136 + 4 * (j - 23), 4)
    for i in range(CR - 1):
        rd(i)
    for i in range(32):
        if i + CR - 1 < 32:
            rd(i + CR - 1)
        pend = min(32, i + CR) - i - 1
        if i == 23:
            a(f"s_waitcnt vmcnt(22) lgkmcnt({2*pend})")
        else:
            a(f"s_waitcnt lgkmcnt({2*pend})")
        b = 8 + 8 * (i % CR)
        for r in range(2):
            cin = "0" if i == 0 else vr(CACC + 16 * r, 16)
            a(f"v_mfma_f32_32x32x16_bf16 {vr(CACC+16*r,16)}, {w1reg(i)}, {vr(b+4*r,4)}, {cin}")
        if 1 <= i <= 23:
            j = i - 1
            ld(a, w2reg(j), 54 + (j & 1), j >> 1, 33)
    a(f"s_branch {T}_cepi")
    a(f"{T}_cskip:")
    for j in range(23):
        ld(a, w2reg(j), 54 + (j & 1), j >> 1, 33)
    a(f"{T}_cepi:")
    a.stamp(8)
    a("s_cmp_eq_u32 s3, 7")
    a(f"s_cbranch_scc1 {T}_cdone")
    a(f"v_add_u32 v5, {STAT}, v2")
    for w in range(8):
        a(f"ds_read_b128 {vr(32+4*w,4)}, v5 offset:{1024*w}")
    a("s_waitcnt lgkmcnt(0)")
    for w in range(1, 8):
        for r in range(4):
            a(f"v_add_f32 v{32+r}, v{32+r}, v{32+4*w+r}")
    for r in range(4):
        half_sum(a, 32 + r, 36)
    for r in range(2):
        m, x2 = 32 + 2 * r, 33 + 2 * r
        a(f"v_mul_f32 v{m}, {f2u(1.0/512):#x}, v{m}")
        a(f"v_mul_f32 v{x2}, {f2u(1.0/512):#x}, v{x2}")
        a(f"v_fma_f32 v{x2}, -v{m}, v{m}, v{x2}")
        a(f"v_max_f32 v{x2}, 0, v{x2}")
        a(f"v_add_f32 v{x2}, {f2u(EPS):#x}, v{x2}")
        a(f"v_rsq_f32 v{8+2*r}, v{x2}")
        a.nop(1)
        a(f"v_mul_f32 v{9+2*r}, v{m}, v{8+2*r}")
        a(f"v_sub_f32 v{9+2*r}, 0, v{9+2*r}")
    for rr in range(2):
        for r in range(16):
            a(f"v_mul_f32 v{40+r}, v{9+2*rr}, v{100+r}")
            a(f"v_fma_f32 v{CACC+16*rr+r}, v{CACC+16*rr+r}, v{8+2*rr}, v{40+r}")
        for q in range(8):
            a(f"v_cvt_pk_bf16_f32 v{16+8*rr+q}, v{CACC+16*rr+2*q}, v{CACC+16*rr+2*q+1}")
        for q in range(8):
            a(f"v_pk_max_i16 v{16+8*rr+q}, v{16+8*rr+q}, 0")
    a("s_lshl_b32 s26, s4, 1")
    a("s_mul_i32 s26, s26, 112")
    a("s_lshl_b32 s27, s51, 1")
    a("s_add_u32 s26, s26, s27")
    a("s_lshl_b32 s26, s26, 10")
    a(f"s_add_u32 s26, s26, {HF:#x}")
    a(f"s_add_u32 s27, s26, {112*1024}")
    hstore(a, ["buffer_store_dwordx4 v[16:19], v2, s[8:11], s26 offen",
               "buffer_store_dwordx4 v[20:23], v2, s[8:11], s26 offen offset:1024",
               "buffer_store_dwordx4 v[24:27], v2, s[8:11], s27 offen",
               "buffer_store_dwordx4 v[28:31], v2, s[8:11], s27 offen offset:1024"])
    a(f"{T}_cdone:")
    a.stamp(9)
    publish(a, EP + 3, f"{T}_p3")
    a("s_lshl_b32 s20, s4, 1")
    a("s_mul_i32 s20, s20, 112")
    a("s_mul_i32 s21, s3, 14")
    a("s_add_u32 s20, s20, s21")
    a("s_lshl_b32 s20, s20, 10")
    a(f"s_add_u32 s20, s20, {HF:#x}")
    a(f"s_add_u32 s21, s20, {112*1024}")
    wait_flag(a, EP + 3, f"{T}_w3")
    a.stamp(10)
    RING = 8
    DACC = 72

    def hld(i):
        b = 8 + 8 * (i % RING)
        ld(a, vr(b, 4), 20, i, 33, SCL)
        ld(a, vr(b + 4, 4), 21, i, 33, SCL)
    for i in range(RING):
        hld(i)
    def qreg(j):
        return w1reg(j)
    qpf = []
    if not last:
        a(f"s_add_u32 s48, s48, {(WQF - WOF) & 0xffffffff:#x}")
        a("s_add_u32 s49, s48, 32768")
        a("s_lshl_b32 s56, s3, 12")
        a(f"s_add_u32 s56, s56, {WKVF:#x}")
        a("v_lshlrev_b32 v156, 4, v4")
        a("v_lshlrev_b32 v157, 2, v3")
        a("s_lshl_b32 s57, s46, 7")
        a("s_lshl_b32 s33, s47, 6")
        a("s_add_u32 s57, s57, s33")
        a(f"s_add_u32 s57, s57, {CSQ:#x}")
        a(f"s_mov_b32 s58, {CSKV:#x}")
        for i in range(4):
            qpf.append(lambda i=i: ld(a, qreg(2 * i), 48, i, 33))
            qpf.append(lambda i=i: ld(a, qreg(2 * i + 1), 49, i, 33))
        for i in range(4):
            qpf.append(lambda i=i: ld(a, qreg(8 + i), 56, i, 33))
        for q in range(2):
            qpf.append(lambda q=q: a(f"buffer_load_dwordx4 {qreg(12+q)}, v156, s[8:11], s57 offen offset:{32*q}"))
        for q in range(2):
            qpf.append(lambda q=q: a(f"buffer_load_dwordx4 {qreg(14+q)}, v156, s[8:11], s58 offen offset:{32*q}"))
        qpf.append(lambda: a("buffer_load_dword a4, v157, s[8:11], s58 offen"))
    for j in range(23, 28):
        ld(a, w2reg(j), 54 + (j & 1), j >> 1, 33)

    def dloop(split, qpf):
        order = [('h', i) for i in range(RING)] + [('w', j) for j in range(23, 28)]
        for i in range(14):
            pos = order.index(('h', i))
            after = sum(2 if k == 'h' else 1 for (k, _) in order[pos + 1:])
            a(f"s_waitcnt vmcnt({after})")
            b = 8 + 8 * (i % RING)
            for c in range(2):
                for r in range(2):
                    t = 2 * c + r
                    cin = "0" if i == 0 else vr(DACC + 16 * t, 16)
                    a(f"v_mfma_f32_32x32x16_bf16 {vr(DACC+16*t,16)}, {w2reg(2*i+c)}, {vr(b+4*r,4)}, {cin}")
            if not split and i + RING < 14:
                hld(i + RING)
                order.append(('h', i + RING))
            elif split and i == RING - 1:
                poll3(0x70, f"{T}_w3b")
                for j in range(RING, 14):
                    hld(j)
                    order.append(('h', j))
            if i + RING >= 14 and (not split or i >= RING - 1):
                for _ in range(3):
                    k = sum(1 for (kk, _) in order if kk == 'q')
                    if qpf and k < 2 * i:
                        qpf.pop(0)()
                        order.append(('q', k))
        assert not qpf
    dloop(False, list(qpf))
    qpf = []
    a.stamp(11)
    assert not qpf
    reduce8(a, DACC, 8)
    for q in range(4):
        a(f"v_accvgpr_read_b32 v{16+q}, a{32+q}")
    for q in range(4):
        a(f"v_lshlrev_b32 v20, 16, v{16+q}")
        a(f"v_and_b32 v21, 0xffff0000, v{16+q}")
        a(f"v_add_f32 v{8+2*q}, v{8+2*q}, v20")
        a(f"v_add_f32 v{9+2*q}, v{9+2*q}, v21")
    for q in range(4):
        a(f"v_cvt_pk_bf16_f32 v{16+q}, v{8+2*q}, v{9+2*q}")
    if last:
        a.nop(2)
        a("v_permlane32_swap_b32 v16, v18")
        a("v_permlane32_swap_b32 v17, v19")
        a("v_lshlrev_b32 v5, 10, v3")
        a("v_lshl_add_u32 v5, v4, 4, v5")
        a("s_lshl_b32 s31, s45, 15")
        a("s_lshl_b32 s32, s46, 6")
        a("s_add_u32 s31, s31, s32")
        a("s_lshl_b32 s32, s47, 5")
        a("s_add_u32 s31, s31, s32")
        a("buffer_store_dwordx4 v[16:19], v5, s[16:19], s31 offen")
        a.stamp(12)
    else:
        XN, QN, KVN, KNN = XFL[1], QFL[1], KVFL[1], KNL[1]
        a(f"s_add_u32 s23, s42, {XN:#x}")
        hstore(a, ["buffer_store_dwordx4 v[16:19], v2, s[8:11], s23 offen"])
        a.stamp(12)
        publish(a, EP + 4, f"{T}_p4")
        a(f"s_add_u32 s20, s53, {XN:#x}")
        a("s_add_u32 s21, s20, 32768")
        a("s_mov_b32 s28, 0x3f803f80")
        wait_flag(a, EP + 4, f"{T}_w4")
        a.stamp(13)
        for i in range(4):
            ld(a, vr(8 + 8 * i, 4), 20, i, 33, SCL)
            ld(a, vr(12 + 8 * i, 4), 21, i, 33, SCL)
        for r in range(8):
            a(f"v_mov_b32 v{40+r}, 0")
        ACC = 64
        for i in range(4):
            a(f"s_waitcnt vmcnt({2*(3-i)})")
            for c in range(2):
                for r in range(2):
                    t = 2 * c + r
                    cin = "0" if i == 0 else vr(ACC + 16 * t, 16)
                    a(f"v_mfma_f32_32x32x16_bf16 {vr(ACC+16*t,16)}, {qreg(2*i+c)}, {vr(8+8*i+4*r,4)}, {cin}")
                    for q in range(4):
                        x = 8 + 8 * i + 4 * r + q
                        k = 40 + 4 * (q % 2) + 2 * r + c
                        if c == 0:
                            a(f"v_dot2_f32_bf16 v{k}, v{x}, s28, v{k}")
                        else:
                            a(f"v_dot2_f32_bf16 v{k}, v{x}, v{x}, v{k}")
        a("s_lshl_b32 s32, s3, 11")
        a(f"s_add_u32 s32, s32, {KVS}")
        a("v_add_u32 v7, s32, v2")
        a("s_cmp_ge_u32 s5, 6")
        a(f"s_cbranch_scc1 {T}_kvdone")
        for task in range(6):
            if task < 5:
                a(f"s_cmp_lg_u32 s5, {task}")
                a(f"s_cbranch_scc1 {T}_kvt{task+1}")
            kind = 'K' if task < 2 else 'V'
            r = task if task < 2 else (task - 2) >> 1
            u = 0 if task < 2 else (task & 1)
            for i in range(4):
                cin = "0" if i == 0 else vr(128, 16)
                if kind == 'K':
                    a(f"v_mfma_f32_32x32x16_bf16 {vr(128,16)}, {qreg(8+i)}, {vr(8+8*i+4*r,4)}, {cin}")
                else:
                    a(f"v_mfma_f32_32x32x16_bf16 {vr(128,16)}, {vr(8+8*i+4*r,4)}, {qreg(8+i)}, {cin}")
            a.nop(16)
            a(f"ds_write_b128 v7, {vr(128+8*u,4)}")
            a(f"ds_write_b128 v7, {vr(132+8*u,4)} offset:1024")
            if task < 5:
                a(f"s_branch {T}_kvdone")
                a(f"{T}_kvt{task+1}:")
        a(f"{T}_kvdone:")
        a("s_lshl_b32 s32, s3, 10")
        a(f"s_add_u32 s32, s32, {STATQ}")
        a("v_add_u32 v7, s32, v2")
        for r in range(4):
            a(f"v_add_f32 v{40+r}, v{40+r}, v{44+r}")
        a("ds_write_b128 v7, v[40:43]")
        reduce8(a, ACC, 8)
        a.stamp(14)
        qkv_tail(a, T, end, QN, KVN, KNN,
                 lambda: [a(f"v_accvgpr_read_b32 v{16+r}, a{84+r}") for r in range(8)],
                 lambda: [a(f"v_accvgpr_read_b32 v{16+r}, a{92+r if r < 4 else r-4}") for r in range(8)],
                 lambda: a("v_accvgpr_read_b32 v47, a4"))
    a(f"{end}:")
    a.stamp_flush(16)
    a(f"{end}x:")
    a("s_endpgm")
    a.desc(name, 160, agpr=96)
    return SCR + 8 * 2304 + 64


def tr_addr(a, dst, RS, t1, t2):
    a(f"v_lshrrev_b32 v{t1}, 5, v1")
    a(f"v_lshlrev_b32 v{t1}, 2, v{t1}")
    a(f"v_bfe_u32 v{t2}, v1, 2, 2")
    a(f"v_add_u32 v{t1}, v{t1}, v{t2}")
    a(f"v_mul_u32_u24 v{dst}, {RS}, v{t1}")
    a(f"v_bfe_u32 v{t1}, v1, 4, 1")
    a(f"v_lshlrev_b32 v{t1}, 5, v{t1}")
    a(f"v_and_b32 v{t2}, 3, v1")
    a(f"v_lshlrev_b32 v{t2}, 3, v{t2}")
    a(f"v_add3_u32 v{dst}, v{dst}, v{t1}, v{t2}")


def gen_K0(a):
    name = "k0_kernel"
    T = "K0"
    a.begin(name)
    end = f"{name}_end"
    a("s_cmp_ge_u32 s2, 256")
    a(f"s_cbranch_scc1 {end}x")
    a.stamp(0)
    a("s_load_dwordx16 s[16:31], s[0:1], 0")
    a("s_load_dwordx2 s[6:7], s[0:1], 80")
    a("v_and_b32 v1, 63, v0")
    a("v_lshrrev_b32 v2, 6, v0")
    a("v_and_b32 v3, 31, v1")
    a("v_readfirstlane_b32 s60, v2")
    a("v_lshrrev_b32 v4, 5, v1")
    a("v_lshlrev_b32 v2, 4, v1")
    a("s_and_b32 s4, s2, 31")
    a("s_lshr_b32 s5, s2, 5")
    a("s_and_b32 s3, s60, 7")
    a("s_waitcnt lgkmcnt(0)")
    a.srd(8, 6, G.WS_USED)
    a.srd(52, 20, 512 * 16 * 2)
    a.srd(56, 22, 512 * 16 * 2)
    a("s_mov_b32 s61, 0x3f803f80")
    a("s_cmp_ge_u32 s60, 8")
    a("s_cbranch_scc1 K0_prep")
    if os.environ.get('K0X', '') == 'qprio':
        a("s_setprio 3")
    a.stamp(1)
    a.srd(12, 16, 2048 * 512 * 2)
    a.srd(48, 18, 512 * 512 * 2)
    piece_sgprs(a)
    a("v_lshrrev_b32 v6, 3, v1")
    a("v_lshlrev_b32 v6, 10, v6")
    a("v_and_b32 v7, 7, v1")
    a("v_lshl_add_u32 v6, v7, 4, v6")
    a("s_lshl_b32 s20, s4, 16")
    a("s_lshl_b32 s22, s3, 7")
    a("s_add_u32 s20, s20, s22")
    for k in range(8):
        a(f"s_add_u32 s21, s20, {8192*k}")
        a(f"buffer_load_dwordx4 {vr(64+4*k,4)}, v6, s[12:15], s21 offen")
    a("v_lshrrev_b32 v7, 2, v1")
    a("v_lshlrev_b32 v7, 5, v7")
    a("v_and_b32 v5, 1, v1")
    a("v_lshl_add_u32 v7, v5, 4, v7")
    a("v_and_b32 v5, 2, v1")
    a("v_cmp_eq_u32 vcc, 0, v5")
    a("s_lshl_b32 s20, s3, 11")
    a("s_and_saveexec_b64 s[38:39], vcc")
    for i in range(4):
        a(f"buffer_load_dwordx4 {vr(96+4*i,4)}, v7, s[52:55], s20 offen offset:{512*i}")
    a("s_andn2_b64 exec, s[38:39], exec")
    for i in range(4):
        a(f"buffer_load_dwordx4 {vr(96+4*i,4)}, v7, s[56:59], s20 offen offset:{512*i}")
    a("s_mov_b64 exec, s[38:39]")
    a("s_lshl_b32 s22, s3, 16")
    a("s_lshl_b32 s23, s5, 7")
    a("s_add_u32 s22, s22, s23")
    a("s_lshl_b32 s23, s3, 13")
    for i in range(8):
        a(f"s_add_u32 m0, s23, {1024*i}")
        a(f"s_add_u32 s24, s22, {8192*i}")
        a("buffer_load_dwordx4 v6, s[48:51], s24 offen lds")
    a.stamp(2)
    if TOUCH2:
        a(f"s_add_u32 s24, s42, {QFL[0]:#x}")
        a(f"s_mul_i32 s25, s45, {KVT}")
        a(f"s_add_u32 s25, s25, {KVFL[0] - 1024:#x}")
        a("v_mov_b32 v5, s24")
        a("v_mov_b32 v6, s25")
        a("v_cmp_le_u32 vcc, 8, v1")
        a("v_min_u32 v7, 25, v1")
        a("v_lshlrev_b32 v7, 7, v7")
        a("v_cndmask_b32 v5, v5, v6, vcc")
        a("v_add_u32 v5, v5, v7")
        a("buffer_load_dword v0, v5, s[8:11], 0 offen")
    tr_addr(a, 56, 128, 5, 6)
    a("v_add_u32 v56, s23, v56")
    tr_addr(a, 57, 64, 5, 6)
    a("s_lshl_b32 s21, s3, 12")
    a("s_add_u32 s21, s21, 65536")
    a("v_add_u32 v57, s21, v57")
    a("v_lshrrev_b32 v5, 3, v1")
    a("v_and_b32 v6, 7, v1")
    a("v_xor_b32 v6, v6, v5")
    a("v_lshlrev_b32 v6, 4, v6")
    a("v_lshl_add_u32 v112, v5, 7, v6")
    a("v_add_u32 v112, s21, v112")
    a("v_and_b32 v5, 7, v3")
    a("v_lshlrev_b32 v5, 4, v5")
    a("v_lshl_add_u32 v5, v3, 7, v5")
    a("v_lshl_add_u32 v5, v4, 3, v5")
    a("v_add_u32 v113, s21, v5")
    a("v_add_u32 v114, s21, v2")
    for c in range(8):
        a(f"v_xor_b32 v{116+c}, {c<<4}, v113")
    for r in range(6):
        a(f"v_mov_b32 v{58+r}, 0")
    a("v_mov_b32 v7, 0")
    for r in range(2):
        a(f"s_waitcnt vmcnt({16+4*(1-r)+TOUCH2})")
        if r == 0:
            a.stamp(3)
        for j in range(4):
            a(f"ds_write_b128 v112, {vr(64+16*r+4*j,4)} offset:{1024*j}")
        for i in range(4):
            b = 8 + 8 * i + 4 * r
            a(f"ds_read_b64 {vr(b,2)}, v{116+2*i}")
            a(f"ds_read_b64 {vr(b+2,2)}, v{117+2*i}")
    a(f"s_waitcnt vmcnt({8+TOUCH2})")
    for i in range(4):
        a(f"ds_write_b128 v114, {vr(96+4*i,4)} offset:{1024*i}")
    for i in range(4):
        a(f"ds_read_b64_tr_b16 {vr(40+4*i,2)}, v57 offset:{16*i*64}")
        a(f"ds_read_b64_tr_b16 {vr(42+4*i,2)}, v57 offset:{(16*i+8)*64}")
    a("s_waitcnt lgkmcnt(0)")
    for r in range(16):
        a(f"v_dot2_f32_bf16 v7, v{40+r}, s61, v7")
    a("s_lshl_b32 s32, s3, 11")
    a(f"s_add_u32 s32, s32, {KVS}")
    a("v_add_u32 v6, s32, v2")
    a("s_cmp_ge_u32 s5, 6")
    a(f"s_cbranch_scc1 {T}_kvdone")
    for task in range(6):
        if task < 5:
            a(f"s_cmp_lg_u32 s5, {task}")
            a(f"s_cbranch_scc1 {T}_kvt{task+1}")
        kind = 'K' if task < 2 else 'V'
        r = task if task < 2 else (task - 2) >> 1
        u = 0 if task < 2 else (task & 1)
        for i in range(4):
            cin = "0" if i == 0 else vr(64, 16)
            if kind == 'K':
                a(f"v_mfma_f32_32x32x16_bf16 {vr(64,16)}, {vr(40+4*i,4)}, {vr(8+8*i+4*r,4)}, {cin}")
            else:
                a(f"v_mfma_f32_32x32x16_bf16 {vr(64,16)}, {vr(8+8*i+4*r,4)}, {vr(40+4*i,4)}, {cin}")
        a.nop(16)
        a(f"ds_write_b128 v6, {vr(64+8*u,4)}")
        a(f"ds_write_b128 v6, {vr(68+8*u,4)} offset:1024")
        if task < 5:
            a(f"s_branch {T}_kvdone")
            a(f"{T}_kvt{task+1}:")
    a(f"{T}_kvdone:")
    half_sum(a, 7, 5)
    a("s_mul_i32 s32, s3, 384")
    a(f"s_add_u32 s32, s32, {CSP}")
    a("v_lshlrev_b32 v6, 2, v3")
    a("v_add_u32 v6, s32, v6")
    a("ds_write_b32 v6, v7 offset:256")
    a(f"s_waitcnt vmcnt({TOUCH2})")
    a.stamp(4)

    def wrd(i):
        b = 40 + 8 * (i % 2)
        for c in range(2):
            a(f"ds_read_b64_tr_b16 {vr(b+4*c,2)}, v56 offset:{16*i*128+64*c}")
            a(f"ds_read_b64_tr_b16 {vr(b+4*c+2,2)}, v56 offset:{(16*i+8)*128+64*c}")
    wrd(0)
    ACC = 64
    for i in range(4):
        if i < 3:
            wrd(i + 1)
        a(f"s_waitcnt lgkmcnt({4 if i < 3 else 0})")
        b = 40 + 8 * (i % 2)
        for c in range(2):
            for r in range(2):
                t = 2 * c + r
                cin = "0" if i == 0 else vr(ACC + 16 * t, 16)
                a(f"v_mfma_f32_32x32x16_bf16 {vr(ACC+16*t,16)}, {vr(b+4*c,4)}, {vr(8+8*i+4*r,4)}, {cin}")
                for q in range(4):
                    x = 8 + 8 * i + 4 * r + q
                    k = 58 + 2 * r + c
                    if c == 0:
                        a(f"v_dot2_f32_bf16 v{k}, v{x}, s61, v{k}")
                    else:
                        a(f"v_dot2_f32_bf16 v{k}, v{x}, v{x}, v{k}")
                if r == 0:
                    for q in range(4):
                        a(f"v_dot2_f32_bf16 v{62+c}, v{b+4*c+q}, s61, v{62+c}")
    a("s_lshl_b32 s32, s3, 10")
    a(f"s_add_u32 s32, s32, {STATQ}")
    a("v_add_u32 v7, s32, v2")
    a.nop(2)
    a("ds_write_b128 v7, v[58:61]")
    half_sum(a, 62, 5)
    half_sum(a, 63, 5)
    a("ds_write_b32 v6, v62")
    a("ds_write_b32 v6, v63 offset:128")
    a.stamp(5)
    reduce8(a, ACC, 8, pre_barrier=True)
    a.stamp(6)

    def cs8(tile_off_expr):
        for s in range(8):
            for q in range(2):
                a(f"ds_read_b128 {vr(64+8*s+4*q,4)}, v46 offset:{s*384+32*q}")
        a("s_waitcnt lgkmcnt(0)")
        for r in range(8):
            a(f"v_add_f32 v{16+r}, v{64+r}, v{72+r}")
        for s in range(2, 8):
            for r in range(8):
                a(f"v_add_f32 v{16+r}, v{16+r}, v{64+8*s+r}")

    def get_csq():
        a("s_lshl_b32 s32, s44, 7")
        a("s_lshl_b32 s33, s47, 6")
        a("s_add_u32 s32, s32, s33")
        a(f"s_add_u32 s32, s32, {CSP}")
        a("v_lshlrev_b32 v46, 4, v4")
        a("v_add_u32 v46, s32, v46")
        cs8(None)

    def get_csk():
        a("v_lshlrev_b32 v46, 4, v4")
        a(f"v_add_u32 v46, {CSP+256}, v46")
        for s in range(6):
            for q in range(2):
                a(f"ds_read_b128 {vr(72+8*s+4*q,4)}, v46 offset:{s*384+32*q}")
        for s in range(6, 8):
            for q in range(2):
                a(f"ds_read_b128 {vr(24+8*(s-6)+4*q,4)}, v46 offset:{s*384+32*q}")
        a("s_waitcnt lgkmcnt(0)")
        for r in range(8):
            a(f"v_add_f32 v{16+r}, v{24+r}, v{32+r}")
        for s in range(6):
            for r in range(8):
                a(f"v_add_f32 v{16+r}, v{16+r}, v{72+8*s+r}")

    def get_csv():
        a("v_lshlrev_b32 v46, 2, v3")
        a(f"v_add_u32 v46, {CSP+256}, v46")
        for s in range(8):
            a(f"ds_read_b32 v{72+s}, v46 offset:{s*384}")
        a("s_waitcnt lgkmcnt(0)")
        a("v_add_f32 v47, v72, v73")
        for s in range(2, 8):
            a(f"v_add_f32 v47, v47, v{72+s}")
    qkv_tail(a, T, end, QFL[0], KVFL[0], KNL[0], get_csq, get_csk, get_csv)
    a(f"s_branch {end}")
    a("K0_prep:")
    if os.environ.get('K0X', '') == 'noprep':
        a(f"s_branch {end}x")
    if os.environ.get('K0X', '') == 'prio':
        a("s_setprio 3")
    a("s_cmp_lt_u32 s2, 154")
    a("s_cbranch_scc1 K0_ptask")
    if CODEPF:
        code_srd(a, 40, "K0")
        a("s_sub_u32 s32, s2, 154")
        a("s_lshr_b32 s32, s32, 3")
        a("s_lshl_b32 s32, s32, 3")
        a("s_add_u32 s32, s32, s3")
        a("s_lshl_b32 s32, s32, 10")
        a("buffer_load_dwordx4 v[16:19], v2, s[40:43], s32 offen")
        a("s_waitcnt vmcnt(0)")
    a(f"s_branch {end}x")
    a("K0_ptask:")
    a("s_cmp_lg_u32 s2, 153")
    a("s_cbranch_scc1 K0_pw")
    a("s_lshl_b32 s32, s3, 11")
    a(f"s_add_u32 s32, s32, {FLAGS:#x}")
    for r in range(4):
        a(f"v_mov_b32 v{16+r}, 0")
    a("buffer_store_dwordx4 v[16:19], v2, s[8:11], s32 offen")
    a("buffer_store_dwordx4 v[16:19], v2, s[8:11], s32 offen offset:1024")
    a(f"s_branch {end}x")
    a("K0_pw:")
    a("s_lshl_b32 s62, s3, 12")
    a("s_add_u32 s62, s62, 98304")
    a("s_mov_b32 s46, 0")
    a("s_mov_b32 s36, 32")
    a("s_cmp_eq_u32 s2, 152")
    a("s_cbranch_scc1 K0_pkv")
    a("s_cmp_ge_u32 s2, 88")
    a("s_cbranch_scc1 K0_pw2")
    a("s_cmp_ge_u32 s2, 32")
    a("s_cbranch_scc1 K0_pw1")
    a("s_cmp_ge_u32 s2, 16")
    a("s_cbranch_scc1 K0_pwo")
    a.srd(40, 18, 512 * 512 * 2)
    a("s_mov_b32 s44, 1024")
    a("s_mov_b32 s45, s2")
    a("s_lshl_b32 s47, s45, 15")
    a(f"s_add_u32 s47, s47, {WQF:#x}")
    a("s_lshl_b32 s49, s45, 7")
    a(f"s_add_u32 s49, s49, {CSQ:#x}")
    a("s_branch K0_pgo")
    a("K0_pwo:")
    a.srd(40, 24, 512 * 512 * 2)
    a("s_mov_b32 s44, 1024")
    a("s_sub_u32 s45, s2, 16")
    a("s_lshl_b32 s47, s45, 15")
    a(f"s_add_u32 s47, s47, {WOF:#x}")
    a("s_mov_b32 s49, 0")
    a("s_branch K0_pgo")
    a("K0_pw1:")
    a.srd(40, 28, 512 * 1792 * 2)
    a("s_mov_b32 s44, 3584")
    a("s_sub_u32 s45, s2, 32")
    a("s_lshl_b32 s47, s45, 15")
    a(f"s_add_u32 s47, s47, {W1F:#x}")
    a("s_lshl_b32 s49, s45, 7")
    a(f"s_add_u32 s49, s49, {CS1:#x}")
    a("s_branch K0_pgo")
    a("K0_pw2:")
    a.srd(40, 30, 512 * 1792 * 2)
    a("s_mov_b32 s44, 1024")
    a("s_sub_u32 s45, s2, 88")
    a("s_and_b32 s46, s45, 3")
    a("s_mul_i32 s46, s46, 28")
    a("s_lshr_b32 s45, s45, 2")
    a("s_mul_i32 s47, s45, 112")
    a("s_add_u32 s47, s47, s46")
    a("s_lshl_b32 s47, s47, 10")
    a(f"s_add_u32 s47, s47, {W2F:#x}")
    a("s_mov_b32 s36, 28")
    a("s_mov_b32 s49, 0")
    a("K0_pgo:")
    a("s_lshl_b32 s50, s3, 2")
    a("s_cmp_ge_u32 s50, s36")
    a(f"s_cbranch_scc1 {end}x")
    a("v_lshrrev_b32 v5, 2, v1")
    a("v_mul_lo_u32 v5, v5, s44")
    a("v_and_b32 v6, 3, v1")
    a("v_lshl_add_u32 v5, v6, 4, v5")
    a("s_add_u32 s51, s46, s50")
    a("s_lshl_b32 s51, s51, 4")
    a("s_mul_i32 s51, s51, s44")
    a("s_lshl_b32 s32, s45, 6")
    a("s_add_u32 s51, s51, s32")
    a("s_lshl_b32 s33, s44, 4")
    for i in range(4):
        a(f"s_add_u32 m0, s62, {1024*i}")
        a("s_nop 0")
        a("buffer_load_dwordx4 v5, s[40:43], s51 offen lds")
        a("s_add_u32 s51, s51, s33")
    a("s_branch K0_ptr")
    a("K0_pkv:")
    a("s_lshl_b32 s50, s3, 2")
    a("v_lshrrev_b32 v7, 2, v1")
    a("v_lshlrev_b32 v7, 5, v7")
    a("v_and_b32 v5, 1, v1")
    a("v_lshl_add_u32 v7, v5, 4, v7")
    a("v_and_b32 v5, 2, v1")
    a("v_cmp_eq_u32 vcc, 0, v5")
    a("s_lshl_b32 s20, s3, 11")
    a("s_and_saveexec_b64 s[38:39], vcc")
    for i in range(4):
        a(f"s_add_u32 m0, s62, {1024*i}")
        a(f"s_add_u32 s22, s20, {512*i}")
        a("buffer_load_dwordx4 v7, s[52:55], s22 offen lds")
    a("s_andn2_b64 exec, s[38:39], exec")
    for i in range(4):
        a(f"s_add_u32 m0, s62, {1024*i}")
        a(f"s_add_u32 s22, s20, {512*i}")
        a("buffer_load_dwordx4 v7, s[56:59], s22 offen lds")
    a("s_mov_b64 exec, s[38:39]")
    a(f"s_mov_b32 s47, {WKVF:#x}")
    a(f"s_mov_b32 s49, {CSKV:#x}")
    a("K0_ptr:")
    a("s_lshl_b32 s32, s50, 10")
    a("s_add_u32 s47, s47, s32")
    if TOUCH2:
        a("v_lshlrev_b32 v9, 7, v3")
        a("buffer_load_dword v10, v9, s[8:11], s47 offen")
    tr_addr(a, 8, 64, 5, 6)
    a("v_add_u32 v8, s62, v8")
    a("v_mov_b32 v7, 0")
    a(f"s_waitcnt vmcnt({TOUCH2})")
    for i in range(4):
        a(f"ds_read_b64_tr_b16 {vr(16+4*i,2)}, v8 offset:{16*i*64}")
        a(f"ds_read_b64_tr_b16 {vr(18+4*i,2)}, v8 offset:{(16*i+8)*64}")
    for i in range(4):
        a(f"s_waitcnt lgkmcnt({2*(3-i)})")
        a(f"buffer_store_dwordx4 {vr(16+4*i,4)}, v2, s[8:11], s47 offen offset:{1024*i}")
        for q in range(4):
            a(f"v_dot2_f32_bf16 v7, v{16+4*i+q}, s61, v7")
    a("s_cmp_eq_u32 s49, 0")
    a(f"s_cbranch_scc1 {end}x")
    a.nop(2)
    half_sum(a, 7, 5)
    a("s_lshl_b32 s32, s3, 7")
    a(f"s_add_u32 s32, s32, {CSP2}")
    a("v_lshlrev_b32 v6, 2, v3")
    a("v_add_u32 v5, s32, v6")
    a("ds_write_b32 v5, v7")
    a("s_waitcnt lgkmcnt(0)")
    a("s_barrier")
    a("s_cmp_lg_u32 s3, 0")
    a(f"s_cbranch_scc1 {end}x")
    a(f"v_add_u32 v5, {CSP2}, v6")
    for s in range(8):
        a(f"ds_read_b32 v{16+s}, v5 offset:{128*s}")
    a("s_waitcnt lgkmcnt(0)")
    for s in range(1, 8):
        a(f"v_add_f32 v16, v16, v{16+s}")
    a("v_cmp_gt_u32 vcc, 32, v1")
    a("s_and_saveexec_b64 s[38:39], vcc")
    a("buffer_store_dword v16, v6, s[8:11], s49 offen")
    a(f"s_branch {end}x")
    a(f"{end}:")
    a.stamp_flush(8)
    a(f"{end}x:")
    a("s_endpgm")
    a.desc(name, 128)
    return CSP2 + 1024


def gen_zero_flags(a):
    pass


def main():
    a = Asm()
    G.XF, G.QF, G.KVF = XFL[0], QFL[0], KVFL[0]
    G.FLAGS_ZERO = FLAGS
    lds_k0 = gen_K0(a)
    lds_f = gen_F(a, 0)
    gen_F(a, 1)
    hdr = ["; generated by gen/gen2.py -- fused MQA + FFN pipeline"]
    L = hdr.append
    L(f"; @launch kernel=k0_kernel grid=(256,1,1) block=(1024,1,1) lds={lds_k0}")
    L(f"; @launch kernel=f1_kernel grid=(256,1,1) block=(512,1,1) lds={lds_f}")
    L(f"; @launch kernel=f2_kernel grid=(256,1,1) block=(512,1,1) lds={lds_f}")
    out = "\n".join(hdr) + "\n"
    out += '.amdgcn_target "amdgcn-amd-amdhsa--gfx950"\n.text\n'
    out += "\n".join(a.L) + "\ncode_end:\n"
    out += '.section .rodata,"a"\n' + "\n".join(a.kernels) + "\n"
    path = sys.argv[1] if len(sys.argv) > 1 else f"cdna_kernels/{NAME}.s"
    open(path, 'w').write(out)
    if PROFILE:
        import json
        json.dump(G.PROF_SLOT, open('prof_slots.json', 'w'))
    print("wrote", path, len(out), "bytes")


if __name__ == "__main__":
    main()
```

```python
import sys

NAME = "interleave_layers__grouped_kv_mqa__dense_activation_relu__prompt"

WQF = 0x000000
WOF = 0x080000
W1F = 0x100000
W2F = 0x2C0000
WKVF = 0x480000
CSQ = 0x488000
CS1 = 0x488800
CSKV = 0x48A400
KN = 0x48B000
XF = 0x500000
QF = 0x700000
OF = 0x900000
X1F = 0xB00000
HF = 0x1000000
KVF = 0x1800000
WS_USED = 0x2400000
VH = 288
VU = 2 * VH
KVT = 1024 + 2 * VU
KVF_BYTES = 64 * KVT

QS = 0.25 * 1.4426950408889634
EPS = 1e-5

import struct


def f2u(x):
    return struct.unpack('<I', struct.pack('<f', x))[0]


import os
PROFILE = os.environ.get('PROFILE', '0') in ('1', '2')
PROFDBG = os.environ.get('PROFILE', '0') == '2'
DBGMAP = {'k0_kernel': (1024, 0, [0, 7]), 'f1_kernel': (512, 2, [0, 2, 3, 5, 9, 12, 15]), 'f2_kernel': (0, 9, [0, 2, 3, 5, 9, 12, 15])}
DBGWG = int(os.environ.get('DBGWG', '5'))
PROF = 0x2000000
PROF_SLOT = {}
FLAGS_ZERO = 0
POISON = []


class Asm:
    def __init__(self):
        self.L = []
        self.kernels = []
        self.cur = None

    def stamp(self, i):
        if PROFILE:
            self(f"s_memrealtime s[{64+2*i}:{65+2*i}]")
            self("s_waitcnt lgkmcnt(0)")

    def stamp_flush(self, n, srd=8):
        if not PROFILE:
            return
        slot = PROF_SLOT.setdefault(self.cur, len(PROF_SLOT))
        self("s_mov_b64 exec, -1")
        self.stamp(n - 1)
        if PROFDBG:
            off, base, sel = DBGMAP[self.cur]
            self(f"s_cmp_lg_u32 s2, {DBGWG}")
            self(f"s_cbranch_scc1 {self.cur}_dbgskip")
            self("s_cmp_lg_u32 s3, 0")
            self(f"s_cbranch_scc1 {self.cur}_dbgskip")
            self("s_load_dwordx2 s[56:57], s[0:1], 72")
            self("s_waitcnt lgkmcnt(0)")
            self(f"s_add_u32 s56, s56, {off}")
            self("s_addc_u32 s57, s57, 0")
            self("s_mov_b32 s58, 256")
            self("s_mov_b32 s59, 0x00020000")
            self("v_mov_b32 v0, 0")
            for k, i in enumerate(sel):
                self(f"v_mov_b32 v1, s{64+2*i}")
                self(f"buffer_store_dword v1, v0, s[56:59], 0 offen offset:{4*(base+k)}")
            self(f"{self.cur}_dbgskip:")
            return
        self("s_lshl_b32 s62, s2, 4")
        self("s_add_u32 s62, s62, s3")
        self("s_lshl_b32 s62, s62, 6")
        self(f"s_add_u32 s62, s62, {PROF + slot*0x40000:#x}")
        self("v_mov_b32 v0, 0")
        for i in range(n):
            self(f"v_mov_b32 v1, s{64+2*i}")
            self(f"buffer_store_dword v1, v0, s[{srd}:{srd+3}], s62 offen offset:{4*i}")

    def __call__(self, s):
        for line in s.split('\n'):
            line = line.strip()
            if line:
                self.L.append(('' if line.endswith(':') else '    ') + line)

    def nop(self, n):
        while n > 0:
            k = min(n, 16)
            self(f"s_nop {k-1}")
            n -= k

    def begin(self, name):
        self.cur = name
        self.L.append(f".globl {name}")
        self.L.append(".p2align 8")
        self.L.append(f".type {name},@function")
        self.L.append(f"{name}:")

    def desc(self, name, vgpr, agpr=0, sgpr=100):
        acc = (vgpr + 3) // 4 * 4
        nfv = acc + agpr if agpr else vgpr
        self.kernels.append(f""".p2align 6
.amdhsa_kernel {name}
  .amdhsa_next_free_vgpr {nfv}
  .amdhsa_next_free_sgpr {sgpr}
  .amdhsa_accum_offset {acc}
  .amdhsa_group_segment_fixed_size 0
  .amdhsa_kernarg_size 88
  .amdhsa_user_sgpr_count 2
  .amdhsa_user_sgpr_kernarg_segment_ptr 1
  .amdhsa_system_sgpr_workgroup_id_x 1
.end_amdhsa_kernel""")

    def srd(self, d, base, size):
        self(f"s_mov_b32 s{d}, s{base}")
        self(f"s_mov_b32 s{d+1}, s{base+1}")
        self(f"s_mov_b32 s{d+2}, {size:#x}")
        self(f"s_mov_b32 s{d+3}, 0x00020000")


def vr(a, n):
    return f"v[{a}:{a+n-1}]"


def ar(a, n):
    return f"a[{a}:{a+n-1}]"


def half_sum(a, x, t, op="v_add_f32"):
    a(f"v_mov_b32 v{t}, v{x}")
    a.nop(2)
    a(f"v_permlane32_swap_b32 v{x}, v{t}")
    a.nop(1)
    a(f"{op} v{x}, v{x}, v{t}")


def wave32_max(a, x, t):
    for off in (0x041F, 0x081F, 0x101F, 0x201F, 0x401F):
        a(f"ds_swizzle_b32 v{t}, v{x} offset:{off:#x}")
        a("s_waitcnt lgkmcnt(0)")
        a(f"v_max_f32 v{x}, v{x}, v{t}")


def gen_P(a):
    name = "prep_kernel"
    a.begin(name)
    a(f"s_cmp_ge_u32 s2, {218 if FLAGS_ZERO else 217}")
    a("s_cbranch_scc1 P_end")
    a("s_load_dwordx16 s[16:31], s[0:1], 0")
    a("s_load_dwordx2 s[32:33], s[0:1], 80")
    a("v_and_b32 v1, 63, v0")
    a("v_lshrrev_b32 v2, 6, v0")
    a("v_and_b32 v3, 31, v1")
    a("v_readfirstlane_b32 s3, v2")
    a("v_lshrrev_b32 v4, 5, v1")
    a("v_lshlrev_b32 v6, 4, v1")
    a("s_waitcnt lgkmcnt(0)")
    a.srd(36, 32, WS_USED)
    if FLAGS_ZERO:
        a("s_cmp_lg_u32 s2, 217")
        a("s_cbranch_scc1 P_nz")
        a("v_lshlrev_b32 v5, 4, v0")
        for r in range(4):
            a(f"v_mov_b32 v{16+r}, 0")
        a(f"s_mov_b32 s53, {FLAGS_ZERO:#x}")
        a("buffer_store_dwordx4 v[16:19], v5, s[36:39], s53 offen")
        a("s_branch P_end")
        a("P_nz:")
    a("s_cmp_ge_u32 s2, 153")
    a("s_cbranch_scc1 P_x")
    a("s_cmp_eq_u32 s2, 152")
    a("s_cbranch_scc1 P_kv")
    a("s_mov_b32 s46, 0")
    a("s_mov_b32 s48, 32")
    a("s_cmp_ge_u32 s2, 88")
    a("s_cbranch_scc1 P_w2")
    a("s_cmp_ge_u32 s2, 32")
    a("s_cbranch_scc1 P_w1")
    a("s_cmp_ge_u32 s2, 16")
    a("s_cbranch_scc1 P_wo")
    a.srd(40, 18, 512 * 512 * 2)
    a("s_mov_b32 s44, 1024")
    a("s_mov_b32 s45, s2")
    a("s_lshl_b32 s47, s45, 15")
    a(f"s_add_u32 s47, s47, {WQF:#x}")
    a("s_lshl_b32 s49, s45, 7")
    a(f"s_add_u32 s49, s49, {CSQ:#x}")
    a("s_branch P_wgo")
    a("P_wo:")
    a.srd(40, 24, 512 * 512 * 2)
    a("s_mov_b32 s44, 1024")
    a("s_sub_u32 s45, s2, 16")
    a("s_lshl_b32 s47, s45, 15")
    a(f"s_add_u32 s47, s47, {WOF:#x}")
    a("s_mov_b32 s49, 0")
    a("s_branch P_wgo")
    a("P_w1:")
    a.srd(40, 28, 512 * 1792 * 2)
    a("s_mov_b32 s44, 3584")
    a("s_sub_u32 s45, s2, 32")
    a("s_lshl_b32 s47, s45, 15")
    a(f"s_add_u32 s47, s47, {W1F:#x}")
    a("s_lshl_b32 s49, s45, 7")
    a(f"s_add_u32 s49, s49, {CS1:#x}")
    a("s_branch P_wgo")
    a("P_w2:")
    a.srd(40, 30, 512 * 1792 * 2)
    a("s_mov_b32 s44, 1024")
    a("s_sub_u32 s45, s2, 88")
    a("s_and_b32 s46, s45, 3")
    a("s_mul_i32 s46, s46, 28")
    a("s_lshr_b32 s45, s45, 2")
    a("s_mul_i32 s47, s45, 112")
    a("s_add_u32 s47, s47, s46")
    a("s_lshl_b32 s47, s47, 10")
    a(f"s_add_u32 s47, s47, {W2F:#x}")
    a("s_mov_b32 s48, 28")
    a("s_mov_b32 s49, 0")
    a("P_wgo:")
    a("s_lshl_b32 s50, s3, 2")
    a("s_cmp_ge_u32 s50, s48")
    a("s_cbranch_scc1 P_end")
    a("s_lshl_b32 s51, s44, 2")
    a("v_mul_lo_u32 v5, v4, s51")
    a("v_lshl_add_u32 v5, v3, 1, v5")
    a("s_add_u32 s52, s46, s50")
    a("s_lshl_b32 s52, s52, 4")
    a("s_mul_i32 s52, s52, s44")
    a("s_lshl_b32 s53, s45, 6")
    a("s_add_u32 s52, s52, s53")
    a("s_mul_i32 s54, s44, 5")
    for i in range(4):
        for j in range(8):
            a(f"buffer_load_ushort v{16+8*i+j}, v5, s[40:43], s52 offen")
            a(f"s_add_u32 s52, s52, {'s54' if j in (3, 7) else 's44'}")
    a("P_pack:")
    a("s_lshl_b32 s53, s50, 10")
    a("s_add_u32 s53, s53, s47")
    a("v_mov_b32 v7, 0")
    a("s_mov_b32 s55, 0x3f803f80")
    for i in range(4):
        a(f"s_waitcnt vmcnt({8*(3-i) + i})")
        for q in range(4):
            a(f"v_lshl_or_b32 v{48+4*i+q}, v{16+8*i+2*q+1}, 16, v{16+8*i+2*q}")
        a(f"buffer_store_dwordx4 {vr(48+4*i,4)}, v6, s[36:39], s53 offen offset:{1024*i}")
        for q in range(4):
            a(f"v_dot2_f32_bf16 v7, v{48+4*i+q}, s55, v7")
    a("s_cmp_eq_u32 s49, 0")
    a("s_cbranch_scc1 P_end")
    a("v_lshlrev_b32 v8, 2, v0")
    a("ds_write_b32 v8, v7")
    a("s_waitcnt lgkmcnt(0)")
    a("s_barrier")
    a("s_cmp_lg_u32 s3, 0")
    a("s_cbranch_scc1 P_end")
    a("v_lshlrev_b32 v8, 2, v1")
    for w in range(8):
        a(f"ds_read_b32 v{16+w}, v8 offset:{256*w}")
    a("s_waitcnt lgkmcnt(0)")
    for w in range(1, 8):
        a(f"v_add_f32 v16, v16, v{16+w}")
    half_sum(a, 16, 17)
    a("v_cmp_gt_u32 vcc, 32, v1")
    a("s_and_saveexec_b64 s[56:57], vcc")
    a("buffer_store_dword v16, v8, s[36:39], s49 offen")
    a("s_branch P_end")
    a("P_kv:")
    a.srd(40, 20, 512 * 16 * 2)
    a.srd(60, 22, 512 * 16 * 2)
    a("s_lshl_b32 s50, s3, 2")
    a("v_and_b32 v5, 15, v3")
    a("v_lshlrev_b32 v5, 1, v5")
    a("v_lshl_add_u32 v5, v4, 7, v5")
    a("s_lshl_b32 s52, s50, 9")
    a("v_cmp_gt_u32 vcc, 16, v3")
    a("s_and_saveexec_b64 s[56:57], vcc")
    for i in range(4):
        for j in range(8):
            row = 16 * i + (j & 3) + 8 * (j >> 2)
            a(f"buffer_load_ushort v{16+8*i+j}, v5, s[40:43], s52 offen offset:{row*32}")
    a("s_andn2_b64 exec, s[56:57], exec")
    for i in range(4):
        for j in range(8):
            row = 16 * i + (j & 3) + 8 * (j >> 2)
            a(f"buffer_load_ushort v{16+8*i+j}, v5, s[60:63], s52 offen offset:{row*32}")
    a("s_mov_b64 exec, s[56:57]")
    a("s_waitcnt vmcnt(0)")
    a(f"s_mov_b32 s47, {WKVF:#x}")
    a(f"s_mov_b32 s49, {CSKV:#x}")
    a("s_branch P_pack")
    a("P_x:")
    a.srd(40, 16, 2048 * 512 * 2)
    a("s_sub_u32 s45, s2, 153")
    a("v_lshlrev_b32 v5, 10, v3")
    a("v_lshl_add_u32 v5, v4, 3, v5")
    a("s_lshl_b32 s52, s45, 15")
    a("s_lshl_b32 s50, s3, 7")
    a("s_add_u32 s52, s52, s50")
    for i in range(4):
        a(f"buffer_load_dwordx2 {vr(16+4*i,2)}, v5, s[40:43], s52 offen offset:{32*i}")
        a(f"buffer_load_dwordx2 {vr(18+4*i,2)}, v5, s[40:43], s52 offen offset:{32*i+16}")
    a("s_lshl_b32 s53, s45, 15")
    a("s_lshl_b32 s50, s3, 12")
    a("s_add_u32 s53, s53, s50")
    a(f"s_add_u32 s53, s53, {XF:#x}")
    for i in range(4):
        a(f"s_waitcnt vmcnt({2*(3-i)+i})")
        a(f"buffer_store_dwordx4 {vr(16+4*i,4)}, v6, s[36:39], s53 offen offset:{1024*i}")
    a("P_end:")
    a("s_endpgm")
    a.desc(name, 64)


def prologue(a, endlabel, out_ptr=False, out_off=64):
    a("s_cmp_ge_u32 s2, 256")
    a(f"s_cbranch_scc1 {endlabel}x")
    a.stamp(0)
    a("s_load_dwordx2 s[6:7], s[0:1], 80")
    if out_ptr:
        a(f"s_load_dwordx2 s[12:13], s[0:1], {out_off}")
    a("v_and_b32 v1, 63, v0")
    a("v_lshrrev_b32 v2, 6, v0")
    a("v_and_b32 v3, 31, v1")
    a("v_readfirstlane_b32 s3, v2")
    a("v_lshrrev_b32 v4, 5, v1")
    a("v_lshlrev_b32 v2, 4, v1")
    a("s_and_b32 s4, s2, 31")
    a("s_lshr_b32 s5, s2, 5")
    a("s_waitcnt lgkmcnt(0)")
    a.srd(8, 6, WS_USED)
    a.stamp(1)


def frag_loads(a, dst, sbase, idx, stmp):
    hi, lo = idx // 4, idx % 4
    if hi == 0:
        so = f"s{sbase}"
    else:
        a(f"s_add_u32 s{stmp}, s{sbase}, {hi*4096}")
        so = f"s{stmp}"
    a(f"buffer_load_dwordx4 {dst}, v2, s[8:11], {so} offen offset:{lo*1024}")


def gen_gemm_res(a, name, WFo, AFo, KS, RESo, OUTo, out_rowmajor):
    NW = 4
    ksw = KS // NW
    RING = min(ksw, 15)
    a.begin(name)
    end = f"{name}_end"
    prologue(a, end, out_ptr=out_rowmajor)
    if out_rowmajor:
        a.srd(16, 12, 2048 * 512 * 2)
    a(f"s_mul_i32 s24, s3, {ksw}")
    a("s_lshl_b32 s25, s5, 1")
    a(f"s_mul_i32 s20, s25, {KS}")
    a("s_add_u32 s20, s20, s24")
    a("s_lshl_b32 s20, s20, 10")
    a(f"s_add_u32 s20, s20, {WFo:#x}")
    a(f"s_add_u32 s21, s20, {KS*1024}")
    a("s_lshl_b32 s25, s4, 1")
    a(f"s_mul_i32 s22, s25, {KS}")
    a("s_add_u32 s22, s22, s24")
    a("s_lshl_b32 s22, s22, 10")
    a(f"s_add_u32 s22, s22, {AFo:#x}")
    a(f"s_add_u32 s23, s22, {KS*1024}")
    a("s_and_b32 s26, s3, 1")
    a("s_lshr_b32 s27, s3, 1")
    a("s_lshl_b32 s28, s4, 1")
    a("s_add_u32 s28, s28, s26")
    a("s_lshl_b32 s29, s5, 1")
    a("s_add_u32 s29, s29, s27")
    a("s_lshl_b32 s30, s28, 5")
    a("s_lshl_b32 s31, s29, 1")
    a("s_add_u32 s30, s30, s31")
    a("s_lshl_b32 s30, s30, 10")
    a(f"s_add_u32 s31, s30, {RESo:#x}")
    a("buffer_load_dwordx4 v[8:11], v2, s[8:11], s31 offen")
    a("buffer_load_dwordx4 v[12:15], v2, s[8:11], s31 offen offset:1024")
    R0 = 16

    def issue(i):
        b = R0 + 16 * (i % RING)
        frag_loads(a, vr(b, 4), 20, i, 32)
        frag_loads(a, vr(b + 4, 4), 21, i, 33)
        frag_loads(a, vr(b + 8, 4), 22, i, 34)
        frag_loads(a, vr(b + 12, 4), 23, i, 35)

    for i in range(RING):
        issue(i)
    a.stamp(2)
    for i in range(ksw):
        outstanding = min(ksw, i + RING) - i - 1
        a(f"s_waitcnt vmcnt({4*outstanding})")
        if i == 0:
            a.stamp(3)
        b = R0 + 16 * (i % RING)
        for c in range(2):
            for r in range(2):
                t = 2 * c + r
                cin = "0" if i == 0 else ar(16 * t, 16)
                a(f"v_mfma_f32_32x32x16_bf16 {ar(16*t,16)}, {vr(b+4*c,4)}, {vr(b+8+4*r,4)}, {cin}")
        if i + RING < ksw:
            issue(i + RING)
    a.stamp(4)
    a("s_lshl_b32 s32, s3, 12")
    a("v_add_u32 v5, s32, v2")
    a("s_lshl_b32 s32, s3, 14")
    a("v_add_u32 v6, s32, v2")
    a.nop(16)
    for t in range(4):
        for q in range(4):
            a(f"ds_write_b128 v5, {ar(16*t+4*q,4)} offset:{t*16384+q*1024}")
    a("s_waitcnt lgkmcnt(0)")
    a.stamp(5)
    a("s_barrier")
    a.stamp(6)
    for s in range(4):
        for q in range(4):
            a(f"ds_read_b128 {vr(R0+16*s+4*q,4)}, v6 offset:{s*4096+q*1024}")
    for q in range(8):
        a(f"v_lshlrev_b32 v{80+2*q}, 16, v{8+q}")
        a(f"v_and_b32 v{81+2*q}, 0xffff0000, v{8+q}")
    for s in range(4):
        a(f"s_waitcnt lgkmcnt({4*(3-s)})")
        for r in range(16):
            a(f"v_add_f32 v{80+r}, v{80+r}, v{R0+16*s+r}")
    for q in range(8):
        a(f"v_cvt_pk_bf16_f32 v{96+q}, v{80+2*q}, v{81+2*q}")
    if not out_rowmajor:
        a(f"s_add_u32 s31, s30, {OUTo:#x}")
        a("buffer_store_dwordx4 v[96:99], v2, s[8:11], s31 offen")
        a("buffer_store_dwordx4 v[100:103], v2, s[8:11], s31 offen offset:1024")
    else:
        a.nop(2)
        a("v_permlane32_swap_b32 v96, v98")
        a("v_permlane32_swap_b32 v97, v99")
        a("v_permlane32_swap_b32 v100, v102")
        a("v_permlane32_swap_b32 v101, v103")
        a("v_lshlrev_b32 v5, 10, v3")
        a("v_lshl_add_u32 v5, v4, 4, v5")
        a("s_lshl_b32 s31, s28, 15")
        a("s_lshl_b32 s32, s29, 6")
        a("s_add_u32 s31, s31, s32")
        a("buffer_store_dwordx4 v[96:99], v5, s[16:19], s31 offen")
        a("buffer_store_dwordx4 v[100:103], v5, s[16:19], s31 offen offset:32")
    a(f"{end}:")
    a.stamp_flush(8)
    a(f"{end}x:")
    a("s_endpgm")
    a.desc(name, max(R0 + 16 * RING, 104), agpr=64)


def gen_qkv(a):
    name = "qkv_kernel"
    KS = 32
    ksw = 8
    a.begin(name)
    end = f"{name}_end"
    prologue(a, end)
    a(f"s_mul_i32 s24, s3, {ksw}")
    a("s_lshl_b32 s25, s5, 1")
    a(f"s_mul_i32 s20, s25, {KS}")
    a("s_add_u32 s20, s20, s24")
    a("s_lshl_b32 s20, s20, 10")
    a(f"s_add_u32 s20, s20, {WQF:#x}")
    a(f"s_add_u32 s21, s20, {KS*1024}")
    a("s_lshl_b32 s25, s4, 1")
    a(f"s_mul_i32 s22, s25, {KS}")
    a("s_add_u32 s22, s22, s24")
    a("s_lshl_b32 s22, s22, 10")
    a(f"s_add_u32 s22, s22, {XF:#x}")
    a(f"s_add_u32 s23, s22, {KS*1024}")
    a("s_lshl_b32 s37, s24, 10")
    a(f"s_add_u32 s37, s37, {WKVF:#x}")
    a("s_and_b32 s26, s3, 1")
    a("s_lshr_b32 s27, s3, 1")
    a("s_lshl_b32 s28, s4, 1")
    a("s_add_u32 s28, s28, s26")
    a("s_lshl_b32 s29, s5, 1")
    a("s_add_u32 s29, s29, s27")
    a("v_lshlrev_b32 v5, 4, v4")
    a("s_lshl_b32 s31, s29, 7")
    a(f"s_add_u32 s31, s31, {CSQ:#x}")
    for q in range(4):
        a(f"buffer_load_dwordx4 {vr(176+4*q,4)}, v5, s[8:11], s31 offen offset:{32*q}")
    a(f"s_mov_b32 s31, {CSKV:#x}")
    for q in range(2):
        a(f"buffer_load_dwordx4 {vr(192+4*q,4)}, v5, s[8:11], s31 offen offset:{32*q}")
    a("v_lshlrev_b32 v6, 2, v3")
    a("buffer_load_dword v200, v6, s[8:11], s31 offen")
    R0 = 16
    a("s_mov_b32 s36, 0x3f803f80")
    for r in range(4):
        a(f"v_mov_b32 v{8+r}, 0")
    a("s_cmp_eq_u32 s5, 0")
    a("s_cbranch_scc1 QKV_mainK")
    a("s_cmp_eq_u32 s5, 1")
    a("s_cbranch_scc1 QKV_mainV")

    def main(kind):
        nl = 5 if kind else 4
        for i in range(ksw):
            b = R0 + 20 * i
            frag_loads(a, vr(b, 4), 20, i, 32)
            frag_loads(a, vr(b + 4, 4), 21, i, 33)
            frag_loads(a, vr(b + 8, 4), 22, i, 34)
            frag_loads(a, vr(b + 12, 4), 23, i, 35)
            if kind:
                frag_loads(a, vr(b + 16, 4), 37, i, 38)
        a.stamp(2)
        npo = 0
        if POISON:
            for r in range(4):
                a(f"v_mov_b32 v{12+r}, -1")
            a("s_lshl_b32 s39, s2, 2")
            a("s_add_u32 s39, s39, s3")
            for (base, n) in POISON:
                a(f"s_mul_i32 s38, s39, {n*1024}")
                a(f"s_add_u32 s38, s38, {base:#x}")
                for i in range(n):
                    if i == 4:
                        a("s_add_u32 s38, s38, 4096")
                    a(f"buffer_store_dwordx4 v[12:15], v2, s[8:11], s38 offen offset:{1024*(i%4)}")
                    npo += 1
        for i in range(ksw):
            a(f"s_waitcnt vmcnt({nl*(ksw-1-i)+npo})")
            if i == 0:
                a.stamp(3)
            b = R0 + 20 * i
            for c in range(2):
                for r in range(2):
                    t = 2 * c + r
                    cin = "0" if i == 0 else ar(16 * t, 16)
                    a(f"v_mfma_f32_32x32x16_bf16 {ar(16*t,16)}, {vr(b+4*c,4)}, {vr(b+8+4*r,4)}, {cin}")
                    for q in range(4):
                        x = b + 8 + 4 * r + q
                        if c == 0:
                            a(f"v_dot2_f32_bf16 v{8+2*r}, v{x}, s36, v{8+2*r}")
                        else:
                            a(f"v_dot2_f32_bf16 v{9+2*r}, v{x}, v{x}, v{9+2*r}")
            if kind:
                for r in range(2):
                    t = 4 + r
                    cin = "0" if i == 0 else ar(16 * t, 16)
                    if kind == 'K':
                        a(f"v_mfma_f32_32x32x16_bf16 {ar(16*t,16)}, {vr(b+16,4)}, {vr(b+8+4*r,4)}, {cin}")
                    else:
                        a(f"v_mfma_f32_32x32x16_bf16 {ar(16*t,16)}, {vr(b+8+4*r,4)}, {vr(b+16,4)}, {cin}")
        a("s_lshl_b32 s32, s3, 12")
        a("v_add_u32 v5, s32, v2")
        a("v_add_u32 v6, 0x10000, v5")
        a.nop(16)
        if kind:
            for t in (4, 5):
                for q in range(2 if kind == 'K' else 4):
                    a(f"ds_write_b128 v6, {ar(16*t+4*q,4)} offset:{(t-4)*16384+q*1024}")

    main(None)
    a("s_branch QKV_red")
    a("QKV_mainK:")
    main('K')
    a("s_branch QKV_red")
    a("QKV_mainV:")
    main('V')
    a("QKV_red:")
    a.stamp(4)
    STAT = 6 * 16384
    STAT2 = STAT + 4096
    for t in range(4):
        for q in range(4):
            a(f"ds_write_b128 v5, {ar(16*t+4*q,4)} offset:{t*16384+q*1024}")
    a("s_lshl_b32 s32, s3, 10")
    a(f"s_add_u32 s32, s32, {STAT}")
    a("v_add_u32 v7, s32, v2")
    a("ds_write_b128 v7, v[8:11]")
    a("s_lshl_b32 s32, s3, 14")
    a("v_add_u32 v6, s32, v2")
    a("s_lshl_b32 s32, s26, 3")
    a(f"s_add_u32 s32, s32, {STAT}")
    a("v_add_u32 v7, s32, v2")
    a("s_waitcnt lgkmcnt(0)")
    a.stamp(5)
    a("s_barrier")
    a.stamp(6)
    for s in range(4):
        a(f"ds_read_b64 {vr(8+2*s,2)}, v7 offset:{s*1024}")
    for s in range(4):
        for q in range(4):
            if s == 2 and q == 0:
                a("s_waitcnt lgkmcnt(8)")
            a(f"ds_read_b128 {vr(R0+16*s+4*q,4)}, v6 offset:{s*4096+q*1024}")
    for s in range(1, 4):
        a(f"v_add_f32 v8, v8, v{8+2*s}")
        a(f"v_add_f32 v9, v9, v{9+2*s}")
    half_sum(a, 8, 10)
    half_sum(a, 9, 10)
    a(f"v_mul_f32 v8, {f2u(1.0/512):#x}, v8")
    a(f"v_mul_f32 v9, {f2u(1.0/512):#x}, v9")
    a("v_fma_f32 v9, -v8, v8, v9")
    a("v_max_f32 v9, 0, v9")
    a(f"v_add_f32 v9, {f2u(EPS):#x}, v9")
    a("v_rsq_f32 v9, v9")
    a.nop(1)
    a("v_mul_f32 v10, v8, v9")
    a("v_sub_f32 v10, 0, v10")
    a(f"v_mul_f32 v11, {f2u(QS):#x}, v9")
    a(f"v_mul_f32 v12, {f2u(QS):#x}, v10")
    a("s_waitcnt vmcnt(0)")
    for s in range(1, 4):
        a(f"s_waitcnt lgkmcnt({4*(3-s)})")
        for r in range(16):
            a(f"v_add_f32 v{R0+r}, v{R0+r}, v{R0+16*s+r}")
    for r in range(16):
        a(f"v_mul_f32 v{176+r}, v12, v{176+r}")
        a(f"v_fma_f32 v{R0+r}, v{R0+r}, v11, v{176+r}")
    for q in range(8):
        a(f"v_cvt_pk_bf16_f32 v{96+q}, v{R0+2*q}, v{R0+2*q+1}")
    a("s_lshl_b32 s30, s28, 5")
    a("s_lshl_b32 s31, s29, 1")
    a("s_add_u32 s30, s30, s31")
    a("s_lshl_b32 s30, s30, 10")
    a(f"s_add_u32 s31, s30, {QF:#x}")
    a("buffer_store_dwordx4 v[96:99], v2, s[8:11], s31 offen")
    a("buffer_store_dwordx4 v[100:103], v2, s[8:11], s31 offen offset:1024")
    a("s_cmp_ge_u32 s3, 2")
    a(f"s_cbranch_scc1 {end}")
    a("s_cmp_ge_u32 s5, 2")
    a(f"s_cbranch_scc1 {end}")
    a("s_lshl_b32 s32, s3, 14")
    a(f"s_add_u32 s32, s32, {4*16384}")
    a("v_add_u32 v6, s32, v2")
    a(f"s_mul_i32 s33, s28, {KVT}")
    a(f"s_add_u32 s33, s33, {KVF:#x}")
    a("s_cmp_eq_u32 s5, 1")
    a("s_cbranch_scc1 QKV_finV")
    for s in range(4):
        for q in range(2):
            a(f"ds_read_b128 {vr(R0+16*s+4*q,4)}, v6 offset:{s*4096+q*1024}")
    a("s_waitcnt lgkmcnt(0)")
    for s in range(1, 4):
        for r in range(8):
            a(f"v_add_f32 v{R0+r}, v{R0+r}, v{R0+16*s+r}")
    a("v_mov_b32 v13, 0")
    for r in range(8):
        a(f"v_mul_f32 v{192+r}, v10, v{192+r}")
        a(f"v_fma_f32 v{R0+r}, v{R0+r}, v9, v{192+r}")
        a(f"v_fma_f32 v13, v{R0+r}, v{R0+r}, v13")
    for q in range(4):
        a(f"v_cvt_pk_bf16_f32 v{104+q}, v{R0+2*q}, v{R0+2*q+1}")
    a("buffer_store_dwordx4 v[104:107], v2, s[8:11], s33 offen")
    half_sum(a, 13, 14)
    wave32_max(a, 13, 14)
    a("s_lshl_b32 s32, s28, 2")
    a(f"s_add_u32 s32, s32, {KN:#x}")
    a("v_mov_b32 v14, 0")
    a("v_cmp_eq_u32 vcc, 0, v1")
    a("s_and_saveexec_b64 s[40:41], vcc")
    a("buffer_store_dword v13, v14, s[8:11], s32 offen")
    a(f"s_branch {end}")
    a("QKV_finV:")
    for s in range(4):
        for q in range(4):
            a(f"ds_read_b128 {vr(R0+16*s+4*q,4)}, v6 offset:{s*4096+q*1024}")
    a("s_lshl_b32 s32, s3, 8")
    a(f"s_add_u32 s32, s32, {STAT2}")
    a("v_lshlrev_b32 v7, 2, v3")
    a("v_add_u32 v7, s32, v7")
    a("ds_write_b32 v7, v9")
    a("ds_write_b32 v7, v10 offset:128")
    a("v_lshlrev_b32 v7, 4, v4")
    a("v_add_u32 v7, s32, v7")
    a("s_waitcnt lgkmcnt(0)")
    for q in range(4):
        a(f"ds_read_b128 {vr(112+4*q,4)}, v7 offset:{32*q}")
        a(f"ds_read_b128 {vr(128+4*q,4)}, v7 offset:{128+32*q}")
    for s in range(1, 4):
        for r in range(16):
            a(f"v_add_f32 v{R0+r}, v{R0+r}, v{R0+16*s+r}")
    a("s_waitcnt lgkmcnt(0)")
    for r in range(16):
        a(f"v_mul_f32 v{128+r}, v200, v{128+r}")
        a(f"v_fma_f32 v{R0+r}, v{R0+r}, v{112+r}, v{128+r}")
    for q in range(8):
        a(f"v_cvt_pk_bf16_f32 v{104+q}, v{R0+2*q}, v{R0+2*q+1}")
    a("v_cmp_eq_u32 s[40:41], 0, v3")
    a("v_mov_b32 v13, 0x3f803f80")
    a("v_mov_b32 v14, 0")
    a("v_cndmask_b32 v13, v14, v13, s[40:41]")
    a("v_cmp_le_u32 vcc, 16, v3")
    a("v_xor_b32 v7, 16, v3")
    a("v_lshlrev_b32 v7, 4, v7")
    for q in range(8):
        a(f"v_cndmask_b32 v{104+q}, v13, v{104+q}, vcc")
    a(f"v_mul_u32_u24 v14, {VH}, v4")
    a("v_add_u32 v7, v7, v14")
    a("v_cmp_gt_u32 s[40:41], 2, v3")
    a("s_or_b64 vcc, vcc, s[40:41]")
    a("s_and_saveexec_b64 s[40:41], vcc")
    a("buffer_store_dwordx4 v[104:107], v7, s[8:11], s33 offen offset:1024")
    a(f"buffer_store_dwordx4 v[108:111], v7, s[8:11], s33 offen offset:{1024+VU}")
    a(f"{end}:")
    a.stamp_flush(8)
    a(f"{end}x:")
    a("s_endpgm")
    a.desc(name, 204, agpr=96)
    return STAT2 + 1024


PRIO_IT = int(os.environ.get('PRIO_IT', '7'))


def gen_attn(a):
    name = "attn_kernel"
    a.begin(name)
    end = f"{name}_end"
    prologue(a, end)
    SCR = KVF_BYTES
    Q = (8, 12)
    C = 16
    O = (32, 48)
    S = (64, 80)
    P = (96, 104)
    E = 112
    KB = (128, 132)
    VB = (136, 144)
    a("s_and_b32 s20, s3, 3")
    a("s_lshr_b32 s30, s3, 2")
    a("s_and_b32 s21, s20, 1")
    a("s_lshl_b32 s21, s21, 1")
    a("s_lshl_b32 s22, s5, 2")
    a("s_add_u32 s21, s21, s22")
    a("s_lshr_b32 s22, s20, 1")
    a("s_lshl_b32 s23, s4, 1")
    a("s_add_u32 s22, s22, s23")
    a("s_lshl_b32 s22, s22, 5")
    a("s_add_u32 s22, s22, s21")
    a("s_add_u32 s23, s22, s30")
    a("s_xor_b32 s24, s30, 1")
    a("s_add_u32 s24, s22, s24")
    a("s_lshl_b32 s22, s23, 10")
    a("s_lshl_b32 s24, s24, 10")
    a(f"s_add_u32 s23, s22, {QF:#x}")
    a(f"s_add_u32 s24, s24, {QF:#x}")
    a(f"buffer_load_dwordx4 {vr(Q[0],4)}, v2, s[8:11], s23 offen")
    a(f"buffer_load_dwordx4 {vr(Q[1],4)}, v2, s[8:11], s24 offen")
    a("v_lshlrev_b32 v5, 2, v1")
    a(f"s_mov_b32 s23, {KN:#x}")
    a("buffer_load_dword v7, v5, s[8:11], s23 offen")
    a("s_lshr_b32 s24, s3, 1")
    a("s_lshl_b32 s24, s24, 10")
    a("s_and_b32 s25, s3, 1")
    a(f"s_mul_i32 s25, s25, {32*KVT}")
    a("s_add_u32 s24, s24, s25")
    a(f"s_add_u32 s25, s24, {KVF:#x}")
    def dma():
        a("s_mov_b32 m0, s34")
        a("s_add_u32 s34, s34, 4096")
        a("buffer_load_dwordx4 v2, s[8:11], s35 offen lds")
        a("s_add_u32 s35, s35, 4096")
    a("s_mov_b32 s34, s24")
    a("s_mov_b32 s35, s25")
    for i in range(6):
        dma()
    a.stamp(2)
    a("v_min_u32 v6, 17, v3")
    a("v_mov_b32 v5, 16")
    a("v_cmp_eq_u32 vcc, 20, v3")
    a(f"s_mul_i32 s25, s30, {32*KVT}")
    a.nop(1)
    a("v_cndmask_b32 v6, v6, v5, vcc")
    a("v_lshlrev_b32 v6, 4, v6")
    a(f"v_mul_u32_u24 v5, {VH}, v4")
    a("v_add3_u32 v155, v6, v5, 64")
    a("v_add_u32 v155, 960, v155")
    a("v_add_u32 v152, s25, v2")
    a("v_add_u32 v153, s25, v155")
    a("s_waitcnt vmcnt(6)")
    a("v_mov_b32 v5, 0")
    a("v_mov_b32 v6, 0")
    for q in range(4):
        a(f"v_dot2_f32_bf16 v5, v{Q[0]+q}, v{Q[0]+q}, v5")
        a(f"v_dot2_f32_bf16 v6, v{Q[1]+q}, v{Q[1]+q}, v6")
    a.nop(3)
    half_sum(a, 5, 146)
    half_sum(a, 6, 146)
    a("v_max_f32 v5, v5, v6")
    for off in (0x041F, 0x081F, 0x101F, 0x201F, 0x401F):
        a(f"ds_swizzle_b32 v6, v5 offset:{off:#x}")
        a(f"ds_swizzle_b32 v154, v7 offset:{off:#x}")
        a("s_waitcnt lgkmcnt(0)")
        a("v_max_f32 v5, v5, v6")
        a("v_max_f32 v7, v7, v154")
    half_sum(a, 7, 146, op="v_max_f32")
    a("v_mul_f32 v6, v5, v7")
    a("v_sqrt_f32 v6, v6")
    a.nop(1)
    a(f"v_mul_f32 v6, {f2u(-1.02):#x}, v6")
    for r in range(16):
        a(f"v_mov_b32 v{C+r}, v6")
    for r in range(16):
        a(f"v_mov_b32 v{O[0]+r}, 0")
        a(f"v_mov_b32 v{O[1]+r}, 0")
    for r in range(8):
        a(f"v_mov_b32 v{P[1]+r}, 0")
        a(f"v_mov_b32 v{VB[1]+r}, 0")
    for r in range(16):
        a(f"v_mov_b32 v{E+r}, 0")
    a.stamp(3)
    a("s_waitcnt vmcnt(0)")
    a.stamp(4)
    a("s_barrier")
    a.stamp(5)
    if PROFILE:
        a("s_memtime s[78:79]")
        a("s_waitcnt lgkmcnt(0)")
    a("v_mov_b32 v156, v152")
    a("v_mov_b32 v157, v153")
    a(f"ds_read_b128 {vr(KB[0],4)}, v156")
    a(f"ds_read_b128 {vr(KB[1],4)}, v156 offset:{KVT}")
    a(f"ds_read_b128 {vr(VB[0],4)}, v157")
    a(f"ds_read_b128 {vr(VB[0]+4,4)}, v157 offset:{VU}")
    a("s_cmp_lt_u32 s3, 4")
    a("s_cbranch_scc1 A_noprio")
    if PRIO_IT > 0:
        a("s_setprio 1")
    a("A_noprio:")
    a("s_waitcnt lgkmcnt(3)")
    a(f"v_mfma_f32_32x32x16_bf16 {vr(S[0],16)}, {vr(KB[0],4)}, {vr(Q[0],4)}, {vr(C,16)}")
    a.nop(10)
    UN = 4
    PV1 = int(os.environ.get('PV1', '3'))
    PV2 = int(os.environ.get('PV2', '6'))
    DLY = int(os.environ.get('DLY', '2'))
    QKP = int(os.environ.get('QKP', '0'))
    NE = 16

    def body(ndma):
        for t in range(UN):
            for x in range(2):
                y = 1 - x
                ty = t if x == 0 else t + 1
                tv = t - 1 if x == 0 else t
                for i in range(8):
                    if i == QKP:
                        if x == 1:
                            a("s_waitcnt lgkmcnt(0)")
                        a(f"v_mfma_f32_32x32x16_bf16 {vr(S[y],16)}, {vr(KB[ty%2],4)}, {vr(Q[y],4)}, {vr(C,16)}")
                        if x == 1:
                            a(f"ds_read_b128 {vr(KB[t%2],4)}, v156 offset:{(t+2)*KVT}")
                            a(f"ds_read_b128 {vr(VB[(t+1)%2],4)}, v157 offset:{(t+1)*KVT}")
                            a(f"ds_read_b128 {vr(VB[(t+1)%2]+4,4)}, v157 offset:{(t+1)*KVT+VU}")
                    e = E + (2 * i) % NE
                    a(f"v_exp_f32 v{e}, v{S[x]+2*i}")
                    a(f"v_exp_f32 v{e+1}, v{S[x]+2*i+1}")
                    j = i - DLY
                    if j >= 0:
                        ej = E + (2 * j) % NE
                        a(f"v_cvt_pk_bf16_f32 v{P[x]+j}, v{ej}, v{ej+1}")
                    else:
                        ej = E + (2 * (j + 8)) % NE
                        a(f"v_cvt_pk_bf16_f32 v{P[y]+j+8}, v{ej}, v{ej+1}")
                    if i == PV1:
                        a(f"v_mfma_f32_32x32x16_bf16 {vr(O[y],16)}, {vr(VB[tv%2],4)}, {vr(P[y],4)}, {vr(O[y],16)}")
                    if i == PV2:
                        a(f"v_mfma_f32_32x32x16_bf16 {vr(O[y],16)}, {vr(VB[tv%2]+4,4)}, {vr(P[y]+4,4)}, {vr(O[y],16)}")
                    if i in (1, 5) and ndma > 0:
                        dma()
                        ndma -= 1
                if t == UN - 1 and x == 1:
                    a(f"v_add_u32 v156, {UN*KVT}, v156")
                    a(f"v_add_u32 v157, {UN*KVT}, v157")
                    a("s_add_u32 s29, s29, 1")
                    a("s_cmp_lg_u32 s29, 8")

    a("s_mov_b32 s29, 0")
    body(11)
    a("A_loop:")
    a("s_cmp_lg_u32 s29, 2")
    a("s_cbranch_scc1 A_nosync")
    a("s_waitcnt vmcnt(0)")
    a("s_barrier")
    a("A_nosync:")
    a(f"s_cmp_lg_u32 s29, {PRIO_IT}")
    a("s_cbranch_scc1 A_prio2")
    a("s_setprio 0")
    a("A_prio2:")
    body(0)
    a("s_cbranch_scc1 A_loop")
    for j in range(8 - DLY, 8):
        ej = E + (2 * j) % NE
        a(f"v_cvt_pk_bf16_f32 v{P[1]+j}, v{ej}, v{ej+1}")
    a.nop(2)
    a(f"v_mfma_f32_32x32x16_bf16 {vr(O[1],16)}, {vr(VB[1],4)}, {vr(P[1],4)}, {vr(O[1],16)}")
    a(f"v_mfma_f32_32x32x16_bf16 {vr(O[1],16)}, {vr(VB[1]+4,4)}, {vr(P[1]+4,4)}, {vr(O[1],16)}")
    a(f"s_mul_i32 s25, s3, 2304")
    a(f"s_add_u32 s25, s25, {SCR}")
    a("v_add_u32 v5, s25, v2")
    a("v_lshlrev_b32 v6, 2, v1")
    a("v_add_u32 v6, s25, v6")
    a("s_xor_b32 s25, s3, 4")
    a(f"s_mul_i32 s25, s25, 2304")
    a(f"s_add_u32 s25, s25, {SCR}")
    a("v_add_u32 v7, s25, v2")
    a("v_lshlrev_b32 v154, 2, v1")
    a("v_add_u32 v154, s25, v154")
    a("s_waitcnt lgkmcnt(0)")
    a.nop(8)
    a(f"ds_write_b128 v5, {vr(O[1],4)}")
    a(f"ds_write_b128 v5, {vr(O[1]+4,4)} offset:1024")
    a(f"ds_write_b32 v6, v{O[1]+8} offset:2048")
    a("s_waitcnt lgkmcnt(0)")
    a("s_barrier")
    a(f"ds_read_b128 {vr(S[0],4)}, v7")
    a(f"ds_read_b128 {vr(S[0]+4,4)}, v7 offset:1024")
    a(f"ds_read_b32 v{S[0]+8}, v154 offset:2048")
    a("s_waitcnt lgkmcnt(0)")
    for r in range(9):
        a(f"v_add_f32 v{O[0]+r}, v{O[0]+r}, v{S[0]+r}")
    a(f"v_mov_b32 v6, {f2u(2.0**-60):#x}")
    a(f"v_cmp_nge_f32 vcc, v{O[0]+8}, v6")
    a("s_cmp_eq_u64 vcc, 0")
    a("s_cbranch_scc1 A_fin")
    a("v_mov_b32 v156, v2")
    a("v_mov_b32 v6, 0xff800000")
    a("s_mov_b32 s29, 64")
    a("A_fb:")
    a(f"ds_read_b128 {vr(KB[0],4)}, v156")
    a(f"v_add_u32 v156, {KVT}, v156")
    a("s_waitcnt lgkmcnt(0)")
    a(f"v_mfma_f32_32x32x16_bf16 {vr(S[0],16)}, {vr(KB[0],4)}, {vr(Q[0],4)}, 0")
    a.nop(16)
    for i in range(8):
        a(f"v_max3_f32 v6, v6, v{S[0]+2*i}, v{S[0]+2*i+1}")
    a("s_sub_u32 s29, s29, 1")
    a("s_cmp_lg_u32 s29, 0")
    a("s_cbranch_scc1 A_fb")
    half_sum(a, 6, 7, op="v_max_f32")
    a("v_sub_f32 v6, 0, v6")
    for r in range(16):
        a(f"v_mov_b32 v{C+r}, v6")
        a(f"v_mov_b32 v{O[0]+r}, 0")
    a("v_mov_b32 v156, v2")
    a("v_mov_b32 v157, v155")
    a("s_mov_b32 s29, 64")
    a("A_fb2:")
    a(f"ds_read_b128 {vr(KB[0],4)}, v156")
    a(f"ds_read_b128 {vr(VB[0],4)}, v157")
    a(f"ds_read_b128 {vr(VB[0]+4,4)}, v157 offset:{VU}")
    a(f"v_add_u32 v156, {KVT}, v156")
    a(f"v_add_u32 v157, {KVT}, v157")
    a("s_waitcnt lgkmcnt(0)")
    a(f"v_mfma_f32_32x32x16_bf16 {vr(S[0],16)}, {vr(KB[0],4)}, {vr(Q[0],4)}, {vr(C,16)}")
    a.nop(16)
    for i in range(16):
        a(f"v_exp_f32 v{S[0]+i}, v{S[0]+i}")
    a.nop(1)
    for i in range(8):
        a(f"v_cvt_pk_bf16_f32 v{P[0]+i}, v{S[0]+2*i}, v{S[0]+2*i+1}")
    a.nop(2)
    a(f"v_mfma_f32_32x32x16_bf16 {vr(O[0],16)}, {vr(VB[0],4)}, {vr(P[0],4)}, {vr(O[0],16)}")
    a(f"v_mfma_f32_32x32x16_bf16 {vr(O[0],16)}, {vr(VB[0]+4,4)}, {vr(P[0]+4,4)}, {vr(O[0],16)}")
    a.nop(16)
    a("s_sub_u32 s29, s29, 1")
    a("s_cmp_lg_u32 s29, 0")
    a("s_cbranch_scc1 A_fb2")
    a("A_fin:")
    a.stamp(6)
    if PROFILE:
        a("s_memtime s[80:81]")
        a("s_waitcnt lgkmcnt(0)")
    a(f"v_rcp_f32 v6, v{O[0]+8}")
    a.nop(1)
    for r in range(8):
        a(f"v_mul_f32 v{O[0]+r}, v{O[0]+r}, v6")
    for q in range(4):
        a(f"v_cvt_pk_bf16_f32 v{S[0]+q}, v{O[0]+2*q}, v{O[0]+2*q+1}")
    a(f"s_add_u32 s23, s22, {OF:#x}")
    a(f"buffer_store_dwordx4 {vr(S[0],4)}, v2, s[8:11], s23 offen")
    a(f"{end}:")
    a.stamp_flush(8)
    a(f"{end}x:")
    a("s_endpgm")
    a.desc(name, 160)
    return SCR + 8 * 2304


def gen_ffn1(a):
    name = "ffn1_kernel"
    a.begin(name)
    end = f"{name}_end"
    prologue(a, end)
    STAT = 65536
    a("s_lshl_b32 s20, s4, 16")
    a(f"s_add_u32 s20, s20, {X1F:#x}")
    a("s_lshl_b32 s21, s3, 12")
    a("s_add_u32 s22, s20, s21")
    a("s_add_u32 s23, s22, 32768")
    for i in range(4):
        a(f"buffer_load_dwordx4 {vr(160+4*i,4)}, v2, s[8:11], s22 offen offset:{1024*i}")
    for i in range(4):
        a(f"buffer_load_dwordx4 {vr(176+4*i,4)}, v2, s[8:11], s23 offen offset:{1024*i}")
    R0 = 32
    a("s_mul_i32 s24, s5, 7")
    a("s_add_u32 s24, s24, s3")
    a("s_cmp_eq_u32 s3, 7")
    a("s_cbranch_scc1 F1_now")
    a("s_lshl_b32 s25, s24, 15")
    a(f"s_add_u32 s25, s25, {W1F:#x}")
    for i in range(32):
        frag_loads(a, vr(R0 + 4 * i, 4), 25, i, 26)
    a("v_lshlrev_b32 v5, 4, v4")
    a("s_lshl_b32 s27, s24, 7")
    a(f"s_add_u32 s27, s27, {CS1:#x}")
    for q in range(4):
        a(f"buffer_load_dwordx4 {vr(192+4*q,4)}, v5, s[8:11], s27 offen offset:{32*q}")
    a("s_waitcnt vmcnt(36)")
    a("s_branch F1_st")
    a("F1_now:")
    a("s_waitcnt vmcnt(0)")
    a("F1_st:")
    a.stamp(2)
    a("v_add_u32 v5, s21, v2")
    for i in range(4):
        a(f"ds_write_b128 v5, {vr(160+4*i,4)} offset:{1024*i}")
        a(f"ds_write_b128 v5, {vr(176+4*i,4)} offset:{32768+1024*i}")
    a("s_mov_b32 s28, 0x3f803f80")
    for r in range(8):
        a(f"v_mov_b32 v{8+r}, 0")
    for i in range(16):
        for r in range(2):
            x = 160 + 16 * r + i
            k = 4 * (i % 2)
            a(f"v_dot2_f32_bf16 v{8+k+2*r}, v{x}, s28, v{8+k+2*r}")
            a(f"v_dot2_f32_bf16 v{9+k+2*r}, v{x}, v{x}, v{9+k+2*r}")
    a("s_lshl_b32 s21, s3, 10")
    a(f"s_add_u32 s21, s21, {STAT}")
    a("v_add_u32 v5, s21, v2")
    a.nop(2)
    for r in range(4):
        a(f"v_add_f32 v{8+r}, v{8+r}, v{12+r}")
    a("ds_write_b128 v5, v[8:11]")
    a("s_waitcnt lgkmcnt(0)")
    a.stamp(3)
    a("s_barrier")
    a.stamp(4)
    a("s_cmp_eq_u32 s3, 7")
    a(f"s_cbranch_scc1 {end}")

    def rd(i):
        b = 8 + 8 * (i % 3)
        a(f"ds_read_b128 {vr(b,4)}, v2 offset:{i*1024}")
        a(f"ds_read_b128 {vr(b+4,4)}, v2 offset:{32768+i*1024}")
    rd(0)
    rd(1)
    for i in range(32):
        if i + 2 < 32:
            rd(i + 2)
        pend = min(32, i + 3) - i - 1
        a(f"s_waitcnt vmcnt({4+31-i}) lgkmcnt({2*pend})")
        b = 8 + 8 * (i % 3)
        for r in range(2):
            cin = "0" if i == 0 else ar(16 * r, 16)
            a(f"v_mfma_f32_32x32x16_bf16 {ar(16*r,16)}, {vr(R0+4*i,4)}, {vr(b+4*r,4)}, {cin}")
    a.stamp(5)
    a(f"v_add_u32 v5, {STAT}, v2")
    for w in range(8):
        a(f"ds_read_b128 {vr(160+4*w,4)}, v5 offset:{1024*w}")
    a("s_waitcnt lgkmcnt(0)")
    for w in range(1, 8):
        for r in range(4):
            a(f"v_add_f32 v{160+r}, v{160+r}, v{160+4*w+r}")
    for r in range(4):
        half_sum(a, 160 + r, 164)
    for r in range(2):
        m, x2 = 160 + 2 * r, 161 + 2 * r
        a(f"v_mul_f32 v{m}, {f2u(1.0/512):#x}, v{m}")
        a(f"v_mul_f32 v{x2}, {f2u(1.0/512):#x}, v{x2}")
        a(f"v_fma_f32 v{x2}, -v{m}, v{m}, v{x2}")
        a(f"v_max_f32 v{x2}, 0, v{x2}")
        a(f"v_add_f32 v{x2}, {f2u(EPS):#x}, v{x2}")
        a(f"v_rsq_f32 v{8+2*r}, v{x2}")
        a.nop(1)
        a(f"v_mul_f32 v{9+2*r}, v{m}, v{8+2*r}")
        a(f"v_sub_f32 v{9+2*r}, 0, v{9+2*r}")
    a.stamp(6)
    a("s_waitcnt vmcnt(0)")
    for r in range(32):
        a(f"v_accvgpr_read_b32 v{32+r}, a{r}")
    for rr in range(2):
        for r in range(16):
            a(f"v_mul_f32 v{64+r}, v{9+2*rr}, v{192+r}")
            a(f"v_fma_f32 v{32+16*rr+r}, v{32+16*rr+r}, v{8+2*rr}, v{64+r}")
        for q in range(8):
            a(f"v_cvt_pk_bf16_f32 v{80+8*rr+q}, v{32+16*rr+2*q}, v{32+16*rr+2*q+1}")
        for q in range(8):
            a(f"v_pk_max_i16 v{80+8*rr+q}, v{80+8*rr+q}, 0")
    a("s_lshl_b32 s26, s4, 1")
    a("s_mul_i32 s26, s26, 112")
    a("s_lshl_b32 s27, s24, 1")
    a("s_add_u32 s26, s26, s27")
    a("s_lshl_b32 s26, s26, 10")
    a(f"s_add_u32 s26, s26, {HF:#x}")
    a(f"s_add_u32 s27, s26, {112*1024}")
    a("buffer_store_dwordx4 v[80:83], v2, s[8:11], s26 offen")
    a("buffer_store_dwordx4 v[84:87], v2, s[8:11], s26 offen offset:1024")
    a("buffer_store_dwordx4 v[88:91], v2, s[8:11], s27 offen")
    a("buffer_store_dwordx4 v[92:95], v2, s[8:11], s27 offen offset:1024")
    a(f"{end}:")
    a.stamp_flush(8)
    a(f"{end}x:")
    a("s_endpgm")
    a.desc(name, 208, agpr=32)
    return STAT + 8192


def main():
    a = Asm()
    gen_P(a)
    lds_qkv = gen_qkv(a)
    lds_attn = gen_attn(a)
    gen_gemm_res(a, "oproj_kernel", WOF, OF, 32, XF, X1F, False)
    lds_f1 = gen_ffn1(a)
    gen_gemm_res(a, "ffn2a_kernel", W2F, HF, 112, X1F, XF, False)
    gen_gemm_res(a, "ffn2b_kernel", W2F, HF, 112, X1F, None, True)
    hdr = []
    L = hdr.append
    L("; @launch kernel=prep_kernel grid=(217,1,1) block=(512,1,1) lds=2048")
    for layer in range(2):
        L(f"; @launch kernel=qkv_kernel grid=(256,1,1) block=(256,1,1) lds={lds_qkv}")
        L(f"; @launch kernel=attn_kernel grid=(256,1,1) block=(512,1,1) lds={lds_attn}")
        L("; @launch kernel=oproj_kernel grid=(256,1,1) block=(256,1,1) lds=65536")
        L(f"; @launch kernel=ffn1_kernel grid=(256,1,1) block=(512,1,1) lds={lds_f1}")
        L(f"; @launch kernel={'ffn2a' if layer == 0 else 'ffn2b'}_kernel grid=(256,1,1) block=(256,1,1) lds=65536")
    out = "\n".join(hdr) + "\n"
    out += '.amdgcn_target "amdgcn-amd-amdhsa--gfx950"\n.text\n'
    out += "\n".join(a.L) + "\n"
    out += '.section .rodata,"a"\n' + "\n".join(a.kernels) + "\n"
    path = sys.argv[1] if len(sys.argv) > 1 else f"cdna_kernels/{NAME}.s"
    open(path, 'w').write(out)
    if PROFILE:
        import json
        json.dump(PROF_SLOT, open('prof_slots.json', 'w'))
    print("wrote", path, len(out), "bytes")


if __name__ == "__main__":
    main()
```

```python
import os
import sys
import gen as G
from gen import Asm, vr, ar, f2u, half_sum, wave32_max, prologue, frag_loads
from gen import WQF, WOF, W1F, W2F, WKVF, CSQ, CS1, CSKV, VH, VU, KVT, KVF_BYTES, QS, EPS, NAME, PROFILE

LSTRIDE = 0x2000000
XFL = [0x500000, 0x500000 + LSTRIDE]
QFL = [0x700000, 0x700000 + LSTRIDE]
REUSE = int(os.environ.get('REUSE', '1'))
TOUCH = int(os.environ.get('TOUCH', '1'))
TOUCH2 = int(os.environ.get('TOUCH2', '1'))
_R = 0 if REUSE else LSTRIDE
OFL = [0x900000, 0x900000 + _R]
X1FL = [0xB00000, 0xB00000 + _R]
HFL = [0x1000000, 0x1000000 + _R]
KVFL = [0x1800000, 0x1800000 + LSTRIDE]
KNL = [0x1880000, 0x1880000 + LSTRIDE]
FLAGS = 0x490000
FL3 = FLAGS + 8192
G.WS_USED = 0x4400000
G.PROF = 0x4000000
G.KN = KNL[0]
SC = "sc0 sc1"
SCL = os.environ.get("SCL", "sc1")
SPIN_MAX = 200000
BMAX = float(os.environ.get('BMAX', '64'))

PRIO_IT = int(os.environ.get('PRIO_IT', '7'))
WARM = int(os.environ.get('WARM', '1'))
CODEPF = int(os.environ.get('CODEPF', '0'))
FAST = int(os.environ.get('FAST', '1'))
CZERO = int(os.environ.get('CZERO', '1'))


_uid = [0]
FSF = os.environ.get('FSF', '')


def hstore(a, insts):
    _uid[0] += 1
    u = _uid[0]
    a("s_cmp_lg_u32 s61, 0")
    a(f"s_cbranch_scc1 HS{u}_f")
    for i in insts:
        a(f"{i} {SC}")
    a(f"s_branch HS{u}_e")
    a(f"HS{u}_f:")
    for i in insts:
        a(i + (" " + FSF if 'dwordx4' in i else ""))
    a(f"HS{u}_e:")


def publish(a, epoch, tag):
    a("s_waitcnt vmcnt(0)")
    a("s_barrier")
    a("s_cmp_lg_u32 s3, 0")
    a(f"s_cbranch_scc1 {tag}_np")
    a(f"v_mov_b32 v5, {epoch}")
    a("v_mov_b32 v6, 0")
    a("v_cmp_eq_u32 vcc, 0, v1")
    a("s_and_saveexec_b64 s[38:39], vcc")
    hstore(a, ["buffer_store_dword v5, v6, s[8:11], s40 offen"])
    a("s_mov_b64 exec, s[38:39]")
    a(f"{tag}_np:")


def wait_flag(a, epoch, tag):
    a("v_mov_b32 v6, 0")
    a("s_mov_b32 s37, 0")
    a(f"{tag}_poll:")
    a(f"buffer_load_dword v5, v6, s[8:11], s41 offen {SC}")
    a("s_waitcnt vmcnt(0)")
    a("v_readfirstlane_b32 s36, v5")
    a("s_add_u32 s37, s37, 1")
    a(f"s_cmp_ge_u32 s36, {epoch}")
    a(f"s_cbranch_scc1 {tag}_go")
    a(f"s_cmp_gt_u32 s37, {SPIN_MAX}")
    a(f"s_cbranch_scc1 {tag}_go")
    a("s_sleep 1")
    a(f"s_branch {tag}_poll")
    a(f"{tag}_go:")


def ld(a, dst, sbase, idx, stmp, flags=""):
    hi, lo = idx // 4, idx % 4
    if hi == 0:
        so = f"s{sbase}"
    else:
        a(f"s_add_u32 s{stmp}, s{sbase}, {hi*4096}")
        so = f"s{stmp}"
    a(f"buffer_load_dwordx4 {dst}, v2, s[8:11], {so} offen offset:{lo*1024} {flags}")


def reduce8(a, ACC, DST, lds_base=0, pre_barrier=False):
    a("s_lshl_b32 s32, s3, 11")
    a("v_add_u32 v5, s32, v2")
    a("v_add_u32 v6, 0x10000, v5")
    a("s_lshl_b32 s32, s3, 14")
    a("v_add_u32 v7, s32, v2")
    a.nop(12)
    if pre_barrier:
        a("s_waitcnt lgkmcnt(0)")
        a("s_barrier")
    for p in range(8):
        for q in range(2):
            off = (p % 4) * 16384 + q * 1024
            a(f"ds_write_b128 v{5 if p < 4 else 6}, {vr(ACC+8*p+4*q,4)} offset:{off}")
    a("s_waitcnt lgkmcnt(0)")
    a("s_barrier")
    for s in range(8):
        for q in range(2):
            a(f"ds_read_b128 {vr(ACC+8*s+4*q,4)}, v7 offset:{s*2048+q*1024}")
    for s in range(0, 8, 2):
        a(f"s_waitcnt lgkmcnt({12-2*s})")
        for r in range(8):
            if s == 0:
                a(f"v_add_f32 v{DST+r}, v{ACC+r}, v{ACC+8+r}")
            else:
                a(f"v_add_f32 v{ACC+8*s+r}, v{ACC+8*s+r}, v{ACC+8*s+8+r}")
                a(f"v_add_f32 v{DST+r}, v{DST+r}, v{ACC+8*s+r}")


STATQ = 131072
KVS = STATQ + 8192
STAT2 = KVS + 16384
CSP = STAT2 + 256
CSP2 = CSP + 3072


def qkv_tail(a, T, end, QN, KVN, KNN, get_csq, get_csk, get_csv):
    a("s_lshl_b32 s32, s43, 3")
    a(f"s_add_u32 s32, s32, {STATQ}")
    a("v_add_u32 v7, s32, v2")
    for s in range(8):
        a(f"ds_read_b64 {vr(40+2*s,2)}, v7 offset:{s*1024}")
    a("s_waitcnt lgkmcnt(0)")
    for s in range(1, 8):
        a(f"v_add_f32 v40, v40, v{40+2*s}")
        a(f"v_add_f32 v41, v41, v{41+2*s}")
    half_sum(a, 40, 42)
    half_sum(a, 41, 42)
    a(f"v_mul_f32 v40, {f2u(1.0/512):#x}, v40")
    a(f"v_mul_f32 v41, {f2u(1.0/512):#x}, v41")
    a("v_fma_f32 v41, -v40, v40, v41")
    a("v_max_f32 v41, 0, v41")
    a(f"v_add_f32 v41, {f2u(EPS):#x}, v41")
    a("v_rsq_f32 v41, v41")
    a.nop(1)
    a("v_mul_f32 v42, v40, v41")
    a("v_sub_f32 v42, 0, v42")
    a(f"v_mul_f32 v43, {f2u(QS):#x}, v41")
    a(f"v_mul_f32 v44, {f2u(QS):#x}, v42")
    get_csq()
    for r in range(8):
        a(f"v_mul_f32 v{16+r}, v44, v{16+r}")
        a(f"v_fma_f32 v{8+r}, v{8+r}, v43, v{16+r}")
    for q in range(4):
        a(f"v_cvt_pk_bf16_f32 v{24+q}, v{8+2*q}, v{9+2*q}")
    a(f"s_add_u32 s23, s42, {QN:#x}")
    a("buffer_store_dwordx4 v[24:27], v2, s[8:11], s23 offen")
    a("s_cmp_ge_u32 s5, 6")
    a(f"s_cbranch_scc1 {end}")
    a("s_lshr_b32 s32, s5, 2")
    a("s_cmp_eq_u32 s5, 1")
    a("s_cselect_b32 s32, 1, s32")
    a("s_lshl_b32 s32, s32, 1")
    a("s_cmp_lg_u32 s3, s32")
    a(f"s_cbranch_scc1 {end}")
    a(f"v_add_u32 v7, {KVS}, v2")
    for s in range(8):
        for q in range(2):
            a(f"ds_read_b128 {vr(64+8*s+4*q,4)}, v7 offset:{s*2048+q*1024}")
    a(f"s_mul_i32 s33, s45, {KVT}")
    a(f"s_add_u32 s33, s33, {KVN:#x}")
    a("s_waitcnt lgkmcnt(0)")
    for s in range(1, 8):
        for r in range(8):
            a(f"v_add_f32 v{64+r}, v{64+r}, v{64+8*s+r}")
    a("s_cmp_ge_u32 s5, 2")
    a(f"s_cbranch_scc1 {T}_finV")
    a("v_mov_b32 v45, 0")
    get_csk()
    for r in range(8):
        a(f"v_mul_f32 v{16+r}, v42, v{16+r}")
        a(f"v_fma_f32 v{64+r}, v{64+r}, v41, v{16+r}")
        a(f"v_fma_f32 v45, v{64+r}, v{64+r}, v45")
    for q in range(4):
        a(f"v_cvt_pk_bf16_f32 v{28+q}, v{64+2*q}, v{65+2*q}")
    a("buffer_store_dwordx4 v[28:31], v2, s[8:11], s33 offen")
    half_sum(a, 45, 46)
    a("s_lshl_b32 s32, s45, 7")
    a(f"s_add_u32 s32, s32, {KNN:#x}")
    a("v_lshlrev_b32 v46, 2, v3")
    a("v_cmp_gt_u32 vcc, 32, v1")
    a("s_and_saveexec_b64 s[38:39], vcc")
    a("buffer_store_dword v45, v46, s[8:11], s32 offen")
    a(f"s_branch {end}")
    a(f"{T}_finV:")
    a("v_lshlrev_b32 v7, 2, v3")
    a(f"v_add_u32 v7, {STAT2}, v7")
    a("ds_write_b32 v7, v41")
    a("ds_write_b32 v7, v42 offset:128")
    a("s_and_b32 s32, s5, 1")
    a("s_lshl_b32 s32, s32, 6")
    a(f"s_add_u32 s32, s32, {STAT2}")
    a("v_lshlrev_b32 v7, 4, v4")
    a("v_add_u32 v7, s32, v7")
    get_csv()
    a("s_waitcnt lgkmcnt(0)")
    for q in range(2):
        a(f"ds_read_b128 {vr(16+4*q,4)}, v7 offset:{32*q}")
        a(f"ds_read_b128 {vr(24+4*q,4)}, v7 offset:{128+32*q}")
    a("s_waitcnt lgkmcnt(0)")
    for r in range(8):
        a(f"v_mul_f32 v{24+r}, v47, v{24+r}")
        a(f"v_fma_f32 v{64+r}, v{64+r}, v{16+r}, v{24+r}")
    for q in range(4):
        a(f"v_cvt_pk_bf16_f32 v{32+q}, v{64+2*q}, v{65+2*q}")
    a("v_cmp_eq_u32 s[38:39], 0, v3")
    a("v_mov_b32 v45, 0x3f803f80")
    a("v_mov_b32 v46, 0")
    a("v_cndmask_b32 v45, v46, v45, s[38:39]")
    a("v_cmp_le_u32 vcc, 16, v3")
    a("v_xor_b32 v7, 16, v3")
    a("v_lshlrev_b32 v7, 4, v7")
    for q in range(4):
        a(f"v_cndmask_b32 v{32+q}, v45, v{32+q}, vcc")
    a(f"v_mul_u32_u24 v46, {VH}, v4")
    a("v_add_u32 v7, v7, v46")
    a("s_and_b32 s32, s5, 1")
    a(f"s_mul_i32 s32, s32, {VU}")
    a("s_add_u32 s33, s33, s32")
    a("v_cmp_gt_u32 s[38:39], 2, v3")
    a("s_or_b64 vcc, vcc, s[38:39]")
    a("s_and_saveexec_b64 s[38:39], vcc")
    a("buffer_store_dwordx4 v[32:35], v7, s[8:11], s33 offen offset:1024")


def piece_sgprs(a):
    a("s_lshr_b32 s32, s3, 1")
    a("s_and_b32 s43, s32, 1")
    a("s_lshr_b32 s44, s3, 2")
    a("s_lshl_b32 s45, s4, 1")
    a("s_add_u32 s45, s45, s43")
    a("s_lshl_b32 s46, s5, 1")
    a("s_add_u32 s46, s46, s44")
    a("s_lshl_b32 s42, s45, 5")
    a("s_lshl_b32 s32, s46, 1")
    a("s_add_u32 s42, s42, s32")
    a("s_and_b32 s47, s3, 1")
    a("s_add_u32 s42, s42, s47")
    a("s_lshl_b32 s42, s42, 10")


def code_srd(a, d, tag):
    a(f"s_getpc_b64 s[{d}:{d+1}]")
    a(f"{tag}_pc:")
    a(f"s_add_u32 s{d}, s{d}, f1_kernel-{tag}_pc")
    a(f"s_addc_u32 s{d+1}, s{d+1}, {'-1' if tag != 'K0' else '0'}")
    a(f"s_mov_b32 s{d+2}, code_end-f1_kernel")
    a(f"s_mov_b32 s{d+3}, 0x00020000")


def gen_F(a, L):
    last = (L == 1)
    name = f"f{L+1}_kernel"
    T = f"F{L}"
    a.begin(name)
    end = f"{name}_end"
    prologue(a, end, out_ptr=True, out_off=(64 if last else 0))
    a.srd(16, 12, 2048 * 512 * 2)
    XF, QF, OF, X1F, HF, KVF, KN = XFL[L], QFL[L], OFL[L], X1FL[L], HFL[L], KVFL[L], KNL[L]
    EP = 4 * L
    SCR = KVF_BYTES
    KMX = SCR + 8 * 2304
    Q = (8, 12)
    C = 16
    O = (32, 48)
    S = (64, 80)
    P = (96, 104)
    E = 112
    KB = (128, 132)
    VB = (136, 144)
    a("s_and_b32 s20, s3, 3")
    a("s_lshr_b32 s30, s3, 2")
    a("s_and_b32 s21, s20, 1")
    a("s_lshl_b32 s21, s21, 1")
    a("s_lshl_b32 s22, s5, 2")
    a("s_add_u32 s21, s21, s22")
    a("s_lshr_b32 s22, s20, 1")
    a("s_lshl_b32 s23, s4, 1")
    a("s_add_u32 s22, s22, s23")
    a("s_lshl_b32 s22, s22, 5")
    a("s_add_u32 s22, s22, s21")
    a("s_add_u32 s23, s22, s30")
    a("s_xor_b32 s24, s30, 1")
    a("s_add_u32 s24, s22, s24")
    a("s_lshl_b32 s22, s23, 10")
    a("s_lshl_b32 s24, s24, 10")
    a(f"s_add_u32 s23, s22, {QF:#x}")
    a(f"s_add_u32 s24, s24, {QF:#x}")
    a(f"buffer_load_dwordx4 {vr(Q[0],4)}, v2, s[8:11], s23 offen")
    a(f"buffer_load_dwordx4 {vr(Q[1],4)}, v2, s[8:11], s24 offen")
    a("s_lshl_b32 s23, s3, 10")
    a(f"s_add_u32 s23, s23, {KN:#x}")
    a(f"buffer_load_dwordx4 {vr(E,4)}, v2, s[8:11], s23 offen")
    a("s_lshr_b32 s24, s3, 1")
    a("s_lshl_b32 s24, s24, 10")
    a("s_and_b32 s25, s3, 1")
    a(f"s_mul_i32 s25, s25, {32*KVT}")
    a("s_add_u32 s34, s24, s25")
    a(f"s_add_u32 s35, s34, {KVF:#x}")

    def dma():
        a("s_mov_b32 m0, s34")
        a("s_add_u32 s34, s34, 4096")
        a("buffer_load_dwordx4 v2, s[8:11], s35 offen lds")
        a("s_add_u32 s35, s35, 4096")
    for i in range(6):
        dma()
    a("s_lshl_b32 s40, s4, 8")
    a(f"s_add_u32 s40, s40, {FLAGS:#x}")
    a("s_lshl_b32 s41, s3, 2")
    a("s_add_u32 s41, s41, s40")
    a("s_lshl_b32 s32, s5, 2")
    a("s_add_u32 s40, s40, s32")
    piece_sgprs(a)
    a("s_getreg_b32 s61, hwreg(HW_REG_XCC_ID)")
    a("s_and_b32 s61, s61, 15")
    a("s_add_u32 s61, s61, 1")
    a("s_cmp_lg_u32 s3, 0")
    a(f"s_cbranch_scc1 {T}_noxid")
    a("v_mov_b32 v5, s61")
    a("v_mov_b32 v6, 0")
    a("v_cmp_eq_u32 vcc, 0, v1")
    a("s_and_saveexec_b64 s[38:39], vcc")
    a(f"buffer_store_dword v5, v6, s[8:11], s40 offen offset:{64+32*L} {SC}")
    a("s_mov_b64 exec, s[38:39]")
    a(f"{T}_noxid:")
    a("v_min_u32 v6, 17, v3")
    a("v_mov_b32 v5, 16")
    a("v_cmp_eq_u32 vcc, 20, v3")
    a(f"s_mul_i32 s25, s30, {32*KVT}")
    a.nop(1)
    a("v_cndmask_b32 v6, v6, v5, vcc")
    a("v_lshlrev_b32 v6, 4, v6")
    a(f"v_mul_u32_u24 v5, {VH}, v4")
    a("v_add3_u32 v158, v6, v5, 64")
    a("v_add_u32 v158, 960, v158")
    a("v_add_u32 v156, s25, v2")
    a("v_add_u32 v157, s25, v158")
    a("s_waitcnt vmcnt(6)")
    a("v_mov_b32 v5, 0")
    a("v_mov_b32 v6, 0")
    for q in range(4):
        a(f"v_dot2_f32_bf16 v5, v{Q[0]+q}, v{Q[0]+q}, v5")
        a(f"v_dot2_f32_bf16 v6, v{Q[1]+q}, v{Q[1]+q}, v6")
    a.nop(3)
    half_sum(a, 5, 154)
    half_sum(a, 6, 154)
    a("v_max_f32 v5, v5, v6")
    a(f"v_max3_f32 v7, v{E}, v{E+1}, v{E+2}")
    a(f"v_max_f32 v7, v7, v{E+3}")
    for off in (0x041F, 0x081F, 0x101F, 0x201F, 0x401F):
        a(f"ds_swizzle_b32 v6, v5 offset:{off:#x}")
        a(f"ds_swizzle_b32 v154, v7 offset:{off:#x}")
        a("s_waitcnt lgkmcnt(0)")
        a("v_max_f32 v5, v5, v6")
        a("v_max_f32 v7, v7, v154")
    half_sum(a, 7, 154, op="v_max_f32")
    a("v_readfirstlane_b32 s63, v5")
    a("s_lshl_b32 s23, s3, 2")
    a(f"s_add_u32 s23, s23, {KMX}")
    a("v_mov_b32 v6, s23")
    a("ds_write_b32 v6, v7")
    for r in range(16):
        a(f"v_mov_b32 v{O[0]+r}, 0")
        a(f"v_mov_b32 v{O[1]+r}, 0")
        a(f"v_mov_b32 v{E+r}, 0")
    for r in range(8):
        a(f"v_mov_b32 v{P[1]+r}, 0")
        a(f"v_mov_b32 v{VB[1]+r}, 0")
    a("s_lshl_b32 s32, s5, 1")
    a("s_lshl_b32 s48, s32, 5")
    a("s_lshl_b32 s33, s3, 2")
    a("s_add_u32 s48, s48, s33")
    a("s_lshl_b32 s48, s48, 10")
    a(f"s_add_u32 s48, s48, {WOF:#x}")
    a("s_add_u32 s49, s48, 32768")
    a("s_min_u32 s32, s3, 6")
    a("s_mul_i32 s51, s5, 7")
    a("s_add_u32 s51, s51, s32")
    a("s_lshl_b32 s50, s51, 15")
    a(f"s_add_u32 s50, s50, {W1F:#x}")
    a(f"s_add_u32 s52, s42, {XF:#x}")
    pf = []
    for i in range(4):
        pf.append((ar(8 * i, 4), 48, i))
        pf.append((ar(8 * i + 4, 4), 49, i))
    if last:
        pf.append((ar(32, 4), 52, 0))
    else:
        a("v_lshlrev_b32 v159, 10, v3")
        a("v_lshl_add_u32 v159, v4, 3, v159")
        a("s_lshl_b32 s52, s45, 15")
        a("s_lshl_b32 s32, s46, 6")
        a("s_add_u32 s52, s52, s32")
        a("s_lshl_b32 s32, s47, 5")
        a("s_add_u32 s52, s52, s32")
        pf.append(None)
    for i in range(15):
        pf.append((ar(36 + 4 * i, 4), 50, i))
    a("s_waitcnt vmcnt(0) lgkmcnt(0)")
    a("s_barrier")
    a.stamp(2)
    a(f"ds_read_b128 {vr(KB[0],4)}, v156")
    a(f"ds_read_b128 {vr(KB[1],4)}, v156 offset:{KVT}")
    a(f"ds_read_b128 {vr(VB[0],4)}, v157")
    a(f"ds_read_b128 {vr(VB[0]+4,4)}, v157 offset:{VU}")
    a("s_cmp_lt_u32 s3, 4")
    a(f"s_cbranch_scc1 {T}_noprio")
    a("s_setprio 1")
    a(f"{T}_noprio:")
    a("s_waitcnt lgkmcnt(3)")
    a(f"v_mfma_f32_32x32x16_bf16 {vr(S[0],16)}, {vr(KB[0],4)}, {vr(Q[0],4)}, {'0' if CZERO else vr(C,16)}")
    a.nop(10)
    UN, PV1, PV2, DLY, NE = 4, 3, 6, 2, 16

    def body(extra, slots=(1, 4, 5)):
        for t in range(UN):
            for x in range(2):
                y = 1 - x
                ty = t if x == 0 else t + 1
                tv = t - 1 if x == 0 else t
                for i in range(8):
                    if i == 0:
                        if x == 1:
                            a("s_waitcnt lgkmcnt(0)")
                        a(f"v_mfma_f32_32x32x16_bf16 {vr(S[y],16)}, {vr(KB[ty%2],4)}, {vr(Q[y],4)}, {'0' if CZERO else vr(C,16)}")
                        if x == 1:
                            a(f"ds_read_b128 {vr(KB[t%2],4)}, v156 offset:{(t+2)*KVT}")
                            a(f"ds_read_b128 {vr(VB[(t+1)%2],4)}, v157 offset:{(t+1)*KVT}")
                            a(f"ds_read_b128 {vr(VB[(t+1)%2]+4,4)}, v157 offset:{(t+1)*KVT+VU}")
                    e = E + (2 * i) % NE
                    a(f"v_exp_f32 v{e}, v{S[x]+2*i}")
                    a(f"v_exp_f32 v{e+1}, v{S[x]+2*i+1}")
                    j = i - DLY
                    if j >= 0:
                        ej = E + (2 * j) % NE
                        a(f"v_cvt_pk_bf16_f32 v{P[x]+j}, v{ej}, v{ej+1}")
                    else:
                        ej = E + (2 * (j + 8)) % NE
                        a(f"v_cvt_pk_bf16_f32 v{P[y]+j+8}, v{ej}, v{ej+1}")
                    if i == PV1:
                        a(f"v_mfma_f32_32x32x16_bf16 {vr(O[y],16)}, {vr(VB[tv%2],4)}, {vr(P[y],4)}, {vr(O[y],16)}")
                    if i == PV2:
                        a(f"v_mfma_f32_32x32x16_bf16 {vr(O[y],16)}, {vr(VB[tv%2]+4,4)}, {vr(P[y]+4,4)}, {vr(O[y],16)}")
                    if i in slots and extra:
                        extra.pop(0)()
                if t == UN - 1 and x == 1:
                    a(f"v_add_u32 v156, {UN*KVT}, v156")
                    a(f"v_add_u32 v157, {UN*KVT}, v157")
                    a("s_add_u32 s29, s29, 1")
                    a("s_cmp_lg_u32 s29, 8")

    a("s_mov_b32 s29, 0")
    body([dma] * 11)
    body([])
    a("s_waitcnt vmcnt(0)")
    a("s_barrier")
    def rawres():
        a("buffer_load_dwordx2 a[32:33], v159, s[16:19], s52 offen")
        a("buffer_load_dwordx2 a[34:35], v159, s[16:19], s52 offen offset:16")
    pfl = [(lambda e=e: ld(a, e[0], e[1], e[2], 33)) if e else rawres for e in pf]
    body(pfl[0:8], (4,))
    body(pfl[8:16], (4,))
    tail = []
    if WARM:
        a("s_lshr_b32 s56, s4, 3")
        a("s_and_b32 s56, s56, 3")
        a("s_and_b32 s57, s56, 1")
        a("s_lshl_b32 s58, s5, 1")
        a("s_add_u32 s57, s57, s58")
        a("s_mul_i32 s57, s57, 112")
        a("s_mul_i32 s58, s3, 14")
        a("s_add_u32 s57, s57, s58")
        a("s_lshr_b32 s58, s56, 1")
        a("s_mul_i32 s58, s58, 7")
        a("s_add_u32 s57, s57, s58")
        a("s_lshl_b32 s57, s57, 10")
        a(f"s_add_u32 s57, s57, {W2F:#x}")
        a("s_lshl_b32 s58, s56, 12")
        a("s_add_u32 s58, s58, s50")
        a(f"s_add_u32 s58, s58, {15*1024}")
        a("s_and_b32 s59, s56, 1")
        a("s_lshl_b32 s59, s59, 15")
        a("s_lshr_b32 s60, s56, 1")
        a("s_lshl_b32 s60, s60, 11")
        a("s_add_u32 s59, s59, s60")
        a("s_add_u32 s59, s59, s48")
        a(f"s_add_u32 s59, s59, {(WQF - WOF) & 0xffffffff:#x}")
        for k, (n, sr) in enumerate(((56, 57), (40, 58), (16, 59))):
            if last and sr == 59:
                continue
            a(f"v_min_u32 v{152+k}, {n-1}, v1")
            a(f"v_lshlrev_b32 v{152+k}, 7, v{152+k}")
            tail.append(lambda k=k, sr=sr: a(f"buffer_load_dword v155, v{152+k}, s[8:11], s{sr} offen"))
    a("v_and_b32 v5, 7, v1")
    a("v_lshlrev_b32 v5, 2, v5")
    a("s_lshl_b32 s62, s4, 8")
    a(f"s_add_u32 s62, s62, {FLAGS:#x}")
    tail.append(lambda: a(f"buffer_load_dword v159, v5, s[8:11], s62 offen offset:{64+32*L} {SC}"))
    if TOUCH and (L == 0 or not REUSE):
        a(f"s_add_u32 s20, s22, {OF:#x}")
        a(f"s_add_u32 s21, s42, {X1F:#x}")
        a("s_lshl_b32 s23, s4, 1")
        a("s_mul_i32 s23, s23, 112")
        a("s_lshl_b32 s24, s51, 1")
        a("s_add_u32 s23, s23, s24")
        a("s_lshl_b32 s23, s23, 10")
        a(f"s_add_u32 s23, s23, {HF:#x}")
        a("s_add_u32 s24, s23, 1024")
        a(f"s_add_u32 s25, s23, {112*1024}")
        a("s_add_u32 s26, s25, 1024")
        a(f"s_add_u32 s27, s42, {XFL[1]:#x}")
        a(f"s_add_u32 s28, s42, {QFL[1]:#x}")
        a("v_mov_b32 v6, s20")
        for k, sr in enumerate((21, 23, 24, 25, 26, 27, 28)):
            a(f"v_mov_b32 v7, s{sr}")
            a(f"v_cmp_le_u32 vcc, {8*(k+1)}, v1")
            a.nop(2)
            a("v_cndmask_b32 v6, v6, v7, vcc")
        a("v_and_b32 v7, 7, v1")
        a("v_lshl_add_u32 v6, v7, 7, v6")
        tail.append(lambda: a("buffer_load_dword v7, v6, s[8:11], 0 offen"))
    if TOUCH2:
        if last:
            a("v_lshlrev_b32 v6, 10, v3")
            a("s_lshl_b32 s20, s45, 15")
            a("s_lshl_b32 s21, s46, 6")
            a("s_add_u32 s20, s20, s21")
            tail.append(lambda: a("buffer_load_dword v7, v6, s[16:19], s20 offen"))
        else:
            a(f"s_mul_i32 s31, s45, {KVT}")
            a(f"s_add_u32 s31, s31, {KVFL[1]:#x}")
            tail.append(lambda: a("buffer_load_dword v155, v154, s[8:11], s31 offen"))
    body(pfl[16:24] + tail, (1, 5))
    a(f"{T}_loop:")
    a(f"s_cmp_lg_u32 s29, {PRIO_IT}")
    a(f"s_cbranch_scc1 {T}_prio2")
    a("s_setprio 0")
    a(f"{T}_prio2:")
    body([])
    a(f"s_cbranch_scc1 {T}_loop")
    a("s_waitcnt vmcnt(0)")
    for j in range(8 - DLY, 8):
        ej = E + (2 * j) % NE
        a(f"v_cvt_pk_bf16_f32 v{P[1]+j}, v{ej}, v{ej+1}")
    a.nop(2)
    a(f"v_mfma_f32_32x32x16_bf16 {vr(O[1],16)}, {vr(VB[1],4)}, {vr(P[1],4)}, {vr(O[1],16)}")
    a(f"v_mfma_f32_32x32x16_bf16 {vr(O[1],16)}, {vr(VB[1]+4,4)}, {vr(P[1]+4,4)}, {vr(O[1],16)}")
    a("s_mul_i32 s25, s3, 2304")
    a(f"s_add_u32 s25, s25, {SCR}")
    a("v_add_u32 v5, s25, v2")
    a("v_lshlrev_b32 v6, 2, v1")
    a("v_add_u32 v6, s25, v6")
    a("s_xor_b32 s25, s3, 4")
    a("s_mul_i32 s25, s25, 2304")
    a(f"s_add_u32 s25, s25, {SCR}")
    a("v_add_u32 v7, s25, v2")
    a("s_waitcnt vmcnt(0)")
    a("s_mov_b32 s37, 0")
    a("v_and_b32 v153, 7, v1")
    a("v_lshlrev_b32 v153, 2, v153")
    a(f"{T}_xchk:")
    a("v_cmp_eq_u32 vcc, 0, v159")
    a("s_cmp_eq_u64 vcc, 0")
    a(f"s_cbranch_scc1 {T}_xok")
    a("s_add_u32 s37, s37, 1")
    a(f"s_cmp_gt_u32 s37, {SPIN_MAX}")
    a(f"s_cbranch_scc1 {T}_xok")
    a("s_sleep 1")
    a(f"buffer_load_dword v159, v153, s[8:11], s62 offen offset:{64+32*L} {SC}")
    a("s_waitcnt vmcnt(0)")
    a(f"s_branch {T}_xchk")
    a(f"{T}_xok:")
    a("v_cmp_ne_u32 vcc, s61, v159")
    a("s_cmp_eq_u64 vcc, 0")
    a(f"s_cselect_b32 s61, {FAST}, 0")
    a("v_lshlrev_b32 v154, 2, v1")
    a("v_add_u32 v154, s25, v154")
    a("s_waitcnt lgkmcnt(0)")
    a.nop(8)
    a(f"ds_write_b128 v5, {vr(O[1],4)}")
    a(f"ds_write_b128 v5, {vr(O[1]+4,4)} offset:1024")
    a(f"ds_write_b32 v6, v{O[1]+8} offset:2048")
    a("s_waitcnt lgkmcnt(0)")
    a("s_barrier")
    a(f"ds_read_b128 {vr(S[0],4)}, v7")
    a(f"ds_read_b128 {vr(S[0]+4,4)}, v7 offset:1024")
    a(f"ds_read_b32 v{S[0]+8}, v154 offset:2048")
    a(f"v_mov_b32 v5, {KMX}")
    a(f"ds_read_b128 {vr(S[1],4)}, v5")
    a(f"ds_read_b128 {vr(S[1]+4,4)}, v5 offset:16")
    a("s_waitcnt lgkmcnt(0)")
    for r in range(9):
        a(f"v_add_f32 v{O[0]+r}, v{O[0]+r}, v{S[0]+r}")
    a(f"v_max3_f32 v5, v{S[1]}, v{S[1]+1}, v{S[1]+2}")
    a(f"v_max3_f32 v5, v5, v{S[1]+3}, v{S[1]+4}")
    a(f"v_max3_f32 v5, v5, v{S[1]+5}, v{S[1]+6}")
    a(f"v_max_f32 v5, v5, v{S[1]+7}")
    a("v_mul_f32 v5, s63, v5")
    a(f"v_mov_b32 v6, {f2u(BMAX*BMAX):#x}")
    a("v_cmp_nle_f32 vcc, v5, v6")
    a("s_cmp_eq_u64 vcc, 0")
    a(f"s_cbranch_scc1 {T}_afin")
    a("v_mov_b32 v156, v2")
    a("v_mov_b32 v6, 0xff800000")
    a("s_mov_b32 s29, 64")
    a(f"{T}_fb:")
    a(f"ds_read_b128 {vr(KB[0],4)}, v156")
    a(f"v_add_u32 v156, {KVT}, v156")
    a("s_waitcnt lgkmcnt(0)")
    a(f"v_mfma_f32_32x32x16_bf16 {vr(S[0],16)}, {vr(KB[0],4)}, {vr(Q[0],4)}, 0")
    a.nop(16)
    for i in range(8):
        a(f"v_max3_f32 v6, v6, v{S[0]+2*i}, v{S[0]+2*i+1}")
    a("s_sub_u32 s29, s29, 1")
    a("s_cmp_lg_u32 s29, 0")
    a(f"s_cbranch_scc1 {T}_fb")
    half_sum(a, 6, 7, op="v_max_f32")
    a("v_sub_f32 v6, 0, v6")
    for r in range(16):
        a(f"v_mov_b32 v{C+r}, v6")
        a(f"v_mov_b32 v{O[0]+r}, 0")
    a("v_mov_b32 v156, v2")
    a("v_mov_b32 v157, v158")
    a("s_mov_b32 s29, 64")
    a(f"{T}_fb2:")
    a(f"ds_read_b128 {vr(KB[0],4)}, v156")
    a(f"ds_read_b128 {vr(VB[0],4)}, v157")
    a(f"ds_read_b128 {vr(VB[0]+4,4)}, v157 offset:{VU}")
    a(f"v_add_u32 v156, {KVT}, v156")
    a(f"v_add_u32 v157, {KVT}, v157")
    a("s_waitcnt lgkmcnt(0)")
    a(f"v_mfma_f32_32x32x16_bf16 {vr(S[0],16)}, {vr(KB[0],4)}, {vr(Q[0],4)}, {vr(C,16)}")
    a.nop(16)
    for i in range(16):
        a(f"v_exp_f32 v{S[0]+i}, v{S[0]+i}")
    a.nop(1)
    for i in range(8):
        a(f"v_cvt_pk_bf16_f32 v{P[0]+i}, v{S[0]+2*i}, v{S[0]+2*i+1}")
    a.nop(2)
    a(f"v_mfma_f32_32x32x16_bf16 {vr(O[0],16)}, {vr(VB[0],4)}, {vr(P[0],4)}, {vr(O[0],16)}")
    a(f"v_mfma_f32_32x32x16_bf16 {vr(O[0],16)}, {vr(VB[0]+4,4)}, {vr(P[0]+4,4)}, {vr(O[0],16)}")
    a.nop(16)
    a("s_sub_u32 s29, s29, 1")
    a("s_cmp_lg_u32 s29, 0")
    a(f"s_cbranch_scc1 {T}_fb2")
    a(f"{T}_afin:")
    a(f"v_rcp_f32 v6, v{O[0]+8}")
    a.nop(1)
    for r in range(8):
        a(f"v_mul_f32 v{O[0]+r}, v{O[0]+r}, v6")
    for q in range(4):
        a(f"v_cvt_pk_bf16_f32 v{S[0]+q}, v{O[0]+2*q}, v{O[0]+2*q+1}")
    a(f"s_add_u32 s23, s22, {OF:#x}")
    hstore(a, [f"buffer_store_dwordx4 {vr(S[0],4)}, v2, s[8:11], s23 offen"])
    a.stamp(3)
    publish(a, EP + 1, f"{T}_p1")
    a("s_lshl_b32 s20, s4, 6")
    a("s_lshl_b32 s21, s3, 2")
    a("s_add_u32 s20, s20, s21")
    a("s_lshl_b32 s53, s20, 10")
    a(f"s_add_u32 s20, s53, {OF:#x}")
    a("s_add_u32 s21, s20, 32768")
    wait_flag(a, EP + 1, f"{T}_w1")
    a.stamp(4)
    for i in range(4):
        ld(a, vr(8 + 8 * i, 4), 20, i, 33, SCL)
        ld(a, vr(12 + 8 * i, 4), 21, i, 33, SCL)
    ACC = 64
    for i in range(4):
        a(f"s_waitcnt vmcnt({2*(3-i)})")
        for c in range(2):
            for r in range(2):
                t = 2 * c + r
                cin = "0" if i == 0 else vr(ACC + 16 * t, 16)
                a(f"v_mfma_f32_32x32x16_bf16 {vr(ACC+16*t,16)}, {ar(8*i+4*c,4)}, {vr(8+8*i+4*r,4)}, {cin}")
    for i in range(8):
        ld(a, ar(4 * i, 4), 50, 15 + i, 33)
    reduce8(a, ACC, 128)
    for q in range(4):
        a(f"v_accvgpr_read_b32 v{136+q}, a{32+q}")
    for q in range(4):
        a(f"v_lshlrev_b32 v{140}, 16, v{136+q}")
        a(f"v_and_b32 v{141}, 0xffff0000, v{136+q}")
        a(f"v_add_f32 v{128+2*q}, v{128+2*q}, v140")
        a(f"v_add_f32 v{129+2*q}, v{129+2*q}, v141")
    for q in range(4):
        a(f"v_cvt_pk_bf16_f32 v{136+q}, v{128+2*q}, v{129+2*q}")
    a(f"s_add_u32 s23, s42, {X1F:#x}")
    hstore(a, ["buffer_store_dwordx4 v[136:139], v2, s[8:11], s23 offen"])
    for q in range(4):
        a(f"v_accvgpr_write_b32 a{32+q}, v{136+q}")
    a.stamp(5)
    publish(a, EP + 2, f"{T}_p2")
    a(f"s_add_u32 s20, s53, {X1F:#x}")
    a("s_add_u32 s21, s20, 32768")
    wait_flag(a, EP + 2, f"{T}_w2")
    a.stamp(6)
    for i in range(4):
        ld(a, vr(32 + 4 * i, 4), 20, i, 33, SCL)
    for i in range(4):
        ld(a, vr(48 + 4 * i, 4), 21, i, 33, SCL)
    for i in range(9):
        ld(a, vr(64 + 4 * i, 4), 50, 23 + i, 33)
    a("v_lshlrev_b32 v7, 4, v4")
    a("s_lshl_b32 s27, s51, 7")
    a(f"s_add_u32 s27, s27, {CS1:#x}")
    for q in range(4):
        a(f"buffer_load_dwordx4 {vr(100+4*q,4)}, v7, s[8:11], s27 offen offset:{32*q}")
    STAT = 65536
    a("s_lshl_b32 s21, s3, 12")
    a("v_add_u32 v5, s21, v2")
    a("s_mov_b32 s28, 0x3f803f80")
    for r in range(8):
        a(f"v_mov_b32 v{8+r}, 0")
    for rr in range(2):
        a(f"s_waitcnt vmcnt({13+4*(1-rr)})")
        for i in range(4):
            a(f"ds_write_b128 v5, {vr(32+16*rr+4*i,4)} offset:{32768*rr+1024*i}")
        for i in range(16):
            x = 32 + 16 * rr + i
            k = 4 * (i % 2)
            a(f"v_dot2_f32_bf16 v{8+k+2*rr}, v{x}, s28, v{8+k+2*rr}")
            a(f"v_dot2_f32_bf16 v{9+k+2*rr}, v{x}, v{x}, v{9+k+2*rr}")
    a("s_lshl_b32 s21, s3, 10")
    a(f"s_add_u32 s21, s21, {STAT}")
    a("v_add_u32 v5, s21, v2")
    a.nop(2)
    for r in range(4):
        a(f"v_add_f32 v{8+r}, v{8+r}, v{12+r}")
    a("ds_write_b128 v5, v[8:11]")
    a("s_waitcnt lgkmcnt(0)")
    a("s_barrier")
    a.stamp(7)
    a("s_lshl_b32 s32, s5, 1")
    a("s_mul_i32 s54, s32, 112")
    a("s_mul_i32 s33, s3, 14")
    a("s_add_u32 s54, s54, s33")
    a("s_lshl_b32 s54, s54, 10")
    a(f"s_add_u32 s54, s54, {W2F:#x}")
    a(f"s_add_u32 s55, s54, {112*1024}")
    a("s_cmp_eq_u32 s3, 7")
    a(f"s_cbranch_scc1 {T}_cskip")
    CACC = 116

    def w1reg(i):
        if i < 15:
            return ar(36 + 4 * i, 4)
        if i < 23:
            return ar(4 * (i - 15), 4)
        return vr(64 + 4 * (i - 23), 4)

    CR = 6

    def rd(i):
        b = 8 + 8 * (i % CR)
        a(f"ds_read_b128 {vr(b,4)}, v2 offset:{i*1024}")
        a(f"ds_read_b128 {vr(b+4,4)}, v2 offset:{32768+i*1024}")
    def w2reg(j):
        if j < 23:
            return w1reg(j)
        return vr(136 + 4 * (j - 23), 4)
    for i in range(CR - 1):
        rd(i)
    for i in range(32):
        if i + CR - 1 < 32:
            rd(i + CR - 1)
        pend = min(32, i + CR) - i - 1
        if i == 23:
            a(f"s_waitcnt vmcnt(22) lgkmcnt({2*pend})")
        else:
            a(f"s_waitcnt lgkmcnt({2*pend})")
        b = 8 + 8 * (i % CR)
        for r in range(2):
            cin = "0" if i == 0 else vr(CACC + 16 * r, 16)
            a(f"v_mfma_f32_32x32x16_bf16 {vr(CACC+16*r,16)}, {w1reg(i)}, {vr(b+4*r,4)}, {cin}")
        if 1 <= i <= 23:
            j = i - 1
            ld(a, w2reg(j), 54 + (j & 1), j >> 1, 33)
    a(f"s_branch {T}_cepi")
    a(f"{T}_cskip:")
    for j in range(23):
        ld(a, w2reg(j), 54 + (j & 1), j >> 1, 33)
    a(f"{T}_cepi:")
    a.stamp(8)
    a("s_cmp_eq_u32 s3, 7")
    a(f"s_cbranch_scc1 {T}_cdone")
    a(f"v_add_u32 v5, {STAT}, v2")
    for w in range(8):
        a(f"ds_read_b128 {vr(32+4*w,4)}, v5 offset:{1024*w}")
    a("s_waitcnt lgkmcnt(0)")
    for w in range(1, 8):
        for r in range(4):
            a(f"v_add_f32 v{32+r}, v{32+r}, v{32+4*w+r}")
    for r in range(4):
        half_sum(a, 32 + r, 36)
    for r in range(2):
        m, x2 = 32 + 2 * r, 33 + 2 * r
        a(f"v_mul_f32 v{m}, {f2u(1.0/512):#x}, v{m}")
        a(f"v_mul_f32 v{x2}, {f2u(1.0/512):#x}, v{x2}")
        a(f"v_fma_f32 v{x2}, -v{m}, v{m}, v{x2}")
        a(f"v_max_f32 v{x2}, 0, v{x2}")
        a(f"v_add_f32 v{x2}, {f2u(EPS):#x}, v{x2}")
        a(f"v_rsq_f32 v{8+2*r}, v{x2}")
        a.nop(1)
        a(f"v_mul_f32 v{9+2*r}, v{m}, v{8+2*r}")
        a(f"v_sub_f32 v{9+2*r}, 0, v{9+2*r}")
    for rr in range(2):
        for r in range(16):
            a(f"v_mul_f32 v{40+r}, v{9+2*rr}, v{100+r}")
            a(f"v_fma_f32 v{CACC+16*rr+r}, v{CACC+16*rr+r}, v{8+2*rr}, v{40+r}")
        for q in range(8):
            a(f"v_cvt_pk_bf16_f32 v{16+8*rr+q}, v{CACC+16*rr+2*q}, v{CACC+16*rr+2*q+1}")
        for q in range(8):
            a(f"v_pk_max_i16 v{16+8*rr+q}, v{16+8*rr+q}, 0")
    a("s_lshl_b32 s26, s4, 1")
    a("s_mul_i32 s26, s26, 112")
    a("s_lshl_b32 s27, s51, 1")
    a("s_add_u32 s26, s26, s27")
    a("s_lshl_b32 s26, s26, 10")
    a(f"s_add_u32 s26, s26, {HF:#x}")
    a(f"s_add_u32 s27, s26, {112*1024}")
    hstore(a, ["buffer_store_dwordx4 v[16:19], v2, s[8:11], s26 offen",
               "buffer_store_dwordx4 v[20:23], v2, s[8:11], s26 offen offset:1024",
               "buffer_store_dwordx4 v[24:27], v2, s[8:11], s27 offen",
               "buffer_store_dwordx4 v[28:31], v2, s[8:11], s27 offen offset:1024"])
    a(f"{T}_cdone:")
    a.stamp(9)
    publish(a, EP + 3, f"{T}_p3")
    a("s_lshl_b32 s20, s4, 1")
    a("s_mul_i32 s20, s20, 112")
    a("s_mul_i32 s21, s3, 14")
    a("s_add_u32 s20, s20, s21")
    a("s_lshl_b32 s20, s20, 10")
    a(f"s_add_u32 s20, s20, {HF:#x}")
    a(f"s_add_u32 s21, s20, {112*1024}")
    wait_flag(a, EP + 3, f"{T}_w3")
    a.stamp(10)
    RING = 8
    DACC = 72

    def hld(i):
        b = 8 + 8 * (i % RING)
        ld(a, vr(b, 4), 20, i, 33, SCL)
        ld(a, vr(b + 4, 4), 21, i, 33, SCL)
    for i in range(RING):
        hld(i)
    def qreg(j):
        return w1reg(j)
    qpf = []
    if not last:
        a(f"s_add_u32 s48, s48, {(WQF - WOF) & 0xffffffff:#x}")
        a("s_add_u32 s49, s48, 32768")
        a("s_lshl_b32 s56, s3, 12")
        a(f"s_add_u32 s56, s56, {WKVF:#x}")
        a("v_lshlrev_b32 v156, 4, v4")
        a("v_lshlrev_b32 v157, 2, v3")
        a("s_lshl_b32 s57, s46, 7")
        a("s_lshl_b32 s33, s47, 6")
        a("s_add_u32 s57, s57, s33")
        a(f"s_add_u32 s57, s57, {CSQ:#x}")
        a(f"s_mov_b32 s58, {CSKV:#x}")
        for i in range(4):
            qpf.append(lambda i=i: ld(a, qreg(2 * i), 48, i, 33))
            qpf.append(lambda i=i: ld(a, qreg(2 * i + 1), 49, i, 33))
        for i in range(4):
            qpf.append(lambda i=i: ld(a, qreg(8 + i), 56, i, 33))
        for q in range(2):
            qpf.append(lambda q=q: a(f"buffer_load_dwordx4 {qreg(12+q)}, v156, s[8:11], s57 offen offset:{32*q}"))
        for q in range(2):
            qpf.append(lambda q=q: a(f"buffer_load_dwordx4 {qreg(14+q)}, v156, s[8:11], s58 offen offset:{32*q}"))
        qpf.append(lambda: a("buffer_load_dword a4, v157, s[8:11], s58 offen"))
    for j in range(23, 28):
        ld(a, w2reg(j), 54 + (j & 1), j >> 1, 33)

    def dloop(split, qpf):
        order = [('h', i) for i in range(RING)] + [('w', j) for j in range(23, 28)]
        for i in range(14):
            pos = order.index(('h', i))
            after = sum(2 if k == 'h' else 1 for (k, _) in order[pos + 1:])
            a(f"s_waitcnt vmcnt({after})")
            b = 8 + 8 * (i % RING)
            for c in range(2):
                for r in range(2):
                    t = 2 * c + r
                    cin = "0" if i == 0 else vr(DACC + 16 * t, 16)
                    a(f"v_mfma_f32_32x32x16_bf16 {vr(DACC+16*t,16)}, {w2reg(2*i+c)}, {vr(b+4*r,4)}, {cin}")
            if not split and i + RING < 14:
                hld(i + RING)
                order.append(('h', i + RING))
            elif split and i == RING - 1:
                poll3(0x70, f"{T}_w3b")
                for j in range(RING, 14):
                    hld(j)
                    order.append(('h', j))
            if i + RING >= 14 and (not split or i >= RING - 1):
                for _ in range(3):
                    k = sum(1 for (kk, _) in order if kk == 'q')
                    if qpf and k < 2 * i:
                        qpf.pop(0)()
                        order.append(('q', k))
        assert not qpf
    dloop(False, list(qpf))
    qpf = []
    a.stamp(11)
    assert not qpf
    reduce8(a, DACC, 8)
    for q in range(4):
        a(f"v_accvgpr_read_b32 v{16+q}, a{32+q}")
    for q in range(4):
        a(f"v_lshlrev_b32 v20, 16, v{16+q}")
        a(f"v_and_b32 v21, 0xffff0000, v{16+q}")
        a(f"v_add_f32 v{8+2*q}, v{8+2*q}, v20")
        a(f"v_add_f32 v{9+2*q}, v{9+2*q}, v21")
    for q in range(4):
        a(f"v_cvt_pk_bf16_f32 v{16+q}, v{8+2*q}, v{9+2*q}")
    if last:
        a.nop(2)
        a("v_permlane32_swap_b32 v16, v18")
        a("v_permlane32_swap_b32 v17, v19")
        a("v_lshlrev_b32 v5, 10, v3")
        a("v_lshl_add_u32 v5, v4, 4, v5")
        a("s_lshl_b32 s31, s45, 15")
        a("s_lshl_b32 s32, s46, 6")
        a("s_add_u32 s31, s31, s32")
        a("s_lshl_b32 s32, s47, 5")
        a("s_add_u32 s31, s31, s32")
        a("buffer_store_dwordx4 v[16:19], v5, s[16:19], s31 offen")
        a.stamp(12)
    else:
        XN, QN, KVN, KNN = XFL[1], QFL[1], KVFL[1], KNL[1]
        a(f"s_add_u32 s23, s42, {XN:#x}")
        hstore(a, ["buffer_store_dwordx4 v[16:19], v2, s[8:11], s23 offen"])
        a.stamp(12)
        publish(a, EP + 4, f"{T}_p4")
        a(f"s_add_u32 s20, s53, {XN:#x}")
        a("s_add_u32 s21, s20, 32768")
        a("s_mov_b32 s28, 0x3f803f80")
        wait_flag(a, EP + 4, f"{T}_w4")
        a.stamp(13)
        for i in range(4):
            ld(a, vr(8 + 8 * i, 4), 20, i, 33, SCL)
            ld(a, vr(12 + 8 * i, 4), 21, i, 33, SCL)
        for r in range(8):
            a(f"v_mov_b32 v{40+r}, 0")
        ACC = 64
        for i in range(4):
            a(f"s_waitcnt vmcnt({2*(3-i)})")
            for c in range(2):
                for r in range(2):
                    t = 2 * c + r
                    cin = "0" if i == 0 else vr(ACC + 16 * t, 16)
                    a(f"v_mfma_f32_32x32x16_bf16 {vr(ACC+16*t,16)}, {qreg(2*i+c)}, {vr(8+8*i+4*r,4)}, {cin}")
                    for q in range(4):
                        x = 8 + 8 * i + 4 * r + q
                        k = 40 + 4 * (q % 2) + 2 * r + c
                        if c == 0:
                            a(f"v_dot2_f32_bf16 v{k}, v{x}, s28, v{k}")
                        else:
                            a(f"v_dot2_f32_bf16 v{k}, v{x}, v{x}, v{k}")
        a("s_lshl_b32 s32, s3, 11")
        a(f"s_add_u32 s32, s32, {KVS}")
        a("v_add_u32 v7, s32, v2")
        a("s_cmp_ge_u32 s5, 6")
        a(f"s_cbranch_scc1 {T}_kvdone")
        for task in range(6):
            if task < 5:
                a(f"s_cmp_lg_u32 s5, {task}")
                a(f"s_cbranch_scc1 {T}_kvt{task+1}")
            kind = 'K' if task < 2 else 'V'
            r = task if task < 2 else (task - 2) >> 1
            u = 0 if task < 2 else (task & 1)
            for i in range(4):
                cin = "0" if i == 0 else vr(128, 16)
                if kind == 'K':
                    a(f"v_mfma_f32_32x32x16_bf16 {vr(128,16)}, {qreg(8+i)}, {vr(8+8*i+4*r,4)}, {cin}")
                else:
                    a(f"v_mfma_f32_32x32x16_bf16 {vr(128,16)}, {vr(8+8*i+4*r,4)}, {qreg(8+i)}, {cin}")
            a.nop(16)
            a(f"ds_write_b128 v7, {vr(128+8*u,4)}")
            a(f"ds_write_b128 v7, {vr(132+8*u,4)} offset:1024")
            if task < 5:
                a(f"s_branch {T}_kvdone")
                a(f"{T}_kvt{task+1}:")
        a(f"{T}_kvdone:")
        a("s_lshl_b32 s32, s3, 10")
        a(f"s_add_u32 s32, s32, {STATQ}")
        a("v_add_u32 v7, s32, v2")
        for r in range(4):
            a(f"v_add_f32 v{40+r}, v{40+r}, v{44+r}")
        a("ds_write_b128 v7, v[40:43]")
        reduce8(a, ACC, 8)
        a.stamp(14)
        qkv_tail(a, T, end, QN, KVN, KNN,
                 lambda: [a(f"v_accvgpr_read_b32 v{16+r}, a{84+r}") for r in range(8)],
                 lambda: [a(f"v_accvgpr_read_b32 v{16+r}, a{92+r if r < 4 else r-4}") for r in range(8)],
                 lambda: a("v_accvgpr_read_b32 v47, a4"))
    a(f"{end}:")
    a.stamp_flush(16)
    a(f"{end}x:")
    a("s_endpgm")
    a.desc(name, 160, agpr=96)
    return SCR + 8 * 2304 + 64


def tr_addr(a, dst, RS, t1, t2):
    a(f"v_lshrrev_b32 v{t1}, 5, v1")
    a(f"v_lshlrev_b32 v{t1}, 2, v{t1}")
    a(f"v_bfe_u32 v{t2}, v1, 2, 2")
    a(f"v_add_u32 v{t1}, v{t1}, v{t2}")
    a(f"v_mul_u32_u24 v{dst}, {RS}, v{t1}")
    a(f"v_bfe_u32 v{t1}, v1, 4, 1")
    a(f"v_lshlrev_b32 v{t1}, 5, v{t1}")
    a(f"v_and_b32 v{t2}, 3, v1")
    a(f"v_lshlrev_b32 v{t2}, 3, v{t2}")
    a(f"v_add3_u32 v{dst}, v{dst}, v{t1}, v{t2}")


def gen_K0(a):
    name = "k0_kernel"
    T = "K0"
    a.begin(name)
    end = f"{name}_end"
    a("s_cmp_ge_u32 s2, 256")
    a(f"s_cbranch_scc1 {end}x")
    a.stamp(0)
    a("s_load_dwordx16 s[16:31], s[0:1], 0")
    a("s_load_dwordx2 s[6:7], s[0:1], 80")
    a("v_and_b32 v1, 63, v0")
    a("v_lshrrev_b32 v2, 6, v0")
    a("v_and_b32 v3, 31, v1")
    a("v_readfirstlane_b32 s60, v2")
    a("v_lshrrev_b32 v4, 5, v1")
    a("v_lshlrev_b32 v2, 4, v1")
    a("s_and_b32 s4, s2, 31")
    a("s_lshr_b32 s5, s2, 5")
    a("s_and_b32 s3, s60, 7")
    a("s_waitcnt lgkmcnt(0)")
    a.srd(8, 6, G.WS_USED)
    a.srd(52, 20, 512 * 16 * 2)
    a.srd(56, 22, 512 * 16 * 2)
    a("s_mov_b32 s61, 0x3f803f80")
    a("s_cmp_ge_u32 s60, 8")
    a("s_cbranch_scc1 K0_prep")
    if os.environ.get('K0X', '') == 'qprio':
        a("s_setprio 3")
    a.stamp(1)
    a.srd(12, 16, 2048 * 512 * 2)
    a.srd(48, 18, 512 * 512 * 2)
    piece_sgprs(a)
    a("v_lshrrev_b32 v6, 3, v1")
    a("v_lshlrev_b32 v6, 10, v6")
    a("v_and_b32 v7, 7, v1")
    a("v_lshl_add_u32 v6, v7, 4, v6")
    a("s_lshl_b32 s20, s4, 16")
    a("s_lshl_b32 s22, s3, 7")
    a("s_add_u32 s20, s20, s22")
    for k in range(8):
        a(f"s_add_u32 s21, s20, {8192*k}")
        a(f"buffer_load_dwordx4 {vr(64+4*k,4)}, v6, s[12:15], s21 offen")
    a("v_lshrrev_b32 v7, 2, v1")
    a("v_lshlrev_b32 v7, 5, v7")
    a("v_and_b32 v5, 1, v1")
    a("v_lshl_add_u32 v7, v5, 4, v7")
    a("v_and_b32 v5, 2, v1")
    a("v_cmp_eq_u32 vcc, 0, v5")
    a("s_lshl_b32 s20, s3, 11")
    a("s_and_saveexec_b64 s[38:39], vcc")
    for i in range(4):
        a(f"buffer_load_dwordx4 {vr(96+4*i,4)}, v7, s[52:55], s20 offen offset:{512*i}")
    a("s_andn2_b64 exec, s[38:39], exec")
    for i in range(4):
        a(f"buffer_load_dwordx4 {vr(96+4*i,4)}, v7, s[56:59], s20 offen offset:{512*i}")
    a("s_mov_b64 exec, s[38:39]")
    a("s_lshl_b32 s22, s3, 16")
    a("s_lshl_b32 s23, s5, 7")
    a("s_add_u32 s22, s22, s23")
    a("s_lshl_b32 s23, s3, 13")
    for i in range(8):
        a(f"s_add_u32 m0, s23, {1024*i}")
        a(f"s_add_u32 s24, s22, {8192*i}")
        a("buffer_load_dwordx4 v6, s[48:51], s24 offen lds")
    a.stamp(2)
    if TOUCH2:
        a(f"s_add_u32 s24, s42, {QFL[0]:#x}")
        a(f"s_mul_i32 s25, s45, {KVT}")
        a(f"s_add_u32 s25, s25, {KVFL[0] - 1024:#x}")
        a("v_mov_b32 v5, s24")
        a("v_mov_b32 v6, s25")
        a("v_cmp_le_u32 vcc, 8, v1")
        a("v_min_u32 v7, 25, v1")
        a("v_lshlrev_b32 v7, 7, v7")
        a("v_cndmask_b32 v5, v5, v6, vcc")
        a("v_add_u32 v5, v5, v7")
        a("buffer_load_dword v0, v5, s[8:11], 0 offen")
    tr_addr(a, 56, 128, 5, 6)
    a("v_add_u32 v56, s23, v56")
    tr_addr(a, 57, 64, 5, 6)
    a("s_lshl_b32 s21, s3, 12")
    a("s_add_u32 s21, s21, 65536")
    a("v_add_u32 v57, s21, v57")
    a("v_lshrrev_b32 v5, 3, v1")
    a("v_and_b32 v6, 7, v1")
    a("v_xor_b32 v6, v6, v5")
    a("v_lshlrev_b32 v6, 4, v6")
    a("v_lshl_add_u32 v112, v5, 7, v6")
    a("v_add_u32 v112, s21, v112")
    a("v_and_b32 v5, 7, v3")
    a("v_lshlrev_b32 v5, 4, v5")
    a("v_lshl_add_u32 v5, v3, 7, v5")
    a("v_lshl_add_u32 v5, v4, 3, v5")
    a("v_add_u32 v113, s21, v5")
    a("v_add_u32 v114, s21, v2")
    for c in range(8):
        a(f"v_xor_b32 v{116+c}, {c<<4}, v113")
    for r in range(6):
        a(f"v_mov_b32 v{58+r}, 0")
    a("v_mov_b32 v7, 0")
    for r in range(2):
        a(f"s_waitcnt vmcnt({16+4*(1-r)+TOUCH2})")
        if r == 0:
            a.stamp(3)
        for j in range(4):
            a(f"ds_write_b128 v112, {vr(64+16*r+4*j,4)} offset:{1024*j}")
        for i in range(4):
            b = 8 + 8 * i + 4 * r
            a(f"ds_read_b64 {vr(b,2)}, v{116+2*i}")
            a(f"ds_read_b64 {vr(b+2,2)}, v{117+2*i}")
    a(f"s_waitcnt vmcnt({8+TOUCH2})")
    for i in range(4):
        a(f"ds_write_b128 v114, {vr(96+4*i,4)} offset:{1024*i}")
    for i in range(4):
        a(f"ds_read_b64_tr_b16 {vr(40+4*i,2)}, v57 offset:{16*i*64}")
        a(f"ds_read_b64_tr_b16 {vr(42+4*i,2)}, v57 offset:{(16*i+8)*64}")
    a("s_waitcnt lgkmcnt(0)")
    for r in range(16):
        a(f"v_dot2_f32_bf16 v7, v{40+r}, s61, v7")
    a("s_lshl_b32 s32, s3, 11")
    a(f"s_add_u32 s32, s32, {KVS}")
    a("v_add_u32 v6, s32, v2")
    a("s_cmp_ge_u32 s5, 6")
    a(f"s_cbranch_scc1 {T}_kvdone")
    for task in range(6):
        if task < 5:
            a(f"s_cmp_lg_u32 s5, {task}")
            a(f"s_cbranch_scc1 {T}_kvt{task+1}")
        kind = 'K' if task < 2 else 'V'
        r = task if task < 2 else (task - 2) >> 1
        u = 0 if task < 2 else (task & 1)
        for i in range(4):
            cin = "0" if i == 0 else vr(64, 16)
            if kind == 'K':
                a(f"v_mfma_f32_32x32x16_bf16 {vr(64,16)}, {vr(40+4*i,4)}, {vr(8+8*i+4*r,4)}, {cin}")
            else:
                a(f"v_mfma_f32_32x32x16_bf16 {vr(64,16)}, {vr(8+8*i+4*r,4)}, {vr(40+4*i,4)}, {cin}")
        a.nop(16)
        a(f"ds_write_b128 v6, {vr(64+8*u,4)}")
        a(f"ds_write_b128 v6, {vr(68+8*u,4)} offset:1024")
        if task < 5:
            a(f"s_branch {T}_kvdone")
            a(f"{T}_kvt{task+1}:")
    a(f"{T}_kvdone:")
    half_sum(a, 7, 5)
    a("s_mul_i32 s32, s3, 384")
    a(f"s_add_u32 s32, s32, {CSP}")
    a("v_lshlrev_b32 v6, 2, v3")
    a("v_add_u32 v6, s32, v6")
    a("ds_write_b32 v6, v7 offset:256")
    a(f"s_waitcnt vmcnt({TOUCH2})")
    a.stamp(4)

    def wrd(i):
        b = 40 + 8 * (i % 2)
        for c in range(2):
            a(f"ds_read_b64_tr_b16 {vr(b+4*c,2)}, v56 offset:{16*i*128+64*c}")
            a(f"ds_read_b64_tr_b16 {vr(b+4*c+2,2)}, v56 offset:{(16*i+8)*128+64*c}")
    wrd(0)
    ACC = 64
    for i in range(4):
        if i < 3:
            wrd(i + 1)
        a(f"s_waitcnt lgkmcnt({4 if i < 3 else 0})")
        b = 40 + 8 * (i % 2)
        for c in range(2):
            for r in range(2):
                t = 2 * c + r
                cin = "0" if i == 0 else vr(ACC + 16 * t, 16)
                a(f"v_mfma_f32_32x32x16_bf16 {vr(ACC+16*t,16)}, {vr(b+4*c,4)}, {vr(8+8*i+4*r,4)}, {cin}")
                for q in range(4):
                    x = 8 + 8 * i + 4 * r + q
                    k = 58 + 2 * r + c
                    if c == 0:
                        a(f"v_dot2_f32_bf16 v{k}, v{x}, s61, v{k}")
                    else:
                        a(f"v_dot2_f32_bf16 v{k}, v{x}, v{x}, v{k}")
                if r == 0:
                    for q in range(4):
                        a(f"v_dot2_f32_bf16 v{62+c}, v{b+4*c+q}, s61, v{62+c}")
    a("s_lshl_b32 s32, s3, 10")
    a(f"s_add_u32 s32, s32, {STATQ}")
    a("v_add_u32 v7, s32, v2")
    a.nop(2)
    a("ds_write_b128 v7, v[58:61]")
    half_sum(a, 62, 5)
    half_sum(a, 63, 5)
    a("ds_write_b32 v6, v62")
    a("ds_write_b32 v6, v63 offset:128")
    a.stamp(5)
    reduce8(a, ACC, 8, pre_barrier=True)
    a.stamp(6)

    def cs8(tile_off_expr):
        for s in range(8):
            for q in range(2):
                a(f"ds_read_b128 {vr(64+8*s+4*q,4)}, v46 offset:{s*384+32*q}")
        a("s_waitcnt lgkmcnt(0)")
        for r in range(8):
            a(f"v_add_f32 v{16+r}, v{64+r}, v{72+r}")
        for s in range(2, 8):
            for r in range(8):
                a(f"v_add_f32 v{16+r}, v{16+r}, v{64+8*s+r}")

    def get_csq():
        a("s_lshl_b32 s32, s44, 7")
        a("s_lshl_b32 s33, s47, 6")
        a("s_add_u32 s32, s32, s33")
        a(f"s_add_u32 s32, s32, {CSP}")
        a("v_lshlrev_b32 v46, 4, v4")
        a("v_add_u32 v46, s32, v46")
        cs8(None)

    def get_csk():
        a("v_lshlrev_b32 v46, 4, v4")
        a(f"v_add_u32 v46, {CSP+256}, v46")
        for s in range(6):
            for q in range(2):
                a(f"ds_read_b128 {vr(72+8*s+4*q,4)}, v46 offset:{s*384+32*q}")
        for s in range(6, 8):
            for q in range(2):
                a(f"ds_read_b128 {vr(24+8*(s-6)+4*q,4)}, v46 offset:{s*384+32*q}")
        a("s_waitcnt lgkmcnt(0)")
        for r in range(8):
            a(f"v_add_f32 v{16+r}, v{24+r}, v{32+r}")
        for s in range(6):
            for r in range(8):
                a(f"v_add_f32 v{16+r}, v{16+r}, v{72+8*s+r}")

    def get_csv():
        a("v_lshlrev_b32 v46, 2, v3")
        a(f"v_add_u32 v46, {CSP+256}, v46")
        for s in range(8):
            a(f"ds_read_b32 v{72+s}, v46 offset:{s*384}")
        a("s_waitcnt lgkmcnt(0)")
        a("v_add_f32 v47, v72, v73")
        for s in range(2, 8):
            a(f"v_add_f32 v47, v47, v{72+s}")
    qkv_tail(a, T, end, QFL[0], KVFL[0], KNL[0], get_csq, get_csk, get_csv)
    a(f"s_branch {end}")
    a("K0_prep:")
    if os.environ.get('K0X', '') == 'noprep':
        a(f"s_branch {end}x")
    if os.environ.get('K0X', '') == 'prio':
        a("s_setprio 3")
    a("s_cmp_lt_u32 s2, 154")
    a("s_cbranch_scc1 K0_ptask")
    if CODEPF:
        code_srd(a, 40, "K0")
        a("s_sub_u32 s32, s2, 154")
        a("s_lshr_b32 s32, s32, 3")
        a("s_lshl_b32 s32, s32, 3")
        a("s_add_u32 s32, s32, s3")
        a("s_lshl_b32 s32, s32, 10")
        a("buffer_load_dwordx4 v[16:19], v2, s[40:43], s32 offen")
        a("s_waitcnt vmcnt(0)")
    a(f"s_branch {end}x")
    a("K0_ptask:")
    a("s_cmp_lg_u32 s2, 153")
    a("s_cbranch_scc1 K0_pw")
    a("s_lshl_b32 s32, s3, 11")
    a(f"s_add_u32 s32, s32, {FLAGS:#x}")
    for r in range(4):
        a(f"v_mov_b32 v{16+r}, 0")
    a("buffer_store_dwordx4 v[16:19], v2, s[8:11], s32 offen")
    a("buffer_store_dwordx4 v[16:19], v2, s[8:11], s32 offen offset:1024")
    a(f"s_branch {end}x")
    a("K0_pw:")
    a("s_lshl_b32 s62, s3, 12")
    a("s_add_u32 s62, s62, 98304")
    a("s_mov_b32 s46, 0")
    a("s_mov_b32 s36, 32")
    a("s_cmp_eq_u32 s2, 152")
    a("s_cbranch_scc1 K0_pkv")
    a("s_cmp_ge_u32 s2, 88")
    a("s_cbranch_scc1 K0_pw2")
    a("s_cmp_ge_u32 s2, 32")
    a("s_cbranch_scc1 K0_pw1")
    a("s_cmp_ge_u32 s2, 16")
    a("s_cbranch_scc1 K0_pwo")
    a.srd(40, 18, 512 * 512 * 2)
    a("s_mov_b32 s44, 1024")
    a("s_mov_b32 s45, s2")
    a("s_lshl_b32 s47, s45, 15")
    a(f"s_add_u32 s47, s47, {WQF:#x}")
    a("s_lshl_b32 s49, s45, 7")
    a(f"s_add_u32 s49, s49, {CSQ:#x}")
    a("s_branch K0_pgo")
    a("K0_pwo:")
    a.srd(40, 24, 512 * 512 * 2)
    a("s_mov_b32 s44, 1024")
    a("s_sub_u32 s45, s2, 16")
    a("s_lshl_b32 s47, s45, 15")
    a(f"s_add_u32 s47, s47, {WOF:#x}")
    a("s_mov_b32 s49, 0")
    a("s_branch K0_pgo")
    a("K0_pw1:")
    a.srd(40, 28, 512 * 1792 * 2)
    a("s_mov_b32 s44, 3584")
    a("s_sub_u32 s45, s2, 32")
    a("s_lshl_b32 s47, s45, 15")
    a(f"s_add_u32 s47, s47, {W1F:#x}")
    a("s_lshl_b32 s49, s45, 7")
    a(f"s_add_u32 s49, s49, {CS1:#x}")
    a("s_branch K0_pgo")
    a("K0_pw2:")
    a.srd(40, 30, 512 * 1792 * 2)
    a("s_mov_b32 s44, 1024")
    a("s_sub_u32 s45, s2, 88")
    a("s_and_b32 s46, s45, 3")
    a("s_mul_i32 s46, s46, 28")
    a("s_lshr_b32 s45, s45, 2")
    a("s_mul_i32 s47, s45, 112")
    a("s_add_u32 s47, s47, s46")
    a("s_lshl_b32 s47, s47, 10")
    a(f"s_add_u32 s47, s47, {W2F:#x}")
    a("s_mov_b32 s36, 28")
    a("s_mov_b32 s49, 0")
    a("K0_pgo:")
    a("s_lshl_b32 s50, s3, 2")
    a("s_cmp_ge_u32 s50, s36")
    a(f"s_cbranch_scc1 {end}x")
    a("v_lshrrev_b32 v5, 2, v1")
    a("v_mul_lo_u32 v5, v5, s44")
    a("v_and_b32 v6, 3, v1")
    a("v_lshl_add_u32 v5, v6, 4, v5")
    a("s_add_u32 s51, s46, s50")
    a("s_lshl_b32 s51, s51, 4")
    a("s_mul_i32 s51, s51, s44")
    a("s_lshl_b32 s32, s45, 6")
    a("s_add_u32 s51, s51, s32")
    a("s_lshl_b32 s33, s44, 4")
    for i in range(4):
        a(f"s_add_u32 m0, s62, {1024*i}")
        a("s_nop 0")
        a("buffer_load_dwordx4 v5, s[40:43], s51 offen lds")
        a("s_add_u32 s51, s51, s33")
    a("s_branch K0_ptr")
    a("K0_pkv:")
    a("s_lshl_b32 s50, s3, 2")
    a("v_lshrrev_b32 v7, 2, v1")
    a("v_lshlrev_b32 v7, 5, v7")
    a("v_and_b32 v5, 1, v1")
    a("v_lshl_add_u32 v7, v5, 4, v7")
    a("v_and_b32 v5, 2, v1")
    a("v_cmp_eq_u32 vcc, 0, v5")
    a("s_lshl_b32 s20, s3, 11")
    a("s_and_saveexec_b64 s[38:39], vcc")
    for i in range(4):
        a(f"s_add_u32 m0, s62, {1024*i}")
        a(f"s_add_u32 s22, s20, {512*i}")
        a("buffer_load_dwordx4 v7, s[52:55], s22 offen lds")
    a("s_andn2_b64 exec, s[38:39], exec")
    for i in range(4):
        a(f"s_add_u32 m0, s62, {1024*i}")
        a(f"s_add_u32 s22, s20, {512*i}")
        a("buffer_load_dwordx4 v7, s[56:59], s22 offen lds")
    a("s_mov_b64 exec, s[38:39]")
    a(f"s_mov_b32 s47, {WKVF:#x}")
    a(f"s_mov_b32 s49, {CSKV:#x}")
    a("K0_ptr:")
    a("s_lshl_b32 s32, s50, 10")
    a("s_add_u32 s47, s47, s32")
    if TOUCH2:
        a("v_lshlrev_b32 v9, 7, v3")
        a("buffer_load_dword v10, v9, s[8:11], s47 offen")
    tr_addr(a, 8, 64, 5, 6)
    a("v_add_u32 v8, s62, v8")
    a("v_mov_b32 v7, 0")
    a(f"s_waitcnt vmcnt({TOUCH2})")
    for i in range(4):
        a(f"ds_read_b64_tr_b16 {vr(16+4*i,2)}, v8 offset:{16*i*64}")
        a(f"ds_read_b64_tr_b16 {vr(18+4*i,2)}, v8 offset:{(16*i+8)*64}")
    for i in range(4):
        a(f"s_waitcnt lgkmcnt({2*(3-i)})")
        a(f"buffer_store_dwordx4 {vr(16+4*i,4)}, v2, s[8:11], s47 offen offset:{1024*i}")
        for q in range(4):
            a(f"v_dot2_f32_bf16 v7, v{16+4*i+q}, s61, v7")
    a("s_cmp_eq_u32 s49, 0")
    a(f"s_cbranch_scc1 {end}x")
    a.nop(2)
    half_sum(a, 7, 5)
    a("s_lshl_b32 s32, s3, 7")
    a(f"s_add_u32 s32, s32, {CSP2}")
    a("v_lshlrev_b32 v6, 2, v3")
    a("v_add_u32 v5, s32, v6")
    a("ds_write_b32 v5, v7")
    a("s_waitcnt lgkmcnt(0)")
    a("s_barrier")
    a("s_cmp_lg_u32 s3, 0")
    a(f"s_cbranch_scc1 {end}x")
    a(f"v_add_u32 v5, {CSP2}, v6")
    for s in range(8):
        a(f"ds_read_b32 v{16+s}, v5 offset:{128*s}")
    a("s_waitcnt lgkmcnt(0)")
    for s in range(1, 8):
        a(f"v_add_f32 v16, v16, v{16+s}")
    a("v_cmp_gt_u32 vcc, 32, v1")
    a("s_and_saveexec_b64 s[38:39], vcc")
    a("buffer_store_dword v16, v6, s[8:11], s49 offen")
    a(f"s_branch {end}x")
    a(f"{end}:")
    a.stamp_flush(8)
    a(f"{end}x:")
    a("s_endpgm")
    a.desc(name, 128)
    return CSP2 + 1024


def gen_zero_flags(a):
    pass


def main():
    a = Asm()
    G.XF, G.QF, G.KVF = XFL[0], QFL[0], KVFL[0]
    G.FLAGS_ZERO = FLAGS
    lds_k0 = gen_K0(a)
    lds_f = gen_F(a, 0)
    gen_F(a, 1)
    hdr = ["; generated by gen/gen2.py -- fused MQA + FFN pipeline"]
    L = hdr.append
    L(f"; @launch kernel=k0_kernel grid=(256,1,1) block=(1024,1,1) lds={lds_k0}")
    L(f"; @launch kernel=f1_kernel grid=(256,1,1) block=(512,1,1) lds={lds_f}")
    L(f"; @launch kernel=f2_kernel grid=(256,1,1) block=(512,1,1) lds={lds_f}")
    out = "\n".join(hdr) + "\n"
    out += '.amdgcn_target "amdgcn-amd-amdhsa--gfx950"\n.text\n'
    out += "\n".join(a.L) + "\ncode_end:\n"
    out += '.section .rodata,"a"\n' + "\n".join(a.kernels) + "\n"
    path = sys.argv[1] if len(sys.argv) > 1 else f"cdna_kernels/{NAME}.s"
    open(path, 'w').write(out)
    if PROFILE:
        import json
        json.dump(G.PROF_SLOT, open('prof_slots.json', 'w'))
    print("wrote", path, len(out), "bytes")


if __name__ == "__main__":
    main()
```

```python
import os
import sys
import gen as G
from gen import Asm, vr, ar, f2u, half_sum, wave32_max, prologue, frag_loads
from gen import WQF, WOF, W1F, W2F, WKVF, CSQ, CS1, CSKV, VH, VU, KVT, KVF_BYTES, QS, EPS, NAME, PROFILE

LSTRIDE = 0x2000000
XFL = [0x500000, 0x500000 + LSTRIDE]
QFL = [0x700000, 0x700000 + LSTRIDE]
REUSE = int(os.environ.get('REUSE', '1'))
TOUCH = int(os.environ.get('TOUCH', '1'))
TOUCH2 = int(os.environ.get('TOUCH2', '1'))
_R = 0 if REUSE else LSTRIDE
OFL = [0x900000, 0x900000 + _R]
X1FL = [0xB00000, 0xB00000 + _R]
HFL = [0x1000000, 0x1000000 + _R]
KVFL = [0x1800000, 0x1800000 + LSTRIDE]
KNL = [0x1880000, 0x1880000 + LSTRIDE]
FLAGS = 0x490000
FL3 = FLAGS + 8192
G.WS_USED = 0x4400000
G.PROF = 0x4000000
G.KN = KNL[0]
SC = "sc0 sc1"
SCL = os.environ.get("SCL", "sc1")
SPIN_MAX = 200000
BMAX = float(os.environ.get('BMAX', '64'))

PRIO_IT = int(os.environ.get('PRIO_IT', '7'))
WARM = int(os.environ.get('WARM', '1'))
CODEPF = int(os.environ.get('CODEPF', '0'))
FAST = int(os.environ.get('FAST', '1'))
CZERO = int(os.environ.get('CZERO', '1'))


_uid = [0]
FSF = os.environ.get('FSF', '')


def hstore(a, insts):
    _uid[0] += 1
    u = _uid[0]
    a("s_cmp_lg_u32 s61, 0")
    a(f"s_cbranch_scc1 HS{u}_f")
    for i in insts:
        a(f"{i} {SC}")
    a(f"s_branch HS{u}_e")
    a(f"HS{u}_f:")
    for i in insts:
        a(i + (" " + FSF if 'dwordx4' in i else ""))
    a(f"HS{u}_e:")


def publish(a, epoch, tag):
    a("s_waitcnt vmcnt(0)")
    a("s_barrier")
    a("s_cmp_lg_u32 s3, 0")
    a(f"s_cbranch_scc1 {tag}_np")
    a(f"v_mov_b32 v5, {epoch}")
    a("v_mov_b32 v6, 0")
    a("v_cmp_eq_u32 vcc, 0, v1")
    a("s_and_saveexec_b64 s[38:39], vcc")
    hstore(a, ["buffer_store_dword v5, v6, s[8:11], s40 offen"])
    a("s_mov_b64 exec, s[38:39]")
    a(f"{tag}_np:")


def wait_flag(a, epoch, tag):
    a("v_mov_b32 v6, 0")
    a("s_mov_b32 s37, 0")
    a(f"{tag}_poll:")
    a(f"buffer_load_dword v5, v6, s[8:11], s41 offen {SC}")
    a("s_waitcnt vmcnt(0)")
    a("v_readfirstlane_b32 s36, v5")
    a("s_add_u32 s37, s37, 1")
    a(f"s_cmp_ge_u32 s36, {epoch}")
    a(f"s_cbranch_scc1 {tag}_go")
    a(f"s_cmp_gt_u32 s37, {SPIN_MAX}")
    a(f"s_cbranch_scc1 {tag}_go")
    a("s_sleep 1")
    a(f"s_branch {tag}_poll")
    a(f"{tag}_go:")


def ld(a, dst, sbase, idx, stmp, flags=""):
    hi, lo = idx // 4, idx % 4
    if hi == 0:
        so = f"s{sbase}"
    else:
        a(f"s_add_u32 s{stmp}, s{sbase}, {hi*4096}")
        so = f"s{stmp}"
    a(f"buffer_load_dwordx4 {dst}, v2, s[8:11], {so} offen offset:{lo*1024} {flags}")


def reduce8(a, ACC, DST, lds_base=0, pre_barrier=False):
    a("s_lshl_b32 s32, s3, 11")
    a("v_add_u32 v5, s32, v2")
    a("v_add_u32 v6, 0x10000, v5")
    a("s_lshl_b32 s32, s3, 14")
    a("v_add_u32 v7, s32, v2")
    a.nop(12)
    if pre_barrier:
        a("s_waitcnt lgkmcnt(0)")
        a("s_barrier")
    for p in range(8):
        for q in range(2):
            off = (p % 4) * 16384 + q * 1024
            a(f"ds_write_b128 v{5 if p < 4 else 6}, {vr(ACC+8*p+4*q,4)} offset:{off}")
    a("s_waitcnt lgkmcnt(0)")
    a("s_barrier")
    for s in range(8):
        for q in range(2):
            a(f"ds_read_b128 {vr(ACC+8*s+4*q,4)}, v7 offset:{s*2048+q*1024}")
    for s in range(0, 8, 2):
        a(f"s_waitcnt lgkmcnt({12-2*s})")
        for r in range(8):
            if s == 0:
                a(f"v_add_f32 v{DST+r}, v{ACC+r}, v{ACC+8+r}")
            else:
                a(f"v_add_f32 v{ACC+8*s+r}, v{ACC+8*s+r}, v{ACC+8*s+8+r}")
                a(f"v_add_f32 v{DST+r}, v{DST+r}, v{ACC+8*s+r}")


STATQ = 131072
KVS = STATQ + 8192
STAT2 = KVS + 16384
CSP = STAT2 + 256
CSP2 = CSP + 3072


def qkv_tail(a, T, end, QN, KVN, KNN, get_csq, get_csk, get_csv):
    a("s_lshl_b32 s32, s43, 3")
    a(f"s_add_u32 s32, s32, {STATQ}")
    a("v_add_u32 v7, s32, v2")
    for s in range(8):
        a(f"ds_read_b64 {vr(40+2*s,2)}, v7 offset:{s*1024}")
    a("s_waitcnt lgkmcnt(0)")
    for s in range(1, 8):
        a(f"v_add_f32 v40, v40, v{40+2*s}")
        a(f"v_add_f32 v41, v41, v{41+2*s}")
    half_sum(a, 40, 42)
    half_sum(a, 41, 42)
    a(f"v_mul_f32 v40, {f2u(1.0/512):#x}, v40")
    a(f"v_mul_f32 v41, {f2u(1.0/512):#x}, v41")
    a("v_fma_f32 v41, -v40, v40, v41")
    a("v_max_f32 v41, 0, v41")
    a(f"v_add_f32 v41, {f2u(EPS):#x}, v41")
    a("v_rsq_f32 v41, v41")
    a.nop(1)
    a("v_mul_f32 v42, v40, v41")
    a("v_sub_f32 v42, 0, v42")
    a(f"v_mul_f32 v43, {f2u(QS):#x}, v41")
    a(f"v_mul_f32 v44, {f2u(QS):#x}, v42")
    get_csq()
    for r in range(8):
        a(f"v_mul_f32 v{16+r}, v44, v{16+r}")
        a(f"v_fma_f32 v{8+r}, v{8+r}, v43, v{16+r}")
    for q in range(4):
        a(f"v_cvt_pk_bf16_f32 v{24+q}, v{8+2*q}, v{9+2*q}")
    a(f"s_add_u32 s23, s42, {QN:#x}")
    a("buffer_store_dwordx4 v[24:27], v2, s[8:11], s23 offen")
    a("s_cmp_ge_u32 s5, 6")
    a(f"s_cbranch_scc1 {end}")
    a("s_lshr_b32 s32, s5, 2")
    a("s_cmp_eq_u32 s5, 1")
    a("s_cselect_b32 s32, 1, s32")
    a("s_lshl_b32 s32, s32, 1")
    a("s_cmp_lg_u32 s3, s32")
    a(f"s_cbranch_scc1 {end}")
    a(f"v_add_u32 v7, {KVS}, v2")
    for s in range(8):
        for q in range(2):
            a(f"ds_read_b128 {vr(64+8*s+4*q,4)}, v7 offset:{s*2048+q*1024}")
    a(f"s_mul_i32 s33, s45, {KVT}")
    a(f"s_add_u32 s33, s33, {KVN:#x}")
    a("s_waitcnt lgkmcnt(0)")
    for s in range(1, 8):
        for r in range(8):
            a(f"v_add_f32 v{64+r}, v{64+r}, v{64+8*s+r}")
    a("s_cmp_ge_u32 s5, 2")
    a(f"s_cbranch_scc1 {T}_finV")
    a("v_mov_b32 v45, 0")
    get_csk()
    for r in range(8):
        a(f"v_mul_f32 v{16+r}, v42, v{16+r}")
        a(f"v_fma_f32 v{64+r}, v{64+r}, v41, v{16+r}")
        a(f"v_fma_f32 v45, v{64+r}, v{64+r}, v45")
    for q in range(4):
        a(f"v_cvt_pk_bf16_f32 v{28+q}, v{64+2*q}, v{65+2*q}")
    a("buffer_store_dwordx4 v[28:31], v2, s[8:11], s33 offen")
    half_sum(a, 45, 46)
    a("s_lshl_b32 s32, s45, 7")
    a(f"s_add_u32 s32, s32, {KNN:#x}")
    a("v_lshlrev_b32 v46, 2, v3")
    a("v_cmp_gt_u32 vcc, 32, v1")
    a("s_and_saveexec_b64 s[38:39], vcc")
    a("buffer_store_dword v45, v46, s[8:11], s32 offen")
    a(f"s_branch {end}")
    a(f"{T}_finV:")
    a("v_lshlrev_b32 v7, 2, v3")
    a(f"v_add_u32 v7, {STAT2}, v7")
    a("ds_write_b32 v7, v41")
    a("ds_write_b32 v7, v42 offset:128")
    a("s_and_b32 s32, s5, 1")
    a("s_lshl_b32 s32, s32, 6")
    a(f"s_add_u32 s32, s32, {STAT2}")
    a("v_lshlrev_b32 v7, 4, v4")
    a("v_add_u32 v7, s32, v7")
    get_csv()
    a("s_waitcnt lgkmcnt(0)")
    for q in range(2):
        a(f"ds_read_b128 {vr(16+4*q,4)}, v7 offset:{32*q}")
        a(f"ds_read_b128 {vr(24+4*q,4)}, v7 offset:{128+32*q}")
    a("s_waitcnt lgkmcnt(0)")
    for r in range(8):
        a(f"v_mul_f32 v{24+r}, v47, v{24+r}")
        a(f"v_fma_f32 v{64+r}, v{64+r}, v{16+r}, v{24+r}")
    for q in range(4):
        a(f"v_cvt_pk_bf16_f32 v{32+q}, v{64+2*q}, v{65+2*q}")
    a("v_cmp_eq_u32 s[38:39], 0, v3")
    a("v_mov_b32 v45, 0x3f803f80")
    a("v_mov_b32 v46, 0")
    a("v_cndmask_b32 v45, v46, v45, s[38:39]")
    a("v_cmp_le_u32 vcc, 16, v3")
    a("v_xor_b32 v7, 16, v3")
    a("v_lshlrev_b32 v7, 4, v7")
    for q in range(4):
        a(f"v_cndmask_b32 v{32+q}, v45, v{32+q}, vcc")
    a(f"v_mul_u32_u24 v46, {VH}, v4")
    a("v_add_u32 v7, v7, v46")
    a("s_and_b32 s32, s5, 1")
    a(f"s_mul_i32 s32, s32, {VU}")
    a("s_add_u32 s33, s33, s32")
    a("v_cmp_gt_u32 s[38:39], 2, v3")
    a("s_or_b64 vcc, vcc, s[38:39]")
    a("s_and_saveexec_b64 s[38:39], vcc")
    a("buffer_store_dwordx4 v[32:35], v7, s[8:11], s33 offen offset:1024")


def piece_sgprs(a):
    a("s_lshr_b32 s32, s3, 1")
    a("s_and_b32 s43, s32, 1")
    a("s_lshr_b32 s44, s3, 2")
    a("s_lshl_b32 s45, s4, 1")
    a("s_add_u32 s45, s45, s43")
    a("s_lshl_b32 s46, s5, 1")
    a("s_add_u32 s46, s46, s44")
    a("s_lshl_b32 s42, s45, 5")
    a("s_lshl_b32 s32, s46, 1")
    a("s_add_u32 s42, s42, s32")
    a("s_and_b32 s47, s3, 1")
    a("s_add_u32 s42, s42, s47")
    a("s_lshl_b32 s42, s42, 10")


def code_srd(a, d, tag):
    a(f"s_getpc_b64 s[{d}:{d+1}]")
    a(f"{tag}_pc:")
    a(f"s_add_u32 s{d}, s{d}, f1_kernel-{tag}_pc")
    a(f"s_addc_u32 s{d+1}, s{d+1}, {'-1' if tag != 'K0' else '0'}")
    a(f"s_mov_b32 s{d+2}, code_end-f1_kernel")
    a(f"s_mov_b32 s{d+3}, 0x00020000")


def gen_F(a, L):
    last = (L == 1)
    name = f"f{L+1}_kernel"
    T = f"F{L}"
    a.begin(name)
    end = f"{name}_end"
    prologue(a, end, out_ptr=True, out_off=(64 if last else 0))
    a.srd(16, 12, 2048 * 512 * 2)
    XF, QF, OF, X1F, HF, KVF, KN = XFL[L], QFL[L], OFL[L], X1FL[L], HFL[L], KVFL[L], KNL[L]
    EP = 4 * L
    SCR = KVF_BYTES
    KMX = SCR + 8 * 2304
    Q = (8, 12)
    C = 16
    O = (32, 48)
    S = (64, 80)
    P = (96, 104)
    E = 112
    KB = (128, 132)
    VB = (136, 144)
    a("s_and_b32 s20, s3, 3")
    a("s_lshr_b32 s30, s3, 2")
    a("s_and_b32 s21, s20, 1")
    a("s_lshl_b32 s21, s21, 1")
    a("s_lshl_b32 s22, s5, 2")
    a("s_add_u32 s21, s21, s22")
    a("s_lshr_b32 s22, s20, 1")
    a("s_lshl_b32 s23, s4, 1")
    a("s_add_u32 s22, s22, s23")
    a("s_lshl_b32 s22, s22, 5")
    a("s_add_u32 s22, s22, s21")
    a("s_add_u32 s23, s22, s30")
    a("s_xor_b32 s24, s30, 1")
    a("s_add_u32 s24, s22, s24")
    a("s_lshl_b32 s22, s23, 10")
    a("s_lshl_b32 s24, s24, 10")
    a(f"s_add_u32 s23, s22, {QF:#x}")
    a(f"s_add_u32 s24, s24, {QF:#x}")
    a(f"buffer_load_dwordx4 {vr(Q[0],4)}, v2, s[8:11], s23 offen")
    a(f"buffer_load_dwordx4 {vr(Q[1],4)}, v2, s[8:11], s24 offen")
    a("s_lshl_b32 s23, s3, 10")
    a(f"s_add_u32 s23, s23, {KN:#x}")
    a(f"buffer_load_dwordx4 {vr(E,4)}, v2, s[8:11], s23 offen")
    a("s_lshr_b32 s24, s3, 1")
    a("s_lshl_b32 s24, s24, 10")
    a("s_and_b32 s25, s3, 1")
    a(f"s_mul_i32 s25, s25, {32*KVT}")
    a("s_add_u32 s34, s24, s25")
    a(f"s_add_u32 s35, s34, {KVF:#x}")

    def dma():
        a("s_mov_b32 m0, s34")
        a("s_add_u32 s34, s34, 4096")
        a("buffer_load_dwordx4 v2, s[8:11], s35 offen lds")
        a("s_add_u32 s35, s35, 4096")
    for i in range(6):
        dma()
    a("s_lshl_b32 s40, s4, 8")
    a(f"s_add_u32 s40, s40, {FLAGS:#x}")
    a("s_lshl_b32 s41, s3, 2")
    a("s_add_u32 s41, s41, s40")
    a("s_lshl_b32 s32, s5, 2")
    a("s_add_u32 s40, s40, s32")
    piece_sgprs(a)
    a("s_getreg_b32 s61, hwreg(HW_REG_XCC_ID)")
    a("s_and_b32 s61, s61, 15")
    a("s_add_u32 s61, s61, 1")
    a("v_min_u32 v6, 17, v3")
    a("v_mov_b32 v5, 16")
    a("v_cmp_eq_u32 vcc, 20, v3")
    a(f"s_mul_i32 s25, s30, {32*KVT}")
    a.nop(1)
    a("v_cndmask_b32 v6, v6, v5, vcc")
    a("v_lshlrev_b32 v6, 4, v6")
    a(f"v_mul_u32_u24 v5, {VH}, v4")
    a("v_add3_u32 v158, v6, v5, 64")
    a("v_add_u32 v158, 960, v158")
    a("v_add_u32 v156, s25, v2")
    a("v_add_u32 v157, s25, v158")
    a("s_waitcnt vmcnt(6)")
    a("v_mov_b32 v5, 0")
    a("v_mov_b32 v6, 0")
    for q in range(4):
        a(f"v_dot2_f32_bf16 v5, v{Q[0]+q}, v{Q[0]+q}, v5")
        a(f"v_dot2_f32_bf16 v6, v{Q[1]+q}, v{Q[1]+q}, v6")
    a.nop(3)
    half_sum(a, 5, 154)
    half_sum(a, 6, 154)
    a("v_max_f32 v5, v5, v6")
    a(f"v_max3_f32 v7, v{E}, v{E+1}, v{E+2}")
    a(f"v_max_f32 v7, v7, v{E+3}")
    for off in (0x041F, 0x081F, 0x101F, 0x201F, 0x401F):
        a(f"ds_swizzle_b32 v6, v5 offset:{off:#x}")
        a(f"ds_swizzle_b32 v154, v7 offset:{off:#x}")
        a("s_waitcnt lgkmcnt(0)")
        a("v_max_f32 v5, v5, v6")
        a("v_max_f32 v7, v7, v154")
    half_sum(a, 7, 154, op="v_max_f32")
    a("v_readfirstlane_b32 s63, v5")
    a("s_lshl_b32 s23, s3, 2")
    a(f"s_add_u32 s23, s23, {KMX}")
    a("v_mov_b32 v6, s23")
    a("ds_write_b32 v6, v7")
    for r in range(16):
        a(f"v_mov_b32 v{O[0]+r}, 0")
        a(f"v_mov_b32 v{O[1]+r}, 0")
        a(f"v_mov_b32 v{E+r}, 0")
    for r in range(8):
        a(f"v_mov_b32 v{P[1]+r}, 0")
        a(f"v_mov_b32 v{VB[1]+r}, 0")
    a("s_lshl_b32 s32, s5, 1")
    a("s_lshl_b32 s48, s32, 5")
    a("s_lshl_b32 s33, s3, 2")
    a("s_add_u32 s48, s48, s33")
    a("s_lshl_b32 s48, s48, 10")
    a(f"s_add_u32 s48, s48, {WOF:#x}")
    a("s_add_u32 s49, s48, 32768")
    a("s_min_u32 s32, s3, 6")
    a("s_mul_i32 s51, s5, 7")
    a("s_add_u32 s51, s51, s32")
    a("s_lshl_b32 s50, s51, 15")
    a(f"s_add_u32 s50, s50, {W1F:#x}")
    a(f"s_add_u32 s52, s42, {XF:#x}")
    pf = []
    for i in range(4):
        pf.append((ar(8 * i, 4), 48, i))
        pf.append((ar(8 * i + 4, 4), 49, i))
    if last:
        pf.append((ar(32, 4), 52, 0))
    else:
        a("v_lshlrev_b32 v159, 10, v3")
        a("v_lshl_add_u32 v159, v4, 3, v159")
        a("s_lshl_b32 s52, s45, 15")
        a("s_lshl_b32 s32, s46, 6")
        a("s_add_u32 s52, s52, s32")
        a("s_lshl_b32 s32, s47, 5")
        a("s_add_u32 s52, s52, s32")
        pf.append(None)
    for i in range(15):
        pf.append((ar(36 + 4 * i, 4), 50, i))
    a("s_waitcnt vmcnt(0) lgkmcnt(0)")
    a("s_barrier")
    a.stamp(2)
    a(f"ds_read_b128 {vr(KB[0],4)}, v156")
    a(f"ds_read_b128 {vr(KB[1],4)}, v156 offset:{KVT}")
    a(f"ds_read_b128 {vr(VB[0],4)}, v157")
    a(f"ds_read_b128 {vr(VB[0]+4,4)}, v157 offset:{VU}")
    a("s_cmp_lt_u32 s3, 4")
    a(f"s_cbranch_scc1 {T}_noprio")
    a("s_setprio 1")
    a(f"{T}_noprio:")
    a("s_waitcnt lgkmcnt(3)")
    a(f"v_mfma_f32_32x32x16_bf16 {vr(S[0],16)}, {vr(KB[0],4)}, {vr(Q[0],4)}, {'0' if CZERO else vr(C,16)}")
    a.nop(10)
    UN, PV1, PV2, DLY, NE = 4, 3, 6, 2, 16

    def body(extra, slots=(1, 4, 5)):
        for t in range(UN):
            for x in range(2):
                y = 1 - x
                ty = t if x == 0 else t + 1
                tv = t - 1 if x == 0 else t
                for i in range(8):
                    if i == 0:
                        if x == 1:
                            a("s_waitcnt lgkmcnt(0)")
                        a(f"v_mfma_f32_32x32x16_bf16 {vr(S[y],16)}, {vr(KB[ty%2],4)}, {vr(Q[y],4)}, {'0' if CZERO else vr(C,16)}")
                        if x == 1:
                            a(f"ds_read_b128 {vr(KB[t%2],4)}, v156 offset:{(t+2)*KVT}")
                            a(f"ds_read_b128 {vr(VB[(t+1)%2],4)}, v157 offset:{(t+1)*KVT}")
                            a(f"ds_read_b128 {vr(VB[(t+1)%2]+4,4)}, v157 offset:{(t+1)*KVT+VU}")
                    e = E + (2 * i) % NE
                    a(f"v_exp_f32 v{e}, v{S[x]+2*i}")
                    a(f"v_exp_f32 v{e+1}, v{S[x]+2*i+1}")
                    j = i - DLY
                    if j >= 0:
                        ej = E + (2 * j) % NE
                        a(f"v_cvt_pk_bf16_f32 v{P[x]+j}, v{ej}, v{ej+1}")
                    else:
                        ej = E + (2 * (j + 8)) % NE
                        a(f"v_cvt_pk_bf16_f32 v{P[y]+j+8}, v{ej}, v{ej+1}")
                    if i == PV1:
                        a(f"v_mfma_f32_32x32x16_bf16 {vr(O[y],16)}, {vr(VB[tv%2],4)}, {vr(P[y],4)}, {vr(O[y],16)}")
                    if i == PV2:
                        a(f"v_mfma_f32_32x32x16_bf16 {vr(O[y],16)}, {vr(VB[tv%2]+4,4)}, {vr(P[y]+4,4)}, {vr(O[y],16)}")
                    if i in slots and extra:
                        extra.pop(0)()
                if t == UN - 1 and x == 1:
                    a(f"v_add_u32 v156, {UN*KVT}, v156")
                    a(f"v_add_u32 v157, {UN*KVT}, v157")
                    a("s_add_u32 s29, s29, 1")
                    a("s_cmp_lg_u32 s29, 8")

    a("s_mov_b32 s29, 0")
    body([dma] * 11)
    body([])
    a("s_waitcnt vmcnt(0)")
    a("s_barrier")
    def rawres():
        a("buffer_load_dwordx2 a[32:33], v159, s[16:19], s52 offen")
        a("buffer_load_dwordx2 a[34:35], v159, s[16:19], s52 offen offset:16")
    pfl = [(lambda e=e: ld(a, e[0], e[1], e[2], 33)) if e else rawres for e in pf]
    def xid():
        a("s_cmp_lg_u32 s3, 0")
        a(f"s_cbranch_scc1 {T}_noxid")
        a("v_mov_b32 v5, s61")
        a("v_mov_b32 v6, 0")
        a("s_mov_b64 exec, 1")
        a(f"buffer_store_dword v5, v6, s[8:11], s40 offen offset:{64+32*L} {SC}")
        a("s_mov_b64 exec, -1")
        a(f"{T}_noxid:")
    xid()
    body(pfl[0:8], (4,))
    body(pfl[8:16], (4,))
    tail = []
    if WARM:
        a("s_lshr_b32 s56, s4, 3")
        a("s_and_b32 s56, s56, 3")
        a("s_and_b32 s57, s56, 1")
        a("s_lshl_b32 s58, s5, 1")
        a("s_add_u32 s57, s57, s58")
        a("s_mul_i32 s57, s57, 112")
        a("s_mul_i32 s58, s3, 14")
        a("s_add_u32 s57, s57, s58")
        a("s_lshr_b32 s58, s56, 1")
        a("s_mul_i32 s58, s58, 7")
        a("s_add_u32 s57, s57, s58")
        a("s_lshl_b32 s57, s57, 10")
        a(f"s_add_u32 s57, s57, {W2F:#x}")
        a("s_lshl_b32 s58, s56, 12")
        a("s_add_u32 s58, s58, s50")
        a(f"s_add_u32 s58, s58, {15*1024}")
        a("s_and_b32 s59, s56, 1")
        a("s_lshl_b32 s59, s59, 15")
        a("s_lshr_b32 s60, s56, 1")
        a("s_lshl_b32 s60, s60, 11")
        a("s_add_u32 s59, s59, s60")
        a("s_add_u32 s59, s59, s48")
        a(f"s_add_u32 s59, s59, {(WQF - WOF) & 0xffffffff:#x}")
        for k, (n, sr) in enumerate(((56, 57), (40, 58), (16, 59))):
            if last and sr == 59:
                continue
            a(f"v_min_u32 v{152+k}, {n-1}, v1")
            a(f"v_lshlrev_b32 v{152+k}, 7, v{152+k}")
            tail.append(lambda k=k, sr=sr: a(f"buffer_load_dword v155, v{152+k}, s[8:11], s{sr} offen"))
    a("v_and_b32 v5, 7, v1")
    a("v_lshlrev_b32 v5, 2, v5")
    a("s_lshl_b32 s62, s4, 8")
    a(f"s_add_u32 s62, s62, {FLAGS:#x}")
    tail.append(lambda: a(f"buffer_load_dword v159, v5, s[8:11], s62 offen offset:{64+32*L} {SC}"))
    if TOUCH and (L == 0 or not REUSE):
        a(f"s_add_u32 s20, s22, {OF:#x}")
        a(f"s_add_u32 s21, s42, {X1F:#x}")
        a("s_lshl_b32 s23, s4, 1")
        a("s_mul_i32 s23, s23, 112")
        a("s_lshl_b32 s24, s51, 1")
        a("s_add_u32 s23, s23, s24")
        a("s_lshl_b32 s23, s23, 10")
        a(f"s_add_u32 s23, s23, {HF:#x}")
        a("s_add_u32 s24, s23, 1024")
        a(f"s_add_u32 s25, s23, {112*1024}")
        a("s_add_u32 s26, s25, 1024")
        a(f"s_add_u32 s27, s42, {XFL[1]:#x}")
        a(f"s_add_u32 s28, s42, {QFL[1]:#x}")
        a("v_mov_b32 v6, s20")
        for k, sr in enumerate((21, 23, 24, 25, 26, 27, 28)):
            a(f"v_mov_b32 v7, s{sr}")
            a(f"v_cmp_le_u32 vcc, {8*(k+1)}, v1")
            a.nop(2)
            a("v_cndmask_b32 v6, v6, v7, vcc")
        a("v_and_b32 v7, 7, v1")
        a("v_lshl_add_u32 v6, v7, 7, v6")
        tail.append(lambda: a("buffer_load_dword v7, v6, s[8:11], 0 offen"))
    if TOUCH2:
        if last:
            a("v_lshlrev_b32 v6, 10, v3")
            a("s_lshl_b32 s20, s45, 15")
            a("s_lshl_b32 s21, s46, 6")
            a("s_add_u32 s20, s20, s21")
            tail.append(lambda: a("buffer_load_dword v7, v6, s[16:19], s20 offen"))
        else:
            a(f"s_mul_i32 s31, s45, {KVT}")
            a(f"s_add_u32 s31, s31, {KVFL[1]:#x}")
            tail.append(lambda: a("buffer_load_dword v155, v154, s[8:11], s31 offen"))
    body(pfl[16:24] + tail, (1, 5))
    a(f"{T}_loop:")
    a(f"s_cmp_lg_u32 s29, {PRIO_IT}")
    a(f"s_cbranch_scc1 {T}_prio2")
    a("s_setprio 0")
    a(f"{T}_prio2:")
    body([])
    a(f"s_cbranch_scc1 {T}_loop")
    a("s_waitcnt vmcnt(0)")
    for j in range(8 - DLY, 8):
        ej = E + (2 * j) % NE
        a(f"v_cvt_pk_bf16_f32 v{P[1]+j}, v{ej}, v{ej+1}")
    a.nop(2)
    a(f"v_mfma_f32_32x32x16_bf16 {vr(O[1],16)}, {vr(VB[1],4)}, {vr(P[1],4)}, {vr(O[1],16)}")
    a(f"v_mfma_f32_32x32x16_bf16 {vr(O[1],16)}, {vr(VB[1]+4,4)}, {vr(P[1]+4,4)}, {vr(O[1],16)}")
    a("s_mul_i32 s25, s3, 2304")
    a(f"s_add_u32 s25, s25, {SCR}")
    a("v_add_u32 v5, s25, v2")
    a("v_lshlrev_b32 v6, 2, v1")
    a("v_add_u32 v6, s25, v6")
    a("s_xor_b32 s25, s3, 4")
    a("s_mul_i32 s25, s25, 2304")
    a(f"s_add_u32 s25, s25, {SCR}")
    a("v_add_u32 v7, s25, v2")
    a("s_waitcnt vmcnt(0)")
    a("s_mov_b32 s37, 0")
    a("v_and_b32 v153, 7, v1")
    a("v_lshlrev_b32 v153, 2, v153")
    a(f"{T}_xchk:")
    a("v_cmp_eq_u32 vcc, 0, v159")
    a("s_cmp_eq_u64 vcc, 0")
    a(f"s_cbranch_scc1 {T}_xok")
    a("s_add_u32 s37, s37, 1")
    a(f"s_cmp_gt_u32 s37, {SPIN_MAX}")
    a(f"s_cbranch_scc1 {T}_xok")
    a("s_sleep 1")
    a(f"buffer_load_dword v159, v153, s[8:11], s62 offen offset:{64+32*L} {SC}")
    a("s_waitcnt vmcnt(0)")
    a(f"s_branch {T}_xchk")
    a(f"{T}_xok:")
    a("v_cmp_ne_u32 vcc, s61, v159")
    a("s_cmp_eq_u64 vcc, 0")
    a(f"s_cselect_b32 s61, {FAST}, 0")
    a("v_lshlrev_b32 v154, 2, v1")
    a("v_add_u32 v154, s25, v154")
    a("s_waitcnt lgkmcnt(0)")
    a.nop(8)
    a(f"ds_write_b128 v5, {vr(O[1],4)}")
    a(f"ds_write_b128 v5, {vr(O[1]+4,4)} offset:1024")
    a(f"ds_write_b32 v6, v{O[1]+8} offset:2048")
    a("s_waitcnt lgkmcnt(0)")
    a("s_barrier")
    a(f"ds_read_b128 {vr(S[0],4)}, v7")
    a(f"ds_read_b128 {vr(S[0]+4,4)}, v7 offset:1024")
    a(f"ds_read_b32 v{S[0]+8}, v154 offset:2048")
    a(f"v_mov_b32 v5, {KMX}")
    a(f"ds_read_b128 {vr(S[1],4)}, v5")
    a(f"ds_read_b128 {vr(S[1]+4,4)}, v5 offset:16")
    a("s_waitcnt lgkmcnt(0)")
    for r in range(9):
        a(f"v_add_f32 v{O[0]+r}, v{O[0]+r}, v{S[0]+r}")
    a(f"v_max3_f32 v5, v{S[1]}, v{S[1]+1}, v{S[1]+2}")
    a(f"v_max3_f32 v5, v5, v{S[1]+3}, v{S[1]+4}")
    a(f"v_max3_f32 v5, v5, v{S[1]+5}, v{S[1]+6}")
    a(f"v_max_f32 v5, v5, v{S[1]+7}")
    a("v_mul_f32 v5, s63, v5")
    a(f"v_mov_b32 v6, {f2u(BMAX*BMAX):#x}")
    a("v_cmp_nle_f32 vcc, v5, v6")
    a("s_cmp_eq_u64 vcc, 0")
    a(f"s_cbranch_scc1 {T}_afin")
    a("v_mov_b32 v156, v2")
    a("v_mov_b32 v6, 0xff800000")
    a("s_mov_b32 s29, 64")
    a(f"{T}_fb:")
    a(f"ds_read_b128 {vr(KB[0],4)}, v156")
    a(f"v_add_u32 v156, {KVT}, v156")
    a("s_waitcnt lgkmcnt(0)")
    a(f"v_mfma_f32_32x32x16_bf16 {vr(S[0],16)}, {vr(KB[0],4)}, {vr(Q[0],4)}, 0")
    a.nop(16)
    for i in range(8):
        a(f"v_max3_f32 v6, v6, v{S[0]+2*i}, v{S[0]+2*i+1}")
    a("s_sub_u32 s29, s29, 1")
    a("s_cmp_lg_u32 s29, 0")
    a(f"s_cbranch_scc1 {T}_fb")
    half_sum(a, 6, 7, op="v_max_f32")
    a("v_sub_f32 v6, 0, v6")
    for r in range(16):
        a(f"v_mov_b32 v{C+r}, v6")
        a(f"v_mov_b32 v{O[0]+r}, 0")
    a("v_mov_b32 v156, v2")
    a("v_mov_b32 v157, v158")
    a("s_mov_b32 s29, 64")
    a(f"{T}_fb2:")
    a(f"ds_read_b128 {vr(KB[0],4)}, v156")
    a(f"ds_read_b128 {vr(VB[0],4)}, v157")
    a(f"ds_read_b128 {vr(VB[0]+4,4)}, v157 offset:{VU}")
    a(f"v_add_u32 v156, {KVT}, v156")
    a(f"v_add_u32 v157, {KVT}, v157")
    a("s_waitcnt lgkmcnt(0)")
    a(f"v_mfma_f32_32x32x16_bf16 {vr(S[0],16)}, {vr(KB[0],4)}, {vr(Q[0],4)}, {vr(C,16)}")
    a.nop(16)
    for i in range(16):
        a(f"v_exp_f32 v{S[0]+i}, v{S[0]+i}")
    a.nop(1)
    for i in range(8):
        a(f"v_cvt_pk_bf16_f32 v{P[0]+i}, v{S[0]+2*i}, v{S[0]+2*i+1}")
    a.nop(2)
    a(f"v_mfma_f32_32x32x16_bf16 {vr(O[0],16)}, {vr(VB[0],4)}, {vr(P[0],4)}, {vr(O[0],16)}")
    a(f"v_mfma_f32_32x32x16_bf16 {vr(O[0],16)}, {vr(VB[0]+4,4)}, {vr(P[0]+4,4)}, {vr(O[0],16)}")
    a.nop(16)
    a("s_sub_u32 s29, s29, 1")
    a("s_cmp_lg_u32 s29, 0")
    a(f"s_cbranch_scc1 {T}_fb2")
    a(f"{T}_afin:")
    a(f"v_rcp_f32 v6, v{O[0]+8}")
    a.nop(1)
    for r in range(8):
        a(f"v_mul_f32 v{O[0]+r}, v{O[0]+r}, v6")
    for q in range(4):
        a(f"v_cvt_pk_bf16_f32 v{S[0]+q}, v{O[0]+2*q}, v{O[0]+2*q+1}")
    a(f"s_add_u32 s23, s22, {OF:#x}")
    hstore(a, [f"buffer_store_dwordx4 {vr(S[0],4)}, v2, s[8:11], s23 offen"])
    a.stamp(3)
    publish(a, EP + 1, f"{T}_p1")
    a("s_lshl_b32 s20, s4, 6")
    a("s_lshl_b32 s21, s3, 2")
    a("s_add_u32 s20, s20, s21")
    a("s_lshl_b32 s53, s20, 10")
    a(f"s_add_u32 s20, s53, {OF:#x}")
    a("s_add_u32 s21, s20, 32768")
    wait_flag(a, EP + 1, f"{T}_w1")
    a.stamp(4)
    for i in range(4):
        ld(a, vr(8 + 8 * i, 4), 20, i, 33, SCL)
        ld(a, vr(12 + 8 * i, 4), 21, i, 33, SCL)
    ACC = 64
    for i in range(4):
        a(f"s_waitcnt vmcnt({2*(3-i)})")
        for c in range(2):
            for r in range(2):
                t = 2 * c + r
                cin = "0" if i == 0 else vr(ACC + 16 * t, 16)
                a(f"v_mfma_f32_32x32x16_bf16 {vr(ACC+16*t,16)}, {ar(8*i+4*c,4)}, {vr(8+8*i+4*r,4)}, {cin}")
    for i in range(8):
        ld(a, ar(4 * i, 4), 50, 15 + i, 33)
    reduce8(a, ACC, 128)
    for q in range(4):
        a(f"v_accvgpr_read_b32 v{136+q}, a{32+q}")
    for q in range(4):
        a(f"v_lshlrev_b32 v{140}, 16, v{136+q}")
        a(f"v_and_b32 v{141}, 0xffff0000, v{136+q}")
        a(f"v_add_f32 v{128+2*q}, v{128+2*q}, v140")
        a(f"v_add_f32 v{129+2*q}, v{129+2*q}, v141")
    for q in range(4):
        a(f"v_cvt_pk_bf16_f32 v{136+q}, v{128+2*q}, v{129+2*q}")
    a(f"s_add_u32 s23, s42, {X1F:#x}")
    hstore(a, ["buffer_store_dwordx4 v[136:139], v2, s[8:11], s23 offen"])
    for q in range(4):
        a(f"v_accvgpr_write_b32 a{32+q}, v{136+q}")
    a.stamp(5)
    publish(a, EP + 2, f"{T}_p2")
    a(f"s_add_u32 s20, s53, {X1F:#x}")
    a("s_add_u32 s21, s20, 32768")
    wait_flag(a, EP + 2, f"{T}_w2")
    a.stamp(6)
    for i in range(4):
        ld(a, vr(32 + 4 * i, 4), 20, i, 33, SCL)
    for i in range(4):
        ld(a, vr(48 + 4 * i, 4), 21, i, 33, SCL)
    for i in range(9):
        ld(a, vr(64 + 4 * i, 4), 50, 23 + i, 33)
    a("v_lshlrev_b32 v7, 4, v4")
    a("s_lshl_b32 s27, s51, 7")
    a(f"s_add_u32 s27, s27, {CS1:#x}")
    for q in range(4):
        a(f"buffer_load_dwordx4 {vr(100+4*q,4)}, v7, s[8:11], s27 offen offset:{32*q}")
    STAT = 65536
    a("s_lshl_b32 s21, s3, 12")
    a("v_add_u32 v5, s21, v2")
    a("s_mov_b32 s28, 0x3f803f80")
    for r in range(8):
        a(f"v_mov_b32 v{8+r}, 0")
    for rr in range(2):
        a(f"s_waitcnt vmcnt({13+4*(1-rr)})")
        for i in range(4):
            a(f"ds_write_b128 v5, {vr(32+16*rr+4*i,4)} offset:{32768*rr+1024*i}")
        for i in range(16):
            x = 32 + 16 * rr + i
            k = 4 * (i % 2)
            a(f"v_dot2_f32_bf16 v{8+k+2*rr}, v{x}, s28, v{8+k+2*rr}")
            a(f"v_dot2_f32_bf16 v{9+k+2*rr}, v{x}, v{x}, v{9+k+2*rr}")
    a("s_lshl_b32 s21, s3, 10")
    a(f"s_add_u32 s21, s21, {STAT}")
    a("v_add_u32 v5, s21, v2")
    a.nop(2)
    for r in range(4):
        a(f"v_add_f32 v{8+r}, v{8+r}, v{12+r}")
    a("ds_write_b128 v5, v[8:11]")
    a("s_waitcnt lgkmcnt(0)")
    a("s_barrier")
    a.stamp(7)
    a("s_lshl_b32 s32, s5, 1")
    a("s_mul_i32 s54, s32, 112")
    a("s_mul_i32 s33, s3, 14")
    a("s_add_u32 s54, s54, s33")
    a("s_lshl_b32 s54, s54, 10")
    a(f"s_add_u32 s54, s54, {W2F:#x}")
    a(f"s_add_u32 s55, s54, {112*1024}")
    a("s_cmp_eq_u32 s3, 7")
    a(f"s_cbranch_scc1 {T}_cskip")
    CACC = 116

    def w1reg(i):
        if i < 15:
            return ar(36 + 4 * i, 4)
        if i < 23:
            return ar(4 * (i - 15), 4)
        return vr(64 + 4 * (i - 23), 4)

    CR = 6

    def rd(i):
        b = 8 + 8 * (i % CR)
        a(f"ds_read_b128 {vr(b,4)}, v2 offset:{i*1024}")
        a(f"ds_read_b128 {vr(b+4,4)}, v2 offset:{32768+i*1024}")
    def w2reg(j):
        if j < 23:
            return w1reg(j)
        return vr(136 + 4 * (j - 23), 4)
    if PROFILE and last:
        a("s_memtime s[90:91]")
        a("s_waitcnt lgkmcnt(0)")
    for i in range(CR - 1):
        rd(i)
    for i in range(32):
        if i + CR - 1 < 32:
            rd(i + CR - 1)
        pend = min(32, i + CR) - i - 1
        if i == 23:
            a(f"s_waitcnt vmcnt(22) lgkmcnt({2*pend})")
        else:
            a(f"s_waitcnt lgkmcnt({2*pend})")
        b = 8 + 8 * (i % CR)
        for r in range(2):
            cin = "0" if i == 0 else vr(CACC + 16 * r, 16)
            a(f"v_mfma_f32_32x32x16_bf16 {vr(CACC+16*r,16)}, {w1reg(i)}, {vr(b+4*r,4)}, {cin}")
        if 1 <= i <= 23:
            j = i - 1
            ld(a, w2reg(j), 54 + (j & 1), j >> 1, 33)
    if PROFILE and last:
        a("s_memtime s[92:93]")
        a("s_waitcnt lgkmcnt(0)")
    a(f"s_branch {T}_cepi")
    a(f"{T}_cskip:")
    for j in range(23):
        ld(a, w2reg(j), 54 + (j & 1), j >> 1, 33)
    a(f"{T}_cepi:")
    a.stamp(8)
    a("s_cmp_eq_u32 s3, 7")
    a(f"s_cbranch_scc1 {T}_cdone")
    a(f"v_add_u32 v5, {STAT}, v2")
    for w in range(8):
        a(f"ds_read_b128 {vr(32+4*w,4)}, v5 offset:{1024*w}")
    a("s_waitcnt lgkmcnt(0)")
    for w in range(1, 8):
        for r in range(4):
            a(f"v_add_f32 v{32+r}, v{32+r}, v{32+4*w+r}")
    for r in range(4):
        half_sum(a, 32 + r, 36)
    for r in range(2):
        m, x2 = 32 + 2 * r, 33 + 2 * r
        a(f"v_mul_f32 v{m}, {f2u(1.0/512):#x}, v{m}")
        a(f"v_mul_f32 v{x2}, {f2u(1.0/512):#x}, v{x2}")
        a(f"v_fma_f32 v{x2}, -v{m}, v{m}, v{x2}")
        a(f"v_max_f32 v{x2}, 0, v{x2}")
        a(f"v_add_f32 v{x2}, {f2u(EPS):#x}, v{x2}")
        a(f"v_rsq_f32 v{8+2*r}, v{x2}")
        a.nop(1)
        a(f"v_mul_f32 v{9+2*r}, v{m}, v{8+2*r}")
        a(f"v_sub_f32 v{9+2*r}, 0, v{9+2*r}")
    for rr in range(2):
        for r in range(16):
            a(f"v_mul_f32 v{40+r}, v{9+2*rr}, v{100+r}")
            a(f"v_fma_f32 v{CACC+16*rr+r}, v{CACC+16*rr+r}, v{8+2*rr}, v{40+r}")
        for q in range(8):
            a(f"v_cvt_pk_bf16_f32 v{16+8*rr+q}, v{CACC+16*rr+2*q}, v{CACC+16*rr+2*q+1}")
        for q in range(8):
            a(f"v_pk_max_i16 v{16+8*rr+q}, v{16+8*rr+q}, 0")
    a("s_lshl_b32 s26, s4, 1")
    a("s_mul_i32 s26, s26, 112")
    a("s_lshl_b32 s27, s51, 1")
    a("s_add_u32 s26, s26, s27")
    a("s_lshl_b32 s26, s26, 10")
    a(f"s_add_u32 s26, s26, {HF:#x}")
    a(f"s_add_u32 s27, s26, {112*1024}")
    hstore(a, ["buffer_store_dwordx4 v[16:19], v2, s[8:11], s26 offen",
               "buffer_store_dwordx4 v[20:23], v2, s[8:11], s26 offen offset:1024",
               "buffer_store_dwordx4 v[24:27], v2, s[8:11], s27 offen",
               "buffer_store_dwordx4 v[28:31], v2, s[8:11], s27 offen offset:1024"])
    a(f"{T}_cdone:")
    a.stamp(9)
    publish(a, EP + 3, f"{T}_p3")
    a("s_lshl_b32 s20, s4, 1")
    a("s_mul_i32 s20, s20, 112")
    a("s_mul_i32 s21, s3, 14")
    a("s_add_u32 s20, s20, s21")
    a("s_lshl_b32 s20, s20, 10")
    a(f"s_add_u32 s20, s20, {HF:#x}")
    a(f"s_add_u32 s21, s20, {112*1024}")
    wait_flag(a, EP + 3, f"{T}_w3")
    a.stamp(10)
    RING = 8
    DACC = 72

    def hld(i):
        b = 8 + 8 * (i % RING)
        ld(a, vr(b, 4), 20, i, 33, SCL)
        ld(a, vr(b + 4, 4), 21, i, 33, SCL)
    for i in range(RING):
        hld(i)
    def qreg(j):
        return w1reg(j)
    qpf = []
    if not last:
        a(f"s_add_u32 s48, s48, {(WQF - WOF) & 0xffffffff:#x}")
        a("s_add_u32 s49, s48, 32768")
        a("s_lshl_b32 s56, s3, 12")
        a(f"s_add_u32 s56, s56, {WKVF:#x}")
        a("v_lshlrev_b32 v156, 4, v4")
        a("v_lshlrev_b32 v157, 2, v3")
        a("s_lshl_b32 s57, s46, 7")
        a("s_lshl_b32 s33, s47, 6")
        a("s_add_u32 s57, s57, s33")
        a(f"s_add_u32 s57, s57, {CSQ:#x}")
        a(f"s_mov_b32 s58, {CSKV:#x}")
        for i in range(4):
            qpf.append(lambda i=i: ld(a, qreg(2 * i), 48, i, 33))
            qpf.append(lambda i=i: ld(a, qreg(2 * i + 1), 49, i, 33))
        for i in range(4):
            qpf.append(lambda i=i: ld(a, qreg(8 + i), 56, i, 33))
        for q in range(2):
            qpf.append(lambda q=q: a(f"buffer_load_dwordx4 {qreg(12+q)}, v156, s[8:11], s57 offen offset:{32*q}"))
        for q in range(2):
            qpf.append(lambda q=q: a(f"buffer_load_dwordx4 {qreg(14+q)}, v156, s[8:11], s58 offen offset:{32*q}"))
        qpf.append(lambda: a("buffer_load_dword a4, v157, s[8:11], s58 offen"))
    for j in range(23, 28):
        ld(a, w2reg(j), 54 + (j & 1), j >> 1, 33)

    def dloop(split, qpf):
        order = [('h', i) for i in range(RING)] + [('w', j) for j in range(23, 28)]
        for i in range(14):
            pos = order.index(('h', i))
            after = sum(2 if k == 'h' else 1 for (k, _) in order[pos + 1:])
            a(f"s_waitcnt vmcnt({after})")
            b = 8 + 8 * (i % RING)
            for c in range(2):
                for r in range(2):
                    t = 2 * c + r
                    cin = "0" if i == 0 else vr(DACC + 16 * t, 16)
                    a(f"v_mfma_f32_32x32x16_bf16 {vr(DACC+16*t,16)}, {w2reg(2*i+c)}, {vr(b+4*r,4)}, {cin}")
            if not split and i + RING < 14:
                hld(i + RING)
                order.append(('h', i + RING))
            elif split and i == RING - 1:
                poll3(0x70, f"{T}_w3b")
                for j in range(RING, 14):
                    hld(j)
                    order.append(('h', j))
            if i + RING >= 14 and (not split or i >= RING - 1):
                for _ in range(3):
                    k = sum(1 for (kk, _) in order if kk == 'q')
                    if qpf and k < 2 * i:
                        qpf.pop(0)()
                        order.append(('q', k))
        assert not qpf
    dloop(False, list(qpf))
    qpf = []
    a.stamp(11)
    assert not qpf
    reduce8(a, DACC, 8)
    for q in range(4):
        a(f"v_accvgpr_read_b32 v{16+q}, a{32+q}")
    for q in range(4):
        a(f"v_lshlrev_b32 v20, 16, v{16+q}")
        a(f"v_and_b32 v21, 0xffff0000, v{16+q}")
        a(f"v_add_f32 v{8+2*q}, v{8+2*q}, v20")
        a(f"v_add_f32 v{9+2*q}, v{9+2*q}, v21")
    for q in range(4):
        a(f"v_cvt_pk_bf16_f32 v{16+q}, v{8+2*q}, v{9+2*q}")
    if last:
        a.nop(2)
        a("v_permlane32_swap_b32 v16, v18")
        a("v_permlane32_swap_b32 v17, v19")
        a("v_lshlrev_b32 v5, 10, v3")
        a("v_lshl_add_u32 v5, v4, 4, v5")
        a("s_lshl_b32 s31, s45, 15")
        a("s_lshl_b32 s32, s46, 6")
        a("s_add_u32 s31, s31, s32")
        a("s_lshl_b32 s32, s47, 5")
        a("s_add_u32 s31, s31, s32")
        a("buffer_store_dwordx4 v[16:19], v5, s[16:19], s31 offen")
        a.stamp(12)
    else:
        XN, QN, KVN, KNN = XFL[1], QFL[1], KVFL[1], KNL[1]
        a(f"s_add_u32 s23, s42, {XN:#x}")
        hstore(a, ["buffer_store_dwordx4 v[16:19], v2, s[8:11], s23 offen"])
        a.stamp(12)
        publish(a, EP + 4, f"{T}_p4")
        a(f"s_add_u32 s20, s53, {XN:#x}")
        a("s_add_u32 s21, s20, 32768")
        a("s_mov_b32 s28, 0x3f803f80")
        wait_flag(a, EP + 4, f"{T}_w4")
        a.stamp(13)
        for i in range(4):
            ld(a, vr(8 + 8 * i, 4), 20, i, 33, SCL)
            ld(a, vr(12 + 8 * i, 4), 21, i, 33, SCL)
        for r in range(8):
            a(f"v_mov_b32 v{40+r}, 0")
        ACC = 64
        for i in range(4):
            a(f"s_waitcnt vmcnt({2*(3-i)})")
            for c in range(2):
                for r in range(2):
                    t = 2 * c + r
                    cin = "0" if i == 0 else vr(ACC + 16 * t, 16)
                    a(f"v_mfma_f32_32x32x16_bf16 {vr(ACC+16*t,16)}, {qreg(2*i+c)}, {vr(8+8*i+4*r,4)}, {cin}")
                    for q in range(4):
                        x = 8 + 8 * i + 4 * r + q
                        k = 40 + 4 * (q % 2) + 2 * r + c
                        if c == 0:
                            a(f"v_dot2_f32_bf16 v{k}, v{x}, s28, v{k}")
                        else:
                            a(f"v_dot2_f32_bf16 v{k}, v{x}, v{x}, v{k}")
        a("s_lshl_b32 s32, s3, 11")
        a(f"s_add_u32 s32, s32, {KVS}")
        a("v_add_u32 v7, s32, v2")
        a("s_cmp_ge_u32 s5, 6")
        a(f"s_cbranch_scc1 {T}_kvdone")
        for task in range(6):
            if task < 5:
                a(f"s_cmp_lg_u32 s5, {task}")
                a(f"s_cbranch_scc1 {T}_kvt{task+1}")
            kind = 'K' if task < 2 else 'V'
            r = task if task < 2 else (task - 2) >> 1
            u = 0 if task < 2 else (task & 1)
            for i in range(4):
                cin = "0" if i == 0 else vr(128, 16)
                if kind == 'K':
                    a(f"v_mfma_f32_32x32x16_bf16 {vr(128,16)}, {qreg(8+i)}, {vr(8+8*i+4*r,4)}, {cin}")
                else:
                    a(f"v_mfma_f32_32x32x16_bf16 {vr(128,16)}, {vr(8+8*i+4*r,4)}, {qreg(8+i)}, {cin}")
            a.nop(16)
            a(f"ds_write_b128 v7, {vr(128+8*u,4)}")
            a(f"ds_write_b128 v7, {vr(132+8*u,4)} offset:1024")
            if task < 5:
                a(f"s_branch {T}_kvdone")
                a(f"{T}_kvt{task+1}:")
        a(f"{T}_kvdone:")
        a("s_lshl_b32 s32, s3, 10")
        a(f"s_add_u32 s32, s32, {STATQ}")
        a("v_add_u32 v7, s32, v2")
        for r in range(4):
            a(f"v_add_f32 v{40+r}, v{40+r}, v{44+r}")
        a("ds_write_b128 v7, v[40:43]")
        reduce8(a, ACC, 8)
        a.stamp(14)
        qkv_tail(a, T, end, QN, KVN, KNN,
                 lambda: [a(f"v_accvgpr_read_b32 v{16+r}, a{84+r}") for r in range(8)],
                 lambda: [a(f"v_accvgpr_read_b32 v{16+r}, a{92+r if r < 4 else r-4}") for r in range(8)],
                 lambda: a("v_accvgpr_read_b32 v47, a4"))
    a(f"{end}:")
    a.stamp_flush(16)
    a(f"{end}x:")
    a("s_endpgm")
    a.desc(name, 160, agpr=96)
    return SCR + 8 * 2304 + 64


def tr_addr(a, dst, RS, t1, t2):
    a(f"v_lshrrev_b32 v{t1}, 5, v1")
    a(f"v_lshlrev_b32 v{t1}, 2, v{t1}")
    a(f"v_bfe_u32 v{t2}, v1, 2, 2")
    a(f"v_add_u32 v{t1}, v{t1}, v{t2}")
    a(f"v_mul_u32_u24 v{dst}, {RS}, v{t1}")
    a(f"v_bfe_u32 v{t1}, v1, 4, 1")
    a(f"v_lshlrev_b32 v{t1}, 5, v{t1}")
    a(f"v_and_b32 v{t2}, 3, v1")
    a(f"v_lshlrev_b32 v{t2}, 3, v{t2}")
    a(f"v_add3_u32 v{dst}, v{dst}, v{t1}, v{t2}")


def gen_K0(a):
    name = "k0_kernel"
    T = "K0"
    a.begin(name)
    end = f"{name}_end"
    a("s_cmp_ge_u32 s2, 256")
    a(f"s_cbranch_scc1 {end}x")
    a.stamp(0)
    a("s_load_dwordx16 s[16:31], s[0:1], 0")
    a("s_load_dwordx2 s[6:7], s[0:1], 80")
    a("v_and_b32 v1, 63, v0")
    a("v_lshrrev_b32 v2, 6, v0")
    a("v_and_b32 v3, 31, v1")
    a("v_readfirstlane_b32 s60, v2")
    a("v_lshrrev_b32 v4, 5, v1")
    a("v_lshlrev_b32 v2, 4, v1")
    a("s_and_b32 s4, s2, 31")
    a("s_lshr_b32 s5, s2, 5")
    a("s_and_b32 s3, s60, 7")
    a("s_waitcnt lgkmcnt(0)")
    a.srd(8, 6, G.WS_USED)
    a.srd(52, 20, 512 * 16 * 2)
    a.srd(56, 22, 512 * 16 * 2)
    a("s_mov_b32 s61, 0x3f803f80")
    a("s_cmp_ge_u32 s60, 8")
    a("s_cbranch_scc1 K0_prep")
    if os.environ.get('K0X', '') == 'qprio':
        a("s_setprio 3")
    a.stamp(1)
    a.srd(12, 16, 2048 * 512 * 2)
    a.srd(48, 18, 512 * 512 * 2)
    piece_sgprs(a)
    a("v_lshrrev_b32 v6, 3, v1")
    a("v_lshlrev_b32 v6, 10, v6")
    a("v_and_b32 v7, 7, v1")
    a("v_lshl_add_u32 v6, v7, 4, v6")
    a("s_lshl_b32 s20, s4, 16")
    a("s_lshl_b32 s22, s3, 7")
    a("s_add_u32 s20, s20, s22")
    for k in range(8):
        a(f"s_add_u32 s21, s20, {8192*k}")
        a(f"buffer_load_dwordx4 {vr(64+4*k,4)}, v6, s[12:15], s21 offen")
    a("v_lshrrev_b32 v7, 2, v1")
    a("v_lshlrev_b32 v7, 5, v7")
    a("v_and_b32 v5, 1, v1")
    a("v_lshl_add_u32 v7, v5, 4, v7")
    a("v_and_b32 v5, 2, v1")
    a("v_cmp_eq_u32 vcc, 0, v5")
    a("s_lshl_b32 s20, s3, 11")
    a("s_and_saveexec_b64 s[38:39], vcc")
    for i in range(4):
        a(f"buffer_load_dwordx4 {vr(96+4*i,4)}, v7, s[52:55], s20 offen offset:{512*i}")
    a("s_andn2_b64 exec, s[38:39], exec")
    for i in range(4):
        a(f"buffer_load_dwordx4 {vr(96+4*i,4)}, v7, s[56:59], s20 offen offset:{512*i}")
    a("s_mov_b64 exec, s[38:39]")
    a("s_lshl_b32 s22, s3, 16")
    a("s_lshl_b32 s23, s5, 7")
    a("s_add_u32 s22, s22, s23")
    a("s_lshl_b32 s23, s3, 13")
    for i in range(8):
        a(f"s_add_u32 m0, s23, {1024*i}")
        a(f"s_add_u32 s24, s22, {8192*i}")
        a("buffer_load_dwordx4 v6, s[48:51], s24 offen lds")
    a.stamp(2)
    if TOUCH2:
        a(f"s_add_u32 s24, s42, {QFL[0]:#x}")
        a(f"s_mul_i32 s25, s45, {KVT}")
        a(f"s_add_u32 s25, s25, {KVFL[0] - 1024:#x}")
        a("v_mov_b32 v5, s24")
        a("v_mov_b32 v6, s25")
        a("v_cmp_le_u32 vcc, 8, v1")
        a("v_min_u32 v7, 25, v1")
        a("v_lshlrev_b32 v7, 7, v7")
        a("v_cndmask_b32 v5, v5, v6, vcc")
        a("v_add_u32 v5, v5, v7")
        a("buffer_load_dword v0, v5, s[8:11], 0 offen")
    tr_addr(a, 56, 128, 5, 6)
    a("v_add_u32 v56, s23, v56")
    tr_addr(a, 57, 64, 5, 6)
    a("s_lshl_b32 s21, s3, 12")
    a("s_add_u32 s21, s21, 65536")
    a("v_add_u32 v57, s21, v57")
    a("v_lshrrev_b32 v5, 3, v1")
    a("v_and_b32 v6, 7, v1")
    a("v_xor_b32 v6, v6, v5")
    a("v_lshlrev_b32 v6, 4, v6")
    a("v_lshl_add_u32 v112, v5, 7, v6")
    a("v_add_u32 v112, s21, v112")
    a("v_and_b32 v5, 7, v3")
    a("v_lshlrev_b32 v5, 4, v5")
    a("v_lshl_add_u32 v5, v3, 7, v5")
    a("v_lshl_add_u32 v5, v4, 3, v5")
    a("v_add_u32 v113, s21, v5")
    a("v_add_u32 v114, s21, v2")
    for c in range(8):
        a(f"v_xor_b32 v{116+c}, {c<<4}, v113")
    for r in range(6):
        a(f"v_mov_b32 v{58+r}, 0")
    a("v_mov_b32 v7, 0")
    for r in range(2):
        a(f"s_waitcnt vmcnt({16+4*(1-r)+TOUCH2})")
        if r == 0:
            a.stamp(3)
        for j in range(4):
            a(f"ds_write_b128 v112, {vr(64+16*r+4*j,4)} offset:{1024*j}")
        for i in range(4):
            b = 8 + 8 * i + 4 * r
            a(f"ds_read_b64 {vr(b,2)}, v{116+2*i}")
            a(f"ds_read_b64 {vr(b+2,2)}, v{117+2*i}")
    a(f"s_waitcnt vmcnt({8+TOUCH2})")
    for i in range(4):
        a(f"ds_write_b128 v114, {vr(96+4*i,4)} offset:{1024*i}")
    for i in range(4):
        a(f"ds_read_b64_tr_b16 {vr(40+4*i,2)}, v57 offset:{16*i*64}")
        a(f"ds_read_b64_tr_b16 {vr(42+4*i,2)}, v57 offset:{(16*i+8)*64}")
    a("s_waitcnt lgkmcnt(0)")
    for r in range(16):
        a(f"v_dot2_f32_bf16 v7, v{40+r}, s61, v7")
    a("s_lshl_b32 s32, s3, 11")
    a(f"s_add_u32 s32, s32, {KVS}")
    a("v_add_u32 v6, s32, v2")
    a("s_cmp_ge_u32 s5, 6")
    a(f"s_cbranch_scc1 {T}_kvdone")
    for task in range(6):
        if task < 5:
            a(f"s_cmp_lg_u32 s5, {task}")
            a(f"s_cbranch_scc1 {T}_kvt{task+1}")
        kind = 'K' if task < 2 else 'V'
        r = task if task < 2 else (task - 2) >> 1
        u = 0 if task < 2 else (task & 1)
        for i in range(4):
            cin = "0" if i == 0 else vr(64, 16)
            if kind == 'K':
                a(f"v_mfma_f32_32x32x16_bf16 {vr(64,16)}, {vr(40+4*i,4)}, {vr(8+8*i+4*r,4)}, {cin}")
            else:
                a(f"v_mfma_f32_32x32x16_bf16 {vr(64,16)}, {vr(8+8*i+4*r,4)}, {vr(40+4*i,4)}, {cin}")
        a.nop(16)
        a(f"ds_write_b128 v6, {vr(64+8*u,4)}")
        a(f"ds_write_b128 v6, {vr(68+8*u,4)} offset:1024")
        if task < 5:
            a(f"s_branch {T}_kvdone")
            a(f"{T}_kvt{task+1}:")
    a(f"{T}_kvdone:")
    half_sum(a, 7, 5)
    a("s_mul_i32 s32, s3, 384")
    a(f"s_add_u32 s32, s32, {CSP}")
    a("v_lshlrev_b32 v6, 2, v3")
    a("v_add_u32 v6, s32, v6")
    a("ds_write_b32 v6, v7 offset:256")
    a(f"s_waitcnt vmcnt({TOUCH2})")
    a.stamp(4)

    def wrd(i):
        b = 40 + 8 * (i % 2)
        for c in range(2):
            a(f"ds_read_b64_tr_b16 {vr(b+4*c,2)}, v56 offset:{16*i*128+64*c}")
            a(f"ds_read_b64_tr_b16 {vr(b+4*c+2,2)}, v56 offset:{(16*i+8)*128+64*c}")
    wrd(0)
    ACC = 64
    for i in range(4):
        if i < 3:
            wrd(i + 1)
        a(f"s_waitcnt lgkmcnt({4 if i < 3 else 0})")
        b = 40 + 8 * (i % 2)
        for c in range(2):
            for r in range(2):
                t = 2 * c + r
                cin = "0" if i == 0 else vr(ACC + 16 * t, 16)
                a(f"v_mfma_f32_32x32x16_bf16 {vr(ACC+16*t,16)}, {vr(b+4*c,4)}, {vr(8+8*i+4*r,4)}, {cin}")
                for q in range(4):
                    x = 8 + 8 * i + 4 * r + q
                    k = 58 + 2 * r + c
                    if c == 0:
                        a(f"v_dot2_f32_bf16 v{k}, v{x}, s61, v{k}")
                    else:
                        a(f"v_dot2_f32_bf16 v{k}, v{x}, v{x}, v{k}")
                if r == 0:
                    for q in range(4):
                        a(f"v_dot2_f32_bf16 v{62+c}, v{b+4*c+q}, s61, v{62+c}")
    a("s_lshl_b32 s32, s3, 10")
    a(f"s_add_u32 s32, s32, {STATQ}")
    a("v_add_u32 v7, s32, v2")
    a.nop(2)
    a("ds_write_b128 v7, v[58:61]")
    half_sum(a, 62, 5)
    half_sum(a, 63, 5)
    a("ds_write_b32 v6, v62")
    a("ds_write_b32 v6, v63 offset:128")
    a.stamp(5)
    reduce8(a, ACC, 8, pre_barrier=True)
    a.stamp(6)

    def cs8(tile_off_expr):
        for s in range(8):
            for q in range(2):
                a(f"ds_read_b128 {vr(64+8*s+4*q,4)}, v46 offset:{s*384+32*q}")
        a("s_waitcnt lgkmcnt(0)")
        for r in range(8):
            a(f"v_add_f32 v{16+r}, v{64+r}, v{72+r}")
        for s in range(2, 8):
            for r in range(8):
                a(f"v_add_f32 v{16+r}, v{16+r}, v{64+8*s+r}")

    def get_csq():
        a("s_lshl_b32 s32, s44, 7")
        a("s_lshl_b32 s33, s47, 6")
        a("s_add_u32 s32, s32, s33")
        a(f"s_add_u32 s32, s32, {CSP}")
        a("v_lshlrev_b32 v46, 4, v4")
        a("v_add_u32 v46, s32, v46")
        cs8(None)

    def get_csk():
        a("v_lshlrev_b32 v46, 4, v4")
        a(f"v_add_u32 v46, {CSP+256}, v46")
        for s in range(6):
            for q in range(2):
                a(f"ds_read_b128 {vr(72+8*s+4*q,4)}, v46 offset:{s*384+32*q}")
        for s in range(6, 8):
            for q in range(2):
                a(f"ds_read_b128 {vr(24+8*(s-6)+4*q,4)}, v46 offset:{s*384+32*q}")
        a("s_waitcnt lgkmcnt(0)")
        for r in range(8):
            a(f"v_add_f32 v{16+r}, v{24+r}, v{32+r}")
        for s in range(6):
            for r in range(8):
                a(f"v_add_f32 v{16+r}, v{16+r}, v{72+8*s+r}")

    def get_csv():
        a("v_lshlrev_b32 v46, 2, v3")
        a(f"v_add_u32 v46, {CSP+256}, v46")
        for s in range(8):
            a(f"ds_read_b32 v{72+s}, v46 offset:{s*384}")
        a("s_waitcnt lgkmcnt(0)")
        a("v_add_f32 v47, v72, v73")
        for s in range(2, 8):
            a(f"v_add_f32 v47, v47, v{72+s}")
    qkv_tail(a, T, end, QFL[0], KVFL[0], KNL[0], get_csq, get_csk, get_csv)
    a(f"s_branch {end}")
    a("K0_prep:")
    if os.environ.get('K0X', '') == 'noprep':
        a(f"s_branch {end}x")
    if os.environ.get('K0X', '') == 'prio':
        a("s_setprio 3")
    a("s_cmp_lt_u32 s2, 154")
    a("s_cbranch_scc1 K0_ptask")
    if CODEPF:
        code_srd(a, 40, "K0")
        a("s_sub_u32 s32, s2, 154")
        a("s_lshr_b32 s32, s32, 3")
        a("s_lshl_b32 s32, s32, 3")
        a("s_add_u32 s32, s32, s3")
        a("s_lshl_b32 s32, s32, 10")
        a("buffer_load_dwordx4 v[16:19], v2, s[40:43], s32 offen")
        a("s_waitcnt vmcnt(0)")
    a(f"s_branch {end}x")
    a("K0_ptask:")
    a("s_cmp_lg_u32 s2, 153")
    a("s_cbranch_scc1 K0_pw")
    a("s_lshl_b32 s32, s3, 11")
    a(f"s_add_u32 s32, s32, {FLAGS:#x}")
    for r in range(4):
        a(f"v_mov_b32 v{16+r}, 0")
    a("buffer_store_dwordx4 v[16:19], v2, s[8:11], s32 offen")
    a("buffer_store_dwordx4 v[16:19], v2, s[8:11], s32 offen offset:1024")
    a(f"s_branch {end}x")
    a("K0_pw:")
    a("s_lshl_b32 s62, s3, 12")
    a("s_add_u32 s62, s62, 98304")
    a("s_mov_b32 s46, 0")
    a("s_mov_b32 s36, 32")
    a("s_cmp_eq_u32 s2, 152")
    a("s_cbranch_scc1 K0_pkv")
    a("s_cmp_ge_u32 s2, 88")
    a("s_cbranch_scc1 K0_pw2")
    a("s_cmp_ge_u32 s2, 32")
    a("s_cbranch_scc1 K0_pw1")
    a("s_cmp_ge_u32 s2, 16")
    a("s_cbranch_scc1 K0_pwo")
    a.srd(40, 18, 512 * 512 * 2)
    a("s_mov_b32 s44, 1024")
    a("s_mov_b32 s45, s2")
    a("s_lshl_b32 s47, s45, 15")
    a(f"s_add_u32 s47, s47, {WQF:#x}")
    a("s_lshl_b32 s49, s45, 7")
    a(f"s_add_u32 s49, s49, {CSQ:#x}")
    a("s_branch K0_pgo")
    a("K0_pwo:")
    a.srd(40, 24, 512 * 512 * 2)
    a("s_mov_b32 s44, 1024")
    a("s_sub_u32 s45, s2, 16")
    a("s_lshl_b32 s47, s45, 15")
    a(f"s_add_u32 s47, s47, {WOF:#x}")
    a("s_mov_b32 s49, 0")
    a("s_branch K0_pgo")
    a("K0_pw1:")
    a.srd(40, 28, 512 * 1792 * 2)
    a("s_mov_b32 s44, 3584")
    a("s_sub_u32 s45, s2, 32")
    a("s_lshl_b32 s47, s45, 15")
    a(f"s_add_u32 s47, s47, {W1F:#x}")
    a("s_lshl_b32 s49, s45, 7")
    a(f"s_add_u32 s49, s49, {CS1:#x}")
    a("s_branch K0_pgo")
    a("K0_pw2:")
    a.srd(40, 30, 512 * 1792 * 2)
    a("s_mov_b32 s44, 1024")
    a("s_sub_u32 s45, s2, 88")
    a("s_and_b32 s46, s45, 3")
    a("s_mul_i32 s46, s46, 28")
    a("s_lshr_b32 s45, s45, 2")
    a("s_mul_i32 s47, s45, 112")
    a("s_add_u32 s47, s47, s46")
    a("s_lshl_b32 s47, s47, 10")
    a(f"s_add_u32 s47, s47, {W2F:#x}")
    a("s_mov_b32 s36, 28")
    a("s_mov_b32 s49, 0")
    a("K0_pgo:")
    a("s_lshl_b32 s50, s3, 2")
    a("s_cmp_ge_u32 s50, s36")
    a(f"s_cbranch_scc1 {end}x")
    a("v_lshrrev_b32 v5, 2, v1")
    a("v_mul_lo_u32 v5, v5, s44")
    a("v_and_b32 v6, 3, v1")
    a("v_lshl_add_u32 v5, v6, 4, v5")
    a("s_add_u32 s51, s46, s50")
    a("s_lshl_b32 s51, s51, 4")
    a("s_mul_i32 s51, s51, s44")
    a("s_lshl_b32 s32, s45, 6")
    a("s_add_u32 s51, s51, s32")
    a("s_lshl_b32 s33, s44, 4")
    for i in range(4):
        a(f"s_add_u32 m0, s62, {1024*i}")
        a("s_nop 0")
        a("buffer_load_dwordx4 v5, s[40:43], s51 offen lds")
        a("s_add_u32 s51, s51, s33")
    a("s_branch K0_ptr")
    a("K0_pkv:")
    a("s_lshl_b32 s50, s3, 2")
    a("v_lshrrev_b32 v7, 2, v1")
    a("v_lshlrev_b32 v7, 5, v7")
    a("v_and_b32 v5, 1, v1")
    a("v_lshl_add_u32 v7, v5, 4, v7")
    a("v_and_b32 v5, 2, v1")
    a("v_cmp_eq_u32 vcc, 0, v5")
    a("s_lshl_b32 s20, s3, 11")
    a("s_and_saveexec_b64 s[38:39], vcc")
    for i in range(4):
        a(f"s_add_u32 m0, s62, {1024*i}")
        a(f"s_add_u32 s22, s20, {512*i}")
        a("buffer_load_dwordx4 v7, s[52:55], s22 offen lds")
    a("s_andn2_b64 exec, s[38:39], exec")
    for i in range(4):
        a(f"s_add_u32 m0, s62, {1024*i}")
        a(f"s_add_u32 s22, s20, {512*i}")
        a("buffer_load_dwordx4 v7, s[56:59], s22 offen lds")
    a("s_mov_b64 exec, s[38:39]")
    a(f"s_mov_b32 s47, {WKVF:#x}")
    a(f"s_mov_b32 s49, {CSKV:#x}")
    a("K0_ptr:")
    a("s_lshl_b32 s32, s50, 10")
    a("s_add_u32 s47, s47, s32")
    if TOUCH2:
        a("v_lshlrev_b32 v9, 7, v3")
        a("buffer_load_dword v10, v9, s[8:11], s47 offen")
    tr_addr(a, 8, 64, 5, 6)
    a("v_add_u32 v8, s62, v8")
    a("v_mov_b32 v7, 0")
    a(f"s_waitcnt vmcnt({TOUCH2})")
    for i in range(4):
        a(f"ds_read_b64_tr_b16 {vr(16+4*i,2)}, v8 offset:{16*i*64}")
        a(f"ds_read_b64_tr_b16 {vr(18+4*i,2)}, v8 offset:{(16*i+8)*64}")
    for i in range(4):
        a(f"s_waitcnt lgkmcnt({2*(3-i)})")
        a(f"buffer_store_dwordx4 {vr(16+4*i,4)}, v2, s[8:11], s47 offen offset:{1024*i}")
        for q in range(4):
            a(f"v_dot2_f32_bf16 v7, v{16+4*i+q}, s61, v7")
    a("s_cmp_eq_u32 s49, 0")
    a(f"s_cbranch_scc1 {end}x")
    a.nop(2)
    half_sum(a, 7, 5)
    a("s_lshl_b32 s32, s3, 7")
    a(f"s_add_u32 s32, s32, {CSP2}")
    a("v_lshlrev_b32 v6, 2, v3")
    a("v_add_u32 v5, s32, v6")
    a("ds_write_b32 v5, v7")
    a("s_waitcnt lgkmcnt(0)")
    a("s_barrier")
    a("s_cmp_lg_u32 s3, 0")
    a(f"s_cbranch_scc1 {end}x")
    a(f"v_add_u32 v5, {CSP2}, v6")
    for s in range(8):
        a(f"ds_read_b32 v{16+s}, v5 offset:{128*s}")
    a("s_waitcnt lgkmcnt(0)")
    for s in range(1, 8):
        a(f"v_add_f32 v16, v16, v{16+s}")
    a("v_cmp_gt_u32 vcc, 32, v1")
    a("s_and_saveexec_b64 s[38:39], vcc")
    a("buffer_store_dword v16, v6, s[8:11], s49 offen")
    a(f"s_branch {end}x")
    a(f"{end}:")
    a.stamp_flush(8)
    a(f"{end}x:")
    a("s_endpgm")
    a.desc(name, 128)
    return CSP2 + 1024


def gen_zero_flags(a):
    pass


def main():
    a = Asm()
    G.XF, G.QF, G.KVF = XFL[0], QFL[0], KVFL[0]
    G.FLAGS_ZERO = FLAGS
    lds_k0 = gen_K0(a)
    lds_f = gen_F(a, 0)
    gen_F(a, 1)
    hdr = ["; generated by gen/gen2.py -- fused MQA + FFN pipeline"]
    L = hdr.append
    L(f"; @launch kernel=k0_kernel grid=(256,1,1) block=(1024,1,1) lds={lds_k0}")
    L(f"; @launch kernel=f1_kernel grid=(256,1,1) block=(512,1,1) lds={lds_f}")
    L(f"; @launch kernel=f2_kernel grid=(256,1,1) block=(512,1,1) lds={lds_f}")
    out = "\n".join(hdr) + "\n"
    out += '.amdgcn_target "amdgcn-amd-amdhsa--gfx950"\n.text\n'
    out += "\n".join(a.L) + "\ncode_end:\n"
    out += '.section .rodata,"a"\n' + "\n".join(a.kernels) + "\n"
    path = sys.argv[1] if len(sys.argv) > 1 else f"cdna_kernels/{NAME}.s"
    open(path, 'w').write(out)
    if PROFILE:
        import json
        json.dump(G.PROF_SLOT, open('prof_slots.json', 'w'))
    print("wrote", path, len(out), "bytes")


if __name__ == "__main__":
    main()
```

```python
import os
import sys
import gen as G
from gen import Asm, vr, ar, f2u, half_sum, wave32_max, prologue, frag_loads
from gen import WQF, WOF, W1F, W2F, WKVF, CSQ, CS1, CSKV, VH, VU, KVT, KVF_BYTES, QS, EPS, NAME, PROFILE

LSTRIDE = 0x2000000
XFL = [0x500000, 0x500000 + LSTRIDE]
QFL = [0x700000, 0x700000 + LSTRIDE]
REUSE = int(os.environ.get('REUSE', '1'))
TOUCH = int(os.environ.get('TOUCH', '1'))
TOUCH2 = int(os.environ.get('TOUCH2', '1'))
_R = 0 if REUSE else LSTRIDE
OFL = [0x900000, 0x900000 + _R]
X1FL = [0xB00000, 0xB00000 + _R]
HFL = [0x1000000, 0x1000000 + _R]
KVFL = [0x1800000, 0x1800000 + LSTRIDE]
KNL = [0x1880000, 0x1880000 + LSTRIDE]
FLAGS = 0x490000
FL3 = FLAGS + 8192
G.WS_USED = 0x4400000
G.PROF = 0x4000000
G.KN = KNL[0]
SC = "sc0 sc1"
SCL = os.environ.get("SCL", "sc1")
SPIN_MAX = 200000
BMAX = float(os.environ.get('BMAX', '64'))

PRIO_IT = int(os.environ.get('PRIO_IT', '7'))
WARM = int(os.environ.get('WARM', '1'))
CODEPF = int(os.environ.get('CODEPF', '0'))
FAST = int(os.environ.get('FAST', '1'))
CZERO = int(os.environ.get('CZERO', '1'))


_uid = [0]
FSF = os.environ.get('FSF', '')


def hstore(a, insts):
    _uid[0] += 1
    u = _uid[0]
    a("s_cmp_lg_u32 s61, 0")
    a(f"s_cbranch_scc1 HS{u}_f")
    for i in insts:
        a(f"{i} {SC}")
    a(f"s_branch HS{u}_e")
    a(f"HS{u}_f:")
    for i in insts:
        a(i + (" " + FSF if 'dwordx4' in i else ""))
    a(f"HS{u}_e:")


def publish(a, epoch, tag):
    a("s_waitcnt vmcnt(0)")
    a("s_barrier")
    a("s_cmp_lg_u32 s3, 0")
    a(f"s_cbranch_scc1 {tag}_np")
    a(f"v_mov_b32 v5, {epoch}")
    a("v_mov_b32 v6, 0")
    a("v_cmp_eq_u32 vcc, 0, v1")
    a("s_and_saveexec_b64 s[38:39], vcc")
    hstore(a, ["buffer_store_dword v5, v6, s[8:11], s40 offen"])
    a("s_mov_b64 exec, s[38:39]")
    a(f"{tag}_np:")


def wait_flag(a, epoch, tag):
    a("v_mov_b32 v6, 0")
    a("s_mov_b32 s37, 0")
    a(f"{tag}_poll:")
    a(f"buffer_load_dword v5, v6, s[8:11], s41 offen {SC}")
    a("s_waitcnt vmcnt(0)")
    a("v_readfirstlane_b32 s36, v5")
    a("s_add_u32 s37, s37, 1")
    a(f"s_cmp_ge_u32 s36, {epoch}")
    a(f"s_cbranch_scc1 {tag}_go")
    a(f"s_cmp_gt_u32 s37, {SPIN_MAX}")
    a(f"s_cbranch_scc1 {tag}_go")
    a("s_sleep 1")
    a(f"s_branch {tag}_poll")
    a(f"{tag}_go:")


def ld(a, dst, sbase, idx, stmp, flags=""):
    hi, lo = idx // 4, idx % 4
    if hi == 0:
        so = f"s{sbase}"
    else:
        a(f"s_add_u32 s{stmp}, s{sbase}, {hi*4096}")
        so = f"s{stmp}"
    a(f"buffer_load_dwordx4 {dst}, v2, s[8:11], {so} offen offset:{lo*1024} {flags}")


def reduce8(a, ACC, DST, lds_base=0, pre_barrier=False):
    a("s_lshl_b32 s32, s3, 11")
    a("v_add_u32 v5, s32, v2")
    a("v_add_u32 v6, 0x10000, v5")
    a("s_lshl_b32 s32, s3, 14")
    a("v_add_u32 v7, s32, v2")
    a.nop(12)
    if pre_barrier:
        a("s_waitcnt lgkmcnt(0)")
        a("s_barrier")
    for p in range(8):
        for q in range(2):
            off = (p % 4) * 16384 + q * 1024
            a(f"ds_write_b128 v{5 if p < 4 else 6}, {vr(ACC+8*p+4*q,4)} offset:{off}")
    a("s_waitcnt lgkmcnt(0)")
    a("s_barrier")
    for s in range(8):
        for q in range(2):
            a(f"ds_read_b128 {vr(ACC+8*s+4*q,4)}, v7 offset:{s*2048+q*1024}")
    for s in range(0, 8, 2):
        a(f"s_waitcnt lgkmcnt({12-2*s})")
        for r in range(8):
            if s == 0:
                a(f"v_add_f32 v{DST+r}, v{ACC+r}, v{ACC+8+r}")
            else:
                a(f"v_add_f32 v{ACC+8*s+r}, v{ACC+8*s+r}, v{ACC+8*s+8+r}")
                a(f"v_add_f32 v{DST+r}, v{DST+r}, v{ACC+8*s+r}")


STATQ = 131072
KVS = STATQ + 8192
STAT2 = KVS + 16384
CSP = STAT2 + 256
CSP2 = CSP + 3072


def qkv_tail(a, T, end, QN, KVN, KNN, get_csq, get_csk, get_csv):
    a("s_lshl_b32 s32, s43, 3")
    a(f"s_add_u32 s32, s32, {STATQ}")
    a("v_add_u32 v7, s32, v2")
    for s in range(8):
        a(f"ds_read_b64 {vr(40+2*s,2)}, v7 offset:{s*1024}")
    a("s_waitcnt lgkmcnt(0)")
    for s in range(1, 8):
        a(f"v_add_f32 v40, v40, v{40+2*s}")
        a(f"v_add_f32 v41, v41, v{41+2*s}")
    half_sum(a, 40, 42)
    half_sum(a, 41, 42)
    a(f"v_mul_f32 v40, {f2u(1.0/512):#x}, v40")
    a(f"v_mul_f32 v41, {f2u(1.0/512):#x}, v41")
    a("v_fma_f32 v41, -v40, v40, v41")
    a("v_max_f32 v41, 0, v41")
    a(f"v_add_f32 v41, {f2u(EPS):#x}, v41")
    a("v_rsq_f32 v41, v41")
    a.nop(1)
    a("v_mul_f32 v42, v40, v41")
    a("v_sub_f32 v42, 0, v42")
    a(f"v_mul_f32 v43, {f2u(QS):#x}, v41")
    a(f"v_mul_f32 v44, {f2u(QS):#x}, v42")
    get_csq()
    for r in range(8):
        a(f"v_mul_f32 v{16+r}, v44, v{16+r}")
        a(f"v_fma_f32 v{8+r}, v{8+r}, v43, v{16+r}")
    for q in range(4):
        a(f"v_cvt_pk_bf16_f32 v{24+q}, v{8+2*q}, v{9+2*q}")
    a(f"s_add_u32 s23, s42, {QN:#x}")
    a("buffer_store_dwordx4 v[24:27], v2, s[8:11], s23 offen")
    a("s_cmp_ge_u32 s5, 6")
    a(f"s_cbranch_scc1 {end}")
    a("s_lshr_b32 s32, s5, 2")
    a("s_cmp_eq_u32 s5, 1")
    a("s_cselect_b32 s32, 1, s32")
    a("s_lshl_b32 s32, s32, 1")
    a("s_cmp_lg_u32 s3, s32")
    a(f"s_cbranch_scc1 {end}")
    a(f"v_add_u32 v7, {KVS}, v2")
    for s in range(8):
        for q in range(2):
            a(f"ds_read_b128 {vr(64+8*s+4*q,4)}, v7 offset:{s*2048+q*1024}")
    a(f"s_mul_i32 s33, s45, {KVT}")
    a(f"s_add_u32 s33, s33, {KVN:#x}")
    a("s_waitcnt lgkmcnt(0)")
    for s in range(1, 8):
        for r in range(8):
            a(f"v_add_f32 v{64+r}, v{64+r}, v{64+8*s+r}")
    a("s_cmp_ge_u32 s5, 2")
    a(f"s_cbranch_scc1 {T}_finV")
    a("v_mov_b32 v45, 0")
    get_csk()
    for r in range(8):
        a(f"v_mul_f32 v{16+r}, v42, v{16+r}")
        a(f"v_fma_f32 v{64+r}, v{64+r}, v41, v{16+r}")
        a(f"v_fma_f32 v45, v{64+r}, v{64+r}, v45")
    for q in range(4):
        a(f"v_cvt_pk_bf16_f32 v{28+q}, v{64+2*q}, v{65+2*q}")
    a("buffer_store_dwordx4 v[28:31], v2, s[8:11], s33 offen")
    half_sum(a, 45, 46)
    a("s_lshl_b32 s32, s45, 7")
    a(f"s_add_u32 s32, s32, {KNN:#x}")
    a("v_lshlrev_b32 v46, 2, v3")
    a("v_cmp_gt_u32 vcc, 32, v1")
    a("s_and_saveexec_b64 s[38:39], vcc")
    a("buffer_store_dword v45, v46, s[8:11], s32 offen")
    a(f"s_branch {end}")
    a(f"{T}_finV:")
    a("v_lshlrev_b32 v7, 2, v3")
    a(f"v_add_u32 v7, {STAT2}, v7")
    a("ds_write_b32 v7, v41")
    a("ds_write_b32 v7, v42 offset:128")
    a("s_and_b32 s32, s5, 1")
    a("s_lshl_b32 s32, s32, 6")
    a(f"s_add_u32 s32, s32, {STAT2}")
    a("v_lshlrev_b32 v7, 4, v4")
    a("v_add_u32 v7, s32, v7")
    get_csv()
    a("s_waitcnt lgkmcnt(0)")
    for q in range(2):
        a(f"ds_read_b128 {vr(16+4*q,4)}, v7 offset:{32*q}")
        a(f"ds_read_b128 {vr(24+4*q,4)}, v7 offset:{128+32*q}")
    a("s_waitcnt lgkmcnt(0)")
    for r in range(8):
        a(f"v_mul_f32 v{24+r}, v47, v{24+r}")
        a(f"v_fma_f32 v{64+r}, v{64+r}, v{16+r}, v{24+r}")
    for q in range(4):
        a(f"v_cvt_pk_bf16_f32 v{32+q}, v{64+2*q}, v{65+2*q}")
    a("v_cmp_eq_u32 s[38:39], 0, v3")
    a("v_mov_b32 v45, 0x3f803f80")
    a("v_mov_b32 v46, 0")
    a("v_cndmask_b32 v45, v46, v45, s[38:39]")
    a("v_cmp_le_u32 vcc, 16, v3")
    a("v_xor_b32 v7, 16, v3")
    a("v_lshlrev_b32 v7, 4, v7")
    for q in range(4):
        a(f"v_cndmask_b32 v{32+q}, v45, v{32+q}, vcc")
    a(f"v_mul_u32_u24 v46, {VH}, v4")
    a("v_add_u32 v7, v7, v46")
    a("s_and_b32 s32, s5, 1")
    a(f"s_mul_i32 s32, s32, {VU}")
    a("s_add_u32 s33, s33, s32")
    a("v_cmp_gt_u32 s[38:39], 2, v3")
    a("s_or_b64 vcc, vcc, s[38:39]")
    a("s_and_saveexec_b64 s[38:39], vcc")
    a("buffer_store_dwordx4 v[32:35], v7, s[8:11], s33 offen offset:1024")


def piece_sgprs(a):
    a("s_lshr_b32 s32, s3, 1")
    a("s_and_b32 s43, s32, 1")
    a("s_lshr_b32 s44, s3, 2")
    a("s_lshl_b32 s45, s4, 1")
    a("s_add_u32 s45, s45, s43")
    a("s_lshl_b32 s46, s5, 1")
    a("s_add_u32 s46, s46, s44")
    a("s_lshl_b32 s42, s45, 5")
    a("s_lshl_b32 s32, s46, 1")
    a("s_add_u32 s42, s42, s32")
    a("s_and_b32 s47, s3, 1")
    a("s_add_u32 s42, s42, s47")
    a("s_lshl_b32 s42, s42, 10")


def code_srd(a, d, tag):
    a(f"s_getpc_b64 s[{d}:{d+1}]")
    a(f"{tag}_pc:")
    a(f"s_add_u32 s{d}, s{d}, f1_kernel-{tag}_pc")
    a(f"s_addc_u32 s{d+1}, s{d+1}, {'-1' if tag != 'K0' else '0'}")
    a(f"s_mov_b32 s{d+2}, code_end-f1_kernel")
    a(f"s_mov_b32 s{d+3}, 0x00020000")


def gen_F(a, L):
    last = (L == 1)
    name = f"f{L+1}_kernel"
    T = f"F{L}"
    a.begin(name)
    end = f"{name}_end"
    prologue(a, end, out_ptr=True, out_off=(64 if last else 0))
    a.srd(16, 12, 2048 * 512 * 2)
    XF, QF, OF, X1F, HF, KVF, KN = XFL[L], QFL[L], OFL[L], X1FL[L], HFL[L], KVFL[L], KNL[L]
    EP = 4 * L
    SCR = KVF_BYTES
    KMX = SCR + 8 * 2304
    Q = (8, 12)
    C = 16
    O = (32, 48)
    S = (64, 80)
    P = (96, 104)
    E = 112
    KB = (128, 132)
    VB = (136, 144)
    a("s_and_b32 s20, s3, 3")
    a("s_lshr_b32 s30, s3, 2")
    a("s_and_b32 s21, s20, 1")
    a("s_lshl_b32 s21, s21, 1")
    a("s_lshl_b32 s22, s5, 2")
    a("s_add_u32 s21, s21, s22")
    a("s_lshr_b32 s22, s20, 1")
    a("s_lshl_b32 s23, s4, 1")
    a("s_add_u32 s22, s22, s23")
    a("s_lshl_b32 s22, s22, 5")
    a("s_add_u32 s22, s22, s21")
    a("s_add_u32 s23, s22, s30")
    a("s_xor_b32 s24, s30, 1")
    a("s_add_u32 s24, s22, s24")
    a("s_lshl_b32 s22, s23, 10")
    a("s_lshl_b32 s24, s24, 10")
    a(f"s_add_u32 s23, s22, {QF:#x}")
    a(f"s_add_u32 s24, s24, {QF:#x}")
    a(f"buffer_load_dwordx4 {vr(Q[0],4)}, v2, s[8:11], s23 offen")
    a(f"buffer_load_dwordx4 {vr(Q[1],4)}, v2, s[8:11], s24 offen")
    a("s_lshl_b32 s23, s3, 10")
    a(f"s_add_u32 s23, s23, {KN:#x}")
    a(f"buffer_load_dwordx4 {vr(E,4)}, v2, s[8:11], s23 offen")
    a("s_lshr_b32 s24, s3, 1")
    a("s_lshl_b32 s24, s24, 10")
    a("s_and_b32 s25, s3, 1")
    a(f"s_mul_i32 s25, s25, {32*KVT}")
    a("s_add_u32 s34, s24, s25")
    a(f"s_add_u32 s35, s34, {KVF:#x}")

    def dma():
        a("s_mov_b32 m0, s34")
        a("s_add_u32 s34, s34, 4096")
        a("buffer_load_dwordx4 v2, s[8:11], s35 offen lds")
        a("s_add_u32 s35, s35, 4096")
    for i in range(6):
        dma()
    a("s_lshl_b32 s40, s4, 8")
    a(f"s_add_u32 s40, s40, {FLAGS:#x}")
    a("s_lshl_b32 s41, s3, 2")
    a("s_add_u32 s41, s41, s40")
    a("s_lshl_b32 s32, s5, 2")
    a("s_add_u32 s40, s40, s32")
    piece_sgprs(a)
    a("s_getreg_b32 s61, hwreg(HW_REG_XCC_ID)")
    a("s_and_b32 s61, s61, 15")
    a("s_add_u32 s61, s61, 1")
    a("v_min_u32 v6, 17, v3")
    a("v_mov_b32 v5, 16")
    a("v_cmp_eq_u32 vcc, 20, v3")
    a(f"s_mul_i32 s25, s30, {32*KVT}")
    a.nop(1)
    a("v_cndmask_b32 v6, v6, v5, vcc")
    a("v_lshlrev_b32 v6, 4, v6")
    a(f"v_mul_u32_u24 v5, {VH}, v4")
    a("v_add3_u32 v158, v6, v5, 64")
    a("v_add_u32 v158, 960, v158")
    a("v_add_u32 v156, s25, v2")
    a("v_add_u32 v157, s25, v158")
    a("s_waitcnt vmcnt(6)")
    a("v_mov_b32 v5, 0")
    a("v_mov_b32 v6, 0")
    for q in range(4):
        a(f"v_dot2_f32_bf16 v5, v{Q[0]+q}, v{Q[0]+q}, v5")
        a(f"v_dot2_f32_bf16 v6, v{Q[1]+q}, v{Q[1]+q}, v6")
    a.nop(3)
    half_sum(a, 5, 154)
    half_sum(a, 6, 154)
    a("v_max_f32 v5, v5, v6")
    a(f"v_max3_f32 v7, v{E}, v{E+1}, v{E+2}")
    a(f"v_max_f32 v7, v7, v{E+3}")
    for off in (0x041F, 0x081F, 0x101F, 0x201F, 0x401F):
        a(f"ds_swizzle_b32 v6, v5 offset:{off:#x}")
        a(f"ds_swizzle_b32 v154, v7 offset:{off:#x}")
        a("s_waitcnt lgkmcnt(0)")
        a("v_max_f32 v5, v5, v6")
        a("v_max_f32 v7, v7, v154")
    half_sum(a, 7, 154, op="v_max_f32")
    a("v_readfirstlane_b32 s63, v5")
    a("s_lshl_b32 s23, s3, 2")
    a(f"s_add_u32 s23, s23, {KMX}")
    a("v_mov_b32 v6, s23")
    a("ds_write_b32 v6, v7")
    for r in range(16):
        a(f"v_mov_b32 v{O[0]+r}, 0")
        a(f"v_mov_b32 v{O[1]+r}, 0")
        a(f"v_mov_b32 v{E+r}, 0")
    for r in range(8):
        a(f"v_mov_b32 v{P[1]+r}, 0")
        a(f"v_mov_b32 v{VB[1]+r}, 0")
    a("s_lshl_b32 s32, s5, 1")
    a("s_lshl_b32 s48, s32, 5")
    a("s_lshl_b32 s33, s3, 2")
    a("s_add_u32 s48, s48, s33")
    a("s_lshl_b32 s48, s48, 10")
    a(f"s_add_u32 s48, s48, {WOF:#x}")
    a("s_add_u32 s49, s48, 32768")
    a("s_min_u32 s32, s3, 6")
    a("s_mul_i32 s51, s5, 7")
    a("s_add_u32 s51, s51, s32")
    a("s_lshl_b32 s50, s51, 15")
    a(f"s_add_u32 s50, s50, {W1F:#x}")
    a(f"s_add_u32 s52, s42, {XF:#x}")
    pf = []
    for i in range(4):
        pf.append((ar(8 * i, 4), 48, i))
        pf.append((ar(8 * i + 4, 4), 49, i))
    if last:
        pf.append((ar(32, 4), 52, 0))
    else:
        a("v_lshlrev_b32 v159, 10, v3")
        a("v_lshl_add_u32 v159, v4, 3, v159")
        a("s_lshl_b32 s52, s45, 15")
        a("s_lshl_b32 s32, s46, 6")
        a("s_add_u32 s52, s52, s32")
        a("s_lshl_b32 s32, s47, 5")
        a("s_add_u32 s52, s52, s32")
        pf.append(None)
    for i in range(15):
        pf.append((ar(36 + 4 * i, 4), 50, i))
    a("s_waitcnt vmcnt(0) lgkmcnt(0)")
    a("s_barrier")
    a.stamp(2)
    a(f"ds_read_b128 {vr(KB[0],4)}, v156")
    a(f"ds_read_b128 {vr(KB[1],4)}, v156 offset:{KVT}")
    a(f"ds_read_b128 {vr(VB[0],4)}, v157")
    a(f"ds_read_b128 {vr(VB[0]+4,4)}, v157 offset:{VU}")
    a("s_cmp_lt_u32 s3, 4")
    a(f"s_cbranch_scc1 {T}_noprio")
    a("s_setprio 1")
    a(f"{T}_noprio:")
    a("s_waitcnt lgkmcnt(3)")
    a(f"v_mfma_f32_32x32x16_bf16 {vr(S[0],16)}, {vr(KB[0],4)}, {vr(Q[0],4)}, {'0' if CZERO else vr(C,16)}")
    a.nop(10)
    UN, PV1, PV2, DLY, NE = 4, 3, 6, 2, 16

    def body(extra, slots=(1, 4, 5)):
        for t in range(UN):
            for x in range(2):
                y = 1 - x
                ty = t if x == 0 else t + 1
                tv = t - 1 if x == 0 else t
                for i in range(8):
                    if i == 0:
                        if x == 1:
                            a("s_waitcnt lgkmcnt(0)")
                        a(f"v_mfma_f32_32x32x16_bf16 {vr(S[y],16)}, {vr(KB[ty%2],4)}, {vr(Q[y],4)}, {'0' if CZERO else vr(C,16)}")
                        if x == 1:
                            a(f"ds_read_b128 {vr(KB[t%2],4)}, v156 offset:{(t+2)*KVT}")
                            a(f"ds_read_b128 {vr(VB[(t+1)%2],4)}, v157 offset:{(t+1)*KVT}")
                            a(f"ds_read_b128 {vr(VB[(t+1)%2]+4,4)}, v157 offset:{(t+1)*KVT+VU}")
                    e = E + (2 * i) % NE
                    a(f"v_exp_f32 v{e}, v{S[x]+2*i}")
                    a(f"v_exp_f32 v{e+1}, v{S[x]+2*i+1}")
                    j = i - DLY
                    if j >= 0:
                        ej = E + (2 * j) % NE
                        a(f"v_cvt_pk_bf16_f32 v{P[x]+j}, v{ej}, v{ej+1}")
                    else:
                        ej = E + (2 * (j + 8)) % NE
                        a(f"v_cvt_pk_bf16_f32 v{P[y]+j+8}, v{ej}, v{ej+1}")
                    if i == PV1:
                        a(f"v_mfma_f32_32x32x16_bf16 {vr(O[y],16)}, {vr(VB[tv%2],4)}, {vr(P[y],4)}, {vr(O[y],16)}")
                    if i == PV2:
                        a(f"v_mfma_f32_32x32x16_bf16 {vr(O[y],16)}, {vr(VB[tv%2]+4,4)}, {vr(P[y]+4,4)}, {vr(O[y],16)}")
                    if i in slots and extra:
                        extra.pop(0)()
                if t == UN - 1 and x == 1:
                    a(f"v_add_u32 v156, {UN*KVT}, v156")
                    a(f"v_add_u32 v157, {UN*KVT}, v157")
                    a("s_add_u32 s29, s29, 1")
                    a("s_cmp_lg_u32 s29, 8")

    a("s_mov_b32 s29, 0")
    body([dma] * 11)
    body([])
    a("s_waitcnt vmcnt(0)")
    a("s_barrier")
    def rawres():
        a("buffer_load_dwordx2 a[32:33], v159, s[16:19], s52 offen")
        a("buffer_load_dwordx2 a[34:35], v159, s[16:19], s52 offen offset:16")
    pfl = [(lambda e=e: ld(a, e[0], e[1], e[2], 33)) if e else rawres for e in pf]
    def xid():
        a("s_cmp_lg_u32 s3, 0")
        a(f"s_cbranch_scc1 {T}_noxid")
        a("v_mov_b32 v5, s61")
        a("v_mov_b32 v6, 0")
        a("s_mov_b64 exec, 1")
        a(f"buffer_store_dword v5, v6, s[8:11], s40 offen offset:{64+32*L} {SC}")
        a("s_mov_b64 exec, -1")
        a(f"{T}_noxid:")
    xid()
    body(pfl[0:8], (4,))
    body(pfl[8:16], (4,))
    tail = []
    if WARM:
        a("s_lshr_b32 s56, s4, 3")
        a("s_and_b32 s56, s56, 3")
        a("s_and_b32 s57, s56, 1")
        a("s_lshl_b32 s58, s5, 1")
        a("s_add_u32 s57, s57, s58")
        a("s_mul_i32 s57, s57, 112")
        a("s_mul_i32 s58, s3, 14")
        a("s_add_u32 s57, s57, s58")
        a("s_lshr_b32 s58, s56, 1")
        a("s_mul_i32 s58, s58, 7")
        a("s_add_u32 s57, s57, s58")
        a("s_lshl_b32 s57, s57, 10")
        a(f"s_add_u32 s57, s57, {W2F:#x}")
        a("s_lshl_b32 s58, s56, 12")
        a("s_add_u32 s58, s58, s50")
        a(f"s_add_u32 s58, s58, {15*1024}")
        a("s_and_b32 s59, s56, 1")
        a("s_lshl_b32 s59, s59, 15")
        a("s_lshr_b32 s60, s56, 1")
        a("s_lshl_b32 s60, s60, 11")
        a("s_add_u32 s59, s59, s60")
        a("s_add_u32 s59, s59, s48")
        a(f"s_add_u32 s59, s59, {(WQF - WOF) & 0xffffffff:#x}")
        for k, (n, sr) in enumerate(((56, 57), (40, 58), (16, 59))):
            if last and sr == 59:
                continue
            a(f"v_min_u32 v{152+k}, {n-1}, v1")
            a(f"v_lshlrev_b32 v{152+k}, 7, v{152+k}")
            tail.append(lambda k=k, sr=sr: a(f"buffer_load_dword v155, v{152+k}, s[8:11], s{sr} offen"))
    a("v_and_b32 v5, 7, v1")
    a("v_lshlrev_b32 v5, 2, v5")
    a("s_lshl_b32 s62, s4, 8")
    a(f"s_add_u32 s62, s62, {FLAGS:#x}")
    tail.append(lambda: a(f"buffer_load_dword v159, v5, s[8:11], s62 offen offset:{64+32*L} {SC}"))
    if TOUCH and (L == 0 or not REUSE):
        a(f"s_add_u32 s20, s22, {OF:#x}")
        a(f"s_add_u32 s21, s42, {X1F:#x}")
        a("s_lshl_b32 s23, s4, 1")
        a("s_mul_i32 s23, s23, 112")
        a("s_lshl_b32 s24, s51, 1")
        a("s_add_u32 s23, s23, s24")
        a("s_lshl_b32 s23, s23, 10")
        a(f"s_add_u32 s23, s23, {HF:#x}")
        a("s_add_u32 s24, s23, 1024")
        a(f"s_add_u32 s25, s23, {112*1024}")
        a("s_add_u32 s26, s25, 1024")
        a(f"s_add_u32 s27, s42, {XFL[1]:#x}")
        a(f"s_add_u32 s28, s42, {QFL[1]:#x}")
        a("v_mov_b32 v6, s20")
        for k, sr in enumerate((21, 23, 24, 25, 26, 27, 28)):
            a(f"v_mov_b32 v7, s{sr}")
            a(f"v_cmp_le_u32 vcc, {8*(k+1)}, v1")
            a.nop(2)
            a("v_cndmask_b32 v6, v6, v7, vcc")
        a("v_and_b32 v7, 7, v1")
        a("v_lshl_add_u32 v6, v7, 7, v6")
        tail.append(lambda: a("buffer_load_dword v7, v6, s[8:11], 0 offen"))
    if TOUCH2:
        if last:
            a("v_lshlrev_b32 v6, 10, v3")
            a("s_lshl_b32 s20, s45, 15")
            a("s_lshl_b32 s21, s46, 6")
            a("s_add_u32 s20, s20, s21")
            tail.append(lambda: a("buffer_load_dword v7, v6, s[16:19], s20 offen"))
        else:
            a(f"s_mul_i32 s31, s45, {KVT}")
            a(f"s_add_u32 s31, s31, {KVFL[1]:#x}")
            tail.append(lambda: a("buffer_load_dword v155, v154, s[8:11], s31 offen"))
    body(pfl[16:24] + tail, (1, 5))
    a(f"{T}_loop:")
    a(f"s_cmp_lg_u32 s29, {PRIO_IT}")
    a(f"s_cbranch_scc1 {T}_prio2")
    a("s_setprio 0")
    a(f"{T}_prio2:")
    body([])
    a(f"s_cbranch_scc1 {T}_loop")
    a("s_waitcnt vmcnt(0)")
    for j in range(8 - DLY, 8):
        ej = E + (2 * j) % NE
        a(f"v_cvt_pk_bf16_f32 v{P[1]+j}, v{ej}, v{ej+1}")
    a.nop(2)
    a(f"v_mfma_f32_32x32x16_bf16 {vr(O[1],16)}, {vr(VB[1],4)}, {vr(P[1],4)}, {vr(O[1],16)}")
    a(f"v_mfma_f32_32x32x16_bf16 {vr(O[1],16)}, {vr(VB[1]+4,4)}, {vr(P[1]+4,4)}, {vr(O[1],16)}")
    a("s_mul_i32 s25, s3, 2304")
    a(f"s_add_u32 s25, s25, {SCR}")
    a("v_add_u32 v5, s25, v2")
    a("v_lshlrev_b32 v6, 2, v1")
    a("v_add_u32 v6, s25, v6")
    a("s_xor_b32 s25, s3, 4")
    a("s_mul_i32 s25, s25, 2304")
    a(f"s_add_u32 s25, s25, {SCR}")
    a("v_add_u32 v7, s25, v2")
    a("s_waitcnt vmcnt(0)")
    a("s_mov_b32 s37, 0")
    a("v_and_b32 v153, 7, v1")
    a("v_lshlrev_b32 v153, 2, v153")
    a(f"{T}_xchk:")
    a("v_cmp_eq_u32 vcc, 0, v159")
    a("s_cmp_eq_u64 vcc, 0")
    a(f"s_cbranch_scc1 {T}_xok")
    a("s_add_u32 s37, s37, 1")
    a(f"s_cmp_gt_u32 s37, {SPIN_MAX}")
    a(f"s_cbranch_scc1 {T}_xok")
    a("s_sleep 1")
    a(f"buffer_load_dword v159, v153, s[8:11], s62 offen offset:{64+32*L} {SC}")
    a("s_waitcnt vmcnt(0)")
    a(f"s_branch {T}_xchk")
    a(f"{T}_xok:")
    a("v_cmp_ne_u32 vcc, s61, v159")
    a("s_cmp_eq_u64 vcc, 0")
    a(f"s_cselect_b32 s61, {FAST}, 0")
    a("v_lshlrev_b32 v154, 2, v1")
    a("v_add_u32 v154, s25, v154")
    a("s_waitcnt lgkmcnt(0)")
    a.nop(8)
    a(f"ds_write_b128 v5, {vr(O[1],4)}")
    a(f"ds_write_b128 v5, {vr(O[1]+4,4)} offset:1024")
    a(f"ds_write_b32 v6, v{O[1]+8} offset:2048")
    a("s_waitcnt lgkmcnt(0)")
    a("s_barrier")
    a(f"ds_read_b128 {vr(S[0],4)}, v7")
    a(f"ds_read_b128 {vr(S[0]+4,4)}, v7 offset:1024")
    a(f"ds_read_b32 v{S[0]+8}, v154 offset:2048")
    a(f"v_mov_b32 v5, {KMX}")
    a(f"ds_read_b128 {vr(S[1],4)}, v5")
    a(f"ds_read_b128 {vr(S[1]+4,4)}, v5 offset:16")
    a("s_waitcnt lgkmcnt(0)")
    for r in range(9):
        a(f"v_add_f32 v{O[0]+r}, v{O[0]+r}, v{S[0]+r}")
    a(f"v_max3_f32 v5, v{S[1]}, v{S[1]+1}, v{S[1]+2}")
    a(f"v_max3_f32 v5, v5, v{S[1]+3}, v{S[1]+4}")
    a(f"v_max3_f32 v5, v5, v{S[1]+5}, v{S[1]+6}")
    a(f"v_max_f32 v5, v5, v{S[1]+7}")
    a("v_mul_f32 v5, s63, v5")
    a(f"v_mov_b32 v6, {f2u(BMAX*BMAX):#x}")
    a("v_cmp_nle_f32 vcc, v5, v6")
    a("s_cmp_eq_u64 vcc, 0")
    a(f"s_cbranch_scc1 {T}_afin")
    a("v_mov_b32 v156, v2")
    a("v_mov_b32 v6, 0xff800000")
    a("s_mov_b32 s29, 64")
    a(f"{T}_fb:")
    a(f"ds_read_b128 {vr(KB[0],4)}, v156")
    a(f"v_add_u32 v156, {KVT}, v156")
    a("s_waitcnt lgkmcnt(0)")
    a(f"v_mfma_f32_32x32x16_bf16 {vr(S[0],16)}, {vr(KB[0],4)}, {vr(Q[0],4)}, 0")
    a.nop(16)
    for i in range(8):
        a(f"v_max3_f32 v6, v6, v{S[0]+2*i}, v{S[0]+2*i+1}")
    a("s_sub_u32 s29, s29, 1")
    a("s_cmp_lg_u32 s29, 0")
    a(f"s_cbranch_scc1 {T}_fb")
    half_sum(a, 6, 7, op="v_max_f32")
    a("v_sub_f32 v6, 0, v6")
    for r in range(16):
        a(f"v_mov_b32 v{C+r}, v6")
        a(f"v_mov_b32 v{O[0]+r}, 0")
    a("v_mov_b32 v156, v2")
    a("v_mov_b32 v157, v158")
    a("s_mov_b32 s29, 64")
    a(f"{T}_fb2:")
    a(f"ds_read_b128 {vr(KB[0],4)}, v156")
    a(f"ds_read_b128 {vr(VB[0],4)}, v157")
    a(f"ds_read_b128 {vr(VB[0]+4,4)}, v157 offset:{VU}")
    a(f"v_add_u32 v156, {KVT}, v156")
    a(f"v_add_u32 v157, {KVT}, v157")
    a("s_waitcnt lgkmcnt(0)")
    a(f"v_mfma_f32_32x32x16_bf16 {vr(S[0],16)}, {vr(KB[0],4)}, {vr(Q[0],4)}, {vr(C,16)}")
    a.nop(16)
    for i in range(16):
        a(f"v_exp_f32 v{S[0]+i}, v{S[0]+i}")
    a.nop(1)
    for i in range(8):
        a(f"v_cvt_pk_bf16_f32 v{P[0]+i}, v{S[0]+2*i}, v{S[0]+2*i+1}")
    a.nop(2)
    a(f"v_mfma_f32_32x32x16_bf16 {vr(O[0],16)}, {vr(VB[0],4)}, {vr(P[0],4)}, {vr(O[0],16)}")
    a(f"v_mfma_f32_32x32x16_bf16 {vr(O[0],16)}, {vr(VB[0]+4,4)}, {vr(P[0]+4,4)}, {vr(O[0],16)}")
    a.nop(16)
    a("s_sub_u32 s29, s29, 1")
    a("s_cmp_lg_u32 s29, 0")
    a(f"s_cbranch_scc1 {T}_fb2")
    a(f"{T}_afin:")
    a(f"v_rcp_f32 v6, v{O[0]+8}")
    a.nop(1)
    for r in range(8):
        a(f"v_mul_f32 v{O[0]+r}, v{O[0]+r}, v6")
    for q in range(4):
        a(f"v_cvt_pk_bf16_f32 v{S[0]+q}, v{O[0]+2*q}, v{O[0]+2*q+1}")
    a(f"s_add_u32 s23, s22, {OF:#x}")
    hstore(a, [f"buffer_store_dwordx4 {vr(S[0],4)}, v2, s[8:11], s23 offen"])
    a.stamp(3)
    publish(a, EP + 1, f"{T}_p1")
    a("s_lshl_b32 s20, s4, 6")
    a("s_lshl_b32 s21, s3, 2")
    a("s_add_u32 s20, s20, s21")
    a("s_lshl_b32 s53, s20, 10")
    a(f"s_add_u32 s20, s53, {OF:#x}")
    a("s_add_u32 s21, s20, 32768")
    wait_flag(a, EP + 1, f"{T}_w1")
    a.stamp(4)
    for i in range(4):
        ld(a, vr(8 + 8 * i, 4), 20, i, 33, SCL)
        ld(a, vr(12 + 8 * i, 4), 21, i, 33, SCL)
    ACC = 64
    for i in range(4):
        a(f"s_waitcnt vmcnt({2*(3-i)})")
        for c in range(2):
            for r in range(2):
                t = 2 * c + r
                cin = "0" if i == 0 else vr(ACC + 16 * t, 16)
                a(f"v_mfma_f32_32x32x16_bf16 {vr(ACC+16*t,16)}, {ar(8*i+4*c,4)}, {vr(8+8*i+4*r,4)}, {cin}")
    for i in range(8):
        ld(a, ar(4 * i, 4), 50, 15 + i, 33)
    reduce8(a, ACC, 128)
    for q in range(4):
        a(f"v_accvgpr_read_b32 v{136+q}, a{32+q}")
    for q in range(4):
        a(f"v_lshlrev_b32 v{140}, 16, v{136+q}")
        a(f"v_and_b32 v{141}, 0xffff0000, v{136+q}")
        a(f"v_add_f32 v{128+2*q}, v{128+2*q}, v140")
        a(f"v_add_f32 v{129+2*q}, v{129+2*q}, v141")
    for q in range(4):
        a(f"v_cvt_pk_bf16_f32 v{136+q}, v{128+2*q}, v{129+2*q}")
    a(f"s_add_u32 s23, s42, {X1F:#x}")
    hstore(a, ["buffer_store_dwordx4 v[136:139], v2, s[8:11], s23 offen"])
    for q in range(4):
        a(f"v_accvgpr_write_b32 a{32+q}, v{136+q}")
    a.stamp(5)
    publish(a, EP + 2, f"{T}_p2")
    a(f"s_add_u32 s20, s53, {X1F:#x}")
    a("s_add_u32 s21, s20, 32768")
    wait_flag(a, EP + 2, f"{T}_w2")
    a.stamp(6)
    for i in range(4):
        ld(a, vr(32 + 4 * i, 4), 20, i, 33, SCL)
    for i in range(4):
        ld(a, vr(48 + 4 * i, 4), 21, i, 33, SCL)
    for i in range(9):
        ld(a, vr(64 + 4 * i, 4), 50, 23 + i, 33)
    a("v_lshlrev_b32 v7, 4, v4")
    a("s_lshl_b32 s27, s51, 7")
    a(f"s_add_u32 s27, s27, {CS1:#x}")
    for q in range(4):
        a(f"buffer_load_dwordx4 {vr(100+4*q,4)}, v7, s[8:11], s27 offen offset:{32*q}")
    STAT = 65536
    a("s_lshl_b32 s21, s3, 12")
    a("v_add_u32 v5, s21, v2")
    a("s_mov_b32 s28, 0x3f803f80")
    for r in range(8):
        a(f"v_mov_b32 v{8+r}, 0")
    for rr in range(2):
        a(f"s_waitcnt vmcnt({13+4*(1-rr)})")
        for i in range(4):
            a(f"ds_write_b128 v5, {vr(32+16*rr+4*i,4)} offset:{32768*rr+1024*i}")
        for i in range(16):
            x = 32 + 16 * rr + i
            k = 4 * (i % 2)
            a(f"v_dot2_f32_bf16 v{8+k+2*rr}, v{x}, s28, v{8+k+2*rr}")
            a(f"v_dot2_f32_bf16 v{9+k+2*rr}, v{x}, v{x}, v{9+k+2*rr}")
    a("s_lshl_b32 s21, s3, 10")
    a(f"s_add_u32 s21, s21, {STAT}")
    a("v_add_u32 v5, s21, v2")
    a.nop(2)
    for r in range(4):
        a(f"v_add_f32 v{8+r}, v{8+r}, v{12+r}")
    a("ds_write_b128 v5, v[8:11]")
    a("s_waitcnt lgkmcnt(0)")
    a("s_barrier")
    a.stamp(7)
    a("s_lshl_b32 s32, s5, 1")
    a("s_mul_i32 s54, s32, 112")
    a("s_mul_i32 s33, s3, 14")
    a("s_add_u32 s54, s54, s33")
    a("s_lshl_b32 s54, s54, 10")
    a(f"s_add_u32 s54, s54, {W2F:#x}")
    a(f"s_add_u32 s55, s54, {112*1024}")
    a("s_cmp_eq_u32 s3, 7")
    a(f"s_cbranch_scc1 {T}_cskip")
    CACC = 116

    def w1reg(i):
        if i < 15:
            return ar(36 + 4 * i, 4)
        if i < 23:
            return ar(4 * (i - 15), 4)
        return vr(64 + 4 * (i - 23), 4)

    CR = 6

    def rd(i):
        b = 8 + 8 * (i % CR)
        a(f"ds_read_b128 {vr(b,4)}, v2 offset:{i*1024}")
        a(f"ds_read_b128 {vr(b+4,4)}, v2 offset:{32768+i*1024}")
    def w2reg(j):
        if j < 23:
            return w1reg(j)
        return vr(136 + 4 * (j - 23), 4)
    for i in range(CR - 1):
        rd(i)
    for i in range(32):
        if i + CR - 1 < 32:
            rd(i + CR - 1)
        pend = min(32, i + CR) - i - 1
        if i == 23:
            a(f"s_waitcnt vmcnt(22) lgkmcnt({2*pend})")
        else:
            a(f"s_waitcnt lgkmcnt({2*pend})")
        b = 8 + 8 * (i % CR)
        for r in range(2):
            cin = "0" if i == 0 else vr(CACC + 16 * r, 16)
            a(f"v_mfma_f32_32x32x16_bf16 {vr(CACC+16*r,16)}, {w1reg(i)}, {vr(b+4*r,4)}, {cin}")
        if 1 <= i <= 23:
            j = i - 1
            ld(a, w2reg(j), 54 + (j & 1), j >> 1, 33)
    a(f"s_branch {T}_cepi")
    a(f"{T}_cskip:")
    for j in range(23):
        ld(a, w2reg(j), 54 + (j & 1), j >> 1, 33)
    a(f"{T}_cepi:")
    a.stamp(8)
    a("s_cmp_eq_u32 s3, 7")
    a(f"s_cbranch_scc1 {T}_cdone")
    a(f"v_add_u32 v5, {STAT}, v2")
    for w in range(8):
        a(f"ds_read_b128 {vr(32+4*w,4)}, v5 offset:{1024*w}")
    a("s_waitcnt lgkmcnt(0)")
    for w in range(1, 8):
        for r in range(4):
            a(f"v_add_f32 v{32+r}, v{32+r}, v{32+4*w+r}")
    for r in range(4):
        half_sum(a, 32 + r, 36)
    for r in range(2):
        m, x2 = 32 + 2 * r, 33 + 2 * r
        a(f"v_mul_f32 v{m}, {f2u(1.0/512):#x}, v{m}")
        a(f"v_mul_f32 v{x2}, {f2u(1.0/512):#x}, v{x2}")
        a(f"v_fma_f32 v{x2}, -v{m}, v{m}, v{x2}")
        a(f"v_max_f32 v{x2}, 0, v{x2}")
        a(f"v_add_f32 v{x2}, {f2u(EPS):#x}, v{x2}")
        a(f"v_rsq_f32 v{8+2*r}, v{x2}")
        a.nop(1)
        a(f"v_mul_f32 v{9+2*r}, v{m}, v{8+2*r}")
        a(f"v_sub_f32 v{9+2*r}, 0, v{9+2*r}")
    for rr in range(2):
        for r in range(16):
            a(f"v_mul_f32 v{40+r}, v{9+2*rr}, v{100+r}")
            a(f"v_fma_f32 v{CACC+16*rr+r}, v{CACC+16*rr+r}, v{8+2*rr}, v{40+r}")
        for q in range(8):
            a(f"v_cvt_pk_bf16_f32 v{16+8*rr+q}, v{CACC+16*rr+2*q}, v{CACC+16*rr+2*q+1}")
        for q in range(8):
            a(f"v_pk_max_i16 v{16+8*rr+q}, v{16+8*rr+q}, 0")
    a("s_lshl_b32 s26, s4, 1")
    a("s_mul_i32 s26, s26, 112")
    a("s_lshl_b32 s27, s51, 1")
    a("s_add_u32 s26, s26, s27")
    a("s_lshl_b32 s26, s26, 10")
    a(f"s_add_u32 s26, s26, {HF:#x}")
    a(f"s_add_u32 s27, s26, {112*1024}")
    hstore(a, ["buffer_store_dwordx4 v[16:19], v2, s[8:11], s26 offen",
               "buffer_store_dwordx4 v[20:23], v2, s[8:11], s26 offen offset:1024",
               "buffer_store_dwordx4 v[24:27], v2, s[8:11], s27 offen",
               "buffer_store_dwordx4 v[28:31], v2, s[8:11], s27 offen offset:1024"])
    a(f"{T}_cdone:")
    a.stamp(9)
    publish(a, EP + 3, f"{T}_p3")
    a("s_lshl_b32 s20, s4, 1")
    a("s_mul_i32 s20, s20, 112")
    a("s_mul_i32 s21, s3, 14")
    a("s_add_u32 s20, s20, s21")
    a("s_lshl_b32 s20, s20, 10")
    a(f"s_add_u32 s20, s20, {HF:#x}")
    a(f"s_add_u32 s21, s20, {112*1024}")
    wait_flag(a, EP + 3, f"{T}_w3")
    a.stamp(10)
    RING = 8
    DACC = 72

    def hld(i):
        b = 8 + 8 * (i % RING)
        ld(a, vr(b, 4), 20, i, 33, SCL)
        ld(a, vr(b + 4, 4), 21, i, 33, SCL)
    for i in range(RING):
        hld(i)
    def qreg(j):
        return w1reg(j)
    qpf = []
    if not last:
        a(f"s_add_u32 s48, s48, {(WQF - WOF) & 0xffffffff:#x}")
        a("s_add_u32 s49, s48, 32768")
        a("s_lshl_b32 s56, s3, 12")
        a(f"s_add_u32 s56, s56, {WKVF:#x}")
        a("v_lshlrev_b32 v156, 4, v4")
        a("v_lshlrev_b32 v157, 2, v3")
        a("s_lshl_b32 s57, s46, 7")
        a("s_lshl_b32 s33, s47, 6")
        a("s_add_u32 s57, s57, s33")
        a(f"s_add_u32 s57, s57, {CSQ:#x}")
        a(f"s_mov_b32 s58, {CSKV:#x}")
        for i in range(4):
            qpf.append(lambda i=i: ld(a, qreg(2 * i), 48, i, 33))
            qpf.append(lambda i=i: ld(a, qreg(2 * i + 1), 49, i, 33))
        for i in range(4):
            qpf.append(lambda i=i: ld(a, qreg(8 + i), 56, i, 33))
        for q in range(2):
            qpf.append(lambda q=q: a(f"buffer_load_dwordx4 {qreg(12+q)}, v156, s[8:11], s57 offen offset:{32*q}"))
        for q in range(2):
            qpf.append(lambda q=q: a(f"buffer_load_dwordx4 {qreg(14+q)}, v156, s[8:11], s58 offen offset:{32*q}"))
        qpf.append(lambda: a("buffer_load_dword a4, v157, s[8:11], s58 offen"))
    for j in range(23, 28):
        ld(a, w2reg(j), 54 + (j & 1), j >> 1, 33)

    def dloop(split, qpf):
        order = [('h', i) for i in range(RING)] + [('w', j) for j in range(23, 28)]
        for i in range(14):
            pos = order.index(('h', i))
            after = sum(2 if k == 'h' else 1 for (k, _) in order[pos + 1:])
            a(f"s_waitcnt vmcnt({after})")
            b = 8 + 8 * (i % RING)
            for c in range(2):
                for r in range(2):
                    t = 2 * c + r
                    cin = "0" if i == 0 else vr(DACC + 16 * t, 16)
                    a(f"v_mfma_f32_32x32x16_bf16 {vr(DACC+16*t,16)}, {w2reg(2*i+c)}, {vr(b+4*r,4)}, {cin}")
            if not split and i + RING < 14:
                hld(i + RING)
                order.append(('h', i + RING))
            elif split and i == RING - 1:
                poll3(0x70, f"{T}_w3b")
                for j in range(RING, 14):
                    hld(j)
                    order.append(('h', j))
            if i + RING >= 14 and (not split or i >= RING - 1):
                for _ in range(3):
                    k = sum(1 for (kk, _) in order if kk == 'q')
                    if qpf and k < 2 * i:
                        qpf.pop(0)()
                        order.append(('q', k))
        assert not qpf
    dloop(False, list(qpf))
    qpf = []
    a.stamp(11)
    assert not qpf
    reduce8(a, DACC, 8)
    for q in range(4):
        a(f"v_accvgpr_read_b32 v{16+q}, a{32+q}")
    for q in range(4):
        a(f"v_lshlrev_b32 v20, 16, v{16+q}")
        a(f"v_and_b32 v21, 0xffff0000, v{16+q}")
        a(f"v_add_f32 v{8+2*q}, v{8+2*q}, v20")
        a(f"v_add_f32 v{9+2*q}, v{9+2*q}, v21")
    for q in range(4):
        a(f"v_cvt_pk_bf16_f32 v{16+q}, v{8+2*q}, v{9+2*q}")
    if last:
        a.nop(2)
        a("v_permlane32_swap_b32 v16, v18")
        a("v_permlane32_swap_b32 v17, v19")
        a("v_lshlrev_b32 v5, 10, v3")
        a("v_lshl_add_u32 v5, v4, 4, v5")
        a("s_lshl_b32 s31, s45, 15")
        a("s_lshl_b32 s32, s46, 6")
        a("s_add_u32 s31, s31, s32")
        a("s_lshl_b32 s32, s47, 5")
        a("s_add_u32 s31, s31, s32")
        a("buffer_store_dwordx4 v[16:19], v5, s[16:19], s31 offen")
        a.stamp(12)
    else:
        XN, QN, KVN, KNN = XFL[1], QFL[1], KVFL[1], KNL[1]
        a(f"s_add_u32 s23, s42, {XN:#x}")
        hstore(a, ["buffer_store_dwordx4 v[16:19], v2, s[8:11], s23 offen"])
        a.stamp(12)
        publish(a, EP + 4, f"{T}_p4")
        a(f"s_add_u32 s20, s53, {XN:#x}")
        a("s_add_u32 s21, s20, 32768")
        a("s_mov_b32 s28, 0x3f803f80")
        wait_flag(a, EP + 4, f"{T}_w4")
        a.stamp(13)
        for i in range(4):
            ld(a, vr(8 + 8 * i, 4), 20, i, 33, SCL)
            ld(a, vr(12 + 8 * i, 4), 21, i, 33, SCL)
        for r in range(8):
            a(f"v_mov_b32 v{40+r}, 0")
        ACC = 64
        for i in range(4):
            a(f"s_waitcnt vmcnt({2*(3-i)})")
            for c in range(2):
                for r in range(2):
                    t = 2 * c + r
                    cin = "0" if i == 0 else vr(ACC + 16 * t, 16)
                    a(f"v_mfma_f32_32x32x16_bf16 {vr(ACC+16*t,16)}, {qreg(2*i+c)}, {vr(8+8*i+4*r,4)}, {cin}")
                    for q in range(4):
                        x = 8 + 8 * i + 4 * r + q
                        k = 40 + 4 * (q % 2) + 2 * r + c
                        if c == 0:
                            a(f"v_dot2_f32_bf16 v{k}, v{x}, s28, v{k}")
                        else:
                            a(f"v_dot2_f32_bf16 v{k}, v{x}, v{x}, v{k}")
        a("s_lshl_b32 s32, s3, 11")
        a(f"s_add_u32 s32, s32, {KVS}")
        a("v_add_u32 v7, s32, v2")
        a("s_cmp_ge_u32 s5, 6")
        a(f"s_cbranch_scc1 {T}_kvdone")
        for task in range(6):
            if task < 5:
                a(f"s_cmp_lg_u32 s5, {task}")
                a(f"s_cbranch_scc1 {T}_kvt{task+1}")
            kind = 'K' if task < 2 else 'V'
            r = task if task < 2 else (task - 2) >> 1
            u = 0 if task < 2 else (task & 1)
            for i in range(4):
                cin = "0" if i == 0 else vr(128, 16)
                if kind == 'K':
                    a(f"v_mfma_f32_32x32x16_bf16 {vr(128,16)}, {qreg(8+i)}, {vr(8+8*i+4*r,4)}, {cin}")
                else:
                    a(f"v_mfma_f32_32x32x16_bf16 {vr(128,16)}, {vr(8+8*i+4*r,4)}, {qreg(8+i)}, {cin}")
            a.nop(16)
            a(f"ds_write_b128 v7, {vr(128+8*u,4)}")
            a(f"ds_write_b128 v7, {vr(132+8*u,4)} offset:1024")
            if task < 5:
                a(f"s_branch {T}_kvdone")
                a(f"{T}_kvt{task+1}:")
        a(f"{T}_kvdone:")
        a("s_lshl_b32 s32, s3, 10")
        a(f"s_add_u32 s32, s32, {STATQ}")
        a("v_add_u32 v7, s32, v2")
        for r in range(4):
            a(f"v_add_f32 v{40+r}, v{40+r}, v{44+r}")
        a("ds_write_b128 v7, v[40:43]")
        reduce8(a, ACC, 8)
        a.stamp(14)
        qkv_tail(a, T, end, QN, KVN, KNN,
                 lambda: [a(f"v_accvgpr_read_b32 v{16+r}, a{84+r}") for r in range(8)],
                 lambda: [a(f"v_accvgpr_read_b32 v{16+r}, a{92+r if r < 4 else r-4}") for r in range(8)],
                 lambda: a("v_accvgpr_read_b32 v47, a4"))
    a(f"{end}:")
    a.stamp_flush(16)
    a(f"{end}x:")
    a("s_endpgm")
    a.desc(name, 160, agpr=96)
    return SCR + 8 * 2304 + 64


def tr_addr(a, dst, RS, t1, t2):
    a(f"v_lshrrev_b32 v{t1}, 5, v1")
    a(f"v_lshlrev_b32 v{t1}, 2, v{t1}")
    a(f"v_bfe_u32 v{t2}, v1, 2, 2")
    a(f"v_add_u32 v{t1}, v{t1}, v{t2}")
    a(f"v_mul_u32_u24 v{dst}, {RS}, v{t1}")
    a(f"v_bfe_u32 v{t1}, v1, 4, 1")
    a(f"v_lshlrev_b32 v{t1}, 5, v{t1}")
    a(f"v_and_b32 v{t2}, 3, v1")
    a(f"v_lshlrev_b32 v{t2}, 3, v{t2}")
    a(f"v_add3_u32 v{dst}, v{dst}, v{t1}, v{t2}")


def gen_K0(a):
    name = "k0_kernel"
    T = "K0"
    a.begin(name)
    end = f"{name}_end"
    a("s_cmp_ge_u32 s2, 256")
    a(f"s_cbranch_scc1 {end}x")
    a.stamp(0)
    a("s_load_dwordx16 s[16:31], s[0:1], 0")
    a("s_load_dwordx2 s[6:7], s[0:1], 80")
    a("v_and_b32 v1, 63, v0")
    a("v_lshrrev_b32 v2, 6, v0")
    a("v_and_b32 v3, 31, v1")
    a("v_readfirstlane_b32 s60, v2")
    a("v_lshrrev_b32 v4, 5, v1")
    a("v_lshlrev_b32 v2, 4, v1")
    a("s_and_b32 s4, s2, 31")
    a("s_lshr_b32 s5, s2, 5")
    a("s_and_b32 s3, s60, 7")
    a("s_waitcnt lgkmcnt(0)")
    a.srd(8, 6, G.WS_USED)
    a.srd(52, 20, 512 * 16 * 2)
    a.srd(56, 22, 512 * 16 * 2)
    a("s_mov_b32 s61, 0x3f803f80")
    a("s_cmp_ge_u32 s60, 8")
    a("s_cbranch_scc1 K0_prep")
    if os.environ.get('K0X', '') == 'qprio':
        a("s_setprio 3")
    a.stamp(1)
    a.srd(12, 16, 2048 * 512 * 2)
    a.srd(48, 18, 512 * 512 * 2)
    piece_sgprs(a)
    a("v_lshrrev_b32 v6, 3, v1")
    a("v_lshlrev_b32 v6, 10, v6")
    a("v_and_b32 v7, 7, v1")
    a("v_lshl_add_u32 v6, v7, 4, v6")
    a("s_lshl_b32 s20, s4, 16")
    a("s_lshl_b32 s22, s3, 7")
    a("s_add_u32 s20, s20, s22")
    for k in range(8):
        a(f"s_add_u32 s21, s20, {8192*k}")
        a(f"buffer_load_dwordx4 {vr(64+4*k,4)}, v6, s[12:15], s21 offen")
    a("v_lshrrev_b32 v7, 2, v1")
    a("v_lshlrev_b32 v7, 5, v7")
    a("v_and_b32 v5, 1, v1")
    a("v_lshl_add_u32 v7, v5, 4, v7")
    a("v_and_b32 v5, 2, v1")
    a("v_cmp_eq_u32 vcc, 0, v5")
    a("s_lshl_b32 s20, s3, 11")
    a("s_and_saveexec_b64 s[38:39], vcc")
    for i in range(4):
        a(f"buffer_load_dwordx4 {vr(96+4*i,4)}, v7, s[52:55], s20 offen offset:{512*i}")
    a("s_andn2_b64 exec, s[38:39], exec")
    for i in range(4):
        a(f"buffer_load_dwordx4 {vr(96+4*i,4)}, v7, s[56:59], s20 offen offset:{512*i}")
    a("s_mov_b64 exec, s[38:39]")
    a("s_lshl_b32 s22, s3, 16")
    a("s_lshl_b32 s23, s5, 7")
    a("s_add_u32 s22, s22, s23")
    a("s_lshl_b32 s23, s3, 13")
    for i in range(8):
        a(f"s_add_u32 m0, s23, {1024*i}")
        a(f"s_add_u32 s24, s22, {8192*i}")
        a("buffer_load_dwordx4 v6, s[48:51], s24 offen lds")
    a.stamp(2)
    if TOUCH2:
        a(f"s_add_u32 s24, s42, {QFL[0]:#x}")
        a(f"s_mul_i32 s25, s45, {KVT}")
        a(f"s_add_u32 s25, s25, {KVFL[0] - 1024:#x}")
        a("v_mov_b32 v5, s24")
        a("v_mov_b32 v6, s25")
        a("v_cmp_le_u32 vcc, 8, v1")
        a("v_min_u32 v7, 25, v1")
        a("v_lshlrev_b32 v7, 7, v7")
        a("v_cndmask_b32 v5, v5, v6, vcc")
        a("v_add_u32 v5, v5, v7")
        a("buffer_load_dword v0, v5, s[8:11], 0 offen")
    tr_addr(a, 56, 128, 5, 6)
    a("v_add_u32 v56, s23, v56")
    tr_addr(a, 57, 64, 5, 6)
    a("s_lshl_b32 s21, s3, 12")
    a("s_add_u32 s21, s21, 65536")
    a("v_add_u32 v57, s21, v57")
    a("v_lshrrev_b32 v5, 3, v1")
    a("v_and_b32 v6, 7, v1")
    a("v_xor_b32 v6, v6, v5")
    a("v_lshlrev_b32 v6, 4, v6")
    a("v_lshl_add_u32 v112, v5, 7, v6")
    a("v_add_u32 v112, s21, v112")
    a("v_and_b32 v5, 7, v3")
    a("v_lshlrev_b32 v5, 4, v5")
    a("v_lshl_add_u32 v5, v3, 7, v5")
    a("v_lshl_add_u32 v5, v4, 3, v5")
    a("v_add_u32 v113, s21, v5")
    a("v_add_u32 v114, s21, v2")
    for c in range(8):
        a(f"v_xor_b32 v{116+c}, {c<<4}, v113")
    for r in range(6):
        a(f"v_mov_b32 v{58+r}, 0")
    a("v_mov_b32 v7, 0")
    for r in range(2):
        a(f"s_waitcnt vmcnt({16+4*(1-r)+TOUCH2})")
        if r == 0:
            a.stamp(3)
        for j in range(4):
            a(f"ds_write_b128 v112, {vr(64+16*r+4*j,4)} offset:{1024*j}")
        for i in range(4):
            b = 8 + 8 * i + 4 * r
            a(f"ds_read_b64 {vr(b,2)}, v{116+2*i}")
            a(f"ds_read_b64 {vr(b+2,2)}, v{117+2*i}")
    a(f"s_waitcnt vmcnt({8+TOUCH2})")
    for i in range(4):
        a(f"ds_write_b128 v114, {vr(96+4*i,4)} offset:{1024*i}")
    for i in range(4):
        a(f"ds_read_b64_tr_b16 {vr(40+4*i,2)}, v57 offset:{16*i*64}")
        a(f"ds_read_b64_tr_b16 {vr(42+4*i,2)}, v57 offset:{(16*i+8)*64}")
    a("s_waitcnt lgkmcnt(0)")
    for r in range(16):
        a(f"v_dot2_f32_bf16 v7, v{40+r}, s61, v7")
    a("s_lshl_b32 s32, s3, 11")
    a(f"s_add_u32 s32, s32, {KVS}")
    a("v_add_u32 v6, s32, v2")
    a("s_cmp_ge_u32 s5, 6")
    a(f"s_cbranch_scc1 {T}_kvdone")
    for task in range(6):
        if task < 5:
            a(f"s_cmp_lg_u32 s5, {task}")
            a(f"s_cbranch_scc1 {T}_kvt{task+1}")
        kind = 'K' if task < 2 else 'V'
        r = task if task < 2 else (task - 2) >> 1
        u = 0 if task < 2 else (task & 1)
        for i in range(4):
            cin = "0" if i == 0 else vr(64, 16)
            if kind == 'K':
                a(f"v_mfma_f32_32x32x16_bf16 {vr(64,16)}, {vr(40+4*i,4)}, {vr(8+8*i+4*r,4)}, {cin}")
            else:
                a(f"v_mfma_f32_32x32x16_bf16 {vr(64,16)}, {vr(8+8*i+4*r,4)}, {vr(40+4*i,4)}, {cin}")
        a.nop(16)
        a(f"ds_write_b128 v6, {vr(64+8*u,4)}")
        a(f"ds_write_b128 v6, {vr(68+8*u,4)} offset:1024")
        if task < 5:
            a(f"s_branch {T}_kvdone")
            a(f"{T}_kvt{task+1}:")
    a(f"{T}_kvdone:")
    half_sum(a, 7, 5)
    a("s_mul_i32 s32, s3, 384")
    a(f"s_add_u32 s32, s32, {CSP}")
    a("v_lshlrev_b32 v6, 2, v3")
    a("v_add_u32 v6, s32, v6")
    a("ds_write_b32 v6, v7 offset:256")
    a(f"s_waitcnt vmcnt({TOUCH2})")
    a.stamp(4)

    def wrd(i):
        b = 40 + 8 * (i % 2)
        for c in range(2):
            a(f"ds_read_b64_tr_b16 {vr(b+4*c,2)}, v56 offset:{16*i*128+64*c}")
            a(f"ds_read_b64_tr_b16 {vr(b+4*c+2,2)}, v56 offset:{(16*i+8)*128+64*c}")
    wrd(0)
    ACC = 64
    for i in range(4):
        if i < 3:
            wrd(i + 1)
        a(f"s_waitcnt lgkmcnt({4 if i < 3 else 0})")
        b = 40 + 8 * (i % 2)
        for c in range(2):
            for r in range(2):
                t = 2 * c + r
                cin = "0" if i == 0 else vr(ACC + 16 * t, 16)
                a(f"v_mfma_f32_32x32x16_bf16 {vr(ACC+16*t,16)}, {vr(b+4*c,4)}, {vr(8+8*i+4*r,4)}, {cin}")
                for q in range(4):
                    x = 8 + 8 * i + 4 * r + q
                    k = 58 + 2 * r + c
                    if c == 0:
                        a(f"v_dot2_f32_bf16 v{k}, v{x}, s61, v{k}")
                    else:
                        a(f"v_dot2_f32_bf16 v{k}, v{x}, v{x}, v{k}")
                if r == 0:
                    for q in range(4):
                        a(f"v_dot2_f32_bf16 v{62+c}, v{b+4*c+q}, s61, v{62+c}")
    a("s_lshl_b32 s32, s3, 10")
    a(f"s_add_u32 s32, s32, {STATQ}")
    a("v_add_u32 v7, s32, v2")
    a.nop(2)
    a("ds_write_b128 v7, v[58:61]")
    half_sum(a, 62, 5)
    half_sum(a, 63, 5)
    a("ds_write_b32 v6, v62")
    a("ds_write_b32 v6, v63 offset:128")
    a.stamp(5)
    reduce8(a, ACC, 8, pre_barrier=True)
    a.stamp(6)

    def cs8(tile_off_expr):
        for s in range(8):
            for q in range(2):
                a(f"ds_read_b128 {vr(64+8*s+4*q,4)}, v46 offset:{s*384+32*q}")
        a("s_waitcnt lgkmcnt(0)")
        for r in range(8):
            a(f"v_add_f32 v{16+r}, v{64+r}, v{72+r}")
        for s in range(2, 8):
            for r in range(8):
                a(f"v_add_f32 v{16+r}, v{16+r}, v{64+8*s+r}")

    def get_csq():
        a("s_lshl_b32 s32, s44, 7")
        a("s_lshl_b32 s33, s47, 6")
        a("s_add_u32 s32, s32, s33")
        a(f"s_add_u32 s32, s32, {CSP}")
        a("v_lshlrev_b32 v46, 4, v4")
        a("v_add_u32 v46, s32, v46")
        cs8(None)

    def get_csk():
        a("v_lshlrev_b32 v46, 4, v4")
        a(f"v_add_u32 v46, {CSP+256}, v46")
        for s in range(6):
            for q in range(2):
                a(f"ds_read_b128 {vr(72+8*s+4*q,4)}, v46 offset:{s*384+32*q}")
        for s in range(6, 8):
            for q in range(2):
                a(f"ds_read_b128 {vr(24+8*(s-6)+4*q,4)}, v46 offset:{s*384+32*q}")
        a("s_waitcnt lgkmcnt(0)")
        for r in range(8):
            a(f"v_add_f32 v{16+r}, v{24+r}, v{32+r}")
        for s in range(6):
            for r in range(8):
                a(f"v_add_f32 v{16+r}, v{16+r}, v{72+8*s+r}")

    def get_csv():
        a("v_lshlrev_b32 v46, 2, v3")
        a(f"v_add_u32 v46, {CSP+256}, v46")
        for s in range(8):
            a(f"ds_read_b32 v{72+s}, v46 offset:{s*384}")
        a("s_waitcnt lgkmcnt(0)")
        a("v_add_f32 v47, v72, v73")
        for s in range(2, 8):
            a(f"v_add_f32 v47, v47, v{72+s}")
    qkv_tail(a, T, end, QFL[0], KVFL[0], KNL[0], get_csq, get_csk, get_csv)
    a(f"s_branch {end}")
    a("K0_prep:")
    if os.environ.get('K0X', '') == 'noprep':
        a(f"s_branch {end}x")
    if os.environ.get('K0X', '') == 'prio':
        a("s_setprio 3")
    a("s_cmp_lt_u32 s2, 154")
    a("s_cbranch_scc1 K0_ptask")
    if CODEPF:
        code_srd(a, 40, "K0")
        a("s_sub_u32 s32, s2, 154")
        a("s_lshr_b32 s32, s32, 3")
        a("s_lshl_b32 s32, s32, 3")
        a("s_add_u32 s32, s32, s3")
        a("s_lshl_b32 s32, s32, 10")
        a("buffer_load_dwordx4 v[16:19], v2, s[40:43], s32 offen")
        a("s_waitcnt vmcnt(0)")
    a(f"s_branch {end}x")
    a("K0_ptask:")
    a("s_cmp_lg_u32 s2, 153")
    a("s_cbranch_scc1 K0_pw")
    a("s_lshl_b32 s32, s3, 11")
    a(f"s_add_u32 s32, s32, {FLAGS:#x}")
    for r in range(4):
        a(f"v_mov_b32 v{16+r}, 0")
    a("buffer_store_dwordx4 v[16:19], v2, s[8:11], s32 offen")
    a("buffer_store_dwordx4 v[16:19], v2, s[8:11], s32 offen offset:1024")
    a(f"s_branch {end}x")
    a("K0_pw:")
    a("s_lshl_b32 s62, s3, 12")
    a("s_add_u32 s62, s62, 98304")
    a("s_mov_b32 s46, 0")
    a("s_mov_b32 s36, 32")
    a("s_cmp_eq_u32 s2, 152")
    a("s_cbranch_scc1 K0_pkv")
    a("s_cmp_ge_u32 s2, 88")
    a("s_cbranch_scc1 K0_pw2")
    a("s_cmp_ge_u32 s2, 32")
    a("s_cbranch_scc1 K0_pw1")
    a("s_cmp_ge_u32 s2, 16")
    a("s_cbranch_scc1 K0_pwo")
    a.srd(40, 18, 512 * 512 * 2)
    a("s_mov_b32 s44, 1024")
    a("s_mov_b32 s45, s2")
    a("s_lshl_b32 s47, s45, 15")
    a(f"s_add_u32 s47, s47, {WQF:#x}")
    a("s_lshl_b32 s49, s45, 7")
    a(f"s_add_u32 s49, s49, {CSQ:#x}")
    a("s_branch K0_pgo")
    a("K0_pwo:")
    a.srd(40, 24, 512 * 512 * 2)
    a("s_mov_b32 s44, 1024")
    a("s_sub_u32 s45, s2, 16")
    a("s_lshl_b32 s47, s45, 15")
    a(f"s_add_u32 s47, s47, {WOF:#x}")
    a("s_mov_b32 s49, 0")
    a("s_branch K0_pgo")
    a("K0_pw1:")
    a.srd(40, 28, 512 * 1792 * 2)
    a("s_mov_b32 s44, 3584")
    a("s_sub_u32 s45, s2, 32")
    a("s_lshl_b32 s47, s45, 15")
    a(f"s_add_u32 s47, s47, {W1F:#x}")
    a("s_lshl_b32 s49, s45, 7")
    a(f"s_add_u32 s49, s49, {CS1:#x}")
    a("s_branch K0_pgo")
    a("K0_pw2:")
    a.srd(40, 30, 512 * 1792 * 2)
    a("s_mov_b32 s44, 1024")
    a("s_sub_u32 s45, s2, 88")
    a("s_and_b32 s46, s45, 3")
    a("s_mul_i32 s46, s46, 28")
    a("s_lshr_b32 s45, s45, 2")
    a("s_mul_i32 s47, s45, 112")
    a("s_add_u32 s47, s47, s46")
    a("s_lshl_b32 s47, s47, 10")
    a(f"s_add_u32 s47, s47, {W2F:#x}")
    a("s_mov_b32 s36, 28")
    a("s_mov_b32 s49, 0")
    a("K0_pgo:")
    a("s_lshl_b32 s50, s3, 2")
    a("s_cmp_ge_u32 s50, s36")
    a(f"s_cbranch_scc1 {end}x")
    a("v_lshrrev_b32 v5, 2, v1")
    a("v_mul_lo_u32 v5, v5, s44")
    a("v_and_b32 v6, 3, v1")
    a("v_lshl_add_u32 v5, v6, 4, v5")
    a("s_add_u32 s51, s46, s50")
    a("s_lshl_b32 s51, s51, 4")
    a("s_mul_i32 s51, s51, s44")
    a("s_lshl_b32 s32, s45, 6")
    a("s_add_u32 s51, s51, s32")
    a("s_lshl_b32 s33, s44, 4")
    for i in range(4):
        a(f"s_add_u32 m0, s62, {1024*i}")
        a("s_nop 0")
        a("buffer_load_dwordx4 v5, s[40:43], s51 offen lds")
        a("s_add_u32 s51, s51, s33")
    a("s_branch K0_ptr")
    a("K0_pkv:")
    a("s_lshl_b32 s50, s3, 2")
    a("v_lshrrev_b32 v7, 2, v1")
    a("v_lshlrev_b32 v7, 5, v7")
    a("v_and_b32 v5, 1, v1")
    a("v_lshl_add_u32 v7, v5, 4, v7")
    a("v_and_b32 v5, 2, v1")
    a("v_cmp_eq_u32 vcc, 0, v5")
    a("s_lshl_b32 s20, s3, 11")
    a("s_and_saveexec_b64 s[38:39], vcc")
    for i in range(4):
        a(f"s_add_u32 m0, s62, {1024*i}")
        a(f"s_add_u32 s22, s20, {512*i}")
        a("buffer_load_dwordx4 v7, s[52:55], s22 offen lds")
    a("s_andn2_b64 exec, s[38:39], exec")
    for i in range(4):
        a(f"s_add_u32 m0, s62, {1024*i}")
        a(f"s_add_u32 s22, s20, {512*i}")
        a("buffer_load_dwordx4 v7, s[56:59], s22 offen lds")
    a("s_mov_b64 exec, s[38:39]")
    a(f"s_mov_b32 s47, {WKVF:#x}")
    a(f"s_mov_b32 s49, {CSKV:#x}")
    a("K0_ptr:")
    a("s_lshl_b32 s32, s50, 10")
    a("s_add_u32 s47, s47, s32")
    if TOUCH2:
        a("v_lshlrev_b32 v9, 7, v3")
        a("buffer_load_dword v10, v9, s[8:11], s47 offen")
    tr_addr(a, 8, 64, 5, 6)
    a("v_add_u32 v8, s62, v8")
    a("v_mov_b32 v7, 0")
    a(f"s_waitcnt vmcnt({TOUCH2})")
    for i in range(4):
        a(f"ds_read_b64_tr_b16 {vr(16+4*i,2)}, v8 offset:{16*i*64}")
        a(f"ds_read_b64_tr_b16 {vr(18+4*i,2)}, v8 offset:{(16*i+8)*64}")
    for i in range(4):
        a(f"s_waitcnt lgkmcnt({2*(3-i)})")
        a(f"buffer_store_dwordx4 {vr(16+4*i,4)}, v2, s[8:11], s47 offen offset:{1024*i}")
        for q in range(4):
            a(f"v_dot2_f32_bf16 v7, v{16+4*i+q}, s61, v7")
    a("s_cmp_eq_u32 s49, 0")
    a(f"s_cbranch_scc1 {end}x")
    a.nop(2)
    half_sum(a, 7, 5)
    a("s_lshl_b32 s32, s3, 7")
    a(f"s_add_u32 s32, s32, {CSP2}")
    a("v_lshlrev_b32 v6, 2, v3")
    a("v_add_u32 v5, s32, v6")
    a("ds_write_b32 v5, v7")
    a("s_waitcnt lgkmcnt(0)")
    a("s_barrier")
    a("s_cmp_lg_u32 s3, 0")
    a(f"s_cbranch_scc1 {end}x")
    a(f"v_add_u32 v5, {CSP2}, v6")
    for s in range(8):
        a(f"ds_read_b32 v{16+s}, v5 offset:{128*s}")
    a("s_waitcnt lgkmcnt(0)")
    for s in range(1, 8):
        a(f"v_add_f32 v16, v16, v{16+s}")
    a("v_cmp_gt_u32 vcc, 32, v1")
    a("s_and_saveexec_b64 s[38:39], vcc")
    a("buffer_store_dword v16, v6, s[8:11], s49 offen")
    a(f"s_branch {end}x")
    a(f"{end}:")
    a.stamp_flush(8)
    a(f"{end}x:")
    a("s_endpgm")
    a.desc(name, 128)
    return CSP2 + 1024


def gen_zero_flags(a):
    pass


def main():
    a = Asm()
    G.XF, G.QF, G.KVF = XFL[0], QFL[0], KVFL[0]
    G.FLAGS_ZERO = FLAGS
    lds_k0 = gen_K0(a)
    lds_f = gen_F(a, 0)
    gen_F(a, 1)
    hdr = ["; generated by gen/gen2.py -- fused MQA + FFN pipeline"]
    L = hdr.append
    L(f"; @launch kernel=k0_kernel grid=(256,1,1) block=(1024,1,1) lds={lds_k0}")
    L(f"; @launch kernel=f1_kernel grid=(256,1,1) block=(512,1,1) lds={lds_f}")
    L(f"; @launch kernel=f2_kernel grid=(256,1,1) block=(512,1,1) lds={lds_f}")
    out = "\n".join(hdr) + "\n"
    out += '.amdgcn_target "amdgcn-amd-amdhsa--gfx950"\n.text\n'
    out += "\n".join(a.L) + "\ncode_end:\n"
    out += '.section .rodata,"a"\n' + "\n".join(a.kernels) + "\n"
    path = sys.argv[1] if len(sys.argv) > 1 else f"cdna_kernels/{NAME}.s"
    open(path, 'w').write(out)
    if PROFILE:
        import json
        json.dump(G.PROF_SLOT, open('prof_slots.json', 'w'))
    print("wrote", path, len(out), "bytes")


if __name__ == "__main__":
    main()
```

```python
import os
import sys
import gen as G
from gen import Asm, vr, ar, f2u, half_sum, wave32_max, prologue, frag_loads
from gen import WQF, WOF, W1F, W2F, WKVF, CSQ, CS1, CSKV, VH, VU, KVT, KVF_BYTES, QS, EPS, NAME, PROFILE

LSTRIDE = 0x2000000
XFL = [0x500000, 0x500000 + LSTRIDE]
QFL = [0x700000, 0x700000 + LSTRIDE]
REUSE = int(os.environ.get('REUSE', '1'))
TOUCH = int(os.environ.get('TOUCH', '1'))
TOUCH2 = int(os.environ.get('TOUCH2', '1'))
_R = 0 if REUSE else LSTRIDE
OFL = [0x900000, 0x900000 + _R]
X1FL = [0xB00000, 0xB00000 + _R]
HFL = [0x1000000, 0x1000000 + _R]
KVFL = [0x1800000, 0x1800000 + LSTRIDE]
KNL = [0x1880000, 0x1880000 + LSTRIDE]
FLAGS = 0x490000
FL3 = FLAGS + 8192
G.WS_USED = 0x4400000
G.PROF = 0x4000000
G.KN = KNL[0]
SC = "sc0 sc1"
SCL = os.environ.get("SCL", "sc1")
SPIN_MAX = 200000
BMAX = float(os.environ.get('BMAX', '64'))

PRIO_IT = int(os.environ.get('PRIO_IT', '7'))
WARM = int(os.environ.get('WARM', '1'))
CODEPF = int(os.environ.get('CODEPF', '0'))
FAST = int(os.environ.get('FAST', '1'))
CZERO = int(os.environ.get('CZERO', '1'))


_uid = [0]
FSF = os.environ.get('FSF', '')


def hstore(a, insts):
    _uid[0] += 1
    u = _uid[0]
    a("s_cmp_lg_u32 s61, 0")
    a(f"s_cbranch_scc1 HS{u}_f")
    for i in insts:
        a(f"{i} {SC}")
    a(f"s_branch HS{u}_e")
    a(f"HS{u}_f:")
    for i in insts:
        a(i + (" " + FSF if 'dwordx4' in i else ""))
    a(f"HS{u}_e:")


def publish(a, epoch, tag):
    a("s_waitcnt vmcnt(0)")
    a("s_barrier")
    a("s_cmp_lg_u32 s3, 0")
    a(f"s_cbranch_scc1 {tag}_np")
    a(f"v_mov_b32 v5, {epoch}")
    a("v_mov_b32 v6, 0")
    a("v_cmp_eq_u32 vcc, 0, v1")
    a("s_and_saveexec_b64 s[38:39], vcc")
    hstore(a, ["buffer_store_dword v5, v6, s[8:11], s40 offen"])
    a("s_mov_b64 exec, s[38:39]")
    a(f"{tag}_np:")


def wait_flag(a, epoch, tag):
    a("v_mov_b32 v6, 0")
    a("s_mov_b32 s37, 0")
    a(f"{tag}_poll:")
    a(f"buffer_load_dword v5, v6, s[8:11], s41 offen {SC}")
    a("s_waitcnt vmcnt(0)")
    a("v_readfirstlane_b32 s36, v5")
    a("s_add_u32 s37, s37, 1")
    a(f"s_cmp_ge_u32 s36, {epoch}")
    a(f"s_cbranch_scc1 {tag}_go")
    a(f"s_cmp_gt_u32 s37, {SPIN_MAX}")
    a(f"s_cbranch_scc1 {tag}_go")
    a("s_sleep 1")
    a(f"s_branch {tag}_poll")
    a(f"{tag}_go:")


def ld(a, dst, sbase, idx, stmp, flags=""):
    hi, lo = idx // 4, idx % 4
    if hi == 0:
        so = f"s{sbase}"
    else:
        a(f"s_add_u32 s{stmp}, s{sbase}, {hi*4096}")
        so = f"s{stmp}"
    a(f"buffer_load_dwordx4 {dst}, v2, s[8:11], {so} offen offset:{lo*1024} {flags}")


def reduce8(a, ACC, DST, lds_base=0, pre_barrier=False):
    a("s_lshl_b32 s32, s3, 11")
    a("v_add_u32 v5, s32, v2")
    a("v_add_u32 v6, 0x10000, v5")
    a("s_lshl_b32 s32, s3, 14")
    a("v_add_u32 v7, s32, v2")
    a.nop(12)
    if pre_barrier:
        a("s_waitcnt lgkmcnt(0)")
        a("s_barrier")
    for p in range(8):
        for q in range(2):
            off = (p % 4) * 16384 + q * 1024
            a(f"ds_write_b128 v{5 if p < 4 else 6}, {vr(ACC+8*p+4*q,4)} offset:{off}")
    a("s_waitcnt lgkmcnt(0)")
    a("s_barrier")
    for s in range(8):
        for q in range(2):
            a(f"ds_read_b128 {vr(ACC+8*s+4*q,4)}, v7 offset:{s*2048+q*1024}")
    for s in range(0, 8, 2):
        a(f"s_waitcnt lgkmcnt({12-2*s})")
        for r in range(8):
            if s == 0:
                a(f"v_add_f32 v{DST+r}, v{ACC+r}, v{ACC+8+r}")
            else:
                a(f"v_add_f32 v{ACC+8*s+r}, v{ACC+8*s+r}, v{ACC+8*s+8+r}")
                a(f"v_add_f32 v{DST+r}, v{DST+r}, v{ACC+8*s+r}")


STATQ = 131072
KVS = STATQ + 8192
STAT2 = KVS + 16384
CSP = STAT2 + 256
CSP2 = CSP + 3072


def qkv_tail(a, T, end, QN, KVN, KNN, get_csq, get_csk, get_csv):
    a("s_lshl_b32 s32, s43, 3")
    a(f"s_add_u32 s32, s32, {STATQ}")
    a("v_add_u32 v7, s32, v2")
    for s in range(8):
        a(f"ds_read_b64 {vr(40+2*s,2)}, v7 offset:{s*1024}")
    a("s_waitcnt lgkmcnt(0)")
    for s in range(1, 8):
        a(f"v_add_f32 v40, v40, v{40+2*s}")
        a(f"v_add_f32 v41, v41, v{41+2*s}")
    half_sum(a, 40, 42)
    half_sum(a, 41, 42)
    a(f"v_mul_f32 v40, {f2u(1.0/512):#x}, v40")
    a(f"v_mul_f32 v41, {f2u(1.0/512):#x}, v41")
    a("v_fma_f32 v41, -v40, v40, v41")
    a("v_max_f32 v41, 0, v41")
    a(f"v_add_f32 v41, {f2u(EPS):#x}, v41")
    a("v_rsq_f32 v41, v41")
    a.nop(1)
    a("v_mul_f32 v42, v40, v41")
    a("v_sub_f32 v42, 0, v42")
    a(f"v_mul_f32 v43, {f2u(QS):#x}, v41")
    a(f"v_mul_f32 v44, {f2u(QS):#x}, v42")
    get_csq()
    for r in range(8):
        a(f"v_mul_f32 v{16+r}, v44, v{16+r}")
        a(f"v_fma_f32 v{8+r}, v{8+r}, v43, v{16+r}")
    for q in range(4):
        a(f"v_cvt_pk_bf16_f32 v{24+q}, v{8+2*q}, v{9+2*q}")
    a(f"s_add_u32 s23, s42, {QN:#x}")
    a("buffer_store_dwordx4 v[24:27], v2, s[8:11], s23 offen")
    a("s_cmp_ge_u32 s5, 6")
    a(f"s_cbranch_scc1 {end}")
    a("s_lshr_b32 s32, s5, 2")
    a("s_cmp_eq_u32 s5, 1")
    a("s_cselect_b32 s32, 1, s32")
    a("s_lshl_b32 s32, s32, 1")
    a("s_cmp_lg_u32 s3, s32")
    a(f"s_cbranch_scc1 {end}")
    a(f"v_add_u32 v7, {KVS}, v2")
    for s in range(8):
        for q in range(2):
            a(f"ds_read_b128 {vr(64+8*s+4*q,4)}, v7 offset:{s*2048+q*1024}")
    a(f"s_mul_i32 s33, s45, {KVT}")
    a(f"s_add_u32 s33, s33, {KVN:#x}")
    a("s_waitcnt lgkmcnt(0)")
    for s in range(1, 8):
        for r in range(8):
            a(f"v_add_f32 v{64+r}, v{64+r}, v{64+8*s+r}")
    a("s_cmp_ge_u32 s5, 2")
    a(f"s_cbranch_scc1 {T}_finV")
    a("v_mov_b32 v45, 0")
    get_csk()
    for r in range(8):
        a(f"v_mul_f32 v{16+r}, v42, v{16+r}")
        a(f"v_fma_f32 v{64+r}, v{64+r}, v41, v{16+r}")
        a(f"v_fma_f32 v45, v{64+r}, v{64+r}, v45")
    for q in range(4):
        a(f"v_cvt_pk_bf16_f32 v{28+q}, v{64+2*q}, v{65+2*q}")
    a("buffer_store_dwordx4 v[28:31], v2, s[8:11], s33 offen")
    half_sum(a, 45, 46)
    a("s_lshl_b32 s32, s45, 7")
    a(f"s_add_u32 s32, s32, {KNN:#x}")
    a("v_lshlrev_b32 v46, 2, v3")
    a("v_cmp_gt_u32 vcc, 32, v1")
    a("s_and_saveexec_b64 s[38:39], vcc")
    a("buffer_store_dword v45, v46, s[8:11], s32 offen")
    a(f"s_branch {end}")
    a(f"{T}_finV:")
    a("v_lshlrev_b32 v7, 2, v3")
    a(f"v_add_u32 v7, {STAT2}, v7")
    a("ds_write_b32 v7, v41")
    a("ds_write_b32 v7, v42 offset:128")
    a("s_and_b32 s32, s5, 1")
    a("s_lshl_b32 s32, s32, 6")
    a(f"s_add_u32 s32, s32, {STAT2}")
    a("v_lshlrev_b32 v7, 4, v4")
    a("v_add_u32 v7, s32, v7")
    get_csv()
    a("s_waitcnt lgkmcnt(0)")
    for q in range(2):
        a(f"ds_read_b128 {vr(16+4*q,4)}, v7 offset:{32*q}")
        a(f"ds_read_b128 {vr(24+4*q,4)}, v7 offset:{128+32*q}")
    a("s_waitcnt lgkmcnt(0)")
    for r in range(8):
        a(f"v_mul_f32 v{24+r}, v47, v{24+r}")
        a(f"v_fma_f32 v{64+r}, v{64+r}, v{16+r}, v{24+r}")
    for q in range(4):
        a(f"v_cvt_pk_bf16_f32 v{32+q}, v{64+2*q}, v{65+2*q}")
    a("v_cmp_eq_u32 s[38:39], 0, v3")
    a("v_mov_b32 v45, 0x3f803f80")
    a("v_mov_b32 v46, 0")
    a("v_cndmask_b32 v45, v46, v45, s[38:39]")
    a("v_cmp_le_u32 vcc, 16, v3")
    a("v_xor_b32 v7, 16, v3")
    a("v_lshlrev_b32 v7, 4, v7")
    for q in range(4):
        a(f"v_cndmask_b32 v{32+q}, v45, v{32+q}, vcc")
    a(f"v_mul_u32_u24 v46, {VH}, v4")
    a("v_add_u32 v7, v7, v46")
    a("s_and_b32 s32, s5, 1")
    a(f"s_mul_i32 s32, s32, {VU}")
    a("s_add_u32 s33, s33, s32")
    a("v_cmp_gt_u32 s[38:39], 2, v3")
    a("s_or_b64 vcc, vcc, s[38:39]")
    a("s_and_saveexec_b64 s[38:39], vcc")
    a("buffer_store_dwordx4 v[32:35], v7, s[8:11], s33 offen offset:1024")


def piece_sgprs(a):
    a("s_lshr_b32 s32, s3, 1")
    a("s_and_b32 s43, s32, 1")
    a("s_lshr_b32 s44, s3, 2")
    a("s_lshl_b32 s45, s4, 1")
    a("s_add_u32 s45, s45, s43")
    a("s_lshl_b32 s46, s5, 1")
    a("s_add_u32 s46, s46, s44")
    a("s_lshl_b32 s42, s45, 5")
    a("s_lshl_b32 s32, s46, 1")
    a("s_add_u32 s42, s42, s32")
    a("s_and_b32 s47, s3, 1")
    a("s_add_u32 s42, s42, s47")
    a("s_lshl_b32 s42, s42, 10")


def code_srd(a, d, tag):
    a(f"s_getpc_b64 s[{d}:{d+1}]")
    a(f"{tag}_pc:")
    a(f"s_add_u32 s{d}, s{d}, f1_kernel-{tag}_pc")
    a(f"s_addc_u32 s{d+1}, s{d+1}, {'-1' if tag != 'K0' else '0'}")
    a(f"s_mov_b32 s{d+2}, code_end-f1_kernel")
    a(f"s_mov_b32 s{d+3}, 0x00020000")


def gen_F(a, L):
    last = (L == 1)
    name = f"f{L+1}_kernel"
    T = f"F{L}"
    a.begin(name)
    end = f"{name}_end"
    prologue(a, end, out_ptr=True, out_off=(64 if last else 0))
    a.srd(16, 12, 2048 * 512 * 2)
    XF, QF, OF, X1F, HF, KVF, KN = XFL[L], QFL[L], OFL[L], X1FL[L], HFL[L], KVFL[L], KNL[L]
    EP = 4 * L
    SCR = KVF_BYTES
    KMX = SCR + 8 * 2304
    Q = (8, 12)
    C = 80
    O = (32, 48)
    S = (64, 80)
    P = (96, 104)
    E = 112
    KB = (128, 132)
    VB = (136, 144)
    a("s_and_b32 s20, s3, 3")
    a("s_lshr_b32 s30, s3, 2")
    a("s_and_b32 s21, s20, 1")
    a("s_lshl_b32 s21, s21, 1")
    a("s_lshl_b32 s22, s5, 2")
    a("s_add_u32 s21, s21, s22")
    a("s_lshr_b32 s22, s20, 1")
    a("s_lshl_b32 s23, s4, 1")
    a("s_add_u32 s22, s22, s23")
    a("s_lshl_b32 s22, s22, 5")
    a("s_add_u32 s22, s22, s21")
    a("s_add_u32 s23, s22, s30")
    a("s_xor_b32 s24, s30, 1")
    a("s_add_u32 s24, s22, s24")
    a("s_lshl_b32 s22, s23, 10")
    a("s_lshl_b32 s24, s24, 10")
    a(f"s_add_u32 s23, s22, {QF:#x}")
    a(f"s_add_u32 s24, s24, {QF:#x}")
    a(f"buffer_load_dwordx4 {vr(Q[0],4)}, v2, s[8:11], s23 offen")
    a(f"buffer_load_dwordx4 {vr(Q[1],4)}, v2, s[8:11], s24 offen")
    a("s_lshl_b32 s23, s3, 10")
    a(f"s_add_u32 s23, s23, {KN:#x}")
    a(f"buffer_load_dwordx4 {vr(E,4)}, v2, s[8:11], s23 offen")
    a("s_lshr_b32 s24, s3, 1")
    a("s_lshl_b32 s24, s24, 10")
    a("s_and_b32 s25, s3, 1")
    a(f"s_mul_i32 s25, s25, {32*KVT}")
    a("s_add_u32 s34, s24, s25")
    a(f"s_add_u32 s35, s34, {KVF:#x}")

    def dma():
        a("s_mov_b32 m0, s34")
        a("s_add_u32 s34, s34, 4096")
        a("buffer_load_dwordx4 v2, s[8:11], s35 offen lds")
        a("s_add_u32 s35, s35, 4096")
    for i in range(6):
        dma()
    a("s_lshl_b32 s40, s4, 8")
    a(f"s_add_u32 s40, s40, {FLAGS:#x}")
    a("s_lshl_b32 s41, s3, 2")
    a("s_add_u32 s41, s41, s40")
    a("s_lshl_b32 s32, s5, 2")
    a("s_add_u32 s40, s40, s32")
    piece_sgprs(a)
    a("s_getreg_b32 s61, hwreg(HW_REG_XCC_ID)")
    a("s_and_b32 s61, s61, 15")
    a("s_add_u32 s61, s61, 1")
    a("v_min_u32 v6, 17, v3")
    a("v_mov_b32 v5, 16")
    a("v_cmp_eq_u32 vcc, 20, v3")
    a(f"s_mul_i32 s25, s30, {32*KVT}")
    a.nop(1)
    a("v_cndmask_b32 v6, v6, v5, vcc")
    a("v_lshlrev_b32 v6, 4, v6")
    a(f"v_mul_u32_u24 v5, {VH}, v4")
    a("v_add3_u32 v158, v6, v5, 64")
    a("v_add_u32 v158, 960, v158")
    a("v_add_u32 v156, s25, v2")
    a("v_add_u32 v157, s25, v158")
    a("s_waitcnt vmcnt(6)")
    a("v_mov_b32 v5, 0")
    a("v_mov_b32 v6, 0")
    for q in range(4):
        a(f"v_dot2_f32_bf16 v5, v{Q[0]+q}, v{Q[0]+q}, v5")
        a(f"v_dot2_f32_bf16 v6, v{Q[1]+q}, v{Q[1]+q}, v6")
    a.nop(3)
    half_sum(a, 5, 154)
    half_sum(a, 6, 154)
    a("v_max_f32 v5, v5, v6")
    a(f"v_max3_f32 v7, v{E}, v{E+1}, v{E+2}")
    a(f"v_max_f32 v7, v7, v{E+3}")
    for off in (0x041F, 0x081F, 0x101F, 0x201F, 0x401F):
        a(f"ds_swizzle_b32 v6, v5 offset:{off:#x}")
        a(f"ds_swizzle_b32 v154, v7 offset:{off:#x}")
        a("s_waitcnt lgkmcnt(0)")
        a("v_max_f32 v5, v5, v6")
        a("v_max_f32 v7, v7, v154")
    half_sum(a, 7, 154, op="v_max_f32")
    a("v_readfirstlane_b32 s63, v5")
    a("s_lshl_b32 s23, s3, 2")
    a(f"s_add_u32 s23, s23, {KMX}")
    a("v_mov_b32 v6, s23")
    a("ds_write_b32 v6, v7")
    for r in range(16):
        a(f"v_mov_b32 v{O[0]+r}, 0")
        a(f"v_mov_b32 v{O[1]+r}, 0")
        a(f"v_mov_b32 v{E+r}, 0")
    for r in range(8):
        a(f"v_mov_b32 v{P[1]+r}, 0")
        a(f"v_mov_b32 v{VB[1]+r}, 0")
    a("s_lshl_b32 s32, s5, 1")
    a("s_lshl_b32 s48, s32, 5")
    a("s_lshl_b32 s33, s3, 2")
    a("s_add_u32 s48, s48, s33")
    a("s_lshl_b32 s48, s48, 10")
    a(f"s_add_u32 s48, s48, {WOF:#x}")
    a("s_add_u32 s49, s48, 32768")
    a("s_min_u32 s32, s3, 6")
    a("s_mul_i32 s51, s5, 7")
    a("s_add_u32 s51, s51, s32")
    a("s_lshl_b32 s50, s51, 15")
    a(f"s_add_u32 s50, s50, {W1F:#x}")
    a(f"s_add_u32 s52, s42, {XF:#x}")
    pf = []
    for i in range(4):
        pf.append((ar(8 * i, 4), 48, i))
        pf.append((ar(8 * i + 4, 4), 49, i))
    if last:
        pf.append((ar(32, 4), 52, 0))
    else:
        a("v_lshlrev_b32 v159, 10, v3")
        a("v_lshl_add_u32 v159, v4, 3, v159")
        a("s_lshl_b32 s52, s45, 15")
        a("s_lshl_b32 s32, s46, 6")
        a("s_add_u32 s52, s52, s32")
        a("s_lshl_b32 s32, s47, 5")
        a("s_add_u32 s52, s52, s32")
        pf.append(None)
    for i in range(15):
        pf.append((ar(36 + 4 * i, 4), 50, i))
    for i in range(4):
        pf.append((vr(16 + 4 * i, 4), 50, 23 + i))
    a("s_waitcnt vmcnt(0) lgkmcnt(0)")
    a("s_barrier")
    a.stamp(2)
    a(f"ds_read_b128 {vr(KB[0],4)}, v156")
    a(f"ds_read_b128 {vr(KB[1],4)}, v156 offset:{KVT}")
    a(f"ds_read_b128 {vr(VB[0],4)}, v157")
    a(f"ds_read_b128 {vr(VB[0]+4,4)}, v157 offset:{VU}")
    a("s_cmp_lt_u32 s3, 4")
    a(f"s_cbranch_scc1 {T}_noprio")
    a("s_setprio 1")
    a(f"{T}_noprio:")
    a("s_waitcnt lgkmcnt(3)")
    a(f"v_mfma_f32_32x32x16_bf16 {vr(S[0],16)}, {vr(KB[0],4)}, {vr(Q[0],4)}, {'0' if CZERO else vr(C,16)}")
    a.nop(10)
    UN, PV1, PV2, DLY, NE = 4, 3, 6, 2, 16

    def body(extra, slots=(1, 4, 5)):
        for t in range(UN):
            for x in range(2):
                y = 1 - x
                ty = t if x == 0 else t + 1
                tv = t - 1 if x == 0 else t
                for i in range(8):
                    if i == 0:
                        if x == 1:
                            a("s_waitcnt lgkmcnt(0)")
                        a(f"v_mfma_f32_32x32x16_bf16 {vr(S[y],16)}, {vr(KB[ty%2],4)}, {vr(Q[y],4)}, {'0' if CZERO else vr(C,16)}")
                        if x == 1:
                            a(f"ds_read_b128 {vr(KB[t%2],4)}, v156 offset:{(t+2)*KVT}")
                            a(f"ds_read_b128 {vr(VB[(t+1)%2],4)}, v157 offset:{(t+1)*KVT}")
                            a(f"ds_read_b128 {vr(VB[(t+1)%2]+4,4)}, v157 offset:{(t+1)*KVT+VU}")
                    e = E + (2 * i) % NE
                    a(f"v_exp_f32 v{e}, v{S[x]+2*i}")
                    a(f"v_exp_f32 v{e+1}, v{S[x]+2*i+1}")
                    j = i - DLY
                    if j >= 0:
                        ej = E + (2 * j) % NE
                        a(f"v_cvt_pk_bf16_f32 v{P[x]+j}, v{ej}, v{ej+1}")
                    else:
                        ej = E + (2 * (j + 8)) % NE
                        a(f"v_cvt_pk_bf16_f32 v{P[y]+j+8}, v{ej}, v{ej+1}")
                    if i == PV1:
                        a(f"v_mfma_f32_32x32x16_bf16 {vr(O[y],16)}, {vr(VB[tv%2],4)}, {vr(P[y],4)}, {vr(O[y],16)}")
                    if i == PV2:
                        a(f"v_mfma_f32_32x32x16_bf16 {vr(O[y],16)}, {vr(VB[tv%2]+4,4)}, {vr(P[y]+4,4)}, {vr(O[y],16)}")
                    if i in slots and extra:
                        extra.pop(0)()
                if t == UN - 1 and x == 1:
                    a(f"v_add_u32 v156, {UN*KVT}, v156")
                    a(f"v_add_u32 v157, {UN*KVT}, v157")
                    a("s_add_u32 s29, s29, 1")
                    a("s_cmp_lg_u32 s29, 8")

    a("s_mov_b32 s29, 0")
    body([dma] * 11)
    body([])
    a("s_waitcnt vmcnt(0)")
    a("s_barrier")
    def rawres():
        a("buffer_load_dwordx2 a[32:33], v159, s[16:19], s52 offen")
        a("buffer_load_dwordx2 a[34:35], v159, s[16:19], s52 offen offset:16")
    pfl = [(lambda e=e: ld(a, e[0], e[1], e[2], 33)) if e else rawres for e in pf]
    def xid():
        a("s_cmp_lg_u32 s3, 0")
        a(f"s_cbranch_scc1 {T}_noxid")
        a("v_mov_b32 v5, s61")
        a("v_mov_b32 v6, 0")
        a("s_mov_b64 exec, 1")
        a(f"buffer_store_dword v5, v6, s[8:11], s40 offen offset:{64+32*L} {SC}")
        a("s_mov_b64 exec, -1")
        a(f"{T}_noxid:")
    xid()
    body(pfl[0:10], (2, 6))
    body(pfl[10:20], (2, 6))
    tail = []
    if WARM:
        a("s_lshr_b32 s56, s4, 3")
        a("s_and_b32 s56, s56, 3")
        a("s_and_b32 s57, s56, 1")
        a("s_lshl_b32 s58, s5, 1")
        a("s_add_u32 s57, s57, s58")
        a("s_mul_i32 s57, s57, 112")
        a("s_mul_i32 s58, s3, 14")
        a("s_add_u32 s57, s57, s58")
        a("s_lshr_b32 s58, s56, 1")
        a("s_mul_i32 s58, s58, 7")
        a("s_add_u32 s57, s57, s58")
        a("s_lshl_b32 s57, s57, 10")
        a(f"s_add_u32 s57, s57, {W2F:#x}")
        a("s_lshl_b32 s58, s56, 12")
        a("s_add_u32 s58, s58, s50")
        a(f"s_add_u32 s58, s58, {15*1024}")
        a("s_and_b32 s59, s56, 1")
        a("s_lshl_b32 s59, s59, 15")
        a("s_lshr_b32 s60, s56, 1")
        a("s_lshl_b32 s60, s60, 11")
        a("s_add_u32 s59, s59, s60")
        a("s_add_u32 s59, s59, s48")
        a(f"s_add_u32 s59, s59, {(WQF - WOF) & 0xffffffff:#x}")
        for k, (n, sr) in enumerate(((56, 57), (40, 58), (16, 59))):
            if last and sr == 59:
                continue
            a(f"v_min_u32 v{152+k}, {n-1}, v1")
            a(f"v_lshlrev_b32 v{152+k}, 7, v{152+k}")
            tail.append(lambda k=k, sr=sr: a(f"buffer_load_dword v155, v{152+k}, s[8:11], s{sr} offen"))
    a("v_and_b32 v5, 7, v1")
    a("v_lshlrev_b32 v5, 2, v5")
    a("s_lshl_b32 s62, s4, 8")
    a(f"s_add_u32 s62, s62, {FLAGS:#x}")
    tail.append(lambda: a(f"buffer_load_dword v159, v5, s[8:11], s62 offen offset:{64+32*L} {SC}"))
    if TOUCH and (L == 0 or not REUSE):
        a(f"s_add_u32 s20, s22, {OF:#x}")
        a(f"s_add_u32 s21, s42, {X1F:#x}")
        a("s_lshl_b32 s23, s4, 1")
        a("s_mul_i32 s23, s23, 112")
        a("s_lshl_b32 s24, s51, 1")
        a("s_add_u32 s23, s23, s24")
        a("s_lshl_b32 s23, s23, 10")
        a(f"s_add_u32 s23, s23, {HF:#x}")
        a("s_add_u32 s24, s23, 1024")
        a(f"s_add_u32 s25, s23, {112*1024}")
        a("s_add_u32 s26, s25, 1024")
        a(f"s_add_u32 s27, s42, {XFL[1]:#x}")
        a(f"s_add_u32 s28, s42, {QFL[1]:#x}")
        a("v_mov_b32 v6, s20")
        for k, sr in enumerate((21, 23, 24, 25, 26, 27, 28)):
            a(f"v_mov_b32 v7, s{sr}")
            a(f"v_cmp_le_u32 vcc, {8*(k+1)}, v1")
            a.nop(2)
            a("v_cndmask_b32 v6, v6, v7, vcc")
        a("v_and_b32 v7, 7, v1")
        a("v_lshl_add_u32 v6, v7, 7, v6")
        tail.append(lambda: a("buffer_load_dword v7, v6, s[8:11], 0 offen"))
    if TOUCH2:
        if last:
            a("v_lshlrev_b32 v6, 10, v3")
            a("s_lshl_b32 s20, s45, 15")
            a("s_lshl_b32 s21, s46, 6")
            a("s_add_u32 s20, s20, s21")
            tail.append(lambda: a("buffer_load_dword v7, v6, s[16:19], s20 offen"))
        else:
            a(f"s_mul_i32 s31, s45, {KVT}")
            a(f"s_add_u32 s31, s31, {KVFL[1]:#x}")
            tail.append(lambda: a("buffer_load_dword v155, v154, s[8:11], s31 offen"))
    body(pfl[20:28] + tail, (1, 5))
    a(f"{T}_loop:")
    a(f"s_cmp_lg_u32 s29, {PRIO_IT}")
    a(f"s_cbranch_scc1 {T}_prio2")
    a("s_setprio 0")
    a(f"{T}_prio2:")
    body([])
    a(f"s_cbranch_scc1 {T}_loop")
    a("s_waitcnt vmcnt(0)")
    for j in range(8 - DLY, 8):
        ej = E + (2 * j) % NE
        a(f"v_cvt_pk_bf16_f32 v{P[1]+j}, v{ej}, v{ej+1}")
    a.nop(2)
    a(f"v_mfma_f32_32x32x16_bf16 {vr(O[1],16)}, {vr(VB[1],4)}, {vr(P[1],4)}, {vr(O[1],16)}")
    a(f"v_mfma_f32_32x32x16_bf16 {vr(O[1],16)}, {vr(VB[1]+4,4)}, {vr(P[1]+4,4)}, {vr(O[1],16)}")
    a("s_mul_i32 s25, s3, 2304")
    a(f"s_add_u32 s25, s25, {SCR}")
    a("v_add_u32 v5, s25, v2")
    a("v_lshlrev_b32 v6, 2, v1")
    a("v_add_u32 v6, s25, v6")
    a("s_xor_b32 s25, s3, 4")
    a("s_mul_i32 s25, s25, 2304")
    a(f"s_add_u32 s25, s25, {SCR}")
    a("v_add_u32 v7, s25, v2")
    a("s_waitcnt vmcnt(0)")
    a("s_mov_b32 s37, 0")
    a("v_and_b32 v153, 7, v1")
    a("v_lshlrev_b32 v153, 2, v153")
    a(f"{T}_xchk:")
    a("v_cmp_eq_u32 vcc, 0, v159")
    a("s_cmp_eq_u64 vcc, 0")
    a(f"s_cbranch_scc1 {T}_xok")
    a("s_add_u32 s37, s37, 1")
    a(f"s_cmp_gt_u32 s37, {SPIN_MAX}")
    a(f"s_cbranch_scc1 {T}_xok")
    a("s_sleep 1")
    a(f"buffer_load_dword v159, v153, s[8:11], s62 offen offset:{64+32*L} {SC}")
    a("s_waitcnt vmcnt(0)")
    a(f"s_branch {T}_xchk")
    a(f"{T}_xok:")
    a("v_cmp_ne_u32 vcc, s61, v159")
    a("s_cmp_eq_u64 vcc, 0")
    a(f"s_cselect_b32 s61, {FAST}, 0")
    a("v_lshlrev_b32 v154, 2, v1")
    a("v_add_u32 v154, s25, v154")
    a("s_waitcnt lgkmcnt(0)")
    a.nop(8)
    a(f"ds_write_b128 v5, {vr(O[1],4)}")
    a(f"ds_write_b128 v5, {vr(O[1]+4,4)} offset:1024")
    a(f"ds_write_b32 v6, v{O[1]+8} offset:2048")
    a("s_waitcnt lgkmcnt(0)")
    a("s_barrier")
    a(f"ds_read_b128 {vr(S[0],4)}, v7")
    a(f"ds_read_b128 {vr(S[0]+4,4)}, v7 offset:1024")
    a(f"ds_read_b32 v{S[0]+8}, v154 offset:2048")
    a(f"v_mov_b32 v5, {KMX}")
    a(f"ds_read_b128 {vr(S[1],4)}, v5")
    a(f"ds_read_b128 {vr(S[1]+4,4)}, v5 offset:16")
    a("s_waitcnt lgkmcnt(0)")
    for r in range(9):
        a(f"v_add_f32 v{O[0]+r}, v{O[0]+r}, v{S[0]+r}")
    a(f"v_max3_f32 v5, v{S[1]}, v{S[1]+1}, v{S[1]+2}")
    a(f"v_max3_f32 v5, v5, v{S[1]+3}, v{S[1]+4}")
    a(f"v_max3_f32 v5, v5, v{S[1]+5}, v{S[1]+6}")
    a(f"v_max_f32 v5, v5, v{S[1]+7}")
    a("v_mul_f32 v5, s63, v5")
    a(f"v_mov_b32 v6, {f2u(BMAX*BMAX):#x}")
    a("v_cmp_nle_f32 vcc, v5, v6")
    a("s_cmp_eq_u64 vcc, 0")
    a(f"s_cbranch_scc1 {T}_afin")
    a("v_mov_b32 v156, v2")
    a("v_mov_b32 v6, 0xff800000")
    a("s_mov_b32 s29, 64")
    a(f"{T}_fb:")
    a(f"ds_read_b128 {vr(KB[0],4)}, v156")
    a(f"v_add_u32 v156, {KVT}, v156")
    a("s_waitcnt lgkmcnt(0)")
    a(f"v_mfma_f32_32x32x16_bf16 {vr(S[0],16)}, {vr(KB[0],4)}, {vr(Q[0],4)}, 0")
    a.nop(16)
    for i in range(8):
        a(f"v_max3_f32 v6, v6, v{S[0]+2*i}, v{S[0]+2*i+1}")
    a("s_sub_u32 s29, s29, 1")
    a("s_cmp_lg_u32 s29, 0")
    a(f"s_cbranch_scc1 {T}_fb")
    half_sum(a, 6, 7, op="v_max_f32")
    a("v_sub_f32 v6, 0, v6")
    for r in range(16):
        a(f"v_mov_b32 v{C+r}, v6")
        a(f"v_mov_b32 v{O[0]+r}, 0")
    a("v_mov_b32 v156, v2")
    a("v_mov_b32 v157, v158")
    a("s_mov_b32 s29, 64")
    a(f"{T}_fb2:")
    a(f"ds_read_b128 {vr(KB[0],4)}, v156")
    a(f"ds_read_b128 {vr(VB[0],4)}, v157")
    a(f"ds_read_b128 {vr(VB[0]+4,4)}, v157 offset:{VU}")
    a(f"v_add_u32 v156, {KVT}, v156")
    a(f"v_add_u32 v157, {KVT}, v157")
    a("s_waitcnt lgkmcnt(0)")
    a(f"v_mfma_f32_32x32x16_bf16 {vr(S[0],16)}, {vr(KB[0],4)}, {vr(Q[0],4)}, {vr(C,16)}")
    a.nop(16)
    for i in range(16):
        a(f"v_exp_f32 v{S[0]+i}, v{S[0]+i}")
    a.nop(1)
    for i in range(8):
        a(f"v_cvt_pk_bf16_f32 v{P[0]+i}, v{S[0]+2*i}, v{S[0]+2*i+1}")
    a.nop(2)
    a(f"v_mfma_f32_32x32x16_bf16 {vr(O[0],16)}, {vr(VB[0],4)}, {vr(P[0],4)}, {vr(O[0],16)}")
    a(f"v_mfma_f32_32x32x16_bf16 {vr(O[0],16)}, {vr(VB[0]+4,4)}, {vr(P[0]+4,4)}, {vr(O[0],16)}")
    a.nop(16)
    a("s_sub_u32 s29, s29, 1")
    a("s_cmp_lg_u32 s29, 0")
    a(f"s_cbranch_scc1 {T}_fb2")
    a(f"{T}_afin:")
    a(f"v_rcp_f32 v6, v{O[0]+8}")
    a.nop(1)
    for r in range(8):
        a(f"v_mul_f32 v{O[0]+r}, v{O[0]+r}, v6")
    for q in range(4):
        a(f"v_cvt_pk_bf16_f32 v{S[0]+q}, v{O[0]+2*q}, v{O[0]+2*q+1}")
    a(f"s_add_u32 s23, s22, {OF:#x}")
    hstore(a, [f"buffer_store_dwordx4 {vr(S[0],4)}, v2, s[8:11], s23 offen"])
    a.stamp(3)
    publish(a, EP + 1, f"{T}_p1")
    a("s_lshl_b32 s20, s4, 6")
    a("s_lshl_b32 s21, s3, 2")
    a("s_add_u32 s20, s20, s21")
    a("s_lshl_b32 s53, s20, 10")
    a(f"s_add_u32 s20, s53, {OF:#x}")
    a("s_add_u32 s21, s20, 32768")
    for i in range(2):
        ld(a, vr(8 + 4 * i, 4), 50, 27 + i, 33)
    for i in range(3):
        ld(a, vr(144 + 4 * i, 4), 50, 29 + i, 33)
    wait_flag(a, EP + 1, f"{T}_w1")
    a.stamp(4)
    for i in range(4):
        ld(a, vr(32 + 8 * i, 4), 20, i, 33, SCL)
        ld(a, vr(36 + 8 * i, 4), 21, i, 33, SCL)
    ACC = 64
    for i in range(4):
        a(f"s_waitcnt vmcnt({2*(3-i)})")
        for c in range(2):
            for r in range(2):
                t = 2 * c + r
                cin = "0" if i == 0 else vr(ACC + 16 * t, 16)
                a(f"v_mfma_f32_32x32x16_bf16 {vr(ACC+16*t,16)}, {ar(8*i+4*c,4)}, {vr(32+8*i+4*r,4)}, {cin}")
    for i in range(8):
        ld(a, ar(4 * i, 4), 50, 15 + i, 33)
    reduce8(a, ACC, 128)
    for q in range(4):
        a(f"v_accvgpr_read_b32 v{136+q}, a{32+q}")
    for q in range(4):
        a(f"v_lshlrev_b32 v{140}, 16, v{136+q}")
        a(f"v_and_b32 v{141}, 0xffff0000, v{136+q}")
        a(f"v_add_f32 v{128+2*q}, v{128+2*q}, v140")
        a(f"v_add_f32 v{129+2*q}, v{129+2*q}, v141")
    for q in range(4):
        a(f"v_cvt_pk_bf16_f32 v{136+q}, v{128+2*q}, v{129+2*q}")
    a(f"s_add_u32 s23, s42, {X1F:#x}")
    hstore(a, ["buffer_store_dwordx4 v[136:139], v2, s[8:11], s23 offen"])
    for q in range(4):
        a(f"v_accvgpr_write_b32 a{32+q}, v{136+q}")
    a.stamp(5)
    publish(a, EP + 2, f"{T}_p2")
    a(f"s_add_u32 s20, s53, {X1F:#x}")
    a("s_add_u32 s21, s20, 32768")
    wait_flag(a, EP + 2, f"{T}_w2")
    a.stamp(6)
    for i in range(4):
        ld(a, vr(32 + 4 * i, 4), 20, i, 33, SCL)
    for i in range(4):
        ld(a, vr(48 + 4 * i, 4), 21, i, 33, SCL)
    a("v_lshlrev_b32 v7, 4, v4")
    a("s_lshl_b32 s27, s51, 7")
    a(f"s_add_u32 s27, s27, {CS1:#x}")
    for q in range(4):
        a(f"buffer_load_dwordx4 {vr(88+4*q,4)}, v7, s[8:11], s27 offen offset:{32*q}")
    STAT = 65536
    a("s_lshl_b32 s21, s3, 12")
    a("v_add_u32 v5, s21, v2")
    a("s_mov_b32 s28, 0x3f803f80")
    for r in range(8):
        a(f"v_mov_b32 v{80+r}, 0")
    for rr in range(2):
        a(f"s_waitcnt vmcnt({4+4*(1-rr)})")
        for i in range(4):
            a(f"ds_write_b128 v5, {vr(32+16*rr+4*i,4)} offset:{32768*rr+1024*i}")
        for i in range(16):
            x = 32 + 16 * rr + i
            k = 4 * (i % 2)
            a(f"v_dot2_f32_bf16 v{80+k+2*rr}, v{x}, s28, v{80+k+2*rr}")
            a(f"v_dot2_f32_bf16 v{81+k+2*rr}, v{x}, v{x}, v{81+k+2*rr}")
    a("s_lshl_b32 s21, s3, 10")
    a(f"s_add_u32 s21, s21, {STAT}")
    a("v_add_u32 v5, s21, v2")
    a.nop(2)
    for r in range(4):
        a(f"v_add_f32 v{80+r}, v{80+r}, v{84+r}")
    a("ds_write_b128 v5, v[80:83]")
    a("s_waitcnt lgkmcnt(0)")
    a("s_barrier")
    a.stamp(7)
    a("s_lshl_b32 s32, s5, 1")
    a("s_mul_i32 s54, s32, 112")
    a("s_mul_i32 s33, s3, 14")
    a("s_add_u32 s54, s54, s33")
    a("s_lshl_b32 s54, s54, 10")
    a(f"s_add_u32 s54, s54, {W2F:#x}")
    a(f"s_add_u32 s55, s54, {112*1024}")
    a("s_cmp_eq_u32 s3, 7")
    a(f"s_cbranch_scc1 {T}_cskip")
    CACC = 104

    def w1reg(i):
        if i < 15:
            return ar(36 + 4 * i, 4)
        if i < 23:
            return ar(4 * (i - 15), 4)
        if i < 27:
            return vr(16 + 4 * (i - 23), 4)
        if i < 29:
            return vr(8 + 4 * (i - 27), 4)
        return vr(144 + 4 * (i - 29), 4)

    CR = 6

    def rd(i):
        b = 32 + 8 * (i % CR)
        a(f"ds_read_b128 {vr(b,4)}, v2 offset:{i*1024}")
        a(f"ds_read_b128 {vr(b+4,4)}, v2 offset:{32768+i*1024}")
    def w2reg(j):
        if j < 23:
            return w1reg(j)
        return vr(136 + 4 * (j - 23), 4)
    for i in range(CR - 1):
        rd(i)
    for i in range(32):
        if i + CR - 1 < 32:
            rd(i + CR - 1)
        pend = min(32, i + CR) - i - 1
        a(f"s_waitcnt lgkmcnt({2*pend})")
        b = 32 + 8 * (i % CR)
        for r in range(2):
            cin = "0" if i == 0 else vr(CACC + 16 * r, 16)
            a(f"v_mfma_f32_32x32x16_bf16 {vr(CACC+16*r,16)}, {w1reg(i)}, {vr(b+4*r,4)}, {cin}")
        if 1 <= i <= 23:
            j = i - 1
            ld(a, w2reg(j), 54 + (j & 1), j >> 1, 33)
    a(f"s_branch {T}_cepi")
    a(f"{T}_cskip:")
    for j in range(23):
        ld(a, w2reg(j), 54 + (j & 1), j >> 1, 33)
    a(f"{T}_cepi:")
    a.stamp(8)
    a("s_cmp_eq_u32 s3, 7")
    a(f"s_cbranch_scc1 {T}_cdone")
    a(f"v_add_u32 v5, {STAT}, v2")
    for w in range(8):
        a(f"ds_read_b128 {vr(32+4*w,4)}, v5 offset:{1024*w}")
    a("s_waitcnt vmcnt(23) lgkmcnt(0)")
    for w in range(1, 8):
        for r in range(4):
            a(f"v_add_f32 v{32+r}, v{32+r}, v{32+4*w+r}")
    for r in range(4):
        half_sum(a, 32 + r, 36)
    for r in range(2):
        m, x2 = 32 + 2 * r, 33 + 2 * r
        a(f"v_mul_f32 v{m}, {f2u(1.0/512):#x}, v{m}")
        a(f"v_mul_f32 v{x2}, {f2u(1.0/512):#x}, v{x2}")
        a(f"v_fma_f32 v{x2}, -v{m}, v{m}, v{x2}")
        a(f"v_max_f32 v{x2}, 0, v{x2}")
        a(f"v_add_f32 v{x2}, {f2u(EPS):#x}, v{x2}")
        a(f"v_rsq_f32 v{8+2*r}, v{x2}")
        a.nop(1)
        a(f"v_mul_f32 v{9+2*r}, v{m}, v{8+2*r}")
        a(f"v_sub_f32 v{9+2*r}, 0, v{9+2*r}")
    for rr in range(2):
        for r in range(16):
            a(f"v_mul_f32 v{40+r}, v{9+2*rr}, v{88+r}")
            a(f"v_fma_f32 v{CACC+16*rr+r}, v{CACC+16*rr+r}, v{8+2*rr}, v{40+r}")
        for q in range(8):
            a(f"v_cvt_pk_bf16_f32 v{16+8*rr+q}, v{CACC+16*rr+2*q}, v{CACC+16*rr+2*q+1}")
        for q in range(8):
            a(f"v_pk_max_i16 v{16+8*rr+q}, v{16+8*rr+q}, 0")
    a("s_lshl_b32 s26, s4, 1")
    a("s_mul_i32 s26, s26, 112")
    a("s_lshl_b32 s27, s51, 1")
    a("s_add_u32 s26, s26, s27")
    a("s_lshl_b32 s26, s26, 10")
    a(f"s_add_u32 s26, s26, {HF:#x}")
    a(f"s_add_u32 s27, s26, {112*1024}")
    hstore(a, ["buffer_store_dwordx4 v[16:19], v2, s[8:11], s26 offen",
               "buffer_store_dwordx4 v[20:23], v2, s[8:11], s26 offen offset:1024",
               "buffer_store_dwordx4 v[24:27], v2, s[8:11], s27 offen",
               "buffer_store_dwordx4 v[28:31], v2, s[8:11], s27 offen offset:1024"])
    a(f"{T}_cdone:")
    a.stamp(9)
    publish(a, EP + 3, f"{T}_p3")
    a("s_lshl_b32 s20, s4, 1")
    a("s_mul_i32 s20, s20, 112")
    a("s_mul_i32 s21, s3, 14")
    a("s_add_u32 s20, s20, s21")
    a("s_lshl_b32 s20, s20, 10")
    a(f"s_add_u32 s20, s20, {HF:#x}")
    a(f"s_add_u32 s21, s20, {112*1024}")
    wait_flag(a, EP + 3, f"{T}_w3")
    a.stamp(10)
    RING = 8
    DACC = 72

    def hld(i):
        b = 8 + 8 * (i % RING)
        ld(a, vr(b, 4), 20, i, 33, SCL)
        ld(a, vr(b + 4, 4), 21, i, 33, SCL)
    for i in range(RING):
        hld(i)
    def qreg(j):
        return w1reg(j)
    qpf = []
    if not last:
        a(f"s_add_u32 s48, s48, {(WQF - WOF) & 0xffffffff:#x}")
        a("s_add_u32 s49, s48, 32768")
        a("s_lshl_b32 s56, s3, 12")
        a(f"s_add_u32 s56, s56, {WKVF:#x}")
        a("v_lshlrev_b32 v156, 4, v4")
        a("v_lshlrev_b32 v157, 2, v3")
        a("s_lshl_b32 s57, s46, 7")
        a("s_lshl_b32 s33, s47, 6")
        a("s_add_u32 s57, s57, s33")
        a(f"s_add_u32 s57, s57, {CSQ:#x}")
        a(f"s_mov_b32 s58, {CSKV:#x}")
        for i in range(4):
            qpf.append(lambda i=i: ld(a, qreg(2 * i), 48, i, 33))
            qpf.append(lambda i=i: ld(a, qreg(2 * i + 1), 49, i, 33))
        for i in range(4):
            qpf.append(lambda i=i: ld(a, qreg(8 + i), 56, i, 33))
        for q in range(2):
            qpf.append(lambda q=q: a(f"buffer_load_dwordx4 {qreg(12+q)}, v156, s[8:11], s57 offen offset:{32*q}"))
        for q in range(2):
            qpf.append(lambda q=q: a(f"buffer_load_dwordx4 {qreg(14+q)}, v156, s[8:11], s58 offen offset:{32*q}"))
        qpf.append(lambda: a("buffer_load_dword a4, v157, s[8:11], s58 offen"))
    for j in range(23, 28):
        ld(a, w2reg(j), 54 + (j & 1), j >> 1, 33)

    def dloop(split, qpf):
        order = [('h', i) for i in range(RING)] + [('w', j) for j in range(23, 28)]
        for i in range(14):
            pos = order.index(('h', i))
            after = sum(2 if k == 'h' else 1 for (k, _) in order[pos + 1:])
            a(f"s_waitcnt vmcnt({after})")
            b = 8 + 8 * (i % RING)
            for c in range(2):
                for r in range(2):
                    t = 2 * c + r
                    cin = "0" if i == 0 else vr(DACC + 16 * t, 16)
                    a(f"v_mfma_f32_32x32x16_bf16 {vr(DACC+16*t,16)}, {w2reg(2*i+c)}, {vr(b+4*r,4)}, {cin}")
            if not split and i + RING < 14:
                hld(i + RING)
                order.append(('h', i + RING))
            elif split and i == RING - 1:
                poll3(0x70, f"{T}_w3b")
                for j in range(RING, 14):
                    hld(j)
                    order.append(('h', j))
            if i + RING >= 14 and (not split or i >= RING - 1):
                for _ in range(3):
                    k = sum(1 for (kk, _) in order if kk == 'q')
                    if qpf and k < 2 * i:
                        qpf.pop(0)()
                        order.append(('q', k))
        assert not qpf
    dloop(False, list(qpf))
    qpf = []
    a.stamp(11)
    assert not qpf
    reduce8(a, DACC, 8)
    for q in range(4):
        a(f"v_accvgpr_read_b32 v{16+q}, a{32+q}")
    for q in range(4):
        a(f"v_lshlrev_b32 v20, 16, v{16+q}")
        a(f"v_and_b32 v21, 0xffff0000, v{16+q}")
        a(f"v_add_f32 v{8+2*q}, v{8+2*q}, v20")
        a(f"v_add_f32 v{9+2*q}, v{9+2*q}, v21")
    for q in range(4):
        a(f"v_cvt_pk_bf16_f32 v{16+q}, v{8+2*q}, v{9+2*q}")
    if last:
        a.nop(2)
        a("v_permlane32_swap_b32 v16, v18")
        a("v_permlane32_swap_b32 v17, v19")
        a("v_lshlrev_b32 v5, 10, v3")
        a("v_lshl_add_u32 v5, v4, 4, v5")
        a("s_lshl_b32 s31, s45, 15")
        a("s_lshl_b32 s32, s46, 6")
        a("s_add_u32 s31, s31, s32")
        a("s_lshl_b32 s32, s47, 5")
        a("s_add_u32 s31, s31, s32")
        a("buffer_store_dwordx4 v[16:19], v5, s[16:19], s31 offen")
        a.stamp(12)
    else:
        XN, QN, KVN, KNN = XFL[1], QFL[1], KVFL[1], KNL[1]
        a(f"s_add_u32 s23, s42, {XN:#x}")
        hstore(a, ["buffer_store_dwordx4 v[16:19], v2, s[8:11], s23 offen"])
        a.stamp(12)
        publish(a, EP + 4, f"{T}_p4")
        a(f"s_add_u32 s20, s53, {XN:#x}")
        a("s_add_u32 s21, s20, 32768")
        a("s_mov_b32 s28, 0x3f803f80")
        wait_flag(a, EP + 4, f"{T}_w4")
        a.stamp(13)
        for i in range(4):
            ld(a, vr(8 + 8 * i, 4), 20, i, 33, SCL)
            ld(a, vr(12 + 8 * i, 4), 21, i, 33, SCL)
        for r in range(8):
            a(f"v_mov_b32 v{40+r}, 0")
        ACC = 64
        for i in range(4):
            a(f"s_waitcnt vmcnt({2*(3-i)})")
            for c in range(2):
                for r in range(2):
                    t = 2 * c + r
                    cin = "0" if i == 0 else vr(ACC + 16 * t, 16)
                    a(f"v_mfma_f32_32x32x16_bf16 {vr(ACC+16*t,16)}, {qreg(2*i+c)}, {vr(8+8*i+4*r,4)}, {cin}")
                    for q in range(4):
                        x = 8 + 8 * i + 4 * r + q
                        k = 40 + 4 * (q % 2) + 2 * r + c
                        if c == 0:
                            a(f"v_dot2_f32_bf16 v{k}, v{x}, s28, v{k}")
                        else:
                            a(f"v_dot2_f32_bf16 v{k}, v{x}, v{x}, v{k}")
        a("s_lshl_b32 s32, s3, 11")
        a(f"s_add_u32 s32, s32, {KVS}")
        a("v_add_u32 v7, s32, v2")
        a("s_cmp_ge_u32 s5, 6")
        a(f"s_cbranch_scc1 {T}_kvdone")
        for task in range(6):
            if task < 5:
                a(f"s_cmp_lg_u32 s5, {task}")
                a(f"s_cbranch_scc1 {T}_kvt{task+1}")
            kind = 'K' if task < 2 else 'V'
            r = task if task < 2 else (task - 2) >> 1
            u = 0 if task < 2 else (task & 1)
            for i in range(4):
                cin = "0" if i == 0 else vr(128, 16)
                if kind == 'K':
                    a(f"v_mfma_f32_32x32x16_bf16 {vr(128,16)}, {qreg(8+i)}, {vr(8+8*i+4*r,4)}, {cin}")
                else:
                    a(f"v_mfma_f32_32x32x16_bf16 {vr(128,16)}, {vr(8+8*i+4*r,4)}, {qreg(8+i)}, {cin}")
            a.nop(16)
            a(f"ds_write_b128 v7, {vr(128+8*u,4)}")
            a(f"ds_write_b128 v7, {vr(132+8*u,4)} offset:1024")
            if task < 5:
                a(f"s_branch {T}_kvdone")
                a(f"{T}_kvt{task+1}:")
        a(f"{T}_kvdone:")
        a("s_lshl_b32 s32, s3, 10")
        a(f"s_add_u32 s32, s32, {STATQ}")
        a("v_add_u32 v7, s32, v2")
        for r in range(4):
            a(f"v_add_f32 v{40+r}, v{40+r}, v{44+r}")
        a("ds_write_b128 v7, v[40:43]")
        reduce8(a, ACC, 8)
        a.stamp(14)
        qkv_tail(a, T, end, QN, KVN, KNN,
                 lambda: [a(f"v_accvgpr_read_b32 v{16+r}, a{84+r}") for r in range(8)],
                 lambda: [a(f"v_accvgpr_read_b32 v{16+r}, a{92+r if r < 4 else r-4}") for r in range(8)],
                 lambda: a("v_accvgpr_read_b32 v47, a4"))
    a(f"{end}:")
    a.stamp_flush(16)
    a(f"{end}x:")
    a("s_endpgm")
    a.desc(name, 160, agpr=96)
    return SCR + 8 * 2304 + 64


def tr_addr(a, dst, RS, t1, t2):
    a(f"v_lshrrev_b32 v{t1}, 5, v1")
    a(f"v_lshlrev_b32 v{t1}, 2, v{t1}")
    a(f"v_bfe_u32 v{t2}, v1, 2, 2")
    a(f"v_add_u32 v{t1}, v{t1}, v{t2}")
    a(f"v_mul_u32_u24 v{dst}, {RS}, v{t1}")
    a(f"v_bfe_u32 v{t1}, v1, 4, 1")
    a(f"v_lshlrev_b32 v{t1}, 5, v{t1}")
    a(f"v_and_b32 v{t2}, 3, v1")
    a(f"v_lshlrev_b32 v{t2}, 3, v{t2}")
    a(f"v_add3_u32 v{dst}, v{dst}, v{t1}, v{t2}")


def gen_K0(a):
    name = "k0_kernel"
    T = "K0"
    a.begin(name)
    end = f"{name}_end"
    a("s_cmp_ge_u32 s2, 256")
    a(f"s_cbranch_scc1 {end}x")
    a.stamp(0)
    a("s_load_dwordx16 s[16:31], s[0:1], 0")
    a("s_load_dwordx2 s[6:7], s[0:1], 80")
    a("v_and_b32 v1, 63, v0")
    a("v_lshrrev_b32 v2, 6, v0")
    a("v_and_b32 v3, 31, v1")
    a("v_readfirstlane_b32 s60, v2")
    a("v_lshrrev_b32 v4, 5, v1")
    a("v_lshlrev_b32 v2, 4, v1")
    a("s_and_b32 s4, s2, 31")
    a("s_lshr_b32 s5, s2, 5")
    a("s_and_b32 s3, s60, 7")
    a("s_waitcnt lgkmcnt(0)")
    a.srd(8, 6, G.WS_USED)
    a.srd(52, 20, 512 * 16 * 2)
    a.srd(56, 22, 512 * 16 * 2)
    a("s_mov_b32 s61, 0x3f803f80")
    a("s_cmp_ge_u32 s60, 8")
    a("s_cbranch_scc1 K0_prep")
    if os.environ.get('K0X', '') == 'qprio':
        a("s_setprio 3")
    a.stamp(1)
    a.srd(12, 16, 2048 * 512 * 2)
    a.srd(48, 18, 512 * 512 * 2)
    piece_sgprs(a)
    a("v_lshrrev_b32 v6, 3, v1")
    a("v_lshlrev_b32 v6, 10, v6")
    a("v_and_b32 v7, 7, v1")
    a("v_lshl_add_u32 v6, v7, 4, v6")
    a("s_lshl_b32 s20, s4, 16")
    a("s_lshl_b32 s22, s3, 7")
    a("s_add_u32 s20, s20, s22")
    for k in range(8):
        a(f"s_add_u32 s21, s20, {8192*k}")
        a(f"buffer_load_dwordx4 {vr(64+4*k,4)}, v6, s[12:15], s21 offen")
    a("v_lshrrev_b32 v7, 2, v1")
    a("v_lshlrev_b32 v7, 5, v7")
    a("v_and_b32 v5, 1, v1")
    a("v_lshl_add_u32 v7, v5, 4, v7")
    a("v_and_b32 v5, 2, v1")
    a("v_cmp_eq_u32 vcc, 0, v5")
    a("s_lshl_b32 s20, s3, 11")
    a("s_and_saveexec_b64 s[38:39], vcc")
    for i in range(4):
        a(f"buffer_load_dwordx4 {vr(96+4*i,4)}, v7, s[52:55], s20 offen offset:{512*i}")
    a("s_andn2_b64 exec, s[38:39], exec")
    for i in range(4):
        a(f"buffer_load_dwordx4 {vr(96+4*i,4)}, v7, s[56:59], s20 offen offset:{512*i}")
    a("s_mov_b64 exec, s[38:39]")
    a("s_lshl_b32 s22, s3, 16")
    a("s_lshl_b32 s23, s5, 7")
    a("s_add_u32 s22, s22, s23")
    a("s_lshl_b32 s23, s3, 13")
    for i in range(8):
        a(f"s_add_u32 m0, s23, {1024*i}")
        a(f"s_add_u32 s24, s22, {8192*i}")
        a("buffer_load_dwordx4 v6, s[48:51], s24 offen lds")
    a.stamp(2)
    if TOUCH2:
        a(f"s_add_u32 s24, s42, {QFL[0]:#x}")
        a(f"s_mul_i32 s25, s45, {KVT}")
        a(f"s_add_u32 s25, s25, {KVFL[0] - 1024:#x}")
        a("v_mov_b32 v5, s24")
        a("v_mov_b32 v6, s25")
        a("v_cmp_le_u32 vcc, 8, v1")
        a("v_min_u32 v7, 25, v1")
        a("v_lshlrev_b32 v7, 7, v7")
        a("v_cndmask_b32 v5, v5, v6, vcc")
        a("v_add_u32 v5, v5, v7")
        a("buffer_load_dword v0, v5, s[8:11], 0 offen")
    tr_addr(a, 56, 128, 5, 6)
    a("v_add_u32 v56, s23, v56")
    tr_addr(a, 57, 64, 5, 6)
    a("s_lshl_b32 s21, s3, 12")
    a("s_add_u32 s21, s21, 65536")
    a("v_add_u32 v57, s21, v57")
    a("v_lshrrev_b32 v5, 3, v1")
    a("v_and_b32 v6, 7, v1")
    a("v_xor_b32 v6, v6, v5")
    a("v_lshlrev_b32 v6, 4, v6")
    a("v_lshl_add_u32 v112, v5, 7, v6")
    a("v_add_u32 v112, s21, v112")
    a("v_and_b32 v5, 7, v3")
    a("v_lshlrev_b32 v5, 4, v5")
    a("v_lshl_add_u32 v5, v3, 7, v5")
    a("v_lshl_add_u32 v5, v4, 3, v5")
    a("v_add_u32 v113, s21, v5")
    a("v_add_u32 v114, s21, v2")
    for c in range(8):
        a(f"v_xor_b32 v{116+c}, {c<<4}, v113")
    for r in range(6):
        a(f"v_mov_b32 v{58+r}, 0")
    a("v_mov_b32 v7, 0")
    for r in range(2):
        a(f"s_waitcnt vmcnt({16+4*(1-r)+TOUCH2})")
        if r == 0:
            a.stamp(3)
        for j in range(4):
            a(f"ds_write_b128 v112, {vr(64+16*r+4*j,4)} offset:{1024*j}")
        for i in range(4):
            b = 8 + 8 * i + 4 * r
            a(f"ds_read_b64 {vr(b,2)}, v{116+2*i}")
            a(f"ds_read_b64 {vr(b+2,2)}, v{117+2*i}")
    a(f"s_waitcnt vmcnt({8+TOUCH2})")
    for i in range(4):
        a(f"ds_write_b128 v114, {vr(96+4*i,4)} offset:{1024*i}")
    for i in range(4):
        a(f"ds_read_b64_tr_b16 {vr(40+4*i,2)}, v57 offset:{16*i*64}")
        a(f"ds_read_b64_tr_b16 {vr(42+4*i,2)}, v57 offset:{(16*i+8)*64}")
    a("s_waitcnt lgkmcnt(0)")
    for r in range(16):
        a(f"v_dot2_f32_bf16 v7, v{40+r}, s61, v7")
    a("s_lshl_b32 s32, s3, 11")
    a(f"s_add_u32 s32, s32, {KVS}")
    a("v_add_u32 v6, s32, v2")
    a("s_cmp_ge_u32 s5, 6")
    a(f"s_cbranch_scc1 {T}_kvdone")
    for task in range(6):
        if task < 5:
            a(f"s_cmp_lg_u32 s5, {task}")
            a(f"s_cbranch_scc1 {T}_kvt{task+1}")
        kind = 'K' if task < 2 else 'V'
        r = task if task < 2 else (task - 2) >> 1
        u = 0 if task < 2 else (task & 1)
        for i in range(4):
            cin = "0" if i == 0 else vr(64, 16)
            if kind == 'K':
                a(f"v_mfma_f32_32x32x16_bf16 {vr(64,16)}, {vr(40+4*i,4)}, {vr(8+8*i+4*r,4)}, {cin}")
            else:
                a(f"v_mfma_f32_32x32x16_bf16 {vr(64,16)}, {vr(8+8*i+4*r,4)}, {vr(40+4*i,4)}, {cin}")
        a.nop(16)
        a(f"ds_write_b128 v6, {vr(64+8*u,4)}")
        a(f"ds_write_b128 v6, {vr(68+8*u,4)} offset:1024")
        if task < 5:
            a(f"s_branch {T}_kvdone")
            a(f"{T}_kvt{task+1}:")
    a(f"{T}_kvdone:")
    half_sum(a, 7, 5)
    a("s_mul_i32 s32, s3, 384")
    a(f"s_add_u32 s32, s32, {CSP}")
    a("v_lshlrev_b32 v6, 2, v3")
    a("v_add_u32 v6, s32, v6")
    a("ds_write_b32 v6, v7 offset:256")
    a(f"s_waitcnt vmcnt({TOUCH2})")
    a.stamp(4)

    def wrd(i):
        b = 40 + 8 * (i % 2)
        for c in range(2):
            a(f"ds_read_b64_tr_b16 {vr(b+4*c,2)}, v56 offset:{16*i*128+64*c}")
            a(f"ds_read_b64_tr_b16 {vr(b+4*c+2,2)}, v56 offset:{(16*i+8)*128+64*c}")
    wrd(0)
    ACC = 64
    for i in range(4):
        if i < 3:
            wrd(i + 1)
        a(f"s_waitcnt lgkmcnt({4 if i < 3 else 0})")
        b = 40 + 8 * (i % 2)
        for c in range(2):
            for r in range(2):
                t = 2 * c + r
                cin = "0" if i == 0 else vr(ACC + 16 * t, 16)
                a(f"v_mfma_f32_32x32x16_bf16 {vr(ACC+16*t,16)}, {vr(b+4*c,4)}, {vr(8+8*i+4*r,4)}, {cin}")
                for q in range(4):
                    x = 8 + 8 * i + 4 * r + q
                    k = 58 + 2 * r + c
                    if c == 0:
                        a(f"v_dot2_f32_bf16 v{k}, v{x}, s61, v{k}")
                    else:
                        a(f"v_dot2_f32_bf16 v{k}, v{x}, v{x}, v{k}")
                if r == 0:
                    for q in range(4):
                        a(f"v_dot2_f32_bf16 v{62+c}, v{b+4*c+q}, s61, v{62+c}")
    a("s_lshl_b32 s32, s3, 10")
    a(f"s_add_u32 s32, s32, {STATQ}")
    a("v_add_u32 v7, s32, v2")
    a.nop(2)
    a("ds_write_b128 v7, v[58:61]")
    half_sum(a, 62, 5)
    half_sum(a, 63, 5)
    a("ds_write_b32 v6, v62")
    a("ds_write_b32 v6, v63 offset:128")
    a.stamp(5)
    reduce8(a, ACC, 8, pre_barrier=True)
    a.stamp(6)

    def cs8(tile_off_expr):
        for s in range(8):
            for q in range(2):
                a(f"ds_read_b128 {vr(64+8*s+4*q,4)}, v46 offset:{s*384+32*q}")
        a("s_waitcnt lgkmcnt(0)")
        for r in range(8):
            a(f"v_add_f32 v{16+r}, v{64+r}, v{72+r}")
        for s in range(2, 8):
            for r in range(8):
                a(f"v_add_f32 v{16+r}, v{16+r}, v{64+8*s+r}")

    def get_csq():
        a("s_lshl_b32 s32, s44, 7")
        a("s_lshl_b32 s33, s47, 6")
        a("s_add_u32 s32, s32, s33")
        a(f"s_add_u32 s32, s32, {CSP}")
        a("v_lshlrev_b32 v46, 4, v4")
        a("v_add_u32 v46, s32, v46")
        cs8(None)

    def get_csk():
        a("v_lshlrev_b32 v46, 4, v4")
        a(f"v_add_u32 v46, {CSP+256}, v46")
        for s in range(6):
            for q in range(2):
                a(f"ds_read_b128 {vr(72+8*s+4*q,4)}, v46 offset:{s*384+32*q}")
        for s in range(6, 8):
            for q in range(2):
                a(f"ds_read_b128 {vr(24+8*(s-6)+4*q,4)}, v46 offset:{s*384+32*q}")
        a("s_waitcnt lgkmcnt(0)")
        for r in range(8):
            a(f"v_add_f32 v{16+r}, v{24+r}, v{32+r}")
        for s in range(6):
            for r in range(8):
                a(f"v_add_f32 v{16+r}, v{16+r}, v{72+8*s+r}")

    def get_csv():
        a("v_lshlrev_b32 v46, 2, v3")
        a(f"v_add_u32 v46, {CSP+256}, v46")
        for s in range(8):
            a(f"ds_read_b32 v{72+s}, v46 offset:{s*384}")
        a("s_waitcnt lgkmcnt(0)")
        a("v_add_f32 v47, v72, v73")
        for s in range(2, 8):
            a(f"v_add_f32 v47, v47, v{72+s}")
    qkv_tail(a, T, end, QFL[0], KVFL[0], KNL[0], get_csq, get_csk, get_csv)
    a(f"s_branch {end}")
    a("K0_prep:")
    if os.environ.get('K0X', '') == 'noprep':
        a(f"s_branch {end}x")
    if os.environ.get('K0X', '') == 'prio':
        a("s_setprio 3")
    a("s_cmp_lt_u32 s2, 154")
    a("s_cbranch_scc1 K0_ptask")
    if CODEPF:
        code_srd(a, 40, "K0")
        a("s_sub_u32 s32, s2, 154")
        a("s_lshr_b32 s32, s32, 3")
        a("s_lshl_b32 s32, s32, 3")
        a("s_add_u32 s32, s32, s3")
        a("s_lshl_b32 s32, s32, 10")
        a("buffer_load_dwordx4 v[16:19], v2, s[40:43], s32 offen")
        a("s_waitcnt vmcnt(0)")
    a(f"s_branch {end}x")
    a("K0_ptask:")
    a("s_cmp_lg_u32 s2, 153")
    a("s_cbranch_scc1 K0_pw")
    a("s_lshl_b32 s32, s3, 11")
    a(f"s_add_u32 s32, s32, {FLAGS:#x}")
    for r in range(4):
        a(f"v_mov_b32 v{16+r}, 0")
    a("buffer_store_dwordx4 v[16:19], v2, s[8:11], s32 offen")
    a("buffer_store_dwordx4 v[16:19], v2, s[8:11], s32 offen offset:1024")
    a(f"s_branch {end}x")
    a("K0_pw:")
    a("s_lshl_b32 s62, s3, 12")
    a("s_add_u32 s62, s62, 98304")
    a("s_mov_b32 s46, 0")
    a("s_mov_b32 s36, 32")
    a("s_cmp_eq_u32 s2, 152")
    a("s_cbranch_scc1 K0_pkv")
    a("s_cmp_ge_u32 s2, 88")
    a("s_cbranch_scc1 K0_pw2")
    a("s_cmp_ge_u32 s2, 32")
    a("s_cbranch_scc1 K0_pw1")
    a("s_cmp_ge_u32 s2, 16")
    a("s_cbranch_scc1 K0_pwo")
    a.srd(40, 18, 512 * 512 * 2)
    a("s_mov_b32 s44, 1024")
    a("s_mov_b32 s45, s2")
    a("s_lshl_b32 s47, s45, 15")
    a(f"s_add_u32 s47, s47, {WQF:#x}")
    a("s_lshl_b32 s49, s45, 7")
    a(f"s_add_u32 s49, s49, {CSQ:#x}")
    a("s_branch K0_pgo")
    a("K0_pwo:")
    a.srd(40, 24, 512 * 512 * 2)
    a("s_mov_b32 s44, 1024")
    a("s_sub_u32 s45, s2, 16")
    a("s_lshl_b32 s47, s45, 15")
    a(f"s_add_u32 s47, s47, {WOF:#x}")
    a("s_mov_b32 s49, 0")
    a("s_branch K0_pgo")
    a("K0_pw1:")
    a.srd(40, 28, 512 * 1792 * 2)
    a("s_mov_b32 s44, 3584")
    a("s_sub_u32 s45, s2, 32")
    a("s_lshl_b32 s47, s45, 15")
    a(f"s_add_u32 s47, s47, {W1F:#x}")
    a("s_lshl_b32 s49, s45, 7")
    a(f"s_add_u32 s49, s49, {CS1:#x}")
    a("s_branch K0_pgo")
    a("K0_pw2:")
    a.srd(40, 30, 512 * 1792 * 2)
    a("s_mov_b32 s44, 1024")
    a("s_sub_u32 s45, s2, 88")
    a("s_and_b32 s46, s45, 3")
    a("s_mul_i32 s46, s46, 28")
    a("s_lshr_b32 s45, s45, 2")
    a("s_mul_i32 s47, s45, 112")
    a("s_add_u32 s47, s47, s46")
    a("s_lshl_b32 s47, s47, 10")
    a(f"s_add_u32 s47, s47, {W2F:#x}")
    a("s_mov_b32 s36, 28")
    a("s_mov_b32 s49, 0")
    a("K0_pgo:")
    a("s_lshl_b32 s50, s3, 2")
    a("s_cmp_ge_u32 s50, s36")
    a(f"s_cbranch_scc1 {end}x")
    a("v_lshrrev_b32 v5, 2, v1")
    a("v_mul_lo_u32 v5, v5, s44")
    a("v_and_b32 v6, 3, v1")
    a("v_lshl_add_u32 v5, v6, 4, v5")
    a("s_add_u32 s51, s46, s50")
    a("s_lshl_b32 s51, s51, 4")
    a("s_mul_i32 s51, s51, s44")
    a("s_lshl_b32 s32, s45, 6")
    a("s_add_u32 s51, s51, s32")
    a("s_lshl_b32 s33, s44, 4")
    for i in range(4):
        a(f"s_add_u32 m0, s62, {1024*i}")
        a("s_nop 0")
        a("buffer_load_dwordx4 v5, s[40:43], s51 offen lds")
        a("s_add_u32 s51, s51, s33")
    a("s_branch K0_ptr")
    a("K0_pkv:")
    a("s_lshl_b32 s50, s3, 2")
    a("v_lshrrev_b32 v7, 2, v1")
    a("v_lshlrev_b32 v7, 5, v7")
    a("v_and_b32 v5, 1, v1")
    a("v_lshl_add_u32 v7, v5, 4, v7")
    a("v_and_b32 v5, 2, v1")
    a("v_cmp_eq_u32 vcc, 0, v5")
    a("s_lshl_b32 s20, s3, 11")
    a("s_and_saveexec_b64 s[38:39], vcc")
    for i in range(4):
        a(f"s_add_u32 m0, s62, {1024*i}")
        a(f"s_add_u32 s22, s20, {512*i}")
        a("buffer_load_dwordx4 v7, s[52:55], s22 offen lds")
    a("s_andn2_b64 exec, s[38:39], exec")
    for i in range(4):
        a(f"s_add_u32 m0, s62, {1024*i}")
        a(f"s_add_u32 s22, s20, {512*i}")
        a("buffer_load_dwordx4 v7, s[56:59], s22 offen lds")
    a("s_mov_b64 exec, s[38:39]")
    a(f"s_mov_b32 s47, {WKVF:#x}")
    a(f"s_mov_b32 s49, {CSKV:#x}")
    a("K0_ptr:")
    a("s_lshl_b32 s32, s50, 10")
    a("s_add_u32 s47, s47, s32")
    if TOUCH2:
        a("v_lshlrev_b32 v9, 7, v3")
        a("buffer_load_dword v10, v9, s[8:11], s47 offen")
    tr_addr(a, 8, 64, 5, 6)
    a("v_add_u32 v8, s62, v8")
    a("v_mov_b32 v7, 0")
    a(f"s_waitcnt vmcnt({TOUCH2})")
    for i in range(4):
        a(f"ds_read_b64_tr_b16 {vr(16+4*i,2)}, v8 offset:{16*i*64}")
        a(f"ds_read_b64_tr_b16 {vr(18+4*i,2)}, v8 offset:{(16*i+8)*64}")
    for i in range(4):
        a(f"s_waitcnt lgkmcnt({2*(3-i)})")
        a(f"buffer_store_dwordx4 {vr(16+4*i,4)}, v2, s[8:11], s47 offen offset:{1024*i}")
        for q in range(4):
            a(f"v_dot2_f32_bf16 v7, v{16+4*i+q}, s61, v7")
    a("s_cmp_eq_u32 s49, 0")
    a(f"s_cbranch_scc1 {end}x")
    a.nop(2)
    half_sum(a, 7, 5)
    a("s_lshl_b32 s32, s3, 7")
    a(f"s_add_u32 s32, s32, {CSP2}")
    a("v_lshlrev_b32 v6, 2, v3")
    a("v_add_u32 v5, s32, v6")
    a("ds_write_b32 v5, v7")
    a("s_waitcnt lgkmcnt(0)")
    a("s_barrier")
    a("s_cmp_lg_u32 s3, 0")
    a(f"s_cbranch_scc1 {end}x")
    a(f"v_add_u32 v5, {CSP2}, v6")
    for s in range(8):
        a(f"ds_read_b32 v{16+s}, v5 offset:{128*s}")
    a("s_waitcnt lgkmcnt(0)")
    for s in range(1, 8):
        a(f"v_add_f32 v16, v16, v{16+s}")
    a("v_cmp_gt_u32 vcc, 32, v1")
    a("s_and_saveexec_b64 s[38:39], vcc")
    a("buffer_store_dword v16, v6, s[8:11], s49 offen")
    a(f"s_branch {end}x")
    a(f"{end}:")
    a.stamp_flush(8)
    a(f"{end}x:")
    a("s_endpgm")
    a.desc(name, 128)
    return CSP2 + 1024


def gen_zero_flags(a):
    pass


def main():
    a = Asm()
    G.XF, G.QF, G.KVF = XFL[0], QFL[0], KVFL[0]
    G.FLAGS_ZERO = FLAGS
    lds_k0 = gen_K0(a)
    lds_f = gen_F(a, 0)
    gen_F(a, 1)
    hdr = ["; generated by gen/gen2.py -- fused MQA + FFN pipeline"]
    L = hdr.append
    L(f"; @launch kernel=k0_kernel grid=(256,1,1) block=(1024,1,1) lds={lds_k0}")
    L(f"; @launch kernel=f1_kernel grid=(256,1,1) block=(512,1,1) lds={lds_f}")
    L(f"; @launch kernel=f2_kernel grid=(256,1,1) block=(512,1,1) lds={lds_f}")
    out = "\n".join(hdr) + "\n"
    out += '.amdgcn_target "amdgcn-amd-amdhsa--gfx950"\n.text\n'
    out += "\n".join(a.L) + "\ncode_end:\n"
    out += '.section .rodata,"a"\n' + "\n".join(a.kernels) + "\n"
    path = sys.argv[1] if len(sys.argv) > 1 else f"cdna_kernels/{NAME}.s"
    open(path, 'w').write(out)
    if PROFILE:
        import json
        json.dump(G.PROF_SLOT, open('prof_slots.json', 'w'))
    print("wrote", path, len(out), "bytes")


if __name__ == "__main__":
    main()
```

```python
import os
import sys
import gen as G
from gen import Asm, vr, ar, f2u, half_sum, wave32_max, prologue, frag_loads
from gen import WQF, WOF, W1F, W2F, WKVF, CSQ, CS1, CSKV, VH, VU, KVT, KVF_BYTES, QS, EPS, NAME, PROFILE

LSTRIDE = 0x2000000
XFL = [0x500000, 0x500000 + LSTRIDE]
QFL = [0x700000, 0x700000 + LSTRIDE]
REUSE = int(os.environ.get('REUSE', '1'))
TOUCH = int(os.environ.get('TOUCH', '1'))
TOUCH2 = int(os.environ.get('TOUCH2', '1'))
_R = 0 if REUSE else LSTRIDE
OFL = [0x900000, 0x900000 + _R]
X1FL = [0xB00000, 0xB00000 + _R]
HFL = [0x1000000, 0x1000000 + _R]
KVFL = [0x1800000, 0x1800000 + LSTRIDE]
KNL = [0x1880000, 0x1880000 + LSTRIDE]
FLAGS = 0x490000
FL3 = FLAGS + 8192
G.WS_USED = 0x4400000
G.PROF = 0x4000000
G.KN = KNL[0]
SC = "sc0 sc1"
SCL = os.environ.get("SCL", "sc1")
SPIN_MAX = 200000
BMAX = float(os.environ.get('BMAX', '64'))

PRIO_IT = int(os.environ.get('PRIO_IT', '7'))
WARM = int(os.environ.get('WARM', '1'))
CODEPF = int(os.environ.get('CODEPF', '0'))
FAST = int(os.environ.get('FAST', '1'))
CZERO = int(os.environ.get('CZERO', '1'))


_uid = [0]
FSF = os.environ.get('FSF', '')


def hstore(a, insts):
    _uid[0] += 1
    u = _uid[0]
    a("s_cmp_lg_u32 s61, 0")
    a(f"s_cbranch_scc1 HS{u}_f")
    for i in insts:
        a(f"{i} {SC}")
    a(f"s_branch HS{u}_e")
    a(f"HS{u}_f:")
    for i in insts:
        a(i + (" " + FSF if 'dwordx4' in i else ""))
    a(f"HS{u}_e:")


def publish(a, epoch, tag):
    a("s_waitcnt vmcnt(0)")
    a("s_barrier")
    a("s_cmp_lg_u32 s3, 0")
    a(f"s_cbranch_scc1 {tag}_np")
    a(f"v_mov_b32 v5, {epoch}")
    a("v_mov_b32 v6, 0")
    a("v_cmp_eq_u32 vcc, 0, v1")
    a("s_and_saveexec_b64 s[38:39], vcc")
    hstore(a, ["buffer_store_dword v5, v6, s[8:11], s40 offen"])
    a("s_mov_b64 exec, s[38:39]")
    a(f"{tag}_np:")


def wait_flag(a, epoch, tag):
    a("v_mov_b32 v6, 0")
    a("s_mov_b32 s37, 0")
    a(f"{tag}_poll:")
    a(f"buffer_load_dword v5, v6, s[8:11], s41 offen {SC}")
    a("s_waitcnt vmcnt(0)")
    a("v_readfirstlane_b32 s36, v5")
    a("s_add_u32 s37, s37, 1")
    a(f"s_cmp_ge_u32 s36, {epoch}")
    a(f"s_cbranch_scc1 {tag}_go")
    a(f"s_cmp_gt_u32 s37, {SPIN_MAX}")
    a(f"s_cbranch_scc1 {tag}_go")
    a("s_sleep 1")
    a(f"s_branch {tag}_poll")
    a(f"{tag}_go:")


def ld(a, dst, sbase, idx, stmp, flags=""):
    hi, lo = idx // 4, idx % 4
    if hi == 0:
        so = f"s{sbase}"
    else:
        a(f"s_add_u32 s{stmp}, s{sbase}, {hi*4096}")
        so = f"s{stmp}"
    a(f"buffer_load_dwordx4 {dst}, v2, s[8:11], {so} offen offset:{lo*1024} {flags}")


def reduce8(a, ACC, DST, lds_base=0, pre_barrier=False):
    a("s_lshl_b32 s32, s3, 11")
    a("v_add_u32 v5, s32, v2")
    a("v_add_u32 v6, 0x10000, v5")
    a("s_lshl_b32 s32, s3, 14")
    a("v_add_u32 v7, s32, v2")
    a.nop(12)
    if pre_barrier:
        a("s_waitcnt lgkmcnt(0)")
        a("s_barrier")
    for p in range(8):
        for q in range(2):
            off = (p % 4) * 16384 + q * 1024
            a(f"ds_write_b128 v{5 if p < 4 else 6}, {vr(ACC+8*p+4*q,4)} offset:{off}")
    a("s_waitcnt lgkmcnt(0)")
    a("s_barrier")
    for s in range(8):
        for q in range(2):
            a(f"ds_read_b128 {vr(ACC+8*s+4*q,4)}, v7 offset:{s*2048+q*1024}")
    for s in range(0, 8, 2):
        a(f"s_waitcnt lgkmcnt({12-2*s})")
        for r in range(8):
            if s == 0:
                a(f"v_add_f32 v{DST+r}, v{ACC+r}, v{ACC+8+r}")
            else:
                a(f"v_add_f32 v{ACC+8*s+r}, v{ACC+8*s+r}, v{ACC+8*s+8+r}")
                a(f"v_add_f32 v{DST+r}, v{DST+r}, v{ACC+8*s+r}")


STATQ = 131072
KVS = STATQ + 8192
STAT2 = KVS + 16384
CSP = STAT2 + 256
CSP2 = CSP + 3072


def qkv_tail(a, T, end, QN, KVN, KNN, get_csq, get_csk, get_csv):
    a("s_lshl_b32 s32, s43, 3")
    a(f"s_add_u32 s32, s32, {STATQ}")
    a("v_add_u32 v7, s32, v2")
    for s in range(8):
        a(f"ds_read_b64 {vr(40+2*s,2)}, v7 offset:{s*1024}")
    a("s_waitcnt lgkmcnt(0)")
    for s in range(1, 8):
        a(f"v_add_f32 v40, v40, v{40+2*s}")
        a(f"v_add_f32 v41, v41, v{41+2*s}")
    half_sum(a, 40, 42)
    half_sum(a, 41, 42)
    a(f"v_mul_f32 v40, {f2u(1.0/512):#x}, v40")
    a(f"v_mul_f32 v41, {f2u(1.0/512):#x}, v41")
    a("v_fma_f32 v41, -v40, v40, v41")
    a("v_max_f32 v41, 0, v41")
    a(f"v_add_f32 v41, {f2u(EPS):#x}, v41")
    a("v_rsq_f32 v41, v41")
    a.nop(1)
    a("v_mul_f32 v42, v40, v41")
    a("v_sub_f32 v42, 0, v42")
    a(f"v_mul_f32 v43, {f2u(QS):#x}, v41")
    a(f"v_mul_f32 v44, {f2u(QS):#x}, v42")
    get_csq()
    for r in range(8):
        a(f"v_mul_f32 v{16+r}, v44, v{16+r}")
        a(f"v_fma_f32 v{8+r}, v{8+r}, v43, v{16+r}")
    for q in range(4):
        a(f"v_cvt_pk_bf16_f32 v{24+q}, v{8+2*q}, v{9+2*q}")
    a(f"s_add_u32 s23, s42, {QN:#x}")
    a("buffer_store_dwordx4 v[24:27], v2, s[8:11], s23 offen")
    a("s_cmp_ge_u32 s5, 6")
    a(f"s_cbranch_scc1 {end}")
    a("s_lshr_b32 s32, s5, 2")
    a("s_cmp_eq_u32 s5, 1")
    a("s_cselect_b32 s32, 1, s32")
    a("s_lshl_b32 s32, s32, 1")
    a("s_cmp_lg_u32 s3, s32")
    a(f"s_cbranch_scc1 {end}")
    a(f"v_add_u32 v7, {KVS}, v2")
    for s in range(8):
        for q in range(2):
            a(f"ds_read_b128 {vr(64+8*s+4*q,4)}, v7 offset:{s*2048+q*1024}")
    a(f"s_mul_i32 s33, s45, {KVT}")
    a(f"s_add_u32 s33, s33, {KVN:#x}")
    a("s_waitcnt lgkmcnt(0)")
    for s in range(1, 8):
        for r in range(8):
            a(f"v_add_f32 v{64+r}, v{64+r}, v{64+8*s+r}")
    a("s_cmp_ge_u32 s5, 2")
    a(f"s_cbranch_scc1 {T}_finV")
    a("v_mov_b32 v45, 0")
    get_csk()
    for r in range(8):
        a(f"v_mul_f32 v{16+r}, v42, v{16+r}")
        a(f"v_fma_f32 v{64+r}, v{64+r}, v41, v{16+r}")
        a(f"v_fma_f32 v45, v{64+r}, v{64+r}, v45")
    for q in range(4):
        a(f"v_cvt_pk_bf16_f32 v{28+q}, v{64+2*q}, v{65+2*q}")
    a("buffer_store_dwordx4 v[28:31], v2, s[8:11], s33 offen")
    half_sum(a, 45, 46)
    a("s_lshl_b32 s32, s45, 7")
    a(f"s_add_u32 s32, s32, {KNN:#x}")
    a("v_lshlrev_b32 v46, 2, v3")
    a("v_cmp_gt_u32 vcc, 32, v1")
    a("s_and_saveexec_b64 s[38:39], vcc")
    a("buffer_store_dword v45, v46, s[8:11], s32 offen")
    a(f"s_branch {end}")
    a(f"{T}_finV:")
    a("v_lshlrev_b32 v7, 2, v3")
    a(f"v_add_u32 v7, {STAT2}, v7")
    a("ds_write_b32 v7, v41")
    a("ds_write_b32 v7, v42 offset:128")
    a("s_and_b32 s32, s5, 1")
    a("s_lshl_b32 s32, s32, 6")
    a(f"s_add_u32 s32, s32, {STAT2}")
    a("v_lshlrev_b32 v7, 4, v4")
    a("v_add_u32 v7, s32, v7")
    get_csv()
    a("s_waitcnt lgkmcnt(0)")
    for q in range(2):
        a(f"ds_read_b128 {vr(16+4*q,4)}, v7 offset:{32*q}")
        a(f"ds_read_b128 {vr(24+4*q,4)}, v7 offset:{128+32*q}")
    a("s_waitcnt lgkmcnt(0)")
    for r in range(8):
        a(f"v_mul_f32 v{24+r}, v47, v{24+r}")
        a(f"v_fma_f32 v{64+r}, v{64+r}, v{16+r}, v{24+r}")
    for q in range(4):
        a(f"v_cvt_pk_bf16_f32 v{32+q}, v{64+2*q}, v{65+2*q}")
    a("v_cmp_eq_u32 s[38:39], 0, v3")
    a("v_mov_b32 v45, 0x3f803f80")
    a("v_mov_b32 v46, 0")
    a("v_cndmask_b32 v45, v46, v45, s[38:39]")
    a("v_cmp_le_u32 vcc, 16, v3")
    a("v_xor_b32 v7, 16, v3")
    a("v_lshlrev_b32 v7, 4, v7")
    for q in range(4):
        a(f"v_cndmask_b32 v{32+q}, v45, v{32+q}, vcc")
    a(f"v_mul_u32_u24 v46, {VH}, v4")
    a("v_add_u32 v7, v7, v46")
    a("s_and_b32 s32, s5, 1")
    a(f"s_mul_i32 s32, s32, {VU}")
    a("s_add_u32 s33, s33, s32")
    a("v_cmp_gt_u32 s[38:39], 2, v3")
    a("s_or_b64 vcc, vcc, s[38:39]")
    a("s_and_saveexec_b64 s[38:39], vcc")
    a("buffer_store_dwordx4 v[32:35], v7, s[8:11], s33 offen offset:1024")


def piece_sgprs(a):
    a("s_lshr_b32 s32, s3, 1")
    a("s_and_b32 s43, s32, 1")
    a("s_lshr_b32 s44, s3, 2")
    a("s_lshl_b32 s45, s4, 1")
    a("s_add_u32 s45, s45, s43")
    a("s_lshl_b32 s46, s5, 1")
    a("s_add_u32 s46, s46, s44")
    a("s_lshl_b32 s42, s45, 5")
    a("s_lshl_b32 s32, s46, 1")
    a("s_add_u32 s42, s42, s32")
    a("s_and_b32 s47, s3, 1")
    a("s_add_u32 s42, s42, s47")
    a("s_lshl_b32 s42, s42, 10")


def code_srd(a, d, tag):
    a(f"s_getpc_b64 s[{d}:{d+1}]")
    a(f"{tag}_pc:")
    a(f"s_add_u32 s{d}, s{d}, f1_kernel-{tag}_pc")
    a(f"s_addc_u32 s{d+1}, s{d+1}, {'-1' if tag != 'K0' else '0'}")
    a(f"s_mov_b32 s{d+2}, code_end-f1_kernel")
    a(f"s_mov_b32 s{d+3}, 0x00020000")


def gen_F(a, L):
    last = (L == 1)
    name = f"f{L+1}_kernel"
    T = f"F{L}"
    a.begin(name)
    end = f"{name}_end"
    prologue(a, end, out_ptr=True, out_off=(64 if last else 0))
    a.srd(16, 12, 2048 * 512 * 2)
    XF, QF, OF, X1F, HF, KVF, KN = XFL[L], QFL[L], OFL[L], X1FL[L], HFL[L], KVFL[L], KNL[L]
    EP = 4 * L
    SCR = KVF_BYTES
    KMX = SCR + 8 * 2304
    Q = (8, 12)
    C = 80
    O = (32, 48)
    S = (64, 80)
    P = (96, 104)
    E = 112
    KB = (128, 132)
    VB = (136, 144)
    a("s_and_b32 s20, s3, 3")
    a("s_lshr_b32 s30, s3, 2")
    a("s_and_b32 s21, s20, 1")
    a("s_lshl_b32 s21, s21, 1")
    a("s_lshl_b32 s22, s5, 2")
    a("s_add_u32 s21, s21, s22")
    a("s_lshr_b32 s22, s20, 1")
    a("s_lshl_b32 s23, s4, 1")
    a("s_add_u32 s22, s22, s23")
    a("s_lshl_b32 s22, s22, 5")
    a("s_add_u32 s22, s22, s21")
    a("s_add_u32 s23, s22, s30")
    a("s_xor_b32 s24, s30, 1")
    a("s_add_u32 s24, s22, s24")
    a("s_lshl_b32 s22, s23, 10")
    a("s_lshl_b32 s24, s24, 10")
    a(f"s_add_u32 s23, s22, {QF:#x}")
    a(f"s_add_u32 s24, s24, {QF:#x}")
    a(f"buffer_load_dwordx4 {vr(Q[0],4)}, v2, s[8:11], s23 offen")
    a(f"buffer_load_dwordx4 {vr(Q[1],4)}, v2, s[8:11], s24 offen")
    a("s_lshl_b32 s23, s3, 10")
    a(f"s_add_u32 s23, s23, {KN:#x}")
    a(f"buffer_load_dwordx4 {vr(E,4)}, v2, s[8:11], s23 offen")
    a("s_lshr_b32 s24, s3, 1")
    a("s_lshl_b32 s24, s24, 10")
    a("s_and_b32 s25, s3, 1")
    a(f"s_mul_i32 s25, s25, {32*KVT}")
    a("s_add_u32 s34, s24, s25")
    a(f"s_add_u32 s35, s34, {KVF:#x}")

    def dma():
        a("s_mov_b32 m0, s34")
        a("s_add_u32 s34, s34, 4096")
        a("buffer_load_dwordx4 v2, s[8:11], s35 offen lds")
        a("s_add_u32 s35, s35, 4096")
    for i in range(6):
        dma()
    a("s_lshl_b32 s40, s4, 8")
    a(f"s_add_u32 s40, s40, {FLAGS:#x}")
    a("s_lshl_b32 s41, s3, 2")
    a("s_add_u32 s41, s41, s40")
    a("s_lshl_b32 s32, s5, 2")
    a("s_add_u32 s40, s40, s32")
    piece_sgprs(a)
    a("s_getreg_b32 s61, hwreg(HW_REG_XCC_ID)")
    a("s_and_b32 s61, s61, 15")
    a("s_add_u32 s61, s61, 1")
    a("v_min_u32 v6, 17, v3")
    a("v_mov_b32 v5, 16")
    a("v_cmp_eq_u32 vcc, 20, v3")
    a(f"s_mul_i32 s25, s30, {32*KVT}")
    a.nop(1)
    a("v_cndmask_b32 v6, v6, v5, vcc")
    a("v_lshlrev_b32 v6, 4, v6")
    a(f"v_mul_u32_u24 v5, {VH}, v4")
    a("v_add3_u32 v158, v6, v5, 64")
    a("v_add_u32 v158, 960, v158")
    a("v_add_u32 v156, s25, v2")
    a("v_add_u32 v157, s25, v158")
    a("s_waitcnt vmcnt(6)")
    a("v_mov_b32 v5, 0")
    a("v_mov_b32 v6, 0")
    for q in range(4):
        a(f"v_dot2_f32_bf16 v5, v{Q[0]+q}, v{Q[0]+q}, v5")
        a(f"v_dot2_f32_bf16 v6, v{Q[1]+q}, v{Q[1]+q}, v6")
    a.nop(3)
    half_sum(a, 5, 154)
    half_sum(a, 6, 154)
    a("v_max_f32 v5, v5, v6")
    a(f"v_max3_f32 v7, v{E}, v{E+1}, v{E+2}")
    a(f"v_max_f32 v7, v7, v{E+3}")
    for off in (0x041F, 0x081F, 0x101F, 0x201F, 0x401F):
        a(f"ds_swizzle_b32 v6, v5 offset:{off:#x}")
        a(f"ds_swizzle_b32 v154, v7 offset:{off:#x}")
        a("s_waitcnt lgkmcnt(0)")
        a("v_max_f32 v5, v5, v6")
        a("v_max_f32 v7, v7, v154")
    half_sum(a, 7, 154, op="v_max_f32")
    a("v_readfirstlane_b32 s63, v5")
    a("s_lshl_b32 s23, s3, 2")
    a(f"s_add_u32 s23, s23, {KMX}")
    a("v_mov_b32 v6, s23")
    a("ds_write_b32 v6, v7")
    for r in range(16):
        a(f"v_mov_b32 v{O[0]+r}, 0")
        a(f"v_mov_b32 v{O[1]+r}, 0")
        a(f"v_mov_b32 v{E+r}, 0")
    for r in range(8):
        a(f"v_mov_b32 v{P[1]+r}, 0")
        a(f"v_mov_b32 v{VB[1]+r}, 0")
    a("s_lshl_b32 s32, s5, 1")
    a("s_lshl_b32 s48, s32, 5")
    a("s_lshl_b32 s33, s3, 2")
    a("s_add_u32 s48, s48, s33")
    a("s_lshl_b32 s48, s48, 10")
    a(f"s_add_u32 s48, s48, {WOF:#x}")
    a("s_add_u32 s49, s48, 32768")
    a("s_min_u32 s32, s3, 6")
    a("s_mul_i32 s51, s5, 7")
    a("s_add_u32 s51, s51, s32")
    a("s_lshl_b32 s50, s51, 15")
    a(f"s_add_u32 s50, s50, {W1F:#x}")
    a(f"s_add_u32 s52, s42, {XF:#x}")
    pf = []
    for i in range(4):
        pf.append((ar(8 * i, 4), 48, i))
        pf.append((ar(8 * i + 4, 4), 49, i))
    if last:
        pf.append((ar(32, 4), 52, 0))
    else:
        a("v_lshlrev_b32 v159, 10, v3")
        a("v_lshl_add_u32 v159, v4, 3, v159")
        a("s_lshl_b32 s52, s45, 15")
        a("s_lshl_b32 s32, s46, 6")
        a("s_add_u32 s52, s52, s32")
        a("s_lshl_b32 s32, s47, 5")
        a("s_add_u32 s52, s52, s32")
        pf.append(None)
    for i in range(15):
        pf.append((ar(36 + 4 * i, 4), 50, i))
    for i in range(4):
        pf.append((vr(16 + 4 * i, 4), 50, 23 + i))
    a("s_waitcnt vmcnt(0) lgkmcnt(0)")
    a("s_barrier")
    a.stamp(2)
    a(f"ds_read_b128 {vr(KB[0],4)}, v156")
    a(f"ds_read_b128 {vr(KB[1],4)}, v156 offset:{KVT}")
    a(f"ds_read_b128 {vr(VB[0],4)}, v157")
    a(f"ds_read_b128 {vr(VB[0]+4,4)}, v157 offset:{VU}")
    a("s_cmp_lt_u32 s3, 4")
    a(f"s_cbranch_scc1 {T}_noprio")
    a("s_setprio 1")
    a(f"{T}_noprio:")
    a("s_waitcnt lgkmcnt(3)")
    a(f"v_mfma_f32_32x32x16_bf16 {vr(S[0],16)}, {vr(KB[0],4)}, {vr(Q[0],4)}, {'0' if CZERO else vr(C,16)}")
    a.nop(10)
    UN, PV1, PV2, DLY, NE = 4, 3, 6, 2, 16

    def body(extra, slots=(1, 4, 5)):
        for t in range(UN):
            for x in range(2):
                y = 1 - x
                ty = t if x == 0 else t + 1
                tv = t - 1 if x == 0 else t
                for i in range(8):
                    if i == 0:
                        if x == 1:
                            a("s_waitcnt lgkmcnt(0)")
                        a(f"v_mfma_f32_32x32x16_bf16 {vr(S[y],16)}, {vr(KB[ty%2],4)}, {vr(Q[y],4)}, {'0' if CZERO else vr(C,16)}")
                        if x == 1:
                            a(f"ds_read_b128 {vr(KB[t%2],4)}, v156 offset:{(t+2)*KVT}")
                            a(f"ds_read_b128 {vr(VB[(t+1)%2],4)}, v157 offset:{(t+1)*KVT}")
                            a(f"ds_read_b128 {vr(VB[(t+1)%2]+4,4)}, v157 offset:{(t+1)*KVT+VU}")
                    e = E + (2 * i) % NE
                    a(f"v_exp_f32 v{e}, v{S[x]+2*i}")
                    a(f"v_exp_f32 v{e+1}, v{S[x]+2*i+1}")
                    j = i - DLY
                    if j >= 0:
                        ej = E + (2 * j) % NE
                        a(f"v_cvt_pk_bf16_f32 v{P[x]+j}, v{ej}, v{ej+1}")
                    else:
                        ej = E + (2 * (j + 8)) % NE
                        a(f"v_cvt_pk_bf16_f32 v{P[y]+j+8}, v{ej}, v{ej+1}")
                    if i == PV1:
                        a(f"v_mfma_f32_32x32x16_bf16 {vr(O[y],16)}, {vr(VB[tv%2],4)}, {vr(P[y],4)}, {vr(O[y],16)}")
                    if i == PV2:
                        a(f"v_mfma_f32_32x32x16_bf16 {vr(O[y],16)}, {vr(VB[tv%2]+4,4)}, {vr(P[y]+4,4)}, {vr(O[y],16)}")
                    if i in slots and extra:
                        extra.pop(0)()
                if t == UN - 1 and x == 1:
                    a(f"v_add_u32 v156, {UN*KVT}, v156")
                    a(f"v_add_u32 v157, {UN*KVT}, v157")
                    a("s_add_u32 s29, s29, 1")
                    a("s_cmp_lg_u32 s29, 8")

    a("s_mov_b32 s29, 0")
    body([dma] * 11)
    body([])
    a("s_waitcnt vmcnt(0)")
    a("s_barrier")
    def rawres():
        a("buffer_load_dwordx2 a[32:33], v159, s[16:19], s52 offen")
        a("buffer_load_dwordx2 a[34:35], v159, s[16:19], s52 offen offset:16")
    pfl = [(lambda e=e: ld(a, e[0], e[1], e[2], 33)) if e else rawres for e in pf]
    def xid():
        a("s_cmp_lg_u32 s3, 0")
        a(f"s_cbranch_scc1 {T}_noxid")
        a("v_mov_b32 v5, s61")
        a("v_mov_b32 v6, 0")
        a("s_mov_b64 exec, 1")
        a(f"buffer_store_dword v5, v6, s[8:11], s40 offen offset:{64+32*L} {SC}")
        a("s_mov_b64 exec, -1")
        a(f"{T}_noxid:")
    xid()
    body(pfl[0:10], (2, 6))
    body(pfl[10:20], (2, 6))
    tail = []
    if WARM:
        a("s_lshr_b32 s56, s4, 3")
        a("s_and_b32 s56, s56, 3")
        a("s_and_b32 s57, s56, 1")
        a("s_lshl_b32 s58, s5, 1")
        a("s_add_u32 s57, s57, s58")
        a("s_mul_i32 s57, s57, 112")
        a("s_mul_i32 s58, s3, 14")
        a("s_add_u32 s57, s57, s58")
        a("s_lshr_b32 s58, s56, 1")
        a("s_mul_i32 s58, s58, 7")
        a("s_add_u32 s57, s57, s58")
        a("s_lshl_b32 s57, s57, 10")
        a(f"s_add_u32 s57, s57, {W2F:#x}")
        a("s_lshl_b32 s58, s56, 12")
        a("s_add_u32 s58, s58, s50")
        a(f"s_add_u32 s58, s58, {15*1024}")
        a("s_and_b32 s59, s56, 1")
        a("s_lshl_b32 s59, s59, 15")
        a("s_lshr_b32 s60, s56, 1")
        a("s_lshl_b32 s60, s60, 11")
        a("s_add_u32 s59, s59, s60")
        a("s_add_u32 s59, s59, s48")
        a(f"s_add_u32 s59, s59, {(WQF - WOF) & 0xffffffff:#x}")
        for k, (n, sr) in enumerate(((56, 57), (40, 58), (16, 59))):
            if last and sr == 59:
                continue
            a(f"v_min_u32 v{152+k}, {n-1}, v1")
            a(f"v_lshlrev_b32 v{152+k}, 7, v{152+k}")
            tail.append(lambda k=k, sr=sr: a(f"buffer_load_dword v155, v{152+k}, s[8:11], s{sr} offen"))
    a("v_and_b32 v5, 7, v1")
    a("v_lshlrev_b32 v5, 2, v5")
    a("s_lshl_b32 s62, s4, 8")
    a(f"s_add_u32 s62, s62, {FLAGS:#x}")
    tail.append(lambda: a(f"buffer_load_dword v159, v5, s[8:11], s62 offen offset:{64+32*L} {SC}"))
    if TOUCH and (L == 0 or not REUSE):
        a(f"s_add_u32 s20, s22, {OF:#x}")
        a(f"s_add_u32 s21, s42, {X1F:#x}")
        a("s_lshl_b32 s23, s4, 1")
        a("s_mul_i32 s23, s23, 112")
        a("s_lshl_b32 s24, s51, 1")
        a("s_add_u32 s23, s23, s24")
        a("s_lshl_b32 s23, s23, 10")
        a(f"s_add_u32 s23, s23, {HF:#x}")
        a("s_add_u32 s24, s23, 1024")
        a(f"s_add_u32 s25, s23, {112*1024}")
        a("s_add_u32 s26, s25, 1024")
        a(f"s_add_u32 s27, s42, {XFL[1]:#x}")
        a(f"s_add_u32 s28, s42, {QFL[1]:#x}")
        a("v_mov_b32 v6, s20")
        for k, sr in enumerate((21, 23, 24, 25, 26, 27, 28)):
            a(f"v_mov_b32 v7, s{sr}")
            a(f"v_cmp_le_u32 vcc, {8*(k+1)}, v1")
            a.nop(2)
            a("v_cndmask_b32 v6, v6, v7, vcc")
        a("v_and_b32 v7, 7, v1")
        a("v_lshl_add_u32 v6, v7, 7, v6")
        tail.append(lambda: a("buffer_load_dword v7, v6, s[8:11], 0 offen"))
    if TOUCH2:
        if last:
            a("v_lshlrev_b32 v6, 10, v3")
            a("s_lshl_b32 s20, s45, 15")
            a("s_lshl_b32 s21, s46, 6")
            a("s_add_u32 s20, s20, s21")
            tail.append(lambda: a("buffer_load_dword v7, v6, s[16:19], s20 offen"))
        else:
            a(f"s_mul_i32 s31, s45, {KVT}")
            a(f"s_add_u32 s31, s31, {KVFL[1]:#x}")
            tail.append(lambda: a("buffer_load_dword v155, v154, s[8:11], s31 offen"))
    body(pfl[20:28] + tail, (1, 5))
    a(f"{T}_loop:")
    a(f"s_cmp_lg_u32 s29, {PRIO_IT}")
    a(f"s_cbranch_scc1 {T}_prio2")
    a("s_setprio 0")
    a(f"{T}_prio2:")
    body([])
    a(f"s_cbranch_scc1 {T}_loop")
    a("s_waitcnt vmcnt(0)")
    for j in range(8 - DLY, 8):
        ej = E + (2 * j) % NE
        a(f"v_cvt_pk_bf16_f32 v{P[1]+j}, v{ej}, v{ej+1}")
    a.nop(2)
    a(f"v_mfma_f32_32x32x16_bf16 {vr(O[1],16)}, {vr(VB[1],4)}, {vr(P[1],4)}, {vr(O[1],16)}")
    a(f"v_mfma_f32_32x32x16_bf16 {vr(O[1],16)}, {vr(VB[1]+4,4)}, {vr(P[1]+4,4)}, {vr(O[1],16)}")
    a("s_mul_i32 s25, s3, 2304")
    a(f"s_add_u32 s25, s25, {SCR}")
    a("v_add_u32 v5, s25, v2")
    a("v_lshlrev_b32 v6, 2, v1")
    a("v_add_u32 v6, s25, v6")
    a("s_xor_b32 s25, s3, 4")
    a("s_mul_i32 s25, s25, 2304")
    a(f"s_add_u32 s25, s25, {SCR}")
    a("v_add_u32 v7, s25, v2")
    a("s_waitcnt vmcnt(0)")
    a("s_mov_b32 s37, 0")
    a("v_and_b32 v153, 7, v1")
    a("v_lshlrev_b32 v153, 2, v153")
    a(f"{T}_xchk:")
    a("v_cmp_eq_u32 vcc, 0, v159")
    a("s_cmp_eq_u64 vcc, 0")
    a(f"s_cbranch_scc1 {T}_xok")
    a("s_add_u32 s37, s37, 1")
    a(f"s_cmp_gt_u32 s37, {SPIN_MAX}")
    a(f"s_cbranch_scc1 {T}_xok")
    a("s_sleep 1")
    a(f"buffer_load_dword v159, v153, s[8:11], s62 offen offset:{64+32*L} {SC}")
    a("s_waitcnt vmcnt(0)")
    a(f"s_branch {T}_xchk")
    a(f"{T}_xok:")
    a("v_cmp_ne_u32 vcc, s61, v159")
    a("s_cmp_eq_u64 vcc, 0")
    a(f"s_cselect_b32 s61, {FAST}, 0")
    a("v_lshlrev_b32 v154, 2, v1")
    a("v_add_u32 v154, s25, v154")
    a("s_waitcnt lgkmcnt(0)")
    a.nop(8)
    a(f"ds_write_b128 v5, {vr(O[1],4)}")
    a(f"ds_write_b128 v5, {vr(O[1]+4,4)} offset:1024")
    a(f"ds_write_b32 v6, v{O[1]+8} offset:2048")
    a("s_waitcnt lgkmcnt(0)")
    a("s_barrier")
    a(f"ds_read_b128 {vr(S[0],4)}, v7")
    a(f"ds_read_b128 {vr(S[0]+4,4)}, v7 offset:1024")
    a(f"ds_read_b32 v{S[0]+8}, v154 offset:2048")
    a(f"v_mov_b32 v5, {KMX}")
    a(f"ds_read_b128 {vr(S[1],4)}, v5")
    a(f"ds_read_b128 {vr(S[1]+4,4)}, v5 offset:16")
    a("s_waitcnt lgkmcnt(0)")
    for r in range(9):
        a(f"v_add_f32 v{O[0]+r}, v{O[0]+r}, v{S[0]+r}")
    a(f"v_max3_f32 v5, v{S[1]}, v{S[1]+1}, v{S[1]+2}")
    a(f"v_max3_f32 v5, v5, v{S[1]+3}, v{S[1]+4}")
    a(f"v_max3_f32 v5, v5, v{S[1]+5}, v{S[1]+6}")
    a(f"v_max_f32 v5, v5, v{S[1]+7}")
    a("v_mul_f32 v5, s63, v5")
    a(f"v_mov_b32 v6, {f2u(BMAX*BMAX):#x}")
    a("v_cmp_nle_f32 vcc, v5, v6")
    a("s_cmp_eq_u64 vcc, 0")
    a(f"s_cbranch_scc1 {T}_afin")
    a("v_mov_b32 v156, v2")
    a("v_mov_b32 v6, 0xff800000")
    a("s_mov_b32 s29, 64")
    a(f"{T}_fb:")
    a(f"ds_read_b128 {vr(KB[0],4)}, v156")
    a(f"v_add_u32 v156, {KVT}, v156")
    a("s_waitcnt lgkmcnt(0)")
    a(f"v_mfma_f32_32x32x16_bf16 {vr(S[0],16)}, {vr(KB[0],4)}, {vr(Q[0],4)}, 0")
    a.nop(16)
    for i in range(8):
        a(f"v_max3_f32 v6, v6, v{S[0]+2*i}, v{S[0]+2*i+1}")
    a("s_sub_u32 s29, s29, 1")
    a("s_cmp_lg_u32 s29, 0")
    a(f"s_cbranch_scc1 {T}_fb")
    half_sum(a, 6, 7, op="v_max_f32")
    a("v_sub_f32 v6, 0, v6")
    for r in range(16):
        a(f"v_mov_b32 v{C+r}, v6")
        a(f"v_mov_b32 v{O[0]+r}, 0")
    a("v_mov_b32 v156, v2")
    a("v_mov_b32 v157, v158")
    a("s_mov_b32 s29, 64")
    a(f"{T}_fb2:")
    a(f"ds_read_b128 {vr(KB[0],4)}, v156")
    a(f"ds_read_b128 {vr(VB[0],4)}, v157")
    a(f"ds_read_b128 {vr(VB[0]+4,4)}, v157 offset:{VU}")
    a(f"v_add_u32 v156, {KVT}, v156")
    a(f"v_add_u32 v157, {KVT}, v157")
    a("s_waitcnt lgkmcnt(0)")
    a(f"v_mfma_f32_32x32x16_bf16 {vr(S[0],16)}, {vr(KB[0],4)}, {vr(Q[0],4)}, {vr(C,16)}")
    a.nop(16)
    for i in range(16):
        a(f"v_exp_f32 v{S[0]+i}, v{S[0]+i}")
    a.nop(1)
    for i in range(8):
        a(f"v_cvt_pk_bf16_f32 v{P[0]+i}, v{S[0]+2*i}, v{S[0]+2*i+1}")
    a.nop(2)
    a(f"v_mfma_f32_32x32x16_bf16 {vr(O[0],16)}, {vr(VB[0],4)}, {vr(P[0],4)}, {vr(O[0],16)}")
    a(f"v_mfma_f32_32x32x16_bf16 {vr(O[0],16)}, {vr(VB[0]+4,4)}, {vr(P[0]+4,4)}, {vr(O[0],16)}")
    a.nop(16)
    a("s_sub_u32 s29, s29, 1")
    a("s_cmp_lg_u32 s29, 0")
    a(f"s_cbranch_scc1 {T}_fb2")
    a(f"{T}_afin:")
    a(f"v_rcp_f32 v6, v{O[0]+8}")
    a.nop(1)
    for r in range(8):
        a(f"v_mul_f32 v{O[0]+r}, v{O[0]+r}, v6")
    for q in range(4):
        a(f"v_cvt_pk_bf16_f32 v{S[0]+q}, v{O[0]+2*q}, v{O[0]+2*q+1}")
    a(f"s_add_u32 s23, s22, {OF:#x}")
    hstore(a, [f"buffer_store_dwordx4 {vr(S[0],4)}, v2, s[8:11], s23 offen"])
    a.stamp(3)
    publish(a, EP + 1, f"{T}_p1")
    a("s_lshl_b32 s20, s4, 6")
    a("s_lshl_b32 s21, s3, 2")
    a("s_add_u32 s20, s20, s21")
    a("s_lshl_b32 s53, s20, 10")
    a(f"s_add_u32 s20, s53, {OF:#x}")
    a("s_add_u32 s21, s20, 32768")
    for i in range(2):
        ld(a, vr(8 + 4 * i, 4), 50, 27 + i, 33)
    for i in range(3):
        ld(a, vr(144 + 4 * i, 4), 50, 29 + i, 33)
    wait_flag(a, EP + 1, f"{T}_w1")
    a.stamp(4)
    for i in range(4):
        ld(a, vr(32 + 8 * i, 4), 20, i, 33, SCL)
        ld(a, vr(36 + 8 * i, 4), 21, i, 33, SCL)
    ACC = 64
    for i in range(4):
        a(f"s_waitcnt vmcnt({2*(3-i)})")
        for c in range(2):
            for r in range(2):
                t = 2 * c + r
                cin = "0" if i == 0 else vr(ACC + 16 * t, 16)
                a(f"v_mfma_f32_32x32x16_bf16 {vr(ACC+16*t,16)}, {ar(8*i+4*c,4)}, {vr(32+8*i+4*r,4)}, {cin}")
    for i in range(8):
        ld(a, ar(4 * i, 4), 50, 15 + i, 33)
    reduce8(a, ACC, 128)
    for q in range(4):
        a(f"v_accvgpr_read_b32 v{136+q}, a{32+q}")
    for q in range(4):
        a(f"v_lshlrev_b32 v{140}, 16, v{136+q}")
        a(f"v_and_b32 v{141}, 0xffff0000, v{136+q}")
        a(f"v_add_f32 v{128+2*q}, v{128+2*q}, v140")
        a(f"v_add_f32 v{129+2*q}, v{129+2*q}, v141")
    for q in range(4):
        a(f"v_cvt_pk_bf16_f32 v{136+q}, v{128+2*q}, v{129+2*q}")
    a(f"s_add_u32 s23, s42, {X1F:#x}")
    hstore(a, ["buffer_store_dwordx4 v[136:139], v2, s[8:11], s23 offen"])
    for q in range(4):
        a(f"v_accvgpr_write_b32 a{32+q}, v{136+q}")
    a.stamp(5)
    publish(a, EP + 2, f"{T}_p2")
    a(f"s_add_u32 s20, s53, {X1F:#x}")
    a("s_add_u32 s21, s20, 32768")
    wait_flag(a, EP + 2, f"{T}_w2")
    a.stamp(6)
    for i in range(4):
        ld(a, vr(32 + 4 * i, 4), 20, i, 33, SCL)
    for i in range(4):
        ld(a, vr(48 + 4 * i, 4), 21, i, 33, SCL)
    a("v_lshlrev_b32 v7, 4, v4")
    a("s_lshl_b32 s27, s51, 7")
    a(f"s_add_u32 s27, s27, {CS1:#x}")
    for q in range(4):
        a(f"buffer_load_dwordx4 {vr(88+4*q,4)}, v7, s[8:11], s27 offen offset:{32*q}")
    STAT = 65536
    a("s_lshl_b32 s21, s3, 12")
    a("v_add_u32 v5, s21, v2")
    a("s_mov_b32 s28, 0x3f803f80")
    for r in range(8):
        a(f"v_mov_b32 v{80+r}, 0")
    for rr in range(2):
        a(f"s_waitcnt vmcnt({4+4*(1-rr)})")
        for i in range(4):
            a(f"ds_write_b128 v5, {vr(32+16*rr+4*i,4)} offset:{32768*rr+1024*i}")
        for i in range(16):
            x = 32 + 16 * rr + i
            k = 4 * (i % 2)
            a(f"v_dot2_f32_bf16 v{80+k+2*rr}, v{x}, s28, v{80+k+2*rr}")
            a(f"v_dot2_f32_bf16 v{81+k+2*rr}, v{x}, v{x}, v{81+k+2*rr}")
    a("s_lshl_b32 s21, s3, 10")
    a(f"s_add_u32 s21, s21, {STAT}")
    a("v_add_u32 v5, s21, v2")
    a.nop(2)
    for r in range(4):
        a(f"v_add_f32 v{80+r}, v{80+r}, v{84+r}")
    a("ds_write_b128 v5, v[80:83]")
    a("s_waitcnt lgkmcnt(0)")
    a("s_barrier")
    a.stamp(7)
    a("s_lshl_b32 s32, s5, 1")
    a("s_mul_i32 s54, s32, 112")
    a("s_mul_i32 s33, s3, 14")
    a("s_add_u32 s54, s54, s33")
    a("s_lshl_b32 s54, s54, 10")
    a(f"s_add_u32 s54, s54, {W2F:#x}")
    a(f"s_add_u32 s55, s54, {112*1024}")
    a("s_cmp_eq_u32 s3, 7")
    a(f"s_cbranch_scc1 {T}_cskip")
    CACC = 104

    def w1reg(i):
        if i < 15:
            return ar(36 + 4 * i, 4)
        if i < 23:
            return ar(4 * (i - 15), 4)
        if i < 27:
            return vr(16 + 4 * (i - 23), 4)
        if i < 29:
            return vr(8 + 4 * (i - 27), 4)
        return vr(144 + 4 * (i - 29), 4)

    CR = 6

    def rd(i):
        b = 32 + 8 * (i % CR)
        a(f"ds_read_b128 {vr(b,4)}, v2 offset:{i*1024}")
        a(f"ds_read_b128 {vr(b+4,4)}, v2 offset:{32768+i*1024}")
    def w2reg(j):
        if j < 23:
            return w1reg(j)
        return vr(136 + 4 * (j - 23), 4)
    for i in range(CR - 1):
        rd(i)
    for j in (23, 24):
        ld(a, w2reg(j), 54 + (j & 1), j >> 1, 33)
    for i in range(32):
        if i + CR - 1 < 32:
            rd(i + CR - 1)
        pend = min(32, i + CR) - i - 1
        a(f"s_waitcnt lgkmcnt({2*pend})")
        b = 32 + 8 * (i % CR)
        for r in range(2):
            cin = "0" if i == 0 else vr(CACC + 16 * r, 16)
            a(f"v_mfma_f32_32x32x16_bf16 {vr(CACC+16*r,16)}, {w1reg(i)}, {vr(b+4*r,4)}, {cin}")
        if 1 <= i <= 23:
            j = i - 1
            ld(a, w2reg(j), 54 + (j & 1), j >> 1, 33)
    a(f"s_branch {T}_cepi")
    a(f"{T}_cskip:")
    for j in range(25):
        ld(a, w2reg(j), 54 + (j & 1), j >> 1, 33)
    a(f"{T}_cepi:")
    for j in range(25, 28):
        ld(a, w2reg(j), 54 + (j & 1), j >> 1, 33)
    a.stamp(8)
    a("s_cmp_eq_u32 s3, 7")
    a(f"s_cbranch_scc1 {T}_cdone")
    a(f"v_add_u32 v5, {STAT}, v2")
    for w in range(8):
        a(f"ds_read_b128 {vr(32+4*w,4)}, v5 offset:{1024*w}")
    a("s_waitcnt vmcnt(28) lgkmcnt(0)")
    for w in range(1, 8):
        for r in range(4):
            a(f"v_add_f32 v{32+r}, v{32+r}, v{32+4*w+r}")
    for r in range(4):
        half_sum(a, 32 + r, 36)
    for r in range(2):
        m, x2 = 32 + 2 * r, 33 + 2 * r
        a(f"v_mul_f32 v{m}, {f2u(1.0/512):#x}, v{m}")
        a(f"v_mul_f32 v{x2}, {f2u(1.0/512):#x}, v{x2}")
        a(f"v_fma_f32 v{x2}, -v{m}, v{m}, v{x2}")
        a(f"v_max_f32 v{x2}, 0, v{x2}")
        a(f"v_add_f32 v{x2}, {f2u(EPS):#x}, v{x2}")
        a(f"v_rsq_f32 v{8+2*r}, v{x2}")
        a.nop(1)
        a(f"v_mul_f32 v{9+2*r}, v{m}, v{8+2*r}")
        a(f"v_sub_f32 v{9+2*r}, 0, v{9+2*r}")
    for rr in range(2):
        for r in range(16):
            a(f"v_mul_f32 v{40+r}, v{9+2*rr}, v{88+r}")
            a(f"v_fma_f32 v{CACC+16*rr+r}, v{CACC+16*rr+r}, v{8+2*rr}, v{40+r}")
        for q in range(8):
            a(f"v_cvt_pk_bf16_f32 v{16+8*rr+q}, v{CACC+16*rr+2*q}, v{CACC+16*rr+2*q+1}")
        for q in range(8):
            a(f"v_pk_max_i16 v{16+8*rr+q}, v{16+8*rr+q}, 0")
    a("s_lshl_b32 s26, s4, 1")
    a("s_mul_i32 s26, s26, 112")
    a("s_lshl_b32 s27, s51, 1")
    a("s_add_u32 s26, s26, s27")
    a("s_lshl_b32 s26, s26, 10")
    a(f"s_add_u32 s26, s26, {HF:#x}")
    a(f"s_add_u32 s27, s26, {112*1024}")
    hstore(a, ["buffer_store_dwordx4 v[16:19], v2, s[8:11], s26 offen",
               "buffer_store_dwordx4 v[20:23], v2, s[8:11], s26 offen offset:1024",
               "buffer_store_dwordx4 v[24:27], v2, s[8:11], s27 offen",
               "buffer_store_dwordx4 v[28:31], v2, s[8:11], s27 offen offset:1024"])
    a(f"{T}_cdone:")
    a.stamp(9)
    publish(a, EP + 3, f"{T}_p3")
    a("s_lshl_b32 s20, s4, 1")
    a("s_mul_i32 s20, s20, 112")
    a("s_mul_i32 s21, s3, 14")
    a("s_add_u32 s20, s20, s21")
    a("s_lshl_b32 s20, s20, 10")
    a(f"s_add_u32 s20, s20, {HF:#x}")
    a(f"s_add_u32 s21, s20, {112*1024}")
    wait_flag(a, EP + 3, f"{T}_w3")
    a.stamp(10)
    RING = 8
    DACC = 72

    def hld(i):
        b = 8 + 8 * (i % RING)
        ld(a, vr(b, 4), 20, i, 33, SCL)
        ld(a, vr(b + 4, 4), 21, i, 33, SCL)
    for i in range(RING):
        hld(i)
    def qreg(j):
        return w1reg(j)
    qpf = []
    if not last:
        a(f"s_add_u32 s48, s48, {(WQF - WOF) & 0xffffffff:#x}")
        a("s_add_u32 s49, s48, 32768")
        a("s_lshl_b32 s56, s3, 12")
        a(f"s_add_u32 s56, s56, {WKVF:#x}")
        a("v_lshlrev_b32 v156, 4, v4")
        a("v_lshlrev_b32 v157, 2, v3")
        a("s_lshl_b32 s57, s46, 7")
        a("s_lshl_b32 s33, s47, 6")
        a("s_add_u32 s57, s57, s33")
        a(f"s_add_u32 s57, s57, {CSQ:#x}")
        a(f"s_mov_b32 s58, {CSKV:#x}")
        for i in range(4):
            qpf.append(lambda i=i: ld(a, qreg(2 * i), 48, i, 33))
            qpf.append(lambda i=i: ld(a, qreg(2 * i + 1), 49, i, 33))
        for i in range(4):
            qpf.append(lambda i=i: ld(a, qreg(8 + i), 56, i, 33))
        for q in range(2):
            qpf.append(lambda q=q: a(f"buffer_load_dwordx4 {qreg(12+q)}, v156, s[8:11], s57 offen offset:{32*q}"))
        for q in range(2):
            qpf.append(lambda q=q: a(f"buffer_load_dwordx4 {qreg(14+q)}, v156, s[8:11], s58 offen offset:{32*q}"))
        qpf.append(lambda: a("buffer_load_dword a4, v157, s[8:11], s58 offen"))

    def dloop(split, qpf):
        order = [('h', i) for i in range(RING)]
        for i in range(14):
            pos = order.index(('h', i))
            after = sum(2 if k == 'h' else 1 for (k, _) in order[pos + 1:])
            a(f"s_waitcnt vmcnt({after})")
            b = 8 + 8 * (i % RING)
            for c in range(2):
                for r in range(2):
                    t = 2 * c + r
                    cin = "0" if i == 0 else vr(DACC + 16 * t, 16)
                    a(f"v_mfma_f32_32x32x16_bf16 {vr(DACC+16*t,16)}, {w2reg(2*i+c)}, {vr(b+4*r,4)}, {cin}")
            if not split and i + RING < 14:
                hld(i + RING)
                order.append(('h', i + RING))
            elif split and i == RING - 1:
                poll3(0x70, f"{T}_w3b")
                for j in range(RING, 14):
                    hld(j)
                    order.append(('h', j))
            if i + RING >= 14 and (not split or i >= RING - 1):
                for _ in range(3):
                    k = sum(1 for (kk, _) in order if kk == 'q')
                    if qpf and k < 2 * i:
                        qpf.pop(0)()
                        order.append(('q', k))
        assert not qpf
    dloop(False, list(qpf))
    qpf = []
    a.stamp(11)
    assert not qpf
    reduce8(a, DACC, 8)
    for q in range(4):
        a(f"v_accvgpr_read_b32 v{16+q}, a{32+q}")
    for q in range(4):
        a(f"v_lshlrev_b32 v20, 16, v{16+q}")
        a(f"v_and_b32 v21, 0xffff0000, v{16+q}")
        a(f"v_add_f32 v{8+2*q}, v{8+2*q}, v20")
        a(f"v_add_f32 v{9+2*q}, v{9+2*q}, v21")
    for q in range(4):
        a(f"v_cvt_pk_bf16_f32 v{16+q}, v{8+2*q}, v{9+2*q}")
    if last:
        a.nop(2)
        a("v_permlane32_swap_b32 v16, v18")
        a("v_permlane32_swap_b32 v17, v19")
        a("v_lshlrev_b32 v5, 10, v3")
        a("v_lshl_add_u32 v5, v4, 4, v5")
        a("s_lshl_b32 s31, s45, 15")
        a("s_lshl_b32 s32, s46, 6")
        a("s_add_u32 s31, s31, s32")
        a("s_lshl_b32 s32, s47, 5")
        a("s_add_u32 s31, s31, s32")
        a("buffer_store_dwordx4 v[16:19], v5, s[16:19], s31 offen")
        a.stamp(12)
    else:
        XN, QN, KVN, KNN = XFL[1], QFL[1], KVFL[1], KNL[1]
        a(f"s_add_u32 s23, s42, {XN:#x}")
        hstore(a, ["buffer_store_dwordx4 v[16:19], v2, s[8:11], s23 offen"])
        a.stamp(12)
        publish(a, EP + 4, f"{T}_p4")
        a(f"s_add_u32 s20, s53, {XN:#x}")
        a("s_add_u32 s21, s20, 32768")
        a("s_mov_b32 s28, 0x3f803f80")
        wait_flag(a, EP + 4, f"{T}_w4")
        a.stamp(13)
        for i in range(4):
            ld(a, vr(8 + 8 * i, 4), 20, i, 33, SCL)
            ld(a, vr(12 + 8 * i, 4), 21, i, 33, SCL)
        for r in range(8):
            a(f"v_mov_b32 v{40+r}, 0")
        ACC = 64
        for i in range(4):
            a(f"s_waitcnt vmcnt({2*(3-i)})")
            for c in range(2):
                for r in range(2):
                    t = 2 * c + r
                    cin = "0" if i == 0 else vr(ACC + 16 * t, 16)
                    a(f"v_mfma_f32_32x32x16_bf16 {vr(ACC+16*t,16)}, {qreg(2*i+c)}, {vr(8+8*i+4*r,4)}, {cin}")
                    for q in range(4):
                        x = 8 + 8 * i + 4 * r + q
                        k = 40 + 4 * (q % 2) + 2 * r + c
                        if c == 0:
                            a(f"v_dot2_f32_bf16 v{k}, v{x}, s28, v{k}")
                        else:
                            a(f"v_dot2_f32_bf16 v{k}, v{x}, v{x}, v{k}")
        a("s_lshl_b32 s32, s3, 11")
        a(f"s_add_u32 s32, s32, {KVS}")
        a("v_add_u32 v7, s32, v2")
        a("s_cmp_ge_u32 s5, 6")
        a(f"s_cbranch_scc1 {T}_kvdone")
        for task in range(6):
            if task < 5:
                a(f"s_cmp_lg_u32 s5, {task}")
                a(f"s_cbranch_scc1 {T}_kvt{task+1}")
            kind = 'K' if task < 2 else 'V'
            r = task if task < 2 else (task - 2) >> 1
            u = 0 if task < 2 else (task & 1)
            for i in range(4):
                cin = "0" if i == 0 else vr(128, 16)
                if kind == 'K':
                    a(f"v_mfma_f32_32x32x16_bf16 {vr(128,16)}, {qreg(8+i)}, {vr(8+8*i+4*r,4)}, {cin}")
                else:
                    a(f"v_mfma_f32_32x32x16_bf16 {vr(128,16)}, {vr(8+8*i+4*r,4)}, {qreg(8+i)}, {cin}")
            a.nop(16)
            a(f"ds_write_b128 v7, {vr(128+8*u,4)}")
            a(f"ds_write_b128 v7, {vr(132+8*u,4)} offset:1024")
            if task < 5:
                a(f"s_branch {T}_kvdone")
                a(f"{T}_kvt{task+1}:")
        a(f"{T}_kvdone:")
        a("s_lshl_b32 s32, s3, 10")
        a(f"s_add_u32 s32, s32, {STATQ}")
        a("v_add_u32 v7, s32, v2")
        for r in range(4):
            a(f"v_add_f32 v{40+r}, v{40+r}, v{44+r}")
        a("ds_write_b128 v7, v[40:43]")
        reduce8(a, ACC, 8)
        a.stamp(14)
        qkv_tail(a, T, end, QN, KVN, KNN,
                 lambda: [a(f"v_accvgpr_read_b32 v{16+r}, a{84+r}") for r in range(8)],
                 lambda: [a(f"v_accvgpr_read_b32 v{16+r}, a{92+r if r < 4 else r-4}") for r in range(8)],
                 lambda: a("v_accvgpr_read_b32 v47, a4"))
    a(f"{end}:")
    a.stamp_flush(16)
    a(f"{end}x:")
    a("s_endpgm")
    a.desc(name, 160, agpr=96)
    return SCR + 8 * 2304 + 64


def tr_addr(a, dst, RS, t1, t2):
    a(f"v_lshrrev_b32 v{t1}, 5, v1")
    a(f"v_lshlrev_b32 v{t1}, 2, v{t1}")
    a(f"v_bfe_u32 v{t2}, v1, 2, 2")
    a(f"v_add_u32 v{t1}, v{t1}, v{t2}")
    a(f"v_mul_u32_u24 v{dst}, {RS}, v{t1}")
    a(f"v_bfe_u32 v{t1}, v1, 4, 1")
    a(f"v_lshlrev_b32 v{t1}, 5, v{t1}")
    a(f"v_and_b32 v{t2}, 3, v1")
    a(f"v_lshlrev_b32 v{t2}, 3, v{t2}")
    a(f"v_add3_u32 v{dst}, v{dst}, v{t1}, v{t2}")


def gen_K0(a):
    name = "k0_kernel"
    T = "K0"
    a.begin(name)
    end = f"{name}_end"
    a("s_cmp_ge_u32 s2, 256")
    a(f"s_cbranch_scc1 {end}x")
    a.stamp(0)
    a("s_load_dwordx16 s[16:31], s[0:1], 0")
    a("s_load_dwordx2 s[6:7], s[0:1], 80")
    a("v_and_b32 v1, 63, v0")
    a("v_lshrrev_b32 v2, 6, v0")
    a("v_and_b32 v3, 31, v1")
    a("v_readfirstlane_b32 s60, v2")
    a("v_lshrrev_b32 v4, 5, v1")
    a("v_lshlrev_b32 v2, 4, v1")
    a("s_and_b32 s4, s2, 31")
    a("s_lshr_b32 s5, s2, 5")
    a("s_and_b32 s3, s60, 7")
    a("s_waitcnt lgkmcnt(0)")
    a.srd(8, 6, G.WS_USED)
    a.srd(52, 20, 512 * 16 * 2)
    a.srd(56, 22, 512 * 16 * 2)
    a("s_mov_b32 s61, 0x3f803f80")
    a("s_cmp_ge_u32 s60, 8")
    a("s_cbranch_scc1 K0_prep")
    if os.environ.get('K0X', '') == 'qprio':
        a("s_setprio 3")
    a.stamp(1)
    a.srd(12, 16, 2048 * 512 * 2)
    a.srd(48, 18, 512 * 512 * 2)
    piece_sgprs(a)
    a("v_lshrrev_b32 v6, 3, v1")
    a("v_lshlrev_b32 v6, 10, v6")
    a("v_and_b32 v7, 7, v1")
    a("v_lshl_add_u32 v6, v7, 4, v6")
    a("s_lshl_b32 s20, s4, 16")
    a("s_lshl_b32 s22, s3, 7")
    a("s_add_u32 s20, s20, s22")
    for k in range(8):
        a(f"s_add_u32 s21, s20, {8192*k}")
        a(f"buffer_load_dwordx4 {vr(64+4*k,4)}, v6, s[12:15], s21 offen")
    a("v_lshrrev_b32 v7, 2, v1")
    a("v_lshlrev_b32 v7, 5, v7")
    a("v_and_b32 v5, 1, v1")
    a("v_lshl_add_u32 v7, v5, 4, v7")
    a("v_and_b32 v5, 2, v1")
    a("v_cmp_eq_u32 vcc, 0, v5")
    a("s_lshl_b32 s20, s3, 11")
    a("s_and_saveexec_b64 s[38:39], vcc")
    for i in range(4):
        a(f"buffer_load_dwordx4 {vr(96+4*i,4)}, v7, s[52:55], s20 offen offset:{512*i}")
    a("s_andn2_b64 exec, s[38:39], exec")
    for i in range(4):
        a(f"buffer_load_dwordx4 {vr(96+4*i,4)}, v7, s[56:59], s20 offen offset:{512*i}")
    a("s_mov_b64 exec, s[38:39]")
    a("s_lshl_b32 s22, s3, 16")
    a("s_lshl_b32 s23, s5, 7")
    a("s_add_u32 s22, s22, s23")
    a("s_lshl_b32 s23, s3, 13")
    for i in range(8):
        a(f"s_add_u32 m0, s23, {1024*i}")
        a(f"s_add_u32 s24, s22, {8192*i}")
        a("buffer_load_dwordx4 v6, s[48:51], s24 offen lds")
    a.stamp(2)
    if TOUCH2:
        a(f"s_add_u32 s24, s42, {QFL[0]:#x}")
        a(f"s_mul_i32 s25, s45, {KVT}")
        a(f"s_add_u32 s25, s25, {KVFL[0] - 1024:#x}")
        a("v_mov_b32 v5, s24")
        a("v_mov_b32 v6, s25")
        a("v_cmp_le_u32 vcc, 8, v1")
        a("v_min_u32 v7, 25, v1")
        a("v_lshlrev_b32 v7, 7, v7")
        a("v_cndmask_b32 v5, v5, v6, vcc")
        a("v_add_u32 v5, v5, v7")
        a("buffer_load_dword v0, v5, s[8:11], 0 offen")
    tr_addr(a, 56, 128, 5, 6)
    a("v_add_u32 v56, s23, v56")
    tr_addr(a, 57, 64, 5, 6)
    a("s_lshl_b32 s21, s3, 12")
    a("s_add_u32 s21, s21, 65536")
    a("v_add_u32 v57, s21, v57")
    a("v_lshrrev_b32 v5, 3, v1")
    a("v_and_b32 v6, 7, v1")
    a("v_xor_b32 v6, v6, v5")
    a("v_lshlrev_b32 v6, 4, v6")
    a("v_lshl_add_u32 v112, v5, 7, v6")
    a("v_add_u32 v112, s21, v112")
    a("v_and_b32 v5, 7, v3")
    a("v_lshlrev_b32 v5, 4, v5")
    a("v_lshl_add_u32 v5, v3, 7, v5")
    a("v_lshl_add_u32 v5, v4, 3, v5")
    a("v_add_u32 v113, s21, v5")
    a("v_add_u32 v114, s21, v2")
    for c in range(8):
        a(f"v_xor_b32 v{116+c}, {c<<4}, v113")
    for r in range(6):
        a(f"v_mov_b32 v{58+r}, 0")
    a("v_mov_b32 v7, 0")
    for r in range(2):
        a(f"s_waitcnt vmcnt({16+4*(1-r)+TOUCH2})")
        if r == 0:
            a.stamp(3)
        for j in range(4):
            a(f"ds_write_b128 v112, {vr(64+16*r+4*j,4)} offset:{1024*j}")
        for i in range(4):
            b = 8 + 8 * i + 4 * r
            a(f"ds_read_b64 {vr(b,2)}, v{116+2*i}")
            a(f"ds_read_b64 {vr(b+2,2)}, v{117+2*i}")
    a(f"s_waitcnt vmcnt({8+TOUCH2})")
    for i in range(4):
        a(f"ds_write_b128 v114, {vr(96+4*i,4)} offset:{1024*i}")
    for i in range(4):
        a(f"ds_read_b64_tr_b16 {vr(40+4*i,2)}, v57 offset:{16*i*64}")
        a(f"ds_read_b64_tr_b16 {vr(42+4*i,2)}, v57 offset:{(16*i+8)*64}")
    a("s_waitcnt lgkmcnt(0)")
    for r in range(16):
        a(f"v_dot2_f32_bf16 v7, v{40+r}, s61, v7")
    a("s_lshl_b32 s32, s3, 11")
    a(f"s_add_u32 s32, s32, {KVS}")
    a("v_add_u32 v6, s32, v2")
    a("s_cmp_ge_u32 s5, 6")
    a(f"s_cbranch_scc1 {T}_kvdone")
    for task in range(6):
        if task < 5:
            a(f"s_cmp_lg_u32 s5, {task}")
            a(f"s_cbranch_scc1 {T}_kvt{task+1}")
        kind = 'K' if task < 2 else 'V'
        r = task if task < 2 else (task - 2) >> 1
        u = 0 if task < 2 else (task & 1)
        for i in range(4):
            cin = "0" if i == 0 else vr(64, 16)
            if kind == 'K':
                a(f"v_mfma_f32_32x32x16_bf16 {vr(64,16)}, {vr(40+4*i,4)}, {vr(8+8*i+4*r,4)}, {cin}")
            else:
                a(f"v_mfma_f32_32x32x16_bf16 {vr(64,16)}, {vr(8+8*i+4*r,4)}, {vr(40+4*i,4)}, {cin}")
        a.nop(16)
        a(f"ds_write_b128 v6, {vr(64+8*u,4)}")
        a(f"ds_write_b128 v6, {vr(68+8*u,4)} offset:1024")
        if task < 5:
            a(f"s_branch {T}_kvdone")
            a(f"{T}_kvt{task+1}:")
    a(f"{T}_kvdone:")
    half_sum(a, 7, 5)
    a("s_mul_i32 s32, s3, 384")
    a(f"s_add_u32 s32, s32, {CSP}")
    a("v_lshlrev_b32 v6, 2, v3")
    a("v_add_u32 v6, s32, v6")
    a("ds_write_b32 v6, v7 offset:256")
    a(f"s_waitcnt vmcnt({TOUCH2})")
    a.stamp(4)

    def wrd(i):
        b = 40 + 8 * (i % 2)
        for c in range(2):
            a(f"ds_read_b64_tr_b16 {vr(b+4*c,2)}, v56 offset:{16*i*128+64*c}")
            a(f"ds_read_b64_tr_b16 {vr(b+4*c+2,2)}, v56 offset:{(16*i+8)*128+64*c}")
    wrd(0)
    ACC = 64
    for i in range(4):
        if i < 3:
            wrd(i + 1)
        a(f"s_waitcnt lgkmcnt({4 if i < 3 else 0})")
        b = 40 + 8 * (i % 2)
        for c in range(2):
            for r in range(2):
                t = 2 * c + r
                cin = "0" if i == 0 else vr(ACC + 16 * t, 16)
                a(f"v_mfma_f32_32x32x16_bf16 {vr(ACC+16*t,16)}, {vr(b+4*c,4)}, {vr(8+8*i+4*r,4)}, {cin}")
                for q in range(4):
                    x = 8 + 8 * i + 4 * r + q
                    k = 58 + 2 * r + c
                    if c == 0:
                        a(f"v_dot2_f32_bf16 v{k}, v{x}, s61, v{k}")
                    else:
                        a(f"v_dot2_f32_bf16 v{k}, v{x}, v{x}, v{k}")
                if r == 0:
                    for q in range(4):
                        a(f"v_dot2_f32_bf16 v{62+c}, v{b+4*c+q}, s61, v{62+c}")
    a("s_lshl_b32 s32, s3, 10")
    a(f"s_add_u32 s32, s32, {STATQ}")
    a("v_add_u32 v7, s32, v2")
    a.nop(2)
    a("ds_write_b128 v7, v[58:61]")
    half_sum(a, 62, 5)
    half_sum(a, 63, 5)
    a("ds_write_b32 v6, v62")
    a("ds_write_b32 v6, v63 offset:128")
    a.stamp(5)
    reduce8(a, ACC, 8, pre_barrier=True)
    a.stamp(6)

    def cs8(tile_off_expr):
        for s in range(8):
            for q in range(2):
                a(f"ds_read_b128 {vr(64+8*s+4*q,4)}, v46 offset:{s*384+32*q}")
        a("s_waitcnt lgkmcnt(0)")
        for r in range(8):
            a(f"v_add_f32 v{16+r}, v{64+r}, v{72+r}")
        for s in range(2, 8):
            for r in range(8):
                a(f"v_add_f32 v{16+r}, v{16+r}, v{64+8*s+r}")

    def get_csq():
        a("s_lshl_b32 s32, s44, 7")
        a("s_lshl_b32 s33, s47, 6")
        a("s_add_u32 s32, s32, s33")
        a(f"s_add_u32 s32, s32, {CSP}")
        a("v_lshlrev_b32 v46, 4, v4")
        a("v_add_u32 v46, s32, v46")
        cs8(None)

    def get_csk():
        a("v_lshlrev_b32 v46, 4, v4")
        a(f"v_add_u32 v46, {CSP+256}, v46")
        for s in range(6):
            for q in range(2):
                a(f"ds_read_b128 {vr(72+8*s+4*q,4)}, v46 offset:{s*384+32*q}")
        for s in range(6, 8):
            for q in range(2):
                a(f"ds_read_b128 {vr(24+8*(s-6)+4*q,4)}, v46 offset:{s*384+32*q}")
        a("s_waitcnt lgkmcnt(0)")
        for r in range(8):
            a(f"v_add_f32 v{16+r}, v{24+r}, v{32+r}")
        for s in range(6):
            for r in range(8):
                a(f"v_add_f32 v{16+r}, v{16+r}, v{72+8*s+r}")

    def get_csv():
        a("v_lshlrev_b32 v46, 2, v3")
        a(f"v_add_u32 v46, {CSP+256}, v46")
        for s in range(8):
            a(f"ds_read_b32 v{72+s}, v46 offset:{s*384}")
        a("s_waitcnt lgkmcnt(0)")
        a("v_add_f32 v47, v72, v73")
        for s in range(2, 8):
            a(f"v_add_f32 v47, v47, v{72+s}")
    qkv_tail(a, T, end, QFL[0], KVFL[0], KNL[0], get_csq, get_csk, get_csv)
    a(f"s_branch {end}")
    a("K0_prep:")
    if os.environ.get('K0X', '') == 'noprep':
        a(f"s_branch {end}x")
    if os.environ.get('K0X', '') == 'prio':
        a("s_setprio 3")
    a("s_cmp_lt_u32 s2, 154")
    a("s_cbranch_scc1 K0_ptask")
    if CODEPF:
        code_srd(a, 40, "K0")
        a("s_sub_u32 s32, s2, 154")
        a("s_lshr_b32 s32, s32, 3")
        a("s_lshl_b32 s32, s32, 3")
        a("s_add_u32 s32, s32, s3")
        a("s_lshl_b32 s32, s32, 10")
        a("buffer_load_dwordx4 v[16:19], v2, s[40:43], s32 offen")
        a("s_waitcnt vmcnt(0)")
    a(f"s_branch {end}x")
    a("K0_ptask:")
    a("s_cmp_lg_u32 s2, 153")
    a("s_cbranch_scc1 K0_pw")
    a("s_lshl_b32 s32, s3, 11")
    a(f"s_add_u32 s32, s32, {FLAGS:#x}")
    for r in range(4):
        a(f"v_mov_b32 v{16+r}, 0")
    a("buffer_store_dwordx4 v[16:19], v2, s[8:11], s32 offen")
    a("buffer_store_dwordx4 v[16:19], v2, s[8:11], s32 offen offset:1024")
    a(f"s_branch {end}x")
    a("K0_pw:")
    a("s_lshl_b32 s62, s3, 12")
    a("s_add_u32 s62, s62, 98304")
    a("s_mov_b32 s46, 0")
    a("s_mov_b32 s36, 32")
    a("s_cmp_eq_u32 s2, 152")
    a("s_cbranch_scc1 K0_pkv")
    a("s_cmp_ge_u32 s2, 88")
    a("s_cbranch_scc1 K0_pw2")
    a("s_cmp_ge_u32 s2, 32")
    a("s_cbranch_scc1 K0_pw1")
    a("s_cmp_ge_u32 s2, 16")
    a("s_cbranch_scc1 K0_pwo")
    a.srd(40, 18, 512 * 512 * 2)
    a("s_mov_b32 s44, 1024")
    a("s_mov_b32 s45, s2")
    a("s_lshl_b32 s47, s45, 15")
    a(f"s_add_u32 s47, s47, {WQF:#x}")
    a("s_lshl_b32 s49, s45, 7")
    a(f"s_add_u32 s49, s49, {CSQ:#x}")
    a("s_branch K0_pgo")
    a("K0_pwo:")
    a.srd(40, 24, 512 * 512 * 2)
    a("s_mov_b32 s44, 1024")
    a("s_sub_u32 s45, s2, 16")
    a("s_lshl_b32 s47, s45, 15")
    a(f"s_add_u32 s47, s47, {WOF:#x}")
    a("s_mov_b32 s49, 0")
    a("s_branch K0_pgo")
    a("K0_pw1:")
    a.srd(40, 28, 512 * 1792 * 2)
    a("s_mov_b32 s44, 3584")
    a("s_sub_u32 s45, s2, 32")
    a("s_lshl_b32 s47, s45, 15")
    a(f"s_add_u32 s47, s47, {W1F:#x}")
    a("s_lshl_b32 s49, s45, 7")
    a(f"s_add_u32 s49, s49, {CS1:#x}")
    a("s_branch K0_pgo")
    a("K0_pw2:")
    a.srd(40, 30, 512 * 1792 * 2)
    a("s_mov_b32 s44, 1024")
    a("s_sub_u32 s45, s2, 88")
    a("s_and_b32 s46, s45, 3")
    a("s_mul_i32 s46, s46, 28")
    a("s_lshr_b32 s45, s45, 2")
    a("s_mul_i32 s47, s45, 112")
    a("s_add_u32 s47, s47, s46")
    a("s_lshl_b32 s47, s47, 10")
    a(f"s_add_u32 s47, s47, {W2F:#x}")
    a("s_mov_b32 s36, 28")
    a("s_mov_b32 s49, 0")
    a("K0_pgo:")
    a("s_lshl_b32 s50, s3, 2")
    a("s_cmp_ge_u32 s50, s36")
    a(f"s_cbranch_scc1 {end}x")
    a("v_lshrrev_b32 v5, 2, v1")
    a("v_mul_lo_u32 v5, v5, s44")
    a("v_and_b32 v6, 3, v1")
    a("v_lshl_add_u32 v5, v6, 4, v5")
    a("s_add_u32 s51, s46, s50")
    a("s_lshl_b32 s51, s51, 4")
    a("s_mul_i32 s51, s51, s44")
    a("s_lshl_b32 s32, s45, 6")
    a("s_add_u32 s51, s51, s32")
    a("s_lshl_b32 s33, s44, 4")
    for i in range(4):
        a(f"s_add_u32 m0, s62, {1024*i}")
        a("s_nop 0")
        a("buffer_load_dwordx4 v5, s[40:43], s51 offen lds")
        a("s_add_u32 s51, s51, s33")
    a("s_branch K0_ptr")
    a("K0_pkv:")
    a("s_lshl_b32 s50, s3, 2")
    a("v_lshrrev_b32 v7, 2, v1")
    a("v_lshlrev_b32 v7, 5, v7")
    a("v_and_b32 v5, 1, v1")
    a("v_lshl_add_u32 v7, v5, 4, v7")
    a("v_and_b32 v5, 2, v1")
    a("v_cmp_eq_u32 vcc, 0, v5")
    a("s_lshl_b32 s20, s3, 11")
    a("s_and_saveexec_b64 s[38:39], vcc")
    for i in range(4):
        a(f"s_add_u32 m0, s62, {1024*i}")
        a(f"s_add_u32 s22, s20, {512*i}")
        a("buffer_load_dwordx4 v7, s[52:55], s22 offen lds")
    a("s_andn2_b64 exec, s[38:39], exec")
    for i in range(4):
        a(f"s_add_u32 m0, s62, {1024*i}")
        a(f"s_add_u32 s22, s20, {512*i}")
        a("buffer_load_dwordx4 v7, s[56:59], s22 offen lds")
    a("s_mov_b64 exec, s[38:39]")
    a(f"s_mov_b32 s47, {WKVF:#x}")
    a(f"s_mov_b32 s49, {CSKV:#x}")
    a("K0_ptr:")
    a("s_lshl_b32 s32, s50, 10")
    a("s_add_u32 s47, s47, s32")
    if TOUCH2:
        a("v_lshlrev_b32 v9, 7, v3")
        a("buffer_load_dword v10, v9, s[8:11], s47 offen")
    tr_addr(a, 8, 64, 5, 6)
    a("v_add_u32 v8, s62, v8")
    a("v_mov_b32 v7, 0")
    a(f"s_waitcnt vmcnt({TOUCH2})")
    for i in range(4):
        a(f"ds_read_b64_tr_b16 {vr(16+4*i,2)}, v8 offset:{16*i*64}")
        a(f"ds_read_b64_tr_b16 {vr(18+4*i,2)}, v8 offset:{(16*i+8)*64}")
    for i in range(4):
        a(f"s_waitcnt lgkmcnt({2*(3-i)})")
        a(f"buffer_store_dwordx4 {vr(16+4*i,4)}, v2, s[8:11], s47 offen offset:{1024*i}")
        for q in range(4):
            a(f"v_dot2_f32_bf16 v7, v{16+4*i+q}, s61, v7")
    a("s_cmp_eq_u32 s49, 0")
    a(f"s_cbranch_scc1 {end}x")
    a.nop(2)
    half_sum(a, 7, 5)
    a("s_lshl_b32 s32, s3, 7")
    a(f"s_add_u32 s32, s32, {CSP2}")
    a("v_lshlrev_b32 v6, 2, v3")
    a("v_add_u32 v5, s32, v6")
    a("ds_write_b32 v5, v7")
    a("s_waitcnt lgkmcnt(0)")
    a("s_barrier")
    a("s_cmp_lg_u32 s3, 0")
    a(f"s_cbranch_scc1 {end}x")
    a(f"v_add_u32 v5, {CSP2}, v6")
    for s in range(8):
        a(f"ds_read_b32 v{16+s}, v5 offset:{128*s}")
    a("s_waitcnt lgkmcnt(0)")
    for s in range(1, 8):
        a(f"v_add_f32 v16, v16, v{16+s}")
    a("v_cmp_gt_u32 vcc, 32, v1")
    a("s_and_saveexec_b64 s[38:39], vcc")
    a("buffer_store_dword v16, v6, s[8:11], s49 offen")
    a(f"s_branch {end}x")
    a(f"{end}:")
    a.stamp_flush(8)
    a(f"{end}x:")
    a("s_endpgm")
    a.desc(name, 128)
    return CSP2 + 1024


def gen_zero_flags(a):
    pass


def main():
    a = Asm()
    G.XF, G.QF, G.KVF = XFL[0], QFL[0], KVFL[0]
    G.FLAGS_ZERO = FLAGS
    lds_k0 = gen_K0(a)
    lds_f = gen_F(a, 0)
    gen_F(a, 1)
    hdr = ["; generated by gen/gen2.py -- fused MQA + FFN pipeline"]
    L = hdr.append
    L(f"; @launch kernel=k0_kernel grid=(256,1,1) block=(1024,1,1) lds={lds_k0}")
    L(f"; @launch kernel=f1_kernel grid=(256,1,1) block=(512,1,1) lds={lds_f}")
    L(f"; @launch kernel=f2_kernel grid=(256,1,1) block=(512,1,1) lds={lds_f}")
    out = "\n".join(hdr) + "\n"
    out += '.amdgcn_target "amdgcn-amd-amdhsa--gfx950"\n.text\n'
    out += "\n".join(a.L) + "\ncode_end:\n"
    out += '.section .rodata,"a"\n' + "\n".join(a.kernels) + "\n"
    path = sys.argv[1] if len(sys.argv) > 1 else f"cdna_kernels/{NAME}.s"
    open(path, 'w').write(out)
    if PROFILE:
        import json
        json.dump(G.PROF_SLOT, open('prof_slots.json', 'w'))
    print("wrote", path, len(out), "bytes")


if __name__ == "__main__":
    main()
```

```python
import os
import sys
import gen as G
from gen import Asm, vr, ar, f2u, half_sum, wave32_max, prologue, frag_loads
from gen import WQF, WOF, W1F, W2F, WKVF, CSQ, CS1, CSKV, VH, VU, KVT, KVF_BYTES, QS, EPS, NAME, PROFILE

LSTRIDE = 0x2000000
XFL = [0x500000, 0x500000 + LSTRIDE]
QFL = [0x700000, 0x700000 + LSTRIDE]
REUSE = int(os.environ.get('REUSE', '1'))
TOUCH = int(os.environ.get('TOUCH', '1'))
TOUCH2 = int(os.environ.get('TOUCH2', '1'))
_R = 0 if REUSE else LSTRIDE
OFL = [0x900000, 0x900000 + _R]
X1FL = [0xB00000, 0xB00000 + _R]
HFL = [0x1000000, 0x1000000 + _R]
KVFL = [0x1800000, 0x1800000 + LSTRIDE]
KNL = [0x1880000, 0x1880000 + LSTRIDE]
FLAGS = 0x490000
FL3 = FLAGS + 8192
G.WS_USED = 0x4400000
G.PROF = 0x4000000
G.KN = KNL[0]
SC = "sc0 sc1"
SCL = os.environ.get("SCL", "sc1")
SPIN_MAX = 200000
BMAX = float(os.environ.get('BMAX', '64'))

PRIO_IT = int(os.environ.get('PRIO_IT', '7'))
WARM = int(os.environ.get('WARM', '1'))
CODEPF = int(os.environ.get('CODEPF', '0'))
FAST = int(os.environ.get('FAST', '1'))
CZERO = int(os.environ.get('CZERO', '1'))


_uid = [0]
FSF = os.environ.get('FSF', '')


def hstore(a, insts):
    _uid[0] += 1
    u = _uid[0]
    a("s_cmp_lg_u32 s61, 0")
    a(f"s_cbranch_scc1 HS{u}_f")
    for i in insts:
        a(f"{i} {SC}")
    a(f"s_branch HS{u}_e")
    a(f"HS{u}_f:")
    for i in insts:
        a(i + (" " + FSF if 'dwordx4' in i else ""))
    a(f"HS{u}_e:")


def publish(a, epoch, tag):
    a("s_waitcnt vmcnt(0)")
    a("s_barrier")
    a("s_cmp_lg_u32 s3, 0")
    a(f"s_cbranch_scc1 {tag}_np")
    a(f"v_mov_b32 v5, {epoch}")
    a("v_mov_b32 v6, 0")
    a("v_cmp_eq_u32 vcc, 0, v1")
    a("s_and_saveexec_b64 s[38:39], vcc")
    hstore(a, ["buffer_store_dword v5, v6, s[8:11], s40 offen"])
    a("s_mov_b64 exec, s[38:39]")
    a(f"{tag}_np:")


def wait_flag(a, epoch, tag):
    a("v_mov_b32 v6, 0")
    a("s_mov_b32 s37, 0")
    a(f"{tag}_poll:")
    a(f"buffer_load_dword v5, v6, s[8:11], s41 offen {SC}")
    a("s_waitcnt vmcnt(0)")
    a("v_readfirstlane_b32 s36, v5")
    a("s_add_u32 s37, s37, 1")
    a(f"s_cmp_ge_u32 s36, {epoch}")
    a(f"s_cbranch_scc1 {tag}_go")
    a(f"s_cmp_gt_u32 s37, {SPIN_MAX}")
    a(f"s_cbranch_scc1 {tag}_go")
    a("s_sleep 1")
    a(f"s_branch {tag}_poll")
    a(f"{tag}_go:")


def ld(a, dst, sbase, idx, stmp, flags=""):
    hi, lo = idx // 4, idx % 4
    if hi == 0:
        so = f"s{sbase}"
    else:
        a(f"s_add_u32 s{stmp}, s{sbase}, {hi*4096}")
        so = f"s{stmp}"
    a(f"buffer_load_dwordx4 {dst}, v2, s[8:11], {so} offen offset:{lo*1024} {flags}")


def reduce8(a, ACC, DST, lds_base=0, pre_barrier=False):
    a("s_lshl_b32 s32, s3, 11")
    a("v_add_u32 v5, s32, v2")
    a("v_add_u32 v6, 0x10000, v5")
    a("s_lshl_b32 s32, s3, 14")
    a("v_add_u32 v7, s32, v2")
    a.nop(12)
    if pre_barrier:
        a("s_waitcnt lgkmcnt(0)")
        a("s_barrier")
    for p in range(8):
        for q in range(2):
            off = (p % 4) * 16384 + q * 1024
            a(f"ds_write_b128 v{5 if p < 4 else 6}, {vr(ACC+8*p+4*q,4)} offset:{off}")
    a("s_waitcnt lgkmcnt(0)")
    a("s_barrier")
    for s in range(8):
        for q in range(2):
            a(f"ds_read_b128 {vr(ACC+8*s+4*q,4)}, v7 offset:{s*2048+q*1024}")
    for s in range(0, 8, 2):
        a(f"s_waitcnt lgkmcnt({12-2*s})")
        for r in range(8):
            if s == 0:
                a(f"v_add_f32 v{DST+r}, v{ACC+r}, v{ACC+8+r}")
            else:
                a(f"v_add_f32 v{ACC+8*s+r}, v{ACC+8*s+r}, v{ACC+8*s+8+r}")
                a(f"v_add_f32 v{DST+r}, v{DST+r}, v{ACC+8*s+r}")


STATQ = 131072
KVS = STATQ + 8192
STAT2 = KVS + 16384
CSP = STAT2 + 256
CSP2 = CSP + 3072


def qkv_tail(a, T, end, QN, KVN, KNN, get_csq, get_csk, get_csv):
    a("s_lshl_b32 s32, s43, 3")
    a(f"s_add_u32 s32, s32, {STATQ}")
    a("v_add_u32 v7, s32, v2")
    for s in range(8):
        a(f"ds_read_b64 {vr(40+2*s,2)}, v7 offset:{s*1024}")
    a("s_waitcnt lgkmcnt(0)")
    for s in range(1, 8):
        a(f"v_add_f32 v40, v40, v{40+2*s}")
        a(f"v_add_f32 v41, v41, v{41+2*s}")
    half_sum(a, 40, 42)
    half_sum(a, 41, 42)
    a(f"v_mul_f32 v40, {f2u(1.0/512):#x}, v40")
    a(f"v_mul_f32 v41, {f2u(1.0/512):#x}, v41")
    a("v_fma_f32 v41, -v40, v40, v41")
    a("v_max_f32 v41, 0, v41")
    a(f"v_add_f32 v41, {f2u(EPS):#x}, v41")
    a("v_rsq_f32 v41, v41")
    a.nop(1)
    a("v_mul_f32 v42, v40, v41")
    a("v_sub_f32 v42, 0, v42")
    a(f"v_mul_f32 v43, {f2u(QS):#x}, v41")
    a(f"v_mul_f32 v44, {f2u(QS):#x}, v42")
    get_csq()
    for r in range(8):
        a(f"v_mul_f32 v{16+r}, v44, v{16+r}")
        a(f"v_fma_f32 v{8+r}, v{8+r}, v43, v{16+r}")
    for q in range(4):
        a(f"v_cvt_pk_bf16_f32 v{24+q}, v{8+2*q}, v{9+2*q}")
    a(f"s_add_u32 s23, s42, {QN:#x}")
    a("buffer_store_dwordx4 v[24:27], v2, s[8:11], s23 offen")
    a("s_cmp_ge_u32 s5, 6")
    a(f"s_cbranch_scc1 {end}")
    a("s_lshr_b32 s32, s5, 2")
    a("s_cmp_eq_u32 s5, 1")
    a("s_cselect_b32 s32, 1, s32")
    a("s_lshl_b32 s32, s32, 1")
    a("s_cmp_lg_u32 s3, s32")
    a(f"s_cbranch_scc1 {end}")
    a(f"v_add_u32 v7, {KVS}, v2")
    for s in range(8):
        for q in range(2):
            a(f"ds_read_b128 {vr(64+8*s+4*q,4)}, v7 offset:{s*2048+q*1024}")
    a(f"s_mul_i32 s33, s45, {KVT}")
    a(f"s_add_u32 s33, s33, {KVN:#x}")
    a("s_waitcnt lgkmcnt(0)")
    for s in range(1, 8):
        for r in range(8):
            a(f"v_add_f32 v{64+r}, v{64+r}, v{64+8*s+r}")
    a("s_cmp_ge_u32 s5, 2")
    a(f"s_cbranch_scc1 {T}_finV")
    a("v_mov_b32 v45, 0")
    get_csk()
    for r in range(8):
        a(f"v_mul_f32 v{16+r}, v42, v{16+r}")
        a(f"v_fma_f32 v{64+r}, v{64+r}, v41, v{16+r}")
        a(f"v_fma_f32 v45, v{64+r}, v{64+r}, v45")
    for q in range(4):
        a(f"v_cvt_pk_bf16_f32 v{28+q}, v{64+2*q}, v{65+2*q}")
    a("buffer_store_dwordx4 v[28:31], v2, s[8:11], s33 offen")
    half_sum(a, 45, 46)
    a("s_lshl_b32 s32, s45, 7")
    a(f"s_add_u32 s32, s32, {KNN:#x}")
    a("v_lshlrev_b32 v46, 2, v3")
    a("v_cmp_gt_u32 vcc, 32, v1")
    a("s_and_saveexec_b64 s[38:39], vcc")
    a("buffer_store_dword v45, v46, s[8:11], s32 offen")
    a(f"s_branch {end}")
    a(f"{T}_finV:")
    a("v_lshlrev_b32 v7, 2, v3")
    a(f"v_add_u32 v7, {STAT2}, v7")
    a("ds_write_b32 v7, v41")
    a("ds_write_b32 v7, v42 offset:128")
    a("s_and_b32 s32, s5, 1")
    a("s_lshl_b32 s32, s32, 6")
    a(f"s_add_u32 s32, s32, {STAT2}")
    a("v_lshlrev_b32 v7, 4, v4")
    a("v_add_u32 v7, s32, v7")
    get_csv()
    a("s_waitcnt lgkmcnt(0)")
    for q in range(2):
        a(f"ds_read_b128 {vr(16+4*q,4)}, v7 offset:{32*q}")
        a(f"ds_read_b128 {vr(24+4*q,4)}, v7 offset:{128+32*q}")
    a("s_waitcnt lgkmcnt(0)")
    for r in range(8):
        a(f"v_mul_f32 v{24+r}, v47, v{24+r}")
        a(f"v_fma_f32 v{64+r}, v{64+r}, v{16+r}, v{24+r}")
    for q in range(4):
        a(f"v_cvt_pk_bf16_f32 v{32+q}, v{64+2*q}, v{65+2*q}")
    a("v_cmp_eq_u32 s[38:39], 0, v3")
    a("v_mov_b32 v45, 0x3f803f80")
    a("v_mov_b32 v46, 0")
    a("v_cndmask_b32 v45, v46, v45, s[38:39]")
    a("v_cmp_le_u32 vcc, 16, v3")
    a("v_xor_b32 v7, 16, v3")
    a("v_lshlrev_b32 v7, 4, v7")
    for q in range(4):
        a(f"v_cndmask_b32 v{32+q}, v45, v{32+q}, vcc")
    a(f"v_mul_u32_u24 v46, {VH}, v4")
    a("v_add_u32 v7, v7, v46")
    a("s_and_b32 s32, s5, 1")
    a(f"s_mul_i32 s32, s32, {VU}")
    a("s_add_u32 s33, s33, s32")
    a("v_cmp_gt_u32 s[38:39], 2, v3")
    a("s_or_b64 vcc, vcc, s[38:39]")
    a("s_and_saveexec_b64 s[38:39], vcc")
    a("buffer_store_dwordx4 v[32:35], v7, s[8:11], s33 offen offset:1024")


def piece_sgprs(a):
    a("s_lshr_b32 s32, s3, 1")
    a("s_and_b32 s43, s32, 1")
    a("s_lshr_b32 s44, s3, 2")
    a("s_lshl_b32 s45, s4, 1")
    a("s_add_u32 s45, s45, s43")
    a("s_lshl_b32 s46, s5, 1")
    a("s_add_u32 s46, s46, s44")
    a("s_lshl_b32 s42, s45, 5")
    a("s_lshl_b32 s32, s46, 1")
    a("s_add_u32 s42, s42, s32")
    a("s_and_b32 s47, s3, 1")
    a("s_add_u32 s42, s42, s47")
    a("s_lshl_b32 s42, s42, 10")


def code_srd(a, d, tag):
    a(f"s_getpc_b64 s[{d}:{d+1}]")
    a(f"{tag}_pc:")
    a(f"s_add_u32 s{d}, s{d}, f1_kernel-{tag}_pc")
    a(f"s_addc_u32 s{d+1}, s{d+1}, {'-1' if tag != 'K0' else '0'}")
    a(f"s_mov_b32 s{d+2}, code_end-f1_kernel")
    a(f"s_mov_b32 s{d+3}, 0x00020000")


def gen_F(a, L):
    last = (L == 1)
    name = f"f{L+1}_kernel"
    T = f"F{L}"
    a.begin(name)
    end = f"{name}_end"
    prologue(a, end, out_ptr=True, out_off=(64 if last else 0))
    a.srd(16, 12, 2048 * 512 * 2)
    XF, QF, OF, X1F, HF, KVF, KN = XFL[L], QFL[L], OFL[L], X1FL[L], HFL[L], KVFL[L], KNL[L]
    EP = 4 * L
    SCR = KVF_BYTES
    KMX = SCR + 8 * 2304
    Q = (8, 12)
    C = 80
    O = (32, 48)
    S = (64, 80)
    P = (96, 104)
    E = 112
    KB = (128, 132)
    VB = (136, 144)
    a("s_and_b32 s20, s3, 3")
    a("s_lshr_b32 s30, s3, 2")
    a("s_and_b32 s21, s20, 1")
    a("s_lshl_b32 s21, s21, 1")
    a("s_lshl_b32 s22, s5, 2")
    a("s_add_u32 s21, s21, s22")
    a("s_lshr_b32 s22, s20, 1")
    a("s_lshl_b32 s23, s4, 1")
    a("s_add_u32 s22, s22, s23")
    a("s_lshl_b32 s22, s22, 5")
    a("s_add_u32 s22, s22, s21")
    a("s_add_u32 s23, s22, s30")
    a("s_xor_b32 s24, s30, 1")
    a("s_add_u32 s24, s22, s24")
    a("s_lshl_b32 s22, s23, 10")
    a("s_lshl_b32 s24, s24, 10")
    a(f"s_add_u32 s23, s22, {QF:#x}")
    a(f"s_add_u32 s24, s24, {QF:#x}")
    a(f"buffer_load_dwordx4 {vr(Q[0],4)}, v2, s[8:11], s23 offen")
    a(f"buffer_load_dwordx4 {vr(Q[1],4)}, v2, s[8:11], s24 offen")
    a("s_lshl_b32 s23, s3, 10")
    a(f"s_add_u32 s23, s23, {KN:#x}")
    a(f"buffer_load_dwordx4 {vr(E,4)}, v2, s[8:11], s23 offen")
    a("s_lshr_b32 s24, s3, 1")
    a("s_lshl_b32 s24, s24, 10")
    a("s_and_b32 s25, s3, 1")
    a(f"s_mul_i32 s25, s25, {32*KVT}")
    a("s_add_u32 s34, s24, s25")
    a(f"s_add_u32 s35, s34, {KVF:#x}")

    def dma():
        a("s_mov_b32 m0, s34")
        a("s_add_u32 s34, s34, 4096")
        a("buffer_load_dwordx4 v2, s[8:11], s35 offen lds")
        a("s_add_u32 s35, s35, 4096")
    for i in range(6):
        dma()
    a("s_lshl_b32 s40, s4, 8")
    a(f"s_add_u32 s40, s40, {FLAGS:#x}")
    a("s_lshl_b32 s41, s3, 2")
    a("s_add_u32 s41, s41, s40")
    a("s_lshl_b32 s32, s5, 2")
    a("s_add_u32 s40, s40, s32")
    piece_sgprs(a)
    a("s_getreg_b32 s61, hwreg(HW_REG_XCC_ID)")
    a("s_and_b32 s61, s61, 15")
    a("s_add_u32 s61, s61, 1")
    a("v_min_u32 v6, 17, v3")
    a("v_mov_b32 v5, 16")
    a("v_cmp_eq_u32 vcc, 20, v3")
    a(f"s_mul_i32 s25, s30, {32*KVT}")
    a.nop(1)
    a("v_cndmask_b32 v6, v6, v5, vcc")
    a("v_lshlrev_b32 v6, 4, v6")
    a(f"v_mul_u32_u24 v5, {VH}, v4")
    a("v_add3_u32 v158, v6, v5, 64")
    a("v_add_u32 v158, 960, v158")
    a("v_add_u32 v156, s25, v2")
    a("v_add_u32 v157, s25, v158")
    a("s_waitcnt vmcnt(6)")
    a("v_mov_b32 v5, 0")
    a("v_mov_b32 v6, 0")
    for q in range(4):
        a(f"v_dot2_f32_bf16 v5, v{Q[0]+q}, v{Q[0]+q}, v5")
        a(f"v_dot2_f32_bf16 v6, v{Q[1]+q}, v{Q[1]+q}, v6")
    a.nop(3)
    half_sum(a, 5, 154)
    half_sum(a, 6, 154)
    a("v_max_f32 v5, v5, v6")
    a(f"v_max3_f32 v7, v{E}, v{E+1}, v{E+2}")
    a(f"v_max_f32 v7, v7, v{E+3}")
    for off in (0x041F, 0x081F, 0x101F, 0x201F, 0x401F):
        a(f"ds_swizzle_b32 v6, v5 offset:{off:#x}")
        a(f"ds_swizzle_b32 v154, v7 offset:{off:#x}")
        a("s_waitcnt lgkmcnt(0)")
        a("v_max_f32 v5, v5, v6")
        a("v_max_f32 v7, v7, v154")
    half_sum(a, 7, 154, op="v_max_f32")
    a("v_readfirstlane_b32 s63, v5")
    a("s_lshl_b32 s23, s3, 2")
    a(f"s_add_u32 s23, s23, {KMX}")
    a("v_mov_b32 v6, s23")
    a("ds_write_b32 v6, v7")
    for r in range(16):
        a(f"v_mov_b32 v{O[0]+r}, 0")
        a(f"v_mov_b32 v{O[1]+r}, 0")
        a(f"v_mov_b32 v{E+r}, 0")
    for r in range(8):
        a(f"v_mov_b32 v{P[1]+r}, 0")
        a(f"v_mov_b32 v{VB[1]+r}, 0")
    a("s_lshl_b32 s32, s5, 1")
    a("s_lshl_b32 s48, s32, 5")
    a("s_lshl_b32 s33, s3, 2")
    a("s_add_u32 s48, s48, s33")
    a("s_lshl_b32 s48, s48, 10")
    a(f"s_add_u32 s48, s48, {WOF:#x}")
    a("s_add_u32 s49, s48, 32768")
    a("s_min_u32 s32, s3, 6")
    a("s_mul_i32 s51, s5, 7")
    a("s_add_u32 s51, s51, s32")
    a("s_lshl_b32 s50, s51, 15")
    a(f"s_add_u32 s50, s50, {W1F:#x}")
    a(f"s_add_u32 s52, s42, {XF:#x}")
    pf = []
    for i in range(4):
        pf.append((ar(8 * i, 4), 48, i))
        pf.append((ar(8 * i + 4, 4), 49, i))
    if last:
        pf.append((ar(32, 4), 52, 0))
    else:
        a("v_lshlrev_b32 v159, 10, v3")
        a("v_lshl_add_u32 v159, v4, 3, v159")
        a("s_lshl_b32 s52, s45, 15")
        a("s_lshl_b32 s32, s46, 6")
        a("s_add_u32 s52, s52, s32")
        a("s_lshl_b32 s32, s47, 5")
        a("s_add_u32 s52, s52, s32")
        pf.append(None)
    for i in range(15):
        pf.append((ar(36 + 4 * i, 4), 50, i))
    for i in range(4):
        pf.append((vr(16 + 4 * i, 4), 50, 23 + i))
    a("s_waitcnt vmcnt(0) lgkmcnt(0)")
    a("s_barrier")
    a.stamp(2)
    a(f"ds_read_b128 {vr(KB[0],4)}, v156")
    a(f"ds_read_b128 {vr(KB[1],4)}, v156 offset:{KVT}")
    a(f"ds_read_b128 {vr(VB[0],4)}, v157")
    a(f"ds_read_b128 {vr(VB[0]+4,4)}, v157 offset:{VU}")
    a("s_cmp_lt_u32 s3, 4")
    a(f"s_cbranch_scc1 {T}_noprio")
    a("s_setprio 1")
    a(f"{T}_noprio:")
    a("s_waitcnt lgkmcnt(3)")
    a(f"v_mfma_f32_32x32x16_bf16 {vr(S[0],16)}, {vr(KB[0],4)}, {vr(Q[0],4)}, {'0' if CZERO else vr(C,16)}")
    a.nop(10)
    UN, PV1, PV2, DLY, NE = 4, 3, 6, 2, 16

    def body(extra, slots=(1, 4, 5)):
        for t in range(UN):
            for x in range(2):
                y = 1 - x
                ty = t if x == 0 else t + 1
                tv = t - 1 if x == 0 else t
                for i in range(8):
                    if i == 0:
                        if x == 1:
                            a("s_waitcnt lgkmcnt(0)")
                        a(f"v_mfma_f32_32x32x16_bf16 {vr(S[y],16)}, {vr(KB[ty%2],4)}, {vr(Q[y],4)}, {'0' if CZERO else vr(C,16)}")
                        if x == 1:
                            a(f"ds_read_b128 {vr(KB[t%2],4)}, v156 offset:{(t+2)*KVT}")
                            a(f"ds_read_b128 {vr(VB[(t+1)%2],4)}, v157 offset:{(t+1)*KVT}")
                            a(f"ds_read_b128 {vr(VB[(t+1)%2]+4,4)}, v157 offset:{(t+1)*KVT+VU}")
                    e = E + (2 * i) % NE
                    a(f"v_exp_f32 v{e}, v{S[x]+2*i}")
                    a(f"v_exp_f32 v{e+1}, v{S[x]+2*i+1}")
                    j = i - DLY
                    if j >= 0:
                        ej = E + (2 * j) % NE
                        a(f"v_cvt_pk_bf16_f32 v{P[x]+j}, v{ej}, v{ej+1}")
                    else:
                        ej = E + (2 * (j + 8)) % NE
                        a(f"v_cvt_pk_bf16_f32 v{P[y]+j+8}, v{ej}, v{ej+1}")
                    if i == PV1:
                        a(f"v_mfma_f32_32x32x16_bf16 {vr(O[y],16)}, {vr(VB[tv%2],4)}, {vr(P[y],4)}, {vr(O[y],16)}")
                    if i == PV2:
                        a(f"v_mfma_f32_32x32x16_bf16 {vr(O[y],16)}, {vr(VB[tv%2]+4,4)}, {vr(P[y]+4,4)}, {vr(O[y],16)}")
                    if i in slots and extra:
                        extra.pop(0)()
                if t == UN - 1 and x == 1:
                    a(f"v_add_u32 v156, {UN*KVT}, v156")
                    a(f"v_add_u32 v157, {UN*KVT}, v157")
                    a("s_add_u32 s29, s29, 1")
                    a("s_cmp_lg_u32 s29, 8")

    a("s_mov_b32 s29, 0")
    body([dma] * 11)
    body([])
    a("s_waitcnt vmcnt(0)")
    a("s_barrier")
    def rawres():
        a("buffer_load_dwordx2 a[32:33], v159, s[16:19], s52 offen")
        a("buffer_load_dwordx2 a[34:35], v159, s[16:19], s52 offen offset:16")
    pfl = [(lambda e=e: ld(a, e[0], e[1], e[2], 33)) if e else rawres for e in pf]
    def xid():
        a("s_cmp_lg_u32 s3, 0")
        a(f"s_cbranch_scc1 {T}_noxid")
        a("v_mov_b32 v5, s61")
        a("v_mov_b32 v6, 0")
        a("s_mov_b64 exec, 1")
        a(f"buffer_store_dword v5, v6, s[8:11], s40 offen offset:{64+32*L} {SC}")
        a("s_mov_b64 exec, -1")
        a(f"{T}_noxid:")
    xid()
    body(pfl[0:10], (2, 6))
    body(pfl[10:20], (2, 6))
    tail = []
    if WARM:
        a("s_lshr_b32 s56, s4, 3")
        a("s_and_b32 s56, s56, 3")
        a("s_and_b32 s57, s56, 1")
        a("s_lshl_b32 s58, s5, 1")
        a("s_add_u32 s57, s57, s58")
        a("s_mul_i32 s57, s57, 112")
        a("s_mul_i32 s58, s3, 14")
        a("s_add_u32 s57, s57, s58")
        a("s_lshr_b32 s58, s56, 1")
        a("s_mul_i32 s58, s58, 7")
        a("s_add_u32 s57, s57, s58")
        a("s_lshl_b32 s57, s57, 10")
        a(f"s_add_u32 s57, s57, {W2F:#x}")
        a("s_lshl_b32 s58, s56, 12")
        a("s_add_u32 s58, s58, s50")
        a(f"s_add_u32 s58, s58, {15*1024}")
        a("s_and_b32 s59, s56, 1")
        a("s_lshl_b32 s59, s59, 15")
        a("s_lshr_b32 s60, s56, 1")
        a("s_lshl_b32 s60, s60, 11")
        a("s_add_u32 s59, s59, s60")
        a("s_add_u32 s59, s59, s48")
        a(f"s_add_u32 s59, s59, {(WQF - WOF) & 0xffffffff:#x}")
        for k, (n, sr) in enumerate(((56, 57), (40, 58), (16, 59))):
            if last and sr == 59:
                continue
            a(f"v_min_u32 v{152+k}, {n-1}, v1")
            a(f"v_lshlrev_b32 v{152+k}, 7, v{152+k}")
            tail.append(lambda k=k, sr=sr: a(f"buffer_load_dword v155, v{152+k}, s[8:11], s{sr} offen"))
    a("v_and_b32 v5, 7, v1")
    a("v_lshlrev_b32 v5, 2, v5")
    a("s_lshl_b32 s62, s4, 8")
    a(f"s_add_u32 s62, s62, {FLAGS:#x}")
    tail.append(lambda: a(f"buffer_load_dword v159, v5, s[8:11], s62 offen offset:{64+32*L} {SC}"))
    if TOUCH and (L == 0 or not REUSE):
        a(f"s_add_u32 s20, s22, {OF:#x}")
        a(f"s_add_u32 s21, s42, {X1F:#x}")
        a("s_lshl_b32 s23, s4, 1")
        a("s_mul_i32 s23, s23, 112")
        a("s_lshl_b32 s24, s51, 1")
        a("s_add_u32 s23, s23, s24")
        a("s_lshl_b32 s23, s23, 10")
        a(f"s_add_u32 s23, s23, {HF:#x}")
        a("s_add_u32 s24, s23, 1024")
        a(f"s_add_u32 s25, s23, {112*1024}")
        a("s_add_u32 s26, s25, 1024")
        a(f"s_add_u32 s27, s42, {XFL[1]:#x}")
        a(f"s_add_u32 s28, s42, {QFL[1]:#x}")
        a("v_mov_b32 v6, s20")
        for k, sr in enumerate((21, 23, 24, 25, 26, 27, 28)):
            a(f"v_mov_b32 v7, s{sr}")
            a(f"v_cmp_le_u32 vcc, {8*(k+1)}, v1")
            a.nop(2)
            a("v_cndmask_b32 v6, v6, v7, vcc")
        a("v_and_b32 v7, 7, v1")
        a("v_lshl_add_u32 v6, v7, 7, v6")
        tail.append(lambda: a("buffer_load_dword v7, v6, s[8:11], 0 offen"))
    if TOUCH2:
        if last:
            a("v_lshlrev_b32 v6, 10, v3")
            a("s_lshl_b32 s20, s45, 15")
            a("s_lshl_b32 s21, s46, 6")
            a("s_add_u32 s20, s20, s21")
            tail.append(lambda: a("buffer_load_dword v7, v6, s[16:19], s20 offen"))
        else:
            a(f"s_mul_i32 s31, s45, {KVT}")
            a(f"s_add_u32 s31, s31, {KVFL[1]:#x}")
            tail.append(lambda: a("buffer_load_dword v155, v154, s[8:11], s31 offen"))
    body(pfl[20:28] + tail, (1, 5))
    a(f"{T}_loop:")
    a(f"s_cmp_lg_u32 s29, {PRIO_IT}")
    a(f"s_cbranch_scc1 {T}_prio2")
    a("s_setprio 0")
    a(f"{T}_prio2:")
    body([])
    a(f"s_cbranch_scc1 {T}_loop")
    a("s_waitcnt vmcnt(0)")
    for j in range(8 - DLY, 8):
        ej = E + (2 * j) % NE
        a(f"v_cvt_pk_bf16_f32 v{P[1]+j}, v{ej}, v{ej+1}")
    a.nop(2)
    a(f"v_mfma_f32_32x32x16_bf16 {vr(O[1],16)}, {vr(VB[1],4)}, {vr(P[1],4)}, {vr(O[1],16)}")
    a(f"v_mfma_f32_32x32x16_bf16 {vr(O[1],16)}, {vr(VB[1]+4,4)}, {vr(P[1]+4,4)}, {vr(O[1],16)}")
    a("s_mul_i32 s25, s3, 2304")
    a(f"s_add_u32 s25, s25, {SCR}")
    a("v_add_u32 v5, s25, v2")
    a("v_lshlrev_b32 v6, 2, v1")
    a("v_add_u32 v6, s25, v6")
    a("s_xor_b32 s25, s3, 4")
    a("s_mul_i32 s25, s25, 2304")
    a(f"s_add_u32 s25, s25, {SCR}")
    a("v_add_u32 v7, s25, v2")
    a("s_waitcnt vmcnt(0)")
    a("s_mov_b32 s37, 0")
    a("v_and_b32 v153, 7, v1")
    a("v_lshlrev_b32 v153, 2, v153")
    a(f"{T}_xchk:")
    a("v_cmp_eq_u32 vcc, 0, v159")
    a("s_cmp_eq_u64 vcc, 0")
    a(f"s_cbranch_scc1 {T}_xok")
    a("s_add_u32 s37, s37, 1")
    a(f"s_cmp_gt_u32 s37, {SPIN_MAX}")
    a(f"s_cbranch_scc1 {T}_xok")
    a("s_sleep 1")
    a(f"buffer_load_dword v159, v153, s[8:11], s62 offen offset:{64+32*L} {SC}")
    a("s_waitcnt vmcnt(0)")
    a(f"s_branch {T}_xchk")
    a(f"{T}_xok:")
    a("v_cmp_ne_u32 vcc, s61, v159")
    a("s_cmp_eq_u64 vcc, 0")
    a(f"s_cselect_b32 s61, {FAST}, 0")
    a("v_lshlrev_b32 v154, 2, v1")
    a("v_add_u32 v154, s25, v154")
    a("s_waitcnt lgkmcnt(0)")
    a.nop(8)
    a(f"ds_write_b128 v5, {vr(O[1],4)}")
    a(f"ds_write_b128 v5, {vr(O[1]+4,4)} offset:1024")
    a(f"ds_write_b32 v6, v{O[1]+8} offset:2048")
    a("s_waitcnt lgkmcnt(0)")
    a("s_barrier")
    a(f"ds_read_b128 {vr(S[0],4)}, v7")
    a(f"ds_read_b128 {vr(S[0]+4,4)}, v7 offset:1024")
    a(f"ds_read_b32 v{S[0]+8}, v154 offset:2048")
    a(f"v_mov_b32 v5, {KMX}")
    a(f"ds_read_b128 {vr(S[1],4)}, v5")
    a(f"ds_read_b128 {vr(S[1]+4,4)}, v5 offset:16")
    a("s_waitcnt lgkmcnt(0)")
    for r in range(9):
        a(f"v_add_f32 v{O[0]+r}, v{O[0]+r}, v{S[0]+r}")
    a(f"v_max3_f32 v5, v{S[1]}, v{S[1]+1}, v{S[1]+2}")
    a(f"v_max3_f32 v5, v5, v{S[1]+3}, v{S[1]+4}")
    a(f"v_max3_f32 v5, v5, v{S[1]+5}, v{S[1]+6}")
    a(f"v_max_f32 v5, v5, v{S[1]+7}")
    a("v_mul_f32 v5, s63, v5")
    a(f"v_mov_b32 v6, {f2u(BMAX*BMAX):#x}")
    a("v_cmp_nle_f32 vcc, v5, v6")
    a("s_cmp_eq_u64 vcc, 0")
    a(f"s_cbranch_scc1 {T}_afin")
    a("v_mov_b32 v156, v2")
    a("v_mov_b32 v6, 0xff800000")
    a("s_mov_b32 s29, 64")
    a(f"{T}_fb:")
    a(f"ds_read_b128 {vr(KB[0],4)}, v156")
    a(f"v_add_u32 v156, {KVT}, v156")
    a("s_waitcnt lgkmcnt(0)")
    a(f"v_mfma_f32_32x32x16_bf16 {vr(S[0],16)}, {vr(KB[0],4)}, {vr(Q[0],4)}, 0")
    a.nop(16)
    for i in range(8):
        a(f"v_max3_f32 v6, v6, v{S[0]+2*i}, v{S[0]+2*i+1}")
    a("s_sub_u32 s29, s29, 1")
    a("s_cmp_lg_u32 s29, 0")
    a(f"s_cbranch_scc1 {T}_fb")
    half_sum(a, 6, 7, op="v_max_f32")
    a("v_sub_f32 v6, 0, v6")
    for r in range(16):
        a(f"v_mov_b32 v{C+r}, v6")
        a(f"v_mov_b32 v{O[0]+r}, 0")
    a("v_mov_b32 v156, v2")
    a("v_mov_b32 v157, v158")
    a("s_mov_b32 s29, 64")
    a(f"{T}_fb2:")
    a(f"ds_read_b128 {vr(KB[0],4)}, v156")
    a(f"ds_read_b128 {vr(VB[0],4)}, v157")
    a(f"ds_read_b128 {vr(VB[0]+4,4)}, v157 offset:{VU}")
    a(f"v_add_u32 v156, {KVT}, v156")
    a(f"v_add_u32 v157, {KVT}, v157")
    a("s_waitcnt lgkmcnt(0)")
    a(f"v_mfma_f32_32x32x16_bf16 {vr(S[0],16)}, {vr(KB[0],4)}, {vr(Q[0],4)}, {vr(C,16)}")
    a.nop(16)
    for i in range(16):
        a(f"v_exp_f32 v{S[0]+i}, v{S[0]+i}")
    a.nop(1)
    for i in range(8):
        a(f"v_cvt_pk_bf16_f32 v{P[0]+i}, v{S[0]+2*i}, v{S[0]+2*i+1}")
    a.nop(2)
    a(f"v_mfma_f32_32x32x16_bf16 {vr(O[0],16)}, {vr(VB[0],4)}, {vr(P[0],4)}, {vr(O[0],16)}")
    a(f"v_mfma_f32_32x32x16_bf16 {vr(O[0],16)}, {vr(VB[0]+4,4)}, {vr(P[0]+4,4)}, {vr(O[0],16)}")
    a.nop(16)
    a("s_sub_u32 s29, s29, 1")
    a("s_cmp_lg_u32 s29, 0")
    a(f"s_cbranch_scc1 {T}_fb2")
    a(f"{T}_afin:")
    a(f"v_rcp_f32 v6, v{O[0]+8}")
    a.nop(1)
    for r in range(8):
        a(f"v_mul_f32 v{O[0]+r}, v{O[0]+r}, v6")
    for q in range(4):
        a(f"v_cvt_pk_bf16_f32 v{S[0]+q}, v{O[0]+2*q}, v{O[0]+2*q+1}")
    a(f"s_add_u32 s23, s22, {OF:#x}")
    hstore(a, [f"buffer_store_dwordx4 {vr(S[0],4)}, v2, s[8:11], s23 offen"])
    a.stamp(3)
    publish(a, EP + 1, f"{T}_p1")
    a("s_lshl_b32 s20, s4, 6")
    a("s_lshl_b32 s21, s3, 2")
    a("s_add_u32 s20, s20, s21")
    a("s_lshl_b32 s53, s20, 10")
    a(f"s_add_u32 s20, s53, {OF:#x}")
    a("s_add_u32 s21, s20, 32768")
    for i in range(2):
        ld(a, vr(8 + 4 * i, 4), 50, 27 + i, 33)
    for i in range(3):
        ld(a, vr(144 + 4 * i, 4), 50, 29 + i, 33)
    wait_flag(a, EP + 1, f"{T}_w1")
    a.stamp(4)
    for i in range(4):
        ld(a, vr(32 + 8 * i, 4), 20, i, 33, SCL)
        ld(a, vr(36 + 8 * i, 4), 21, i, 33, SCL)
    ACC = 64
    for i in range(4):
        a(f"s_waitcnt vmcnt({2*(3-i)})")
        for c in range(2):
            for r in range(2):
                t = 2 * c + r
                cin = "0" if i == 0 else vr(ACC + 16 * t, 16)
                a(f"v_mfma_f32_32x32x16_bf16 {vr(ACC+16*t,16)}, {ar(8*i+4*c,4)}, {vr(32+8*i+4*r,4)}, {cin}")
    for i in range(8):
        ld(a, ar(4 * i, 4), 50, 15 + i, 33)
    reduce8(a, ACC, 128)
    for q in range(4):
        a(f"v_accvgpr_read_b32 v{136+q}, a{32+q}")
    for q in range(4):
        a(f"v_lshlrev_b32 v{140}, 16, v{136+q}")
        a(f"v_and_b32 v{141}, 0xffff0000, v{136+q}")
        a(f"v_add_f32 v{128+2*q}, v{128+2*q}, v140")
        a(f"v_add_f32 v{129+2*q}, v{129+2*q}, v141")
    for q in range(4):
        a(f"v_cvt_pk_bf16_f32 v{136+q}, v{128+2*q}, v{129+2*q}")
    a(f"s_add_u32 s23, s42, {X1F:#x}")
    hstore(a, ["buffer_store_dwordx4 v[136:139], v2, s[8:11], s23 offen"])
    for q in range(4):
        a(f"v_accvgpr_write_b32 a{32+q}, v{136+q}")
    a.stamp(5)
    publish(a, EP + 2, f"{T}_p2")
    a(f"s_add_u32 s20, s53, {X1F:#x}")
    a("s_add_u32 s21, s20, 32768")
    wait_flag(a, EP + 2, f"{T}_w2")
    a.stamp(6)
    for i in range(4):
        ld(a, vr(32 + 4 * i, 4), 20, i, 33, SCL)
    for i in range(4):
        ld(a, vr(48 + 4 * i, 4), 21, i, 33, SCL)
    a("v_lshlrev_b32 v7, 4, v4")
    a("s_lshl_b32 s27, s51, 7")
    a(f"s_add_u32 s27, s27, {CS1:#x}")
    for q in range(4):
        a(f"buffer_load_dwordx4 {vr(88+4*q,4)}, v7, s[8:11], s27 offen offset:{32*q}")
    STAT = 65536
    a("s_lshl_b32 s21, s3, 12")
    a("v_add_u32 v5, s21, v2")
    a("s_mov_b32 s28, 0x3f803f80")
    for r in range(8):
        a(f"v_mov_b32 v{80+r}, 0")
    for rr in range(2):
        a(f"s_waitcnt vmcnt({4+4*(1-rr)})")
        for i in range(4):
            a(f"ds_write_b128 v5, {vr(32+16*rr+4*i,4)} offset:{32768*rr+1024*i}")
        for i in range(16):
            x = 32 + 16 * rr + i
            k = 4 * (i % 2)
            a(f"v_dot2_f32_bf16 v{80+k+2*rr}, v{x}, s28, v{80+k+2*rr}")
            a(f"v_dot2_f32_bf16 v{81+k+2*rr}, v{x}, v{x}, v{81+k+2*rr}")
    a("s_lshl_b32 s21, s3, 10")
    a(f"s_add_u32 s21, s21, {STAT}")
    a("v_add_u32 v5, s21, v2")
    a.nop(2)
    for r in range(4):
        a(f"v_add_f32 v{80+r}, v{80+r}, v{84+r}")
    a("ds_write_b128 v5, v[80:83]")
    a("s_waitcnt lgkmcnt(0)")
    a("s_barrier")
    a.stamp(7)
    a("s_lshl_b32 s32, s5, 1")
    a("s_mul_i32 s54, s32, 112")
    a("s_mul_i32 s33, s3, 14")
    a("s_add_u32 s54, s54, s33")
    a("s_lshl_b32 s54, s54, 10")
    a(f"s_add_u32 s54, s54, {W2F:#x}")
    a(f"s_add_u32 s55, s54, {112*1024}")
    a("s_cmp_eq_u32 s3, 7")
    a(f"s_cbranch_scc1 {T}_cskip")
    CACC = 104

    def w1reg(i):
        if i < 15:
            return ar(36 + 4 * i, 4)
        if i < 23:
            return ar(4 * (i - 15), 4)
        if i < 27:
            return vr(16 + 4 * (i - 23), 4)
        if i < 29:
            return vr(8 + 4 * (i - 27), 4)
        return vr(144 + 4 * (i - 29), 4)

    CR = 6

    def rd(i):
        b = 32 + 8 * (i % CR)
        a(f"ds_read_b128 {vr(b,4)}, v2 offset:{i*1024}")
        a(f"ds_read_b128 {vr(b+4,4)}, v2 offset:{32768+i*1024}")
    def w2reg(j):
        if j < 23:
            return w1reg(j)
        return vr(136 + 4 * (j - 23), 4)
    for i in range(CR - 1):
        rd(i)
    for i in range(32):
        if i + CR - 1 < 32:
            rd(i + CR - 1)
        pend = min(32, i + CR) - i - 1
        a(f"s_waitcnt lgkmcnt({2*pend})")
        b = 32 + 8 * (i % CR)
        for r in range(2):
            cin = "0" if i == 0 else vr(CACC + 16 * r, 16)
            a(f"v_mfma_f32_32x32x16_bf16 {vr(CACC+16*r,16)}, {w1reg(i)}, {vr(b+4*r,4)}, {cin}")
        if 1 <= i <= 23:
            j = i - 1
            ld(a, w2reg(j), 54 + (j & 1), j >> 1, 33)
    a(f"s_branch {T}_cepi")
    a(f"{T}_cskip:")
    for j in range(23):
        ld(a, w2reg(j), 54 + (j & 1), j >> 1, 33)
    a(f"{T}_cepi:")
    a.stamp(8)
    a("s_cmp_eq_u32 s3, 7")
    a(f"s_cbranch_scc1 {T}_cdone")
    a(f"v_add_u32 v5, {STAT}, v2")
    for w in range(8):
        a(f"ds_read_b128 {vr(32+4*w,4)}, v5 offset:{1024*w}")
    a("s_waitcnt vmcnt(23) lgkmcnt(0)")
    for w in range(1, 8):
        for r in range(4):
            a(f"v_add_f32 v{32+r}, v{32+r}, v{32+4*w+r}")
    for r in range(4):
        half_sum(a, 32 + r, 36)
    for r in range(2):
        m, x2 = 32 + 2 * r, 33 + 2 * r
        a(f"v_mul_f32 v{m}, {f2u(1.0/512):#x}, v{m}")
        a(f"v_mul_f32 v{x2}, {f2u(1.0/512):#x}, v{x2}")
        a(f"v_fma_f32 v{x2}, -v{m}, v{m}, v{x2}")
        a(f"v_max_f32 v{x2}, 0, v{x2}")
        a(f"v_add_f32 v{x2}, {f2u(EPS):#x}, v{x2}")
        a(f"v_rsq_f32 v{8+2*r}, v{x2}")
        a.nop(1)
        a(f"v_mul_f32 v{9+2*r}, v{m}, v{8+2*r}")
        a(f"v_sub_f32 v{9+2*r}, 0, v{9+2*r}")
    for rr in range(2):
        for r in range(16):
            a(f"v_mul_f32 v{40+r}, v{9+2*rr}, v{88+r}")
            a(f"v_fma_f32 v{CACC+16*rr+r}, v{CACC+16*rr+r}, v{8+2*rr}, v{40+r}")
        for q in range(8):
            a(f"v_cvt_pk_bf16_f32 v{16+8*rr+q}, v{CACC+16*rr+2*q}, v{CACC+16*rr+2*q+1}")
        for q in range(8):
            a(f"v_pk_max_i16 v{16+8*rr+q}, v{16+8*rr+q}, 0")
    a("s_lshl_b32 s26, s4, 1")
    a("s_mul_i32 s26, s26, 112")
    a("s_lshl_b32 s27, s51, 1")
    a("s_add_u32 s26, s26, s27")
    a("s_lshl_b32 s26, s26, 10")
    a(f"s_add_u32 s26, s26, {HF:#x}")
    a(f"s_add_u32 s27, s26, {112*1024}")
    hstore(a, ["buffer_store_dwordx4 v[16:19], v2, s[8:11], s26 offen",
               "buffer_store_dwordx4 v[20:23], v2, s[8:11], s26 offen offset:1024",
               "buffer_store_dwordx4 v[24:27], v2, s[8:11], s27 offen",
               "buffer_store_dwordx4 v[28:31], v2, s[8:11], s27 offen offset:1024"])
    a(f"{T}_cdone:")
    a.stamp(9)
    publish(a, EP + 3, f"{T}_p3")
    a("s_lshl_b32 s20, s4, 1")
    a("s_mul_i32 s20, s20, 112")
    a("s_mul_i32 s21, s3, 14")
    a("s_add_u32 s20, s20, s21")
    a("s_lshl_b32 s20, s20, 10")
    a(f"s_add_u32 s20, s20, {HF:#x}")
    a(f"s_add_u32 s21, s20, {112*1024}")
    wait_flag(a, EP + 3, f"{T}_w3")
    a.stamp(10)
    RING = 8
    DACC = 72

    def hld(i):
        b = 8 + 8 * (i % RING)
        ld(a, vr(b, 4), 20, i, 33, SCL)
        ld(a, vr(b + 4, 4), 21, i, 33, SCL)
    for i in range(RING):
        hld(i)
    def qreg(j):
        return w1reg(j)
    qpf = []
    if not last:
        a(f"s_add_u32 s48, s48, {(WQF - WOF) & 0xffffffff:#x}")
        a("s_add_u32 s49, s48, 32768")
        a("s_lshl_b32 s56, s3, 12")
        a(f"s_add_u32 s56, s56, {WKVF:#x}")
        a("v_lshlrev_b32 v156, 4, v4")
        a("v_lshlrev_b32 v157, 2, v3")
        a("s_lshl_b32 s57, s46, 7")
        a("s_lshl_b32 s33, s47, 6")
        a("s_add_u32 s57, s57, s33")
        a(f"s_add_u32 s57, s57, {CSQ:#x}")
        a(f"s_mov_b32 s58, {CSKV:#x}")
        for i in range(4):
            qpf.append(lambda i=i: ld(a, qreg(2 * i), 48, i, 33))
            qpf.append(lambda i=i: ld(a, qreg(2 * i + 1), 49, i, 33))
        for i in range(4):
            qpf.append(lambda i=i: ld(a, qreg(8 + i), 56, i, 33))
        for q in range(2):
            qpf.append(lambda q=q: a(f"buffer_load_dwordx4 {qreg(12+q)}, v156, s[8:11], s57 offen offset:{32*q}"))
        for q in range(2):
            qpf.append(lambda q=q: a(f"buffer_load_dwordx4 {qreg(14+q)}, v156, s[8:11], s58 offen offset:{32*q}"))
        qpf.append(lambda: a("buffer_load_dword a4, v157, s[8:11], s58 offen"))
    for j in range(23, 28):
        ld(a, w2reg(j), 54 + (j & 1), j >> 1, 33)

    def dloop(split, qpf):
        order = [('h', i) for i in range(RING)] + [('w', j) for j in range(23, 28)]
        for i in range(14):
            pos = order.index(('h', i))
            after = sum(2 if k == 'h' else 1 for (k, _) in order[pos + 1:])
            a(f"s_waitcnt vmcnt({after})")
            b = 8 + 8 * (i % RING)
            for c in range(2):
                for r in range(2):
                    t = 2 * c + r
                    cin = "0" if i == 0 else vr(DACC + 16 * t, 16)
                    a(f"v_mfma_f32_32x32x16_bf16 {vr(DACC+16*t,16)}, {w2reg(2*i+c)}, {vr(b+4*r,4)}, {cin}")
            if not split and i + RING < 14:
                hld(i + RING)
                order.append(('h', i + RING))
            elif split and i == RING - 1:
                poll3(0x70, f"{T}_w3b")
                for j in range(RING, 14):
                    hld(j)
                    order.append(('h', j))
            if i + RING >= 14 and (not split or i >= RING - 1):
                for _ in range(3):
                    k = sum(1 for (kk, _) in order if kk == 'q')
                    if qpf and k < 2 * i:
                        qpf.pop(0)()
                        order.append(('q', k))
        assert not qpf
    dloop(False, list(qpf))
    qpf = []
    a.stamp(11)
    assert not qpf
    reduce8(a, DACC, 8)
    for q in range(4):
        a(f"v_accvgpr_read_b32 v{16+q}, a{32+q}")
    for q in range(4):
        a(f"v_lshlrev_b32 v20, 16, v{16+q}")
        a(f"v_and_b32 v21, 0xffff0000, v{16+q}")
        a(f"v_add_f32 v{8+2*q}, v{8+2*q}, v20")
        a(f"v_add_f32 v{9+2*q}, v{9+2*q}, v21")
    for q in range(4):
        a(f"v_cvt_pk_bf16_f32 v{16+q}, v{8+2*q}, v{9+2*q}")
    if last:
        a.nop(2)
        a("v_permlane32_swap_b32 v16, v18")
        a("v_permlane32_swap_b32 v17, v19")
        a("v_lshlrev_b32 v5, 10, v3")
        a("v_lshl_add_u32 v5, v4, 4, v5")
        a("s_lshl_b32 s31, s45, 15")
        a("s_lshl_b32 s32, s46, 6")
        a("s_add_u32 s31, s31, s32")
        a("s_lshl_b32 s32, s47, 5")
        a("s_add_u32 s31, s31, s32")
        a("buffer_store_dwordx4 v[16:19], v5, s[16:19], s31 offen")
        a.stamp(12)
    else:
        XN, QN, KVN, KNN = XFL[1], QFL[1], KVFL[1], KNL[1]
        a(f"s_add_u32 s23, s42, {XN:#x}")
        hstore(a, ["buffer_store_dwordx4 v[16:19], v2, s[8:11], s23 offen"])
        a.stamp(12)
        publish(a, EP + 4, f"{T}_p4")
        a(f"s_add_u32 s20, s53, {XN:#x}")
        a("s_add_u32 s21, s20, 32768")
        a("s_mov_b32 s28, 0x3f803f80")
        wait_flag(a, EP + 4, f"{T}_w4")
        a.stamp(13)
        for i in range(4):
            ld(a, vr(8 + 8 * i, 4), 20, i, 33, SCL)
            ld(a, vr(12 + 8 * i, 4), 21, i, 33, SCL)
        for r in range(8):
            a(f"v_mov_b32 v{40+r}, 0")
        ACC = 64
        for i in range(4):
            a(f"s_waitcnt vmcnt({2*(3-i)})")
            for c in range(2):
                for r in range(2):
                    t = 2 * c + r
                    cin = "0" if i == 0 else vr(ACC + 16 * t, 16)
                    a(f"v_mfma_f32_32x32x16_bf16 {vr(ACC+16*t,16)}, {qreg(2*i+c)}, {vr(8+8*i+4*r,4)}, {cin}")
                    for q in range(4):
                        x = 8 + 8 * i + 4 * r + q
                        k = 40 + 4 * (q % 2) + 2 * r + c
                        if c == 0:
                            a(f"v_dot2_f32_bf16 v{k}, v{x}, s28, v{k}")
                        else:
                            a(f"v_dot2_f32_bf16 v{k}, v{x}, v{x}, v{k}")
        a("s_lshl_b32 s32, s3, 11")
        a(f"s_add_u32 s32, s32, {KVS}")
        a("v_add_u32 v7, s32, v2")
        a("s_cmp_ge_u32 s5, 6")
        a(f"s_cbranch_scc1 {T}_kvdone")
        for task in range(6):
            if task < 5:
                a(f"s_cmp_lg_u32 s5, {task}")
                a(f"s_cbranch_scc1 {T}_kvt{task+1}")
            kind = 'K' if task < 2 else 'V'
            r = task if task < 2 else (task - 2) >> 1
            u = 0 if task < 2 else (task & 1)
            for i in range(4):
                cin = "0" if i == 0 else vr(128, 16)
                if kind == 'K':
                    a(f"v_mfma_f32_32x32x16_bf16 {vr(128,16)}, {qreg(8+i)}, {vr(8+8*i+4*r,4)}, {cin}")
                else:
                    a(f"v_mfma_f32_32x32x16_bf16 {vr(128,16)}, {vr(8+8*i+4*r,4)}, {qreg(8+i)}, {cin}")
            a.nop(16)
            a(f"ds_write_b128 v7, {vr(128+8*u,4)}")
            a(f"ds_write_b128 v7, {vr(132+8*u,4)} offset:1024")
            if task < 5:
                a(f"s_branch {T}_kvdone")
                a(f"{T}_kvt{task+1}:")
        a(f"{T}_kvdone:")
        a("s_lshl_b32 s32, s3, 10")
        a(f"s_add_u32 s32, s32, {STATQ}")
        a("v_add_u32 v7, s32, v2")
        for r in range(4):
            a(f"v_add_f32 v{40+r}, v{40+r}, v{44+r}")
        a("ds_write_b128 v7, v[40:43]")
        reduce8(a, ACC, 8)
        a.stamp(14)
        qkv_tail(a, T, end, QN, KVN, KNN,
                 lambda: [a(f"v_accvgpr_read_b32 v{16+r}, a{84+r}") for r in range(8)],
                 lambda: [a(f"v_accvgpr_read_b32 v{16+r}, a{92+r if r < 4 else r-4}") for r in range(8)],
                 lambda: a("v_accvgpr_read_b32 v47, a4"))
    a(f"{end}:")
    a.stamp_flush(16)
    a(f"{end}x:")
    a("s_endpgm")
    a.desc(name, 160, agpr=96)
    return SCR + 8 * 2304 + 64


def tr_addr(a, dst, RS, t1, t2):
    a(f"v_lshrrev_b32 v{t1}, 5, v1")
    a(f"v_lshlrev_b32 v{t1}, 2, v{t1}")
    a(f"v_bfe_u32 v{t2}, v1, 2, 2")
    a(f"v_add_u32 v{t1}, v{t1}, v{t2}")
    a(f"v_mul_u32_u24 v{dst}, {RS}, v{t1}")
    a(f"v_bfe_u32 v{t1}, v1, 4, 1")
    a(f"v_lshlrev_b32 v{t1}, 5, v{t1}")
    a(f"v_and_b32 v{t2}, 3, v1")
    a(f"v_lshlrev_b32 v{t2}, 3, v{t2}")
    a(f"v_add3_u32 v{dst}, v{dst}, v{t1}, v{t2}")


def gen_K0(a):
    name = "k0_kernel"
    T = "K0"
    a.begin(name)
    end = f"{name}_end"
    a("s_cmp_ge_u32 s2, 256")
    a(f"s_cbranch_scc1 {end}x")
    a.stamp(0)
    a("s_load_dwordx16 s[16:31], s[0:1], 0")
    a("s_load_dwordx2 s[6:7], s[0:1], 80")
    a("v_and_b32 v1, 63, v0")
    a("v_lshrrev_b32 v2, 6, v0")
    a("v_and_b32 v3, 31, v1")
    a("v_readfirstlane_b32 s60, v2")
    a("v_lshrrev_b32 v4, 5, v1")
    a("v_lshlrev_b32 v2, 4, v1")
    a("s_and_b32 s4, s2, 31")
    a("s_lshr_b32 s5, s2, 5")
    a("s_and_b32 s3, s60, 7")
    a("s_waitcnt lgkmcnt(0)")
    a.srd(8, 6, G.WS_USED)
    a.srd(52, 20, 512 * 16 * 2)
    a.srd(56, 22, 512 * 16 * 2)
    a("s_mov_b32 s61, 0x3f803f80")
    a("s_cmp_ge_u32 s60, 8")
    a("s_cbranch_scc1 K0_prep")
    if os.environ.get('K0X', '') == 'qprio':
        a("s_setprio 3")
    a.stamp(1)
    a.srd(12, 16, 2048 * 512 * 2)
    a.srd(48, 18, 512 * 512 * 2)
    piece_sgprs(a)
    a("v_lshrrev_b32 v6, 3, v1")
    a("v_lshlrev_b32 v6, 10, v6")
    a("v_and_b32 v7, 7, v1")
    a("v_lshl_add_u32 v6, v7, 4, v6")
    a("s_lshl_b32 s20, s4, 16")
    a("s_lshl_b32 s22, s3, 7")
    a("s_add_u32 s20, s20, s22")
    for k in range(8):
        a(f"s_add_u32 s21, s20, {8192*k}")
        a(f"buffer_load_dwordx4 {vr(64+4*k,4)}, v6, s[12:15], s21 offen")
    a("v_lshrrev_b32 v7, 2, v1")
    a("v_lshlrev_b32 v7, 5, v7")
    a("v_and_b32 v5, 1, v1")
    a("v_lshl_add_u32 v7, v5, 4, v7")
    a("v_and_b32 v5, 2, v1")
    a("v_cmp_eq_u32 vcc, 0, v5")
    a("s_lshl_b32 s20, s3, 11")
    a("s_and_saveexec_b64 s[38:39], vcc")
    for i in range(4):
        a(f"buffer_load_dwordx4 {vr(96+4*i,4)}, v7, s[52:55], s20 offen offset:{512*i}")
    a("s_andn2_b64 exec, s[38:39], exec")
    for i in range(4):
        a(f"buffer_load_dwordx4 {vr(96+4*i,4)}, v7, s[56:59], s20 offen offset:{512*i}")
    a("s_mov_b64 exec, s[38:39]")
    a("s_lshl_b32 s22, s3, 16")
    a("s_lshl_b32 s23, s5, 7")
    a("s_add_u32 s22, s22, s23")
    a("s_lshl_b32 s23, s3, 13")
    for i in range(8):
        a(f"s_add_u32 m0, s23, {1024*i}")
        a(f"s_add_u32 s24, s22, {8192*i}")
        a("buffer_load_dwordx4 v6, s[48:51], s24 offen lds")
    a.stamp(2)
    if TOUCH2:
        a(f"s_add_u32 s24, s42, {QFL[0]:#x}")
        a(f"s_mul_i32 s25, s45, {KVT}")
        a(f"s_add_u32 s25, s25, {KVFL[0] - 1024:#x}")
        a("v_mov_b32 v5, s24")
        a("v_mov_b32 v6, s25")
        a("v_cmp_le_u32 vcc, 8, v1")
        a("v_min_u32 v7, 25, v1")
        a("v_lshlrev_b32 v7, 7, v7")
        a("v_cndmask_b32 v5, v5, v6, vcc")
        a("v_add_u32 v5, v5, v7")
        a("buffer_load_dword v0, v5, s[8:11], 0 offen")
    tr_addr(a, 56, 128, 5, 6)
    a("v_add_u32 v56, s23, v56")
    tr_addr(a, 57, 64, 5, 6)
    a("s_lshl_b32 s21, s3, 12")
    a("s_add_u32 s21, s21, 65536")
    a("v_add_u32 v57, s21, v57")
    a("v_lshrrev_b32 v5, 3, v1")
    a("v_and_b32 v6, 7, v1")
    a("v_xor_b32 v6, v6, v5")
    a("v_lshlrev_b32 v6, 4, v6")
    a("v_lshl_add_u32 v112, v5, 7, v6")
    a("v_add_u32 v112, s21, v112")
    a("v_and_b32 v5, 7, v3")
    a("v_lshlrev_b32 v5, 4, v5")
    a("v_lshl_add_u32 v5, v3, 7, v5")
    a("v_lshl_add_u32 v5, v4, 3, v5")
    a("v_add_u32 v113, s21, v5")
    a("v_add_u32 v114, s21, v2")
    for c in range(8):
        a(f"v_xor_b32 v{116+c}, {c<<4}, v113")
    for r in range(6):
        a(f"v_mov_b32 v{58+r}, 0")
    a("v_mov_b32 v7, 0")
    for r in range(2):
        a(f"s_waitcnt vmcnt({16+4*(1-r)+TOUCH2})")
        if r == 0:
            a.stamp(3)
        for j in range(4):
            a(f"ds_write_b128 v112, {vr(64+16*r+4*j,4)} offset:{1024*j}")
        for i in range(4):
            b = 8 + 8 * i + 4 * r
            a(f"ds_read_b64 {vr(b,2)}, v{116+2*i}")
            a(f"ds_read_b64 {vr(b+2,2)}, v{117+2*i}")
    a(f"s_waitcnt vmcnt({8+TOUCH2})")
    for i in range(4):
        a(f"ds_write_b128 v114, {vr(96+4*i,4)} offset:{1024*i}")
    for i in range(4):
        a(f"ds_read_b64_tr_b16 {vr(40+4*i,2)}, v57 offset:{16*i*64}")
        a(f"ds_read_b64_tr_b16 {vr(42+4*i,2)}, v57 offset:{(16*i+8)*64}")
    a("s_waitcnt lgkmcnt(0)")
    for r in range(16):
        a(f"v_dot2_f32_bf16 v7, v{40+r}, s61, v7")
    a("s_lshl_b32 s32, s3, 11")
    a(f"s_add_u32 s32, s32, {KVS}")
    a("v_add_u32 v6, s32, v2")
    a("s_cmp_ge_u32 s5, 6")
    a(f"s_cbranch_scc1 {T}_kvdone")
    for task in range(6):
        if task < 5:
            a(f"s_cmp_lg_u32 s5, {task}")
            a(f"s_cbranch_scc1 {T}_kvt{task+1}")
        kind = 'K' if task < 2 else 'V'
        r = task if task < 2 else (task - 2) >> 1
        u = 0 if task < 2 else (task & 1)
        for i in range(4):
            cin = "0" if i == 0 else vr(64, 16)
            if kind == 'K':
                a(f"v_mfma_f32_32x32x16_bf16 {vr(64,16)}, {vr(40+4*i,4)}, {vr(8+8*i+4*r,4)}, {cin}")
            else:
                a(f"v_mfma_f32_32x32x16_bf16 {vr(64,16)}, {vr(8+8*i+4*r,4)}, {vr(40+4*i,4)}, {cin}")
        a.nop(16)
        a(f"ds_write_b128 v6, {vr(64+8*u,4)}")
        a(f"ds_write_b128 v6, {vr(68+8*u,4)} offset:1024")
        if task < 5:
            a(f"s_branch {T}_kvdone")
            a(f"{T}_kvt{task+1}:")
    a(f"{T}_kvdone:")
    half_sum(a, 7, 5)
    a("s_mul_i32 s32, s3, 384")
    a(f"s_add_u32 s32, s32, {CSP}")
    a("v_lshlrev_b32 v6, 2, v3")
    a("v_add_u32 v6, s32, v6")
    a("ds_write_b32 v6, v7 offset:256")
    a(f"s_waitcnt vmcnt({TOUCH2})")
    a.stamp(4)

    def wrd(i):
        b = 40 + 8 * (i % 2)
        for c in range(2):
            a(f"ds_read_b64_tr_b16 {vr(b+4*c,2)}, v56 offset:{16*i*128+64*c}")
            a(f"ds_read_b64_tr_b16 {vr(b+4*c+2,2)}, v56 offset:{(16*i+8)*128+64*c}")
    wrd(0)
    ACC = 64
    for i in range(4):
        if i < 3:
            wrd(i + 1)
        a(f"s_waitcnt lgkmcnt({4 if i < 3 else 0})")
        b = 40 + 8 * (i % 2)
        for c in range(2):
            for r in range(2):
                t = 2 * c + r
                cin = "0" if i == 0 else vr(ACC + 16 * t, 16)
                a(f"v_mfma_f32_32x32x16_bf16 {vr(ACC+16*t,16)}, {vr(b+4*c,4)}, {vr(8+8*i+4*r,4)}, {cin}")
                for q in range(4):
                    x = 8 + 8 * i + 4 * r + q
                    k = 58 + 2 * r + c
                    if c == 0:
                        a(f"v_dot2_f32_bf16 v{k}, v{x}, s61, v{k}")
                    else:
                        a(f"v_dot2_f32_bf16 v{k}, v{x}, v{x}, v{k}")
                if r == 0:
                    for q in range(4):
                        a(f"v_dot2_f32_bf16 v{62+c}, v{b+4*c+q}, s61, v{62+c}")
    a("s_lshl_b32 s32, s3, 10")
    a(f"s_add_u32 s32, s32, {STATQ}")
    a("v_add_u32 v7, s32, v2")
    a.nop(2)
    a("ds_write_b128 v7, v[58:61]")
    half_sum(a, 62, 5)
    half_sum(a, 63, 5)
    a("ds_write_b32 v6, v62")
    a("ds_write_b32 v6, v63 offset:128")
    a.stamp(5)
    reduce8(a, ACC, 8, pre_barrier=True)
    a.stamp(6)

    def cs8(tile_off_expr):
        for s in range(8):
            for q in range(2):
                a(f"ds_read_b128 {vr(64+8*s+4*q,4)}, v46 offset:{s*384+32*q}")
        a("s_waitcnt lgkmcnt(0)")
        for r in range(8):
            a(f"v_add_f32 v{16+r}, v{64+r}, v{72+r}")
        for s in range(2, 8):
            for r in range(8):
                a(f"v_add_f32 v{16+r}, v{16+r}, v{64+8*s+r}")

    def get_csq():
        a("s_lshl_b32 s32, s44, 7")
        a("s_lshl_b32 s33, s47, 6")
        a("s_add_u32 s32, s32, s33")
        a(f"s_add_u32 s32, s32, {CSP}")
        a("v_lshlrev_b32 v46, 4, v4")
        a("v_add_u32 v46, s32, v46")
        cs8(None)

    def get_csk():
        a("v_lshlrev_b32 v46, 4, v4")
        a(f"v_add_u32 v46, {CSP+256}, v46")
        for s in range(6):
            for q in range(2):
                a(f"ds_read_b128 {vr(72+8*s+4*q,4)}, v46 offset:{s*384+32*q}")
        for s in range(6, 8):
            for q in range(2):
                a(f"ds_read_b128 {vr(24+8*(s-6)+4*q,4)}, v46 offset:{s*384+32*q}")
        a("s_waitcnt lgkmcnt(0)")
        for r in range(8):
            a(f"v_add_f32 v{16+r}, v{24+r}, v{32+r}")
        for s in range(6):
            for r in range(8):
                a(f"v_add_f32 v{16+r}, v{16+r}, v{72+8*s+r}")

    def get_csv():
        a("v_lshlrev_b32 v46, 2, v3")
        a(f"v_add_u32 v46, {CSP+256}, v46")
        for s in range(8):
            a(f"ds_read_b32 v{72+s}, v46 offset:{s*384}")
        a("s_waitcnt lgkmcnt(0)")
        a("v_add_f32 v47, v72, v73")
        for s in range(2, 8):
            a(f"v_add_f32 v47, v47, v{72+s}")
    qkv_tail(a, T, end, QFL[0], KVFL[0], KNL[0], get_csq, get_csk, get_csv)
    a(f"s_branch {end}")
    a("K0_prep:")
    a("s_sub_u32 s63, 255, s2")
    if os.environ.get('K0X', '') == 'noprep':
        a(f"s_branch {end}x")
    if os.environ.get('K0X', '') == 'prio':
        a("s_setprio 3")
    a("s_cmp_lt_u32 s63, 154")
    a("s_cbranch_scc1 K0_ptask")
    if CODEPF:
        code_srd(a, 40, "K0")
        a("s_sub_u32 s32, s63, 154")
        a("s_lshr_b32 s32, s32, 3")
        a("s_lshl_b32 s32, s32, 3")
        a("s_add_u32 s32, s32, s3")
        a("s_lshl_b32 s32, s32, 10")
        a("buffer_load_dwordx4 v[16:19], v2, s[40:43], s32 offen")
        a("s_waitcnt vmcnt(0)")
    a(f"s_branch {end}x")
    a("K0_ptask:")
    a("s_cmp_lg_u32 s63, 153")
    a("s_cbranch_scc1 K0_pw")
    a("s_lshl_b32 s32, s3, 11")
    a(f"s_add_u32 s32, s32, {FLAGS:#x}")
    for r in range(4):
        a(f"v_mov_b32 v{16+r}, 0")
    a("buffer_store_dwordx4 v[16:19], v2, s[8:11], s32 offen")
    a("buffer_store_dwordx4 v[16:19], v2, s[8:11], s32 offen offset:1024")
    a(f"s_branch {end}x")
    a("K0_pw:")
    a("s_lshl_b32 s62, s3, 12")
    a("s_add_u32 s62, s62, 98304")
    a("s_mov_b32 s46, 0")
    a("s_mov_b32 s36, 32")
    a("s_cmp_eq_u32 s63, 152")
    a("s_cbranch_scc1 K0_pkv")
    a("s_cmp_ge_u32 s63, 88")
    a("s_cbranch_scc1 K0_pw2")
    a("s_cmp_ge_u32 s63, 32")
    a("s_cbranch_scc1 K0_pw1")
    a("s_cmp_ge_u32 s63, 16")
    a("s_cbranch_scc1 K0_pwo")
    a.srd(40, 18, 512 * 512 * 2)
    a("s_mov_b32 s44, 1024")
    a("s_mov_b32 s45, s63")
    a("s_lshl_b32 s47, s45, 15")
    a(f"s_add_u32 s47, s47, {WQF:#x}")
    a("s_lshl_b32 s49, s45, 7")
    a(f"s_add_u32 s49, s49, {CSQ:#x}")
    a("s_branch K0_pgo")
    a("K0_pwo:")
    a.srd(40, 24, 512 * 512 * 2)
    a("s_mov_b32 s44, 1024")
    a("s_sub_u32 s45, s63, 16")
    a("s_lshl_b32 s47, s45, 15")
    a(f"s_add_u32 s47, s47, {WOF:#x}")
    a("s_mov_b32 s49, 0")
    a("s_branch K0_pgo")
    a("K0_pw1:")
    a.srd(40, 28, 512 * 1792 * 2)
    a("s_mov_b32 s44, 3584")
    a("s_sub_u32 s45, s63, 32")
    a("s_lshl_b32 s47, s45, 15")
    a(f"s_add_u32 s47, s47, {W1F:#x}")
    a("s_lshl_b32 s49, s45, 7")
    a(f"s_add_u32 s49, s49, {CS1:#x}")
    a("s_branch K0_pgo")
    a("K0_pw2:")
    a.srd(40, 30, 512 * 1792 * 2)
    a("s_mov_b32 s44, 1024")
    a("s_sub_u32 s45, s63, 88")
    a("s_and_b32 s46, s45, 3")
    a("s_mul_i32 s46, s46, 28")
    a("s_lshr_b32 s45, s45, 2")
    a("s_mul_i32 s47, s45, 112")
    a("s_add_u32 s47, s47, s46")
    a("s_lshl_b32 s47, s47, 10")
    a(f"s_add_u32 s47, s47, {W2F:#x}")
    a("s_mov_b32 s36, 28")
    a("s_mov_b32 s49, 0")
    a("K0_pgo:")
    a("s_lshl_b32 s50, s3, 2")
    a("s_cmp_ge_u32 s50, s36")
    a(f"s_cbranch_scc1 {end}x")
    a("v_lshrrev_b32 v5, 2, v1")
    a("v_mul_lo_u32 v5, v5, s44")
    a("v_and_b32 v6, 3, v1")
    a("v_lshl_add_u32 v5, v6, 4, v5")
    a("s_add_u32 s51, s46, s50")
    a("s_lshl_b32 s51, s51, 4")
    a("s_mul_i32 s51, s51, s44")
    a("s_lshl_b32 s32, s45, 6")
    a("s_add_u32 s51, s51, s32")
    a("s_lshl_b32 s33, s44, 4")
    for i in range(4):
        a(f"s_add_u32 m0, s62, {1024*i}")
        a("s_nop 0")
        a("buffer_load_dwordx4 v5, s[40:43], s51 offen lds")
        a("s_add_u32 s51, s51, s33")
    a("s_branch K0_ptr")
    a("K0_pkv:")
    a("s_lshl_b32 s50, s3, 2")
    a("v_lshrrev_b32 v7, 2, v1")
    a("v_lshlrev_b32 v7, 5, v7")
    a("v_and_b32 v5, 1, v1")
    a("v_lshl_add_u32 v7, v5, 4, v7")
    a("v_and_b32 v5, 2, v1")
    a("v_cmp_eq_u32 vcc, 0, v5")
    a("s_lshl_b32 s20, s3, 11")
    a("s_and_saveexec_b64 s[38:39], vcc")
    for i in range(4):
        a(f"s_add_u32 m0, s62, {1024*i}")
        a(f"s_add_u32 s22, s20, {512*i}")
        a("buffer_load_dwordx4 v7, s[52:55], s22 offen lds")
    a("s_andn2_b64 exec, s[38:39], exec")
    for i in range(4):
        a(f"s_add_u32 m0, s62, {1024*i}")
        a(f"s_add_u32 s22, s20, {512*i}")
        a("buffer_load_dwordx4 v7, s[56:59], s22 offen lds")
    a("s_mov_b64 exec, s[38:39]")
    a(f"s_mov_b32 s47, {WKVF:#x}")
    a(f"s_mov_b32 s49, {CSKV:#x}")
    a("K0_ptr:")
    a("s_lshl_b32 s32, s50, 10")
    a("s_add_u32 s47, s47, s32")
    if TOUCH2:
        a("v_lshlrev_b32 v9, 7, v3")
        a("buffer_load_dword v10, v9, s[8:11], s47 offen")
    tr_addr(a, 8, 64, 5, 6)
    a("v_add_u32 v8, s62, v8")
    a("v_mov_b32 v7, 0")
    a(f"s_waitcnt vmcnt({TOUCH2})")
    for i in range(4):
        a(f"ds_read_b64_tr_b16 {vr(16+4*i,2)}, v8 offset:{16*i*64}")
        a(f"ds_read_b64_tr_b16 {vr(18+4*i,2)}, v8 offset:{(16*i+8)*64}")
    for i in range(4):
        a(f"s_waitcnt lgkmcnt({2*(3-i)})")
        a(f"buffer_store_dwordx4 {vr(16+4*i,4)}, v2, s[8:11], s47 offen offset:{1024*i}")
        for q in range(4):
            a(f"v_dot2_f32_bf16 v7, v{16+4*i+q}, s61, v7")
    a("s_cmp_eq_u32 s49, 0")
    a(f"s_cbranch_scc1 {end}x")
    a.nop(2)
    half_sum(a, 7, 5)
    a("s_lshl_b32 s32, s3, 7")
    a(f"s_add_u32 s32, s32, {CSP2}")
    a("v_lshlrev_b32 v6, 2, v3")
    a("v_add_u32 v5, s32, v6")
    a("ds_write_b32 v5, v7")
    a("s_waitcnt lgkmcnt(0)")
    a("s_barrier")
    a("s_cmp_lg_u32 s3, 0")
    a(f"s_cbranch_scc1 {end}x")
    a(f"v_add_u32 v5, {CSP2}, v6")
    for s in range(8):
        a(f"ds_read_b32 v{16+s}, v5 offset:{128*s}")
    a("s_waitcnt lgkmcnt(0)")
    for s in range(1, 8):
        a(f"v_add_f32 v16, v16, v{16+s}")
    a("v_cmp_gt_u32 vcc, 32, v1")
    a("s_and_saveexec_b64 s[38:39], vcc")
    a("buffer_store_dword v16, v6, s[8:11], s49 offen")
    a(f"s_branch {end}x")
    a(f"{end}:")
    a.stamp_flush(8)
    a(f"{end}x:")
    a("s_endpgm")
    a.desc(name, 128)
    return CSP2 + 1024


def gen_zero_flags(a):
    pass


def main():
    a = Asm()
    G.XF, G.QF, G.KVF = XFL[0], QFL[0], KVFL[0]
    G.FLAGS_ZERO = FLAGS
    lds_k0 = gen_K0(a)
    lds_f = gen_F(a, 0)
    gen_F(a, 1)
    hdr = ["; generated by gen/gen2.py -- fused MQA + FFN pipeline"]
    L = hdr.append
    L(f"; @launch kernel=k0_kernel grid=(256,1,1) block=(1024,1,1) lds={lds_k0}")
    L(f"; @launch kernel=f1_kernel grid=(256,1,1) block=(512,1,1) lds={lds_f}")
    L(f"; @launch kernel=f2_kernel grid=(256,1,1) block=(512,1,1) lds={lds_f}")
    out = "\n".join(hdr) + "\n"
    out += '.amdgcn_target "amdgcn-amd-amdhsa--gfx950"\n.text\n'
    out += "\n".join(a.L) + "\ncode_end:\n"
    out += '.section .rodata,"a"\n' + "\n".join(a.kernels) + "\n"
    path = sys.argv[1] if len(sys.argv) > 1 else f"cdna_kernels/{NAME}.s"
    open(path, 'w').write(out)
    if PROFILE:
        import json
        json.dump(G.PROF_SLOT, open('prof_slots.json', 'w'))
    print("wrote", path, len(out), "bytes")


if __name__ == "__main__":
    main()
```

```python
import os
import sys
import gen as G
from gen import Asm, vr, ar, f2u, half_sum, wave32_max, prologue, frag_loads
from gen import WQF, WOF, W1F, W2F, WKVF, CSQ, CS1, CSKV, VH, VU, KVT, KVF_BYTES, QS, EPS, NAME, PROFILE

LSTRIDE = 0x2000000
XFL = [0x500000, 0x500000 + LSTRIDE]
QFL = [0x700000, 0x700000 + LSTRIDE]
REUSE = int(os.environ.get('REUSE', '1'))
TOUCH = int(os.environ.get('TOUCH', '1'))
TOUCH2 = int(os.environ.get('TOUCH2', '1'))
_R = 0 if REUSE else LSTRIDE
OFL = [0x900000, 0x900000 + _R]
X1FL = [0xB00000, 0xB00000 + _R]
HFL = [0x1000000, 0x1000000 + _R]
KVFL = [0x1800000, 0x1800000 + LSTRIDE]
KNL = [0x1880000, 0x1880000 + LSTRIDE]
FLAGS = 0x490000
FL3 = FLAGS + 8192
G.WS_USED = 0x4400000
G.PROF = 0x4000000
G.KN = KNL[0]
SC = "sc0 sc1"
SCL = os.environ.get("SCL", "sc1")
SPIN_MAX = 200000
BMAX = float(os.environ.get('BMAX', '64'))

PRIO_IT = int(os.environ.get('PRIO_IT', '7'))
WARM = int(os.environ.get('WARM', '1'))
CODEPF = int(os.environ.get('CODEPF', '0'))
FAST = int(os.environ.get('FAST', '1'))
CZERO = int(os.environ.get('CZERO', '1'))


_uid = [0]
FSF = os.environ.get('FSF', '')


def hstore(a, insts):
    _uid[0] += 1
    u = _uid[0]
    a("s_cmp_lg_u32 s61, 0")
    a(f"s_cbranch_scc1 HS{u}_f")
    for i in insts:
        a(f"{i} {SC}")
    a(f"s_branch HS{u}_e")
    a(f"HS{u}_f:")
    for i in insts:
        a(i + (" " + FSF if 'dwordx4' in i else ""))
    a(f"HS{u}_e:")


def publish(a, epoch, tag):
    a("s_waitcnt vmcnt(0)")
    a("s_barrier")
    a("s_cmp_lg_u32 s3, 0")
    a(f"s_cbranch_scc1 {tag}_np")
    a(f"v_mov_b32 v5, {epoch}")
    a("v_mov_b32 v6, 0")
    a("v_cmp_eq_u32 vcc, 0, v1")
    a("s_and_saveexec_b64 s[38:39], vcc")
    hstore(a, ["buffer_store_dword v5, v6, s[8:11], s40 offen"])
    a("s_mov_b64 exec, s[38:39]")
    a(f"{tag}_np:")


def wait_flag(a, epoch, tag):
    a("v_mov_b32 v6, 0")
    a("s_mov_b32 s37, 0")
    a(f"{tag}_poll:")
    a(f"buffer_load_dword v5, v6, s[8:11], s41 offen {SC}")
    a("s_waitcnt vmcnt(0)")
    a("v_readfirstlane_b32 s36, v5")
    a("s_add_u32 s37, s37, 1")
    a(f"s_cmp_ge_u32 s36, {epoch}")
    a(f"s_cbranch_scc1 {tag}_go")
    a(f"s_cmp_gt_u32 s37, {SPIN_MAX}")
    a(f"s_cbranch_scc1 {tag}_go")
    a("s_sleep 1")
    a(f"s_branch {tag}_poll")
    a(f"{tag}_go:")


def ld(a, dst, sbase, idx, stmp, flags=""):
    hi, lo = idx // 4, idx % 4
    if hi == 0:
        so = f"s{sbase}"
    else:
        a(f"s_add_u32 s{stmp}, s{sbase}, {hi*4096}")
        so = f"s{stmp}"
    a(f"buffer_load_dwordx4 {dst}, v2, s[8:11], {so} offen offset:{lo*1024} {flags}")


def reduce8(a, ACC, DST, lds_base=0, pre_barrier=False):
    a("s_lshl_b32 s32, s3, 11")
    a("v_add_u32 v5, s32, v2")
    a("v_add_u32 v6, 0x10000, v5")
    a("s_lshl_b32 s32, s3, 14")
    a("v_add_u32 v7, s32, v2")
    a.nop(12)
    if pre_barrier:
        a("s_waitcnt lgkmcnt(0)")
        a("s_barrier")
    for p in range(8):
        for q in range(2):
            off = (p % 4) * 16384 + q * 1024
            a(f"ds_write_b128 v{5 if p < 4 else 6}, {vr(ACC+8*p+4*q,4)} offset:{off}")
    a("s_waitcnt lgkmcnt(0)")
    a("s_barrier")
    for s in range(8):
        for q in range(2):
            a(f"ds_read_b128 {vr(ACC+8*s+4*q,4)}, v7 offset:{s*2048+q*1024}")
    for s in range(0, 8, 2):
        a(f"s_waitcnt lgkmcnt({12-2*s})")
        for r in range(8):
            if s == 0:
                a(f"v_add_f32 v{DST+r}, v{ACC+r}, v{ACC+8+r}")
            else:
                a(f"v_add_f32 v{ACC+8*s+r}, v{ACC+8*s+r}, v{ACC+8*s+8+r}")
                a(f"v_add_f32 v{DST+r}, v{DST+r}, v{ACC+8*s+r}")


STATQ = 131072
KVS = STATQ + 8192
STAT2 = KVS + 16384
CSP = STAT2 + 256
CSP2 = CSP + 3072


def qkv_tail(a, T, end, QN, KVN, KNN, get_csq, get_csk, get_csv):
    a("s_lshl_b32 s32, s43, 3")
    a(f"s_add_u32 s32, s32, {STATQ}")
    a("v_add_u32 v7, s32, v2")
    for s in range(8):
        a(f"ds_read_b64 {vr(40+2*s,2)}, v7 offset:{s*1024}")
    a("s_waitcnt lgkmcnt(0)")
    for s in range(1, 8):
        a(f"v_add_f32 v40, v40, v{40+2*s}")
        a(f"v_add_f32 v41, v41, v{41+2*s}")
    half_sum(a, 40, 42)
    half_sum(a, 41, 42)
    a(f"v_mul_f32 v40, {f2u(1.0/512):#x}, v40")
    a(f"v_mul_f32 v41, {f2u(1.0/512):#x}, v41")
    a("v_fma_f32 v41, -v40, v40, v41")
    a("v_max_f32 v41, 0, v41")
    a(f"v_add_f32 v41, {f2u(EPS):#x}, v41")
    a("v_rsq_f32 v41, v41")
    a.nop(1)
    a("v_mul_f32 v42, v40, v41")
    a("v_sub_f32 v42, 0, v42")
    a(f"v_mul_f32 v43, {f2u(QS):#x}, v41")
    a(f"v_mul_f32 v44, {f2u(QS):#x}, v42")
    get_csq()
    for r in range(8):
        a(f"v_mul_f32 v{16+r}, v44, v{16+r}")
        a(f"v_fma_f32 v{8+r}, v{8+r}, v43, v{16+r}")
    for q in range(4):
        a(f"v_cvt_pk_bf16_f32 v{24+q}, v{8+2*q}, v{9+2*q}")
    a(f"s_add_u32 s23, s42, {QN:#x}")
    a("buffer_store_dwordx4 v[24:27], v2, s[8:11], s23 offen")
    a("s_cmp_ge_u32 s5, 6")
    a(f"s_cbranch_scc1 {end}")
    a("s_lshr_b32 s32, s5, 2")
    a("s_cmp_eq_u32 s5, 1")
    a("s_cselect_b32 s32, 1, s32")
    a("s_lshl_b32 s32, s32, 1")
    a("s_cmp_lg_u32 s3, s32")
    a(f"s_cbranch_scc1 {end}")
    a(f"v_add_u32 v7, {KVS}, v2")
    for s in range(8):
        for q in range(2):
            a(f"ds_read_b128 {vr(64+8*s+4*q,4)}, v7 offset:{s*2048+q*1024}")
    a(f"s_mul_i32 s33, s45, {KVT}")
    a(f"s_add_u32 s33, s33, {KVN:#x}")
    a("s_waitcnt lgkmcnt(0)")
    for s in range(1, 8):
        for r in range(8):
            a(f"v_add_f32 v{64+r}, v{64+r}, v{64+8*s+r}")
    a("s_cmp_ge_u32 s5, 2")
    a(f"s_cbranch_scc1 {T}_finV")
    a("v_mov_b32 v45, 0")
    get_csk()
    for r in range(8):
        a(f"v_mul_f32 v{16+r}, v42, v{16+r}")
        a(f"v_fma_f32 v{64+r}, v{64+r}, v41, v{16+r}")
        a(f"v_fma_f32 v45, v{64+r}, v{64+r}, v45")
    for q in range(4):
        a(f"v_cvt_pk_bf16_f32 v{28+q}, v{64+2*q}, v{65+2*q}")
    a("buffer_store_dwordx4 v[28:31], v2, s[8:11], s33 offen")
    half_sum(a, 45, 46)
    a("s_lshl_b32 s32, s45, 7")
    a(f"s_add_u32 s32, s32, {KNN:#x}")
    a("v_lshlrev_b32 v46, 2, v3")
    a("v_cmp_gt_u32 vcc, 32, v1")
    a("s_and_saveexec_b64 s[38:39], vcc")
    a("buffer_store_dword v45, v46, s[8:11], s32 offen")
    a(f"s_branch {end}")
    a(f"{T}_finV:")
    a("v_lshlrev_b32 v7, 2, v3")
    a(f"v_add_u32 v7, {STAT2}, v7")
    a("ds_write_b32 v7, v41")
    a("ds_write_b32 v7, v42 offset:128")
    a("s_and_b32 s32, s5, 1")
    a("s_lshl_b32 s32, s32, 6")
    a(f"s_add_u32 s32, s32, {STAT2}")
    a("v_lshlrev_b32 v7, 4, v4")
    a("v_add_u32 v7, s32, v7")
    get_csv()
    a("s_waitcnt lgkmcnt(0)")
    for q in range(2):
        a(f"ds_read_b128 {vr(16+4*q,4)}, v7 offset:{32*q}")
        a(f"ds_read_b128 {vr(24+4*q,4)}, v7 offset:{128+32*q}")
    a("s_waitcnt lgkmcnt(0)")
    for r in range(8):
        a(f"v_mul_f32 v{24+r}, v47, v{24+r}")
        a(f"v_fma_f32 v{64+r}, v{64+r}, v{16+r}, v{24+r}")
    for q in range(4):
        a(f"v_cvt_pk_bf16_f32 v{32+q}, v{64+2*q}, v{65+2*q}")
    a("v_cmp_eq_u32 s[38:39], 0, v3")
    a("v_mov_b32 v45, 0x3f803f80")
    a("v_mov_b32 v46, 0")
    a("v_cndmask_b32 v45, v46, v45, s[38:39]")
    a("v_cmp_le_u32 vcc, 16, v3")
    a("v_xor_b32 v7, 16, v3")
    a("v_lshlrev_b32 v7, 4, v7")
    for q in range(4):
        a(f"v_cndmask_b32 v{32+q}, v45, v{32+q}, vcc")
    a(f"v_mul_u32_u24 v46, {VH}, v4")
    a("v_add_u32 v7, v7, v46")
    a("s_and_b32 s32, s5, 1")
    a(f"s_mul_i32 s32, s32, {VU}")
    a("s_add_u32 s33, s33, s32")
    a("v_cmp_gt_u32 s[38:39], 2, v3")
    a("s_or_b64 vcc, vcc, s[38:39]")
    a("s_and_saveexec_b64 s[38:39], vcc")
    a("buffer_store_dwordx4 v[32:35], v7, s[8:11], s33 offen offset:1024")


def piece_sgprs(a):
    a("s_lshr_b32 s32, s3, 1")
    a("s_and_b32 s43, s32, 1")
    a("s_lshr_b32 s44, s3, 2")
    a("s_lshl_b32 s45, s4, 1")
    a("s_add_u32 s45, s45, s43")
    a("s_lshl_b32 s46, s5, 1")
    a("s_add_u32 s46, s46, s44")
    a("s_lshl_b32 s42, s45, 5")
    a("s_lshl_b32 s32, s46, 1")
    a("s_add_u32 s42, s42, s32")
    a("s_and_b32 s47, s3, 1")
    a("s_add_u32 s42, s42, s47")
    a("s_lshl_b32 s42, s42, 10")


def code_srd(a, d, tag):
    a(f"s_getpc_b64 s[{d}:{d+1}]")
    a(f"{tag}_pc:")
    a(f"s_add_u32 s{d}, s{d}, f1_kernel-{tag}_pc")
    a(f"s_addc_u32 s{d+1}, s{d+1}, {'-1' if tag != 'K0' else '0'}")
    a(f"s_mov_b32 s{d+2}, code_end-f1_kernel")
    a(f"s_mov_b32 s{d+3}, 0x00020000")


def gen_F(a, L):
    last = (L == 1)
    name = f"f{L+1}_kernel"
    T = f"F{L}"
    a.begin(name)
    end = f"{name}_end"
    prologue(a, end, out_ptr=True, out_off=(64 if last else 0))
    a.srd(16, 12, 2048 * 512 * 2)
    XF, QF, OF, X1F, HF, KVF, KN = XFL[L], QFL[L], OFL[L], X1FL[L], HFL[L], KVFL[L], KNL[L]
    EP = 4 * L
    SCR = KVF_BYTES
    KMX = SCR + 8 * 2304
    Q = (8, 12)
    C = 80
    O = (32, 48)
    S = (64, 80)
    P = (96, 104)
    E = 112
    KB = (128, 132)
    VB = (136, 144)
    a("s_and_b32 s20, s3, 3")
    a("s_lshr_b32 s30, s3, 2")
    a("s_and_b32 s21, s20, 1")
    a("s_lshl_b32 s21, s21, 1")
    a("s_lshl_b32 s22, s5, 2")
    a("s_add_u32 s21, s21, s22")
    a("s_lshr_b32 s22, s20, 1")
    a("s_lshl_b32 s23, s4, 1")
    a("s_add_u32 s22, s22, s23")
    a("s_lshl_b32 s22, s22, 5")
    a("s_add_u32 s22, s22, s21")
    a("s_add_u32 s23, s22, s30")
    a("s_xor_b32 s24, s30, 1")
    a("s_add_u32 s24, s22, s24")
    a("s_lshl_b32 s22, s23, 10")
    a("s_lshl_b32 s24, s24, 10")
    a(f"s_add_u32 s23, s22, {QF:#x}")
    a(f"s_add_u32 s24, s24, {QF:#x}")
    a(f"buffer_load_dwordx4 {vr(Q[0],4)}, v2, s[8:11], s23 offen")
    a(f"buffer_load_dwordx4 {vr(Q[1],4)}, v2, s[8:11], s24 offen")
    a("s_lshl_b32 s23, s3, 10")
    a(f"s_add_u32 s23, s23, {KN:#x}")
    a(f"buffer_load_dwordx4 {vr(E,4)}, v2, s[8:11], s23 offen")
    a("s_lshr_b32 s24, s3, 1")
    a("s_lshl_b32 s24, s24, 10")
    a("s_and_b32 s25, s3, 1")
    a(f"s_mul_i32 s25, s25, {32*KVT}")
    a("s_add_u32 s34, s24, s25")
    a(f"s_add_u32 s35, s34, {KVF:#x}")

    def dma():
        a("s_mov_b32 m0, s34")
        a("s_add_u32 s34, s34, 4096")
        a("buffer_load_dwordx4 v2, s[8:11], s35 offen lds")
        a("s_add_u32 s35, s35, 4096")
    for i in range(6):
        dma()
    a("s_lshl_b32 s40, s4, 8")
    a(f"s_add_u32 s40, s40, {FLAGS:#x}")
    a("s_lshl_b32 s41, s3, 2")
    a("s_add_u32 s41, s41, s40")
    a("s_lshl_b32 s32, s5, 2")
    a("s_add_u32 s40, s40, s32")
    piece_sgprs(a)
    a("s_getreg_b32 s61, hwreg(HW_REG_XCC_ID)")
    a("s_and_b32 s61, s61, 15")
    a("s_add_u32 s61, s61, 1")
    a("v_min_u32 v6, 17, v3")
    a("v_mov_b32 v5, 16")
    a("v_cmp_eq_u32 vcc, 20, v3")
    a(f"s_mul_i32 s25, s30, {32*KVT}")
    a.nop(1)
    a("v_cndmask_b32 v6, v6, v5, vcc")
    a("v_lshlrev_b32 v6, 4, v6")
    a(f"v_mul_u32_u24 v5, {VH}, v4")
    a("v_add3_u32 v158, v6, v5, 64")
    a("v_add_u32 v158, 960, v158")
    a("v_add_u32 v156, s25, v2")
    a("v_add_u32 v157, s25, v158")
    a("s_waitcnt vmcnt(6)")
    a("v_mov_b32 v5, 0")
    a("v_mov_b32 v6, 0")
    for q in range(4):
        a(f"v_dot2_f32_bf16 v5, v{Q[0]+q}, v{Q[0]+q}, v5")
        a(f"v_dot2_f32_bf16 v6, v{Q[1]+q}, v{Q[1]+q}, v6")
    a.nop(3)
    half_sum(a, 5, 154)
    half_sum(a, 6, 154)
    a("v_max_f32 v5, v5, v6")
    a(f"v_max3_f32 v7, v{E}, v{E+1}, v{E+2}")
    a(f"v_max_f32 v7, v7, v{E+3}")
    for off in (0x041F, 0x081F, 0x101F, 0x201F, 0x401F):
        a(f"ds_swizzle_b32 v6, v5 offset:{off:#x}")
        a(f"ds_swizzle_b32 v154, v7 offset:{off:#x}")
        a("s_waitcnt lgkmcnt(0)")
        a("v_max_f32 v5, v5, v6")
        a("v_max_f32 v7, v7, v154")
    half_sum(a, 7, 154, op="v_max_f32")
    a("v_readfirstlane_b32 s63, v5")
    a("s_lshl_b32 s23, s3, 2")
    a(f"s_add_u32 s23, s23, {KMX}")
    a("v_mov_b32 v6, s23")
    a("ds_write_b32 v6, v7")
    for r in range(16):
        a(f"v_mov_b32 v{O[0]+r}, 0")
        a(f"v_mov_b32 v{O[1]+r}, 0")
        a(f"v_mov_b32 v{E+r}, 0")
    for r in range(8):
        a(f"v_mov_b32 v{P[1]+r}, 0")
        a(f"v_mov_b32 v{VB[1]+r}, 0")
    a("s_lshl_b32 s32, s5, 1")
    a("s_lshl_b32 s48, s32, 5")
    a("s_lshl_b32 s33, s3, 2")
    a("s_add_u32 s48, s48, s33")
    a("s_lshl_b32 s48, s48, 10")
    a(f"s_add_u32 s48, s48, {WOF:#x}")
    a("s_add_u32 s49, s48, 32768")
    a("s_min_u32 s32, s3, 6")
    a("s_mul_i32 s51, s5, 7")
    a("s_add_u32 s51, s51, s32")
    a("s_lshl_b32 s50, s51, 15")
    a(f"s_add_u32 s50, s50, {W1F:#x}")
    a(f"s_add_u32 s52, s42, {XF:#x}")
    pf = []
    for i in range(4):
        pf.append((ar(8 * i, 4), 48, i))
        pf.append((ar(8 * i + 4, 4), 49, i))
    if last:
        pf.append((ar(32, 4), 52, 0))
    else:
        a("v_lshlrev_b32 v159, 10, v3")
        a("v_lshl_add_u32 v159, v4, 3, v159")
        a("s_lshl_b32 s52, s45, 15")
        a("s_lshl_b32 s32, s46, 6")
        a("s_add_u32 s52, s52, s32")
        a("s_lshl_b32 s32, s47, 5")
        a("s_add_u32 s52, s52, s32")
        pf.append(None)
    for i in range(15):
        pf.append((ar(36 + 4 * i, 4), 50, i))
    for i in range(4):
        pf.append((vr(16 + 4 * i, 4), 50, 23 + i))
    a("s_waitcnt vmcnt(0) lgkmcnt(0)")
    a("s_barrier")
    a.stamp(2)
    a(f"ds_read_b128 {vr(KB[0],4)}, v156")
    a(f"ds_read_b128 {vr(KB[1],4)}, v156 offset:{KVT}")
    a(f"ds_read_b128 {vr(VB[0],4)}, v157")
    a(f"ds_read_b128 {vr(VB[0]+4,4)}, v157 offset:{VU}")
    a("s_cmp_lt_u32 s3, 4")
    a(f"s_cbranch_scc1 {T}_noprio")
    a("s_setprio 1")
    a(f"{T}_noprio:")
    a("s_waitcnt lgkmcnt(3)")
    a(f"v_mfma_f32_32x32x16_bf16 {vr(S[0],16)}, {vr(KB[0],4)}, {vr(Q[0],4)}, {'0' if CZERO else vr(C,16)}")
    a.nop(10)
    UN, PV1, PV2, DLY, NE = 4, 3, 6, 2, 16

    def body(extra, slots=(1, 4, 5)):
        for t in range(UN):
            for x in range(2):
                y = 1 - x
                ty = t if x == 0 else t + 1
                tv = t - 1 if x == 0 else t
                for i in range(8):
                    if i == 0:
                        if x == 1:
                            a("s_waitcnt lgkmcnt(0)")
                        a(f"v_mfma_f32_32x32x16_bf16 {vr(S[y],16)}, {vr(KB[ty%2],4)}, {vr(Q[y],4)}, {'0' if CZERO else vr(C,16)}")
                        if x == 1:
                            a(f"ds_read_b128 {vr(KB[t%2],4)}, v156 offset:{(t+2)*KVT}")
                            a(f"ds_read_b128 {vr(VB[(t+1)%2],4)}, v157 offset:{(t+1)*KVT}")
                            a(f"ds_read_b128 {vr(VB[(t+1)%2]+4,4)}, v157 offset:{(t+1)*KVT+VU}")
                    e = E + (2 * i) % NE
                    a(f"v_exp_f32 v{e}, v{S[x]+2*i}")
                    a(f"v_exp_f32 v{e+1}, v{S[x]+2*i+1}")
                    j = i - DLY
                    if j >= 0:
                        ej = E + (2 * j) % NE
                        a(f"v_cvt_pk_bf16_f32 v{P[x]+j}, v{ej}, v{ej+1}")
                    else:
                        ej = E + (2 * (j + 8)) % NE
                        a(f"v_cvt_pk_bf16_f32 v{P[y]+j+8}, v{ej}, v{ej+1}")
                    if i == PV1:
                        a(f"v_mfma_f32_32x32x16_bf16 {vr(O[y],16)}, {vr(VB[tv%2],4)}, {vr(P[y],4)}, {vr(O[y],16)}")
                    if i == PV2:
                        a(f"v_mfma_f32_32x32x16_bf16 {vr(O[y],16)}, {vr(VB[tv%2]+4,4)}, {vr(P[y]+4,4)}, {vr(O[y],16)}")
                    if i in slots and extra:
                        extra.pop(0)()
                if t == UN - 1 and x == 1:
                    a(f"v_add_u32 v156, {UN*KVT}, v156")
                    a(f"v_add_u32 v157, {UN*KVT}, v157")
                    a("s_add_u32 s29, s29, 1")
                    a("s_cmp_lg_u32 s29, 8")

    a("s_mov_b32 s29, 0")
    body([dma] * 11)
    body([])
    a("s_waitcnt vmcnt(0)")
    a("s_barrier")
    def rawres():
        a("buffer_load_dwordx2 a[32:33], v159, s[16:19], s52 offen")
        a("buffer_load_dwordx2 a[34:35], v159, s[16:19], s52 offen offset:16")
    pfl = [(lambda e=e: ld(a, e[0], e[1], e[2], 33)) if e else rawres for e in pf]
    def xid():
        a("s_cmp_lg_u32 s3, 0")
        a(f"s_cbranch_scc1 {T}_noxid")
        a("v_mov_b32 v5, s61")
        a("v_mov_b32 v6, 0")
        a("s_mov_b64 exec, 1")
        a(f"buffer_store_dword v5, v6, s[8:11], s40 offen offset:{64+32*L} {SC}")
        a("s_mov_b64 exec, -1")
        a(f"{T}_noxid:")
    xid()
    body(pfl[0:10], (2, 6))
    body(pfl[10:20], (2, 6))
    tail = []
    if WARM:
        a("s_lshr_b32 s56, s4, 3")
        a("s_and_b32 s56, s56, 3")
        a("s_and_b32 s57, s56, 1")
        a("s_lshl_b32 s58, s5, 1")
        a("s_add_u32 s57, s57, s58")
        a("s_mul_i32 s57, s57, 112")
        a("s_mul_i32 s58, s3, 14")
        a("s_add_u32 s57, s57, s58")
        a("s_lshr_b32 s58, s56, 1")
        a("s_mul_i32 s58, s58, 7")
        a("s_add_u32 s57, s57, s58")
        a("s_lshl_b32 s57, s57, 10")
        a(f"s_add_u32 s57, s57, {W2F:#x}")
        a("s_lshl_b32 s58, s56, 12")
        a("s_add_u32 s58, s58, s50")
        a(f"s_add_u32 s58, s58, {15*1024}")
        a("s_and_b32 s59, s56, 1")
        a("s_lshl_b32 s59, s59, 15")
        a("s_lshr_b32 s60, s56, 1")
        a("s_lshl_b32 s60, s60, 11")
        a("s_add_u32 s59, s59, s60")
        a("s_add_u32 s59, s59, s48")
        a(f"s_add_u32 s59, s59, {(WQF - WOF) & 0xffffffff:#x}")
        for k, (n, sr) in enumerate(((56, 57), (40, 58), (16, 59))):
            if last and sr == 59:
                continue
            a(f"v_min_u32 v{152+k}, {n-1}, v1")
            a(f"v_lshlrev_b32 v{152+k}, 7, v{152+k}")
            tail.append(lambda k=k, sr=sr: a(f"buffer_load_dword v155, v{152+k}, s[8:11], s{sr} offen"))
    a("v_and_b32 v5, 7, v1")
    a("v_lshlrev_b32 v5, 2, v5")
    a("s_lshl_b32 s62, s4, 8")
    a(f"s_add_u32 s62, s62, {FLAGS:#x}")
    tail.append(lambda: a(f"buffer_load_dword v159, v5, s[8:11], s62 offen offset:{64+32*L} {SC}"))
    if TOUCH and (L == 0 or not REUSE):
        a(f"s_add_u32 s20, s22, {OF:#x}")
        a(f"s_add_u32 s21, s42, {X1F:#x}")
        a("s_lshl_b32 s23, s4, 1")
        a("s_mul_i32 s23, s23, 112")
        a("s_lshl_b32 s24, s51, 1")
        a("s_add_u32 s23, s23, s24")
        a("s_lshl_b32 s23, s23, 10")
        a(f"s_add_u32 s23, s23, {HF:#x}")
        a("s_add_u32 s24, s23, 1024")
        a(f"s_add_u32 s25, s23, {112*1024}")
        a("s_add_u32 s26, s25, 1024")
        a(f"s_add_u32 s27, s42, {XFL[1]:#x}")
        a(f"s_add_u32 s28, s42, {QFL[1]:#x}")
        a("v_mov_b32 v6, s20")
        for k, sr in enumerate((21, 23, 24, 25, 26, 27, 28)):
            a(f"v_mov_b32 v7, s{sr}")
            a(f"v_cmp_le_u32 vcc, {8*(k+1)}, v1")
            a.nop(2)
            a("v_cndmask_b32 v6, v6, v7, vcc")
        a("v_and_b32 v7, 7, v1")
        a("v_lshl_add_u32 v6, v7, 7, v6")
        tail.append(lambda: a("buffer_load_dword v7, v6, s[8:11], 0 offen"))
    if TOUCH2:
        if last:
            a("v_lshlrev_b32 v6, 10, v3")
            a("s_lshl_b32 s20, s45, 15")
            a("s_lshl_b32 s21, s46, 6")
            a("s_add_u32 s20, s20, s21")
            tail.append(lambda: a("buffer_load_dword v7, v6, s[16:19], s20 offen"))
        else:
            a(f"s_mul_i32 s31, s45, {KVT}")
            a(f"s_add_u32 s31, s31, {KVFL[1]:#x}")
            tail.append(lambda: a("buffer_load_dword v155, v154, s[8:11], s31 offen"))
    body(pfl[20:28] + tail, (1, 5))
    a(f"{T}_loop:")
    a(f"s_cmp_lg_u32 s29, {PRIO_IT}")
    a(f"s_cbranch_scc1 {T}_prio2")
    a("s_setprio 0")
    a(f"{T}_prio2:")
    body([])
    a(f"s_cbranch_scc1 {T}_loop")
    a("s_waitcnt vmcnt(0)")
    for j in range(8 - DLY, 8):
        ej = E + (2 * j) % NE
        a(f"v_cvt_pk_bf16_f32 v{P[1]+j}, v{ej}, v{ej+1}")
    a.nop(2)
    a(f"v_mfma_f32_32x32x16_bf16 {vr(O[1],16)}, {vr(VB[1],4)}, {vr(P[1],4)}, {vr(O[1],16)}")
    a(f"v_mfma_f32_32x32x16_bf16 {vr(O[1],16)}, {vr(VB[1]+4,4)}, {vr(P[1]+4,4)}, {vr(O[1],16)}")
    a("s_mul_i32 s25, s3, 2304")
    a(f"s_add_u32 s25, s25, {SCR}")
    a("v_add_u32 v5, s25, v2")
    a("v_lshlrev_b32 v6, 2, v1")
    a("v_add_u32 v6, s25, v6")
    a("s_xor_b32 s25, s3, 4")
    a("s_mul_i32 s25, s25, 2304")
    a(f"s_add_u32 s25, s25, {SCR}")
    a("v_add_u32 v7, s25, v2")
    a("s_waitcnt vmcnt(0)")
    a("s_mov_b32 s37, 0")
    a("v_and_b32 v153, 7, v1")
    a("v_lshlrev_b32 v153, 2, v153")
    a(f"{T}_xchk:")
    a("v_cmp_eq_u32 vcc, 0, v159")
    a("s_cmp_eq_u64 vcc, 0")
    a(f"s_cbranch_scc1 {T}_xok")
    a("s_add_u32 s37, s37, 1")
    a(f"s_cmp_gt_u32 s37, {SPIN_MAX}")
    a(f"s_cbranch_scc1 {T}_xok")
    a("s_sleep 1")
    a(f"buffer_load_dword v159, v153, s[8:11], s62 offen offset:{64+32*L} {SC}")
    a("s_waitcnt vmcnt(0)")
    a(f"s_branch {T}_xchk")
    a(f"{T}_xok:")
    a("v_cmp_ne_u32 vcc, s61, v159")
    a("s_cmp_eq_u64 vcc, 0")
    a(f"s_cselect_b32 s61, {FAST}, 0")
    a("v_lshlrev_b32 v154, 2, v1")
    a("v_add_u32 v154, s25, v154")
    a("s_waitcnt lgkmcnt(0)")
    a.nop(8)
    a(f"ds_write_b128 v5, {vr(O[1],4)}")
    a(f"ds_write_b128 v5, {vr(O[1]+4,4)} offset:1024")
    a(f"ds_write_b32 v6, v{O[1]+8} offset:2048")
    a("s_waitcnt lgkmcnt(0)")
    a("s_barrier")
    a(f"ds_read_b128 {vr(S[0],4)}, v7")
    a(f"ds_read_b128 {vr(S[0]+4,4)}, v7 offset:1024")
    a(f"ds_read_b32 v{S[0]+8}, v154 offset:2048")
    a(f"v_mov_b32 v5, {KMX}")
    a(f"ds_read_b128 {vr(S[1],4)}, v5")
    a(f"ds_read_b128 {vr(S[1]+4,4)}, v5 offset:16")
    a("s_waitcnt lgkmcnt(0)")
    for r in range(9):
        a(f"v_add_f32 v{O[0]+r}, v{O[0]+r}, v{S[0]+r}")
    a(f"v_max3_f32 v5, v{S[1]}, v{S[1]+1}, v{S[1]+2}")
    a(f"v_max3_f32 v5, v5, v{S[1]+3}, v{S[1]+4}")
    a(f"v_max3_f32 v5, v5, v{S[1]+5}, v{S[1]+6}")
    a(f"v_max_f32 v5, v5, v{S[1]+7}")
    a("v_mul_f32 v5, s63, v5")
    a(f"v_mov_b32 v6, {f2u(BMAX*BMAX):#x}")
    a("v_cmp_nle_f32 vcc, v5, v6")
    a("s_cmp_eq_u64 vcc, 0")
    a(f"s_cbranch_scc1 {T}_afin")
    a("v_mov_b32 v156, v2")
    a("v_mov_b32 v6, 0xff800000")
    a("s_mov_b32 s29, 64")
    a(f"{T}_fb:")
    a(f"ds_read_b128 {vr(KB[0],4)}, v156")
    a(f"v_add_u32 v156, {KVT}, v156")
    a("s_waitcnt lgkmcnt(0)")
    a(f"v_mfma_f32_32x32x16_bf16 {vr(S[0],16)}, {vr(KB[0],4)}, {vr(Q[0],4)}, 0")
    a.nop(16)
    for i in range(8):
        a(f"v_max3_f32 v6, v6, v{S[0]+2*i}, v{S[0]+2*i+1}")
    a("s_sub_u32 s29, s29, 1")
    a("s_cmp_lg_u32 s29, 0")
    a(f"s_cbranch_scc1 {T}_fb")
    half_sum(a, 6, 7, op="v_max_f32")
    a("v_sub_f32 v6, 0, v6")
    for r in range(16):
        a(f"v_mov_b32 v{C+r}, v6")
        a(f"v_mov_b32 v{O[0]+r}, 0")
    a("v_mov_b32 v156, v2")
    a("v_mov_b32 v157, v158")
    a("s_mov_b32 s29, 64")
    a(f"{T}_fb2:")
    a(f"ds_read_b128 {vr(KB[0],4)}, v156")
    a(f"ds_read_b128 {vr(VB[0],4)}, v157")
    a(f"ds_read_b128 {vr(VB[0]+4,4)}, v157 offset:{VU}")
    a(f"v_add_u32 v156, {KVT}, v156")
    a(f"v_add_u32 v157, {KVT}, v157")
    a("s_waitcnt lgkmcnt(0)")
    a(f"v_mfma_f32_32x32x16_bf16 {vr(S[0],16)}, {vr(KB[0],4)}, {vr(Q[0],4)}, {vr(C,16)}")
    a.nop(16)
    for i in range(16):
        a(f"v_exp_f32 v{S[0]+i}, v{S[0]+i}")
    a.nop(1)
    for i in range(8):
        a(f"v_cvt_pk_bf16_f32 v{P[0]+i}, v{S[0]+2*i}, v{S[0]+2*i+1}")
    a.nop(2)
    a(f"v_mfma_f32_32x32x16_bf16 {vr(O[0],16)}, {vr(VB[0],4)}, {vr(P[0],4)}, {vr(O[0],16)}")
    a(f"v_mfma_f32_32x32x16_bf16 {vr(O[0],16)}, {vr(VB[0]+4,4)}, {vr(P[0]+4,4)}, {vr(O[0],16)}")
    a.nop(16)
    a("s_sub_u32 s29, s29, 1")
    a("s_cmp_lg_u32 s29, 0")
    a(f"s_cbranch_scc1 {T}_fb2")
    a(f"{T}_afin:")
    a(f"v_rcp_f32 v6, v{O[0]+8}")
    a.nop(1)
    for r in range(8):
        a(f"v_mul_f32 v{O[0]+r}, v{O[0]+r}, v6")
    for q in range(4):
        a(f"v_cvt_pk_bf16_f32 v{S[0]+q}, v{O[0]+2*q}, v{O[0]+2*q+1}")
    a(f"s_add_u32 s23, s22, {OF:#x}")
    hstore(a, [f"buffer_store_dwordx4 {vr(S[0],4)}, v2, s[8:11], s23 offen"])
    a.stamp(3)
    publish(a, EP + 1, f"{T}_p1")
    a("s_lshl_b32 s20, s4, 6")
    a("s_lshl_b32 s21, s3, 2")
    a("s_add_u32 s20, s20, s21")
    a("s_lshl_b32 s53, s20, 10")
    a(f"s_add_u32 s20, s53, {OF:#x}")
    a("s_add_u32 s21, s20, 32768")
    for i in range(2):
        ld(a, vr(8 + 4 * i, 4), 50, 27 + i, 33)
    for i in range(3):
        ld(a, vr(144 + 4 * i, 4), 50, 29 + i, 33)
    wait_flag(a, EP + 1, f"{T}_w1")
    a.stamp(4)
    for i in range(4):
        ld(a, vr(32 + 8 * i, 4), 20, i, 33, SCL)
        ld(a, vr(36 + 8 * i, 4), 21, i, 33, SCL)
    ACC = 64
    for i in range(4):
        a(f"s_waitcnt vmcnt({2*(3-i)})")
        for c in range(2):
            for r in range(2):
                t = 2 * c + r
                cin = "0" if i == 0 else vr(ACC + 16 * t, 16)
                a(f"v_mfma_f32_32x32x16_bf16 {vr(ACC+16*t,16)}, {ar(8*i+4*c,4)}, {vr(32+8*i+4*r,4)}, {cin}")
    for i in range(8):
        ld(a, ar(4 * i, 4), 50, 15 + i, 33)
    reduce8(a, ACC, 128)
    for q in range(4):
        a(f"v_accvgpr_read_b32 v{136+q}, a{32+q}")
    for q in range(4):
        a(f"v_lshlrev_b32 v{140}, 16, v{136+q}")
        a(f"v_and_b32 v{141}, 0xffff0000, v{136+q}")
        a(f"v_add_f32 v{128+2*q}, v{128+2*q}, v140")
        a(f"v_add_f32 v{129+2*q}, v{129+2*q}, v141")
    for q in range(4):
        a(f"v_cvt_pk_bf16_f32 v{136+q}, v{128+2*q}, v{129+2*q}")
    a(f"s_add_u32 s23, s42, {X1F:#x}")
    hstore(a, ["buffer_store_dwordx4 v[136:139], v2, s[8:11], s23 offen"])
    for q in range(4):
        a(f"v_accvgpr_write_b32 a{32+q}, v{136+q}")
    a.stamp(5)
    publish(a, EP + 2, f"{T}_p2")
    a(f"s_add_u32 s20, s53, {X1F:#x}")
    a("s_add_u32 s21, s20, 32768")
    wait_flag(a, EP + 2, f"{T}_w2")
    a.stamp(6)
    for i in range(4):
        ld(a, vr(32 + 4 * i, 4), 20, i, 33, SCL)
    for i in range(4):
        ld(a, vr(48 + 4 * i, 4), 21, i, 33, SCL)
    a("v_lshlrev_b32 v7, 4, v4")
    a("s_lshl_b32 s27, s51, 7")
    a(f"s_add_u32 s27, s27, {CS1:#x}")
    for q in range(4):
        a(f"buffer_load_dwordx4 {vr(88+4*q,4)}, v7, s[8:11], s27 offen offset:{32*q}")
    STAT = 65536
    a("s_lshl_b32 s21, s3, 12")
    a("v_add_u32 v5, s21, v2")
    a("s_mov_b32 s28, 0x3f803f80")
    for r in range(8):
        a(f"v_mov_b32 v{80+r}, 0")
    for rr in range(2):
        a(f"s_waitcnt vmcnt({4+4*(1-rr)})")
        for i in range(4):
            a(f"ds_write_b128 v5, {vr(32+16*rr+4*i,4)} offset:{32768*rr+1024*i}")
        for i in range(16):
            x = 32 + 16 * rr + i
            k = 4 * (i % 2)
            a(f"v_dot2_f32_bf16 v{80+k+2*rr}, v{x}, s28, v{80+k+2*rr}")
            a(f"v_dot2_f32_bf16 v{81+k+2*rr}, v{x}, v{x}, v{81+k+2*rr}")
    a("s_lshl_b32 s21, s3, 10")
    a(f"s_add_u32 s21, s21, {STAT}")
    a("v_add_u32 v5, s21, v2")
    a.nop(2)
    for r in range(4):
        a(f"v_add_f32 v{80+r}, v{80+r}, v{84+r}")
    a("ds_write_b128 v5, v[80:83]")
    a("s_waitcnt lgkmcnt(0)")
    a("s_barrier")
    a.stamp(7)
    a("s_lshl_b32 s32, s5, 1")
    a("s_mul_i32 s54, s32, 112")
    a("s_mul_i32 s33, s3, 14")
    a("s_add_u32 s54, s54, s33")
    a("s_lshl_b32 s54, s54, 10")
    a(f"s_add_u32 s54, s54, {W2F:#x}")
    a(f"s_add_u32 s55, s54, {112*1024}")
    a("s_cmp_eq_u32 s3, 7")
    a(f"s_cbranch_scc1 {T}_cskip")
    CACC = 104

    def w1reg(i):
        if i < 15:
            return ar(36 + 4 * i, 4)
        if i < 23:
            return ar(4 * (i - 15), 4)
        if i < 27:
            return vr(16 + 4 * (i - 23), 4)
        if i < 29:
            return vr(8 + 4 * (i - 27), 4)
        return vr(144 + 4 * (i - 29), 4)

    CR = 6

    def rd(i):
        b = 32 + 8 * (i % CR)
        a(f"ds_read_b128 {vr(b,4)}, v2 offset:{i*1024}")
        a(f"ds_read_b128 {vr(b+4,4)}, v2 offset:{32768+i*1024}")
    def w2reg(j):
        if j < 23:
            return w1reg(j)
        return vr(136 + 4 * (j - 23), 4)
    for i in range(CR - 1):
        rd(i)
    for i in range(32):
        if i + CR - 1 < 32:
            rd(i + CR - 1)
        pend = min(32, i + CR) - i - 1
        a(f"s_waitcnt lgkmcnt({2*pend})")
        b = 32 + 8 * (i % CR)
        for r in range(2):
            cin = "0" if i == 0 else vr(CACC + 16 * r, 16)
            a(f"v_mfma_f32_32x32x16_bf16 {vr(CACC+16*r,16)}, {w1reg(i)}, {vr(b+4*r,4)}, {cin}")
        if 1 <= i <= 23:
            j = i - 1
            ld(a, w2reg(j), 54 + (j & 1), j >> 1, 33)
    a(f"s_branch {T}_cepi")
    a(f"{T}_cskip:")
    for j in range(23):
        ld(a, w2reg(j), 54 + (j & 1), j >> 1, 33)
    a(f"{T}_cepi:")
    a.stamp(8)
    a("s_cmp_eq_u32 s3, 7")
    a(f"s_cbranch_scc1 {T}_cdone")
    a(f"v_add_u32 v5, {STAT}, v2")
    for w in range(8):
        a(f"ds_read_b128 {vr(32+4*w,4)}, v5 offset:{1024*w}")
    a("s_waitcnt vmcnt(23) lgkmcnt(0)")
    for w in range(1, 8):
        for r in range(4):
            a(f"v_add_f32 v{32+r}, v{32+r}, v{32+4*w+r}")
    for r in range(4):
        half_sum(a, 32 + r, 36)
    for r in range(2):
        m, x2 = 32 + 2 * r, 33 + 2 * r
        a(f"v_mul_f32 v{m}, {f2u(1.0/512):#x}, v{m}")
        a(f"v_mul_f32 v{x2}, {f2u(1.0/512):#x}, v{x2}")
        a(f"v_fma_f32 v{x2}, -v{m}, v{m}, v{x2}")
        a(f"v_max_f32 v{x2}, 0, v{x2}")
        a(f"v_add_f32 v{x2}, {f2u(EPS):#x}, v{x2}")
        a(f"v_rsq_f32 v{8+2*r}, v{x2}")
        a.nop(1)
        a(f"v_mul_f32 v{9+2*r}, v{m}, v{8+2*r}")
        a(f"v_sub_f32 v{9+2*r}, 0, v{9+2*r}")
    for rr in range(2):
        for r in range(16):
            a(f"v_mul_f32 v{40+r}, v{9+2*rr}, v{88+r}")
            a(f"v_fma_f32 v{CACC+16*rr+r}, v{CACC+16*rr+r}, v{8+2*rr}, v{40+r}")
        for q in range(8):
            a(f"v_cvt_pk_bf16_f32 v{16+8*rr+q}, v{CACC+16*rr+2*q}, v{CACC+16*rr+2*q+1}")
        for q in range(8):
            a(f"v_pk_max_i16 v{16+8*rr+q}, v{16+8*rr+q}, 0")
    a("s_lshl_b32 s26, s4, 1")
    a("s_mul_i32 s26, s26, 112")
    a("s_lshl_b32 s27, s51, 1")
    a("s_add_u32 s26, s26, s27")
    a("s_lshl_b32 s26, s26, 10")
    a(f"s_add_u32 s26, s26, {HF:#x}")
    a(f"s_add_u32 s27, s26, {112*1024}")
    hstore(a, ["buffer_store_dwordx4 v[16:19], v2, s[8:11], s26 offen",
               "buffer_store_dwordx4 v[20:23], v2, s[8:11], s26 offen offset:1024",
               "buffer_store_dwordx4 v[24:27], v2, s[8:11], s27 offen",
               "buffer_store_dwordx4 v[28:31], v2, s[8:11], s27 offen offset:1024"])
    a(f"{T}_cdone:")
    a.stamp(9)
    publish(a, EP + 3, f"{T}_p3")
    a("s_lshl_b32 s20, s4, 1")
    a("s_mul_i32 s20, s20, 112")
    a("s_mul_i32 s21, s3, 14")
    a("s_add_u32 s20, s20, s21")
    a("s_lshl_b32 s20, s20, 10")
    a(f"s_add_u32 s20, s20, {HF:#x}")
    a(f"s_add_u32 s21, s20, {112*1024}")
    wait_flag(a, EP + 3, f"{T}_w3")
    a.stamp(10)
    RING = 8
    DACC = 72

    def hld(i):
        b = 8 + 8 * (i % RING)
        ld(a, vr(b, 4), 20, i, 33, SCL)
        ld(a, vr(b + 4, 4), 21, i, 33, SCL)
    for i in range(RING):
        hld(i)
    def qreg(j):
        return w1reg(j)
    qpf = []
    if not last:
        a(f"s_add_u32 s48, s48, {(WQF - WOF) & 0xffffffff:#x}")
        a("s_add_u32 s49, s48, 32768")
        a("s_lshl_b32 s56, s3, 12")
        a(f"s_add_u32 s56, s56, {WKVF:#x}")
        a("v_lshlrev_b32 v156, 4, v4")
        a("v_lshlrev_b32 v157, 2, v3")
        a("s_lshl_b32 s57, s46, 7")
        a("s_lshl_b32 s33, s47, 6")
        a("s_add_u32 s57, s57, s33")
        a(f"s_add_u32 s57, s57, {CSQ:#x}")
        a(f"s_mov_b32 s58, {CSKV:#x}")
        for i in range(4):
            qpf.append(lambda i=i: ld(a, qreg(2 * i), 48, i, 33))
            qpf.append(lambda i=i: ld(a, qreg(2 * i + 1), 49, i, 33))
        for i in range(4):
            qpf.append(lambda i=i: ld(a, qreg(8 + i), 56, i, 33))
        for q in range(2):
            qpf.append(lambda q=q: a(f"buffer_load_dwordx4 {qreg(12+q)}, v156, s[8:11], s57 offen offset:{32*q}"))
        for q in range(2):
            qpf.append(lambda q=q: a(f"buffer_load_dwordx4 {qreg(14+q)}, v156, s[8:11], s58 offen offset:{32*q}"))
        qpf.append(lambda: a("buffer_load_dword a4, v157, s[8:11], s58 offen"))
    for j in range(23, 28):
        ld(a, w2reg(j), 54 + (j & 1), j >> 1, 33)

    def dloop(split, qpf):
        order = [('h', i) for i in range(RING)] + [('w', j) for j in range(23, 28)]
        for i in range(14):
            pos = order.index(('h', i))
            after = sum(2 if k == 'h' else 1 for (k, _) in order[pos + 1:])
            a(f"s_waitcnt vmcnt({after})")
            b = 8 + 8 * (i % RING)
            for c in range(2):
                for r in range(2):
                    t = 2 * c + r
                    cin = "0" if i == 0 else vr(DACC + 16 * t, 16)
                    a(f"v_mfma_f32_32x32x16_bf16 {vr(DACC+16*t,16)}, {w2reg(2*i+c)}, {vr(b+4*r,4)}, {cin}")
            if not split and i + RING < 14:
                hld(i + RING)
                order.append(('h', i + RING))
            elif split and i == RING - 1:
                poll3(0x70, f"{T}_w3b")
                for j in range(RING, 14):
                    hld(j)
                    order.append(('h', j))
            if i + RING >= 14 and (not split or i >= RING - 1):
                for _ in range(3):
                    k = sum(1 for (kk, _) in order if kk == 'q')
                    if qpf and k < 2 * i:
                        qpf.pop(0)()
                        order.append(('q', k))
        assert not qpf
    dloop(False, list(qpf))
    qpf = []
    a.stamp(11)
    assert not qpf
    reduce8(a, DACC, 8)
    for q in range(4):
        a(f"v_accvgpr_read_b32 v{16+q}, a{32+q}")
    for q in range(4):
        a(f"v_lshlrev_b32 v20, 16, v{16+q}")
        a(f"v_and_b32 v21, 0xffff0000, v{16+q}")
        a(f"v_add_f32 v{8+2*q}, v{8+2*q}, v20")
        a(f"v_add_f32 v{9+2*q}, v{9+2*q}, v21")
    for q in range(4):
        a(f"v_cvt_pk_bf16_f32 v{16+q}, v{8+2*q}, v{9+2*q}")
    if last:
        a.nop(2)
        a("v_permlane32_swap_b32 v16, v18")
        a("v_permlane32_swap_b32 v17, v19")
        a("v_lshlrev_b32 v5, 10, v3")
        a("v_lshl_add_u32 v5, v4, 4, v5")
        a("s_lshl_b32 s31, s45, 15")
        a("s_lshl_b32 s32, s46, 6")
        a("s_add_u32 s31, s31, s32")
        a("s_lshl_b32 s32, s47, 5")
        a("s_add_u32 s31, s31, s32")
        a("buffer_store_dwordx4 v[16:19], v5, s[16:19], s31 offen")
        a.stamp(12)
    else:
        XN, QN, KVN, KNN = XFL[1], QFL[1], KVFL[1], KNL[1]
        a(f"s_add_u32 s23, s42, {XN:#x}")
        hstore(a, ["buffer_store_dwordx4 v[16:19], v2, s[8:11], s23 offen"])
        a.stamp(12)
        publish(a, EP + 4, f"{T}_p4")
        a(f"s_add_u32 s20, s53, {XN:#x}")
        a("s_add_u32 s21, s20, 32768")
        a("s_mov_b32 s28, 0x3f803f80")
        wait_flag(a, EP + 4, f"{T}_w4")
        a.stamp(13)
        for i in range(4):
            ld(a, vr(8 + 8 * i, 4), 20, i, 33, SCL)
            ld(a, vr(12 + 8 * i, 4), 21, i, 33, SCL)
        for r in range(8):
            a(f"v_mov_b32 v{40+r}, 0")
        ACC = 64
        for i in range(4):
            a(f"s_waitcnt vmcnt({2*(3-i)})")
            for c in range(2):
                for r in range(2):
                    t = 2 * c + r
                    cin = "0" if i == 0 else vr(ACC + 16 * t, 16)
                    a(f"v_mfma_f32_32x32x16_bf16 {vr(ACC+16*t,16)}, {qreg(2*i+c)}, {vr(8+8*i+4*r,4)}, {cin}")
                    for q in range(4):
                        x = 8 + 8 * i + 4 * r + q
                        k = 40 + 4 * (q % 2) + 2 * r + c
                        if c == 0:
                            a(f"v_dot2_f32_bf16 v{k}, v{x}, s28, v{k}")
                        else:
                            a(f"v_dot2_f32_bf16 v{k}, v{x}, v{x}, v{k}")
        a("s_lshl_b32 s32, s3, 11")
        a(f"s_add_u32 s32, s32, {KVS}")
        a("v_add_u32 v7, s32, v2")
        a("s_cmp_ge_u32 s5, 6")
        a(f"s_cbranch_scc1 {T}_kvdone")
        for task in range(6):
            if task < 5:
                a(f"s_cmp_lg_u32 s5, {task}")
                a(f"s_cbranch_scc1 {T}_kvt{task+1}")
            kind = 'K' if task < 2 else 'V'
            r = task if task < 2 else (task - 2) >> 1
            u = 0 if task < 2 else (task & 1)
            for i in range(4):
                cin = "0" if i == 0 else vr(128, 16)
                if kind == 'K':
                    a(f"v_mfma_f32_32x32x16_bf16 {vr(128,16)}, {qreg(8+i)}, {vr(8+8*i+4*r,4)}, {cin}")
                else:
                    a(f"v_mfma_f32_32x32x16_bf16 {vr(128,16)}, {vr(8+8*i+4*r,4)}, {qreg(8+i)}, {cin}")
            a.nop(16)
            a(f"ds_write_b128 v7, {vr(128+8*u,4)}")
            a(f"ds_write_b128 v7, {vr(132+8*u,4)} offset:1024")
            if task < 5:
                a(f"s_branch {T}_kvdone")
                a(f"{T}_kvt{task+1}:")
        a(f"{T}_kvdone:")
        a("s_lshl_b32 s32, s3, 10")
        a(f"s_add_u32 s32, s32, {STATQ}")
        a("v_add_u32 v7, s32, v2")
        for r in range(4):
            a(f"v_add_f32 v{40+r}, v{40+r}, v{44+r}")
        a("ds_write_b128 v7, v[40:43]")
        reduce8(a, ACC, 8)
        a.stamp(14)
        qkv_tail(a, T, end, QN, KVN, KNN,
                 lambda: [a(f"v_accvgpr_read_b32 v{16+r}, a{84+r}") for r in range(8)],
                 lambda: [a(f"v_accvgpr_read_b32 v{16+r}, a{92+r if r < 4 else r-4}") for r in range(8)],
                 lambda: a("v_accvgpr_read_b32 v47, a4"))
    a(f"{end}:")
    a.stamp_flush(16)
    a(f"{end}x:")
    a("s_endpgm")
    a.desc(name, 160, agpr=96)
    return SCR + 8 * 2304 + 64


def tr_addr(a, dst, RS, t1, t2):
    a(f"v_lshrrev_b32 v{t1}, 5, v1")
    a(f"v_lshlrev_b32 v{t1}, 2, v{t1}")
    a(f"v_bfe_u32 v{t2}, v1, 2, 2")
    a(f"v_add_u32 v{t1}, v{t1}, v{t2}")
    a(f"v_mul_u32_u24 v{dst}, {RS}, v{t1}")
    a(f"v_bfe_u32 v{t1}, v1, 4, 1")
    a(f"v_lshlrev_b32 v{t1}, 5, v{t1}")
    a(f"v_and_b32 v{t2}, 3, v1")
    a(f"v_lshlrev_b32 v{t2}, 3, v{t2}")
    a(f"v_add3_u32 v{dst}, v{dst}, v{t1}, v{t2}")


def gen_K0(a):
    name = "k0_kernel"
    T = "K0"
    a.begin(name)
    end = f"{name}_end"
    XS = 65536
    KVW = 131072
    ST = KVW + 16384
    CSW = ST + 512
    CSP2 = CSW + 1024
    a("s_cmp_ge_u32 s2, 256")
    a(f"s_cbranch_scc1 {end}x")
    a.stamp(0)
    a("s_load_dwordx16 s[16:31], s[0:1], 0")
    a("s_load_dwordx2 s[6:7], s[0:1], 80")
    a("v_and_b32 v1, 63, v0")
    a("v_lshrrev_b32 v2, 6, v0")
    a("v_and_b32 v3, 31, v1")
    a("v_readfirstlane_b32 s60, v2")
    a("v_lshrrev_b32 v4, 5, v1")
    a("v_lshlrev_b32 v2, 4, v1")
    a("s_and_b32 s4, s2, 31")
    a("s_lshr_b32 s5, s2, 5")
    a("s_and_b32 s3, s60, 7")
    a("s_mov_b32 s61, 0x3f803f80")
    a("s_waitcnt lgkmcnt(0)")
    a.srd(8, 6, G.WS_USED)
    a("s_cmp_ge_u32 s60, 8")
    a("s_cbranch_scc1 K0_prep")
    a.stamp(1)
    a.srd(12, 16, 2048 * 512 * 2)
    a.srd(48, 18, 512 * 512 * 2)
    a("s_lshl_b32 s32, s4, 16")
    a("s_lshl_b32 s33, s3, 13")
    a("s_add_u32 s32, s32, s33")
    a(f"s_add_u32 s33, s33, {XS}")
    a("s_and_b32 s35, s3, 1")
    a("s_lshl_b32 s35, s35, 7")
    a("v_xor_b32 v7, s35, v2")
    for i in range(8):
        a(f"v_xor_b32 v5, {i<<4}, v7")
        a(f"s_add_u32 m0, s33, {1024*i}")
        a(f"s_add_u32 s34, s32, {1024*i}")
        a("buffer_load_dwordx4 v5, s[12:15], s34 offen lds")
    a("v_lshrrev_b32 v6, 3, v1")
    a("v_lshlrev_b32 v6, 10, v6")
    a("v_and_b32 v7, 7, v1")
    a("v_lshl_add_u32 v6, v7, 4, v6")
    a("s_lshl_b32 s32, s3, 16")
    a("s_lshl_b32 s33, s5, 7")
    a("s_add_u32 s32, s32, s33")
    a("s_lshl_b32 s33, s3, 13")
    for i in range(8):
        a(f"s_add_u32 m0, s33, {1024*i}")
        a(f"s_add_u32 s34, s32, {8192*i}")
        a("buffer_load_dwordx4 v6, s[48:51], s34 offen lds")
    a("s_cmp_ge_u32 s5, 2")
    a("s_cbranch_scc1 K0_nokv")
    a("s_cmp_eq_u32 s5, 0")
    a("s_cselect_b32 s52, s20, s22")
    a("s_cselect_b32 s53, s21, s23")
    a(f"s_mov_b32 s54, {512*16*2}")
    a("s_mov_b32 s55, 0x00020000")
    a("s_lshl_b32 s32, s3, 11")
    a(f"s_add_u32 m0, s32, {KVW}")
    a("s_nop 0")
    a("buffer_load_dwordx4 v2, s[52:55], s32 offen lds")
    a("buffer_load_dwordx4 v2, s[52:55], s32 offen offset:1024 lds")
    a("K0_nokv:")
    a.stamp(2)
    a("s_and_b32 s43, s3, 1")
    a("s_lshr_b32 s44, s3, 1")
    a("s_lshl_b32 s45, s4, 1")
    a("s_add_u32 s45, s45, s43")
    a("s_lshl_b32 s46, s5, 1")
    a("s_add_u32 s46, s46, s44")
    a("s_lshl_b32 s42, s45, 5")
    a("s_lshl_b32 s32, s46, 1")
    a("s_add_u32 s42, s42, s32")
    a("s_lshl_b32 s42, s42, 10")
    a(f"s_add_u32 s42, s42, {QFL[0]:#x}")
    a(f"s_mul_i32 s47, s45, {KVT}")
    a(f"s_add_u32 s47, s47, {KVFL[0]:#x}")
    if TOUCH2:
        a("s_cmp_lt_u32 s3, 4")
        a("s_cselect_b32 s32, s42, s47")
        a("v_min_u32 v5, 16, v1")
        a("v_lshlrev_b32 v5, 7, v5")
        a("buffer_load_dword v0, v5, s[8:11], s32 offen")
    a("v_and_b32 v5, 15, v3")
    a("v_xor_b32 v5, v5, v4")
    a("v_lshlrev_b32 v5, 4, v5")
    a("v_lshl_add_u32 v5, v3, 10, v5")
    a("s_lshl_b32 s32, s43, 15")
    a(f"s_add_u32 s32, s32, {XS}")
    a("v_add_u32 v5, s32, v5")
    for c in range(8):
        a(f"v_xor_b32 v{120+c}, {c<<5}, v5")
    tr_addr(a, 118, 128, 5, 6)
    a("v_lshl_add_u32 v118, v4, 9, v118")
    a("s_lshl_b32 s32, s44, 6")
    a("v_add_u32 v118, s32, v118")
    a("v_lshlrev_b32 v5, 3, v4")
    a("v_bfe_u32 v6, v1, 2, 2")
    a("v_add_u32 v5, v5, v6")
    a("v_lshlrev_b32 v5, 5, v5")
    a("v_and_b32 v6, 3, v1")
    a("v_lshl_add_u32 v5, v6, 3, v5")
    a(f"v_add_u32 v119, {KVW}, v5")
    for r in range(8):
        a(f"v_mov_b32 v{8+r}, 0")
    a(f"s_waitcnt vmcnt({TOUCH2})")
    a("s_barrier")
    a.stamp(3)
    NB = 6
    XB, WB, ACC = 16, 40, 96

    def xrd(i):
        b = XB + 4 * (i % NB)
        a(f"ds_read_b128 {vr(b,4)}, v{120+(i%8)} offset:{(i//8)*256}")

    def gemm(wbase, RS, swapped):
        def wrd(i):
            b = WB + 4 * (i % NB)
            a(f"ds_read_b64_tr_b16 {vr(b,2)}, v{wbase} offset:{16*i*RS}")
            a(f"ds_read_b64_tr_b16 {vr(b+2,2)}, v{wbase} offset:{(16*i+4)*RS}")
        for i in range(NB - 1):
            xrd(i)
            wrd(i)
        for i in range(32):
            if i + NB - 1 < 32:
                xrd(i + NB - 1)
                wrd(i + NB - 1)
            pend = min(32, i + NB) - i - 1
            a(f"s_waitcnt lgkmcnt({3*pend})")
            xb, wb = XB + 4 * (i % NB), WB + 4 * (i % NB)
            cin = "0" if i == 0 else vr(ACC, 16)
            if swapped:
                a(f"v_mfma_f32_32x32x16_bf16 {vr(ACC,16)}, {vr(xb,4)}, {vr(wb,4)}, {cin}")
            else:
                a(f"v_mfma_f32_32x32x16_bf16 {vr(ACC,16)}, {vr(wb,4)}, {vr(xb,4)}, {cin}")
            for q in range(4):
                a(f"v_dot2_f32_bf16 v{8+q}, v{wb+q}, s61, v{8+q}")
        a.nop(3)
        a("v_add_f32 v8, v8, v9")
        a("v_add_f32 v10, v10, v11")
        a("v_add_f32 v8, v8, v10")
        half_sum(a, 8, 9)

    def cs_regs(n):
        a("s_lshl_b32 s32, s3, 7")
        a(f"s_add_u32 s32, s32, {CSW}")
        a("v_lshlrev_b32 v5, 2, v3")
        a("v_add_u32 v5, s32, v5")
        a("ds_write_b32 v5, v8")
        a("v_lshlrev_b32 v5, 4, v4")
        a("v_add_u32 v5, s32, v5")
        for q in range(n // 4):
            a(f"ds_read_b128 {vr(64+4*q,4)}, v5 offset:{32*q}")

    def row_stats():
        a("s_lshl_b32 s32, s43, 8")
        a(f"s_add_u32 s32, s32, {ST}")
        a("v_lshlrev_b32 v5, 2, v3")
        a("v_add_u32 v5, s32, v5")
        a("ds_read_b32 v12, v5")
        a("ds_read_b32 v13, v5 offset:128")
        a("s_waitcnt lgkmcnt(0)")

    a("s_cmp_ge_u32 s3, 6")
    a("s_cbranch_scc1 K0_stats")
    a("s_cmp_ge_u32 s3, 4")
    a("s_cbranch_scc1 K0_kv")
    gemm(118, 128, False)
    cs_regs(16)
    a("s_waitcnt lgkmcnt(0)")
    a.stamp(4)
    a("s_barrier")
    a.stamp(5)
    row_stats()
    a(f"v_mul_f32 v12, {f2u(QS):#x}, v12")
    a(f"v_mul_f32 v13, {f2u(QS):#x}, v13")
    for r in range(16):
        a(f"v_mul_f32 v{64+r}, v13, v{64+r}")
        a(f"v_fma_f32 v{ACC+r}, v{ACC+r}, v12, v{64+r}")
    for q in range(8):
        a(f"v_cvt_pk_bf16_f32 v{16+q}, v{ACC+2*q}, v{ACC+2*q+1}")
    a("buffer_store_dwordx4 v[16:19], v2, s[8:11], s42 offen")
    a("buffer_store_dwordx4 v[20:23], v2, s[8:11], s42 offen offset:1024")
    a(f"s_branch {end}")
    a("K0_kv:")
    a("s_cmp_ge_u32 s5, 2")
    a(f"s_cbranch_scc1 {end}x")
    a("s_cmp_eq_u32 s5, 1")
    a("s_cbranch_scc1 K0_v")
    gemm(119, 32, False)
    cs_regs(8)
    a("s_waitcnt lgkmcnt(0)")
    a("s_barrier")
    row_stats()
    a("v_mov_b32 v14, 0")
    for r in range(8):
        a(f"v_mul_f32 v{64+r}, v13, v{64+r}")
        a(f"v_fma_f32 v{ACC+r}, v{ACC+r}, v12, v{64+r}")
        a(f"v_fma_f32 v14, v{ACC+r}, v{ACC+r}, v14")
    for q in range(4):
        a(f"v_cvt_pk_bf16_f32 v{16+q}, v{ACC+2*q}, v{ACC+2*q+1}")
    a("buffer_store_dwordx4 v[16:19], v2, s[8:11], s47 offen")
    half_sum(a, 14, 15)
    a("s_lshl_b32 s32, s45, 7")
    a(f"s_add_u32 s32, s32, {KNL[0]:#x}")
    a("v_lshlrev_b32 v15, 2, v3")
    a("v_cmp_gt_u32 vcc, 32, v1")
    a("s_and_saveexec_b64 s[38:39], vcc")
    a("buffer_store_dword v14, v15, s[8:11], s32 offen")
    a(f"s_branch {end}")
    a("K0_v:")
    gemm(119, 32, True)
    a("s_barrier")
    a("s_lshl_b32 s32, s43, 8")
    a(f"s_add_u32 s32, s32, {ST}")
    a("v_lshlrev_b32 v5, 4, v4")
    a("v_add_u32 v5, s32, v5")
    for q in range(4):
        a(f"ds_read_b128 {vr(64+4*q,4)}, v5 offset:{32*q}")
        a(f"ds_read_b128 {vr(80+4*q,4)}, v5 offset:{128+32*q}")
    a("s_waitcnt lgkmcnt(0)")
    for r in range(16):
        a(f"v_mul_f32 v{80+r}, v8, v{80+r}")
        a(f"v_fma_f32 v{ACC+r}, v{ACC+r}, v{64+r}, v{80+r}")
    for q in range(8):
        a(f"v_cvt_pk_bf16_f32 v{16+q}, v{ACC+2*q}, v{ACC+2*q+1}")
    a("v_cmp_eq_u32 s[38:39], 16, v3")
    a("v_mov_b32 v14, 0x3f803f80")
    a("v_mov_b32 v15, 0")
    a("v_cndmask_b32 v14, v15, v14, s[38:39]")
    a("v_cmp_gt_u32 vcc, 16, v3")
    a("v_lshlrev_b32 v5, 4, v3")
    a(f"v_mul_u32_u24 v15, {VH}, v4")
    for q in range(8):
        a(f"v_cndmask_b32 v{16+q}, v14, v{16+q}, vcc")
    a("v_add_u32 v5, v5, v15")
    a("v_cmp_gt_u32 vcc, 18, v3")
    a("s_and_saveexec_b64 s[38:39], vcc")
    a("buffer_store_dwordx4 v[16:19], v5, s[8:11], s47 offen offset:1024")
    a(f"buffer_store_dwordx4 v[20:23], v5, s[8:11], s47 offen offset:{1024+VU}")
    a(f"s_branch {end}")
    a("K0_stats:")
    for blk in range(4):
        for i in range(8):
            k = blk * 8 + i
            b = 16 + 4 * i
            a(f"ds_read_b128 {vr(b,4)}, v{120+(k%8)} offset:{(k//8)*256}")
        for i in range(8):
            a(f"s_waitcnt lgkmcnt({7-i})")
            for q in range(4):
                x = 16 + 4 * i + q
                a(f"v_dot2_f32_bf16 v{8+q}, v{x}, s61, v{8+q}")
                a(f"v_dot2_f32_bf16 v{12+q}, v{x}, v{x}, v{12+q}")
    a.nop(3)
    for b in (8, 12):
        a(f"v_add_f32 v{b}, v{b}, v{b+1}")
        a(f"v_add_f32 v{b+2}, v{b+2}, v{b+3}")
        a(f"v_add_f32 v{b}, v{b}, v{b+2}")
    half_sum(a, 8, 9)
    half_sum(a, 12, 9)
    a(f"v_mul_f32 v8, {f2u(1.0/512):#x}, v8")
    a(f"v_mul_f32 v12, {f2u(1.0/512):#x}, v12")
    a("v_fma_f32 v12, -v8, v8, v12")
    a("v_max_f32 v12, 0, v12")
    a(f"v_add_f32 v12, {f2u(EPS):#x}, v12")
    a("v_rsq_f32 v12, v12")
    a.nop(1)
    a("v_mul_f32 v13, v8, v12")
    a("v_sub_f32 v13, 0, v13")
    a("s_lshl_b32 s32, s43, 8")
    a(f"s_add_u32 s32, s32, {ST}")
    a("v_lshlrev_b32 v5, 2, v3")
    a("v_add_u32 v5, s32, v5")
    a("ds_write_b32 v5, v12")
    a("ds_write_b32 v5, v13 offset:128")
    a("s_waitcnt lgkmcnt(0)")
    a("s_barrier")
    a(f"s_branch {end}x")
    a("K0_prep:")
    a("s_sub_u32 s63, 255, s2")
    a.srd(52, 20, 512 * 16 * 2)
    a.srd(56, 22, 512 * 16 * 2)
    a("s_cmp_lt_u32 s63, 154")
    a("s_cbranch_scc1 K0_ptask")
    a("K0_pidle:")
    a(f"s_branch {end}x")
    a("K0_ptask:")
    a("s_cmp_lg_u32 s63, 153")
    a("s_cbranch_scc1 K0_pw")
    a("s_lshl_b32 s32, s3, 11")
    a(f"s_add_u32 s32, s32, {FLAGS:#x}")
    for r in range(4):
        a(f"v_mov_b32 v{16+r}, 0")
    a("buffer_store_dwordx4 v[16:19], v2, s[8:11], s32 offen")
    a("buffer_store_dwordx4 v[16:19], v2, s[8:11], s32 offen offset:1024")
    a("s_branch K0_pidle")
    a("K0_pw:")
    a("s_mov_b32 s46, 0")
    a("s_mov_b32 s36, 32")
    a("s_cmp_eq_u32 s63, 152")
    a("s_cbranch_scc1 K0_pkv")
    a("s_cmp_ge_u32 s63, 88")
    a("s_cbranch_scc1 K0_pw2")
    a("s_cmp_ge_u32 s63, 32")
    a("s_cbranch_scc1 K0_pw1")
    a("s_cmp_ge_u32 s63, 16")
    a("s_cbranch_scc1 K0_pwo")
    a.srd(40, 18, 512 * 512 * 2)
    a("s_mov_b32 s44, 1024")
    a("s_mov_b32 s45, s63")
    a("s_lshl_b32 s47, s45, 15")
    a(f"s_add_u32 s47, s47, {WQF:#x}")
    a("s_lshl_b32 s49, s45, 7")
    a(f"s_add_u32 s49, s49, {CSQ:#x}")
    a("s_branch K0_pgo")
    a("K0_pwo:")
    a.srd(40, 24, 512 * 512 * 2)
    a("s_mov_b32 s44, 1024")
    a("s_sub_u32 s45, s63, 16")
    a("s_lshl_b32 s47, s45, 15")
    a(f"s_add_u32 s47, s47, {WOF:#x}")
    a("s_mov_b32 s49, 0")
    a("s_branch K0_pgo")
    a("K0_pw1:")
    a.srd(40, 28, 512 * 1792 * 2)
    a("s_mov_b32 s44, 3584")
    a("s_sub_u32 s45, s63, 32")
    a("s_lshl_b32 s47, s45, 15")
    a(f"s_add_u32 s47, s47, {W1F:#x}")
    a("s_lshl_b32 s49, s45, 7")
    a(f"s_add_u32 s49, s49, {CS1:#x}")
    a("s_branch K0_pgo")
    a("K0_pw2:")
    a.srd(40, 30, 512 * 1792 * 2)
    a("s_mov_b32 s44, 1024")
    a("s_sub_u32 s45, s63, 88")
    a("s_and_b32 s46, s45, 3")
    a("s_mul_i32 s46, s46, 28")
    a("s_lshr_b32 s45, s45, 2")
    a("s_mul_i32 s47, s45, 112")
    a("s_add_u32 s47, s47, s46")
    a("s_lshl_b32 s47, s47, 10")
    a(f"s_add_u32 s47, s47, {W2F:#x}")
    a("s_mov_b32 s36, 28")
    a("s_mov_b32 s49, 0")
    a("K0_pgo:")
    a("s_lshl_b32 s50, s3, 2")
    a("s_cmp_ge_u32 s50, s36")
    a(f"s_cbranch_scc1 {end}x")
    a("v_lshrrev_b32 v5, 2, v1")
    a("v_mul_lo_u32 v5, v5, s44")
    a("v_and_b32 v6, 3, v1")
    a("v_lshl_add_u32 v5, v6, 4, v5")
    a("s_add_u32 s51, s46, s50")
    a("s_lshl_b32 s51, s51, 4")
    a("s_mul_i32 s51, s51, s44")
    a("s_lshl_b32 s32, s45, 6")
    a("s_add_u32 s51, s51, s32")
    a("s_lshl_b32 s33, s44, 4")
    for i in range(4):
        a(f"buffer_load_dwordx4 {vr(32+4*i,4)}, v5, s[40:43], s51 offen")
        a("s_add_u32 s51, s51, s33")
    a("s_branch K0_ptr")
    a("K0_pkv:")
    a("s_lshl_b32 s50, s3, 2")
    a("v_lshrrev_b32 v7, 2, v1")
    a("v_lshlrev_b32 v7, 5, v7")
    a("v_and_b32 v5, 1, v1")
    a("v_lshl_add_u32 v7, v5, 4, v7")
    a("v_and_b32 v5, 2, v1")
    a("v_cmp_eq_u32 vcc, 0, v5")
    a("s_lshl_b32 s20, s3, 11")
    a("s_and_saveexec_b64 s[38:39], vcc")
    for i in range(4):
        a(f"buffer_load_dwordx4 {vr(32+4*i,4)}, v7, s[52:55], s20 offen offset:{512*i}")
    a("s_andn2_b64 exec, s[38:39], exec")
    for i in range(4):
        a(f"buffer_load_dwordx4 {vr(32+4*i,4)}, v7, s[56:59], s20 offen offset:{512*i}")
    a("s_mov_b64 exec, s[38:39]")
    a(f"s_mov_b32 s47, {WKVF:#x}")
    a(f"s_mov_b32 s49, {CSKV:#x}")
    a("K0_ptr:")
    a("s_lshl_b32 s32, s50, 10")
    a("s_add_u32 s47, s47, s32")
    if TOUCH2:
        a("v_lshlrev_b32 v9, 7, v3")
        a("buffer_load_dword v10, v9, s[8:11], s47 offen")
    a("s_lshl_b32 s62, s3, 10")
    a(f"s_add_u32 s62, s62, {KVW}")
    tr_addr(a, 8, 64, 5, 6)
    a("v_add_u32 v8, s62, v8")
    a("v_add_u32 v9, s62, v2")
    a("v_mov_b32 v7, 0")
    a("s_barrier")
    a(f"s_waitcnt vmcnt({TOUCH2})")
    for i in range(4):
        a(f"ds_write_b128 v9, {vr(32+4*i,4)}")
        a(f"ds_read_b64_tr_b16 {vr(16+4*i,2)}, v8")
        a(f"ds_read_b64_tr_b16 {vr(18+4*i,2)}, v8 offset:{8*64}")
    for i in range(4):
        a(f"s_waitcnt lgkmcnt({3*(3-i)})")
        a(f"buffer_store_dwordx4 {vr(16+4*i,4)}, v2, s[8:11], s47 offen offset:{1024*i}")
        for q in range(4):
            a(f"v_dot2_f32_bf16 v7, v{16+4*i+q}, s61, v7")
    a("s_cmp_eq_u32 s49, 0")
    a(f"s_cbranch_scc1 {end}x")
    a.nop(2)
    half_sum(a, 7, 5)
    a("s_lshl_b32 s32, s3, 7")
    a(f"s_add_u32 s32, s32, {CSP2}")
    a("v_lshlrev_b32 v6, 2, v3")
    a("v_add_u32 v5, s32, v6")
    a("ds_write_b32 v5, v7")
    a("s_waitcnt lgkmcnt(0)")
    a("s_barrier")
    a("s_cmp_lg_u32 s3, 0")
    a(f"s_cbranch_scc1 {end}x")
    a(f"v_add_u32 v5, {CSP2}, v6")
    for s in range(8):
        a(f"ds_read_b32 v{16+s}, v5 offset:{128*s}")
    a("s_waitcnt lgkmcnt(0)")
    for s in range(1, 8):
        a(f"v_add_f32 v16, v16, v{16+s}")
    a("v_cmp_gt_u32 vcc, 32, v1")
    a("s_and_saveexec_b64 s[38:39], vcc")
    a("buffer_store_dword v16, v6, s[8:11], s49 offen")
    a(f"s_branch {end}x")
    a(f"{end}:")
    a.stamp(6)
    a.stamp_flush(8)
    a(f"{end}x:")
    a("s_endpgm")
    a.desc(name, 128)
    return CSP2 + 1024


def gen_zero_flags(a):
    pass


def main():
    a = Asm()
    G.XF, G.QF, G.KVF = XFL[0], QFL[0], KVFL[0]
    G.FLAGS_ZERO = FLAGS
    lds_k0 = gen_K0(a)
    lds_f = gen_F(a, 0)
    gen_F(a, 1)
    hdr = ["; generated by gen/gen2.py -- fused MQA + FFN pipeline"]
    L = hdr.append
    L(f"; @launch kernel=k0_kernel grid=(256,1,1) block=(1024,1,1) lds={lds_k0}")
    L(f"; @launch kernel=f1_kernel grid=(256,1,1) block=(512,1,1) lds={lds_f}")
    L(f"; @launch kernel=f2_kernel grid=(256,1,1) block=(512,1,1) lds={lds_f}")
    out = "\n".join(hdr) + "\n"
    out += '.amdgcn_target "amdgcn-amd-amdhsa--gfx950"\n.text\n'
    out += "\n".join(a.L) + "\ncode_end:\n"
    out += '.section .rodata,"a"\n' + "\n".join(a.kernels) + "\n"
    path = sys.argv[1] if len(sys.argv) > 1 else f"cdna_kernels/{NAME}.s"
    open(path, 'w').write(out)
    if PROFILE:
        import json
        json.dump(G.PROF_SLOT, open('prof_slots.json', 'w'))
    print("wrote", path, len(out), "bytes")


if __name__ == "__main__":
    main()
```

```python
import os
import sys
import gen as G
from gen import Asm, vr, ar, f2u, half_sum, wave32_max, prologue, frag_loads
from gen import WQF, WOF, W1F, W2F, WKVF, CSQ, CS1, CSKV, VH, VU, KVT, KVF_BYTES, QS, EPS, NAME, PROFILE

LSTRIDE = 0x2000000
XFL = [0x500000, 0x500000 + LSTRIDE]
QFL = [0x700000, 0x700000 + LSTRIDE]
REUSE = int(os.environ.get('REUSE', '1'))
TOUCH = int(os.environ.get('TOUCH', '1'))
TOUCH2 = int(os.environ.get('TOUCH2', '1'))
_R = 0 if REUSE else LSTRIDE
OFL = [0x900000, 0x900000 + _R]
X1FL = [0xB00000, 0xB00000 + _R]
HFL = [0x1000000, 0x1000000 + _R]
KVFL = [0x1800000, 0x1800000 + LSTRIDE]
KNL = [0x1880000, 0x1880000 + LSTRIDE]
FLAGS = 0x490000
FL3 = FLAGS + 8192
G.WS_USED = 0x4400000
G.PROF = 0x4000000
G.KN = KNL[0]
SC = "sc0 sc1"
SCL = os.environ.get("SCL", "sc1")
SPIN_MAX = 200000
BMAX = float(os.environ.get('BMAX', '64'))

PRIO_IT = int(os.environ.get('PRIO_IT', '7'))
WARM = int(os.environ.get('WARM', '1'))
CODEPF = int(os.environ.get('CODEPF', '0'))
FAST = int(os.environ.get('FAST', '1'))
CZERO = int(os.environ.get('CZERO', '1'))


_uid = [0]
FSF = os.environ.get('FSF', '')


def hstore(a, insts):
    _uid[0] += 1
    u = _uid[0]
    a("s_cmp_lg_u32 s61, 0")
    a(f"s_cbranch_scc1 HS{u}_f")
    for i in insts:
        a(f"{i} {SC}")
    a(f"s_branch HS{u}_e")
    a(f"HS{u}_f:")
    for i in insts:
        a(i + (" " + FSF if 'dwordx4' in i else ""))
    a(f"HS{u}_e:")


def publish(a, epoch, tag):
    a("s_waitcnt vmcnt(0)")
    a("s_barrier")
    a("s_cmp_lg_u32 s3, 0")
    a(f"s_cbranch_scc1 {tag}_np")
    a(f"v_mov_b32 v5, {epoch}")
    a("v_mov_b32 v6, 0")
    a("v_cmp_eq_u32 vcc, 0, v1")
    a("s_and_saveexec_b64 s[38:39], vcc")
    hstore(a, ["buffer_store_dword v5, v6, s[8:11], s40 offen"])
    a("s_mov_b64 exec, s[38:39]")
    a(f"{tag}_np:")


def wait_flag(a, epoch, tag):
    a("v_mov_b32 v6, 0")
    a("s_mov_b32 s37, 0")
    a(f"{tag}_poll:")
    a(f"buffer_load_dword v5, v6, s[8:11], s41 offen {SC}")
    a("s_waitcnt vmcnt(0)")
    a("v_readfirstlane_b32 s36, v5")
    a("s_add_u32 s37, s37, 1")
    a(f"s_cmp_ge_u32 s36, {epoch}")
    a(f"s_cbranch_scc1 {tag}_go")
    a(f"s_cmp_gt_u32 s37, {SPIN_MAX}")
    a(f"s_cbranch_scc1 {tag}_go")
    a("s_sleep 1")
    a(f"s_branch {tag}_poll")
    a(f"{tag}_go:")


def ld(a, dst, sbase, idx, stmp, flags=""):
    hi, lo = idx // 4, idx % 4
    if hi == 0:
        so = f"s{sbase}"
    else:
        a(f"s_add_u32 s{stmp}, s{sbase}, {hi*4096}")
        so = f"s{stmp}"
    a(f"buffer_load_dwordx4 {dst}, v2, s[8:11], {so} offen offset:{lo*1024} {flags}")


def reduce8(a, ACC, DST, lds_base=0, pre_barrier=False):
    a("s_lshl_b32 s32, s3, 11")
    a("v_add_u32 v5, s32, v2")
    a("v_add_u32 v6, 0x10000, v5")
    a("s_lshl_b32 s32, s3, 14")
    a("v_add_u32 v7, s32, v2")
    a.nop(12)
    if pre_barrier:
        a("s_waitcnt lgkmcnt(0)")
        a("s_barrier")
    for p in range(8):
        for q in range(2):
            off = (p % 4) * 16384 + q * 1024
            a(f"ds_write_b128 v{5 if p < 4 else 6}, {vr(ACC+8*p+4*q,4)} offset:{off}")
    a("s_waitcnt lgkmcnt(0)")
    a("s_barrier")
    for s in range(8):
        for q in range(2):
            a(f"ds_read_b128 {vr(ACC+8*s+4*q,4)}, v7 offset:{s*2048+q*1024}")
    for s in range(0, 8, 2):
        a(f"s_waitcnt lgkmcnt({12-2*s})")
        for r in range(8):
            if s == 0:
                a(f"v_add_f32 v{DST+r}, v{ACC+r}, v{ACC+8+r}")
            else:
                a(f"v_add_f32 v{ACC+8*s+r}, v{ACC+8*s+r}, v{ACC+8*s+8+r}")
                a(f"v_add_f32 v{DST+r}, v{DST+r}, v{ACC+8*s+r}")


STATQ = 131072
KVS = STATQ + 8192
STAT2 = KVS + 16384
CSP = STAT2 + 256
CSP2 = CSP + 3072


def qkv_tail(a, T, end, QN, KVN, KNN, get_csq, get_csk, get_csv):
    a("s_lshl_b32 s32, s43, 3")
    a(f"s_add_u32 s32, s32, {STATQ}")
    a("v_add_u32 v7, s32, v2")
    for s in range(8):
        a(f"ds_read_b64 {vr(40+2*s,2)}, v7 offset:{s*1024}")
    a("s_waitcnt lgkmcnt(0)")
    for s in range(1, 8):
        a(f"v_add_f32 v40, v40, v{40+2*s}")
        a(f"v_add_f32 v41, v41, v{41+2*s}")
    half_sum(a, 40, 42)
    half_sum(a, 41, 42)
    a(f"v_mul_f32 v40, {f2u(1.0/512):#x}, v40")
    a(f"v_mul_f32 v41, {f2u(1.0/512):#x}, v41")
    a("v_fma_f32 v41, -v40, v40, v41")
    a("v_max_f32 v41, 0, v41")
    a(f"v_add_f32 v41, {f2u(EPS):#x}, v41")
    a("v_rsq_f32 v41, v41")
    a.nop(1)
    a("v_mul_f32 v42, v40, v41")
    a("v_sub_f32 v42, 0, v42")
    a(f"v_mul_f32 v43, {f2u(QS):#x}, v41")
    a(f"v_mul_f32 v44, {f2u(QS):#x}, v42")
    get_csq()
    for r in range(8):
        a(f"v_mul_f32 v{16+r}, v44, v{16+r}")
        a(f"v_fma_f32 v{8+r}, v{8+r}, v43, v{16+r}")
    for q in range(4):
        a(f"v_cvt_pk_bf16_f32 v{24+q}, v{8+2*q}, v{9+2*q}")
    a(f"s_add_u32 s23, s42, {QN:#x}")
    a("buffer_store_dwordx4 v[24:27], v2, s[8:11], s23 offen")
    a("s_cmp_ge_u32 s5, 6")
    a(f"s_cbranch_scc1 {end}")
    a("s_lshr_b32 s32, s5, 2")
    a("s_cmp_eq_u32 s5, 1")
    a("s_cselect_b32 s32, 1, s32")
    a("s_lshl_b32 s32, s32, 1")
    a("s_cmp_lg_u32 s3, s32")
    a(f"s_cbranch_scc1 {end}")
    a(f"v_add_u32 v7, {KVS}, v2")
    for s in range(8):
        for q in range(2):
            a(f"ds_read_b128 {vr(64+8*s+4*q,4)}, v7 offset:{s*2048+q*1024}")
    a(f"s_mul_i32 s33, s45, {KVT}")
    a(f"s_add_u32 s33, s33, {KVN:#x}")
    a("s_waitcnt lgkmcnt(0)")
    for s in range(1, 8):
        for r in range(8):
            a(f"v_add_f32 v{64+r}, v{64+r}, v{64+8*s+r}")
    a("s_cmp_ge_u32 s5, 2")
    a(f"s_cbranch_scc1 {T}_finV")
    a("v_mov_b32 v45, 0")
    get_csk()
    for r in range(8):
        a(f"v_mul_f32 v{16+r}, v42, v{16+r}")
        a(f"v_fma_f32 v{64+r}, v{64+r}, v41, v{16+r}")
        a(f"v_fma_f32 v45, v{64+r}, v{64+r}, v45")
    for q in range(4):
        a(f"v_cvt_pk_bf16_f32 v{28+q}, v{64+2*q}, v{65+2*q}")
    a("buffer_store_dwordx4 v[28:31], v2, s[8:11], s33 offen")
    half_sum(a, 45, 46)
    a("s_lshl_b32 s32, s45, 7")
    a(f"s_add_u32 s32, s32, {KNN:#x}")
    a("v_lshlrev_b32 v46, 2, v3")
    a("v_cmp_gt_u32 vcc, 32, v1")
    a("s_and_saveexec_b64 s[38:39], vcc")
    a("buffer_store_dword v45, v46, s[8:11], s32 offen")
    a(f"s_branch {end}")
    a(f"{T}_finV:")
    a("v_lshlrev_b32 v7, 2, v3")
    a(f"v_add_u32 v7, {STAT2}, v7")
    a("ds_write_b32 v7, v41")
    a("ds_write_b32 v7, v42 offset:128")
    a("s_and_b32 s32, s5, 1")
    a("s_lshl_b32 s32, s32, 6")
    a(f"s_add_u32 s32, s32, {STAT2}")
    a("v_lshlrev_b32 v7, 4, v4")
    a("v_add_u32 v7, s32, v7")
    get_csv()
    a("s_waitcnt lgkmcnt(0)")
    for q in range(2):
        a(f"ds_read_b128 {vr(16+4*q,4)}, v7 offset:{32*q}")
        a(f"ds_read_b128 {vr(24+4*q,4)}, v7 offset:{128+32*q}")
    a("s_waitcnt lgkmcnt(0)")
    for r in range(8):
        a(f"v_mul_f32 v{24+r}, v47, v{24+r}")
        a(f"v_fma_f32 v{64+r}, v{64+r}, v{16+r}, v{24+r}")
    for q in range(4):
        a(f"v_cvt_pk_bf16_f32 v{32+q}, v{64+2*q}, v{65+2*q}")
    a("v_cmp_eq_u32 s[38:39], 0, v3")
    a("v_mov_b32 v45, 0x3f803f80")
    a("v_mov_b32 v46, 0")
    a("v_cndmask_b32 v45, v46, v45, s[38:39]")
    a("v_cmp_le_u32 vcc, 16, v3")
    a("v_xor_b32 v7, 16, v3")
    a("v_lshlrev_b32 v7, 4, v7")
    for q in range(4):
        a(f"v_cndmask_b32 v{32+q}, v45, v{32+q}, vcc")
    a(f"v_mul_u32_u24 v46, {VH}, v4")
    a("v_add_u32 v7, v7, v46")
    a("s_and_b32 s32, s5, 1")
    a(f"s_mul_i32 s32, s32, {VU}")
    a("s_add_u32 s33, s33, s32")
    a("v_cmp_gt_u32 s[38:39], 2, v3")
    a("s_or_b64 vcc, vcc, s[38:39]")
    a("s_and_saveexec_b64 s[38:39], vcc")
    a("buffer_store_dwordx4 v[32:35], v7, s[8:11], s33 offen offset:1024")


def piece_sgprs(a):
    a("s_lshr_b32 s32, s3, 1")
    a("s_and_b32 s43, s32, 1")
    a("s_lshr_b32 s44, s3, 2")
    a("s_lshl_b32 s45, s4, 1")
    a("s_add_u32 s45, s45, s43")
    a("s_lshl_b32 s46, s5, 1")
    a("s_add_u32 s46, s46, s44")
    a("s_lshl_b32 s42, s45, 5")
    a("s_lshl_b32 s32, s46, 1")
    a("s_add_u32 s42, s42, s32")
    a("s_and_b32 s47, s3, 1")
    a("s_add_u32 s42, s42, s47")
    a("s_lshl_b32 s42, s42, 10")


def code_srd(a, d, tag):
    a(f"s_getpc_b64 s[{d}:{d+1}]")
    a(f"{tag}_pc:")
    a(f"s_add_u32 s{d}, s{d}, f1_kernel-{tag}_pc")
    a(f"s_addc_u32 s{d+1}, s{d+1}, {'-1' if tag != 'K0' else '0'}")
    a(f"s_mov_b32 s{d+2}, code_end-f1_kernel")
    a(f"s_mov_b32 s{d+3}, 0x00020000")


def gen_F(a, L):
    last = (L == 1)
    name = f"f{L+1}_kernel"
    T = f"F{L}"
    a.begin(name)
    end = f"{name}_end"
    prologue(a, end, out_ptr=True, out_off=(64 if last else 0))
    a.srd(16, 12, 2048 * 512 * 2)
    XF, QF, OF, X1F, HF, KVF, KN = XFL[L], QFL[L], OFL[L], X1FL[L], HFL[L], KVFL[L], KNL[L]
    EP = 4 * L
    SCR = KVF_BYTES
    KMX = SCR + 8 * 2304
    Q = (8, 12)
    C = 80
    O = (32, 48)
    S = (64, 80)
    P = (96, 104)
    E = 112
    KB = (128, 132)
    VB = (136, 144)
    a("s_and_b32 s20, s3, 3")
    a("s_lshr_b32 s30, s3, 2")
    a("s_and_b32 s21, s20, 1")
    a("s_lshl_b32 s21, s21, 1")
    a("s_lshl_b32 s22, s5, 2")
    a("s_add_u32 s21, s21, s22")
    a("s_lshr_b32 s22, s20, 1")
    a("s_lshl_b32 s23, s4, 1")
    a("s_add_u32 s22, s22, s23")
    a("s_lshl_b32 s22, s22, 5")
    a("s_add_u32 s22, s22, s21")
    a("s_add_u32 s23, s22, s30")
    a("s_xor_b32 s24, s30, 1")
    a("s_add_u32 s24, s22, s24")
    a("s_lshl_b32 s22, s23, 10")
    a("s_lshl_b32 s24, s24, 10")
    a(f"s_add_u32 s23, s22, {QF:#x}")
    a(f"s_add_u32 s24, s24, {QF:#x}")
    a(f"buffer_load_dwordx4 {vr(Q[0],4)}, v2, s[8:11], s23 offen")
    a(f"buffer_load_dwordx4 {vr(Q[1],4)}, v2, s[8:11], s24 offen")
    a("s_lshl_b32 s23, s3, 10")
    a(f"s_add_u32 s23, s23, {KN:#x}")
    a(f"buffer_load_dwordx4 {vr(E,4)}, v2, s[8:11], s23 offen")
    a("s_lshr_b32 s24, s3, 1")
    a("s_lshl_b32 s24, s24, 10")
    a("s_and_b32 s25, s3, 1")
    a(f"s_mul_i32 s25, s25, {32*KVT}")
    a("s_add_u32 s34, s24, s25")
    a(f"s_add_u32 s35, s34, {KVF:#x}")

    def dma():
        a("s_mov_b32 m0, s34")
        a("s_add_u32 s34, s34, 4096")
        a("buffer_load_dwordx4 v2, s[8:11], s35 offen lds")
        a("s_add_u32 s35, s35, 4096")
    for i in range(6):
        dma()
    a("s_lshl_b32 s40, s4, 8")
    a(f"s_add_u32 s40, s40, {FLAGS:#x}")
    a("s_lshl_b32 s41, s3, 2")
    a("s_add_u32 s41, s41, s40")
    a("s_lshl_b32 s32, s5, 2")
    a("s_add_u32 s40, s40, s32")
    piece_sgprs(a)
    a("s_getreg_b32 s61, hwreg(HW_REG_XCC_ID)")
    a("s_and_b32 s61, s61, 15")
    a("s_add_u32 s61, s61, 1")
    a("v_min_u32 v6, 17, v3")
    a("v_mov_b32 v5, 16")
    a("v_cmp_eq_u32 vcc, 20, v3")
    a(f"s_mul_i32 s25, s30, {32*KVT}")
    a.nop(1)
    a("v_cndmask_b32 v6, v6, v5, vcc")
    a("v_lshlrev_b32 v6, 4, v6")
    a(f"v_mul_u32_u24 v5, {VH}, v4")
    a("v_add3_u32 v158, v6, v5, 64")
    a("v_add_u32 v158, 960, v158")
    a("v_add_u32 v156, s25, v2")
    a("v_add_u32 v157, s25, v158")
    a("s_waitcnt vmcnt(6)")
    a("v_mov_b32 v5, 0")
    a("v_mov_b32 v6, 0")
    for q in range(4):
        a(f"v_dot2_f32_bf16 v5, v{Q[0]+q}, v{Q[0]+q}, v5")
        a(f"v_dot2_f32_bf16 v6, v{Q[1]+q}, v{Q[1]+q}, v6")
    a.nop(3)
    half_sum(a, 5, 154)
    half_sum(a, 6, 154)
    a("v_max_f32 v5, v5, v6")
    a(f"v_max3_f32 v7, v{E}, v{E+1}, v{E+2}")
    a(f"v_max_f32 v7, v7, v{E+3}")
    for off in (0x041F, 0x081F, 0x101F, 0x201F, 0x401F):
        a(f"ds_swizzle_b32 v6, v5 offset:{off:#x}")
        a(f"ds_swizzle_b32 v154, v7 offset:{off:#x}")
        a("s_waitcnt lgkmcnt(0)")
        a("v_max_f32 v5, v5, v6")
        a("v_max_f32 v7, v7, v154")
    half_sum(a, 7, 154, op="v_max_f32")
    a("v_readfirstlane_b32 s63, v5")
    a("s_lshl_b32 s23, s3, 2")
    a(f"s_add_u32 s23, s23, {KMX}")
    a("v_mov_b32 v6, s23")
    a("ds_write_b32 v6, v7")
    for r in range(16):
        a(f"v_mov_b32 v{O[0]+r}, 0")
        a(f"v_mov_b32 v{O[1]+r}, 0")
        a(f"v_mov_b32 v{E+r}, 0")
    for r in range(8):
        a(f"v_mov_b32 v{P[1]+r}, 0")
        a(f"v_mov_b32 v{VB[1]+r}, 0")
    a("s_lshl_b32 s32, s5, 1")
    a("s_lshl_b32 s48, s32, 5")
    a("s_lshl_b32 s33, s3, 2")
    a("s_add_u32 s48, s48, s33")
    a("s_lshl_b32 s48, s48, 10")
    a(f"s_add_u32 s48, s48, {WOF:#x}")
    a("s_add_u32 s49, s48, 32768")
    a("s_min_u32 s32, s3, 6")
    a("s_mul_i32 s51, s5, 7")
    a("s_add_u32 s51, s51, s32")
    a("s_lshl_b32 s50, s51, 15")
    a(f"s_add_u32 s50, s50, {W1F:#x}")
    a(f"s_add_u32 s52, s42, {XF:#x}")
    pf = []
    for i in range(4):
        pf.append((ar(8 * i, 4), 48, i))
        pf.append((ar(8 * i + 4, 4), 49, i))
    if last:
        pf.append((ar(32, 4), 52, 0))
    else:
        a("v_lshlrev_b32 v159, 10, v3")
        a("v_lshl_add_u32 v159, v4, 3, v159")
        a("s_lshl_b32 s52, s45, 15")
        a("s_lshl_b32 s32, s46, 6")
        a("s_add_u32 s52, s52, s32")
        a("s_lshl_b32 s32, s47, 5")
        a("s_add_u32 s52, s52, s32")
        pf.append(None)
    for i in range(15):
        pf.append((ar(36 + 4 * i, 4), 50, i))
    for i in range(4):
        pf.append((vr(16 + 4 * i, 4), 50, 23 + i))
    a("s_waitcnt vmcnt(0) lgkmcnt(0)")
    a("s_barrier")
    a.stamp(2)
    a(f"ds_read_b128 {vr(KB[0],4)}, v156")
    a(f"ds_read_b128 {vr(KB[1],4)}, v156 offset:{KVT}")
    a(f"ds_read_b128 {vr(VB[0],4)}, v157")
    a(f"ds_read_b128 {vr(VB[0]+4,4)}, v157 offset:{VU}")
    a("s_cmp_lt_u32 s3, 4")
    a(f"s_cbranch_scc1 {T}_noprio")
    a("s_setprio 1")
    a(f"{T}_noprio:")
    a("s_waitcnt lgkmcnt(3)")
    a(f"v_mfma_f32_32x32x16_bf16 {vr(S[0],16)}, {vr(KB[0],4)}, {vr(Q[0],4)}, {'0' if CZERO else vr(C,16)}")
    a.nop(10)
    UN, PV1, PV2, DLY, NE = 4, 3, 6, 2, 16

    def body(extra, slots=(1, 4, 5)):
        for t in range(UN):
            for x in range(2):
                y = 1 - x
                ty = t if x == 0 else t + 1
                tv = t - 1 if x == 0 else t
                for i in range(8):
                    if i == 0:
                        if x == 1:
                            a("s_waitcnt lgkmcnt(0)")
                        a(f"v_mfma_f32_32x32x16_bf16 {vr(S[y],16)}, {vr(KB[ty%2],4)}, {vr(Q[y],4)}, {'0' if CZERO else vr(C,16)}")
                        if x == 1:
                            a(f"ds_read_b128 {vr(KB[t%2],4)}, v156 offset:{(t+2)*KVT}")
                            a(f"ds_read_b128 {vr(VB[(t+1)%2],4)}, v157 offset:{(t+1)*KVT}")
                            a(f"ds_read_b128 {vr(VB[(t+1)%2]+4,4)}, v157 offset:{(t+1)*KVT+VU}")
                    e = E + (2 * i) % NE
                    a(f"v_exp_f32 v{e}, v{S[x]+2*i}")
                    a(f"v_exp_f32 v{e+1}, v{S[x]+2*i+1}")
                    j = i - DLY
                    if j >= 0:
                        ej = E + (2 * j) % NE
                        a(f"v_cvt_pk_bf16_f32 v{P[x]+j}, v{ej}, v{ej+1}")
                    else:
                        ej = E + (2 * (j + 8)) % NE
                        a(f"v_cvt_pk_bf16_f32 v{P[y]+j+8}, v{ej}, v{ej+1}")
                    if i == PV1:
                        a(f"v_mfma_f32_32x32x16_bf16 {vr(O[y],16)}, {vr(VB[tv%2],4)}, {vr(P[y],4)}, {vr(O[y],16)}")
                    if i == PV2:
                        a(f"v_mfma_f32_32x32x16_bf16 {vr(O[y],16)}, {vr(VB[tv%2]+4,4)}, {vr(P[y]+4,4)}, {vr(O[y],16)}")
                    if i in slots and extra:
                        extra.pop(0)()
                if t == UN - 1 and x == 1:
                    a(f"v_add_u32 v156, {UN*KVT}, v156")
                    a(f"v_add_u32 v157, {UN*KVT}, v157")
                    a("s_add_u32 s29, s29, 1")
                    a("s_cmp_lg_u32 s29, 8")

    a("s_mov_b32 s29, 0")
    body([dma] * 11)
    body([])
    a("s_waitcnt vmcnt(0)")
    a("s_barrier")
    def rawres():
        a("buffer_load_dwordx2 a[32:33], v159, s[16:19], s52 offen")
        a("buffer_load_dwordx2 a[34:35], v159, s[16:19], s52 offen offset:16")
    pfl = [(lambda e=e: ld(a, e[0], e[1], e[2], 33)) if e else rawres for e in pf]
    def xid():
        a("s_cmp_lg_u32 s3, 0")
        a(f"s_cbranch_scc1 {T}_noxid")
        a("v_mov_b32 v5, s61")
        a("v_mov_b32 v6, 0")
        a("s_mov_b64 exec, 1")
        a(f"buffer_store_dword v5, v6, s[8:11], s40 offen offset:{64+32*L} {SC}")
        a("s_mov_b64 exec, -1")
        a(f"{T}_noxid:")
    xid()
    body(pfl[0:10], (2, 6))
    body(pfl[10:20], (2, 6))
    tail = []
    if WARM:
        a("s_lshr_b32 s56, s4, 3")
        a("s_and_b32 s56, s56, 3")
        a("s_and_b32 s57, s56, 1")
        a("s_lshl_b32 s58, s5, 1")
        a("s_add_u32 s57, s57, s58")
        a("s_mul_i32 s57, s57, 112")
        a("s_mul_i32 s58, s3, 14")
        a("s_add_u32 s57, s57, s58")
        a("s_lshr_b32 s58, s56, 1")
        a("s_mul_i32 s58, s58, 7")
        a("s_add_u32 s57, s57, s58")
        a("s_lshl_b32 s57, s57, 10")
        a(f"s_add_u32 s57, s57, {W2F:#x}")
        a("s_lshl_b32 s58, s56, 12")
        a("s_add_u32 s58, s58, s50")
        a(f"s_add_u32 s58, s58, {15*1024}")
        a("s_and_b32 s59, s56, 1")
        a("s_lshl_b32 s59, s59, 15")
        a("s_lshr_b32 s60, s56, 1")
        a("s_lshl_b32 s60, s60, 11")
        a("s_add_u32 s59, s59, s60")
        a("s_add_u32 s59, s59, s48")
        a(f"s_add_u32 s59, s59, {(WQF - WOF) & 0xffffffff:#x}")
        for k, (n, sr) in enumerate(((56, 57), (40, 58), (16, 59))):
            if last and sr == 59:
                continue
            a(f"v_min_u32 v{152+k}, {n-1}, v1")
            a(f"v_lshlrev_b32 v{152+k}, 7, v{152+k}")
            tail.append(lambda k=k, sr=sr: a(f"buffer_load_dword v155, v{152+k}, s[8:11], s{sr} offen"))
    a("v_and_b32 v5, 7, v1")
    a("v_lshlrev_b32 v5, 2, v5")
    a("s_lshl_b32 s62, s4, 8")
    a(f"s_add_u32 s62, s62, {FLAGS:#x}")
    tail.append(lambda: a(f"buffer_load_dword v159, v5, s[8:11], s62 offen offset:{64+32*L} {SC}"))
    if TOUCH and (L == 0 or not REUSE):
        a(f"s_add_u32 s20, s22, {OF:#x}")
        a(f"s_add_u32 s21, s42, {X1F:#x}")
        a("s_lshl_b32 s23, s4, 1")
        a("s_mul_i32 s23, s23, 112")
        a("s_lshl_b32 s24, s51, 1")
        a("s_add_u32 s23, s23, s24")
        a("s_lshl_b32 s23, s23, 10")
        a(f"s_add_u32 s23, s23, {HF:#x}")
        a("s_add_u32 s24, s23, 1024")
        a(f"s_add_u32 s25, s23, {112*1024}")
        a("s_add_u32 s26, s25, 1024")
        a(f"s_add_u32 s27, s42, {XFL[1]:#x}")
        a(f"s_add_u32 s28, s42, {QFL[1]:#x}")
        a("v_mov_b32 v6, s20")
        for k, sr in enumerate((21, 23, 24, 25, 26, 27, 28)):
            a(f"v_mov_b32 v7, s{sr}")
            a(f"v_cmp_le_u32 vcc, {8*(k+1)}, v1")
            a.nop(2)
            a("v_cndmask_b32 v6, v6, v7, vcc")
        a("v_and_b32 v7, 7, v1")
        a("v_lshl_add_u32 v6, v7, 7, v6")
        tail.append(lambda: a("buffer_load_dword v7, v6, s[8:11], 0 offen"))
    if TOUCH2:
        if last:
            a("v_lshlrev_b32 v6, 10, v3")
            a("s_lshl_b32 s20, s45, 15")
            a("s_lshl_b32 s21, s46, 6")
            a("s_add_u32 s20, s20, s21")
            tail.append(lambda: a("buffer_load_dword v7, v6, s[16:19], s20 offen"))
        else:
            a(f"s_mul_i32 s31, s45, {KVT}")
            a(f"s_add_u32 s31, s31, {KVFL[1]:#x}")
            tail.append(lambda: a("buffer_load_dword v155, v154, s[8:11], s31 offen"))
    body(pfl[20:28] + tail, (1, 5))
    a(f"{T}_loop:")
    a(f"s_cmp_lg_u32 s29, {PRIO_IT}")
    a(f"s_cbranch_scc1 {T}_prio2")
    a("s_setprio 0")
    a(f"{T}_prio2:")
    body([])
    a(f"s_cbranch_scc1 {T}_loop")
    a("s_waitcnt vmcnt(0)")
    for j in range(8 - DLY, 8):
        ej = E + (2 * j) % NE
        a(f"v_cvt_pk_bf16_f32 v{P[1]+j}, v{ej}, v{ej+1}")
    a.nop(2)
    a(f"v_mfma_f32_32x32x16_bf16 {vr(O[1],16)}, {vr(VB[1],4)}, {vr(P[1],4)}, {vr(O[1],16)}")
    a(f"v_mfma_f32_32x32x16_bf16 {vr(O[1],16)}, {vr(VB[1]+4,4)}, {vr(P[1]+4,4)}, {vr(O[1],16)}")
    a("s_mul_i32 s25, s3, 2304")
    a(f"s_add_u32 s25, s25, {SCR}")
    a("v_add_u32 v5, s25, v2")
    a("v_lshlrev_b32 v6, 2, v1")
    a("v_add_u32 v6, s25, v6")
    a("s_xor_b32 s25, s3, 4")
    a("s_mul_i32 s25, s25, 2304")
    a(f"s_add_u32 s25, s25, {SCR}")
    a("v_add_u32 v7, s25, v2")
    a("s_waitcnt vmcnt(0)")
    a("s_mov_b32 s37, 0")
    a("v_and_b32 v153, 7, v1")
    a("v_lshlrev_b32 v153, 2, v153")
    a(f"{T}_xchk:")
    a("v_cmp_eq_u32 vcc, 0, v159")
    a("s_cmp_eq_u64 vcc, 0")
    a(f"s_cbranch_scc1 {T}_xok")
    a("s_add_u32 s37, s37, 1")
    a(f"s_cmp_gt_u32 s37, {SPIN_MAX}")
    a(f"s_cbranch_scc1 {T}_xok")
    a("s_sleep 1")
    a(f"buffer_load_dword v159, v153, s[8:11], s62 offen offset:{64+32*L} {SC}")
    a("s_waitcnt vmcnt(0)")
    a(f"s_branch {T}_xchk")
    a(f"{T}_xok:")
    a("v_cmp_ne_u32 vcc, s61, v159")
    a("s_cmp_eq_u64 vcc, 0")
    a(f"s_cselect_b32 s61, {FAST}, 0")
    a("v_lshlrev_b32 v154, 2, v1")
    a("v_add_u32 v154, s25, v154")
    a("s_waitcnt lgkmcnt(0)")
    a.nop(8)
    a(f"ds_write_b128 v5, {vr(O[1],4)}")
    a(f"ds_write_b128 v5, {vr(O[1]+4,4)} offset:1024")
    a(f"ds_write_b32 v6, v{O[1]+8} offset:2048")
    a("s_waitcnt lgkmcnt(0)")
    a("s_barrier")
    a(f"ds_read_b128 {vr(S[0],4)}, v7")
    a(f"ds_read_b128 {vr(S[0]+4,4)}, v7 offset:1024")
    a(f"ds_read_b32 v{S[0]+8}, v154 offset:2048")
    a(f"v_mov_b32 v5, {KMX}")
    a(f"ds_read_b128 {vr(S[1],4)}, v5")
    a(f"ds_read_b128 {vr(S[1]+4,4)}, v5 offset:16")
    a("s_waitcnt lgkmcnt(0)")
    for r in range(9):
        a(f"v_add_f32 v{O[0]+r}, v{O[0]+r}, v{S[0]+r}")
    a(f"v_max3_f32 v5, v{S[1]}, v{S[1]+1}, v{S[1]+2}")
    a(f"v_max3_f32 v5, v5, v{S[1]+3}, v{S[1]+4}")
    a(f"v_max3_f32 v5, v5, v{S[1]+5}, v{S[1]+6}")
    a(f"v_max_f32 v5, v5, v{S[1]+7}")
    a("v_mul_f32 v5, s63, v5")
    a(f"v_mov_b32 v6, {f2u(BMAX*BMAX):#x}")
    a("v_cmp_nle_f32 vcc, v5, v6")
    a("s_cmp_eq_u64 vcc, 0")
    a(f"s_cbranch_scc1 {T}_afin")
    a("v_mov_b32 v156, v2")
    a("v_mov_b32 v6, 0xff800000")
    a("s_mov_b32 s29, 64")
    a(f"{T}_fb:")
    a(f"ds_read_b128 {vr(KB[0],4)}, v156")
    a(f"v_add_u32 v156, {KVT}, v156")
    a("s_waitcnt lgkmcnt(0)")
    a(f"v_mfma_f32_32x32x16_bf16 {vr(S[0],16)}, {vr(KB[0],4)}, {vr(Q[0],4)}, 0")
    a.nop(16)
    for i in range(8):
        a(f"v_max3_f32 v6, v6, v{S[0]+2*i}, v{S[0]+2*i+1}")
    a("s_sub_u32 s29, s29, 1")
    a("s_cmp_lg_u32 s29, 0")
    a(f"s_cbranch_scc1 {T}_fb")
    half_sum(a, 6, 7, op="v_max_f32")
    a("v_sub_f32 v6, 0, v6")
    for r in range(16):
        a(f"v_mov_b32 v{C+r}, v6")
        a(f"v_mov_b32 v{O[0]+r}, 0")
    a("v_mov_b32 v156, v2")
    a("v_mov_b32 v157, v158")
    a("s_mov_b32 s29, 64")
    a(f"{T}_fb2:")
    a(f"ds_read_b128 {vr(KB[0],4)}, v156")
    a(f"ds_read_b128 {vr(VB[0],4)}, v157")
    a(f"ds_read_b128 {vr(VB[0]+4,4)}, v157 offset:{VU}")
    a(f"v_add_u32 v156, {KVT}, v156")
    a(f"v_add_u32 v157, {KVT}, v157")
    a("s_waitcnt lgkmcnt(0)")
    a(f"v_mfma_f32_32x32x16_bf16 {vr(S[0],16)}, {vr(KB[0],4)}, {vr(Q[0],4)}, {vr(C,16)}")
    a.nop(16)
    for i in range(16):
        a(f"v_exp_f32 v{S[0]+i}, v{S[0]+i}")
    a.nop(1)
    for i in range(8):
        a(f"v_cvt_pk_bf16_f32 v{P[0]+i}, v{S[0]+2*i}, v{S[0]+2*i+1}")
    a.nop(2)
    a(f"v_mfma_f32_32x32x16_bf16 {vr(O[0],16)}, {vr(VB[0],4)}, {vr(P[0],4)}, {vr(O[0],16)}")
    a(f"v_mfma_f32_32x32x16_bf16 {vr(O[0],16)}, {vr(VB[0]+4,4)}, {vr(P[0]+4,4)}, {vr(O[0],16)}")
    a.nop(16)
    a("s_sub_u32 s29, s29, 1")
    a("s_cmp_lg_u32 s29, 0")
    a(f"s_cbranch_scc1 {T}_fb2")
    a(f"{T}_afin:")
    a(f"v_rcp_f32 v6, v{O[0]+8}")
    a.nop(1)
    for r in range(8):
        a(f"v_mul_f32 v{O[0]+r}, v{O[0]+r}, v6")
    for q in range(4):
        a(f"v_cvt_pk_bf16_f32 v{S[0]+q}, v{O[0]+2*q}, v{O[0]+2*q+1}")
    a(f"s_add_u32 s23, s22, {OF:#x}")
    hstore(a, [f"buffer_store_dwordx4 {vr(S[0],4)}, v2, s[8:11], s23 offen"])
    a.stamp(3)
    publish(a, EP + 1, f"{T}_p1")
    a("s_lshl_b32 s20, s4, 6")
    a("s_lshl_b32 s21, s3, 2")
    a("s_add_u32 s20, s20, s21")
    a("s_lshl_b32 s53, s20, 10")
    a(f"s_add_u32 s20, s53, {OF:#x}")
    a("s_add_u32 s21, s20, 32768")
    for i in range(2):
        ld(a, vr(8 + 4 * i, 4), 50, 27 + i, 33)
    for i in range(3):
        ld(a, vr(144 + 4 * i, 4), 50, 29 + i, 33)
    wait_flag(a, EP + 1, f"{T}_w1")
    a.stamp(4)
    for i in range(4):
        ld(a, vr(32 + 8 * i, 4), 20, i, 33, SCL)
        ld(a, vr(36 + 8 * i, 4), 21, i, 33, SCL)
    ACC = 64
    for i in range(4):
        a(f"s_waitcnt vmcnt({2*(3-i)})")
        for c in range(2):
            for r in range(2):
                t = 2 * c + r
                cin = "0" if i == 0 else vr(ACC + 16 * t, 16)
                a(f"v_mfma_f32_32x32x16_bf16 {vr(ACC+16*t,16)}, {ar(8*i+4*c,4)}, {vr(32+8*i+4*r,4)}, {cin}")
    for i in range(8):
        ld(a, ar(4 * i, 4), 50, 15 + i, 33)
    reduce8(a, ACC, 128)
    for q in range(4):
        a(f"v_accvgpr_read_b32 v{136+q}, a{32+q}")
    for q in range(4):
        a(f"v_lshlrev_b32 v{140}, 16, v{136+q}")
        a(f"v_and_b32 v{141}, 0xffff0000, v{136+q}")
        a(f"v_add_f32 v{128+2*q}, v{128+2*q}, v140")
        a(f"v_add_f32 v{129+2*q}, v{129+2*q}, v141")
    for q in range(4):
        a(f"v_cvt_pk_bf16_f32 v{136+q}, v{128+2*q}, v{129+2*q}")
    a(f"s_add_u32 s23, s42, {X1F:#x}")
    hstore(a, ["buffer_store_dwordx4 v[136:139], v2, s[8:11], s23 offen"])
    for q in range(4):
        a(f"v_accvgpr_write_b32 a{32+q}, v{136+q}")
    a.stamp(5)
    publish(a, EP + 2, f"{T}_p2")
    a(f"s_add_u32 s20, s53, {X1F:#x}")
    a("s_add_u32 s21, s20, 32768")
    wait_flag(a, EP + 2, f"{T}_w2")
    a.stamp(6)
    for i in range(4):
        ld(a, vr(32 + 4 * i, 4), 20, i, 33, SCL)
    for i in range(4):
        ld(a, vr(48 + 4 * i, 4), 21, i, 33, SCL)
    a("v_lshlrev_b32 v7, 4, v4")
    a("s_lshl_b32 s27, s51, 7")
    a(f"s_add_u32 s27, s27, {CS1:#x}")
    for q in range(4):
        a(f"buffer_load_dwordx4 {vr(88+4*q,4)}, v7, s[8:11], s27 offen offset:{32*q}")
    STAT = 65536
    a("s_lshl_b32 s21, s3, 12")
    a("v_add_u32 v5, s21, v2")
    a("s_mov_b32 s28, 0x3f803f80")
    for r in range(8):
        a(f"v_mov_b32 v{80+r}, 0")
    for rr in range(2):
        a(f"s_waitcnt vmcnt({4+4*(1-rr)})")
        for i in range(4):
            a(f"ds_write_b128 v5, {vr(32+16*rr+4*i,4)} offset:{32768*rr+1024*i}")
        for i in range(16):
            x = 32 + 16 * rr + i
            k = 4 * (i % 2)
            a(f"v_dot2_f32_bf16 v{80+k+2*rr}, v{x}, s28, v{80+k+2*rr}")
            a(f"v_dot2_f32_bf16 v{81+k+2*rr}, v{x}, v{x}, v{81+k+2*rr}")
    a("s_lshl_b32 s21, s3, 10")
    a(f"s_add_u32 s21, s21, {STAT}")
    a("v_add_u32 v5, s21, v2")
    a.nop(2)
    for r in range(4):
        a(f"v_add_f32 v{80+r}, v{80+r}, v{84+r}")
    a("ds_write_b128 v5, v[80:83]")
    a("s_waitcnt lgkmcnt(0)")
    a("s_barrier")
    a.stamp(7)
    a("s_lshl_b32 s32, s5, 1")
    a("s_mul_i32 s54, s32, 112")
    a("s_mul_i32 s33, s3, 14")
    a("s_add_u32 s54, s54, s33")
    a("s_lshl_b32 s54, s54, 10")
    a(f"s_add_u32 s54, s54, {W2F:#x}")
    a(f"s_add_u32 s55, s54, {112*1024}")
    a("s_cmp_eq_u32 s3, 7")
    a(f"s_cbranch_scc1 {T}_cskip")
    CACC = 104

    def w1reg(i):
        if i < 15:
            return ar(36 + 4 * i, 4)
        if i < 23:
            return ar(4 * (i - 15), 4)
        if i < 27:
            return vr(16 + 4 * (i - 23), 4)
        if i < 29:
            return vr(8 + 4 * (i - 27), 4)
        return vr(144 + 4 * (i - 29), 4)

    CR = 6

    def rd(i):
        b = 32 + 8 * (i % CR)
        a(f"ds_read_b128 {vr(b,4)}, v2 offset:{i*1024}")
        a(f"ds_read_b128 {vr(b+4,4)}, v2 offset:{32768+i*1024}")
    def w2reg(j):
        if j < 23:
            return w1reg(j)
        return vr(136 + 4 * (j - 23), 4)
    for i in range(CR - 1):
        rd(i)
    for i in range(32):
        if i + CR - 1 < 32:
            rd(i + CR - 1)
        pend = min(32, i + CR) - i - 1
        a(f"s_waitcnt lgkmcnt({2*pend})")
        b = 32 + 8 * (i % CR)
        for r in range(2):
            cin = "0" if i == 0 else vr(CACC + 16 * r, 16)
            a(f"v_mfma_f32_32x32x16_bf16 {vr(CACC+16*r,16)}, {w1reg(i)}, {vr(b+4*r,4)}, {cin}")
        if 1 <= i <= 23:
            j = i - 1
            ld(a, w2reg(j), 54 + (j & 1), j >> 1, 33)
    a(f"s_branch {T}_cepi")
    a(f"{T}_cskip:")
    for j in range(23):
        ld(a, w2reg(j), 54 + (j & 1), j >> 1, 33)
    a(f"{T}_cepi:")
    a.stamp(8)
    a("s_cmp_eq_u32 s3, 7")
    a(f"s_cbranch_scc1 {T}_cdone")
    a(f"v_add_u32 v5, {STAT}, v2")
    for w in range(8):
        a(f"ds_read_b128 {vr(32+4*w,4)}, v5 offset:{1024*w}")
    a("s_waitcnt vmcnt(23) lgkmcnt(0)")
    for w in range(1, 8):
        for r in range(4):
            a(f"v_add_f32 v{32+r}, v{32+r}, v{32+4*w+r}")
    for r in range(4):
        half_sum(a, 32 + r, 36)
    for r in range(2):
        m, x2 = 32 + 2 * r, 33 + 2 * r
        a(f"v_mul_f32 v{m}, {f2u(1.0/512):#x}, v{m}")
        a(f"v_mul_f32 v{x2}, {f2u(1.0/512):#x}, v{x2}")
        a(f"v_fma_f32 v{x2}, -v{m}, v{m}, v{x2}")
        a(f"v_max_f32 v{x2}, 0, v{x2}")
        a(f"v_add_f32 v{x2}, {f2u(EPS):#x}, v{x2}")
        a(f"v_rsq_f32 v{8+2*r}, v{x2}")
        a.nop(1)
        a(f"v_mul_f32 v{9+2*r}, v{m}, v{8+2*r}")
        a(f"v_sub_f32 v{9+2*r}, 0, v{9+2*r}")
    for rr in range(2):
        for r in range(16):
            a(f"v_mul_f32 v{40+r}, v{9+2*rr}, v{88+r}")
            a(f"v_fma_f32 v{CACC+16*rr+r}, v{CACC+16*rr+r}, v{8+2*rr}, v{40+r}")
        for q in range(8):
            a(f"v_cvt_pk_bf16_f32 v{16+8*rr+q}, v{CACC+16*rr+2*q}, v{CACC+16*rr+2*q+1}")
        for q in range(8):
            a(f"v_pk_max_i16 v{16+8*rr+q}, v{16+8*rr+q}, 0")
    a("s_lshl_b32 s26, s4, 1")
    a("s_mul_i32 s26, s26, 112")
    a("s_lshl_b32 s27, s51, 1")
    a("s_add_u32 s26, s26, s27")
    a("s_lshl_b32 s26, s26, 10")
    a(f"s_add_u32 s26, s26, {HF:#x}")
    a(f"s_add_u32 s27, s26, {112*1024}")
    hstore(a, ["buffer_store_dwordx4 v[16:19], v2, s[8:11], s26 offen",
               "buffer_store_dwordx4 v[20:23], v2, s[8:11], s26 offen offset:1024",
               "buffer_store_dwordx4 v[24:27], v2, s[8:11], s27 offen",
               "buffer_store_dwordx4 v[28:31], v2, s[8:11], s27 offen offset:1024"])
    a(f"{T}_cdone:")
    a.stamp(9)
    publish(a, EP + 3, f"{T}_p3")
    a("s_lshl_b32 s20, s4, 1")
    a("s_mul_i32 s20, s20, 112")
    a("s_mul_i32 s21, s3, 14")
    a("s_add_u32 s20, s20, s21")
    a("s_lshl_b32 s20, s20, 10")
    a(f"s_add_u32 s20, s20, {HF:#x}")
    a(f"s_add_u32 s21, s20, {112*1024}")
    wait_flag(a, EP + 3, f"{T}_w3")
    a.stamp(10)
    RING = 8
    DACC = 72

    def hld(i):
        b = 8 + 8 * (i % RING)
        ld(a, vr(b, 4), 20, i, 33, SCL)
        ld(a, vr(b + 4, 4), 21, i, 33, SCL)
    for i in range(RING):
        hld(i)
    def qreg(j):
        return w1reg(j)
    qpf = []
    if not last:
        a(f"s_add_u32 s48, s48, {(WQF - WOF) & 0xffffffff:#x}")
        a("s_add_u32 s49, s48, 32768")
        a("s_lshl_b32 s56, s3, 12")
        a(f"s_add_u32 s56, s56, {WKVF:#x}")
        a("v_lshlrev_b32 v156, 4, v4")
        a("v_lshlrev_b32 v157, 2, v3")
        a("s_lshl_b32 s57, s46, 7")
        a("s_lshl_b32 s33, s47, 6")
        a("s_add_u32 s57, s57, s33")
        a(f"s_add_u32 s57, s57, {CSQ:#x}")
        a(f"s_mov_b32 s58, {CSKV:#x}")
        for i in range(4):
            qpf.append(lambda i=i: ld(a, qreg(2 * i), 48, i, 33))
            qpf.append(lambda i=i: ld(a, qreg(2 * i + 1), 49, i, 33))
        for i in range(4):
            qpf.append(lambda i=i: ld(a, qreg(8 + i), 56, i, 33))
        for q in range(2):
            qpf.append(lambda q=q: a(f"buffer_load_dwordx4 {qreg(12+q)}, v156, s[8:11], s57 offen offset:{32*q}"))
        for q in range(2):
            qpf.append(lambda q=q: a(f"buffer_load_dwordx4 {qreg(14+q)}, v156, s[8:11], s58 offen offset:{32*q}"))
        qpf.append(lambda: a("buffer_load_dword a4, v157, s[8:11], s58 offen"))
    for j in range(23, 28):
        ld(a, w2reg(j), 54 + (j & 1), j >> 1, 33)

    def dloop(split, qpf):
        order = [('h', i) for i in range(RING)] + [('w', j) for j in range(23, 28)]
        for i in range(14):
            pos = order.index(('h', i))
            after = sum(2 if k == 'h' else 1 for (k, _) in order[pos + 1:])
            a(f"s_waitcnt vmcnt({after})")
            b = 8 + 8 * (i % RING)
            for c in range(2):
                for r in range(2):
                    t = 2 * c + r
                    cin = "0" if i == 0 else vr(DACC + 16 * t, 16)
                    a(f"v_mfma_f32_32x32x16_bf16 {vr(DACC+16*t,16)}, {w2reg(2*i+c)}, {vr(b+4*r,4)}, {cin}")
            if not split and i + RING < 14:
                hld(i + RING)
                order.append(('h', i + RING))
            elif split and i == RING - 1:
                poll3(0x70, f"{T}_w3b")
                for j in range(RING, 14):
                    hld(j)
                    order.append(('h', j))
            if i + RING >= 14 and (not split or i >= RING - 1):
                for _ in range(3):
                    k = sum(1 for (kk, _) in order if kk == 'q')
                    if qpf and k < 2 * i:
                        qpf.pop(0)()
                        order.append(('q', k))
        assert not qpf
    dloop(False, list(qpf))
    qpf = []
    a.stamp(11)
    assert not qpf
    reduce8(a, DACC, 8)
    for q in range(4):
        a(f"v_accvgpr_read_b32 v{16+q}, a{32+q}")
    for q in range(4):
        a(f"v_lshlrev_b32 v20, 16, v{16+q}")
        a(f"v_and_b32 v21, 0xffff0000, v{16+q}")
        a(f"v_add_f32 v{8+2*q}, v{8+2*q}, v20")
        a(f"v_add_f32 v{9+2*q}, v{9+2*q}, v21")
    for q in range(4):
        a(f"v_cvt_pk_bf16_f32 v{16+q}, v{8+2*q}, v{9+2*q}")
    if last:
        a.nop(2)
        a("v_permlane32_swap_b32 v16, v18")
        a("v_permlane32_swap_b32 v17, v19")
        a("v_lshlrev_b32 v5, 10, v3")
        a("v_lshl_add_u32 v5, v4, 4, v5")
        a("s_lshl_b32 s31, s45, 15")
        a("s_lshl_b32 s32, s46, 6")
        a("s_add_u32 s31, s31, s32")
        a("s_lshl_b32 s32, s47, 5")
        a("s_add_u32 s31, s31, s32")
        a("buffer_store_dwordx4 v[16:19], v5, s[16:19], s31 offen")
        a.stamp(12)
    else:
        XN, QN, KVN, KNN = XFL[1], QFL[1], KVFL[1], KNL[1]
        a(f"s_add_u32 s23, s42, {XN:#x}")
        hstore(a, ["buffer_store_dwordx4 v[16:19], v2, s[8:11], s23 offen"])
        a.stamp(12)
        publish(a, EP + 4, f"{T}_p4")
        a(f"s_add_u32 s20, s53, {XN:#x}")
        a("s_add_u32 s21, s20, 32768")
        a("s_mov_b32 s28, 0x3f803f80")
        wait_flag(a, EP + 4, f"{T}_w4")
        a.stamp(13)
        for i in range(4):
            ld(a, vr(8 + 8 * i, 4), 20, i, 33, SCL)
            ld(a, vr(12 + 8 * i, 4), 21, i, 33, SCL)
        for r in range(8):
            a(f"v_mov_b32 v{40+r}, 0")
        ACC = 64
        for i in range(4):
            a(f"s_waitcnt vmcnt({2*(3-i)})")
            for c in range(2):
                for r in range(2):
                    t = 2 * c + r
                    cin = "0" if i == 0 else vr(ACC + 16 * t, 16)
                    a(f"v_mfma_f32_32x32x16_bf16 {vr(ACC+16*t,16)}, {qreg(2*i+c)}, {vr(8+8*i+4*r,4)}, {cin}")
                    for q in range(4):
                        x = 8 + 8 * i + 4 * r + q
                        k = 40 + 4 * (q % 2) + 2 * r + c
                        if c == 0:
                            a(f"v_dot2_f32_bf16 v{k}, v{x}, s28, v{k}")
                        else:
                            a(f"v_dot2_f32_bf16 v{k}, v{x}, v{x}, v{k}")
        a("s_lshl_b32 s32, s3, 11")
        a(f"s_add_u32 s32, s32, {KVS}")
        a("v_add_u32 v7, s32, v2")
        a("s_cmp_ge_u32 s5, 6")
        a(f"s_cbranch_scc1 {T}_kvdone")
        for task in range(6):
            if task < 5:
                a(f"s_cmp_lg_u32 s5, {task}")
                a(f"s_cbranch_scc1 {T}_kvt{task+1}")
            kind = 'K' if task < 2 else 'V'
            r = task if task < 2 else (task - 2) >> 1
            u = 0 if task < 2 else (task & 1)
            for i in range(4):
                cin = "0" if i == 0 else vr(128, 16)
                if kind == 'K':
                    a(f"v_mfma_f32_32x32x16_bf16 {vr(128,16)}, {qreg(8+i)}, {vr(8+8*i+4*r,4)}, {cin}")
                else:
                    a(f"v_mfma_f32_32x32x16_bf16 {vr(128,16)}, {vr(8+8*i+4*r,4)}, {qreg(8+i)}, {cin}")
            a.nop(16)
            a(f"ds_write_b128 v7, {vr(128+8*u,4)}")
            a(f"ds_write_b128 v7, {vr(132+8*u,4)} offset:1024")
            if task < 5:
                a(f"s_branch {T}_kvdone")
                a(f"{T}_kvt{task+1}:")
        a(f"{T}_kvdone:")
        a("s_lshl_b32 s32, s3, 10")
        a(f"s_add_u32 s32, s32, {STATQ}")
        a("v_add_u32 v7, s32, v2")
        for r in range(4):
            a(f"v_add_f32 v{40+r}, v{40+r}, v{44+r}")
        a("ds_write_b128 v7, v[40:43]")
        reduce8(a, ACC, 8)
        a.stamp(14)
        qkv_tail(a, T, end, QN, KVN, KNN,
                 lambda: [a(f"v_accvgpr_read_b32 v{16+r}, a{84+r}") for r in range(8)],
                 lambda: [a(f"v_accvgpr_read_b32 v{16+r}, a{92+r if r < 4 else r-4}") for r in range(8)],
                 lambda: a("v_accvgpr_read_b32 v47, a4"))
    a(f"{end}:")
    a.stamp_flush(16)
    a(f"{end}x:")
    a("s_endpgm")
    a.desc(name, 160, agpr=96)
    return SCR + 8 * 2304 + 64


def tr_addr(a, dst, RS, t1, t2):
    a(f"v_lshrrev_b32 v{t1}, 5, v1")
    a(f"v_lshlrev_b32 v{t1}, 2, v{t1}")
    a(f"v_bfe_u32 v{t2}, v1, 2, 2")
    a(f"v_add_u32 v{t1}, v{t1}, v{t2}")
    a(f"v_mul_u32_u24 v{dst}, {RS}, v{t1}")
    a(f"v_bfe_u32 v{t1}, v1, 4, 1")
    a(f"v_lshlrev_b32 v{t1}, 5, v{t1}")
    a(f"v_and_b32 v{t2}, 3, v1")
    a(f"v_lshlrev_b32 v{t2}, 3, v{t2}")
    a(f"v_add3_u32 v{dst}, v{dst}, v{t1}, v{t2}")


def gen_K0(a):
    name = "k0_kernel"
    T = "K0"
    a.begin(name)
    end = f"{name}_end"
    XS = 65536
    KVW = 131072
    ST = KVW + 16384
    CSW = ST + 512
    CSPQ = CSW + 512
    CSP2 = CSPQ + 3072
    a("s_cmp_ge_u32 s2, 256")
    a(f"s_cbranch_scc1 {end}x")
    a.stamp(0)
    a("s_load_dwordx16 s[16:31], s[0:1], 0")
    a("s_load_dwordx2 s[6:7], s[0:1], 80")
    a("v_and_b32 v1, 63, v0")
    a("v_lshrrev_b32 v2, 6, v0")
    a("v_and_b32 v3, 31, v1")
    a("v_readfirstlane_b32 s60, v2")
    a("v_lshrrev_b32 v4, 5, v1")
    a("v_lshlrev_b32 v2, 4, v1")
    a("s_and_b32 s4, s2, 31")
    a("s_lshr_b32 s5, s2, 5")
    a("s_and_b32 s3, s60, 7")
    a("s_mov_b32 s61, 0x3f803f80")
    a("s_waitcnt lgkmcnt(0)")
    a.srd(8, 6, G.WS_USED)
    a("s_cmp_ge_u32 s60, 8")
    a("s_cbranch_scc1 K0_prep")
    a.stamp(1)
    a.srd(12, 16, 2048 * 512 * 2)
    a.srd(48, 18, 512 * 512 * 2)
    a("s_cmp_ge_u32 s5, 2")
    a("s_cbranch_scc1 K0_nokv")
    a("s_cmp_eq_u32 s5, 0")
    a("s_cselect_b32 s52, s20, s22")
    a("s_cselect_b32 s53, s21, s23")
    a(f"s_mov_b32 s54, {512*16*2}")
    a("s_mov_b32 s55, 0x00020000")
    a("s_lshl_b32 s32, s3, 11")
    a(f"s_add_u32 m0, s32, {KVW}")
    a("s_nop 0")
    a("buffer_load_dwordx4 v2, s[52:55], s32 offen lds")
    a("buffer_load_dwordx4 v2, s[52:55], s32 offen offset:1024 lds")
    a("K0_nokv:")
    a("s_lshl_b32 s32, s4, 16")
    a("s_lshl_b32 s33, s3, 13")
    a("s_add_u32 s32, s32, s33")
    a(f"s_add_u32 s33, s33, {XS}")
    a("s_and_b32 s35, s3, 1")
    a("s_lshl_b32 s35, s35, 7")
    a("v_xor_b32 v7, s35, v2")
    for i in range(8):
        a(f"v_xor_b32 v5, {i<<4}, v7")
        a(f"s_add_u32 m0, s33, {1024*i}")
        a(f"s_add_u32 s34, s32, {1024*i}")
        a("buffer_load_dwordx4 v5, s[12:15], s34 offen lds")
    a("v_lshrrev_b32 v6, 3, v1")
    a("v_lshlrev_b32 v6, 10, v6")
    a("v_and_b32 v7, 7, v1")
    a("v_lshl_add_u32 v6, v7, 4, v6")
    a("s_lshl_b32 s32, s3, 16")
    a("s_lshl_b32 s33, s5, 7")
    a("s_add_u32 s32, s32, s33")
    a("s_lshl_b32 s33, s3, 13")
    for i in range(8):
        a(f"s_add_u32 m0, s33, {1024*i}")
        a(f"s_add_u32 s34, s32, {8192*i}")
        a("buffer_load_dwordx4 v6, s[48:51], s34 offen lds")
    a.stamp(2)
    a("s_and_b32 s43, s3, 1")
    a("s_lshr_b32 s44, s3, 1")
    a("s_lshl_b32 s45, s4, 1")
    a("s_add_u32 s45, s45, s43")
    a("s_lshl_b32 s46, s5, 1")
    a("s_add_u32 s46, s46, s44")
    a("s_lshl_b32 s42, s45, 5")
    a("s_lshl_b32 s32, s46, 1")
    a("s_add_u32 s42, s42, s32")
    a("s_lshl_b32 s42, s42, 10")
    a(f"s_add_u32 s42, s42, {QFL[0]:#x}")
    a(f"s_mul_i32 s47, s45, {KVT}")
    a(f"s_add_u32 s47, s47, {KVFL[0]:#x}")
    if TOUCH2:
        a("s_cmp_lt_u32 s3, 4")
        a("s_cselect_b32 s32, s42, s47")
        a("v_min_u32 v5, 16, v1")
        a("v_lshlrev_b32 v5, 7, v5")
        a("buffer_load_dword v0, v5, s[8:11], s32 offen")
    a("v_and_b32 v5, 15, v3")
    a("v_xor_b32 v5, v5, v4")
    a("v_lshlrev_b32 v5, 4, v5")
    a("v_lshl_add_u32 v5, v3, 10, v5")
    a("s_lshl_b32 s32, s43, 15")
    a(f"s_add_u32 s32, s32, {XS}")
    a("v_add_u32 v5, s32, v5")
    for c in range(8):
        a(f"v_xor_b32 v{120+c}, {c<<5}, v5")
    tr_addr(a, 118, 128, 5, 6)
    a("v_lshl_add_u32 v118, v4, 9, v118")
    a("s_lshl_b32 s32, s44, 6")
    a("v_add_u32 v118, s32, v118")
    a("v_lshlrev_b32 v5, 3, v4")
    a("v_bfe_u32 v6, v1, 2, 2")
    a("v_add_u32 v5, v5, v6")
    a("v_lshlrev_b32 v5, 5, v5")
    a("v_and_b32 v6, 3, v1")
    a("v_lshl_add_u32 v5, v6, 3, v5")
    a(f"v_add_u32 v119, {KVW}, v5")
    a("v_lshrrev_b32 v5, 3, v1")
    a("v_lshlrev_b32 v5, 10, v5")
    a("v_and_b32 v6, 7, v1")
    a("v_lshl_add_u32 v5, v6, 4, v5")
    a("s_lshl_b32 s32, s3, 13")
    a(f"s_add_u32 s32, s32, {XS}")
    a("v_add_u32 v5, s32, v5")
    for r in range(8):
        a(f"v_mov_b32 v{8+r}, 0")
    a(f"s_waitcnt vmcnt({8+TOUCH2})")
    for j in range(8):
        a(f"ds_read_b128 {vr(16+4*j,4)}, v5 offset:{128*j}")
    for j in range(8):
        a(f"s_waitcnt lgkmcnt({7-j})")
        for q in range(4):
            x = 16 + 4 * j + q
            a(f"v_dot2_f32_bf16 v{8+q}, v{x}, s61, v{8+q}")
            a(f"v_dot2_f32_bf16 v{12+q}, v{x}, v{x}, v{12+q}")
    a.nop(3)
    for b in (8, 12):
        a(f"v_add_f32 v{b}, v{b}, v{b+1}")
        a(f"v_add_f32 v{b+2}, v{b+2}, v{b+3}")
        a(f"v_add_f32 v{b}, v{b}, v{b+2}")
    for off in (0x041F, 0x081F, 0x101F):
        a(f"ds_swizzle_b32 v9, v8 offset:{off:#x}")
        a(f"ds_swizzle_b32 v13, v12 offset:{off:#x}")
        a("s_waitcnt lgkmcnt(0)")
        a("v_add_f32 v8, v8, v9")
        a("v_add_f32 v12, v12, v13")
    a(f"v_mul_f32 v8, {f2u(1.0/512):#x}, v8")
    a(f"v_mul_f32 v12, {f2u(1.0/512):#x}, v12")
    a("v_fma_f32 v12, -v8, v8, v12")
    a("v_max_f32 v12, 0, v12")
    a(f"v_add_f32 v12, {f2u(EPS):#x}, v12")
    a("v_rsq_f32 v12, v12")
    a.nop(1)
    a("v_mul_f32 v13, v8, v12")
    a("v_sub_f32 v13, 0, v13")
    a("s_lshr_b32 s32, s3, 2")
    a("s_lshl_b32 s32, s32, 8")
    a("s_and_b32 s33, s3, 3")
    a("s_lshl_b32 s33, s33, 5")
    a("s_add_u32 s32, s32, s33")
    a(f"s_add_u32 s32, s32, {ST}")
    a("v_lshrrev_b32 v5, 3, v1")
    a("v_lshlrev_b32 v5, 2, v5")
    a("v_add_u32 v5, s32, v5")
    a("ds_write_b32 v5, v12")
    a("ds_write_b32 v5, v13 offset:128")
    a("s_lshl_b32 s32, s44, 6")
    a("v_subrev_u32 v6, s32, v118")
    a("s_lshl_b32 s32, s3, 13")
    a("v_add_u32 v6, s32, v6")
    a("s_lshl_b32 s32, s3, 11")
    a("v_add_u32 v7, s32, v119")
    for r in range(3):
        a(f"v_mov_b32 v{8+r}, 0")
    for i in range(4):
        a(f"ds_read_b64_tr_b16 {vr(48+4*i,2)}, v7 offset:{16*i*32}")
        a(f"ds_read_b64_tr_b16 {vr(50+4*i,2)}, v7 offset:{(16*i+4)*32}")
    a("s_waitcnt lgkmcnt(0)")
    for r in range(16):
        a(f"v_dot2_f32_bf16 v10, v{48+r}, s61, v10")
    a(f"s_waitcnt vmcnt({TOUCH2})")
    for c in range(2):
        for i in range(4):
            a(f"ds_read_b64_tr_b16 {vr(16+16*c+4*i,2)}, v6 offset:{16*i*128+64*c}")
            a(f"ds_read_b64_tr_b16 {vr(18+16*c+4*i,2)}, v6 offset:{(16*i+4)*128+64*c}")
    for c in range(2):
        a(f"s_waitcnt lgkmcnt({8*(1-c)})")
        for r in range(16):
            a(f"v_dot2_f32_bf16 v{8+c}, v{16+16*c+r}, s61, v{8+c}")
    a.nop(3)
    for r in range(3):
        half_sum(a, 8 + r, 11)
    a("s_mul_i32 s32, s3, 384")
    a(f"s_add_u32 s32, s32, {CSPQ}")
    a("v_lshlrev_b32 v5, 2, v3")
    a("v_add_u32 v5, s32, v5")
    for r in range(3):
        a(f"ds_write_b32 v5, v{8+r} offset:{128*r}")
    a("s_waitcnt lgkmcnt(0)")
    a("s_barrier")
    a.stamp(3)
    NB = 6
    XB, WB, ACC = 16, 40, 96

    def xrd(i):
        b = XB + 4 * (i % NB)
        a(f"ds_read_b128 {vr(b,4)}, v{120+(i%8)} offset:{(i//8)*256}")

    def gemm(wbase, RS, swapped):
        def wrd(i):
            b = WB + 4 * (i % NB)
            a(f"ds_read_b64_tr_b16 {vr(b,2)}, v{wbase} offset:{16*i*RS}")
            a(f"ds_read_b64_tr_b16 {vr(b+2,2)}, v{wbase} offset:{(16*i+4)*RS}")
        for i in range(NB - 1):
            xrd(i)
            wrd(i)
        for i in range(32):
            if i + NB - 1 < 32:
                xrd(i + NB - 1)
                wrd(i + NB - 1)
            pend = min(32, i + NB) - i - 1
            a(f"s_waitcnt lgkmcnt({3*pend})")
            xb, wb = XB + 4 * (i % NB), WB + 4 * (i % NB)
            cin = "0" if i == 0 else vr(ACC, 16)
            if swapped:
                a(f"v_mfma_f32_32x32x16_bf16 {vr(ACC,16)}, {vr(xb,4)}, {vr(wb,4)}, {cin}")
            else:
                a(f"v_mfma_f32_32x32x16_bf16 {vr(ACC,16)}, {vr(wb,4)}, {vr(xb,4)}, {cin}")

    def cs_regs(n, tile_sreg=None, tile=None):
        if tile_sreg is not None:
            a(f"s_lshl_b32 s32, s{tile_sreg}, 7")
            a(f"s_add_u32 s32, s32, {CSW}")
        else:
            a(f"s_mov_b32 s32, {CSW + 128*tile}")
        a("v_lshlrev_b32 v5, 4, v4")
        a("v_add_u32 v5, s32, v5")
        for q in range(n // 4):
            a(f"ds_read_b128 {vr(64+4*q,4)}, v5 offset:{32*q}")

    def row_stats():
        a("s_lshl_b32 s32, s43, 8")
        a(f"s_add_u32 s32, s32, {ST}")
        a("v_lshlrev_b32 v5, 2, v3")
        a("v_add_u32 v5, s32, v5")
        a("ds_read_b32 v12, v5")
        a("ds_read_b32 v13, v5 offset:128")
        a("s_waitcnt lgkmcnt(0)")

    a("s_cmp_ge_u32 s3, 6")
    a("s_cbranch_scc1 K0_stats")
    a("s_cmp_ge_u32 s3, 4")
    a("s_cbranch_scc1 K0_kv")
    gemm(118, 128, False)
    a.stamp(4)
    a("s_barrier")
    a.stamp(5)
    cs_regs(16, tile_sreg=44)
    row_stats()
    a(f"v_mul_f32 v12, {f2u(QS):#x}, v12")
    a(f"v_mul_f32 v13, {f2u(QS):#x}, v13")
    for r in range(16):
        a(f"v_mul_f32 v{64+r}, v13, v{64+r}")
        a(f"v_fma_f32 v{ACC+r}, v{ACC+r}, v12, v{64+r}")
    for q in range(8):
        a(f"v_cvt_pk_bf16_f32 v{16+q}, v{ACC+2*q}, v{ACC+2*q+1}")
    a("buffer_store_dwordx4 v[16:19], v2, s[8:11], s42 offen")
    a("buffer_store_dwordx4 v[20:23], v2, s[8:11], s42 offen offset:1024")
    a(f"s_branch {end}")
    a("K0_kv:")
    a("s_cmp_ge_u32 s5, 2")
    a(f"s_cbranch_scc1 {end}x")
    a("s_cmp_eq_u32 s5, 1")
    a("s_cbranch_scc1 K0_v")
    gemm(119, 32, False)
    a("s_barrier")
    cs_regs(8, tile=2)
    row_stats()
    a("v_mov_b32 v14, 0")
    for r in range(8):
        a(f"v_mul_f32 v{64+r}, v13, v{64+r}")
        a(f"v_fma_f32 v{ACC+r}, v{ACC+r}, v12, v{64+r}")
        a(f"v_fma_f32 v14, v{ACC+r}, v{ACC+r}, v14")
    for q in range(4):
        a(f"v_cvt_pk_bf16_f32 v{16+q}, v{ACC+2*q}, v{ACC+2*q+1}")
    a("buffer_store_dwordx4 v[16:19], v2, s[8:11], s47 offen")
    half_sum(a, 14, 15)
    a("s_lshl_b32 s32, s45, 7")
    a(f"s_add_u32 s32, s32, {KNL[0]:#x}")
    a("v_lshlrev_b32 v15, 2, v3")
    a("v_cmp_gt_u32 vcc, 32, v1")
    a("s_and_saveexec_b64 s[38:39], vcc")
    a("buffer_store_dword v14, v15, s[8:11], s32 offen")
    a(f"s_branch {end}")
    a("K0_v:")
    gemm(119, 32, True)
    a("s_barrier")
    a("v_lshlrev_b32 v5, 2, v3")
    a(f"v_add_u32 v5, {CSW+256}, v5")
    a("ds_read_b32 v8, v5")
    a("s_lshl_b32 s32, s43, 8")
    a(f"s_add_u32 s32, s32, {ST}")
    a("v_lshlrev_b32 v5, 4, v4")
    a("v_add_u32 v5, s32, v5")
    for q in range(4):
        a(f"ds_read_b128 {vr(64+4*q,4)}, v5 offset:{32*q}")
        a(f"ds_read_b128 {vr(80+4*q,4)}, v5 offset:{128+32*q}")
    a("s_waitcnt lgkmcnt(0)")
    for r in range(16):
        a(f"v_mul_f32 v{80+r}, v8, v{80+r}")
        a(f"v_fma_f32 v{ACC+r}, v{ACC+r}, v{64+r}, v{80+r}")
    for q in range(8):
        a(f"v_cvt_pk_bf16_f32 v{16+q}, v{ACC+2*q}, v{ACC+2*q+1}")
    a("v_cmp_eq_u32 s[38:39], 16, v3")
    a("v_mov_b32 v14, 0x3f803f80")
    a("v_mov_b32 v15, 0")
    a("v_cndmask_b32 v14, v15, v14, s[38:39]")
    a("v_cmp_gt_u32 vcc, 16, v3")
    a("v_lshlrev_b32 v5, 4, v3")
    a(f"v_mul_u32_u24 v15, {VH}, v4")
    for q in range(8):
        a(f"v_cndmask_b32 v{16+q}, v14, v{16+q}, vcc")
    a("v_add_u32 v5, v5, v15")
    a("v_cmp_gt_u32 vcc, 18, v3")
    a("s_and_saveexec_b64 s[38:39], vcc")
    a("buffer_store_dwordx4 v[16:19], v5, s[8:11], s47 offen offset:1024")
    a(f"buffer_store_dwordx4 v[20:23], v5, s[8:11], s47 offen offset:{1024+VU}")
    a(f"s_branch {end}")
    a("K0_stats:")
    a("s_lshl_b32 s32, s43, 8")
    a("v_lshlrev_b32 v5, 2, v1")
    a("v_lshlrev_b32 v6, 2, v3")
    a("s_cmp_eq_u32 s43, 0")
    a("s_cbranch_scc1 K0_cs6")
    a("v_mov_b32 v5, v6")
    a("K0_cs6:")
    a("v_add_u32 v5, s32, v5")
    a(f"v_add_u32 v6, {CSPQ}, v5")
    for s in range(8):
        a(f"ds_read_b32 v{16+s}, v6 offset:{384*s}")
    a("s_waitcnt lgkmcnt(0)")
    for s in range(1, 8):
        a(f"v_add_f32 v16, v16, v{16+s}")
    a(f"v_add_u32 v5, {CSW}, v5")
    a("ds_write_b32 v5, v16")
    a("s_waitcnt lgkmcnt(0)")
    a("s_barrier")
    a(f"s_branch {end}x")
    a("K0_prep:")
    a("s_sub_u32 s63, 255, s2")
    a.srd(52, 20, 512 * 16 * 2)
    a.srd(56, 22, 512 * 16 * 2)
    a("s_cmp_lt_u32 s63, 154")
    a("s_cbranch_scc1 K0_ptask")
    a("K0_pidle:")
    a(f"s_branch {end}x")
    a("K0_ptask:")
    a("s_cmp_lg_u32 s63, 153")
    a("s_cbranch_scc1 K0_pw")
    a("s_lshl_b32 s32, s3, 11")
    a(f"s_add_u32 s32, s32, {FLAGS:#x}")
    for r in range(4):
        a(f"v_mov_b32 v{16+r}, 0")
    a("buffer_store_dwordx4 v[16:19], v2, s[8:11], s32 offen")
    a("buffer_store_dwordx4 v[16:19], v2, s[8:11], s32 offen offset:1024")
    a("s_branch K0_pidle")
    a("K0_pw:")
    a("s_mov_b32 s46, 0")
    a("s_mov_b32 s36, 32")
    a("s_cmp_eq_u32 s63, 152")
    a("s_cbranch_scc1 K0_pkv")
    a("s_cmp_ge_u32 s63, 88")
    a("s_cbranch_scc1 K0_pw2")
    a("s_cmp_ge_u32 s63, 32")
    a("s_cbranch_scc1 K0_pw1")
    a("s_cmp_ge_u32 s63, 16")
    a("s_cbranch_scc1 K0_pwo")
    a.srd(40, 18, 512 * 512 * 2)
    a("s_mov_b32 s44, 1024")
    a("s_mov_b32 s45, s63")
    a("s_lshl_b32 s47, s45, 15")
    a(f"s_add_u32 s47, s47, {WQF:#x}")
    a("s_lshl_b32 s49, s45, 7")
    a(f"s_add_u32 s49, s49, {CSQ:#x}")
    a("s_branch K0_pgo")
    a("K0_pwo:")
    a.srd(40, 24, 512 * 512 * 2)
    a("s_mov_b32 s44, 1024")
    a("s_sub_u32 s45, s63, 16")
    a("s_lshl_b32 s47, s45, 15")
    a(f"s_add_u32 s47, s47, {WOF:#x}")
    a("s_mov_b32 s49, 0")
    a("s_branch K0_pgo")
    a("K0_pw1:")
    a.srd(40, 28, 512 * 1792 * 2)
    a("s_mov_b32 s44, 3584")
    a("s_sub_u32 s45, s63, 32")
    a("s_lshl_b32 s47, s45, 15")
    a(f"s_add_u32 s47, s47, {W1F:#x}")
    a("s_lshl_b32 s49, s45, 7")
    a(f"s_add_u32 s49, s49, {CS1:#x}")
    a("s_branch K0_pgo")
    a("K0_pw2:")
    a.srd(40, 30, 512 * 1792 * 2)
    a("s_mov_b32 s44, 1024")
    a("s_sub_u32 s45, s63, 88")
    a("s_and_b32 s46, s45, 3")
    a("s_mul_i32 s46, s46, 28")
    a("s_lshr_b32 s45, s45, 2")
    a("s_mul_i32 s47, s45, 112")
    a("s_add_u32 s47, s47, s46")
    a("s_lshl_b32 s47, s47, 10")
    a(f"s_add_u32 s47, s47, {W2F:#x}")
    a("s_mov_b32 s36, 28")
    a("s_mov_b32 s49, 0")
    a("K0_pgo:")
    a("s_lshl_b32 s50, s3, 2")
    a("s_cmp_ge_u32 s50, s36")
    a(f"s_cbranch_scc1 {end}x")
    a("v_lshrrev_b32 v5, 2, v1")
    a("v_mul_lo_u32 v5, v5, s44")
    a("v_and_b32 v6, 3, v1")
    a("v_lshl_add_u32 v5, v6, 4, v5")
    a("s_add_u32 s51, s46, s50")
    a("s_lshl_b32 s51, s51, 4")
    a("s_mul_i32 s51, s51, s44")
    a("s_lshl_b32 s32, s45, 6")
    a("s_add_u32 s51, s51, s32")
    a("s_lshl_b32 s33, s44, 4")
    for i in range(4):
        a(f"buffer_load_dwordx4 {vr(32+4*i,4)}, v5, s[40:43], s51 offen")
        a("s_add_u32 s51, s51, s33")
    a("s_branch K0_ptr")
    a("K0_pkv:")
    a("s_lshl_b32 s50, s3, 2")
    a("v_lshrrev_b32 v7, 2, v1")
    a("v_lshlrev_b32 v7, 5, v7")
    a("v_and_b32 v5, 1, v1")
    a("v_lshl_add_u32 v7, v5, 4, v7")
    a("v_and_b32 v5, 2, v1")
    a("v_cmp_eq_u32 vcc, 0, v5")
    a("s_lshl_b32 s20, s3, 11")
    a("s_and_saveexec_b64 s[38:39], vcc")
    for i in range(4):
        a(f"buffer_load_dwordx4 {vr(32+4*i,4)}, v7, s[52:55], s20 offen offset:{512*i}")
    a("s_andn2_b64 exec, s[38:39], exec")
    for i in range(4):
        a(f"buffer_load_dwordx4 {vr(32+4*i,4)}, v7, s[56:59], s20 offen offset:{512*i}")
    a("s_mov_b64 exec, s[38:39]")
    a(f"s_mov_b32 s47, {WKVF:#x}")
    a(f"s_mov_b32 s49, {CSKV:#x}")
    a("K0_ptr:")
    a("s_lshl_b32 s32, s50, 10")
    a("s_add_u32 s47, s47, s32")
    if TOUCH2:
        a("v_lshlrev_b32 v9, 7, v3")
        a("buffer_load_dword v10, v9, s[8:11], s47 offen")
    a("s_lshl_b32 s62, s3, 10")
    a(f"s_add_u32 s62, s62, {KVW}")
    tr_addr(a, 8, 64, 5, 6)
    a("v_add_u32 v8, s62, v8")
    a("v_add_u32 v9, s62, v2")
    a("v_mov_b32 v7, 0")
    a("s_barrier")
    a(f"s_waitcnt vmcnt({TOUCH2})")
    for i in range(4):
        a(f"ds_write_b128 v9, {vr(32+4*i,4)}")
        a(f"ds_read_b64_tr_b16 {vr(16+4*i,2)}, v8")
        a(f"ds_read_b64_tr_b16 {vr(18+4*i,2)}, v8 offset:{8*64}")
    for i in range(4):
        a(f"s_waitcnt lgkmcnt({3*(3-i)})")
        a(f"buffer_store_dwordx4 {vr(16+4*i,4)}, v2, s[8:11], s47 offen offset:{1024*i}")
        for q in range(4):
            a(f"v_dot2_f32_bf16 v7, v{16+4*i+q}, s61, v7")
    a("s_cmp_eq_u32 s49, 0")
    a(f"s_cbranch_scc1 {end}x")
    a.nop(2)
    half_sum(a, 7, 5)
    a("s_lshl_b32 s32, s3, 7")
    a(f"s_add_u32 s32, s32, {CSP2}")
    a("v_lshlrev_b32 v6, 2, v3")
    a("v_add_u32 v5, s32, v6")
    a("ds_write_b32 v5, v7")
    a("s_waitcnt lgkmcnt(0)")
    a("s_barrier")
    a("s_cmp_lg_u32 s3, 0")
    a(f"s_cbranch_scc1 {end}x")
    a(f"v_add_u32 v5, {CSP2}, v6")
    for s in range(8):
        a(f"ds_read_b32 v{16+s}, v5 offset:{128*s}")
    a("s_waitcnt lgkmcnt(0)")
    for s in range(1, 8):
        a(f"v_add_f32 v16, v16, v{16+s}")
    a("v_cmp_gt_u32 vcc, 32, v1")
    a("s_and_saveexec_b64 s[38:39], vcc")
    a("buffer_store_dword v16, v6, s[8:11], s49 offen")
    a(f"s_branch {end}x")
    a(f"{end}:")
    a.stamp(6)
    a.stamp_flush(8)
    a(f"{end}x:")
    a("s_endpgm")
    a.desc(name, 128)
    return CSP2 + 1024


def gen_zero_flags(a):
    pass


def main():
    a = Asm()
    G.XF, G.QF, G.KVF = XFL[0], QFL[0], KVFL[0]
    G.FLAGS_ZERO = FLAGS
    lds_k0 = gen_K0(a)
    lds_f = gen_F(a, 0)
    gen_F(a, 1)
    hdr = ["; generated by gen/gen2.py -- fused MQA + FFN pipeline"]
    L = hdr.append
    L(f"; @launch kernel=k0_kernel grid=(256,1,1) block=(1024,1,1) lds={lds_k0}")
    L(f"; @launch kernel=f1_kernel grid=(256,1,1) block=(512,1,1) lds={lds_f}")
    L(f"; @launch kernel=f2_kernel grid=(256,1,1) block=(512,1,1) lds={lds_f}")
    out = "\n".join(hdr) + "\n"
    out += '.amdgcn_target "amdgcn-amd-amdhsa--gfx950"\n.text\n'
    out += "\n".join(a.L) + "\ncode_end:\n"
    out += '.section .rodata,"a"\n' + "\n".join(a.kernels) + "\n"
    path = sys.argv[1] if len(sys.argv) > 1 else f"cdna_kernels/{NAME}.s"
    open(path, 'w').write(out)
    if PROFILE:
        import json
        json.dump(G.PROF_SLOT, open('prof_slots.json', 'w'))
    print("wrote", path, len(out), "bytes")


if __name__ == "__main__":
    main()
```

```python
import os
import sys
import gen as G
from gen import Asm, vr, ar, f2u, half_sum, wave32_max, prologue, frag_loads
from gen import WQF, WOF, W1F, W2F, WKVF, CSQ, CS1, CSKV, VH, VU, KVT, KVF_BYTES, QS, EPS, NAME, PROFILE

LSTRIDE = 0x2000000
XFL = [0x500000, 0x500000 + LSTRIDE]
QFL = [0x700000, 0x700000 + LSTRIDE]
REUSE = int(os.environ.get('REUSE', '1'))
TOUCH = int(os.environ.get('TOUCH', '1'))
TOUCH2 = int(os.environ.get('TOUCH2', '1'))
_R = 0 if REUSE else LSTRIDE
OFL = [0x900000, 0x900000 + _R]
X1FL = [0xB00000, 0xB00000 + _R]
HFL = [0x1000000, 0x1000000 + _R]
KVFL = [0x1800000, 0x1800000 + LSTRIDE]
KNL = [0x1880000, 0x1880000 + LSTRIDE]
FLAGS = 0x490000
FL3 = FLAGS + 8192
G.WS_USED = 0x4400000
G.PROF = 0x4000000
G.KN = KNL[0]
SC = "sc0 sc1"
SCL = os.environ.get("SCL", "sc1")
SPIN_MAX = 200000
BMAX = float(os.environ.get('BMAX', '64'))

PRIO_IT = int(os.environ.get('PRIO_IT', '7'))
WARM = int(os.environ.get('WARM', '1'))
CODEPF = int(os.environ.get('CODEPF', '0'))
FAST = int(os.environ.get('FAST', '1'))
CZERO = int(os.environ.get('CZERO', '1'))


_uid = [0]
FSF = os.environ.get('FSF', '')


def hstore(a, insts):
    _uid[0] += 1
    u = _uid[0]
    a("s_cmp_lg_u32 s61, 0")
    a(f"s_cbranch_scc1 HS{u}_f")
    for i in insts:
        a(f"{i} {SC}")
    a(f"s_branch HS{u}_e")
    a(f"HS{u}_f:")
    for i in insts:
        a(i + (" " + FSF if 'dwordx4' in i else ""))
    a(f"HS{u}_e:")


def publish(a, epoch, tag):
    a("s_waitcnt vmcnt(0)")
    a("s_barrier")
    a("s_cmp_lg_u32 s3, 0")
    a(f"s_cbranch_scc1 {tag}_np")
    a(f"v_mov_b32 v5, {epoch}")
    a("v_mov_b32 v6, 0")
    a("v_cmp_eq_u32 vcc, 0, v1")
    a("s_and_saveexec_b64 s[38:39], vcc")
    hstore(a, ["buffer_store_dword v5, v6, s[8:11], s40 offen"])
    a("s_mov_b64 exec, s[38:39]")
    a(f"{tag}_np:")


def wait_flag(a, epoch, tag):
    a("v_mov_b32 v6, 0")
    a("s_mov_b32 s37, 0")
    a(f"{tag}_poll:")
    a(f"buffer_load_dword v5, v6, s[8:11], s41 offen {SC}")
    a("s_waitcnt vmcnt(0)")
    a("v_readfirstlane_b32 s36, v5")
    a("s_add_u32 s37, s37, 1")
    a(f"s_cmp_ge_u32 s36, {epoch}")
    a(f"s_cbranch_scc1 {tag}_go")
    a(f"s_cmp_gt_u32 s37, {SPIN_MAX}")
    a(f"s_cbranch_scc1 {tag}_go")
    a("s_sleep 1")
    a(f"s_branch {tag}_poll")
    a(f"{tag}_go:")


def ld(a, dst, sbase, idx, stmp, flags=""):
    hi, lo = idx // 4, idx % 4
    if hi == 0:
        so = f"s{sbase}"
    else:
        a(f"s_add_u32 s{stmp}, s{sbase}, {hi*4096}")
        so = f"s{stmp}"
    a(f"buffer_load_dwordx4 {dst}, v2, s[8:11], {so} offen offset:{lo*1024} {flags}")


def reduce8(a, ACC, DST, lds_base=0, pre_barrier=False):
    a("s_lshl_b32 s32, s3, 11")
    a("v_add_u32 v5, s32, v2")
    a("v_add_u32 v6, 0x10000, v5")
    a("s_lshl_b32 s32, s3, 14")
    a("v_add_u32 v7, s32, v2")
    a.nop(12)
    if pre_barrier:
        a("s_waitcnt lgkmcnt(0)")
        a("s_barrier")
    for p in range(8):
        for q in range(2):
            off = (p % 4) * 16384 + q * 1024
            a(f"ds_write_b128 v{5 if p < 4 else 6}, {vr(ACC+8*p+4*q,4)} offset:{off}")
    a("s_waitcnt lgkmcnt(0)")
    a("s_barrier")
    for s in range(8):
        for q in range(2):
            a(f"ds_read_b128 {vr(ACC+8*s+4*q,4)}, v7 offset:{s*2048+q*1024}")
    for s in range(0, 8, 2):
        a(f"s_waitcnt lgkmcnt({12-2*s})")
        for r in range(8):
            if s == 0:
                a(f"v_add_f32 v{DST+r}, v{ACC+r}, v{ACC+8+r}")
            else:
                a(f"v_add_f32 v{ACC+8*s+r}, v{ACC+8*s+r}, v{ACC+8*s+8+r}")
                a(f"v_add_f32 v{DST+r}, v{DST+r}, v{ACC+8*s+r}")


STATQ = 131072
KVS = STATQ + 8192
STAT2 = KVS + 16384
CSP = STAT2 + 256
CSP2 = CSP + 3072


def qkv_tail(a, T, end, QN, KVN, KNN, get_csq, get_csk, get_csv):
    a("s_lshl_b32 s32, s43, 3")
    a(f"s_add_u32 s32, s32, {STATQ}")
    a("v_add_u32 v7, s32, v2")
    for s in range(8):
        a(f"ds_read_b64 {vr(40+2*s,2)}, v7 offset:{s*1024}")
    a("s_waitcnt lgkmcnt(0)")
    for s in range(1, 8):
        a(f"v_add_f32 v40, v40, v{40+2*s}")
        a(f"v_add_f32 v41, v41, v{41+2*s}")
    half_sum(a, 40, 42)
    half_sum(a, 41, 42)
    a(f"v_mul_f32 v40, {f2u(1.0/512):#x}, v40")
    a(f"v_mul_f32 v41, {f2u(1.0/512):#x}, v41")
    a("v_fma_f32 v41, -v40, v40, v41")
    a("v_max_f32 v41, 0, v41")
    a(f"v_add_f32 v41, {f2u(EPS):#x}, v41")
    a("v_rsq_f32 v41, v41")
    a.nop(1)
    a("v_mul_f32 v42, v40, v41")
    a("v_sub_f32 v42, 0, v42")
    a(f"v_mul_f32 v43, {f2u(QS):#x}, v41")
    a(f"v_mul_f32 v44, {f2u(QS):#x}, v42")
    get_csq()
    for r in range(8):
        a(f"v_mul_f32 v{16+r}, v44, v{16+r}")
        a(f"v_fma_f32 v{8+r}, v{8+r}, v43, v{16+r}")
    for q in range(4):
        a(f"v_cvt_pk_bf16_f32 v{24+q}, v{8+2*q}, v{9+2*q}")
    a(f"s_add_u32 s23, s42, {QN:#x}")
    a("buffer_store_dwordx4 v[24:27], v2, s[8:11], s23 offen")
    a("s_cmp_ge_u32 s5, 6")
    a(f"s_cbranch_scc1 {end}")
    a("s_lshr_b32 s32, s5, 2")
    a("s_cmp_eq_u32 s5, 1")
    a("s_cselect_b32 s32, 1, s32")
    a("s_lshl_b32 s32, s32, 1")
    a("s_cmp_lg_u32 s3, s32")
    a(f"s_cbranch_scc1 {end}")
    a(f"v_add_u32 v7, {KVS}, v2")
    for s in range(8):
        for q in range(2):
            a(f"ds_read_b128 {vr(64+8*s+4*q,4)}, v7 offset:{s*2048+q*1024}")
    a(f"s_mul_i32 s33, s45, {KVT}")
    a(f"s_add_u32 s33, s33, {KVN:#x}")
    a("s_waitcnt lgkmcnt(0)")
    for s in range(1, 8):
        for r in range(8):
            a(f"v_add_f32 v{64+r}, v{64+r}, v{64+8*s+r}")
    a("s_cmp_ge_u32 s5, 2")
    a(f"s_cbranch_scc1 {T}_finV")
    a("v_mov_b32 v45, 0")
    get_csk()
    for r in range(8):
        a(f"v_mul_f32 v{16+r}, v42, v{16+r}")
        a(f"v_fma_f32 v{64+r}, v{64+r}, v41, v{16+r}")
        a(f"v_fma_f32 v45, v{64+r}, v{64+r}, v45")
    for q in range(4):
        a(f"v_cvt_pk_bf16_f32 v{28+q}, v{64+2*q}, v{65+2*q}")
    a("buffer_store_dwordx4 v[28:31], v2, s[8:11], s33 offen")
    half_sum(a, 45, 46)
    a("s_lshl_b32 s32, s45, 7")
    a(f"s_add_u32 s32, s32, {KNN:#x}")
    a("v_lshlrev_b32 v46, 2, v3")
    a("v_cmp_gt_u32 vcc, 32, v1")
    a("s_and_saveexec_b64 s[38:39], vcc")
    a("buffer_store_dword v45, v46, s[8:11], s32 offen")
    a(f"s_branch {end}")
    a(f"{T}_finV:")
    a("v_lshlrev_b32 v7, 2, v3")
    a(f"v_add_u32 v7, {STAT2}, v7")
    a("ds_write_b32 v7, v41")
    a("ds_write_b32 v7, v42 offset:128")
    a("s_and_b32 s32, s5, 1")
    a("s_lshl_b32 s32, s32, 6")
    a(f"s_add_u32 s32, s32, {STAT2}")
    a("v_lshlrev_b32 v7, 4, v4")
    a("v_add_u32 v7, s32, v7")
    get_csv()
    a("s_waitcnt lgkmcnt(0)")
    for q in range(2):
        a(f"ds_read_b128 {vr(16+4*q,4)}, v7 offset:{32*q}")
        a(f"ds_read_b128 {vr(24+4*q,4)}, v7 offset:{128+32*q}")
    a("s_waitcnt lgkmcnt(0)")
    for r in range(8):
        a(f"v_mul_f32 v{24+r}, v47, v{24+r}")
        a(f"v_fma_f32 v{64+r}, v{64+r}, v{16+r}, v{24+r}")
    for q in range(4):
        a(f"v_cvt_pk_bf16_f32 v{32+q}, v{64+2*q}, v{65+2*q}")
    a("v_cmp_eq_u32 s[38:39], 0, v3")
    a("v_mov_b32 v45, 0x3f803f80")
    a("v_mov_b32 v46, 0")
    a("v_cndmask_b32 v45, v46, v45, s[38:39]")
    a("v_cmp_le_u32 vcc, 16, v3")
    a("v_xor_b32 v7, 16, v3")
    a("v_lshlrev_b32 v7, 4, v7")
    for q in range(4):
        a(f"v_cndmask_b32 v{32+q}, v45, v{32+q}, vcc")
    a(f"v_mul_u32_u24 v46, {VH}, v4")
    a("v_add_u32 v7, v7, v46")
    a("s_and_b32 s32, s5, 1")
    a(f"s_mul_i32 s32, s32, {VU}")
    a("s_add_u32 s33, s33, s32")
    a("v_cmp_gt_u32 s[38:39], 2, v3")
    a("s_or_b64 vcc, vcc, s[38:39]")
    a("s_and_saveexec_b64 s[38:39], vcc")
    a("buffer_store_dwordx4 v[32:35], v7, s[8:11], s33 offen offset:1024")


def piece_sgprs(a):
    a("s_lshr_b32 s32, s3, 1")
    a("s_and_b32 s43, s32, 1")
    a("s_lshr_b32 s44, s3, 2")
    a("s_lshl_b32 s45, s4, 1")
    a("s_add_u32 s45, s45, s43")
    a("s_lshl_b32 s46, s5, 1")
    a("s_add_u32 s46, s46, s44")
    a("s_lshl_b32 s42, s45, 5")
    a("s_lshl_b32 s32, s46, 1")
    a("s_add_u32 s42, s42, s32")
    a("s_and_b32 s47, s3, 1")
    a("s_add_u32 s42, s42, s47")
    a("s_lshl_b32 s42, s42, 10")


def code_srd(a, d, tag):
    a(f"s_getpc_b64 s[{d}:{d+1}]")
    a(f"{tag}_pc:")
    a(f"s_add_u32 s{d}, s{d}, f1_kernel-{tag}_pc")
    a(f"s_addc_u32 s{d+1}, s{d+1}, {'-1' if tag != 'K0' else '0'}")
    a(f"s_mov_b32 s{d+2}, code_end-f1_kernel")
    a(f"s_mov_b32 s{d+3}, 0x00020000")


def gen_F(a, L):
    last = (L == 1)
    name = f"f{L+1}_kernel"
    T = f"F{L}"
    a.begin(name)
    end = f"{name}_end"
    prologue(a, end, out_ptr=True, out_off=(64 if last else 0))
    a.srd(16, 12, 2048 * 512 * 2)
    XF, QF, OF, X1F, HF, KVF, KN = XFL[L], QFL[L], OFL[L], X1FL[L], HFL[L], KVFL[L], KNL[L]
    EP = 4 * L
    SCR = KVF_BYTES
    KMX = SCR + 8 * 2304
    Q = (8, 12)
    C = 80
    O = (32, 48)
    S = (64, 80)
    P = (96, 104)
    E = 112
    KB = (128, 132)
    VB = (136, 144)
    a("s_and_b32 s20, s3, 3")
    a("s_lshr_b32 s30, s3, 2")
    a("s_and_b32 s21, s20, 1")
    a("s_lshl_b32 s21, s21, 1")
    a("s_lshl_b32 s22, s5, 2")
    a("s_add_u32 s21, s21, s22")
    a("s_lshr_b32 s22, s20, 1")
    a("s_lshl_b32 s23, s4, 1")
    a("s_add_u32 s22, s22, s23")
    a("s_lshl_b32 s22, s22, 5")
    a("s_add_u32 s22, s22, s21")
    a("s_add_u32 s23, s22, s30")
    a("s_xor_b32 s24, s30, 1")
    a("s_add_u32 s24, s22, s24")
    a("s_lshl_b32 s22, s23, 10")
    a("s_lshl_b32 s24, s24, 10")
    a(f"s_add_u32 s23, s22, {QF:#x}")
    a(f"s_add_u32 s24, s24, {QF:#x}")
    a(f"buffer_load_dwordx4 {vr(Q[0],4)}, v2, s[8:11], s23 offen")
    a(f"buffer_load_dwordx4 {vr(Q[1],4)}, v2, s[8:11], s24 offen")
    a("s_lshl_b32 s23, s3, 10")
    a(f"s_add_u32 s23, s23, {KN:#x}")
    a(f"buffer_load_dwordx4 {vr(E,4)}, v2, s[8:11], s23 offen")
    a("s_lshr_b32 s24, s3, 1")
    a("s_lshl_b32 s24, s24, 10")
    a("s_and_b32 s25, s3, 1")
    a(f"s_mul_i32 s25, s25, {32*KVT}")
    a("s_add_u32 s34, s24, s25")
    a(f"s_add_u32 s35, s34, {KVF:#x}")

    def dma():
        a("s_mov_b32 m0, s34")
        a("s_add_u32 s34, s34, 4096")
        a("buffer_load_dwordx4 v2, s[8:11], s35 offen lds")
        a("s_add_u32 s35, s35, 4096")
    for i in range(6):
        dma()
    a("s_lshl_b32 s40, s4, 8")
    a(f"s_add_u32 s40, s40, {FLAGS:#x}")
    a("s_lshl_b32 s41, s3, 2")
    a("s_add_u32 s41, s41, s40")
    a("s_lshl_b32 s32, s5, 2")
    a("s_add_u32 s40, s40, s32")
    piece_sgprs(a)
    a("s_getreg_b32 s61, hwreg(HW_REG_XCC_ID)")
    a("s_and_b32 s61, s61, 15")
    a("s_add_u32 s61, s61, 1")
    a("v_min_u32 v6, 17, v3")
    a("v_mov_b32 v5, 16")
    a("v_cmp_eq_u32 vcc, 20, v3")
    a(f"s_mul_i32 s25, s30, {32*KVT}")
    a.nop(1)
    a("v_cndmask_b32 v6, v6, v5, vcc")
    a("v_lshlrev_b32 v6, 4, v6")
    a(f"v_mul_u32_u24 v5, {VH}, v4")
    a("v_add3_u32 v158, v6, v5, 64")
    a("v_add_u32 v158, 960, v158")
    a("v_add_u32 v156, s25, v2")
    a("v_add_u32 v157, s25, v158")
    a("s_waitcnt vmcnt(6)")
    a("v_mov_b32 v5, 0")
    a("v_mov_b32 v6, 0")
    for q in range(4):
        a(f"v_dot2_f32_bf16 v5, v{Q[0]+q}, v{Q[0]+q}, v5")
        a(f"v_dot2_f32_bf16 v6, v{Q[1]+q}, v{Q[1]+q}, v6")
    a.nop(3)
    half_sum(a, 5, 154)
    half_sum(a, 6, 154)
    a("v_max_f32 v5, v5, v6")
    a(f"v_max3_f32 v7, v{E}, v{E+1}, v{E+2}")
    a(f"v_max_f32 v7, v7, v{E+3}")
    for off in (0x041F, 0x081F, 0x101F, 0x201F, 0x401F):
        a(f"ds_swizzle_b32 v6, v5 offset:{off:#x}")
        a(f"ds_swizzle_b32 v154, v7 offset:{off:#x}")
        a("s_waitcnt lgkmcnt(0)")
        a("v_max_f32 v5, v5, v6")
        a("v_max_f32 v7, v7, v154")
    half_sum(a, 7, 154, op="v_max_f32")
    a("v_readfirstlane_b32 s63, v5")
    a("s_lshl_b32 s23, s3, 2")
    a(f"s_add_u32 s23, s23, {KMX}")
    a("v_mov_b32 v6, s23")
    a("ds_write_b32 v6, v7")
    for r in range(16):
        a(f"v_mov_b32 v{O[0]+r}, 0")
        a(f"v_mov_b32 v{O[1]+r}, 0")
        a(f"v_mov_b32 v{E+r}, 0")
    for r in range(8):
        a(f"v_mov_b32 v{P[1]+r}, 0")
        a(f"v_mov_b32 v{VB[1]+r}, 0")
    a("s_lshl_b32 s32, s5, 1")
    a("s_lshl_b32 s48, s32, 5")
    a("s_lshl_b32 s33, s3, 2")
    a("s_add_u32 s48, s48, s33")
    a("s_lshl_b32 s48, s48, 10")
    a(f"s_add_u32 s48, s48, {WOF:#x}")
    a("s_add_u32 s49, s48, 32768")
    a("s_min_u32 s32, s3, 6")
    a("s_mul_i32 s51, s5, 7")
    a("s_add_u32 s51, s51, s32")
    a("s_lshl_b32 s50, s51, 15")
    a(f"s_add_u32 s50, s50, {W1F:#x}")
    a(f"s_add_u32 s52, s42, {XF:#x}")
    pf = []
    for i in range(4):
        pf.append((ar(8 * i, 4), 48, i))
        pf.append((ar(8 * i + 4, 4), 49, i))
    if last:
        pf.append((ar(32, 4), 52, 0))
    else:
        a("v_lshlrev_b32 v159, 10, v3")
        a("v_lshl_add_u32 v159, v4, 3, v159")
        a("s_lshl_b32 s52, s45, 15")
        a("s_lshl_b32 s32, s46, 6")
        a("s_add_u32 s52, s52, s32")
        a("s_lshl_b32 s32, s47, 5")
        a("s_add_u32 s52, s52, s32")
        pf.append(None)
    for i in range(15):
        pf.append((ar(36 + 4 * i, 4), 50, i))
    for i in range(4):
        pf.append((vr(16 + 4 * i, 4), 50, 23 + i))
    a("s_waitcnt vmcnt(0) lgkmcnt(0)")
    a("s_barrier")
    a.stamp(2)
    a(f"ds_read_b128 {vr(KB[0],4)}, v156")
    a(f"ds_read_b128 {vr(KB[1],4)}, v156 offset:{KVT}")
    a(f"ds_read_b128 {vr(VB[0],4)}, v157")
    a(f"ds_read_b128 {vr(VB[0]+4,4)}, v157 offset:{VU}")
    a("s_cmp_lt_u32 s3, 4")
    a(f"s_cbranch_scc1 {T}_noprio")
    a("s_setprio 1")
    a(f"{T}_noprio:")
    a("s_waitcnt lgkmcnt(3)")
    a(f"v_mfma_f32_32x32x16_bf16 {vr(S[0],16)}, {vr(KB[0],4)}, {vr(Q[0],4)}, {'0' if CZERO else vr(C,16)}")
    a.nop(10)
    UN, PV1, PV2, DLY, NE = 4, 3, 6, 2, 16

    def body(extra, slots=(1, 4, 5)):
        for t in range(UN):
            for x in range(2):
                y = 1 - x
                ty = t if x == 0 else t + 1
                tv = t - 1 if x == 0 else t
                for i in range(8):
                    if i == 0:
                        if x == 1:
                            a("s_waitcnt lgkmcnt(0)")
                        a(f"v_mfma_f32_32x32x16_bf16 {vr(S[y],16)}, {vr(KB[ty%2],4)}, {vr(Q[y],4)}, {'0' if CZERO else vr(C,16)}")
                        if x == 1:
                            a(f"ds_read_b128 {vr(KB[t%2],4)}, v156 offset:{(t+2)*KVT}")
                            a(f"ds_read_b128 {vr(VB[(t+1)%2],4)}, v157 offset:{(t+1)*KVT}")
                            a(f"ds_read_b128 {vr(VB[(t+1)%2]+4,4)}, v157 offset:{(t+1)*KVT+VU}")
                    e = E + (2 * i) % NE
                    a(f"v_exp_f32 v{e}, v{S[x]+2*i}")
                    a(f"v_exp_f32 v{e+1}, v{S[x]+2*i+1}")
                    j = i - DLY
                    if j >= 0:
                        ej = E + (2 * j) % NE
                        a(f"v_cvt_pk_bf16_f32 v{P[x]+j}, v{ej}, v{ej+1}")
                    else:
                        ej = E + (2 * (j + 8)) % NE
                        a(f"v_cvt_pk_bf16_f32 v{P[y]+j+8}, v{ej}, v{ej+1}")
                    if i == PV1:
                        a(f"v_mfma_f32_32x32x16_bf16 {vr(O[y],16)}, {vr(VB[tv%2],4)}, {vr(P[y],4)}, {vr(O[y],16)}")
                    if i == PV2:
                        a(f"v_mfma_f32_32x32x16_bf16 {vr(O[y],16)}, {vr(VB[tv%2]+4,4)}, {vr(P[y]+4,4)}, {vr(O[y],16)}")
                    if i in slots and extra:
                        extra.pop(0)()
                if t == UN - 1 and x == 1:
                    a(f"v_add_u32 v156, {UN*KVT}, v156")
                    a(f"v_add_u32 v157, {UN*KVT}, v157")
                    a("s_add_u32 s29, s29, 1")
                    a("s_cmp_lg_u32 s29, 8")

    a("s_mov_b32 s29, 0")
    body([dma] * 11)
    body([])
    a("s_waitcnt vmcnt(0)")
    a("s_barrier")
    def rawres():
        a("buffer_load_dwordx2 a[32:33], v159, s[16:19], s52 offen")
        a("buffer_load_dwordx2 a[34:35], v159, s[16:19], s52 offen offset:16")
    pfl = [(lambda e=e: ld(a, e[0], e[1], e[2], 33)) if e else rawres for e in pf]
    def xid():
        a("s_cmp_lg_u32 s3, 0")
        a(f"s_cbranch_scc1 {T}_noxid")
        a("v_mov_b32 v5, s61")
        a("v_mov_b32 v6, 0")
        a("s_mov_b64 exec, 1")
        a(f"buffer_store_dword v5, v6, s[8:11], s40 offen offset:{64+32*L} {SC}")
        a("s_mov_b64 exec, -1")
        a(f"{T}_noxid:")
    xid()
    body(pfl[0:10], (2, 6))
    body(pfl[10:20], (2, 6))
    tail = []
    if WARM:
        a("s_lshr_b32 s56, s4, 3")
        a("s_and_b32 s56, s56, 3")
        a("s_and_b32 s57, s56, 1")
        a("s_lshl_b32 s58, s5, 1")
        a("s_add_u32 s57, s57, s58")
        a("s_mul_i32 s57, s57, 112")
        a("s_mul_i32 s58, s3, 14")
        a("s_add_u32 s57, s57, s58")
        a("s_lshr_b32 s58, s56, 1")
        a("s_mul_i32 s58, s58, 7")
        a("s_add_u32 s57, s57, s58")
        a("s_lshl_b32 s57, s57, 10")
        a(f"s_add_u32 s57, s57, {W2F:#x}")
        a("s_lshl_b32 s58, s56, 12")
        a("s_add_u32 s58, s58, s50")
        a(f"s_add_u32 s58, s58, {15*1024}")
        a("s_and_b32 s59, s56, 1")
        a("s_lshl_b32 s59, s59, 15")
        a("s_lshr_b32 s60, s56, 1")
        a("s_lshl_b32 s60, s60, 11")
        a("s_add_u32 s59, s59, s60")
        a("s_add_u32 s59, s59, s48")
        a(f"s_add_u32 s59, s59, {(WQF - WOF) & 0xffffffff:#x}")
        for k, (n, sr) in enumerate(((56, 57), (40, 58), (16, 59))):
            if last and sr == 59:
                continue
            a(f"v_min_u32 v{152+k}, {n-1}, v1")
            a(f"v_lshlrev_b32 v{152+k}, 7, v{152+k}")
            tail.append(lambda k=k, sr=sr: a(f"buffer_load_dword v155, v{152+k}, s[8:11], s{sr} offen"))
    a("v_and_b32 v5, 7, v1")
    a("v_lshlrev_b32 v5, 2, v5")
    a("s_lshl_b32 s62, s4, 8")
    a(f"s_add_u32 s62, s62, {FLAGS:#x}")
    tail.append(lambda: a(f"buffer_load_dword v159, v5, s[8:11], s62 offen offset:{64+32*L} {SC}"))
    if TOUCH and (L == 0 or not REUSE):
        a(f"s_add_u32 s20, s22, {OF:#x}")
        a(f"s_add_u32 s21, s42, {X1F:#x}")
        a("s_lshl_b32 s23, s4, 1")
        a("s_mul_i32 s23, s23, 112")
        a("s_lshl_b32 s24, s51, 1")
        a("s_add_u32 s23, s23, s24")
        a("s_lshl_b32 s23, s23, 10")
        a(f"s_add_u32 s23, s23, {HF:#x}")
        a("s_add_u32 s24, s23, 1024")
        a(f"s_add_u32 s25, s23, {112*1024}")
        a("s_add_u32 s26, s25, 1024")
        a(f"s_add_u32 s27, s42, {XFL[1]:#x}")
        a(f"s_add_u32 s28, s42, {QFL[1]:#x}")
        a("v_mov_b32 v6, s20")
        for k, sr in enumerate((21, 23, 24, 25, 26, 27, 28)):
            a(f"v_mov_b32 v7, s{sr}")
            a(f"v_cmp_le_u32 vcc, {8*(k+1)}, v1")
            a.nop(2)
            a("v_cndmask_b32 v6, v6, v7, vcc")
        a("v_and_b32 v7, 7, v1")
        a("v_lshl_add_u32 v6, v7, 7, v6")
        tail.append(lambda: a("buffer_load_dword v7, v6, s[8:11], 0 offen"))
    if TOUCH2:
        if last:
            a("v_lshlrev_b32 v6, 10, v3")
            a("s_lshl_b32 s20, s45, 15")
            a("s_lshl_b32 s21, s46, 6")
            a("s_add_u32 s20, s20, s21")
            tail.append(lambda: a("buffer_load_dword v7, v6, s[16:19], s20 offen"))
        else:
            a(f"s_mul_i32 s31, s45, {KVT}")
            a(f"s_add_u32 s31, s31, {KVFL[1]:#x}")
            tail.append(lambda: a("buffer_load_dword v155, v154, s[8:11], s31 offen"))
    body(pfl[20:28] + tail, (1, 5))
    a(f"{T}_loop:")
    a(f"s_cmp_lg_u32 s29, {PRIO_IT}")
    a(f"s_cbranch_scc1 {T}_prio2")
    a("s_setprio 0")
    a(f"{T}_prio2:")
    body([])
    a(f"s_cbranch_scc1 {T}_loop")
    a("s_waitcnt vmcnt(0)")
    for j in range(8 - DLY, 8):
        ej = E + (2 * j) % NE
        a(f"v_cvt_pk_bf16_f32 v{P[1]+j}, v{ej}, v{ej+1}")
    a.nop(2)
    a(f"v_mfma_f32_32x32x16_bf16 {vr(O[1],16)}, {vr(VB[1],4)}, {vr(P[1],4)}, {vr(O[1],16)}")
    a(f"v_mfma_f32_32x32x16_bf16 {vr(O[1],16)}, {vr(VB[1]+4,4)}, {vr(P[1]+4,4)}, {vr(O[1],16)}")
    a("s_mul_i32 s25, s3, 2304")
    a(f"s_add_u32 s25, s25, {SCR}")
    a("v_add_u32 v5, s25, v2")
    a("v_lshlrev_b32 v6, 2, v1")
    a("v_add_u32 v6, s25, v6")
    a("s_xor_b32 s25, s3, 4")
    a("s_mul_i32 s25, s25, 2304")
    a(f"s_add_u32 s25, s25, {SCR}")
    a("v_add_u32 v7, s25, v2")
    a("s_waitcnt vmcnt(0)")
    a("s_mov_b32 s37, 0")
    a("v_and_b32 v153, 7, v1")
    a("v_lshlrev_b32 v153, 2, v153")
    a(f"{T}_xchk:")
    a("v_cmp_eq_u32 vcc, 0, v159")
    a("s_cmp_eq_u64 vcc, 0")
    a(f"s_cbranch_scc1 {T}_xok")
    a("s_add_u32 s37, s37, 1")
    a(f"s_cmp_gt_u32 s37, {SPIN_MAX}")
    a(f"s_cbranch_scc1 {T}_xok")
    a("s_sleep 1")
    a(f"buffer_load_dword v159, v153, s[8:11], s62 offen offset:{64+32*L} {SC}")
    a("s_waitcnt vmcnt(0)")
    a(f"s_branch {T}_xchk")
    a(f"{T}_xok:")
    a("v_cmp_ne_u32 vcc, s61, v159")
    a("s_cmp_eq_u64 vcc, 0")
    a(f"s_cselect_b32 s61, {FAST}, 0")
    a("v_lshlrev_b32 v154, 2, v1")
    a("v_add_u32 v154, s25, v154")
    a("s_waitcnt lgkmcnt(0)")
    a.nop(8)
    a(f"ds_write_b128 v5, {vr(O[1],4)}")
    a(f"ds_write_b128 v5, {vr(O[1]+4,4)} offset:1024")
    a(f"ds_write_b32 v6, v{O[1]+8} offset:2048")
    a("s_waitcnt lgkmcnt(0)")
    a("s_barrier")
    a(f"ds_read_b128 {vr(S[0],4)}, v7")
    a(f"ds_read_b128 {vr(S[0]+4,4)}, v7 offset:1024")
    a(f"ds_read_b32 v{S[0]+8}, v154 offset:2048")
    a(f"v_mov_b32 v5, {KMX}")
    a(f"ds_read_b128 {vr(S[1],4)}, v5")
    a(f"ds_read_b128 {vr(S[1]+4,4)}, v5 offset:16")
    a("s_waitcnt lgkmcnt(0)")
    for r in range(9):
        a(f"v_add_f32 v{O[0]+r}, v{O[0]+r}, v{S[0]+r}")
    a(f"v_max3_f32 v5, v{S[1]}, v{S[1]+1}, v{S[1]+2}")
    a(f"v_max3_f32 v5, v5, v{S[1]+3}, v{S[1]+4}")
    a(f"v_max3_f32 v5, v5, v{S[1]+5}, v{S[1]+6}")
    a(f"v_max_f32 v5, v5, v{S[1]+7}")
    a("v_mul_f32 v5, s63, v5")
    a(f"v_mov_b32 v6, {f2u(BMAX*BMAX):#x}")
    a("v_cmp_nle_f32 vcc, v5, v6")
    a("s_cmp_eq_u64 vcc, 0")
    a(f"s_cbranch_scc1 {T}_afin")
    a("v_mov_b32 v156, v2")
    a("v_mov_b32 v6, 0xff800000")
    a("s_mov_b32 s29, 64")
    a(f"{T}_fb:")
    a(f"ds_read_b128 {vr(KB[0],4)}, v156")
    a(f"v_add_u32 v156, {KVT}, v156")
    a("s_waitcnt lgkmcnt(0)")
    a(f"v_mfma_f32_32x32x16_bf16 {vr(S[0],16)}, {vr(KB[0],4)}, {vr(Q[0],4)}, 0")
    a.nop(16)
    for i in range(8):
        a(f"v_max3_f32 v6, v6, v{S[0]+2*i}, v{S[0]+2*i+1}")
    a("s_sub_u32 s29, s29, 1")
    a("s_cmp_lg_u32 s29, 0")
    a(f"s_cbranch_scc1 {T}_fb")
    half_sum(a, 6, 7, op="v_max_f32")
    a("v_sub_f32 v6, 0, v6")
    for r in range(16):
        a(f"v_mov_b32 v{C+r}, v6")
        a(f"v_mov_b32 v{O[0]+r}, 0")
    a("v_mov_b32 v156, v2")
    a("v_mov_b32 v157, v158")
    a("s_mov_b32 s29, 64")
    a(f"{T}_fb2:")
    a(f"ds_read_b128 {vr(KB[0],4)}, v156")
    a(f"ds_read_b128 {vr(VB[0],4)}, v157")
    a(f"ds_read_b128 {vr(VB[0]+4,4)}, v157 offset:{VU}")
    a(f"v_add_u32 v156, {KVT}, v156")
    a(f"v_add_u32 v157, {KVT}, v157")
    a("s_waitcnt lgkmcnt(0)")
    a(f"v_mfma_f32_32x32x16_bf16 {vr(S[0],16)}, {vr(KB[0],4)}, {vr(Q[0],4)}, {vr(C,16)}")
    a.nop(16)
    for i in range(16):
        a(f"v_exp_f32 v{S[0]+i}, v{S[0]+i}")
    a.nop(1)
    for i in range(8):
        a(f"v_cvt_pk_bf16_f32 v{P[0]+i}, v{S[0]+2*i}, v{S[0]+2*i+1}")
    a.nop(2)
    a(f"v_mfma_f32_32x32x16_bf16 {vr(O[0],16)}, {vr(VB[0],4)}, {vr(P[0],4)}, {vr(O[0],16)}")
    a(f"v_mfma_f32_32x32x16_bf16 {vr(O[0],16)}, {vr(VB[0]+4,4)}, {vr(P[0]+4,4)}, {vr(O[0],16)}")
    a.nop(16)
    a("s_sub_u32 s29, s29, 1")
    a("s_cmp_lg_u32 s29, 0")
    a(f"s_cbranch_scc1 {T}_fb2")
    a(f"{T}_afin:")
    a(f"v_rcp_f32 v6, v{O[0]+8}")
    a.nop(1)
    for r in range(8):
        a(f"v_mul_f32 v{O[0]+r}, v{O[0]+r}, v6")
    for q in range(4):
        a(f"v_cvt_pk_bf16_f32 v{S[0]+q}, v{O[0]+2*q}, v{O[0]+2*q+1}")
    a(f"s_add_u32 s23, s22, {OF:#x}")
    hstore(a, [f"buffer_store_dwordx4 {vr(S[0],4)}, v2, s[8:11], s23 offen"])
    a.stamp(3)
    publish(a, EP + 1, f"{T}_p1")
    a("s_lshl_b32 s20, s4, 6")
    a("s_lshl_b32 s21, s3, 2")
    a("s_add_u32 s20, s20, s21")
    a("s_lshl_b32 s53, s20, 10")
    a(f"s_add_u32 s20, s53, {OF:#x}")
    a("s_add_u32 s21, s20, 32768")
    for i in range(2):
        ld(a, vr(8 + 4 * i, 4), 50, 27 + i, 33)
    for i in range(3):
        ld(a, vr(144 + 4 * i, 4), 50, 29 + i, 33)
    wait_flag(a, EP + 1, f"{T}_w1")
    a.stamp(4)
    for i in range(4):
        ld(a, vr(32 + 8 * i, 4), 20, i, 33, SCL)
        ld(a, vr(36 + 8 * i, 4), 21, i, 33, SCL)
    ACC = 64
    for i in range(4):
        a(f"s_waitcnt vmcnt({2*(3-i)})")
        for c in range(2):
            for r in range(2):
                t = 2 * c + r
                cin = "0" if i == 0 else vr(ACC + 16 * t, 16)
                a(f"v_mfma_f32_32x32x16_bf16 {vr(ACC+16*t,16)}, {ar(8*i+4*c,4)}, {vr(32+8*i+4*r,4)}, {cin}")
    for i in range(8):
        ld(a, ar(4 * i, 4), 50, 15 + i, 33)
    reduce8(a, ACC, 128)
    for q in range(4):
        a(f"v_accvgpr_read_b32 v{136+q}, a{32+q}")
    for q in range(4):
        a(f"v_lshlrev_b32 v{140}, 16, v{136+q}")
        a(f"v_and_b32 v{141}, 0xffff0000, v{136+q}")
        a(f"v_add_f32 v{128+2*q}, v{128+2*q}, v140")
        a(f"v_add_f32 v{129+2*q}, v{129+2*q}, v141")
    for q in range(4):
        a(f"v_cvt_pk_bf16_f32 v{136+q}, v{128+2*q}, v{129+2*q}")
    a(f"s_add_u32 s23, s42, {X1F:#x}")
    hstore(a, ["buffer_store_dwordx4 v[136:139], v2, s[8:11], s23 offen"])
    for q in range(4):
        a(f"v_accvgpr_write_b32 a{32+q}, v{136+q}")
    a.stamp(5)
    publish(a, EP + 2, f"{T}_p2")
    a(f"s_add_u32 s20, s53, {X1F:#x}")
    a("s_add_u32 s21, s20, 32768")
    wait_flag(a, EP + 2, f"{T}_w2")
    a.stamp(6)
    for i in range(4):
        ld(a, vr(32 + 4 * i, 4), 20, i, 33, SCL)
    for i in range(4):
        ld(a, vr(48 + 4 * i, 4), 21, i, 33, SCL)
    a("v_lshlrev_b32 v7, 4, v4")
    a("s_lshl_b32 s27, s51, 7")
    a(f"s_add_u32 s27, s27, {CS1:#x}")
    for q in range(4):
        a(f"buffer_load_dwordx4 {vr(88+4*q,4)}, v7, s[8:11], s27 offen offset:{32*q}")
    STAT = 65536
    a("s_lshl_b32 s21, s3, 12")
    a("v_add_u32 v5, s21, v2")
    a("s_mov_b32 s28, 0x3f803f80")
    for r in range(8):
        a(f"v_mov_b32 v{80+r}, 0")
    for rr in range(2):
        a(f"s_waitcnt vmcnt({4+4*(1-rr)})")
        for i in range(4):
            a(f"ds_write_b128 v5, {vr(32+16*rr+4*i,4)} offset:{32768*rr+1024*i}")
        for i in range(16):
            x = 32 + 16 * rr + i
            k = 4 * (i % 2)
            a(f"v_dot2_f32_bf16 v{80+k+2*rr}, v{x}, s28, v{80+k+2*rr}")
            a(f"v_dot2_f32_bf16 v{81+k+2*rr}, v{x}, v{x}, v{81+k+2*rr}")
    a("s_lshl_b32 s21, s3, 10")
    a(f"s_add_u32 s21, s21, {STAT}")
    a("v_add_u32 v5, s21, v2")
    a.nop(2)
    for r in range(4):
        a(f"v_add_f32 v{80+r}, v{80+r}, v{84+r}")
    a("ds_write_b128 v5, v[80:83]")
    a("s_waitcnt lgkmcnt(0)")
    a("s_barrier")
    a.stamp(7)
    a("s_lshl_b32 s32, s5, 1")
    a("s_mul_i32 s54, s32, 112")
    a("s_mul_i32 s33, s3, 14")
    a("s_add_u32 s54, s54, s33")
    a("s_lshl_b32 s54, s54, 10")
    a(f"s_add_u32 s54, s54, {W2F:#x}")
    a(f"s_add_u32 s55, s54, {112*1024}")
    a("s_cmp_eq_u32 s3, 7")
    a(f"s_cbranch_scc1 {T}_cskip")
    CACC = 104

    def w1reg(i):
        if i < 15:
            return ar(36 + 4 * i, 4)
        if i < 23:
            return ar(4 * (i - 15), 4)
        if i < 27:
            return vr(16 + 4 * (i - 23), 4)
        if i < 29:
            return vr(8 + 4 * (i - 27), 4)
        return vr(144 + 4 * (i - 29), 4)

    CR = 6

    def rd(i):
        b = 32 + 8 * (i % CR)
        a(f"ds_read_b128 {vr(b,4)}, v2 offset:{i*1024}")
        a(f"ds_read_b128 {vr(b+4,4)}, v2 offset:{32768+i*1024}")
    def w2reg(j):
        if j < 23:
            return w1reg(j)
        return vr(136 + 4 * (j - 23), 4)
    for i in range(CR - 1):
        rd(i)
    for i in range(32):
        if i + CR - 1 < 32:
            rd(i + CR - 1)
        pend = min(32, i + CR) - i - 1
        a(f"s_waitcnt lgkmcnt({2*pend})")
        b = 32 + 8 * (i % CR)
        for r in range(2):
            cin = "0" if i == 0 else vr(CACC + 16 * r, 16)
            a(f"v_mfma_f32_32x32x16_bf16 {vr(CACC+16*r,16)}, {w1reg(i)}, {vr(b+4*r,4)}, {cin}")
        if 1 <= i <= 23:
            j = i - 1
            ld(a, w2reg(j), 54 + (j & 1), j >> 1, 33)
    a(f"s_branch {T}_cepi")
    a(f"{T}_cskip:")
    for j in range(23):
        ld(a, w2reg(j), 54 + (j & 1), j >> 1, 33)
    a(f"{T}_cepi:")
    a.stamp(8)
    a("s_cmp_eq_u32 s3, 7")
    a(f"s_cbranch_scc1 {T}_cdone")
    a(f"v_add_u32 v5, {STAT}, v2")
    for w in range(8):
        a(f"ds_read_b128 {vr(32+4*w,4)}, v5 offset:{1024*w}")
    a("s_waitcnt vmcnt(23) lgkmcnt(0)")
    for w in range(1, 8):
        for r in range(4):
            a(f"v_add_f32 v{32+r}, v{32+r}, v{32+4*w+r}")
    for r in range(4):
        half_sum(a, 32 + r, 36)
    for r in range(2):
        m, x2 = 32 + 2 * r, 33 + 2 * r
        a(f"v_mul_f32 v{m}, {f2u(1.0/512):#x}, v{m}")
        a(f"v_mul_f32 v{x2}, {f2u(1.0/512):#x}, v{x2}")
        a(f"v_fma_f32 v{x2}, -v{m}, v{m}, v{x2}")
        a(f"v_max_f32 v{x2}, 0, v{x2}")
        a(f"v_add_f32 v{x2}, {f2u(EPS):#x}, v{x2}")
        a(f"v_rsq_f32 v{8+2*r}, v{x2}")
        a.nop(1)
        a(f"v_mul_f32 v{9+2*r}, v{m}, v{8+2*r}")
        a(f"v_sub_f32 v{9+2*r}, 0, v{9+2*r}")
    for rr in range(2):
        for r in range(16):
            a(f"v_mul_f32 v{40+r}, v{9+2*rr}, v{88+r}")
            a(f"v_fma_f32 v{CACC+16*rr+r}, v{CACC+16*rr+r}, v{8+2*rr}, v{40+r}")
        for q in range(8):
            a(f"v_cvt_pk_bf16_f32 v{16+8*rr+q}, v{CACC+16*rr+2*q}, v{CACC+16*rr+2*q+1}")
        for q in range(8):
            a(f"v_pk_max_i16 v{16+8*rr+q}, v{16+8*rr+q}, 0")
    a("s_lshl_b32 s26, s4, 1")
    a("s_mul_i32 s26, s26, 112")
    a("s_lshl_b32 s27, s51, 1")
    a("s_add_u32 s26, s26, s27")
    a("s_lshl_b32 s26, s26, 10")
    a(f"s_add_u32 s26, s26, {HF:#x}")
    a(f"s_add_u32 s27, s26, {112*1024}")
    hstore(a, ["buffer_store_dwordx4 v[16:19], v2, s[8:11], s26 offen",
               "buffer_store_dwordx4 v[20:23], v2, s[8:11], s26 offen offset:1024",
               "buffer_store_dwordx4 v[24:27], v2, s[8:11], s27 offen",
               "buffer_store_dwordx4 v[28:31], v2, s[8:11], s27 offen offset:1024"])
    a(f"{T}_cdone:")
    a.stamp(9)
    publish(a, EP + 3, f"{T}_p3")
    a("s_lshl_b32 s20, s4, 1")
    a("s_mul_i32 s20, s20, 112")
    a("s_mul_i32 s21, s3, 14")
    a("s_add_u32 s20, s20, s21")
    a("s_lshl_b32 s20, s20, 10")
    a(f"s_add_u32 s20, s20, {HF:#x}")
    a(f"s_add_u32 s21, s20, {112*1024}")
    wait_flag(a, EP + 3, f"{T}_w3")
    a.stamp(10)
    RING = 8
    DACC = 72

    def hld(i):
        b = 8 + 8 * (i % RING)
        ld(a, vr(b, 4), 20, i, 33, SCL)
        ld(a, vr(b + 4, 4), 21, i, 33, SCL)
    for i in range(RING):
        hld(i)
    def qreg(j):
        return w1reg(j)
    qpf = []
    if not last:
        a(f"s_add_u32 s48, s48, {(WQF - WOF) & 0xffffffff:#x}")
        a("s_add_u32 s49, s48, 32768")
        a("s_lshl_b32 s56, s3, 12")
        a(f"s_add_u32 s56, s56, {WKVF:#x}")
        a("v_lshlrev_b32 v156, 4, v4")
        a("v_lshlrev_b32 v157, 2, v3")
        a("s_lshl_b32 s57, s46, 7")
        a("s_lshl_b32 s33, s47, 6")
        a("s_add_u32 s57, s57, s33")
        a(f"s_add_u32 s57, s57, {CSQ:#x}")
        a(f"s_mov_b32 s58, {CSKV:#x}")
        for i in range(4):
            qpf.append(lambda i=i: ld(a, qreg(2 * i), 48, i, 33))
            qpf.append(lambda i=i: ld(a, qreg(2 * i + 1), 49, i, 33))
        for i in range(4):
            qpf.append(lambda i=i: ld(a, qreg(8 + i), 56, i, 33))
        for q in range(2):
            qpf.append(lambda q=q: a(f"buffer_load_dwordx4 {qreg(12+q)}, v156, s[8:11], s57 offen offset:{32*q}"))
        for q in range(2):
            qpf.append(lambda q=q: a(f"buffer_load_dwordx4 {qreg(14+q)}, v156, s[8:11], s58 offen offset:{32*q}"))
        qpf.append(lambda: a("buffer_load_dword a4, v157, s[8:11], s58 offen"))
    for j in range(23, 28):
        ld(a, w2reg(j), 54 + (j & 1), j >> 1, 33)

    def dloop(split, qpf):
        order = [('h', i) for i in range(RING)] + [('w', j) for j in range(23, 28)]
        for i in range(14):
            pos = order.index(('h', i))
            after = sum(2 if k == 'h' else 1 for (k, _) in order[pos + 1:])
            a(f"s_waitcnt vmcnt({after})")
            b = 8 + 8 * (i % RING)
            for c in range(2):
                for r in range(2):
                    t = 2 * c + r
                    cin = "0" if i == 0 else vr(DACC + 16 * t, 16)
                    a(f"v_mfma_f32_32x32x16_bf16 {vr(DACC+16*t,16)}, {w2reg(2*i+c)}, {vr(b+4*r,4)}, {cin}")
            if not split and i + RING < 14:
                hld(i + RING)
                order.append(('h', i + RING))
            elif split and i == RING - 1:
                poll3(0x70, f"{T}_w3b")
                for j in range(RING, 14):
                    hld(j)
                    order.append(('h', j))
            if i + RING >= 14 and (not split or i >= RING - 1):
                for _ in range(3):
                    k = sum(1 for (kk, _) in order if kk == 'q')
                    if qpf and k < 2 * i:
                        qpf.pop(0)()
                        order.append(('q', k))
        assert not qpf
    dloop(False, list(qpf))
    qpf = []
    a.stamp(11)
    assert not qpf
    reduce8(a, DACC, 8)
    for q in range(4):
        a(f"v_accvgpr_read_b32 v{16+q}, a{32+q}")
    for q in range(4):
        a(f"v_lshlrev_b32 v20, 16, v{16+q}")
        a(f"v_and_b32 v21, 0xffff0000, v{16+q}")
        a(f"v_add_f32 v{8+2*q}, v{8+2*q}, v20")
        a(f"v_add_f32 v{9+2*q}, v{9+2*q}, v21")
    for q in range(4):
        a(f"v_cvt_pk_bf16_f32 v{16+q}, v{8+2*q}, v{9+2*q}")
    if last:
        a.nop(2)
        a("v_permlane32_swap_b32 v16, v18")
        a("v_permlane32_swap_b32 v17, v19")
        a("v_lshlrev_b32 v5, 10, v3")
        a("v_lshl_add_u32 v5, v4, 4, v5")
        a("s_lshl_b32 s31, s45, 15")
        a("s_lshl_b32 s32, s46, 6")
        a("s_add_u32 s31, s31, s32")
        a("s_lshl_b32 s32, s47, 5")
        a("s_add_u32 s31, s31, s32")
        a("buffer_store_dwordx4 v[16:19], v5, s[16:19], s31 offen")
        a.stamp(12)
    else:
        XN, QN, KVN, KNN = XFL[1], QFL[1], KVFL[1], KNL[1]
        a(f"s_add_u32 s23, s42, {XN:#x}")
        hstore(a, ["buffer_store_dwordx4 v[16:19], v2, s[8:11], s23 offen"])
        a.stamp(12)
        publish(a, EP + 4, f"{T}_p4")
        a(f"s_add_u32 s20, s53, {XN:#x}")
        a("s_add_u32 s21, s20, 32768")
        a("s_mov_b32 s28, 0x3f803f80")
        wait_flag(a, EP + 4, f"{T}_w4")
        a.stamp(13)
        for i in range(4):
            ld(a, vr(8 + 8 * i, 4), 20, i, 33, SCL)
            ld(a, vr(12 + 8 * i, 4), 21, i, 33, SCL)
        for r in range(8):
            a(f"v_mov_b32 v{40+r}, 0")
        ACC = 64
        for i in range(4):
            a(f"s_waitcnt vmcnt({2*(3-i)})")
            for c in range(2):
                for r in range(2):
                    for q in range(4):
                        x = 8 + 8 * i + 4 * r + q
                        k = 40 + 4 * (q % 2) + 2 * r + c
                        if c == 0:
                            a(f"v_dot2_f32_bf16 v{k}, v{x}, s28, v{k}")
                        else:
                            a(f"v_dot2_f32_bf16 v{k}, v{x}, v{x}, v{k}")
        for i in range(4):
            for c in range(2):
                for r in range(2):
                    t = 2 * c + r
                    cin = "0" if i == 0 else vr(ACC + 16 * t, 16)
                    a(f"v_mfma_f32_32x32x16_bf16 {vr(ACC+16*t,16)}, {qreg(2*i+c)}, {vr(8+8*i+4*r,4)}, {cin}")
        a("s_lshl_b32 s32, s3, 11")
        a(f"s_add_u32 s32, s32, {KVS}")
        a("v_add_u32 v7, s32, v2")
        a("s_cmp_ge_u32 s5, 6")
        a(f"s_cbranch_scc1 {T}_kvdone")
        for task in range(6):
            if task < 5:
                a(f"s_cmp_lg_u32 s5, {task}")
                a(f"s_cbranch_scc1 {T}_kvt{task+1}")
            kind = 'K' if task < 2 else 'V'
            r = task if task < 2 else (task - 2) >> 1
            u = 0 if task < 2 else (task & 1)
            for i in range(4):
                cin = "0" if i == 0 else vr(128, 16)
                if kind == 'K':
                    a(f"v_mfma_f32_32x32x16_bf16 {vr(128,16)}, {qreg(8+i)}, {vr(8+8*i+4*r,4)}, {cin}")
                else:
                    a(f"v_mfma_f32_32x32x16_bf16 {vr(128,16)}, {vr(8+8*i+4*r,4)}, {qreg(8+i)}, {cin}")
            a.nop(16)
            a(f"ds_write_b128 v7, {vr(128+8*u,4)}")
            a(f"ds_write_b128 v7, {vr(132+8*u,4)} offset:1024")
            if task < 5:
                a(f"s_branch {T}_kvdone")
                a(f"{T}_kvt{task+1}:")
        a(f"{T}_kvdone:")
        a("s_lshl_b32 s32, s3, 10")
        a(f"s_add_u32 s32, s32, {STATQ}")
        a("v_add_u32 v7, s32, v2")
        for r in range(4):
            a(f"v_add_f32 v{40+r}, v{40+r}, v{44+r}")
        a("ds_write_b128 v7, v[40:43]")
        reduce8(a, ACC, 8)
        a.stamp(14)
        qkv_tail(a, T, end, QN, KVN, KNN,
                 lambda: [a(f"v_accvgpr_read_b32 v{16+r}, a{84+r}") for r in range(8)],
                 lambda: [a(f"v_accvgpr_read_b32 v{16+r}, a{92+r if r < 4 else r-4}") for r in range(8)],
                 lambda: a("v_accvgpr_read_b32 v47, a4"))
    a(f"{end}:")
    a.stamp_flush(16)
    a(f"{end}x:")
    a("s_endpgm")
    a.desc(name, 160, agpr=96)
    return SCR + 8 * 2304 + 64


def tr_addr(a, dst, RS, t1, t2):
    a(f"v_lshrrev_b32 v{t1}, 5, v1")
    a(f"v_lshlrev_b32 v{t1}, 2, v{t1}")
    a(f"v_bfe_u32 v{t2}, v1, 2, 2")
    a(f"v_add_u32 v{t1}, v{t1}, v{t2}")
    a(f"v_mul_u32_u24 v{dst}, {RS}, v{t1}")
    a(f"v_bfe_u32 v{t1}, v1, 4, 1")
    a(f"v_lshlrev_b32 v{t1}, 5, v{t1}")
    a(f"v_and_b32 v{t2}, 3, v1")
    a(f"v_lshlrev_b32 v{t2}, 3, v{t2}")
    a(f"v_add3_u32 v{dst}, v{dst}, v{t1}, v{t2}")


def gen_K0(a):
    name = "k0_kernel"
    T = "K0"
    a.begin(name)
    end = f"{name}_end"
    XS = 65536
    KVW = 131072
    ST = KVW + 16384
    CSW = ST + 512
    CSPQ = CSW + 512
    CSP2 = CSPQ + 3072
    a("s_cmp_ge_u32 s2, 256")
    a(f"s_cbranch_scc1 {end}x")
    a.stamp(0)
    a("s_load_dwordx16 s[16:31], s[0:1], 0")
    a("s_load_dwordx2 s[6:7], s[0:1], 80")
    a("v_and_b32 v1, 63, v0")
    a("v_lshrrev_b32 v2, 6, v0")
    a("v_and_b32 v3, 31, v1")
    a("v_readfirstlane_b32 s60, v2")
    a("v_lshrrev_b32 v4, 5, v1")
    a("v_lshlrev_b32 v2, 4, v1")
    a("s_and_b32 s4, s2, 31")
    a("s_lshr_b32 s5, s2, 5")
    a("s_and_b32 s3, s60, 7")
    a("s_mov_b32 s61, 0x3f803f80")
    a("s_waitcnt lgkmcnt(0)")
    a.srd(8, 6, G.WS_USED)
    a("s_cmp_ge_u32 s60, 8")
    a("s_cbranch_scc1 K0_prep")
    a.stamp(1)
    a.srd(12, 16, 2048 * 512 * 2)
    a.srd(48, 18, 512 * 512 * 2)
    a("s_cmp_ge_u32 s5, 2")
    a("s_cbranch_scc1 K0_nokv")
    a("s_cmp_eq_u32 s5, 0")
    a("s_cselect_b32 s52, s20, s22")
    a("s_cselect_b32 s53, s21, s23")
    a(f"s_mov_b32 s54, {512*16*2}")
    a("s_mov_b32 s55, 0x00020000")
    a("s_lshl_b32 s32, s3, 11")
    a(f"s_add_u32 m0, s32, {KVW}")
    a("s_nop 0")
    a("buffer_load_dwordx4 v2, s[52:55], s32 offen lds")
    a("buffer_load_dwordx4 v2, s[52:55], s32 offen offset:1024 lds")
    a("K0_nokv:")
    a("s_lshl_b32 s32, s4, 16")
    a("s_lshl_b32 s33, s3, 13")
    a("s_add_u32 s32, s32, s33")
    a(f"s_add_u32 s33, s33, {XS}")
    a("s_and_b32 s35, s3, 1")
    a("s_lshl_b32 s35, s35, 7")
    a("v_xor_b32 v7, s35, v2")
    for i in range(8):
        a(f"v_xor_b32 v5, {i<<4}, v7")
        a(f"s_add_u32 m0, s33, {1024*i}")
        a(f"s_add_u32 s34, s32, {1024*i}")
        a("buffer_load_dwordx4 v5, s[12:15], s34 offen lds")
    a("v_lshrrev_b32 v6, 3, v1")
    a("v_lshlrev_b32 v6, 10, v6")
    a("v_and_b32 v7, 7, v1")
    a("v_lshl_add_u32 v6, v7, 4, v6")
    a("s_lshl_b32 s32, s3, 16")
    a("s_lshl_b32 s33, s5, 7")
    a("s_add_u32 s32, s32, s33")
    a("s_lshl_b32 s33, s3, 13")
    for i in range(8):
        a(f"s_add_u32 m0, s33, {1024*i}")
        a(f"s_add_u32 s34, s32, {8192*i}")
        a("buffer_load_dwordx4 v6, s[48:51], s34 offen lds")
    a.stamp(2)
    a("s_and_b32 s43, s3, 1")
    a("s_lshr_b32 s44, s3, 1")
    a("s_lshl_b32 s45, s4, 1")
    a("s_add_u32 s45, s45, s43")
    a("s_lshl_b32 s46, s5, 1")
    a("s_add_u32 s46, s46, s44")
    a("s_lshl_b32 s42, s45, 5")
    a("s_lshl_b32 s32, s46, 1")
    a("s_add_u32 s42, s42, s32")
    a("s_lshl_b32 s42, s42, 10")
    a(f"s_add_u32 s42, s42, {QFL[0]:#x}")
    a(f"s_mul_i32 s47, s45, {KVT}")
    a(f"s_add_u32 s47, s47, {KVFL[0]:#x}")
    if TOUCH2:
        a("s_cmp_lt_u32 s3, 4")
        a("s_cselect_b32 s32, s42, s47")
        a("v_min_u32 v5, 16, v1")
        a("v_lshlrev_b32 v5, 7, v5")
        a("buffer_load_dword v0, v5, s[8:11], s32 offen")
    a("v_and_b32 v5, 15, v3")
    a("v_xor_b32 v5, v5, v4")
    a("v_lshlrev_b32 v5, 4, v5")
    a("v_lshl_add_u32 v5, v3, 10, v5")
    a("s_lshl_b32 s32, s43, 15")
    a(f"s_add_u32 s32, s32, {XS}")
    a("v_add_u32 v5, s32, v5")
    for c in range(8):
        a(f"v_xor_b32 v{120+c}, {c<<5}, v5")
    tr_addr(a, 118, 128, 5, 6)
    a("v_lshl_add_u32 v118, v4, 9, v118")
    a("s_lshl_b32 s32, s44, 6")
    a("v_add_u32 v118, s32, v118")
    a("v_lshlrev_b32 v5, 3, v4")
    a("v_bfe_u32 v6, v1, 2, 2")
    a("v_add_u32 v5, v5, v6")
    a("v_lshlrev_b32 v5, 5, v5")
    a("v_and_b32 v6, 3, v1")
    a("v_lshl_add_u32 v5, v6, 3, v5")
    a(f"v_add_u32 v119, {KVW}, v5")
    a("v_lshrrev_b32 v5, 3, v1")
    a("v_lshlrev_b32 v5, 10, v5")
    a("v_and_b32 v6, 7, v1")
    a("v_lshl_add_u32 v5, v6, 4, v5")
    a("s_lshl_b32 s32, s3, 13")
    a(f"s_add_u32 s32, s32, {XS}")
    a("v_add_u32 v5, s32, v5")
    for r in range(8):
        a(f"v_mov_b32 v{8+r}, 0")
    a(f"s_waitcnt vmcnt({8+TOUCH2})")
    for j in range(8):
        a(f"ds_read_b128 {vr(16+4*j,4)}, v5 offset:{128*j}")
    for j in range(8):
        a(f"s_waitcnt lgkmcnt({7-j})")
        for q in range(4):
            x = 16 + 4 * j + q
            a(f"v_dot2_f32_bf16 v{8+q}, v{x}, s61, v{8+q}")
            a(f"v_dot2_f32_bf16 v{12+q}, v{x}, v{x}, v{12+q}")
    a.nop(3)
    for b in (8, 12):
        a(f"v_add_f32 v{b}, v{b}, v{b+1}")
        a(f"v_add_f32 v{b+2}, v{b+2}, v{b+3}")
        a(f"v_add_f32 v{b}, v{b}, v{b+2}")
    for off in (0x041F, 0x081F, 0x101F):
        a(f"ds_swizzle_b32 v9, v8 offset:{off:#x}")
        a(f"ds_swizzle_b32 v13, v12 offset:{off:#x}")
        a("s_waitcnt lgkmcnt(0)")
        a("v_add_f32 v8, v8, v9")
        a("v_add_f32 v12, v12, v13")
    a(f"v_mul_f32 v8, {f2u(1.0/512):#x}, v8")
    a(f"v_mul_f32 v12, {f2u(1.0/512):#x}, v12")
    a("v_fma_f32 v12, -v8, v8, v12")
    a("v_max_f32 v12, 0, v12")
    a(f"v_add_f32 v12, {f2u(EPS):#x}, v12")
    a("v_rsq_f32 v12, v12")
    a.nop(1)
    a("v_mul_f32 v13, v8, v12")
    a("v_sub_f32 v13, 0, v13")
    a("s_lshr_b32 s32, s3, 2")
    a("s_lshl_b32 s32, s32, 8")
    a("s_and_b32 s33, s3, 3")
    a("s_lshl_b32 s33, s33, 5")
    a("s_add_u32 s32, s32, s33")
    a(f"s_add_u32 s32, s32, {ST}")
    a("v_lshrrev_b32 v5, 3, v1")
    a("v_lshlrev_b32 v5, 2, v5")
    a("v_add_u32 v5, s32, v5")
    a("ds_write_b32 v5, v12")
    a("ds_write_b32 v5, v13 offset:128")
    a("s_lshl_b32 s32, s44, 6")
    a("v_subrev_u32 v6, s32, v118")
    a("s_lshl_b32 s32, s3, 13")
    a("v_add_u32 v6, s32, v6")
    a("s_lshl_b32 s32, s3, 11")
    a("v_add_u32 v7, s32, v119")
    for r in range(3):
        a(f"v_mov_b32 v{8+r}, 0")
    for i in range(4):
        a(f"ds_read_b64_tr_b16 {vr(48+4*i,2)}, v7 offset:{16*i*32}")
        a(f"ds_read_b64_tr_b16 {vr(50+4*i,2)}, v7 offset:{(16*i+4)*32}")
    a("s_waitcnt lgkmcnt(0)")
    for r in range(16):
        a(f"v_dot2_f32_bf16 v10, v{48+r}, s61, v10")
    a(f"s_waitcnt vmcnt({TOUCH2})")
    for c in range(2):
        for i in range(4):
            a(f"ds_read_b64_tr_b16 {vr(16+16*c+4*i,2)}, v6 offset:{16*i*128+64*c}")
            a(f"ds_read_b64_tr_b16 {vr(18+16*c+4*i,2)}, v6 offset:{(16*i+4)*128+64*c}")
    for c in range(2):
        a(f"s_waitcnt lgkmcnt({8*(1-c)})")
        for r in range(16):
            a(f"v_dot2_f32_bf16 v{8+c}, v{16+16*c+r}, s61, v{8+c}")
    a.nop(3)
    for r in range(3):
        half_sum(a, 8 + r, 11)
    a("s_mul_i32 s32, s3, 384")
    a(f"s_add_u32 s32, s32, {CSPQ}")
    a("v_lshlrev_b32 v5, 2, v3")
    a("v_add_u32 v5, s32, v5")
    for r in range(3):
        a(f"ds_write_b32 v5, v{8+r} offset:{128*r}")
    a("s_waitcnt lgkmcnt(0)")
    a("s_barrier")
    a.stamp(3)
    NB = 6
    XB, WB, ACC = 16, 40, 96

    def xrd(i):
        b = XB + 4 * (i % NB)
        a(f"ds_read_b128 {vr(b,4)}, v{120+(i%8)} offset:{(i//8)*256}")

    def gemm(wbase, RS, swapped):
        def wrd(i):
            b = WB + 4 * (i % NB)
            a(f"ds_read_b64_tr_b16 {vr(b,2)}, v{wbase} offset:{16*i*RS}")
            a(f"ds_read_b64_tr_b16 {vr(b+2,2)}, v{wbase} offset:{(16*i+4)*RS}")
        for i in range(NB - 1):
            xrd(i)
            wrd(i)
        for i in range(32):
            if i + NB - 1 < 32:
                xrd(i + NB - 1)
                wrd(i + NB - 1)
            pend = min(32, i + NB) - i - 1
            a(f"s_waitcnt lgkmcnt({3*pend})")
            xb, wb = XB + 4 * (i % NB), WB + 4 * (i % NB)
            cin = "0" if i == 0 else vr(ACC, 16)
            if swapped:
                a(f"v_mfma_f32_32x32x16_bf16 {vr(ACC,16)}, {vr(xb,4)}, {vr(wb,4)}, {cin}")
            else:
                a(f"v_mfma_f32_32x32x16_bf16 {vr(ACC,16)}, {vr(wb,4)}, {vr(xb,4)}, {cin}")

    def cs_regs(n, tile_sreg=None, tile=None):
        if tile_sreg is not None:
            a(f"s_lshl_b32 s32, s{tile_sreg}, 7")
            a(f"s_add_u32 s32, s32, {CSW}")
        else:
            a(f"s_mov_b32 s32, {CSW + 128*tile}")
        a("v_lshlrev_b32 v5, 4, v4")
        a("v_add_u32 v5, s32, v5")
        for q in range(n // 4):
            a(f"ds_read_b128 {vr(64+4*q,4)}, v5 offset:{32*q}")

    def row_stats():
        a("s_lshl_b32 s32, s43, 8")
        a(f"s_add_u32 s32, s32, {ST}")
        a("v_lshlrev_b32 v5, 2, v3")
        a("v_add_u32 v5, s32, v5")
        a("ds_read_b32 v12, v5")
        a("ds_read_b32 v13, v5 offset:128")
        a("s_waitcnt lgkmcnt(0)")

    a("s_cmp_ge_u32 s3, 6")
    a("s_cbranch_scc1 K0_stats")
    a("s_cmp_ge_u32 s3, 4")
    a("s_cbranch_scc1 K0_kv")
    gemm(118, 128, False)
    a.stamp(4)
    a("s_barrier")
    a.stamp(5)
    cs_regs(16, tile_sreg=44)
    row_stats()
    a(f"v_mul_f32 v12, {f2u(QS):#x}, v12")
    a(f"v_mul_f32 v13, {f2u(QS):#x}, v13")
    for r in range(16):
        a(f"v_mul_f32 v{64+r}, v13, v{64+r}")
        a(f"v_fma_f32 v{ACC+r}, v{ACC+r}, v12, v{64+r}")
    for q in range(8):
        a(f"v_cvt_pk_bf16_f32 v{16+q}, v{ACC+2*q}, v{ACC+2*q+1}")
    a("buffer_store_dwordx4 v[16:19], v2, s[8:11], s42 offen")
    a("buffer_store_dwordx4 v[20:23], v2, s[8:11], s42 offen offset:1024")
    a(f"s_branch {end}")
    a("K0_kv:")
    a("s_cmp_ge_u32 s5, 2")
    a(f"s_cbranch_scc1 {end}x")
    a("s_cmp_eq_u32 s5, 1")
    a("s_cbranch_scc1 K0_v")
    gemm(119, 32, False)
    a("s_barrier")
    cs_regs(8, tile=2)
    row_stats()
    a("v_mov_b32 v14, 0")
    for r in range(8):
        a(f"v_mul_f32 v{64+r}, v13, v{64+r}")
        a(f"v_fma_f32 v{ACC+r}, v{ACC+r}, v12, v{64+r}")
        a(f"v_fma_f32 v14, v{ACC+r}, v{ACC+r}, v14")
    for q in range(4):
        a(f"v_cvt_pk_bf16_f32 v{16+q}, v{ACC+2*q}, v{ACC+2*q+1}")
    a("buffer_store_dwordx4 v[16:19], v2, s[8:11], s47 offen")
    half_sum(a, 14, 15)
    a("s_lshl_b32 s32, s45, 7")
    a(f"s_add_u32 s32, s32, {KNL[0]:#x}")
    a("v_lshlrev_b32 v15, 2, v3")
    a("v_cmp_gt_u32 vcc, 32, v1")
    a("s_and_saveexec_b64 s[38:39], vcc")
    a("buffer_store_dword v14, v15, s[8:11], s32 offen")
    a(f"s_branch {end}")
    a("K0_v:")
    gemm(119, 32, True)
    a("s_barrier")
    a("v_lshlrev_b32 v5, 2, v3")
    a(f"v_add_u32 v5, {CSW+256}, v5")
    a("ds_read_b32 v8, v5")
    a("s_lshl_b32 s32, s43, 8")
    a(f"s_add_u32 s32, s32, {ST}")
    a("v_lshlrev_b32 v5, 4, v4")
    a("v_add_u32 v5, s32, v5")
    for q in range(4):
        a(f"ds_read_b128 {vr(64+4*q,4)}, v5 offset:{32*q}")
        a(f"ds_read_b128 {vr(80+4*q,4)}, v5 offset:{128+32*q}")
    a("s_waitcnt lgkmcnt(0)")
    for r in range(16):
        a(f"v_mul_f32 v{80+r}, v8, v{80+r}")
        a(f"v_fma_f32 v{ACC+r}, v{ACC+r}, v{64+r}, v{80+r}")
    for q in range(8):
        a(f"v_cvt_pk_bf16_f32 v{16+q}, v{ACC+2*q}, v{ACC+2*q+1}")
    a("v_cmp_eq_u32 s[38:39], 16, v3")
    a("v_mov_b32 v14, 0x3f803f80")
    a("v_mov_b32 v15, 0")
    a("v_cndmask_b32 v14, v15, v14, s[38:39]")
    a("v_cmp_gt_u32 vcc, 16, v3")
    a("v_lshlrev_b32 v5, 4, v3")
    a(f"v_mul_u32_u24 v15, {VH}, v4")
    for q in range(8):
        a(f"v_cndmask_b32 v{16+q}, v14, v{16+q}, vcc")
    a("v_add_u32 v5, v5, v15")
    a("v_cmp_gt_u32 vcc, 18, v3")
    a("s_and_saveexec_b64 s[38:39], vcc")
    a("buffer_store_dwordx4 v[16:19], v5, s[8:11], s47 offen offset:1024")
    a(f"buffer_store_dwordx4 v[20:23], v5, s[8:11], s47 offen offset:{1024+VU}")
    a(f"s_branch {end}")
    a("K0_stats:")
    a("s_lshl_b32 s32, s43, 8")
    a("v_lshlrev_b32 v5, 2, v1")
    a("v_lshlrev_b32 v6, 2, v3")
    a("s_cmp_eq_u32 s43, 0")
    a("s_cbranch_scc1 K0_cs6")
    a("v_mov_b32 v5, v6")
    a("K0_cs6:")
    a("v_add_u32 v5, s32, v5")
    a(f"v_add_u32 v6, {CSPQ}, v5")
    for s in range(8):
        a(f"ds_read_b32 v{16+s}, v6 offset:{384*s}")
    a("s_waitcnt lgkmcnt(0)")
    for s in range(1, 8):
        a(f"v_add_f32 v16, v16, v{16+s}")
    a(f"v_add_u32 v5, {CSW}, v5")
    a("ds_write_b32 v5, v16")
    a("s_waitcnt lgkmcnt(0)")
    a("s_barrier")
    a(f"s_branch {end}x")
    a("K0_prep:")
    a("s_sub_u32 s63, 255, s2")
    a.srd(52, 20, 512 * 16 * 2)
    a.srd(56, 22, 512 * 16 * 2)
    a("s_cmp_lt_u32 s63, 154")
    a("s_cbranch_scc1 K0_ptask")
    a("K0_pidle:")
    a(f"s_branch {end}x")
    a("K0_ptask:")
    a("s_cmp_lg_u32 s63, 153")
    a("s_cbranch_scc1 K0_pw")
    a("s_lshl_b32 s32, s3, 11")
    a(f"s_add_u32 s32, s32, {FLAGS:#x}")
    for r in range(4):
        a(f"v_mov_b32 v{16+r}, 0")
    a("buffer_store_dwordx4 v[16:19], v2, s[8:11], s32 offen")
    a("buffer_store_dwordx4 v[16:19], v2, s[8:11], s32 offen offset:1024")
    a("s_branch K0_pidle")
    a("K0_pw:")
    a("s_mov_b32 s46, 0")
    a("s_mov_b32 s36, 32")
    a("s_cmp_eq_u32 s63, 152")
    a("s_cbranch_scc1 K0_pkv")
    a("s_cmp_ge_u32 s63, 88")
    a("s_cbranch_scc1 K0_pw2")
    a("s_cmp_ge_u32 s63, 32")
    a("s_cbranch_scc1 K0_pw1")
    a("s_cmp_ge_u32 s63, 16")
    a("s_cbranch_scc1 K0_pwo")
    a.srd(40, 18, 512 * 512 * 2)
    a("s_mov_b32 s44, 1024")
    a("s_mov_b32 s45, s63")
    a("s_lshl_b32 s47, s45, 15")
    a(f"s_add_u32 s47, s47, {WQF:#x}")
    a("s_lshl_b32 s49, s45, 7")
    a(f"s_add_u32 s49, s49, {CSQ:#x}")
    a("s_branch K0_pgo")
    a("K0_pwo:")
    a.srd(40, 24, 512 * 512 * 2)
    a("s_mov_b32 s44, 1024")
    a("s_sub_u32 s45, s63, 16")
    a("s_lshl_b32 s47, s45, 15")
    a(f"s_add_u32 s47, s47, {WOF:#x}")
    a("s_mov_b32 s49, 0")
    a("s_branch K0_pgo")
    a("K0_pw1:")
    a.srd(40, 28, 512 * 1792 * 2)
    a("s_mov_b32 s44, 3584")
    a("s_sub_u32 s45, s63, 32")
    a("s_lshl_b32 s47, s45, 15")
    a(f"s_add_u32 s47, s47, {W1F:#x}")
    a("s_lshl_b32 s49, s45, 7")
    a(f"s_add_u32 s49, s49, {CS1:#x}")
    a("s_branch K0_pgo")
    a("K0_pw2:")
    a.srd(40, 30, 512 * 1792 * 2)
    a("s_mov_b32 s44, 1024")
    a("s_sub_u32 s45, s63, 88")
    a("s_and_b32 s46, s45, 3")
    a("s_mul_i32 s46, s46, 28")
    a("s_lshr_b32 s45, s45, 2")
    a("s_mul_i32 s47, s45, 112")
    a("s_add_u32 s47, s47, s46")
    a("s_lshl_b32 s47, s47, 10")
    a(f"s_add_u32 s47, s47, {W2F:#x}")
    a("s_mov_b32 s36, 28")
    a("s_mov_b32 s49, 0")
    a("K0_pgo:")
    a("s_lshl_b32 s50, s3, 2")
    a("s_cmp_ge_u32 s50, s36")
    a(f"s_cbranch_scc1 {end}x")
    a("v_lshrrev_b32 v5, 2, v1")
    a("v_mul_lo_u32 v5, v5, s44")
    a("v_and_b32 v6, 3, v1")
    a("v_lshl_add_u32 v5, v6, 4, v5")
    a("s_add_u32 s51, s46, s50")
    a("s_lshl_b32 s51, s51, 4")
    a("s_mul_i32 s51, s51, s44")
    a("s_lshl_b32 s32, s45, 6")
    a("s_add_u32 s51, s51, s32")
    a("s_lshl_b32 s33, s44, 4")
    for i in range(4):
        a(f"buffer_load_dwordx4 {vr(32+4*i,4)}, v5, s[40:43], s51 offen")
        a("s_add_u32 s51, s51, s33")
    a("s_branch K0_ptr")
    a("K0_pkv:")
    a("s_lshl_b32 s50, s3, 2")
    a("v_lshrrev_b32 v7, 2, v1")
    a("v_lshlrev_b32 v7, 5, v7")
    a("v_and_b32 v5, 1, v1")
    a("v_lshl_add_u32 v7, v5, 4, v7")
    a("v_and_b32 v5, 2, v1")
    a("v_cmp_eq_u32 vcc, 0, v5")
    a("s_lshl_b32 s20, s3, 11")
    a("s_and_saveexec_b64 s[38:39], vcc")
    for i in range(4):
        a(f"buffer_load_dwordx4 {vr(32+4*i,4)}, v7, s[52:55], s20 offen offset:{512*i}")
    a("s_andn2_b64 exec, s[38:39], exec")
    for i in range(4):
        a(f"buffer_load_dwordx4 {vr(32+4*i,4)}, v7, s[56:59], s20 offen offset:{512*i}")
    a("s_mov_b64 exec, s[38:39]")
    a(f"s_mov_b32 s47, {WKVF:#x}")
    a(f"s_mov_b32 s49, {CSKV:#x}")
    a("K0_ptr:")
    a("s_lshl_b32 s32, s50, 10")
    a("s_add_u32 s47, s47, s32")
    if TOUCH2:
        a("v_lshlrev_b32 v9, 7, v3")
        a("buffer_load_dword v10, v9, s[8:11], s47 offen")
    a("s_lshl_b32 s62, s3, 10")
    a(f"s_add_u32 s62, s62, {KVW}")
    tr_addr(a, 8, 64, 5, 6)
    a("v_add_u32 v8, s62, v8")
    a("v_add_u32 v9, s62, v2")
    a("v_mov_b32 v7, 0")
    a("s_barrier")
    a(f"s_waitcnt vmcnt({TOUCH2})")
    for i in range(4):
        a(f"ds_write_b128 v9, {vr(32+4*i,4)}")
        a(f"ds_read_b64_tr_b16 {vr(16+4*i,2)}, v8")
        a(f"ds_read_b64_tr_b16 {vr(18+4*i,2)}, v8 offset:{8*64}")
    for i in range(4):
        a(f"s_waitcnt lgkmcnt({3*(3-i)})")
        a(f"buffer_store_dwordx4 {vr(16+4*i,4)}, v2, s[8:11], s47 offen offset:{1024*i}")
        for q in range(4):
            a(f"v_dot2_f32_bf16 v7, v{16+4*i+q}, s61, v7")
    a("s_cmp_eq_u32 s49, 0")
    a(f"s_cbranch_scc1 {end}x")
    a.nop(2)
    half_sum(a, 7, 5)
    a("s_lshl_b32 s32, s3, 7")
    a(f"s_add_u32 s32, s32, {CSP2}")
    a("v_lshlrev_b32 v6, 2, v3")
    a("v_add_u32 v5, s32, v6")
    a("ds_write_b32 v5, v7")
    a("s_waitcnt lgkmcnt(0)")
    a("s_barrier")
    a("s_cmp_lg_u32 s3, 0")
    a(f"s_cbranch_scc1 {end}x")
    a(f"v_add_u32 v5, {CSP2}, v6")
    for s in range(8):
        a(f"ds_read_b32 v{16+s}, v5 offset:{128*s}")
    a("s_waitcnt lgkmcnt(0)")
    for s in range(1, 8):
        a(f"v_add_f32 v16, v16, v{16+s}")
    a("v_cmp_gt_u32 vcc, 32, v1")
    a("s_and_saveexec_b64 s[38:39], vcc")
    a("buffer_store_dword v16, v6, s[8:11], s49 offen")
    a(f"s_branch {end}x")
    a(f"{end}:")
    a.stamp(6)
    a.stamp_flush(8)
    a(f"{end}x:")
    a("s_endpgm")
    a.desc(name, 128)
    return CSP2 + 1024


def gen_zero_flags(a):
    pass


def main():
    a = Asm()
    G.XF, G.QF, G.KVF = XFL[0], QFL[0], KVFL[0]
    G.FLAGS_ZERO = FLAGS
    lds_k0 = gen_K0(a)
    lds_f = gen_F(a, 0)
    gen_F(a, 1)
    hdr = ["; generated by gen/gen2.py -- fused MQA + FFN pipeline"]
    L = hdr.append
    L(f"; @launch kernel=k0_kernel grid=(256,1,1) block=(1024,1,1) lds={lds_k0}")
    L(f"; @launch kernel=f1_kernel grid=(256,1,1) block=(512,1,1) lds={lds_f}")
    L(f"; @launch kernel=f2_kernel grid=(256,1,1) block=(512,1,1) lds={lds_f}")
    out = "\n".join(hdr) + "\n"
    out += '.amdgcn_target "amdgcn-amd-amdhsa--gfx950"\n.text\n'
    out += "\n".join(a.L) + "\ncode_end:\n"
    out += '.section .rodata,"a"\n' + "\n".join(a.kernels) + "\n"
    path = sys.argv[1] if len(sys.argv) > 1 else f"cdna_kernels/{NAME}.s"
    open(path, 'w').write(out)
    if PROFILE:
        import json
        json.dump(G.PROF_SLOT, open('prof_slots.json', 'w'))
    print("wrote", path, len(out), "bytes")


if __name__ == "__main__":
    main()
```
